```python
import torch

def _softmax(x, axis=-1):
    return torch.softmax(x, dim=axis)
def _gelu(x):
    return torch.nn.functional.gelu(x, approximate="tanh")
def _silu(x):
    return torch.nn.functional.silu(x)
def _sigmoid(x):
    return torch.sigmoid(x)
def _layernorm(x, axis=-1, eps=1e-5):
    m = x.mean(dim=axis, keepdim=True)
    v = x.var(dim=axis, keepdim=True, unbiased=False)
    return (x - m) / torch.sqrt(v + eps)
def _scatter_add(tgt, idx, src, axis=0):
    return tgt.clone().index_add_(axis, idx, src)
def _segment_sum(src, seg, n):
    out = torch.zeros((n,) + src.shape[1:], dtype=src.dtype)
    return out.index_add_(0, seg, src)
def _pad(x, pw):
    flat = tuple(v for pair in reversed(pw) for v in pair)
    return torch.nn.functional.pad(x, flat)

kernel_name = 'parallel_sum__linear_attn_block__mixer_s_mlp__prompt'

def setup_inputs():

    _w = (lambda a: (lambda t: t.to(torch.bfloat16) if t.is_floating_point() else t)(torch.as_tensor(a)))
    def _A_setup():
        B, S, D = 1, 2048, 512
        return {
            "x": _w((lambda *s: torch.randn(*s, dtype=torch.bfloat16) * 0.05)(B, S, D)),
            "wqkv": _w((lambda *s: torch.randn(*s, dtype=torch.bfloat16) * 0.4)(D, 3 * D)),
            "wo": _w((lambda *s: torch.randn(*s, dtype=torch.bfloat16) * 0.1)(D, D)),
        }
    _A_in = _A_setup()

    def _B_setup():
        B, S, D, F = 1, 2048, 512, 1792
        return {
            "x":  _w((lambda *s: torch.randn(*s, dtype=torch.bfloat16) * 0.05)(B, S, D)),
            "w1": _w((lambda *s: torch.randn(*s, dtype=torch.bfloat16) * 0.8)(D, D) * (D ** -0.5)),
            "w2": _w((lambda *s: torch.randn(*s, dtype=torch.bfloat16) * 0.8)(D, D) * (D ** -0.5)),
            "w3": _w((lambda *s: torch.randn(*s, dtype=torch.bfloat16) * 0.8)(D, F) * (D ** -0.5)),
            "w4": _w((lambda *s: torch.randn(*s, dtype=torch.bfloat16) * 0.8)(F, D) * (F ** -0.5)),
        }
    _B_in = _B_setup()

    return {
        "A_x": _A_in["x"],
        "A_wqkv": _A_in["wqkv"],
        "A_wo": _A_in["wo"],
        "B_x": _B_in["x"],
        "B_w1": _B_in["w1"],
        "B_w2": _B_in["w2"],
        "B_w3": _B_in["w3"],
        "B_w4": _B_in["w4"],
    }

def reference(A_x, A_wqkv, A_wo, B_x, B_w1, B_w2, B_w3, B_w4):
    def _A_ref(x, wqkv, wo):
        B, S, D = x.shape
        H = 32; Dh = D // H
        qkv = (lambda x, *d: x.permute(*d))((x @ wqkv).reshape(B, S, 3, H, Dh), 2, 0, 3, 1, 4)
        q, k, v = qkv[0], qkv[1], qkv[2]
        phi = lambda t: torch.where(t > 0, t + 1, torch.exp(t)) + 1e-6
        pq, pk = phi(q), phi(k)
        kv = torch.einsum("bhsd,bhse->bhde", pk, v)
        z = torch.einsum("bhsd->bhd", pk)
        num = torch.einsum("bhqd,bhde->bhqe", pq, kv)
        den = torch.einsum("bhqd,bhd->bhq", pq, z)[..., None] + 1e-6
        o = num / den
        return (lambda x, *d: x.permute(*d))(o, 0, 2, 1, 3).reshape(B, S, D) @ wo

    def _B_ref(x, w1, w2, w3, w4):
        B, S, D = x.shape
        h = _gelu(_layernorm(x, axis=-1) @ w1)
        c = D // 4
        g0 = _pad(h[:, :, 0*c:1*c], ((0, 0), (1, 0), (0, 0)))[:, :S, :]
        g1 = _pad(h[:, :, 1*c:2*c], ((0, 0), (0, 1), (0, 0)))[:, 1:, :]
        g2 = _pad(h[:, :, 2*c:3*c], ((0, 0), (2, 0), (0, 0)))[:, :S, :]
        g3 = _pad(h[:, :, 3*c:   ], ((0, 0), (0, 2), (0, 0)))[:, 2:, :]
        hs = torch.concatenate([g0, g1, g2, g3], axis=-1) @ w2
        x1 = x + hs
        h2 = _gelu(_layernorm(x1, axis=-1) @ w3) @ w4
        return x1 + h2

    x = A_x
    xn = _layernorm(x, axis=-1)
    return x + _A_ref(xn, A_wqkv, A_wo) + _B_ref(xn, B_w1, B_w2, B_w3, B_w4)
```

```python
import re

REG_RE = re.compile(r'\b([vs])(?:(\d+)|\[(\d+):(\d+)\])')
TRANS = ('v_exp_f32', 'v_log_f32', 'v_rcp_f32', 'v_rsq_f32', 'v_sqrt_f32', 'v_sin_f32', 'v_cos_f32')


def regs_of(tok):
    out = set()
    for m in REG_RE.finditer(tok):
        f = m.group(1)
        if m.group(2) is not None:
            out.add((f, int(m.group(2))))
        else:
            for i in range(int(m.group(3)), int(m.group(4)) + 1):
                out.add((f, i))
    if re.search(r'\bvcc\b', tok):
        out.add(('s', 106)); out.add(('s', 107))
    if re.search(r'\bm0\b', tok):
        out.add(('s', 124))
    return out


def split_ops(s):
    ops, depth, cur = [], 0, ''
    for ch in s:
        if ch == '[': depth += 1
        if ch == ']': depth -= 1
        if ch == ',' and depth == 0:
            ops.append(cur.strip()); cur = ''
        else:
            cur += ch
    if cur.strip():
        ops.append(cur.strip())
    return ops


class Ins:
    __slots__ = ('text', 'mn', 'cls', 'rd', 'wr', 'states', 'passes', 'A', 'B', 'C', 'storedata', 'islabel')

    def __init__(self, text):
        self.text = text
        self.islabel = text.endswith(':') or text.startswith('.')
        self.rd = set(); self.wr = set(); self.states = 1; self.passes = 0
        self.A = self.B = self.C = set(); self.storedata = set()
        if self.islabel:
            self.mn = ''; self.cls = 'label'; self.states = 0
            return
        parts = text.split(None, 1)
        mn = parts[0]
        base = re.sub(r'_(e32|e64|dpp|sdwa)$', '', mn)
        self.mn = base
        rest = parts[1] if len(parts) > 1 else ''
        ops = split_ops(rest)
        R = [regs_of(o) for o in ops]
        if base.startswith('v_mfma'):
            self.cls = 'mfma'
            self.wr = R[0]; self.A = R[1]; self.B = R[2]; self.C = R[3]
            self.rd = R[1] | R[2] | R[3]
            self.passes = 8 if '32x32' in base else 4
        elif base.startswith('v_cmp'):
            self.cls = 'valu'
            self.wr = R[0]; self.rd = set().union(*R[1:])
        elif base.startswith('v_permlane'):
            self.cls = 'valu'
            self.wr = R[0] | R[1]; self.rd = R[0] | R[1]
        elif base in ('v_readfirstlane_b32', 'v_readlane_b32'):
            self.cls = 'valu'
            self.wr = R[0]; self.rd = set().union(*R[1:])
        elif base.startswith('v_'):
            self.cls = 'valu'
            self.wr = set(R[0]); self.rd = set().union(*R[1:]) if len(R) > 1 else set()
            if base in ('v_fmac_f32', 'v_writelane_b32', 'v_dot2c_f32_bf16'):
                self.rd |= R[0]
            if base == 'v_cndmask_b32' and len(ops) == 3:
                self.rd |= {('s', 106), ('s', 107)}
            if '_co_' in base:
                self.wr |= R[1]
        elif base.startswith('ds_read'):
            self.cls = 'ds'; self.wr = R[0]; self.rd = R[1]
        elif base.startswith('ds_write') or base.startswith('ds_add'):
            self.cls = 'ds'; self.rd = set().union(*R)
        elif base.startswith('buffer_'):
            self.cls = 'vmem'
            lds = bool(re.search(r'\blds\b', rest))
            if 'load' in base and not lds:
                self.wr = R[0]; self.rd = set().union(*R[1:])
            elif lds:
                self.rd = set().union(*R) | {('s', 124)}
            else:
                self.rd = set().union(*R)
                if 'x4' in base or 'x3' in base:
                    self.storedata = R[0]
        elif base == 's_nop':
            self.cls = 'salu'; self.states = int(ops[0], 0) + 1
        elif base.startswith('s_'):
            self.cls = 'salu'
            if base.startswith(('s_cmp', 's_cbranch', 's_branch', 's_waitcnt', 's_barrier', 's_endpgm', 's_setprio', 's_sleep', 's_bitcmp')):
                self.rd = set().union(*R) if R else set()
            else:
                self.wr = R[0] if R else set(); self.rd = set().union(*R[1:]) if len(R) > 1 else set()
        else:
            raise ValueError('unknown instr ' + text)


def need(p, c):
    n = 0
    vw = {r for r in p.wr if r[0] == 'v'}
    sw = {r for r in p.wr if r[0] == 's'}
    if p.cls == 'valu':
        isdot = p.mn.startswith('v_dot')
        if c.cls == 'mfma' and vw & c.rd:
            n = max(n, 3 if isdot else 2)
        if c.cls == 'valu':
            if p.mn in TRANS and c.mn not in TRANS and vw & c.rd: n = max(n, 1)
            if c.mn.startswith('v_permlane') and vw & c.rd: n = max(n, 2)
            if c.mn in ('v_readfirstlane_b32', 'v_readlane_b32') and vw & c.rd: n = max(n, 1)
            if 'dpp' in c.text or 'row_' in c.text or 'quad_perm' in c.text:
                if vw & c.rd: n = max(n, 2)
            if sw & c.rd: n = max(n, 4 if c.mn in ('v_readlane_b32', 'v_writelane_b32') else 2)
        if isdot and vw & (c.rd | c.wr):
            if c.mn == p.mn:
                ops = split_ops(c.text.split(None, 1)[1])
                ab = regs_of(ops[1]) | regs_of(ops[2])
                if vw & ab: n = max(n, 3)
            else:
                n = max(n, 3)
        if c.cls == 'vmem' and sw & c.rd: n = max(n, 5)
        if c.cls == 'salu' and sw & c.rd: n = max(n, 1)
    if p.cls == 'mfma':
        big = 12 if p.passes == 8 else 8
        if c.cls in ('valu', 'ds', 'vmem') and p.wr & (c.rd | c.wr): n = max(n, big)
        if c.cls == 'mfma':
            if p.wr & (c.A | c.B): n = max(n, big)
            if p.wr & c.C and not (p.wr == c.C and p.passes == c.passes): n = max(n, big - 2)
            if p.wr & c.wr and not (p.wr == c.C and p.passes == c.passes): n = max(n, big - 2)
        if c.cls == 'valu' and p.C & c.wr: n = max(n, 7 if p.passes == 8 else 3)
    if p.cls == 'salu' and ('s', 124) in p.wr and c.cls == 'vmem' and ('s', 124) in c.rd:
        n = max(n, 1)
    if p.cls == 'vmem' and p.storedata and c.cls in ('valu', 'mfma') and p.storedata & c.wr:
        n = max(n, 2)
    if p.cls == 'vmem' and p.storedata and c.cls in ('ds', 'vmem') and p.storedata & c.wr:
        n = max(n, 1)
    return n


class Asm:
    def __init__(self):
        self.ins = []
        self.lg = []
        self.vm = []
        self.ntok = 0
        self.npad = 0

    def raw(self, text):
        i = Ins(text)
        if not i.islabel:
            dist = 0; req = 0
            for p in reversed(self.ins):
                if p.islabel:
                    continue
                if dist >= 20: break
                r = need(p, i) - dist
                req = max(req, r)
                dist += p.states
            while req > 0:
                k = min(req, 16)
                self.ins.append(Ins(f's_nop {k-1}')); self.npad += 1
                req -= k
        self.ins.append(i)
        return i

    def __call__(self, text):
        for line in text.split('\n'):
            line = line.split(';')[0].strip()
            if line:
                i = self.raw(line)
                if i.cls == 'ds':
                    self.ntok += 1; self.lg.append(self.ntok)
                elif i.cls == 'vmem':
                    self.ntok += 1; self.vm.append(self.ntok)
        return self.ntok

    def wait_lg(self, tok):
        if tok not in self.lg: return
        n = len(self.lg) - 1 - self.lg.index(tok)
        n = min(n, 15)
        self.raw(f's_waitcnt lgkmcnt({n})')
        self.lg = self.lg[len(self.lg) - n:] if n else []

    def wait_vm(self, tok):
        if tok not in self.vm: return
        n = len(self.vm) - 1 - self.vm.index(tok)
        n = min(n, 63)
        self.raw(f's_waitcnt vmcnt({n})')
        self.vm = self.vm[len(self.vm) - n:] if n else []

    def wait_both(self, lt, vt):
        a = lt in self.lg; b = vt in self.vm
        if a and b:
            n = min(len(self.lg) - 1 - self.lg.index(lt), 15)
            m = min(len(self.vm) - 1 - self.vm.index(vt), 63)
            self.raw(f's_waitcnt vmcnt({m}) lgkmcnt({n})')
            self.lg = self.lg[len(self.lg) - n:] if n else []
            self.vm = self.vm[len(self.vm) - m:] if m else []
        elif a:
            self.wait_lg(lt)
        elif b:
            self.wait_vm(vt)

    def wait_lg0(self, force=False):
        if self.lg or force:
            self.raw('s_waitcnt lgkmcnt(0)'); self.lg = []

    def wait_vm0(self, force=False):
        if self.vm or force:
            self.raw('s_waitcnt vmcnt(0)'); self.vm = []

    def text(self):
        return '\n'.join(('' if i.islabel else '    ') + i.text for i in self.ins) + '\n'
```

```python
import sys, math, struct
sys.path.insert(0, 'dev')
from asmlib import Asm

KNAME = 'parallel_sum__linear_attn_block__mixer_s_mlp__prompt_kernel'

H_OFF, X1_OFF, O_OFF, G_OFF = 0x000000, 0x200000, 0x400000, 0x600000
KV_OFF, FL_OFF, TS_OFF = 0xD00000, 0xD10000, 0xE00000
WS_BYTES = 0x1000000
KV_Z, KV_CS, KV_CNT_CS, KV_CNT_KV = 4096, 4608, 6144, 6400
FH, FX1, FO, FG = 0, 1, 2, 3
GBLK = 229376
RING = 0x10000
SC = 0x24000
S1, S2, NMU, RHO, RHL = SC, SC + 1024, SC + 2048, SC + 2304, SC + 2560
PQ, X1P, CS3L = SC, SC + 9216, SC + 10240
OOB = 0x80000000

def f2u(x): return struct.unpack('<I', struct.pack('<f', x))[0]
LOG2E = 1.4426950408889634
GC0 = -2.0 * math.sqrt(2.0 / math.pi) * LOG2E
GC1 = GC0 * 0.044715

sX, sQKV, sWO, sW1, sW2, sW3, sW4, sOUT, sWS, sDBG = 28, 32, 36, 40, 44, 48, 52, 56, 60, 64
sR, sJ, sW, sTH, sHI = 68, 69, 70, 71, 72
sT0, sT1, sT2, sT3, sT4, sT5 = 73, 74, 75, 76, 77, 78
sEPS = 80
sONE, sSEL0, sSEL1 = 82, 83, 84
sA, sB, sC, sD = 85, 86, 87, 88
sPOLL = 92
sCNT = 90
sTSP = 100

def srd(n): return f's[{n}:{n+3}]'
def vr(n, k=1): return f'v{n}' if k == 1 else f'v[{n}:{n+k-1}]'

STAGES = ([('w1', s) for s in range(4)] + [('kv', s) for s in range(8)] + [('w2', s) for s in range(4)] +
          [('wq', s) for s in range(4)] + [('p0', s) for s in range(4)] + [('hf', s) for s in range(2)] +
          [('p1', s) for s in range(4)] + [('p2', s) for s in range(4)] + [('wo', s) for s in range(4)] +
          [('w4', s) for s in range(14)])
NST = len(STAGES)
AREL = 27

def plan_slots():
    free = [RING + i * 0x4000 for i in range(5)]
    slot = {}; issue = {}
    nxt = 0
    def drain(b):
        nonlocal nxt
        while free and nxt < NST:
            slot[nxt] = free.pop(0); issue.setdefault(b, []).append(nxt); nxt += 1
    drain(-1)
    for b in range(NST):
        if b >= 2: free.append(slot[b - 2])
        if b == AREL: free.extend([0, 0x4000, 0x8000, 0xC000])
        drain(b)
    return slot, issue
SLOT, ISSUE = plan_slots()


class Gen:
    def __init__(self, opt):
        self.opt = opt
        self.barsC = []; self.barsH = []

    def prologue(self, a):
        a('s_cmp_ge_u32 s2, 256\ns_cbranch_scc1 L_end')
        a('s_load_dwordx16 s[4:19], s[0:1], 0\ns_load_dwordx4 s[20:23], s[0:1], 64\ns_load_dwordx2 s[24:25], s[0:1], 80')
        if self.opt.get('prof'):
            a(f's_memrealtime s[26:27]')
        m = self.opt.get('map', 'same')
        if m == 'same':
            a(f's_and_b32 s{sR}, s2, 7\ns_lshr_b32 s{sT0}, s2, 6\ns_lshl_b32 s{sT0}, s{sT0}, 3\ns_or_b32 s{sR}, s{sR}, s{sT0}')
            a(f's_lshr_b32 s{sJ}, s2, 3\ns_and_b32 s{sJ}, s{sJ}, 7')
        elif m == 'h4':
            a(f's_and_b32 s{sR}, s2, 3\ns_lshr_b32 s{sT0}, s2, 5\ns_lshl_b32 s{sT0}, s{sT0}, 2\ns_or_b32 s{sR}, s{sR}, s{sT0}')
            a(f's_lshr_b32 s{sJ}, s2, 2\ns_and_b32 s{sJ}, s{sJ}, 7')
        elif m == 'cross':
            a(f's_lshr_b32 s{sR}, s2, 3\ns_and_b32 s{sJ}, s2, 7')
        a('v_lshrrev_b32 v1, 6, v0\nv_and_b32 v0, 63, v0')
        a(f'v_readfirstlane_b32 s{sT1}, v1')
        a(f's_and_b32 s{sW}, s{sT1}, 3\ns_and_b32 s{sTH}, s{sT1}, 1\ns_lshr_b32 s{sHI}, s{sW}, 1')
        a(f's_mov_b32 s{sEPS}, {f2u(1e-6):#x}\ns_mov_b32 s{sEPS+1}, {f2u(1e-6):#x}')
        a(f's_mov_b32 s{sONE}, 0x3f803f80\ns_mov_b32 s{sSEL0}, 0x00003f80\ns_mov_b32 s{sSEL1}, 0x3f800000')
        for (s, n) in ((sX, 2 << 20), (sQKV, 512 * 3072), (sWO, 512 * 1024), (sW1, 512 * 1024), (sW2, 512 * 1024),
                       (sW3, 512 * 3584), (sW4, 1792 * 1024), (sOUT, 2 << 20), (sWS, WS_BYTES), (sDBG, 256)):
            a(f's_mov_b32 s{s+2}, {n}\ns_mov_b32 s{s+3}, 0x20000')
        a('s_waitcnt lgkmcnt(0)')
        for (s, p) in ((sX, 4), (sQKV, 6), (sWO, 8), (sW1, 12), (sW2, 14), (sW3, 16), (sW4, 18), (sOUT, 20), (sDBG, 22), (sWS, 24)):
            a(f's_mov_b32 s{s}, s{p}\ns_and_b32 s{s+1}, s{p+1}, 0xffff')
        a(f's_cmp_ge_u32 s{sT1}, 4\ns_cbranch_scc1 L_helper')

    def run_steps(self, a, steps):
        n = len(steps)
        sched = {}
        for i, s in enumerate(steps):
            sched.setdefault(s['at'], []).append(i)
        def items(i):
            s = steps[i]
            out = []
            if s.get('pre'): out.append(('pre', i))
            out += [('rd', i, t) for t in s['reads']]
            return out
        def emit(it):
            if it[0] == 'pre':
                steps[it[1]]['pre']()
            elif it[0] == 'rd':
                steps[it[1]]['tok'] = a(it[2])
            else:
                it[1]()
        for i in sched.get(-1, []):
            for it in items(i): emit(it)
        for k in range(n):
            s = steps[k]
            if s.get('hook'): s['hook']()
            pend = []
            for i in sched.get(k, []):
                if i == k:
                    for it in items(i): emit(it)
                else:
                    pend += items(i)
            pend += [('post', f) for f in s.get('post', [])]
            vt = s['vm']() if s.get('vm') else None
            a.wait_both(s.get('tok'), vt)
            nm = len(s['mfmas'])
            per = -(-len([p for p in pend if p[0] != 'pre']) // nm) if pend else 0
            for mi, m in enumerate(s['mfmas']):
                a(m)
                c = 0
                while pend and (c < per or mi == nm - 1):
                    it = pend.pop(0)
                    emit(it)
                    if it[0] != 'pre': c += 1

    def barC(self, a, name):
        self.barsC.append(name); a('s_barrier')

    def gelu(self, a, pairs, tmp):
        P = lambda r: vr(r, 2)
        for i, (ac, cs, st, o) in enumerate(pairs):
            a(f'v_pk_fma_f32 {P(ac)}, {P(cs)}, {P(st)}, {P(ac)} op_sel:[0,0,0] op_sel_hi:[1,0,1]')
        for i, (ac, cs, st, o) in enumerate(pairs):
            a(f'v_pk_mul_f32 {P(tmp+2*i)}, {P(ac)}, {P(ac)}')
        for i, (ac, cs, st, o) in enumerate(pairs):
            a(f'v_pk_fma_f32 {P(tmp+2*i)}, {P(tmp+2*i)}, {P(st+2)}, {P(st)} op_sel:[0,0,1] op_sel_hi:[1,0,1]')
        for i, (ac, cs, st, o) in enumerate(pairs):
            a(f'v_pk_mul_f32 {P(tmp+2*i)}, {P(tmp+2*i)}, {P(ac)}')
        for i in range(2 * len(pairs)):
            a(f'v_exp_f32_e64 v{tmp+i}, v{tmp+i}')
        for i, (ac, cs, st, o) in enumerate(pairs):
            a(f'v_pk_fma_f32 {P(tmp+2*i)}, {P(tmp+2*i)}, {P(st+2)}, {P(st+2)} op_sel:[0,1,1] op_sel_hi:[1,1,1]')
        for i in range(2 * len(pairs)):
            a(f'v_rcp_f32_e64 v{tmp+i}, v{tmp+i}')
        for i, (ac, cs, st, o) in enumerate(pairs):
            a(f'v_pk_mul_f32 {P(tmp+2*i)}, {P(tmp+2*i)}, {P(ac)}')
        for i, (ac, cs, st, o) in enumerate(pairs):
            a(f'v_cvt_pk_bf16_f32 v{o}, v{tmp+2*i}, v{tmp+2*i+1}')

    def phi_tail(self, a, acs, outs, tmp):
        P = lambda r: vr(r, 2)
        n = len(acs)
        for i in range(2 * n): a(f'v_min_f32_e64 v{tmp+i}, v{tmp+i}, 0')
        for i in range(2 * n): a(f'v_exp_f32_e64 v{tmp+i}, v{tmp+i}')
        for ac in acs:
            a(f'v_max_f32_e64 v{ac}, v{ac}, s{sEPS}\nv_max_f32_e64 v{ac+1}, v{ac+1}, s{sEPS}')
        for i, ac in enumerate(acs): a(f'v_pk_add_f32 {P(ac)}, {P(ac)}, {P(tmp+2*i)}')
        for i, ac in enumerate(acs): a(f'v_cvt_pk_bf16_f32 v{outs[i]}, v{ac}, v{ac+1}')

    def compute(self, a):
        opt = self.opt
        P = lambda r: vr(r, 2)
        XB = [2, 3, 4, 5]; PAT16, WK16 = 6, 7
        PATN = [8, 9]; PATP = [10, 11, 12, 13]; PAT3 = [14, 15]
        WK = [16, 17, 18, 19]
        CELLV, CELLT, LL16, RDX = 20, 21, 22, 23
        RES = 24; QST = 40; PST = 196
        ONES = 56
        T = [240 + i for i in range(16)]
        q, i16, rr, c, h, t32, fsub = 228, 229, 230, 231, 232, 233, 234
        a(f'v_lshrrev_b32 v{q}, 4, v0\nv_and_b32 v{i16}, 15, v0\nv_lshrrev_b32 v{rr}, 2, v{i16}\nv_and_b32 v{c}, 3, v0')
        a(f'v_lshrrev_b32 v{h}, 5, v0\nv_and_b32 v{t32}, 31, v0\nv_and_b32 v{fsub}, 1, v{q}')
        a(f'v_lshlrev_b32 v{LL16}, 4, v0')
        a(f's_or_b32 s{sT0}, s{sR}, s{sW}\ns_cmp_lg_u32 s{sT0}, 0\ns_cbranch_scc1 L_nozero')
        a(f'v_mov_b32 v{T[0]}, 0\nv_mov_b32 v{T[1]}, 0\nv_mov_b32 v{T[2]}, 0\nv_mov_b32 v{T[3]}, 0')
        a(f's_lshl_b32 s{sT0}, s{sJ}, 13\ns_add_u32 s{sT0}, s{sT0}, {KV_OFF}\ns_add_u32 s{sT2}, s{sT0}, 4096')
        for u in range(8):
            a(f'buffer_store_dwordx4 {vr(T[0],4)}, v{LL16}, {srd(sWS)}, s{sT0 if u < 4 else sT2} offen offset:{(u&3)*1024} sc1')
        a(f'v_lshlrev_b32 v{T[4]}, 12, v{h}\nv_lshl_add_u32 v{T[4]}, v{t32}, 4, v{T[4]}')
        a(f's_lshl_b32 s{sT0}, s{sJ}, 9\ns_add_u32 s{sT0}, s{sT0}, {FL_OFF}\ns_add_u32 s{sT2}, s{sT0}, 8192')
        a(f'buffer_store_dwordx4 {vr(T[0],4)}, v{T[4]}, {srd(sWS)}, s{sT0} offen sc1')
        a(f'buffer_store_dwordx4 {vr(T[0],4)}, v{T[4]}, {srd(sWS)}, s{sT2} offen sc1')
        a(f'v_mov_b32 v{T[5]}, 1\ns_lshl_b32 s{sT0}, s{sJ}, 2\nv_mov_b32 v{T[6]}, s{sT0}')
        a.wait_vm0()
        a('s_mov_b64 exec, 1')
        a(f'buffer_store_dword v{T[5]}, v{T[6]}, {srd(sDBG)}, 0 offen sc1')
        a('s_mov_b64 exec, -1')
        a('L_nozero:')
        a.vm = []
        CSR = 220
        a(f's_lshl_b32 s{sT0}, s{sR}, 4\ns_lshl_b32 s{sT2}, s{sW}, 2\ns_add_u32 s{sT0}, s{sT0}, s{sT2}\ns_mul_i32 s{sT0}, s{sT0}, 3584')
        a(f's_mul_i32 s{sT2}, s{sJ}, 448\ns_add_u32 s{sT0}, s{sT0}, s{sT2}')
        a(f'v_lshlrev_b32 v{T[0]}, 3, v0\nv_mov_b32 v{T[1]}, {OOB}\nv_cmp_gt_u32 vcc, 56, v0\nv_cndmask_b32 v{T[0]}, v{T[1]}, v{T[0]}, vcc')
        for i in range(4):
            cstok = a(f'buffer_load_dwordx2 {vr(CSR+2*i,2)}, v{T[0]}, {srd(sW3)}, s{sT0} offen')
            if i < 3: a(f's_add_u32 s{sT0}, s{sT0}, 3584')
        if opt.get('pf', 1):
            a(f's_lshl_b32 s{sT0}, s2, 2\ns_add_u32 s{sT0}, s{sT0}, s{sW}')
            a(f'v_lshlrev_b32 v{T[2]}, 6, v0')
            for k, (s, lanes) in enumerate(((sQKV, 24), (sW2, 8), (sW4, 28), (sWO, 8))):
                a(f'v_cmp_gt_u32 vcc, {lanes}, v0\ns_mul_i32 s{sT2}, s{sT0}, {lanes*64}\nv_cndmask_b32 v{T[3]}, v{T[1]}, v{T[2]}, vcc')
                a(f'buffer_load_dword v{236+k}, v{T[3]}, {srd(s)}, s{sT2} offen')
        for m in range(4):
            a(f'v_or_b32 v{T[0]}, {4*m}, v{q}\nv_xor_b32 v{T[0]}, v{T[0]}, v{i16}\nv_lshlrev_b32 v{T[0]}, 4, v{T[0]}')
            a(f'v_lshl_add_u32 v{XB[m]}, v{i16}, 10, v{T[0]}')
        a(f'v_lshrrev_b32 v{T[4]}, 1, v{rr}\nv_lshlrev_b32 v{T[4]}, 2, v{T[4]}\nv_lshrrev_b32 v{T[5]}, 1, v{c}')
        a(f'v_and_b32 v{T[6]}, 1, v{c}\nv_lshlrev_b32 v{T[6]}, 3, v{T[6]}')
        a(f's_lshl_b32 s{sT0}, s{sW}, 1\nv_add_u32 v{T[7]}, s{sT0}, v{T[5]}\nv_xor_b32 v{T[7]}, v{T[7]}, v{T[4]}')
        a(f'v_lshlrev_b32 v{T[8]}, 1, v{fsub}\nv_xor_b32 v{T[7]}, v{T[7]}, v{T[8]}\nv_lshl_add_u32 v{T[7]}, v{T[7]}, 4, v{T[6]}')
        a(f'v_lshl_add_u32 v{T[9]}, v{q}, 3, v{rr}\nv_lshl_add_u32 v{PAT16}, v{T[9]}, 7, v{T[7]}')
        a(f's_lshl_b32 s{sT0}, s{sHI}, 2\nv_add3_u32 v{T[7]}, s{sT0}, v{T[8]}, v{T[5]}\nv_xor_b32 v{T[7]}, v{T[7]}, v{T[4]}')
        a(f's_lshl_b32 s{sT2}, s{sHI}, 13')
        a(f'v_lshlrev_b32 v{T[9]}, 1, v{h}\nv_xor_b32 v{T[9]}, v{T[9]}, v{T[7]}\nv_lshl_add_u32 v{T[9]}, v{T[9]}, 4, v{T[6]}')
        a(f'v_lshl_add_u32 v{T[10]}, v{h}, 3, v{rr}\nv_lshl_add_u32 v{T[9]}, v{T[10]}, 7, v{T[9]}')
        a(f'v_add_u32 v{PATN[0]}, s{sT2}, v{T[9]}\nv_xor_b32 v{PATN[1]}, 64, v{PATN[0]}')
        a(f'v_lshl_add_u32 v{T[9]}, v{T[7]}, 4, v{T[6]}\nv_lshl_add_u32 v{T[10]}, v{h}, 2, v{rr}\nv_lshl_add_u32 v{PAT3[0]}, v{T[10]}, 7, v{T[9]}')
        a(f'v_xor_b32 v{PAT3[1]}, 32, v{PAT3[0]}\nv_add_u32 v{PAT3[1]}, 1024, v{PAT3[1]}')
        a(f'v_add_u32 v{PATP[0]}, s{sT2}, v{PAT3[0]}\nv_add_u32 v{PATP[1]}, s{sT2}, v{PAT3[1]}')
        a(f'v_xor_b32 v{PATP[2]}, 64, v{PATP[0]}\nv_xor_b32 v{PATP[3]}, 64, v{PATP[1]}')
        a(f'v_lshlrev_b32 v{CELLV}, 10, v{h}\nv_lshl_add_u32 v{CELLV}, v{t32}, 4, v{CELLV}')
        a(f's_lshl_b32 s{sT0}, s{sTH}, 9\nv_add_u32 v{CELLT}, s{sT0}, v{CELLV}')
        for i in range(4): a(f'v_mov_b32 v{ONES+i}, s{sONE}')
        HV = [212, 213, 214, 215]
        a(f's_lshl_b32 s{sT0}, s{sTH}, 5\nv_add_u32 v{T[0]}, s{sT0}, v{t32}')
        a(f's_lshl_b32 s{sT2}, s{sHI}, 13\nv_lshl_add_u32 v{T[2]}, v{h}, 10, s{sT2}')
        for g, d in enumerate((-1, 1, -2, 2)):
            a(f'v_add_u32 v{T[3]}, {d}, v{T[0]}\nv_ashrrev_i32 v{T[4]}, 6, v{T[3]}\nv_add_u32 v{T[4]}, s{sR}, v{T[4]}')
            a(f'v_and_b32 v{T[3]}, 63, v{T[3]}\nv_lshl_add_u32 v{T[3]}, v{T[3]}, 4, v{T[2]}\nv_lshl_add_u32 v{T[3]}, v{T[4]}, 16, v{T[3]}')
            a(f'v_cmp_gt_u32 vcc, 32, v{T[4]}\nv_cndmask_b32 v{HV[g]}, v{T[1]}, v{T[3]}, vcc')
        STA, STB, XE, PSA = 216, 217, 218, 219
        a(f'v_lshlrev_b32 v{STA}, 4, v{i16}\nv_add_u32 v{STA}, {SC}, v{STA}')
        a(f'v_lshlrev_b32 v{STB}, 4, v{q}\nv_add_u32 v{STB}, {NMU}, v{STB}')
        a(f'v_lshlrev_b32 v{PSA}, 4, v{T[0]}\nv_add_u32 v{PSA}, {S2}, v{PSA}')
        a(f's_lshl_b32 s{sT0}, s{sJ}, 3\ns_lshl_b32 s{sT2}, s{sHI}, 2\ns_add_u32 s{sT0}, s{sT0}, s{sT2}')
        a(f'v_xor_b32 v{XE}, s{sT0}, v{i16}\nv_lshlrev_b32 v{XE}, 4, v{XE}\nv_lshl_add_u32 v{XE}, v{h}, 3, v{XE}\nv_lshl_add_u32 v{XE}, v{T[0]}, 10, v{XE}')
        a(f's_xor_b32 s{sT0}, s{sW}, 2\ns_lshl_b32 s{sT0}, s{sT0}, 12\ns_add_u32 s{sT0}, s{sT0}, {SC}\nv_add_u32 v{RDX}, s{sT0}, v{LL16}')
        a(f's_lshl_b32 s{sA}, s{sR}, 16')
        a(f's_lshl_b32 s{sT0}, s{sJ}, 2\ns_add_u32 s{sT0}, s{sT0}, s{sW}\ns_lshl_b32 s{sT0}, s{sT0}, 11\ns_add_u32 s{sB}, s{sA}, s{sT0}')
        a(f's_lshl_b32 s{sC}, s{sJ}, 13\ns_add_u32 s{sC}, s{sC}, {KV_OFF}')
        a(f's_mul_i32 s{sD}, s{sR}, {GBLK}\ns_add_u32 s{sD}, s{sD}, {G_OFF}')

        bar = lambda n: (lambda: self.barC(a, n))

        def stage_pre(st, wks, pats, extra=None):
            def f():
                if extra: extra()
                self.barC(a, f'B{st}')
                for wk, pt in zip(wks, pats):
                    a(f'v_add_u32 v{wk}, {SLOT[st]}, v{pt}')
            return f

        def steps_q(first, acc, cs, sets, base_at):
            st = []
            for ks in range(16):
                sb = sets[ks % 3]; stg = first + ks // 4
                reads = [f'ds_read_b64_tr_b16 {vr(sb+16,2)}, v{WK16} offset:{(ks%4)*4096}',
                         f'ds_read_b64_tr_b16 {vr(sb+18,2)}, v{WK16} offset:{(ks%4)*4096+512}']
                reads += [f'ds_read_b128 {vr(sb+4*tt,4)}, v{XB[ks&3]} offset:{tt*16384+(ks>>2)*256}' for tt in range(4)]
                mf = [f'v_mfma_f32_16x16x32_bf16 {vr(cs,4)}, {vr(sb+16,4)}, {vr(ONES,4)}, {vr(cs,4) if ks else 0}']
                mf += [f'v_mfma_f32_16x16x32_bf16 {vr(acc+4*tt,4)}, {vr(sb+16,4)}, {vr(sb+4*tt,4)}, {vr(acc+4*tt,4) if ks else 0}' for tt in range(4)]
                st.append(dict(reads=reads, mfmas=mf, at=base_at + ks - 2, stage=stg if ks % 4 == 0 else None))
            return st

        HACC, HCS, HSETS = 60, 76, [80, 100, 120]
        KACC, VACC, KCS, VCS, KSETS = 140, 156, 172, 176, [180, 96]
        steps = steps_q(0, HACC, HCS, HSETS, 0)
        steps[0]['at'] = -1; steps[1]['at'] = -1
        for s in steps:
            if s['stage'] is not None: s['pre'] = stage_pre(s['stage'], [WK16], [PAT16])
        nh = len(steps)

        htok = {}
        def h_epilogue():
            ST = 80; TMP = 100; OUT = 116
            for tt in range(4):
                tk = a(f'ds_read_b128 {vr(ST+4*tt,4)}, v{STA} offset:{tt*256}')
            a.wait_lg(tk)
            for pr in range(2):
                pairs = []
                for u in range(2):
                    tt = 2 * pr + u
                    for d in range(2):
                        pairs.append((HACC + 4*tt + 2*d, HCS + 2*d, ST + 4*tt, OUT + 4*pr + 2*u + d))
                self.gelu(a, pairs, TMP)
                a(f'v_permlane16_swap_b32 v{OUT+4*pr}, v{OUT+4*pr+2}\nv_permlane16_swap_b32 v{OUT+4*pr+1}, v{OUT+4*pr+3}')
                htok['st'] = a(f'buffer_store_dwordx4 {vr(OUT+4*pr,4)}, v{CELLV}, {srd(sWS)}, s{sB} offen offset:{pr*512} sc1')
            CT = 124
            a.wait_vm(cstok)
            for f in range(4):
                for i in range(4):
                    a(f'v_dot2_f32_bf16 v{CT+f}, v{CSR+2*i+(f>>1)}, s{sSEL0 if (f&1)==0 else sSEL1}, {("v%d"%(CT+f)) if i else 0}')
            a(f'v_mov_b32 v{CT+5}, {OOB}\nv_cmp_gt_u32 vcc, 56, v0\nv_cndmask_b32 v{CT+4}, v{CT+5}, v{LL16}, vcc')
            a(f's_add_u32 s{sT0}, s{sC}, {KV_CS}')
            for f in range(4):
                htok['cs'] = a(f'buffer_atomic_add_f32 v{CT+f}, v{CT+4}, {srd(sWS)}, s{sT0} offen offset:{4*f}')

        for ks in range(16):
            sb = KSETS[ks % 2]; stg = 4 + ks // 2
            o = (ks % 2) * 4096
            reads = [f'ds_read_b64_tr_b16 {vr(sb+16,2)}, v{WK16} offset:{o}', f'ds_read_b64_tr_b16 {vr(sb+18,2)}, v{WK16} offset:{o+512}',
                     f'ds_read_b128 {vr(sb,4)}, v{XB[ks&3]} offset:{(ks>>2)*256}',
                     f'ds_read_b64_tr_b16 {vr(sb+20,2)}, v{WK16} offset:{o+8192}', f'ds_read_b64_tr_b16 {vr(sb+22,2)}, v{WK16} offset:{o+8192+512}']
            reads += [f'ds_read_b128 {vr(sb+4*tt,4)}, v{XB[ks&3]} offset:{tt*16384+(ks>>2)*256}' for tt in range(1, 4)]
            mf = [f'v_mfma_f32_16x16x32_bf16 {vr(KCS,4)}, {vr(ONES,4)}, {vr(sb+16,4)}, {vr(KCS,4) if ks else 0}',
                  f'v_mfma_f32_16x16x32_bf16 {vr(VCS,4)}, {vr(ONES,4)}, {vr(sb+20,4)}, {vr(VCS,4) if ks else 0}']
            for tt in range(4):
                mf.append(f'v_mfma_f32_16x16x32_bf16 {vr(KACC+4*tt,4)}, {vr(sb+4*tt,4)}, {vr(sb+16,4)}, {vr(KACC+4*tt,4) if ks else 0}')
                mf.append(f'v_mfma_f32_16x16x32_bf16 {vr(VACC+4*tt,4)}, {vr(sb+4*tt,4)}, {vr(sb+20,4)}, {vr(VACC+4*tt,4) if ks else 0}')
            s = dict(reads=reads, mfmas=mf, at=nh + ks - 1)
            if ks % 2 == 0:
                extra = None
                if stg == opt.get('fh_bar', 7): extra = lambda: a.wait_vm(htok['st'])
                if stg == 10: extra = lambda: a.wait_vm(htok['cs'])
                s['pre'] = stage_pre(stg, [WK16], [PAT16], extra)
            steps.append(s)
        steps[nh]['hook'] = h_epilogue
        nkv = len(steps)

        ASETS = [228, 236, 244]
        def steps_ks(first, nstage, pats, natural, acc, bfrag, asets, base, setphase=0, init=True, c_init=None):
            st = []
            for n in range(4 * nstage):
                stg = first + n // 4; i = n % 4
                sb = asets[(n + setphase) % 3]
                reads = []
                for t in range(2):
                    for rd in range(2):
                        if natural:
                            reads.append(f'ds_read_b64_tr_b16 {vr(sb+4*t+2*rd,2)}, v{WK[t]} offset:{i*2048+rd*512}')
                        else:
                            reads.append(f'ds_read_b64_tr_b16 {vr(sb+4*t+2*rd,2)}, v{WK[2*t+rd]} offset:{i*2048}')
                b = bfrag(n)
                c0 = vr(acc if (n or c_init is None) else c_init, 16)
                c1 = vr(acc + 16, 16) if (n or not init) else 0
                mf = [f'v_mfma_f32_32x32x16_bf16 {vr(acc,16)}, {vr(sb,4)}, {vr(b,4)}, {c0}',
                      f'v_mfma_f32_32x32x16_bf16 {vr(acc+16,16)}, {vr(sb+4,4)}, {vr(b,4)}, {c1}']
                s = dict(reads=reads, mfmas=mf, at=base + n - 2)
                if i == 0: s['pre'] = stage_pre(stg, WK[:len(pats)], pats)
                st.append(s)
            return st

        HF = 60; P2ACC = 140
        p2 = steps_ks(12, 4, PATN, True, P2ACC, lambda n: HF + 4 * n, ASETS, nkv)
        hl = {}
        def p2_pre0():
            self.barC(a, 'B12')
            for wk, pt in zip(WK[:2], PATN): a(f'v_add_u32 v{wk}, {SLOT[12]}, v{pt}')
        p2[0]['pre'] = p2_pre0
        p2[0]['at'] = nkv; p2[1]['at'] = nkv
        r0, r1 = p2[0]['reads'], p2[1]['reads']
        p2[0]['reads'] = []; p2[1]['reads'] = []; p2[0]['pre'] = None
        def kv_epilogue():
            p2_pre0()
            for n in range(16):
                sg, i = n // 4, n % 4
                if i % 2 == 0: a(f's_mov_b32 s{sT0}, {H_OFF + sg*16384 + (i>>1)*4096}')
                hl[n] = a(f'buffer_load_dwordx4 {vr(HF+4*n,4)}, v{HV[sg]}, {srd(sWS)}, s{sT0} offen offset:{(i&1)*2048} sc1')
            SN, SR_, SL = 180, 196, 124
            for tt in range(4): a(f'ds_read_b128 {vr(SN+4*tt,4)}, v{STB} offset:{tt*64}')
            for tt in range(4): a(f'ds_read_b128 {vr(SR_+4*tt,4)}, v{STB} offset:{tt*64+256}')
            for tt in range(4): tk = a(f'ds_read_b128 {vr(SL+4*tt,4)}, v{STB} offset:{tt*64+512}')
            a.wait_lg(tk)
            for u in range(8):
                a(f'v_pk_fma_f32 {P(KACC+2*u)}, {P(SN+2*u)}, {P(KCS)}, {P(KACC+2*u)} op_sel_hi:[1,0,1]')
            for u in range(8):
                a(f'v_pk_fma_f32 {P(VACC+2*u)}, {P(SN+2*u)}, {P(VCS)}, {P(VACC+2*u)} op_sel_hi:[1,0,1]')
            for u in range(8):
                a(f'v_pk_mul_f32 {P(SL+2*u)}, {P(SL+2*u)}, {P(KACC+2*u)}')
            for u in range(8):
                a(f'v_pk_fma_f32 {P(KACC+2*u)}, {P(KACC+2*u)}, {P(SR_+2*u)}, s[{sEPS}:{sEPS+1}]')
            for u in range(8):
                a(f'v_pk_mul_f32 {P(VACC+2*u)}, {P(VACC+2*u)}, {P(SR_+2*u)}')
            PKR, PVR = 180, 188
            for u in range(8): a(f'v_cvt_pk_bf16_f32 v{PVR+u}, v{VACC+2*u}, v{VACC+2*u+1}')
            self.phi_tail(a, [KACC + 2*u for u in range(8)], [PKR + u for u in range(8)], SL)
            KVA, ZA = 172, 176
            a(f'v_mfma_f32_16x16x32_bf16 {vr(KVA,4)}, {vr(PKR,4)}, {vr(PVR,4)}, 0')
            a(f'v_mfma_f32_16x16x32_bf16 {vr(ZA,4)}, {vr(PKR,4)}, {vr(ONES,4)}, 0')
            a(f'v_mfma_f32_16x16x32_bf16 {vr(KVA,4)}, {vr(PKR+4,4)}, {vr(PVR+4,4)}, {vr(KVA,4)}')
            a(f'v_mfma_f32_16x16x32_bf16 {vr(ZA,4)}, {vr(PKR+4,4)}, {vr(ONES,4)}, {vr(ZA,4)}')
            for t in r0: p2[0]['tok'] = a(t)
            for t in r1: p2[1]['tok'] = a(t)
            for tt in range(4):
                a(f'ds_read_b128 {vr(QST+4*tt,4)}, v{STA} offset:{1024+tt*256}')
            a(f'ds_read_b64 {vr(PST,2)}, v{PSA}')
            XR = 124
            a(f'v_xor_b32 v{XR+8}, 16, v{XE}\nv_xor_b32 v{XR+9}, 32, v{XE}\nv_xor_b32 v{XR+10}, 48, v{XE}')
            a(f'ds_read_b64 {vr(XR,2)}, v{XE}')
            for g in range(1, 4): tk = a(f'ds_read_b64 {vr(XR+2*g,2)}, v{XR+7+g}')
            a(f'v_lshlrev_b32 v{XR+12}, 2, v0\ns_lshl_b32 s{sT0}, s{sW}, 10\ns_add_u32 s{sT0}, s{sT0}, s{sC}')
            for k in range(4):
                a(f'buffer_atomic_add_f32 v{KVA+k}, v{XR+12}, {srd(sWS)}, s{sT0} offen offset:{k*256}')
            a(f'v_and_b32 v{XR+13}, 15, v0')
            a(f'v_cmp_eq_u32 vcc, 1, v{XR+13}\nv_cndmask_b32 v{ZA}, v{ZA}, v{ZA+1}, vcc')
            a(f'v_cmp_eq_u32 vcc, 2, v{XR+13}\nv_cndmask_b32 v{ZA}, v{ZA}, v{ZA+2}, vcc')
            a(f'v_cmp_eq_u32 vcc, 3, v{XR+13}\nv_cndmask_b32 v{ZA}, v{ZA}, v{ZA+3}, vcc')
            a(f'v_lshrrev_b32 v{XR+14}, 4, v0\nv_lshl_add_u32 v{XR+14}, v{XR+14}, 2, v{XR+13}\nv_lshlrev_b32 v{XR+14}, 2, v{XR+14}')
            a(f'v_mov_b32 v{XR+15}, {OOB}\nv_cmp_gt_u32 vcc, 4, v{XR+13}\nv_cndmask_b32 v{XR+14}, v{XR+15}, v{XR+14}, vcc')
            a(f's_lshl_b32 s{sT0}, s{sW}, 6\ns_add_u32 s{sT0}, s{sT0}, s{sC}\ns_add_u32 s{sT0}, s{sT0}, {KV_Z}')
            a(f'buffer_atomic_add_f32 v{ZA}, v{XR+14}, {srd(sWS)}, s{sT0} offen')
            a.wait_lg(tk)
            for g in range(4):
                for d in range(2):
                    a(f'v_lshlrev_b32 v{RES+4*g+2*d}, 16, v{XR+2*g+d}\nv_and_b32 v{RES+4*g+2*d+1}, 0xffff0000, v{XR+2*g+d}')
            for u in range(8):
                a(f'v_pk_add_f32 {P(P2ACC+2*u)}, {P(RES+2*u)}, {P(PST)} op_sel_hi:[1,0]')
            for u in range(8):
                a(f'v_pk_mul_f32 {P(P2ACC+2*u)}, {P(P2ACC+2*u)}, {P(PST)} op_sel:[0,1] op_sel_hi:[1,1]')
        p2[0]['hook'] = kv_epilogue
        for n, s in enumerate(p2):
            s['vm'] = (lambda n=n: hl[n])
        steps += p2
        np2 = len(steps)

        qs = steps_q(16, HACC, HCS, HSETS, np2)
        x1tok = {}
        for s in qs:
            if s['stage'] is not None:
                extra = None
                if s['stage'] == opt.get('fx_bar', 18): extra = lambda: a.wait_vm(x1tok['st'])
                s['pre'] = stage_pre(s['stage'], [WK16], [PAT16], extra)
        qr0, qr1 = qs[0]['reads'], qs[1]['reads']
        qs[0]['reads'] = []; qs[1]['reads'] = []; qs[0]['pre'] = None
        qs[0]['at'] = np2; qs[1]['at'] = np2
        def exchange(acc, rcv, nb):
            a(f'v_xor_b32 v{rcv}, 8192, v{RDX}')
            for g in range(4):
                a(f'ds_write_b128 v{rcv}, {vr(acc+16+4*g,4)} offset:{g*1024}')
            a.wait_lg0()
            self.barC(a, nb)
            for g in range(4):
                tk = a(f'ds_read_b128 {vr(rcv+4*g,4)}, v{RDX} offset:{g*1024}')
            return tk
        def p2_epilogue():
            RCV = 180; OUT = 196
            tk = exchange(P2ACC, RCV, 'B16')
            a(f'v_add_u32 v{WK16}, {SLOT[16]}, v{PAT16}')
            for t in qr0: qs[0]['tok'] = a(t)
            a(f's_lshl_b32 s{sT0}, s{sJ}, 1\ns_add_u32 s{sT0}, s{sT0}, s{sHI}\ns_lshl_b32 s{sT0}, s{sT0}, 12\ns_add_u32 s{sT0}, s{sT0}, s{sA}\ns_add_u32 s{sT0}, s{sT0}, {X1_OFF}')
            a.wait_lg(tk)
            for u in range(8): a(f'v_pk_add_f32 {P(P2ACC+2*u)}, {P(P2ACC+2*u)}, {P(RCV+2*u)}')
            for u in range(8):
                a(f'v_cvt_pk_bf16_f32 v{OUT+u}, v{P2ACC+2*u}, v{P2ACC+2*u+1}')
                if u % 4 == 3:
                    x1tok['st'] = a(f'buffer_store_dwordx4 {vr(OUT+u-3,4)}, v{CELLT}, {srd(sWS)}, s{sT0} offen offset:{(u>>2)*2048} sc1')
            for t in qr1: qs[1]['tok'] = a(t)
            for u in range(8): a(f'v_pk_add_f32 {P(RES+2*u)}, {P(RES+2*u)}, {P(P2ACC+2*u)}')
        qs[0]['hook'] = p2_epilogue
        steps += qs
        nq = len(steps)

        BST = 128; A3 = [60, 68, 76]; ACA, ACB = 84, 100
        GST = 40; GT = 44; CSG = 116; GOUT = 124
        X1B, CSB, CSB2, HFB = 2, 3, 4, 5
        HP = [6, 7]
        def q_epilogue():
            TMP = 100; OUT = 116; QP = 80
            for u in range(8):
                a(f'v_pk_fma_f32 {P(HACC+2*u)}, {P(HCS+2*(u&1))}, {P(QST+4*(u>>1))}, {P(HACC+2*u)} op_sel_hi:[1,0,1]')
            for u in range(8):
                a(f'v_pk_mul_f32 {P(TMP+2*u)}, {P(HACC+2*u)}, {P(QST+4*(u>>1)+2)} op_sel_hi:[1,0]')
            for u in range(8):
                a(f'v_pk_fma_f32 {P(HACC+2*u)}, {P(HACC+2*u)}, {P(QST+4*(u>>1))}, s[{sEPS}:{sEPS+1}] op_sel:[0,1,0] op_sel_hi:[1,1,1]')
            self.phi_tail(a, [HACC + 2*u for u in range(8)], [OUT + u for u in range(8)], TMP)
            a(f's_lshl_b32 s{sT0}, s{sW}, 11\ns_add_u32 s{sT0}, s{sT0}, {PQ}\nv_lshlrev_b32 v{QP}, 3, v0\nv_add_u32 v{QP}, s{sT0}, v{QP}')
            for tt in range(4): a(f'ds_write_b64 v{QP}, {vr(OUT+2*tt,2)} offset:{tt*512}')
            a(f's_lshl_b32 s{sT0}, s{sTH}, 10\nv_add_u32 v{X1B}, s{sT0}, v{LL16}')
            a(f's_lshl_b32 s{sT2}, s{sHI}, 15\nv_add_u32 v{HFB}, s{sT2}, v{X1B}')
            a(f's_and_b32 s{sT3}, s{sJ}, 1\ns_lshl_b32 s{sT4}, s{sT3}, 5')
            a(f's_lshl_b32 s{sT0}, s{sHI}, 5\ns_add_u32 s{sT0}, s{sT0}, s{sT4}\ns_lshl_b32 s{sT0}, s{sT0}, 2\ns_add_u32 s{sT0}, s{sT0}, {CS3L}')
            a(f'v_lshrrev_b32 v{QP+1}, 5, v0\nv_lshlrev_b32 v{QP+1}, 4, v{QP+1}\nv_add_u32 v{CSB}, s{sT0}, v{QP+1}')
            a(f's_cmp_eq_u32 s{sT3}, 0\ns_cselect_b32 s{sT5}, 192, 0')
            a(f's_lshl_b32 s{sT0}, s{sHI}, 4\ns_add_u32 s{sT0}, s{sT0}, s{sT5}\ns_lshl_b32 s{sT0}, s{sT0}, 2\ns_add_u32 s{sT0}, s{sT0}, {CS3L}')
            a(f'v_add_u32 v{CSB2}, s{sT0}, v{QP+1}')
            a(f's_lshl_b32 s{sT0}, s{sHI}, 5\nv_xor_b32 v{HP[0]}, s{sT0}, v{PAT3[0]}\nv_xor_b32 v{HP[1]}, s{sT0}, v{PAT3[1]}')
            a(f's_mul_i32 s{sT0}, s{sJ}, 14\ns_lshr_b32 s{sT4}, s{sT4}, 4\ns_lshl_b32 s{sT2}, s{sHI}, 1\ns_add_u32 s{sB}, s{sT0}, s{sT4}\ns_add_u32 s{sB}, s{sB}, s{sT2}')
            a(f's_lshl_b32 s{sB}, s{sB}, 11\ns_add_u32 s{sB}, s{sB}, s{sD}')
            a(f's_lshr_b32 s{sT5}, s{sT5}, 4\ns_add_u32 s{sC}, s{sT0}, s{sT5}\ns_add_u32 s{sC}, s{sC}, s{sHI}\ns_lshl_b32 s{sC}, s{sC}, 11\ns_add_u32 s{sC}, s{sC}, s{sD}')
            a.wait_lg0()
            self.barC(a, 'XA')

        def steps_p3(first, nstage, acc, pats, base, kind, phase):
            st = []
            for n in range(4 * nstage):
                stg = first + n // 4
                sb = A3[(n + phase) % 3]
                reads = []; mf = []
                for u in range(2):
                    i = 2 * n + u; s_ = i % 8
                    reads += [f'ds_read_b64_tr_b16 {vr(sb+4*u+2*rd,2)}, v{WK[rd]} offset:{s_*2048}' for rd in range(2)]
                    if kind == 'p0':
                        reads.append(f'ds_read_b128 {vr(BST+4*i,4)}, v{X1B} offset:{i*2048}'); b = BST + 4 * i
                    elif kind == 'hf':
                        b = HB[(n % 3)] + 4 * u
                        reads.append(f'ds_read_b128 {vr(b,4)}, v{HFB} offset:{i*2048}')
                    else:
                        b = BST + 4 * i
                    mf.append(f'v_mfma_f32_32x32x16_bf16 {vr(acc,16)}, {vr(sb+4*u,4)}, {vr(b,4)}, {vr(acc,16) if i else 0}')
                s = dict(reads=reads, mfmas=mf, at=base + n - 2)
                if n % 4 == 0: s['pre'] = stage_pre(stg, WK[:2], pats)
                st.append(s)
            return st
        HB = [44, 116, 52]
        gtok = {}
        def g_epi(acc, csreg, csoff, ng, sbase, imm0):
            for b in range(ng // 2):
                for g in range(2):
                    tk = a(f'ds_read_b128 {vr(CSG+4*g,4)}, v{csreg} offset:{csoff+(2*b+g)*32}')
                a.wait_lg(tk)
                pairs = [(acc + 8*b + 2*u, CSG + 2*u, GST, GOUT + u) for u in range(4)]
                self.gelu(a, pairs, GT)
                gtok['st'] = a(f'buffer_store_dwordx4 {vr(GOUT,4)}, v{CELLT}, {srd(sWS)}, s{sbase} offen offset:{imm0+b*2048} sc1')
        def p0_epilogue():
            t = GT
            a(f's_lshl_b32 s{sT0}, s{sTH}, 8\ns_add_u32 s{sT0}, s{sT0}, {X1P}\nv_and_b32 v{t}, 31, v0\nv_lshlrev_b32 v{t}, 3, v{t}\nv_add_u32 v{t}, s{sT0}, v{t}')
            a(f'ds_read_b64 {vr(t+2,2)}, v{t}')
            tk = a(f'ds_read_b64 {vr(t+4,2)}, v{t} offset:512')
            a.wait_lg(tk)
            a(f'v_add_f32 v{t+2}, v{t+2}, v{t+4}\nv_add_f32 v{t+3}, v{t+3}, v{t+5}')
            a(f'v_mul_f32 v{GST}, {f2u(-1/512):#x}, v{t+2}\nv_mul_f32 v{t+3}, {f2u(1/512):#x}, v{t+3}')
            a(f'v_fma_f32 v{t+3}, -v{GST}, v{GST}, v{t+3}\nv_max_f32 v{t+3}, 0, v{t+3}\nv_add_f32 v{t+3}, {f2u(1e-5):#x}, v{t+3}')
            a(f'v_rsq_f32 v{t+4}, v{t+3}\nv_sqrt_f32 v{GST+3}, v{t+3}')
            a(f'v_mul_f32 v{GST+1}, {f2u(GC0):#x}, v{t+4}\nv_mul_f32 v{t+5}, v{t+4}, v{t+4}\nv_mul_f32 v{t+5}, v{t+5}, v{t+4}\nv_mul_f32 v{GST+2}, {f2u(GC1):#x}, v{t+5}')
            g_epi(ACA, CSB, 0, 4, sB, 0)
            a(f's_add_u32 s{sB}, s{sB}, 8192')
        def hf_send():
            t = GT
            a(f'v_lshlrev_b32 v{t}, 4, v0\ns_lshl_b32 s{sT0}, s{sW}, 11\ns_add_u32 s{sT0}, s{sT0}, {SC}\nv_add_u32 v{t}, s{sT0}, v{t}')
            a(f'ds_write_b128 v{t}, {vr(ACB+8,4)}')
            gtok['hfw'] = a(f'ds_write_b128 v{t}, {vr(ACB+12,4)} offset:1024')
            a(f'v_xor_b32 v{HFB}, 4096, v{t}')
        def p1_epilogue():
            a(f'ds_read_b128 {vr(ACB+8,4)}, v{HFB}')
            tk = a(f'ds_read_b128 {vr(ACB+12,4)}, v{HFB} offset:1024')
            g_epi(ACA, CSB, 256, 4, sB, 0)
            a(f's_add_u32 s{sB}, s{sB}, 8192')
            a.wait_lg(tk)
            for u in range(4): a(f'v_pk_add_f32 {P(ACB+2*u)}, {P(ACB+2*u)}, {P(ACB+8+2*u)}')
            g_epi(ACB, CSB2, 0, 2, sC, 0)

        p0 = steps_p3(20, 4, ACA, PAT3, nq, 'p0', 0)
        p0[0]['at'] = nq; p0[1]['at'] = nq; p0[0]['hook'] = q_epilogue
        steps += p0; n0 = len(steps)
        hf = steps_p3(24, 2, ACB, HP, n0, 'hf', 16)
        for k in range(2):
            bs = [t for t in hf[k]['reads'] if 'b128' in t]
            hf[k]['reads'] = [t for t in hf[k]['reads'] if 'b128' not in t]
            hf[k]['late'] = bs
        def hf_hook():
            p0_epilogue()
            for k in range(2):
                for t in hf[k]['late']: hf[k]['tok'] = a(t)
        hf[0]['hook'] = hf_hook
        steps += hf; n1 = len(steps)
        p1 = steps_p3(26, 4, ACA, PAT3, n1, 'p', 24)
        p1[0]['hook'] = hf_send
        old = p1[4]['pre']
        p1[4]['pre'] = lambda: (a.wait_lg(gtok['hfw']), old())
        steps += p1; n2 = len(steps)
        p2_ = steps_p3(30, 4, ACA, PAT3, n2, 'p', 40)
        p2_[0]['hook'] = p1_epilogue
        steps += p2_; n3 = len(steps)

        P4ACC = 84; FR = 128
        wo = steps_ks(34, 4, PATN, True, P4ACC, lambda n: FR + 4 * n, A3, n3, setphase=56, c_init=RES)
        ol = {}
        def p3_last_epilogue():
            a(f's_lshl_b32 s{sT0}, s{sHI}, 13\ns_add_u32 s{sT2}, s{sT0}, s{sA}\ns_add_u32 s{sT2}, s{sT2}, {O_OFF}\ns_add_u32 s{sD}, s{sD}, s{sT0}')
            for n in range(16):
                sg, i = n // 4, n % 4
                if i % 2 == 0: a(f's_add_u32 s{sT0}, s{sT2}, {sg*16384 + (i>>1)*4096}')
                ol[n] = a(f'buffer_load_dwordx4 {vr(FR+4*n,4)}, v{CELLT}, {srd(sWS)}, s{sT0} offen offset:{(i&1)*2048} sc1')
            g_epi(ACA, CSB, 512, 4, sB, 0)
        wo[0]['hook'] = p3_last_epilogue
        for n, s in enumerate(wo): s['vm'] = (lambda n=n: ol[n])
        gb = opt.get('fg_bar', 35) - 34
        oldw = wo[4 * gb]['pre']
        wo[4 * gb]['pre'] = lambda: (a.wait_vm(gtok['st']), oldw())
        steps += wo; n4 = len(steps)
        NG = 32
        w4 = steps_ks(38, 14, PATP, False, P4ACC, lambda n: FR + 4 * (n % NG), A3, n4, setphase=72, init=False)
        gl = {}
        def gload(n):
            sg, i = n // 4, n % 4
            if i % 2 == 0: a(f's_add_u32 s{sT0}, s{sD}, {sg*16384 + (i>>1)*4096}')
            gl[n] = a(f'buffer_load_dwordx4 {vr(FR+4*(n%NG),4)}, v{CELLT}, {srd(sWS)}, s{sT0} offen offset:{(i&1)*2048} sc1')
        w4[0]['at'] = n4; w4[1]['at'] = n4
        pre38 = w4[0]['pre']
        def w4_pre():
            pre38()
            for n in range(NG): gload(n)
        w4[0]['pre'] = w4_pre
        for n, s in enumerate(w4):
            s['vm'] = (lambda n=n: gl[n])
            if n >= 1 and n - 1 + NG < 56:
                s['post'] = [lambda m=n - 1 + NG: gload(m)]
        steps += w4

        self.run_steps(a, steps)
        RCV = 128; OUT = 144
        tk = exchange(P4ACC, RCV, 'RB2')
        VO = 160
        a(f's_lshl_b32 s{sT0}, s{sTH}, 5\nv_and_b32 v{VO}, 31, v0\nv_add_u32 v{VO}, s{sT0}, v{VO}\nv_lshlrev_b32 v{VO}, 10, v{VO}')
        a(f'v_lshrrev_b32 v{VO+1}, 5, v0\nv_lshl_add_u32 v{VO}, v{VO+1}, 4, v{VO}')
        a(f's_lshl_b32 s{sT0}, s{sJ}, 1\ns_add_u32 s{sT0}, s{sT0}, s{sHI}\ns_lshl_b32 s{sT0}, s{sT0}, 6\ns_add_u32 s{sT0}, s{sT0}, s{sA}')
        a.wait_lg(tk)
        for u in range(8): a(f'v_pk_add_f32 {P(P4ACC+2*u)}, {P(P4ACC+2*u)}, {P(RCV+2*u)}')
        for u in range(8): a(f'v_cvt_pk_bf16_f32 v{OUT+u}, v{P4ACC+2*u}, v{P4ACC+2*u+1}')
        for b in range(2):
            a(f'v_permlane32_swap_b32 v{OUT+4*b}, v{OUT+4*b+2}\nv_permlane32_swap_b32 v{OUT+4*b+1}, v{OUT+4*b+3}')
            a(f'buffer_store_dwordx4 {vr(OUT+4*b,4)}, v{VO}, {srd(sOUT)}, s{sT0} offen offset:{b*32}')
        if opt.get('prof'):
            a(f's_memrealtime s[{sTSP}:{sTSP+1}]\ns_waitcnt lgkmcnt(0)')
            a(f's_lshl_b32 s{sT0}, s2, 3\ns_add_u32 s{sT0}, s{sT0}, s{sW}\ns_lshl_b32 s{sT0}, s{sT0}, 8\ns_add_u32 s{sT0}, s{sT0}, {TS_OFF}')
            a(f'v_mov_b32 v2, s26\nv_mov_b32 v3, s{sTSP}\nv_mov_b32 v4, 0\ns_mov_b64 exec, 1')
            a(f'buffer_store_dwordx2 v[2:3], v4, {srd(sWS)}, s{sT0} offen')
        a('s_endpgm')

    def helper(self, a):
        opt = self.opt
        prof = opt.get('prof')
        VX = 1
        V1K, VQ, VKV, VW3, VHF = 4, 8, 12, 16, 20
        VX1 = [24, 25]; VFL, VFP, VF3, VONE, VCT, VTS = 26, 27, 28, 29, 30, 31
        CELLV = 32; VFX = 33
        T = [40 + i for i in range(16)]
        nstamp = [0]
        def stamp():
            if prof:
                a(f's_memrealtime s[{sTSP}:{sTSP+1}]\ns_waitcnt lgkmcnt(0)\nv_writelane_b32 v{VTS}, s{sTSP}, {nstamp[0]}')
                a.lg = []
                nstamp[0] += 1
        def bar(n):
            self.barsH.append(n); a('s_barrier')
        a(f's_lshl_b32 s{sT0}, s{sR}, 2\ns_add_u32 s{sT0}, s{sT0}, s{sW}\ns_lshl_b32 s{sT0}, s{sT0}, 14')
        a(f'v_lshl_add_u32 v{VX}, v0, 4, s{sT0}')
        a(f's_lshl_b32 s{sA}, s{sW}, 14\ns_lshl_b32 s{sB}, s{sW}, 12')
        for i in range(16):
            if i % 4 == 0:
                a(f's_add_u32 m0, s{sA}, {(i>>2)*4096}\ns_mov_b32 s{sT2}, {(i>>2)*4096}')
            a(f'v_xor_b32 v{2+(i&1)}, {i<<4}, v{VX}')
            xtok = a(f'buffer_load_dwordx4 v{2+(i&1)}, {srd(sX)}, s{sT2} offen offset:{(i&3)*1024} lds')
        row, pos, sw = T[0], T[1], T[2]
        a(f'v_lshrrev_b32 v{row}, 3, v0\nv_and_b32 v{pos}, 7, v0\nv_lshrrev_b32 v{sw}, 4, v0\nv_and_b32 v{sw}, 1, v{sw}\nv_lshlrev_b32 v{sw}, 2, v{sw}')
        a(f'v_xor_b32 v{pos}, v{pos}, v{sw}')
        a(f'v_lshlrev_b32 v{T[3]}, 4, v{pos}\nv_xor_b32 v{T[4]}, 32, v{T[3]}')
        def mk(dst, RS, sbase):
            a(f's_mov_b32 s{sT3}, {RS}\nv_mul_lo_u32 v{T[5]}, v{row}, s{sT3}\nv_add_u32 v{T[5]}, s{sbase}, v{T[5]}')
            for i in range(4):
                a(f'v_add_u32 v{dst+i}, v{T[5]}, v{T[3+(i&1)]}')
                if i: a(f'v_add_u32 v{dst+i}, {i*(8*RS-1024)}, v{dst+i}')
        a(f's_lshl_b32 s{sT0}, s{sJ}, 7\ns_lshl_b32 s{sT2}, s{sW}, 15\ns_add_u32 s{sT2}, s{sT2}, s{sT0}')
        mk(V1K, 1024, sT2)

        def issue(st):
            kind, sg = STAGES[st]
            s, v, so = {'w1': (sW1, V1K, sg * 131072), 'w2': (sW2, V1K, sg * 131072), 'wo': (sWO, V1K, sg * 131072),
                        'w4': (sW4, V1K, sg * 131072), 'wq': (sQKV, VQ, sg * 128 * 3072), 'kv': (sQKV, VKV, sg * 64 * 3072),
                        'p0': (sW3, VW3, sg * 128 * 3584), 'p1': (sW3, VW3, sg * 128 * 3584 + 128), 'p2': (sW3, VW3, sg * 128 * 3584 + 256),
                        'hf': (sW3, VHF, sg * 128 * 3584)}[kind]
            a(f's_add_u32 m0, s{sB}, {SLOT[st]}\ns_mov_b32 s{sT2}, {so}')
            for i in range(4):
                tk = a(f'buffer_load_dwordx4 v{v+i}, {srd(s)}, s{sT2} offen offset:{i*1024} lds')
            stok[st] = tk
        stok = {}
        for st in ISSUE[-1][:4]: issue(st)
        a(f's_lshl_b32 s{sT0}, s{sJ}, 7\ns_mul_i32 s{sT2}, s{sW}, {32*3072}\ns_add_u32 s{sT2}, s{sT2}, s{sT0}')
        mk(VQ, 3072, sT2)
        a(f's_mul_i32 s{sT2}, s{sTH}, {32*3072}\ns_add_u32 s{sT2}, s{sT2}, s{sT0}\ns_add_u32 s{sT4}, s{sHI}, 1\ns_lshl_b32 s{sT4}, s{sT4}, 10\ns_add_u32 s{sT2}, s{sT2}, s{sT4}')
        mk(VKV, 3072, sT2)
        for st in ISSUE[-1][4:]: issue(st)
        a(f's_mul_i32 s{sT0}, s{sJ}, 448\ns_mul_i32 s{sT2}, s{sW}, {32*3584}\ns_add_u32 s{sT0}, s{sT0}, s{sT2}')
        a(f's_and_b32 s{sT4}, s{sJ}, 1\ns_lshl_b32 s{sT2}, s{sT4}, 6\ns_add_u32 s{sT2}, s{sT2}, s{sT0}')
        mk(VW3, 3584, sT2)
        a(f's_cmp_eq_u32 s{sT4}, 0\ns_cselect_b32 s{sT2}, 384, 0\ns_add_u32 s{sT2}, s{sT2}, s{sT0}')
        a(f'v_lshrrev_b32 v{T[6]}, 2, v{pos}\nv_lshlrev_b32 v{T[6]}, 8, v{T[6]}\nv_add_u32 v{row}, v{row}, v{T[6]}')
        a(f'v_and_b32 v{T[3]}, 63, v{T[3]}\nv_and_b32 v{T[4]}, 63, v{T[4]}')
        mk(VHF, 3584, sT2)
        a(f'v_lshrrev_b32 v{T[0]}, 5, v0\nv_and_b32 v{T[1]}, 31, v0\nv_lshlrev_b32 v{CELLV}, 10, v{T[0]}\nv_lshl_add_u32 v{CELLV}, v{T[1]}, 4, v{CELLV}')
        a(f's_lshl_b32 s{sC}, s{sR}, 16\ns_add_u32 s{sT0}, s{sC}, s{sB}\ns_add_u32 s{sT0}, s{sT0}, {X1_OFF}')
        a(f'v_add_u32 v{VX1[0]}, s{sT0}, v{CELLV}\nv_subrev_u32 v{VX1[1]}, 512, v{VX1[0]}')
        a(f's_lshl_b32 s{sT0}, s{sR}, 7\ns_add_u32 s{sT0}, s{sT0}, {FL_OFF}\ns_lshl_b32 s{sT2}, s{sJ}, 2\ns_add_u32 s{sT2}, s{sT2}, s{sT0}')
        a(f's_lshl_b32 s{sD}, s{sJ}, 13\ns_add_u32 s{sD}, s{sD}, {KV_OFF}')
        a(f's_cmp_eq_u32 s{sW}, 0\ns_cselect_b32 s{sT2}, s{sT2}, {OOB}\ns_cselect_b32 s{sT3}, s{sD}, {OOB}')
        a(f'v_mov_b32 v{VFL}, s{sT2}\nv_mov_b32 v{VCT}, s{sT3}\nv_mov_b32 v{VONE}, 1')
        a(f'v_and_b32 v{T[2]}, 7, v0\nv_lshlrev_b32 v{T[2]}, 2, v{T[2]}\nv_add_u32 v{VFP}, s{sT0}, v{T[2]}')
        a(f's_cmp_eq_u32 s{sR}, 0\ns_cselect_b32 s{sT2}, 0, -128\ns_cmp_eq_u32 s{sR}, 31\ns_cselect_b32 s{sT3}, 0, 128')
        a(f'v_lshrrev_b32 v{T[3]}, 3, v0\nv_mov_b32 v{T[4]}, 0\nv_mov_b32 v{T[5]}, s{sT2}\nv_mov_b32 v{T[6]}, s{sT3}')
        a(f'v_cmp_eq_u32 vcc, 1, v{T[3]}\nv_cndmask_b32 v{T[4]}, v{T[4]}, v{T[5]}, vcc\nv_cmp_eq_u32 vcc, 2, v{T[3]}\nv_cndmask_b32 v{T[4]}, v{T[4]}, v{T[6]}, vcc')
        a(f'v_add_u32 v{VF3}, v{VFP}, v{T[4]}')
        a(f's_add_u32 s26, s24, s{sD}\ns_addc_u32 s27, s25, 0' if not prof else
          f'v_mov_b32 v{VTS}, 0\nv_writelane_b32 v{VTS}, s26, 63\ns_add_u32 s26, s24, s{sD}\ns_addc_u32 s27, s25, 0')

        F = 64
        q, i16 = T[8], T[9]
        a(f'v_lshrrev_b32 v{q}, 4, v0\nv_and_b32 v{i16}, 15, v0')
        for m in range(4):
            a(f'v_or_b32 v{T[0]}, {4*m}, v{q}\nv_xor_b32 v{T[0]}, v{T[0]}, v{i16}\nv_lshlrev_b32 v{T[0]}, 4, v{T[0]}')
            a(f'v_lshl_add_u32 v{T[0]}, v{i16}, 10, v{T[0]}\nv_add_u32 v{T[10+m]}, s{sA}, v{T[0]}')
        a.wait_vm(xtok)
        stamp()
        toks = [a(f'ds_read_b128 {vr(F+4*ks,4)}, v{T[10+(ks&3)]} offset:{(ks>>2)*256}') for ks in range(16)]
        SA = 36
        def dots(base, n, first):
            for d in range(n):
                z = first and d < 2
                a(f'v_dot2_f32_bf16 v{SA+(d&1)}, v{base+d}, s{sONE}, {0 if z else "v%d"%(SA+(d&1))}')
                a(f'v_dot2_f32_bf16 v{SA+2+(d&1)}, v{base+d}, v{base+d}, {0 if z else "v%d"%(SA+2+(d&1))}')
        for ks in range(0, 16, 2):
            a.wait_lg(toks[ks + 1])
            dots(F + 4 * ks, 8, ks == 0)
        s1, s2 = SA, SA + 2
        a(f'v_add_f32 v{s1}, v{SA}, v{SA+1}\nv_add_f32 v{s2}, v{SA+2}, v{SA+3}')
        for sw_ in ('v_permlane32_swap_b32', 'v_permlane16_swap_b32'):
            a(f'v_mov_b32 v{s1+1}, v{s1}\nv_mov_b32 v{s2+1}, v{s2}\n{sw_} v{s1}, v{s1+1}\n{sw_} v{s2}, v{s2+1}')
            a(f'v_add_f32 v{s1}, v{s1}, v{s1+1}\nv_add_f32 v{s2}, v{s2}, v{s2+1}')
        R = 64
        a(f'v_mul_f32 v{R}, {f2u(-1/512):#x}, v{s1}\nv_mul_f32 v{s2}, {f2u(1/512):#x}, v{s2}')
        a(f'v_fma_f32 v{s2}, -v{R}, v{R}, v{s2}\nv_max_f32 v{s2}, 0, v{s2}\nv_add_f32 v{s1}, {f2u(1e-5):#x}, v{s2}')
        a(f'v_rsq_f32 v{R+5}, v{s1}\nv_mov_b32 v{R+4}, v{R}\nv_mov_b32 v{R+7}, 0')
        a(f'v_mul_f32 v{R+6}, {f2u(LOG2E):#x}, v{R+5}\nv_mul_f32 v{s1}, v{R+5}, v{R+5}\nv_mul_f32 v{s1}, v{s1}, v{s2}\nv_add_f32 v{s1}, {f2u(1e-5):#x}, v{s1}')
        a(f'v_rsq_f32 v{s1}, v{s1}\nv_mul_f32 v{s1}, v{s1}, v{R+5}')
        a(f'v_rcp_f32 v{R+3}, v{s1}\nv_mul_f32 v{R+1}, {f2u(GC0):#x}, v{s1}\nv_mul_f32 v{s2}, v{s1}, v{s1}\nv_mul_f32 v{s2}, v{s2}, v{s1}\nv_mul_f32 v{R+2}, {f2u(GC1):#x}, v{s2}')
        a(f's_lshl_b32 s{sT0}, s{sW}, 4\nv_add_u32 v{T[0]}, s{sT0}, v{i16}\nv_lshlrev_b32 v{T[1]}, 4, v{T[0]}\nv_lshlrev_b32 v{T[0]}, 2, v{T[0]}')
        a(f'v_add_u32 v{T[1]}, {S1}, v{T[1]}\nv_add_u32 v{T[0]}, {NMU}, v{T[0]}')
        a(f'ds_write_b128 v{T[1]}, {vr(R,4)}\nds_write_b128 v{T[1]}, {vr(R+4,4)} offset:1024')
        a(f'ds_write_b32 v{T[0]}, v{R}\nds_write_b32 v{T[0]}, v{R+5} offset:256\nds_write_b32 v{T[0]}, v{R+6} offset:512')

        npoll = [0]
        def only_h0(body):
            npoll[0] += 1
            L = f'L_nh0_{npoll[0]}'
            a(f's_cmp_lg_u32 s{sW}, 0\ns_cbranch_scc1 {L}')
            vm, lg = list(a.vm), list(a.lg)
            body()
            a.vm, a.lg = vm, lg
            a(f'{L}:')
        def vpoll(vaddr, ftype):
            def body():
                L = f'L_poll{npoll[0]}'
                a(f's_mov_b32 s{sCNT}, {opt.get("spin", 200000)}\ns_mov_b32 s{sT0}, {ftype*4096}')
                a(f'{L}:')
                a(f'buffer_load_dword v{T[15]}, v{vaddr}, {srd(sWS)}, s{sT0} offen sc1')
                a(f's_sub_u32 s{sCNT}, s{sCNT}, 1\ns_waitcnt vmcnt(0)\nv_cmp_ne_u32 vcc, 1, v{T[15]}')
                a(f's_cmp_eq_u32 s{sCNT}, 0\ns_cbranch_scc1 {L}d\ns_cbranch_vccnz {L}\n{L}d:')
            only_h0(body)
        def spoll(base, off, n, val):
            def body():
                L = f'L_poll{npoll[0]}'
                a(f's_mov_b32 s{sCNT}, {opt.get("spin", 200000)}')
                a(f'{L}:')
                if n == 8: a(f's_load_dwordx8 s[{sPOLL}:{sPOLL+7}], s[{base}:{base+1}], {off} glc')
                else: a(f's_load_dword s{sPOLL}, s[{base}:{base+1}], {off} glc')
                a(f's_sub_u32 s{sCNT}, s{sCNT}, 1\ns_cmp_eq_u32 s{sCNT}, 0\ns_waitcnt lgkmcnt(0)\ns_cbranch_scc1 {L}d')
                for k in range(1, n): a(f's_and_b32 s{sPOLL}, s{sPOLL}, s{sPOLL+k}')
                a(f's_cmp_lg_u32 s{sPOLL}, {val}\ns_cbranch_scc1 {L}\n{L}d:')
            only_h0(body)
        def flag(ftype):
            a(f's_mov_b32 s{sT0}, {ftype*4096}\ns_mov_b64 exec, 1')
            a(f'buffer_store_dword v{VONE}, v{VFL}, {srd(sWS)}, s{sT0} offen sc1')
            a('s_mov_b64 exec, -1')
        def count(off):
            a(f's_mov_b32 s{sT0}, {off}\ns_mov_b64 exec, 1')
            a(f'buffer_atomic_add v{VONE}, v{VCT}, {srd(sWS)}, s{sT0} offen')
            a('s_mov_b64 exec, -1')

        x1tok = {}; misc = {}
        PQR = 64; KVR = 72; ZR = 76; XF = 96
        def x1_stats(sg):
            a('s_setprio 3')
            if sg == 0:
                a(f's_lshl_b32 s{sT0}, s{sTH}, 10\ns_lshl_b32 s{sT2}, s{sHI}, 13\ns_add_u32 s{sT0}, s{sT0}, s{sT2}\nv_lshl_add_u32 v{VFX}, v0, 4, s{sT0}')
            tk = [a(f'ds_read_b128 {vr(XF+4*u,4)}, v{VFX} offset:{sg*16384+u*2048}') for u in range(4)]
            a.wait_lg(tk[1]); dots(XF, 8, sg == 0)
            a.wait_lg(tk[3]); dots(XF + 8, 8, False)
            if sg == 3:
                a(f'v_add_f32 v{SA}, v{SA}, v{SA+1}\nv_add_f32 v{SA+2}, v{SA+2}, v{SA+3}')
                a(f'v_mov_b32 v{SA+1}, v{SA}\nv_mov_b32 v{SA+3}, v{SA+2}\nv_permlane32_swap_b32 v{SA}, v{SA+1}\nv_permlane32_swap_b32 v{SA+2}, v{SA+3}')
                a(f'v_add_f32 v{SA}, v{SA}, v{SA+1}\nv_add_f32 v{SA+1}, v{SA+2}, v{SA+3}')
                a(f's_lshl_b32 s{sT0}, s{sTH}, 8\ns_lshl_b32 s{sT2}, s{sHI}, 9\ns_add_u32 s{sT0}, s{sT0}, s{sT2}\ns_add_u32 s{sT0}, s{sT0}, {X1P}')
                a(f'v_and_b32 v{T[0]}, 31, v0\nv_lshl_add_u32 v{T[0]}, v{T[0]}, 3, s{sT0}')
                a(f'ds_write_b64 v{T[0]}, {vr(SA,2)}')
                a.wait_lg0()
            a('s_setprio 0')
        def kv_loads():
            a(f'v_lshlrev_b32 v{T[0]}, 2, v0\ns_lshl_b32 s{sT0}, s{sW}, 10\ns_add_u32 s{sT0}, s{sT0}, s{sD}')
            for k in range(4): a(f'buffer_load_dword v{KVR+k}, v{T[0]}, {srd(sWS)}, s{sT0} offen offset:{k*256} sc1')
            a(f'v_lshrrev_b32 v{T[1]}, 4, v0\nv_lshlrev_b32 v{T[1]}, 4, v{T[1]}\ns_lshl_b32 s{sT0}, s{sW}, 6\ns_add_u32 s{sT0}, s{sT0}, s{sD}\ns_add_u32 s{sT0}, s{sT0}, {KV_Z}')
            misc['kv'] = a(f'buffer_load_dwordx4 {vr(ZR,4)}, v{T[1]}, {srd(sWS)}, s{sT0} offen sc1')
        def pq_reads():
            a(f's_lshl_b32 s{sT0}, s{sW}, 11\ns_add_u32 s{sT0}, s{sT0}, {PQ}\nv_lshl_add_u32 v{T[0]}, v0, 3, s{sT0}')
            for tt in range(4): a(f'ds_read_b64 {vr(PQR+2*tt,2)}, v{T[0]} offset:{tt*512}')
            a.wait_lg0()
        def o_compute():
            a.wait_vm(misc['kv'])
            AK, AZ, NUM, DEN, OUT = 80, 82, 96, 112, 84
            a(f'v_cvt_pk_bf16_f32 v{AK}, v{KVR}, v{KVR+1}\nv_cvt_pk_bf16_f32 v{AK+1}, v{KVR+2}, v{KVR+3}')
            a(f'v_cvt_pk_bf16_f32 v{AZ}, v{ZR}, v{ZR+1}\nv_cvt_pk_bf16_f32 v{AZ+1}, v{ZR+2}, v{ZR+3}')
            a('s_setprio 3')
            for tt in range(4):
                a(f'v_mfma_f32_16x16x16_bf16 {vr(DEN+4*tt,4)}, {vr(AZ,2)}, {vr(PQR+2*tt,2)}, 0')
            for tt in range(4):
                a(f'v_mfma_f32_16x16x16_bf16 {vr(NUM+4*tt,4)}, {vr(AK,2)}, {vr(PQR+2*tt,2)}, 0')
            a('s_setprio 0')
            for tt in range(4): a(f'v_add_f32 v{DEN+4*tt}, s{sEPS}, v{DEN+4*tt}')
            for tt in range(4): a(f'v_rcp_f32 v{DEN+4*tt}, v{DEN+4*tt}')
            for tt in range(4):
                for e in range(4): a(f'v_mul_f32 v{NUM+4*tt+e}, v{NUM+4*tt+e}, v{DEN+4*tt}')
            for u in range(8): a(f'v_cvt_pk_bf16_f32 v{OUT+u}, v{NUM+2*u}, v{NUM+2*u+1}')
            a(f's_lshl_b32 s{sT0}, s{sJ}, 2\ns_add_u32 s{sT0}, s{sT0}, s{sW}\ns_lshl_b32 s{sT0}, s{sT0}, 11\ns_add_u32 s{sT0}, s{sT0}, s{sC}\ns_add_u32 s{sT0}, s{sT0}, {O_OFF}')
            for pr in range(2):
                a(f'v_permlane16_swap_b32 v{OUT+4*pr}, v{OUT+4*pr+2}\nv_permlane16_swap_b32 v{OUT+4*pr+1}, v{OUT+4*pr+3}')
                misc['o'] = a(f'buffer_store_dwordx4 {vr(OUT+4*pr,4)}, v{CELLV}, {srd(sWS)}, s{sT0} offen offset:{pr*512} sc1')
        def cs3_load():
            a(f's_lshl_b32 s{sT0}, s{sW}, 8\ns_add_u32 m0, s{sT0}, {CS3L}\ns_add_u32 s{sT0}, s{sT0}, s{sD}\ns_add_u32 s{sT0}, s{sT0}, {KV_CS}\nv_lshlrev_b32 v{T[0]}, 2, v0')
            misc['cs'] = a(f'buffer_load_dword v{T[0]}, {srd(sWS)}, s{sT0} offen sc1 lds')

        fhb, fxb, fgb = opt.get('fh_bar', 7), opt.get('fx_bar', 18), opt.get('fg_bar', 35)
        for b in range(NST):
            if b == 20:
                vpoll(VFP, FX1)
                bar('XA'); stamp()
                for sg in range(4):
                    a(f's_add_u32 m0, s{sB}, {sg*16384}\ns_mov_b32 s{sT2}, {sg*16384}')
                    for u in range(4):
                        x1tok[sg] = a(f'buffer_load_dwordx4 v{VX1[u&1]}, {srd(sWS)}, s{sT2} offen offset:{u*1024} sc1 lds')
            if b == 0: a.wait_lg0()
            if b == 3: spoll(22, 0, 8, 1)
            if b == 12: vpoll(VF3, FH)
            if b == 17: spoll(26, KV_CNT_CS, 1, 32)
            if b == 23: spoll(26, KV_CNT_KV, 1, 32)
            if b == 34: vpoll(VFP, FO)
            if b == 38: vpoll(VFP, FG)
            a.wait_vm(stok[b])
            if 20 <= b < 24: a.wait_vm(x1tok[b - 20])
            if b == 24: a.wait_vm(misc['cs'])
            if b == 27: a.wait_vm(misc['o'])
            bar(f'B{b}')
            if b == fhb: flag(FH)
            if b == fxb: flag(FX1); count(KV_CNT_KV)
            if b == fgb: flag(FG)
            if b == 27: flag(FO)
            if b == 10: count(KV_CNT_CS)
            if b == 17: cs3_load()
            if b == 23: kv_loads()
            for st in ISSUE.get(b, []): issue(st)
            stamp()
            if b == 20: pq_reads()
            if 20 <= b < 24: x1_stats(b - 20)
            if b == 25: o_compute()
        if prof:
            a(f's_lshl_b32 s{sT0}, s2, 3\ns_add_u32 s{sT0}, s{sT0}, s{sW}\ns_add_u32 s{sT0}, s{sT0}, 4\ns_lshl_b32 s{sT0}, s{sT0}, 8\ns_add_u32 s{sT0}, s{sT0}, {TS_OFF}')
            a(f'v_lshlrev_b32 v2, 2, v0\nbuffer_store_dword v{VTS}, v2, {srd(sWS)}, s{sT0} offen')
        a('s_endpgm')

    def build(self):
        a = Asm()
        self.prologue(a)
        self.compute(a)
        a.lg = []; a.vm = []
        a('L_helper:')
        self.helper(a)
        a('L_end:\ns_endpgm')
        assert self.barsC[:-1] == self.barsH and self.barsC[-1] == 'RB2', (self.barsC, self.barsH)
        ref = open(f'cdna_kernels/{KNAME[:-7]}.s.ref').read().split('\n')
        head = [l for l in ref if l.startswith(';') and '@launch' not in l]
        out = '\n'.join(head) + '\n; @launch grid=(256,1,1) block=(512,1,1) lds=163840\n'
        out += f'.amdgcn_target "amdgcn-amd-amdhsa--gfx950"\n.text\n.globl {KNAME}\n.p2align 8\n.type {KNAME},@function\n{KNAME}:\n'
        out += a.text()
        out += f'''.section .rodata,"a"
.p2align 6
.amdhsa_kernel {KNAME}
  .amdhsa_next_free_vgpr 256
  .amdhsa_next_free_sgpr 102
  .amdhsa_accum_offset 256
  .amdhsa_group_segment_fixed_size 0
  .amdhsa_kernarg_size 88
  .amdhsa_user_sgpr_count 2
  .amdhsa_user_sgpr_kernarg_segment_ptr 1
  .amdhsa_system_sgpr_workgroup_id_x 1
.end_amdhsa_kernel
'''
        return out, a


def generate(**opt):
    g = Gen(opt)
    return g.build()[0]

if __name__ == '__main__':
    opt = {}
    for arg in sys.argv[2:]:
        k, v = arg.split('=')
        opt[k] = int(v) if v.lstrip('-').isdigit() else v
    g = Gen(opt)
    txt, a = g.build()
    open(sys.argv[1], 'w').write(txt)
    print('instructions', len(a.ins), 'pads', a.npad, 'slots', [hex(SLOT[s]) for s in range(NST)])
```

```python
import sys, math, struct
sys.path.insert(0, 'dev')
from asmlib import Asm

KNAME = 'parallel_sum__linear_attn_block__mixer_s_mlp__prompt_kernel'

H_OFF, X1_OFF, O_OFF, G_OFF = 0x000000, 0x200000, 0x400000, 0x600000
KV_OFF, FL_OFF, TS_OFF = 0xD00000, 0xD10000, 0xE00000
WS_BYTES = 0x1000000
KV_Z, KV_CS, KV_CNT_CS, KV_CNT_KV = 4096, 4608, 6144, 6400
FH, FX1, FO, FG = 0, 1, 2, 3
GBLK = 229376
RING = 0x10000
SC = 0x24000
S1, S2, NMU, RHO, RHL = SC, SC + 1024, SC + 2048, SC + 2304, SC + 2560
PQ, X1P, CS3L = SC, SC + 9216, SC + 10240
OOB = 0x80000000

def f2u(x): return struct.unpack('<I', struct.pack('<f', x))[0]
LOG2E = 1.4426950408889634
GC0 = -2.0 * math.sqrt(2.0 / math.pi) * LOG2E
GC1 = GC0 * 0.044715

sX, sQKV, sWO, sW1, sW2, sW3, sW4, sOUT, sWS, sDBG = 28, 32, 36, 40, 44, 48, 52, 56, 60, 64
sR, sJ, sW, sTH, sHI = 68, 69, 70, 71, 72
sT0, sT1, sT2, sT3, sT4, sT5 = 73, 74, 75, 76, 77, 78
sEPS = 80
sONE, sSEL0, sSEL1 = 82, 83, 84
sA, sB, sC, sD = 85, 86, 87, 88
sPOLL = 92
sCNT = 90
sTSP = 100

def srd(n): return f's[{n}:{n+3}]'
def vr(n, k=1): return f'v{n}' if k == 1 else f'v[{n}:{n+k-1}]'

STAGES = ([('w1', s) for s in range(4)] + [('kv', s) for s in range(8)] + [('w2', s) for s in range(4)] +
          [('wq', s) for s in range(4)] + [('p0', s) for s in range(4)] + [('hf', s) for s in range(2)] +
          [('p1', s) for s in range(4)] + [('p2', s) for s in range(4)] + [('wo', s) for s in range(4)] +
          [('w4', s) for s in range(14)])
NST = len(STAGES)
AREL = 27

def plan_slots():
    free = [RING + i * 0x4000 for i in range(5)]
    slot = {}; issue = {}
    nxt = 0
    def drain(b):
        nonlocal nxt
        while free and nxt < NST:
            slot[nxt] = free.pop(0); issue.setdefault(b, []).append(nxt); nxt += 1
    drain(-1)
    for b in range(NST):
        if b >= 2: free.append(slot[b - 2])
        if b == AREL: free.extend([0, 0x4000, 0x8000, 0xC000])
        drain(b)
    return slot, issue
SLOT, ISSUE = plan_slots()


class Gen:
    def __init__(self, opt):
        self.opt = opt
        self.barsC = []; self.barsH = []

    def prologue(self, a):
        a('s_cmp_ge_u32 s2, 256\ns_cbranch_scc1 L_end')
        a('s_load_dwordx16 s[4:19], s[0:1], 0\ns_load_dwordx4 s[20:23], s[0:1], 64\ns_load_dwordx2 s[24:25], s[0:1], 80')
        if self.opt.get('prof'):
            a(f's_memrealtime s[26:27]\ns_memtime s[96:97]')
        m = self.opt.get('map', 'same')
        if m == 'same':
            a(f's_and_b32 s{sR}, s2, 7\ns_lshr_b32 s{sT0}, s2, 6\ns_lshl_b32 s{sT0}, s{sT0}, 3\ns_or_b32 s{sR}, s{sR}, s{sT0}')
            a(f's_lshr_b32 s{sJ}, s2, 3\ns_and_b32 s{sJ}, s{sJ}, 7')
        elif m == 'h4':
            a(f's_and_b32 s{sR}, s2, 3\ns_lshr_b32 s{sT0}, s2, 5\ns_lshl_b32 s{sT0}, s{sT0}, 2\ns_or_b32 s{sR}, s{sR}, s{sT0}')
            a(f's_lshr_b32 s{sJ}, s2, 2\ns_and_b32 s{sJ}, s{sJ}, 7')
        elif m == 'cross':
            a(f's_lshr_b32 s{sR}, s2, 3\ns_and_b32 s{sJ}, s2, 7')
        a('v_lshrrev_b32 v1, 6, v0\nv_and_b32 v0, 63, v0')
        a(f'v_readfirstlane_b32 s{sT1}, v1')
        a(f's_and_b32 s{sW}, s{sT1}, 3\ns_and_b32 s{sTH}, s{sT1}, 1\ns_lshr_b32 s{sHI}, s{sW}, 1')
        a(f's_mov_b32 s{sEPS}, {f2u(1e-6):#x}\ns_mov_b32 s{sEPS+1}, {f2u(1e-6):#x}')
        a(f's_mov_b32 s{sONE}, 0x3f803f80\ns_mov_b32 s{sSEL0}, 0x00003f80\ns_mov_b32 s{sSEL1}, 0x3f800000')
        for (s, n) in ((sX, 2 << 20), (sQKV, 512 * 3072), (sWO, 512 * 1024), (sW1, 512 * 1024), (sW2, 512 * 1024),
                       (sW3, 512 * 3584), (sW4, 1792 * 1024), (sOUT, 2 << 20), (sWS, WS_BYTES), (sDBG, 256)):
            a(f's_mov_b32 s{s+2}, {n}\ns_mov_b32 s{s+3}, 0x20000')
        a('s_waitcnt lgkmcnt(0)')
        for (s, p) in ((sX, 4), (sQKV, 6), (sWO, 8), (sW1, 12), (sW2, 14), (sW3, 16), (sW4, 18), (sOUT, 20), (sDBG, 22), (sWS, 24)):
            a(f's_mov_b32 s{s}, s{p}\ns_and_b32 s{s+1}, s{p+1}, 0xffff')
        a(f's_cmp_ge_u32 s{sT1}, 4\ns_cbranch_scc1 L_helper')

    def run_steps(self, a, steps):
        n = len(steps)
        sched = {}
        for i, s in enumerate(steps):
            sched.setdefault(s['at'], []).append(i)
        def items(i):
            s = steps[i]
            out = []
            if s.get('pre'): out.append(('pre', i))
            out += [('rd', i, t) for t in s['reads']]
            return out
        def emit(it):
            if it[0] == 'pre':
                steps[it[1]]['pre']()
            elif it[0] == 'rd':
                steps[it[1]]['tok'] = a(it[2])
            else:
                it[1]()
        for i in sched.get(-1, []):
            for it in items(i): emit(it)
        for k in range(n):
            s = steps[k]
            if s.get('hook'): s['hook']()
            pend = []
            for i in sched.get(k, []):
                if i == k:
                    for it in items(i): emit(it)
                else:
                    pend += items(i)
            pend += [('post', f) for f in s.get('post', [])]
            vt = s['vm']() if s.get('vm') else None
            a.wait_both(s.get('tok'), vt)
            nm = len(s['mfmas'])
            per = -(-len([p for p in pend if p[0] != 'pre']) // nm) if pend else 0
            for mi, m in enumerate(s['mfmas']):
                a(m)
                c = 0
                while pend and (c < per or mi == nm - 1):
                    it = pend.pop(0)
                    emit(it)
                    if it[0] != 'pre': c += 1

    def barC(self, a, name):
        self.barsC.append(name); a('s_barrier')

    def gelu(self, a, pairs, tmp):
        P = lambda r: vr(r, 2)
        for i, (ac, cs, st, o) in enumerate(pairs):
            a(f'v_pk_fma_f32 {P(ac)}, {P(cs)}, {P(st)}, {P(ac)} op_sel:[0,0,0] op_sel_hi:[1,0,1]')
        for i, (ac, cs, st, o) in enumerate(pairs):
            a(f'v_pk_mul_f32 {P(tmp+2*i)}, {P(ac)}, {P(ac)}')
        for i, (ac, cs, st, o) in enumerate(pairs):
            a(f'v_pk_fma_f32 {P(tmp+2*i)}, {P(tmp+2*i)}, {P(st+2)}, {P(st)} op_sel:[0,0,1] op_sel_hi:[1,0,1]')
        for i, (ac, cs, st, o) in enumerate(pairs):
            a(f'v_pk_mul_f32 {P(tmp+2*i)}, {P(tmp+2*i)}, {P(ac)}')
        for i in range(2 * len(pairs)):
            a(f'v_exp_f32_e64 v{tmp+i}, v{tmp+i}')
        for i, (ac, cs, st, o) in enumerate(pairs):
            a(f'v_pk_fma_f32 {P(tmp+2*i)}, {P(tmp+2*i)}, {P(st+2)}, {P(st+2)} op_sel:[0,1,1] op_sel_hi:[1,1,1]')
        for i in range(2 * len(pairs)):
            a(f'v_rcp_f32_e64 v{tmp+i}, v{tmp+i}')
        for i, (ac, cs, st, o) in enumerate(pairs):
            a(f'v_pk_mul_f32 {P(tmp+2*i)}, {P(tmp+2*i)}, {P(ac)}')
        for i, (ac, cs, st, o) in enumerate(pairs):
            a(f'v_cvt_pk_bf16_f32 v{o}, v{tmp+2*i}, v{tmp+2*i+1}')

    def phi_tail(self, a, acs, outs, tmp):
        P = lambda r: vr(r, 2)
        n = len(acs)
        for i in range(2 * n): a(f'v_min_f32_e64 v{tmp+i}, v{tmp+i}, 0')
        for i in range(2 * n): a(f'v_exp_f32_e64 v{tmp+i}, v{tmp+i}')
        for ac in acs:
            a(f'v_max_f32_e64 v{ac}, v{ac}, s{sEPS}\nv_max_f32_e64 v{ac+1}, v{ac+1}, s{sEPS}')
        for i, ac in enumerate(acs): a(f'v_pk_add_f32 {P(ac)}, {P(ac)}, {P(tmp+2*i)}')
        for i, ac in enumerate(acs): a(f'v_cvt_pk_bf16_f32 v{outs[i]}, v{ac}, v{ac+1}')

    def compute(self, a):
        opt = self.opt
        P = lambda r: vr(r, 2)
        XB = [2, 3, 4, 5]; PAT16, WK16 = 6, 7
        PATN = [8, 9]; PATP = [10, 11, 12, 13]; PAT3 = [14, 15]
        WK = [16, 17, 18, 19]
        CELLV, CELLT, LL16, RDX = 20, 21, 22, 23
        RES = 24; QST = 40; PST = 196
        ONES = 56
        T = [240 + i for i in range(16)]
        q, i16, rr, c, h, t32, fsub = 228, 229, 230, 231, 232, 233, 234
        a(f'v_lshrrev_b32 v{q}, 4, v0\nv_and_b32 v{i16}, 15, v0\nv_lshrrev_b32 v{rr}, 2, v{i16}\nv_and_b32 v{c}, 3, v0')
        a(f'v_lshrrev_b32 v{h}, 5, v0\nv_and_b32 v{t32}, 31, v0\nv_and_b32 v{fsub}, 1, v{q}')
        a(f'v_lshlrev_b32 v{LL16}, 4, v0')
        a(f's_or_b32 s{sT0}, s{sR}, s{sW}\ns_cmp_lg_u32 s{sT0}, 0\ns_cbranch_scc1 L_nozero')
        a(f'v_mov_b32 v{T[0]}, 0\nv_mov_b32 v{T[1]}, 0\nv_mov_b32 v{T[2]}, 0\nv_mov_b32 v{T[3]}, 0')
        a(f's_lshl_b32 s{sT0}, s{sJ}, 13\ns_add_u32 s{sT0}, s{sT0}, {KV_OFF}\ns_add_u32 s{sT2}, s{sT0}, 4096')
        for u in range(8):
            a(f'buffer_store_dwordx4 {vr(T[0],4)}, v{LL16}, {srd(sWS)}, s{sT0 if u < 4 else sT2} offen offset:{(u&3)*1024} sc1')
        a(f'v_lshlrev_b32 v{T[4]}, 12, v{h}\nv_lshl_add_u32 v{T[4]}, v{t32}, 4, v{T[4]}')
        a(f's_lshl_b32 s{sT0}, s{sJ}, 9\ns_add_u32 s{sT0}, s{sT0}, {FL_OFF}\ns_add_u32 s{sT2}, s{sT0}, 8192')
        a(f'buffer_store_dwordx4 {vr(T[0],4)}, v{T[4]}, {srd(sWS)}, s{sT0} offen sc1')
        a(f'buffer_store_dwordx4 {vr(T[0],4)}, v{T[4]}, {srd(sWS)}, s{sT2} offen sc1')
        a(f'v_mov_b32 v{T[5]}, 1\ns_lshl_b32 s{sT0}, s{sJ}, 2\nv_mov_b32 v{T[6]}, s{sT0}')
        a.wait_vm0()
        a('s_mov_b64 exec, 1')
        a(f'buffer_store_dword v{T[5]}, v{T[6]}, {srd(sDBG)}, 0 offen sc1')
        a('s_mov_b64 exec, -1')
        a('L_nozero:')
        a.vm = []
        CSR = 220
        a(f's_lshl_b32 s{sT0}, s{sR}, 4\ns_mul_i32 s{sT0}, s{sT0}, 3584\ns_mul_i32 s{sT2}, s{sJ}, 448\ns_add_u32 s{sT0}, s{sT0}, s{sT2}')
        a(f's_mul_i32 s{sT2}, s{sW}, 112\ns_add_u32 s{sT0}, s{sT0}, s{sT2}')
        a(f'v_mul_u32_u24 v{T[0]}, {8*3584}, v{h}\nv_lshl_add_u32 v{T[0]}, v{t32}, 2, v{T[0]}')
        a(f'v_mov_b32 v{T[1]}, {OOB}\nv_cmp_gt_u32 vcc, 28, v{t32}\nv_cndmask_b32 v{T[0]}, v{T[1]}, v{T[0]}, vcc')
        for i in range(8):
            cstok = a(f'buffer_load_dword v{CSR+i}, v{T[0]}, {srd(sW3)}, s{sT0} offen')
            if i < 7: a(f's_add_u32 s{sT0}, s{sT0}, 3584')
        if opt.get('pf', 1):
            a(f's_lshl_b32 s{sT0}, s2, 2\ns_add_u32 s{sT0}, s{sT0}, s{sW}')
            a(f'v_lshlrev_b32 v{T[2]}, 6, v0')
            for k, (s, lanes) in enumerate(((sQKV, 24), (sW2, 8), (sW4, 28), (sWO, 8))):
                a(f'v_cmp_gt_u32 vcc, {lanes}, v0\ns_mul_i32 s{sT2}, s{sT0}, {lanes*64}\nv_cndmask_b32 v{T[3]}, v{T[1]}, v{T[2]}, vcc')
                a(f'buffer_load_dword v{236+k}, v{T[3]}, {srd(s)}, s{sT2} offen')
        for m in range(4):
            a(f'v_or_b32 v{T[0]}, {4*m}, v{q}\nv_xor_b32 v{T[0]}, v{T[0]}, v{i16}\nv_lshlrev_b32 v{T[0]}, 4, v{T[0]}')
            a(f'v_lshl_add_u32 v{XB[m]}, v{i16}, 10, v{T[0]}')
        a(f'v_lshrrev_b32 v{T[4]}, 1, v{rr}\nv_lshlrev_b32 v{T[4]}, 2, v{T[4]}\nv_lshrrev_b32 v{T[5]}, 1, v{c}')
        a(f'v_and_b32 v{T[6]}, 1, v{c}\nv_lshlrev_b32 v{T[6]}, 3, v{T[6]}')
        a(f's_lshl_b32 s{sT0}, s{sW}, 1\nv_add_u32 v{T[7]}, s{sT0}, v{T[5]}\nv_xor_b32 v{T[7]}, v{T[7]}, v{T[4]}')
        a(f'v_lshlrev_b32 v{T[8]}, 1, v{fsub}\nv_xor_b32 v{T[7]}, v{T[7]}, v{T[8]}\nv_lshl_add_u32 v{T[7]}, v{T[7]}, 4, v{T[6]}')
        a(f'v_lshl_add_u32 v{T[9]}, v{q}, 3, v{rr}\nv_lshl_add_u32 v{PAT16}, v{T[9]}, 7, v{T[7]}')
        a(f's_lshl_b32 s{sT0}, s{sHI}, 2\nv_add3_u32 v{T[7]}, s{sT0}, v{T[8]}, v{T[5]}\nv_xor_b32 v{T[7]}, v{T[7]}, v{T[4]}')
        a(f's_lshl_b32 s{sT2}, s{sHI}, 13')
        a(f'v_lshlrev_b32 v{T[9]}, 1, v{h}\nv_xor_b32 v{T[9]}, v{T[9]}, v{T[7]}\nv_lshl_add_u32 v{T[9]}, v{T[9]}, 4, v{T[6]}')
        a(f'v_lshl_add_u32 v{T[10]}, v{h}, 3, v{rr}\nv_lshl_add_u32 v{T[9]}, v{T[10]}, 7, v{T[9]}')
        a(f'v_add_u32 v{PATN[0]}, s{sT2}, v{T[9]}\nv_xor_b32 v{PATN[1]}, 64, v{PATN[0]}')
        a(f'v_lshl_add_u32 v{T[9]}, v{T[7]}, 4, v{T[6]}\nv_lshl_add_u32 v{T[10]}, v{h}, 2, v{rr}\nv_lshl_add_u32 v{PAT3[0]}, v{T[10]}, 7, v{T[9]}')
        a(f'v_xor_b32 v{PAT3[1]}, 32, v{PAT3[0]}\nv_add_u32 v{PAT3[1]}, 1024, v{PAT3[1]}')
        a(f'v_add_u32 v{PATP[0]}, s{sT2}, v{PAT3[0]}\nv_add_u32 v{PATP[1]}, s{sT2}, v{PAT3[1]}')
        a(f'v_xor_b32 v{PATP[2]}, 64, v{PATP[0]}\nv_xor_b32 v{PATP[3]}, 64, v{PATP[1]}')
        a(f'v_lshlrev_b32 v{CELLV}, 10, v{h}\nv_lshl_add_u32 v{CELLV}, v{t32}, 4, v{CELLV}')
        a(f's_lshl_b32 s{sT0}, s{sTH}, 9\nv_add_u32 v{CELLT}, s{sT0}, v{CELLV}')
        for i in range(4): a(f'v_mov_b32 v{ONES+i}, s{sONE}')
        HV = [212, 213, 214, 215]
        a(f's_lshl_b32 s{sT0}, s{sTH}, 5\nv_add_u32 v{T[0]}, s{sT0}, v{t32}')
        a(f's_lshl_b32 s{sT2}, s{sHI}, 13\nv_lshl_add_u32 v{T[2]}, v{h}, 10, s{sT2}')
        for g, d in enumerate((-1, 1, -2, 2)):
            a(f'v_add_u32 v{T[3]}, {d}, v{T[0]}\nv_ashrrev_i32 v{T[4]}, 6, v{T[3]}\nv_add_u32 v{T[4]}, s{sR}, v{T[4]}')
            a(f'v_and_b32 v{T[3]}, 63, v{T[3]}\nv_lshl_add_u32 v{T[3]}, v{T[3]}, 4, v{T[2]}\nv_lshl_add_u32 v{T[3]}, v{T[4]}, 16, v{T[3]}')
            a(f'v_cmp_gt_u32 vcc, 32, v{T[4]}\nv_cndmask_b32 v{HV[g]}, v{T[1]}, v{T[3]}, vcc')
        STA, STB, XE, PSA = 216, 217, 218, 219
        a(f'v_lshlrev_b32 v{STA}, 4, v{i16}\nv_add_u32 v{STA}, {SC}, v{STA}')
        a(f'v_lshlrev_b32 v{STB}, 4, v{q}\nv_add_u32 v{STB}, {NMU}, v{STB}')
        a(f'v_lshlrev_b32 v{PSA}, 4, v{T[0]}\nv_add_u32 v{PSA}, {S2}, v{PSA}')
        a(f's_lshl_b32 s{sT0}, s{sJ}, 3\ns_lshl_b32 s{sT2}, s{sHI}, 2\ns_add_u32 s{sT0}, s{sT0}, s{sT2}')
        a(f'v_xor_b32 v{XE}, s{sT0}, v{i16}\nv_lshlrev_b32 v{XE}, 4, v{XE}\nv_lshl_add_u32 v{XE}, v{h}, 3, v{XE}\nv_lshl_add_u32 v{XE}, v{T[0]}, 10, v{XE}')
        a(f's_xor_b32 s{sT0}, s{sW}, 2\ns_lshl_b32 s{sT0}, s{sT0}, 12\ns_add_u32 s{sT0}, s{sT0}, {SC}\nv_add_u32 v{RDX}, s{sT0}, v{LL16}')
        a(f's_lshl_b32 s{sA}, s{sR}, 16')
        a(f's_lshl_b32 s{sT0}, s{sJ}, 2\ns_add_u32 s{sT0}, s{sT0}, s{sW}\ns_lshl_b32 s{sT0}, s{sT0}, 11\ns_add_u32 s{sB}, s{sA}, s{sT0}')
        a(f's_lshl_b32 s{sC}, s{sJ}, 13\ns_add_u32 s{sC}, s{sC}, {KV_OFF}')
        a(f's_mul_i32 s{sD}, s{sR}, {GBLK}\ns_add_u32 s{sD}, s{sD}, {G_OFF}')

        bar = lambda n: (lambda: self.barC(a, n))

        def stage_pre(st, wks, pats, extra=None):
            def f():
                if extra: extra()
                self.barC(a, f'B{st}')
                for wk, pt in zip(wks, pats):
                    a(f'v_add_u32 v{wk}, {SLOT[st]}, v{pt}')
            return f

        def steps_q(first, acc, cs, sets, base_at):
            st = []
            for ks in range(16):
                sb = sets[ks % 3]; stg = first + ks // 4
                reads = [f'ds_read_b64_tr_b16 {vr(sb+16,2)}, v{WK16} offset:{(ks%4)*4096}',
                         f'ds_read_b64_tr_b16 {vr(sb+18,2)}, v{WK16} offset:{(ks%4)*4096+512}']
                reads += [f'ds_read_b128 {vr(sb+4*tt,4)}, v{XB[ks&3]} offset:{tt*16384+(ks>>2)*256}' for tt in range(4)]
                mf = [f'v_mfma_f32_16x16x32_bf16 {vr(cs,4)}, {vr(sb+16,4)}, {vr(ONES,4)}, {vr(cs,4) if ks else 0}']
                mf += [f'v_mfma_f32_16x16x32_bf16 {vr(acc+4*tt,4)}, {vr(sb+16,4)}, {vr(sb+4*tt,4)}, {vr(acc+4*tt,4) if ks else 0}' for tt in range(4)]
                st.append(dict(reads=reads, mfmas=mf, at=base_at + ks - 2, stage=stg if ks % 4 == 0 else None))
            return st

        HACC, HCS, HSETS = 60, 76, [80, 100, 120]
        KACC, VACC, KCS, VCS, KSETS = 140, 156, 172, 176, [180, 96]
        steps = steps_q(0, HACC, HCS, HSETS, 0)
        steps[0]['at'] = -1; steps[1]['at'] = -1
        for s in steps:
            if s['stage'] is not None: s['pre'] = stage_pre(s['stage'], [WK16], [PAT16])
        nh = len(steps)

        htok = {}
        def h_epilogue():
            ST = 80; TMP = 100; OUT = 116
            for tt in range(4):
                tk = a(f'ds_read_b128 {vr(ST+4*tt,4)}, v{STA} offset:{tt*256}')
            a.wait_lg(tk)
            for pr in range(2):
                pairs = []
                for u in range(2):
                    tt = 2 * pr + u
                    for d in range(2):
                        pairs.append((HACC + 4*tt + 2*d, HCS + 2*d, ST + 4*tt, OUT + 4*pr + 2*u + d))
                self.gelu(a, pairs, TMP)
                a(f'v_permlane16_swap_b32 v{OUT+4*pr}, v{OUT+4*pr+2}\nv_permlane16_swap_b32 v{OUT+4*pr+1}, v{OUT+4*pr+3}')
                htok['st'] = a(f'buffer_store_dwordx4 {vr(OUT+4*pr,4)}, v{CELLV}, {srd(sWS)}, s{sB} offen offset:{pr*512} sc1')
            CT = 124
            a.wait_vm(cstok)
            for i in range(8):
                for f in range(2):
                    a(f'v_dot2_f32_bf16 v{CT+f}, v{CSR+i}, s{sSEL0 if f == 0 else sSEL1}, {("v%d"%(CT+f)) if i else 0}')
            a(f'v_and_b32 v{CT+2}, 31, v0\nv_lshrrev_b32 v{CT+3}, 5, v0\nv_lshlrev_b32 v{CT+3}, 2, v{CT+3}\nv_lshl_add_u32 v{CT+3}, v{CT+2}, 3, v{CT+3}')
            a(f'v_mov_b32 v{CT+5}, {OOB}\nv_cmp_gt_u32 vcc, 28, v{CT+2}\nv_cndmask_b32 v{CT+4}, v{CT+5}, v{CT+3}, vcc')
            a(f'v_permlane32_swap_b32 v{CT}, v{CT+1}\nv_add_f32 v{CT}, v{CT}, v{CT+1}')
            a(f's_mul_i32 s{sT0}, s{sW}, 224\ns_add_u32 s{sT0}, s{sT0}, s{sC}\ns_add_u32 s{sT0}, s{sT0}, {KV_CS}')
            htok['cs'] = a(f'buffer_atomic_add_f32 v{CT}, v{CT+4}, {srd(sWS)}, s{sT0} offen')

        for ks in range(16):
            sb = KSETS[ks % 2]; stg = 4 + ks // 2
            o = (ks % 2) * 4096
            reads = [f'ds_read_b64_tr_b16 {vr(sb+16,2)}, v{WK16} offset:{o}', f'ds_read_b64_tr_b16 {vr(sb+18,2)}, v{WK16} offset:{o+512}',
                     f'ds_read_b128 {vr(sb,4)}, v{XB[ks&3]} offset:{(ks>>2)*256}',
                     f'ds_read_b64_tr_b16 {vr(sb+20,2)}, v{WK16} offset:{o+8192}', f'ds_read_b64_tr_b16 {vr(sb+22,2)}, v{WK16} offset:{o+8192+512}']
            reads += [f'ds_read_b128 {vr(sb+4*tt,4)}, v{XB[ks&3]} offset:{tt*16384+(ks>>2)*256}' for tt in range(1, 4)]
            mf = [f'v_mfma_f32_16x16x32_bf16 {vr(KCS,4)}, {vr(ONES,4)}, {vr(sb+16,4)}, {vr(KCS,4) if ks else 0}',
                  f'v_mfma_f32_16x16x32_bf16 {vr(VCS,4)}, {vr(ONES,4)}, {vr(sb+20,4)}, {vr(VCS,4) if ks else 0}']
            for tt in range(4):
                mf.append(f'v_mfma_f32_16x16x32_bf16 {vr(KACC+4*tt,4)}, {vr(sb+4*tt,4)}, {vr(sb+16,4)}, {vr(KACC+4*tt,4) if ks else 0}')
                mf.append(f'v_mfma_f32_16x16x32_bf16 {vr(VACC+4*tt,4)}, {vr(sb+4*tt,4)}, {vr(sb+20,4)}, {vr(VACC+4*tt,4) if ks else 0}')
            s = dict(reads=reads, mfmas=mf, at=nh + ks - 1)
            if ks % 2 == 0:
                extra = None
                if stg == opt.get('fh_bar', 7): extra = lambda: a.wait_vm(htok['st'])
                if stg == 10: extra = lambda: a.wait_vm(htok['cs'])
                s['pre'] = stage_pre(stg, [WK16], [PAT16], extra)
            steps.append(s)
        steps[nh]['hook'] = h_epilogue
        nkv = len(steps)

        ASETS = [228, 236, 244]
        def steps_ks(first, nstage, pats, natural, acc, bfrag, asets, base, setphase=0, init=True, c_init=None):
            st = []
            for n in range(4 * nstage):
                stg = first + n // 4; i = n % 4
                sb = asets[(n + setphase) % 3]
                reads = []
                for t in range(2):
                    for rd in range(2):
                        if natural:
                            reads.append(f'ds_read_b64_tr_b16 {vr(sb+4*t+2*rd,2)}, v{WK[t]} offset:{i*2048+rd*512}')
                        else:
                            reads.append(f'ds_read_b64_tr_b16 {vr(sb+4*t+2*rd,2)}, v{WK[2*t+rd]} offset:{i*2048}')
                b = bfrag(n)
                c0 = vr(acc if (n or c_init is None) else c_init, 16)
                c1 = vr(acc + 16, 16) if (n or not init) else 0
                mf = [f'v_mfma_f32_32x32x16_bf16 {vr(acc,16)}, {vr(sb,4)}, {vr(b,4)}, {c0}',
                      f'v_mfma_f32_32x32x16_bf16 {vr(acc+16,16)}, {vr(sb+4,4)}, {vr(b,4)}, {c1}']
                s = dict(reads=reads, mfmas=mf, at=base + n - 2)
                if i == 0: s['pre'] = stage_pre(stg, WK[:len(pats)], pats)
                st.append(s)
            return st

        HF = 60; P2ACC = 140
        p2 = steps_ks(12, 4, PATN, True, P2ACC, lambda n: HF + 4 * n, ASETS, nkv)
        hl = {}
        def p2_pre0():
            self.barC(a, 'B12')
            for wk, pt in zip(WK[:2], PATN): a(f'v_add_u32 v{wk}, {SLOT[12]}, v{pt}')
        p2[0]['pre'] = p2_pre0
        p2[0]['at'] = nkv; p2[1]['at'] = nkv
        r0, r1 = p2[0]['reads'], p2[1]['reads']
        p2[0]['reads'] = []; p2[1]['reads'] = []; p2[0]['pre'] = None
        def kv_epilogue():
            p2_pre0()
            for n in range(16):
                sg, i = n // 4, n % 4
                if i % 2 == 0: a(f's_mov_b32 s{sT0}, {H_OFF + sg*16384 + (i>>1)*4096}')
                hl[n] = a(f'buffer_load_dwordx4 {vr(HF+4*n,4)}, v{HV[sg]}, {srd(sWS)}, s{sT0} offen offset:{(i&1)*2048} sc1')
            SN, SR_, SL = 180, 196, 124
            for tt in range(4): a(f'ds_read_b128 {vr(SN+4*tt,4)}, v{STB} offset:{tt*64}')
            for tt in range(4): a(f'ds_read_b128 {vr(SR_+4*tt,4)}, v{STB} offset:{tt*64+256}')
            for tt in range(4): tk = a(f'ds_read_b128 {vr(SL+4*tt,4)}, v{STB} offset:{tt*64+512}')
            a.wait_lg(tk)
            for u in range(8):
                a(f'v_pk_fma_f32 {P(KACC+2*u)}, {P(SN+2*u)}, {P(KCS)}, {P(KACC+2*u)} op_sel_hi:[1,0,1]')
            for u in range(8):
                a(f'v_pk_fma_f32 {P(VACC+2*u)}, {P(SN+2*u)}, {P(VCS)}, {P(VACC+2*u)} op_sel_hi:[1,0,1]')
            for u in range(8):
                a(f'v_pk_mul_f32 {P(SL+2*u)}, {P(SL+2*u)}, {P(KACC+2*u)}')
            for u in range(8):
                a(f'v_pk_fma_f32 {P(KACC+2*u)}, {P(KACC+2*u)}, {P(SR_+2*u)}, s[{sEPS}:{sEPS+1}]')
            for u in range(8):
                a(f'v_pk_mul_f32 {P(VACC+2*u)}, {P(VACC+2*u)}, {P(SR_+2*u)}')
            PKR, PVR = 180, 188
            for u in range(8): a(f'v_cvt_pk_bf16_f32 v{PVR+u}, v{VACC+2*u}, v{VACC+2*u+1}')
            self.phi_tail(a, [KACC + 2*u for u in range(8)], [PKR + u for u in range(8)], SL)
            KVA, ZA = 172, 176
            a(f'v_mfma_f32_16x16x32_bf16 {vr(KVA,4)}, {vr(PKR,4)}, {vr(PVR,4)}, 0')
            a(f'v_mfma_f32_16x16x32_bf16 {vr(ZA,4)}, {vr(PKR,4)}, {vr(ONES,4)}, 0')
            a(f'v_mfma_f32_16x16x32_bf16 {vr(KVA,4)}, {vr(PKR+4,4)}, {vr(PVR+4,4)}, {vr(KVA,4)}')
            a(f'v_mfma_f32_16x16x32_bf16 {vr(ZA,4)}, {vr(PKR+4,4)}, {vr(ONES,4)}, {vr(ZA,4)}')
            for t in r0: p2[0]['tok'] = a(t)
            for t in r1: p2[1]['tok'] = a(t)
            for tt in range(4):
                a(f'ds_read_b128 {vr(QST+4*tt,4)}, v{STA} offset:{1024+tt*256}')
            a(f'ds_read_b64 {vr(PST,2)}, v{PSA}')
            XR = 124
            a(f'v_xor_b32 v{XR+8}, 16, v{XE}\nv_xor_b32 v{XR+9}, 32, v{XE}\nv_xor_b32 v{XR+10}, 48, v{XE}')
            a(f'ds_read_b64 {vr(XR,2)}, v{XE}')
            for g in range(1, 4): tk = a(f'ds_read_b64 {vr(XR+2*g,2)}, v{XR+7+g}')
            a(f'v_lshlrev_b32 v{XR+12}, 2, v0\ns_lshl_b32 s{sT0}, s{sW}, 10\ns_add_u32 s{sT0}, s{sT0}, s{sC}')
            for k in range(4):
                a(f'buffer_atomic_add_f32 v{KVA+k}, v{XR+12}, {srd(sWS)}, s{sT0} offen offset:{k*256}')
            a(f'v_and_b32 v{XR+13}, 15, v0')
            a(f'v_cmp_eq_u32 vcc, 1, v{XR+13}\nv_cndmask_b32 v{ZA}, v{ZA}, v{ZA+1}, vcc')
            a(f'v_cmp_eq_u32 vcc, 2, v{XR+13}\nv_cndmask_b32 v{ZA}, v{ZA}, v{ZA+2}, vcc')
            a(f'v_cmp_eq_u32 vcc, 3, v{XR+13}\nv_cndmask_b32 v{ZA}, v{ZA}, v{ZA+3}, vcc')
            a(f'v_lshrrev_b32 v{XR+14}, 4, v0\nv_lshl_add_u32 v{XR+14}, v{XR+14}, 2, v{XR+13}\nv_lshlrev_b32 v{XR+14}, 2, v{XR+14}')
            a(f'v_mov_b32 v{XR+15}, {OOB}\nv_cmp_gt_u32 vcc, 4, v{XR+13}\nv_cndmask_b32 v{XR+14}, v{XR+15}, v{XR+14}, vcc')
            a(f's_lshl_b32 s{sT0}, s{sW}, 6\ns_add_u32 s{sT0}, s{sT0}, s{sC}\ns_add_u32 s{sT0}, s{sT0}, {KV_Z}')
            a(f'buffer_atomic_add_f32 v{ZA}, v{XR+14}, {srd(sWS)}, s{sT0} offen')
            a.wait_lg(tk)
            for g in range(4):
                for d in range(2):
                    a(f'v_lshlrev_b32 v{RES+4*g+2*d}, 16, v{XR+2*g+d}\nv_and_b32 v{RES+4*g+2*d+1}, 0xffff0000, v{XR+2*g+d}')
            for u in range(8):
                a(f'v_pk_add_f32 {P(P2ACC+2*u)}, {P(RES+2*u)}, {P(PST)} op_sel_hi:[1,0]')
            for u in range(8):
                a(f'v_pk_mul_f32 {P(P2ACC+2*u)}, {P(P2ACC+2*u)}, {P(PST)} op_sel:[0,1] op_sel_hi:[1,1]')
        p2[0]['hook'] = kv_epilogue
        for n, s in enumerate(p2):
            s['vm'] = (lambda n=n: hl[n])
        steps += p2
        np2 = len(steps)

        qs = steps_q(16, HACC, HCS, HSETS, np2)
        x1tok = {}
        for s in qs:
            if s['stage'] is not None:
                extra = None
                if s['stage'] == opt.get('fx_bar', 18): extra = lambda: a.wait_vm(x1tok['st'])
                s['pre'] = stage_pre(s['stage'], [WK16], [PAT16], extra)
        qr0, qr1 = qs[0]['reads'], qs[1]['reads']
        qs[0]['reads'] = []; qs[1]['reads'] = []; qs[0]['pre'] = None
        qs[0]['at'] = np2; qs[1]['at'] = np2
        def exchange(acc, rcv, nb):
            a(f'v_xor_b32 v{rcv}, 8192, v{RDX}')
            for g in range(4):
                a(f'ds_write_b128 v{rcv}, {vr(acc+16+4*g,4)} offset:{g*1024}')
            a.wait_lg0()
            self.barC(a, nb)
            for g in range(4):
                tk = a(f'ds_read_b128 {vr(rcv+4*g,4)}, v{RDX} offset:{g*1024}')
            return tk
        def p2_epilogue():
            RCV = 180; OUT = 196
            tk = exchange(P2ACC, RCV, 'B16')
            a(f'v_add_u32 v{WK16}, {SLOT[16]}, v{PAT16}')
            for t in qr0: qs[0]['tok'] = a(t)
            a(f's_lshl_b32 s{sT0}, s{sJ}, 1\ns_add_u32 s{sT0}, s{sT0}, s{sHI}\ns_lshl_b32 s{sT0}, s{sT0}, 12\ns_add_u32 s{sT0}, s{sT0}, s{sA}\ns_add_u32 s{sT0}, s{sT0}, {X1_OFF}')
            a.wait_lg(tk)
            for u in range(8): a(f'v_pk_add_f32 {P(P2ACC+2*u)}, {P(P2ACC+2*u)}, {P(RCV+2*u)}')
            for u in range(8):
                a(f'v_cvt_pk_bf16_f32 v{OUT+u}, v{P2ACC+2*u}, v{P2ACC+2*u+1}')
                if u % 4 == 3:
                    x1tok['st'] = a(f'buffer_store_dwordx4 {vr(OUT+u-3,4)}, v{CELLT}, {srd(sWS)}, s{sT0} offen offset:{(u>>2)*2048} sc1')
            for t in qr1: qs[1]['tok'] = a(t)
            for u in range(8): a(f'v_pk_add_f32 {P(RES+2*u)}, {P(RES+2*u)}, {P(P2ACC+2*u)}')
        qs[0]['hook'] = p2_epilogue
        steps += qs
        nq = len(steps)

        BST = 128; A3 = [60, 68, 76]; ACA, ACB = 84, 100
        GST = 40; GT = 44; CSG = 116; GOUT = 124
        X1B, CSB, CSB2, HFB = 2, 3, 4, 5
        HP = [6, 7]
        def q_epilogue():
            TMP = 100; OUT = 116; QP = 80
            for u in range(8):
                a(f'v_pk_fma_f32 {P(HACC+2*u)}, {P(HCS+2*(u&1))}, {P(QST+4*(u>>1))}, {P(HACC+2*u)} op_sel_hi:[1,0,1]')
            for u in range(8):
                a(f'v_pk_mul_f32 {P(TMP+2*u)}, {P(HACC+2*u)}, {P(QST+4*(u>>1)+2)} op_sel_hi:[1,0]')
            for u in range(8):
                a(f'v_pk_fma_f32 {P(HACC+2*u)}, {P(HACC+2*u)}, {P(QST+4*(u>>1))}, s[{sEPS}:{sEPS+1}] op_sel:[0,1,0] op_sel_hi:[1,1,1]')
            self.phi_tail(a, [HACC + 2*u for u in range(8)], [OUT + u for u in range(8)], TMP)
            a(f's_lshl_b32 s{sT0}, s{sW}, 11\ns_add_u32 s{sT0}, s{sT0}, {PQ}\nv_lshlrev_b32 v{QP}, 3, v0\nv_add_u32 v{QP}, s{sT0}, v{QP}')
            for tt in range(4): a(f'ds_write_b64 v{QP}, {vr(OUT+2*tt,2)} offset:{tt*512}')
            a(f's_lshl_b32 s{sT0}, s{sTH}, 10\nv_add_u32 v{X1B}, s{sT0}, v{LL16}')
            a(f's_lshl_b32 s{sT2}, s{sHI}, 15\nv_add_u32 v{HFB}, s{sT2}, v{X1B}')
            a(f's_and_b32 s{sT3}, s{sJ}, 1\ns_lshl_b32 s{sT4}, s{sT3}, 5')
            a(f's_lshl_b32 s{sT0}, s{sHI}, 5\ns_add_u32 s{sT0}, s{sT0}, s{sT4}\ns_lshl_b32 s{sT0}, s{sT0}, 2\ns_add_u32 s{sT0}, s{sT0}, {CS3L}')
            a(f'v_lshrrev_b32 v{QP+1}, 5, v0\nv_lshlrev_b32 v{QP+1}, 4, v{QP+1}\nv_add_u32 v{CSB}, s{sT0}, v{QP+1}')
            a(f's_cmp_eq_u32 s{sT3}, 0\ns_cselect_b32 s{sT5}, 192, 0')
            a(f's_lshl_b32 s{sT0}, s{sHI}, 4\ns_add_u32 s{sT0}, s{sT0}, s{sT5}\ns_lshl_b32 s{sT0}, s{sT0}, 2\ns_add_u32 s{sT0}, s{sT0}, {CS3L}')
            a(f'v_add_u32 v{CSB2}, s{sT0}, v{QP+1}')
            a(f's_lshl_b32 s{sT0}, s{sHI}, 5\nv_xor_b32 v{HP[0]}, s{sT0}, v{PAT3[0]}\nv_xor_b32 v{HP[1]}, s{sT0}, v{PAT3[1]}')
            a(f's_mul_i32 s{sT0}, s{sJ}, 14\ns_lshr_b32 s{sT4}, s{sT4}, 4\ns_lshl_b32 s{sT2}, s{sHI}, 1\ns_add_u32 s{sB}, s{sT0}, s{sT4}\ns_add_u32 s{sB}, s{sB}, s{sT2}')
            a(f's_lshl_b32 s{sB}, s{sB}, 11\ns_add_u32 s{sB}, s{sB}, s{sD}')
            a(f's_lshr_b32 s{sT5}, s{sT5}, 4\ns_add_u32 s{sC}, s{sT0}, s{sT5}\ns_add_u32 s{sC}, s{sC}, s{sHI}\ns_lshl_b32 s{sC}, s{sC}, 11\ns_add_u32 s{sC}, s{sC}, s{sD}')
            a.wait_lg0()
            self.barC(a, 'XA')

        def steps_p3(first, nstage, acc, pats, base, kind, phase):
            st = []
            for n in range(4 * nstage):
                stg = first + n // 4
                sb = A3[(n + phase) % 3]
                reads = []; mf = []
                for u in range(2):
                    i = 2 * n + u; s_ = i % 8
                    reads += [f'ds_read_b64_tr_b16 {vr(sb+4*u+2*rd,2)}, v{WK[rd]} offset:{s_*2048}' for rd in range(2)]
                    if kind == 'p0':
                        reads.append(f'ds_read_b128 {vr(BST+4*i,4)}, v{X1B} offset:{i*2048}'); b = BST + 4 * i
                    elif kind == 'hf':
                        b = HB[(n % 3)] + 4 * u
                        reads.append(f'ds_read_b128 {vr(b,4)}, v{HFB} offset:{i*2048}')
                    else:
                        b = BST + 4 * i
                    mf.append(f'v_mfma_f32_32x32x16_bf16 {vr(acc,16)}, {vr(sb+4*u,4)}, {vr(b,4)}, {vr(acc,16) if i else 0}')
                s = dict(reads=reads, mfmas=mf, at=base + n - 2)
                if n % 4 == 0: s['pre'] = stage_pre(stg, WK[:2], pats)
                st.append(s)
            return st
        HB = [44, 116, 52]
        gtok = {}
        def g_epi(acc, csreg, csoff, ng, sbase, imm0):
            for b in range(ng // 2):
                for g in range(2):
                    tk = a(f'ds_read_b128 {vr(CSG+4*g,4)}, v{csreg} offset:{csoff+(2*b+g)*32}')
                a.wait_lg(tk)
                pairs = [(acc + 8*b + 2*u, CSG + 2*u, GST, GOUT + u) for u in range(4)]
                self.gelu(a, pairs, GT)
                gtok['st'] = a(f'buffer_store_dwordx4 {vr(GOUT,4)}, v{CELLT}, {srd(sWS)}, s{sbase} offen offset:{imm0+b*2048} sc1')
        def p0_epilogue():
            t = GT
            a(f's_lshl_b32 s{sT0}, s{sTH}, 8\ns_add_u32 s{sT0}, s{sT0}, {X1P}\nv_and_b32 v{t}, 31, v0\nv_lshlrev_b32 v{t}, 3, v{t}\nv_add_u32 v{t}, s{sT0}, v{t}')
            a(f'ds_read_b64 {vr(t+2,2)}, v{t}')
            tk = a(f'ds_read_b64 {vr(t+4,2)}, v{t} offset:512')
            a.wait_lg(tk)
            a(f'v_add_f32 v{t+2}, v{t+2}, v{t+4}\nv_add_f32 v{t+3}, v{t+3}, v{t+5}')
            a(f'v_mul_f32 v{GST}, {f2u(-1/512):#x}, v{t+2}\nv_mul_f32 v{t+3}, {f2u(1/512):#x}, v{t+3}')
            a(f'v_fma_f32 v{t+3}, -v{GST}, v{GST}, v{t+3}\nv_max_f32 v{t+3}, 0, v{t+3}\nv_add_f32 v{t+3}, {f2u(1e-5):#x}, v{t+3}')
            a(f'v_rsq_f32 v{t+4}, v{t+3}\nv_sqrt_f32 v{GST+3}, v{t+3}')
            a(f'v_mul_f32 v{GST+1}, {f2u(GC0):#x}, v{t+4}\nv_mul_f32 v{t+5}, v{t+4}, v{t+4}\nv_mul_f32 v{t+5}, v{t+5}, v{t+4}\nv_mul_f32 v{GST+2}, {f2u(GC1):#x}, v{t+5}')
            g_epi(ACA, CSB, 0, 4, sB, 0)
            a(f's_add_u32 s{sB}, s{sB}, 8192')
        def hf_send():
            t = GT
            a(f'v_lshlrev_b32 v{t}, 4, v0\ns_lshl_b32 s{sT0}, s{sW}, 11\ns_add_u32 s{sT0}, s{sT0}, {SC}\nv_add_u32 v{t}, s{sT0}, v{t}')
            a(f'ds_write_b128 v{t}, {vr(ACB+8,4)}')
            gtok['hfw'] = a(f'ds_write_b128 v{t}, {vr(ACB+12,4)} offset:1024')
            a(f'v_xor_b32 v{HFB}, 4096, v{t}')
        def p1_epilogue():
            a(f'ds_read_b128 {vr(ACB+8,4)}, v{HFB}')
            tk = a(f'ds_read_b128 {vr(ACB+12,4)}, v{HFB} offset:1024')
            g_epi(ACA, CSB, 256, 4, sB, 0)
            a(f's_add_u32 s{sB}, s{sB}, 8192')
            a.wait_lg(tk)
            for u in range(4): a(f'v_pk_add_f32 {P(ACB+2*u)}, {P(ACB+2*u)}, {P(ACB+8+2*u)}')
            g_epi(ACB, CSB2, 0, 2, sC, 0)

        p0 = steps_p3(20, 4, ACA, PAT3, nq, 'p0', 0)
        p0[0]['at'] = nq; p0[1]['at'] = nq; p0[0]['hook'] = q_epilogue
        steps += p0; n0 = len(steps)
        hf = steps_p3(24, 2, ACB, HP, n0, 'hf', 16)
        for k in range(2):
            bs = [t for t in hf[k]['reads'] if 'b128' in t]
            hf[k]['reads'] = [t for t in hf[k]['reads'] if 'b128' not in t]
            hf[k]['late'] = bs
        def hf_hook():
            p0_epilogue()
            for k in range(2):
                for t in hf[k]['late']: hf[k]['tok'] = a(t)
        hf[0]['hook'] = hf_hook
        steps += hf; n1 = len(steps)
        p1 = steps_p3(26, 4, ACA, PAT3, n1, 'p', 24)
        p1[0]['hook'] = hf_send
        old = p1[4]['pre']
        p1[4]['pre'] = lambda: (a.wait_lg(gtok['hfw']), old())
        steps += p1; n2 = len(steps)
        p2_ = steps_p3(30, 4, ACA, PAT3, n2, 'p', 40)
        p2_[0]['hook'] = p1_epilogue
        steps += p2_; n3 = len(steps)

        P4ACC = 84; FR = 128
        wo = steps_ks(34, 4, PATN, True, P4ACC, lambda n: FR + 4 * n, A3, n3, setphase=56, c_init=RES)
        ol = {}
        def p3_last_epilogue():
            a(f's_lshl_b32 s{sT0}, s{sHI}, 13\ns_add_u32 s{sT2}, s{sT0}, s{sA}\ns_add_u32 s{sT2}, s{sT2}, {O_OFF}\ns_add_u32 s{sD}, s{sD}, s{sT0}')
            for n in range(16):
                sg, i = n // 4, n % 4
                if i % 2 == 0: a(f's_add_u32 s{sT0}, s{sT2}, {sg*16384 + (i>>1)*4096}')
                ol[n] = a(f'buffer_load_dwordx4 {vr(FR+4*n,4)}, v{CELLT}, {srd(sWS)}, s{sT0} offen offset:{(i&1)*2048} sc1')
            g_epi(ACA, CSB, 512, 4, sB, 0)
        wo[0]['hook'] = p3_last_epilogue
        for n, s in enumerate(wo): s['vm'] = (lambda n=n: ol[n])
        gb = opt.get('fg_bar', 35) - 34
        oldw = wo[4 * gb]['pre']
        wo[4 * gb]['pre'] = lambda: (a.wait_vm(gtok['st']), oldw())
        steps += wo; n4 = len(steps)
        NG = 32
        w4 = steps_ks(38, 14, PATP, False, P4ACC, lambda n: FR + 4 * (n % NG), A3, n4, setphase=72, init=False)
        gl = {}
        def gload(n):
            sg, i = n // 4, n % 4
            if i % 2 == 0: a(f's_add_u32 s{sT0}, s{sD}, {sg*16384 + (i>>1)*4096}')
            gl[n] = a(f'buffer_load_dwordx4 {vr(FR+4*(n%NG),4)}, v{CELLT}, {srd(sWS)}, s{sT0} offen offset:{(i&1)*2048} sc1')
        w4[0]['at'] = n4; w4[1]['at'] = n4
        pre38 = w4[0]['pre']
        def w4_pre():
            pre38()
            for n in range(NG): gload(n)
        w4[0]['pre'] = w4_pre
        for n, s in enumerate(w4):
            s['vm'] = (lambda n=n: gl[n])
            if n >= 1 and n - 1 + NG < 56:
                s['post'] = [lambda m=n - 1 + NG: gload(m)]
        steps += w4

        self.run_steps(a, steps)
        RCV = 128; OUT = 144
        tk = exchange(P4ACC, RCV, 'RB2')
        VO = 160
        a(f's_lshl_b32 s{sT0}, s{sTH}, 5\nv_and_b32 v{VO}, 31, v0\nv_add_u32 v{VO}, s{sT0}, v{VO}\nv_lshlrev_b32 v{VO}, 10, v{VO}')
        a(f'v_lshrrev_b32 v{VO+1}, 5, v0\nv_lshl_add_u32 v{VO}, v{VO+1}, 4, v{VO}')
        a(f's_lshl_b32 s{sT0}, s{sJ}, 1\ns_add_u32 s{sT0}, s{sT0}, s{sHI}\ns_lshl_b32 s{sT0}, s{sT0}, 6\ns_add_u32 s{sT0}, s{sT0}, s{sA}')
        a.wait_lg(tk)
        for u in range(8): a(f'v_pk_add_f32 {P(P4ACC+2*u)}, {P(P4ACC+2*u)}, {P(RCV+2*u)}')
        for u in range(8): a(f'v_cvt_pk_bf16_f32 v{OUT+u}, v{P4ACC+2*u}, v{P4ACC+2*u+1}')
        for b in range(2):
            a(f'v_permlane32_swap_b32 v{OUT+4*b}, v{OUT+4*b+2}\nv_permlane32_swap_b32 v{OUT+4*b+1}, v{OUT+4*b+3}')
            a(f'buffer_store_dwordx4 {vr(OUT+4*b,4)}, v{VO}, {srd(sOUT)}, s{sT0} offen offset:{b*32}')
        if opt.get('prof'):
            a(f's_memrealtime s[{sTSP}:{sTSP+1}]\ns_memtime s[98:99]\ns_waitcnt lgkmcnt(0)\ns_sub_u32 s98, s98, s96')
            a(f's_lshl_b32 s{sT0}, s2, 3\ns_add_u32 s{sT0}, s{sT0}, s{sW}\ns_lshl_b32 s{sT0}, s{sT0}, 8\ns_add_u32 s{sT0}, s{sT0}, {TS_OFF}')
            a(f'v_mov_b32 v2, s26\nv_mov_b32 v3, s{sTSP}\nv_mov_b32 v4, s98\nv_mov_b32 v5, 0\nv_mov_b32 v6, 0\ns_mov_b64 exec, 1')
            a(f'buffer_store_dwordx4 v[2:5], v6, {srd(sWS)}, s{sT0} offen')
        a('s_endpgm')

    def helper(self, a):
        opt = self.opt
        prof = opt.get('prof')
        VX = 1
        V1K, VQ, VKV, VW3, VHF = 4, 8, 12, 16, 20
        VX1 = [24, 25]; VFL, VFP, VF3, VONE, VCT, VTS = 26, 27, 28, 29, 30, 31
        CELLV = 32; VFX = 33
        T = [40 + i for i in range(16)]
        nstamp = [0]
        def stamp(last=False):
            if prof:
                if nstamp[0]:
                    a(f's_waitcnt lgkmcnt(0)\nv_writelane_b32 v{VTS}, s{sTSP}, {nstamp[0]-1}')
                    a.lg = []
                if not last: a(f's_memrealtime s[{sTSP}:{sTSP+1}]')
                nstamp[0] += 1
        def bar(n):
            self.barsH.append(n); a('s_barrier')
        a(f's_lshl_b32 s{sT0}, s{sR}, 2\ns_add_u32 s{sT0}, s{sT0}, s{sW}\ns_lshl_b32 s{sT0}, s{sT0}, 14')
        a(f'v_lshl_add_u32 v{VX}, v0, 4, s{sT0}')
        a(f's_lshl_b32 s{sA}, s{sW}, 14\ns_lshl_b32 s{sB}, s{sW}, 12')
        for i in range(16):
            if i % 4 == 0:
                a(f's_add_u32 m0, s{sA}, {(i>>2)*4096}\ns_mov_b32 s{sT2}, {(i>>2)*4096}')
            a(f'v_xor_b32 v{2+(i&1)}, {i<<4}, v{VX}')
            xtok = a(f'buffer_load_dwordx4 v{2+(i&1)}, {srd(sX)}, s{sT2} offen offset:{(i&3)*1024} lds')
        row, pos, sw = T[0], T[1], T[2]
        a(f'v_lshrrev_b32 v{row}, 3, v0\nv_and_b32 v{pos}, 7, v0\nv_lshrrev_b32 v{sw}, 4, v0\nv_and_b32 v{sw}, 1, v{sw}\nv_lshlrev_b32 v{sw}, 2, v{sw}')
        a(f'v_xor_b32 v{pos}, v{pos}, v{sw}')
        a(f'v_lshlrev_b32 v{T[3]}, 4, v{pos}\nv_xor_b32 v{T[4]}, 32, v{T[3]}')
        def mk(dst, RS, sbase):
            a(f's_mov_b32 s{sT3}, {RS}\nv_mul_lo_u32 v{T[5]}, v{row}, s{sT3}\nv_add_u32 v{T[5]}, s{sbase}, v{T[5]}')
            for i in range(4):
                a(f'v_add_u32 v{dst+i}, v{T[5]}, v{T[3+(i&1)]}')
                if i: a(f'v_add_u32 v{dst+i}, {i*(8*RS-1024)}, v{dst+i}')
        a(f's_lshl_b32 s{sT0}, s{sJ}, 7\ns_lshl_b32 s{sT2}, s{sW}, 15\ns_add_u32 s{sT2}, s{sT2}, s{sT0}')
        mk(V1K, 1024, sT2)

        def issue(st):
            kind, sg = STAGES[st]
            s, v, so = {'w1': (sW1, V1K, sg * 131072), 'w2': (sW2, V1K, sg * 131072), 'wo': (sWO, V1K, sg * 131072),
                        'w4': (sW4, V1K, sg * 131072), 'wq': (sQKV, VQ, sg * 128 * 3072), 'kv': (sQKV, VKV, sg * 64 * 3072),
                        'p0': (sW3, VW3, sg * 128 * 3584), 'p1': (sW3, VW3, sg * 128 * 3584 + 128), 'p2': (sW3, VW3, sg * 128 * 3584 + 256),
                        'hf': (sW3, VHF, sg * 128 * 3584)}[kind]
            a(f's_add_u32 m0, s{sB}, {SLOT[st]}\ns_mov_b32 s{sT2}, {so}')
            for i in range(4):
                tk = a(f'buffer_load_dwordx4 v{v+i}, {srd(s)}, s{sT2} offen offset:{i*1024} lds')
            stok[st] = tk
        stok = {}
        for st in ISSUE[-1][:4]: issue(st)
        a(f's_lshl_b32 s{sT0}, s{sJ}, 7\ns_mul_i32 s{sT2}, s{sW}, {32*3072}\ns_add_u32 s{sT2}, s{sT2}, s{sT0}')
        mk(VQ, 3072, sT2)
        a(f's_mul_i32 s{sT2}, s{sTH}, {32*3072}\ns_add_u32 s{sT2}, s{sT2}, s{sT0}\ns_add_u32 s{sT4}, s{sHI}, 1\ns_lshl_b32 s{sT4}, s{sT4}, 10\ns_add_u32 s{sT2}, s{sT2}, s{sT4}')
        mk(VKV, 3072, sT2)
        for st in ISSUE[-1][4:]: issue(st)
        a(f's_mul_i32 s{sT0}, s{sJ}, 448\ns_mul_i32 s{sT2}, s{sW}, {32*3584}\ns_add_u32 s{sT0}, s{sT0}, s{sT2}')
        a(f's_and_b32 s{sT4}, s{sJ}, 1\ns_lshl_b32 s{sT2}, s{sT4}, 6\ns_add_u32 s{sT2}, s{sT2}, s{sT0}')
        mk(VW3, 3584, sT2)
        a(f's_cmp_eq_u32 s{sT4}, 0\ns_cselect_b32 s{sT2}, 384, 0\ns_add_u32 s{sT2}, s{sT2}, s{sT0}')
        a(f'v_lshrrev_b32 v{T[6]}, 2, v{pos}\nv_lshlrev_b32 v{T[6]}, 8, v{T[6]}\nv_add_u32 v{row}, v{row}, v{T[6]}')
        a(f'v_and_b32 v{T[3]}, 63, v{T[3]}\nv_and_b32 v{T[4]}, 63, v{T[4]}')
        mk(VHF, 3584, sT2)
        a(f'v_lshrrev_b32 v{T[0]}, 5, v0\nv_and_b32 v{T[1]}, 31, v0\nv_lshlrev_b32 v{CELLV}, 10, v{T[0]}\nv_lshl_add_u32 v{CELLV}, v{T[1]}, 4, v{CELLV}')
        a(f's_lshl_b32 s{sC}, s{sR}, 16\ns_add_u32 s{sT0}, s{sC}, s{sB}\ns_add_u32 s{sT0}, s{sT0}, {X1_OFF}')
        a(f'v_add_u32 v{VX1[0]}, s{sT0}, v{CELLV}\nv_subrev_u32 v{VX1[1]}, 512, v{VX1[0]}')
        a(f's_lshl_b32 s{sT0}, s{sR}, 7\ns_add_u32 s{sT0}, s{sT0}, {FL_OFF}\ns_lshl_b32 s{sT2}, s{sJ}, 2\ns_add_u32 s{sT2}, s{sT2}, s{sT0}')
        a(f's_lshl_b32 s{sD}, s{sJ}, 13\ns_add_u32 s{sD}, s{sD}, {KV_OFF}')
        a(f's_cmp_eq_u32 s{sW}, 0\ns_cselect_b32 s{sT2}, s{sT2}, {OOB}\ns_cselect_b32 s{sT3}, s{sD}, {OOB}')
        a(f'v_mov_b32 v{VFL}, s{sT2}\nv_mov_b32 v{VCT}, s{sT3}\nv_mov_b32 v{VONE}, 1')
        a(f'v_and_b32 v{T[2]}, 7, v0\nv_lshlrev_b32 v{T[2]}, 2, v{T[2]}\nv_add_u32 v{VFP}, s{sT0}, v{T[2]}')
        a(f's_cmp_eq_u32 s{sR}, 0\ns_cselect_b32 s{sT2}, 0, -128\ns_cmp_eq_u32 s{sR}, 31\ns_cselect_b32 s{sT3}, 0, 128')
        a(f'v_lshrrev_b32 v{T[3]}, 3, v0\nv_mov_b32 v{T[4]}, 0\nv_mov_b32 v{T[5]}, s{sT2}\nv_mov_b32 v{T[6]}, s{sT3}')
        a(f'v_cmp_eq_u32 vcc, 1, v{T[3]}\nv_cndmask_b32 v{T[4]}, v{T[4]}, v{T[5]}, vcc\nv_cmp_eq_u32 vcc, 2, v{T[3]}\nv_cndmask_b32 v{T[4]}, v{T[4]}, v{T[6]}, vcc')
        a(f'v_add_u32 v{VF3}, v{VFP}, v{T[4]}')
        if prof: a(f'v_mov_b32 v{VTS}, 0\nv_writelane_b32 v{VTS}, s26, 63')

        F = 64
        q, i16 = T[8], T[9]
        a(f'v_lshrrev_b32 v{q}, 4, v0\nv_and_b32 v{i16}, 15, v0')
        for m in range(4):
            a(f'v_or_b32 v{T[0]}, {4*m}, v{q}\nv_xor_b32 v{T[0]}, v{T[0]}, v{i16}\nv_lshlrev_b32 v{T[0]}, 4, v{T[0]}')
            a(f'v_lshl_add_u32 v{T[0]}, v{i16}, 10, v{T[0]}\nv_add_u32 v{T[10+m]}, s{sA}, v{T[0]}')
        a.wait_vm(xtok)
        stamp()
        toks = [a(f'ds_read_b128 {vr(F+4*ks,4)}, v{T[10+(ks&3)]} offset:{(ks>>2)*256}') for ks in range(16)]
        SA = 36
        def dots(base, n, first):
            for d in range(n):
                z = first and d < 2
                a(f'v_dot2_f32_bf16 v{SA+(d&1)}, v{base+d}, s{sONE}, {0 if z else "v%d"%(SA+(d&1))}')
                a(f'v_dot2_f32_bf16 v{SA+2+(d&1)}, v{base+d}, v{base+d}, {0 if z else "v%d"%(SA+2+(d&1))}')
        for ks in range(0, 16, 2):
            a.wait_lg(toks[ks + 1])
            dots(F + 4 * ks, 8, ks == 0)
        s1, s2 = SA, SA + 2
        a(f'v_add_f32 v{s1}, v{SA}, v{SA+1}\nv_add_f32 v{s2}, v{SA+2}, v{SA+3}')
        for sw_ in ('v_permlane32_swap_b32', 'v_permlane16_swap_b32'):
            a(f'v_mov_b32 v{s1+1}, v{s1}\nv_mov_b32 v{s2+1}, v{s2}\n{sw_} v{s1}, v{s1+1}\n{sw_} v{s2}, v{s2+1}')
            a(f'v_add_f32 v{s1}, v{s1}, v{s1+1}\nv_add_f32 v{s2}, v{s2}, v{s2+1}')
        R = 64
        a(f'v_mul_f32 v{R}, {f2u(-1/512):#x}, v{s1}\nv_mul_f32 v{s2}, {f2u(1/512):#x}, v{s2}')
        a(f'v_fma_f32 v{s2}, -v{R}, v{R}, v{s2}\nv_max_f32 v{s2}, 0, v{s2}\nv_add_f32 v{s1}, {f2u(1e-5):#x}, v{s2}')
        a(f'v_rsq_f32 v{R+5}, v{s1}\nv_mov_b32 v{R+4}, v{R}\nv_mov_b32 v{R+7}, 0')
        a(f'v_mul_f32 v{R+6}, {f2u(LOG2E):#x}, v{R+5}\nv_mul_f32 v{s1}, v{R+5}, v{R+5}\nv_mul_f32 v{s1}, v{s1}, v{s2}\nv_add_f32 v{s1}, {f2u(1e-5):#x}, v{s1}')
        a(f'v_rsq_f32 v{s1}, v{s1}\nv_mul_f32 v{s1}, v{s1}, v{R+5}')
        a(f'v_rcp_f32 v{R+3}, v{s1}\nv_mul_f32 v{R+1}, {f2u(GC0):#x}, v{s1}\nv_mul_f32 v{s2}, v{s1}, v{s1}\nv_mul_f32 v{s2}, v{s2}, v{s1}\nv_mul_f32 v{R+2}, {f2u(GC1):#x}, v{s2}')
        a(f's_lshl_b32 s{sT0}, s{sW}, 4\nv_add_u32 v{T[0]}, s{sT0}, v{i16}\nv_lshlrev_b32 v{T[1]}, 4, v{T[0]}\nv_lshlrev_b32 v{T[0]}, 2, v{T[0]}')
        a(f'v_add_u32 v{T[1]}, {S1}, v{T[1]}\nv_add_u32 v{T[0]}, {NMU}, v{T[0]}')
        a(f'ds_write_b128 v{T[1]}, {vr(R,4)}\nds_write_b128 v{T[1]}, {vr(R+4,4)} offset:1024')
        a(f'ds_write_b32 v{T[0]}, v{R}\nds_write_b32 v{T[0]}, v{R+5} offset:256\nds_write_b32 v{T[0]}, v{R+6} offset:512')

        npoll = [0]; misc = {}
        VZA, VCK = 34, 35
        a(f'v_and_b32 v{VZA}, 7, v0\nv_lshlrev_b32 v{VZA}, 2, v{VZA}\nv_mov_b32 v{T[14]}, {OOB}\ns_cmp_eq_u32 s{sW}, 0\ns_cselect_b64 vcc, -1, 0\nv_cndmask_b32 v{VZA}, v{T[14]}, v{VZA}, vcc')
        def only_h0(body):
            npoll[0] += 1
            L = f'L_nh0_{npoll[0]}'
            a(f's_cmp_lg_u32 s{sW}, 0\ns_cbranch_scc1 {L}')
            vm, lg = list(a.vm), list(a.lg)
            body()
            a.vm, a.lg = vm, lg
            a(f'{L}:')
        def vpoll(vaddr, ftype):
            def body():
                L = f'L_poll{npoll[0]}'
                a(f's_mov_b32 s{sCNT}, {opt.get("spin", 200000)}\ns_mov_b32 s{sT0}, {ftype*4096}')
                a(f'{L}:')
                a(f'buffer_load_dword v{T[15]}, v{vaddr}, {srd(sWS)}, s{sT0} offen sc1')
                a(f's_sub_u32 s{sCNT}, s{sCNT}, 1\ns_waitcnt vmcnt(0)\nv_cmp_ne_u32 vcc, 1, v{T[15]}')
                a(f's_cmp_eq_u32 s{sCNT}, 0\ns_cbranch_scc1 {L}d\ns_cbranch_vccnz {L}\n{L}d:')
            only_h0(body)
        def check_issue(key, vdst, vaddr, sr, off):
            a(f's_mov_b32 s{sT0}, {off}')
            misc[key] = a(f'buffer_load_dword v{vdst}, v{vaddr}, {srd(sr)}, s{sT0} offen sc1')
        def check_wait(key, vdst, vaddr, sr, off, val):
            a.wait_vm(misc[key])
            def body():
                L = f'L_poll{npoll[0]}'
                a(f's_mov_b32 s{sCNT}, {opt.get("spin", 200000)}\ns_mov_b32 s{sT0}, {off}')
                a(f'{L}:')
                a(f'v_cmp_ne_u32 vcc, {val}, v{vdst}\ns_sub_u32 s{sCNT}, s{sCNT}, 1\ns_cbranch_vccz {L}d\ns_cmp_eq_u32 s{sCNT}, 0\ns_cbranch_scc1 {L}d')
                a(f'buffer_load_dword v{vdst}, v{vaddr}, {srd(sr)}, s{sT0} offen sc1')
                a(f's_waitcnt vmcnt(0)\ns_branch {L}\n{L}d:')
            only_h0(body)
        def flag(ftype):
            a(f's_mov_b32 s{sT0}, {ftype*4096}\ns_mov_b64 exec, 1')
            a(f'buffer_store_dword v{VONE}, v{VFL}, {srd(sWS)}, s{sT0} offen sc1')
            a('s_mov_b64 exec, -1')
        def count(off):
            a(f's_mov_b32 s{sT0}, {off}\ns_mov_b64 exec, 1')
            a(f'buffer_atomic_add v{VONE}, v{VCT}, {srd(sWS)}, s{sT0} offen')
            a('s_mov_b64 exec, -1')

        x1tok = {}
        PQR = 64; KVR = 72; ZR = 76; XF = 96
        def x1_stats(sg):
            a('s_setprio 3')
            if sg == 0:
                a(f's_lshl_b32 s{sT0}, s{sTH}, 10\ns_lshl_b32 s{sT2}, s{sHI}, 13\ns_add_u32 s{sT0}, s{sT0}, s{sT2}\nv_lshl_add_u32 v{VFX}, v0, 4, s{sT0}')
            tk = [a(f'ds_read_b128 {vr(XF+4*u,4)}, v{VFX} offset:{sg*16384+u*2048}') for u in range(4)]
            a.wait_lg(tk[1]); dots(XF, 8, sg == 0)
            a.wait_lg(tk[3]); dots(XF + 8, 8, False)
            if sg == 3:
                a(f'v_add_f32 v{SA}, v{SA}, v{SA+1}\nv_add_f32 v{SA+2}, v{SA+2}, v{SA+3}')
                a(f'v_mov_b32 v{SA+1}, v{SA}\nv_mov_b32 v{SA+3}, v{SA+2}\nv_permlane32_swap_b32 v{SA}, v{SA+1}\nv_permlane32_swap_b32 v{SA+2}, v{SA+3}')
                a(f'v_add_f32 v{SA}, v{SA}, v{SA+1}\nv_add_f32 v{SA+1}, v{SA+2}, v{SA+3}')
                a(f's_lshl_b32 s{sT0}, s{sTH}, 8\ns_lshl_b32 s{sT2}, s{sHI}, 9\ns_add_u32 s{sT0}, s{sT0}, s{sT2}\ns_add_u32 s{sT0}, s{sT0}, {X1P}')
                a(f'v_and_b32 v{T[0]}, 31, v0\nv_lshl_add_u32 v{T[0]}, v{T[0]}, 3, s{sT0}')
                a(f'ds_write_b64 v{T[0]}, {vr(SA,2)}')
                a.wait_lg0()
            a('s_setprio 0')
        def kv_loads():
            a(f'v_lshlrev_b32 v{T[0]}, 2, v0\ns_lshl_b32 s{sT0}, s{sW}, 10\ns_add_u32 s{sT0}, s{sT0}, s{sD}')
            for k in range(4): a(f'buffer_load_dword v{KVR+k}, v{T[0]}, {srd(sWS)}, s{sT0} offen offset:{k*256} sc1')
            a(f'v_lshrrev_b32 v{T[1]}, 4, v0\nv_lshlrev_b32 v{T[1]}, 4, v{T[1]}\ns_lshl_b32 s{sT0}, s{sW}, 6\ns_add_u32 s{sT0}, s{sT0}, s{sD}\ns_add_u32 s{sT0}, s{sT0}, {KV_Z}')
            misc['kv'] = a(f'buffer_load_dwordx4 {vr(ZR,4)}, v{T[1]}, {srd(sWS)}, s{sT0} offen sc1')
        def pq_reads():
            a(f's_lshl_b32 s{sT0}, s{sW}, 11\ns_add_u32 s{sT0}, s{sT0}, {PQ}\nv_lshl_add_u32 v{T[0]}, v0, 3, s{sT0}')
            for tt in range(4): a(f'ds_read_b64 {vr(PQR+2*tt,2)}, v{T[0]} offset:{tt*512}')
            a.wait_lg0()
        def o_compute():
            a.wait_vm(misc['kv'])
            AK, AZ, NUM, DEN, OUT = 80, 82, 96, 112, 84
            a(f'v_cvt_pk_bf16_f32 v{AK}, v{KVR}, v{KVR+1}\nv_cvt_pk_bf16_f32 v{AK+1}, v{KVR+2}, v{KVR+3}')
            a(f'v_cvt_pk_bf16_f32 v{AZ}, v{ZR}, v{ZR+1}\nv_cvt_pk_bf16_f32 v{AZ+1}, v{ZR+2}, v{ZR+3}')
            a('s_setprio 3')
            for tt in range(4):
                a(f'v_mfma_f32_16x16x16_bf16 {vr(DEN+4*tt,4)}, {vr(AZ,2)}, {vr(PQR+2*tt,2)}, 0')
            for tt in range(4):
                a(f'v_mfma_f32_16x16x16_bf16 {vr(NUM+4*tt,4)}, {vr(AK,2)}, {vr(PQR+2*tt,2)}, 0')
            a('s_setprio 0')
            for tt in range(4): a(f'v_add_f32 v{DEN+4*tt}, s{sEPS}, v{DEN+4*tt}')
            for tt in range(4): a(f'v_rcp_f32 v{DEN+4*tt}, v{DEN+4*tt}')
            for tt in range(4):
                for e in range(4): a(f'v_mul_f32 v{NUM+4*tt+e}, v{NUM+4*tt+e}, v{DEN+4*tt}')
            for u in range(8): a(f'v_cvt_pk_bf16_f32 v{OUT+u}, v{NUM+2*u}, v{NUM+2*u+1}')
            a(f's_lshl_b32 s{sT0}, s{sJ}, 2\ns_add_u32 s{sT0}, s{sT0}, s{sW}\ns_lshl_b32 s{sT0}, s{sT0}, 11\ns_add_u32 s{sT0}, s{sT0}, s{sC}\ns_add_u32 s{sT0}, s{sT0}, {O_OFF}')
            for pr in range(2):
                a(f'v_permlane16_swap_b32 v{OUT+4*pr}, v{OUT+4*pr+2}\nv_permlane16_swap_b32 v{OUT+4*pr+1}, v{OUT+4*pr+3}')
                misc['o'] = a(f'buffer_store_dwordx4 {vr(OUT+4*pr,4)}, v{CELLV}, {srd(sWS)}, s{sT0} offen offset:{pr*512} sc1')
        def cs3_load():
            a(f's_lshl_b32 s{sT0}, s{sW}, 8\ns_add_u32 m0, s{sT0}, {CS3L}\ns_add_u32 s{sT0}, s{sT0}, s{sD}\ns_add_u32 s{sT0}, s{sT0}, {KV_CS}\nv_lshlrev_b32 v{T[0]}, 2, v0')
            misc['cs'] = a(f'buffer_load_dword v{T[0]}, {srd(sWS)}, s{sT0} offen sc1 lds')

        fhb, fxb, fgb = opt.get('fh_bar', 7), opt.get('fx_bar', 18), opt.get('fg_bar', 35)
        for b in range(NST):
            if b == 20:
                vpoll(VFP, FX1)
                bar('XA'); stamp()
                for sg in range(4):
                    a(f's_add_u32 m0, s{sB}, {sg*16384}\ns_mov_b32 s{sT2}, {sg*16384}')
                    for u in range(4):
                        x1tok[sg] = a(f'buffer_load_dwordx4 v{VX1[u&1]}, {srd(sWS)}, s{sT2} offen offset:{u*1024} sc1 lds')
            if b == 0: a.wait_lg0()
            if b == 3: check_wait('z', VCK, VZA, sDBG, 0, 1)
            if b == 12: vpoll(VF3, FH)
            if b == 17: check_wait('ccs', VCK, VCT, sWS, KV_CNT_CS, 32)
            if b == 23: check_wait('ckv', VCK, VCT, sWS, KV_CNT_KV, 32)
            if b == 34: vpoll(VFP, FO)
            if b == 38: vpoll(VFP, FG)
            a.wait_vm(stok[b])
            if 20 <= b < 24: a.wait_vm(x1tok[b - 20])
            if b == 24: a.wait_vm(misc['cs'])
            if b == 27: a.wait_vm(misc['o'])
            bar(f'B{b}')
            stamp()
            if b == fhb: flag(FH)
            if b == fxb: flag(FX1); count(KV_CNT_KV)
            if b == fgb: flag(FG)
            if b == 27: flag(FO)
            if b == 10: count(KV_CNT_CS)
            if b == 1: check_issue('z', VCK, VZA, sDBG, 0)
            if b == 15: check_issue('ccs', VCK, VCT, sWS, KV_CNT_CS)
            if b == 21: check_issue('ckv', VCK, VCT, sWS, KV_CNT_KV)
            if b == 17: cs3_load()
            if b == 23: kv_loads()
            for st in ISSUE.get(b, []): issue(st)
            if b == 20: pq_reads()
            if 20 <= b < 24: x1_stats(b - 20)
            if b == 25: o_compute()
        if prof:
            stamp(True)
            a(f's_lshl_b32 s{sT0}, s2, 3\ns_add_u32 s{sT0}, s{sT0}, s{sW}\ns_add_u32 s{sT0}, s{sT0}, 4\ns_lshl_b32 s{sT0}, s{sT0}, 8\ns_add_u32 s{sT0}, s{sT0}, {TS_OFF}')
            a(f'v_lshlrev_b32 v2, 2, v0\nbuffer_store_dword v{VTS}, v2, {srd(sWS)}, s{sT0} offen')
        a('s_endpgm')

    def build(self):
        a = Asm()
        self.prologue(a)
        self.compute(a)
        a.lg = []; a.vm = []
        a('L_helper:')
        self.helper(a)
        a('L_end:\ns_endpgm')
        assert self.barsC[:-1] == self.barsH and self.barsC[-1] == 'RB2', (self.barsC, self.barsH)
        ref = open(f'cdna_kernels/{KNAME[:-7]}.s.ref').read().split('\n')
        head = [l for l in ref if l.startswith(';') and '@launch' not in l]
        out = '\n'.join(head) + '\n; @launch grid=(256,1,1) block=(512,1,1) lds=163840\n'
        out += f'.amdgcn_target "amdgcn-amd-amdhsa--gfx950"\n.text\n.globl {KNAME}\n.p2align 8\n.type {KNAME},@function\n{KNAME}:\n'
        out += a.text()
        out += f'''.section .rodata,"a"
.p2align 6
.amdhsa_kernel {KNAME}
  .amdhsa_next_free_vgpr 256
  .amdhsa_next_free_sgpr 102
  .amdhsa_accum_offset 256
  .amdhsa_group_segment_fixed_size 0
  .amdhsa_kernarg_size 88
  .amdhsa_user_sgpr_count 2
  .amdhsa_user_sgpr_kernarg_segment_ptr 1
  .amdhsa_system_sgpr_workgroup_id_x 1
.end_amdhsa_kernel
'''
        return out, a


def generate(**opt):
    g = Gen(opt)
    return g.build()[0]

if __name__ == '__main__':
    opt = {}
    for arg in sys.argv[2:]:
        k, v = arg.split('=')
        opt[k] = int(v) if v.lstrip('-').isdigit() else v
    g = Gen(opt)
    txt, a = g.build()
    open(sys.argv[1], 'w').write(txt)
    print('instructions', len(a.ins), 'pads', a.npad, 'slots', [hex(SLOT[s]) for s in range(NST)])
```

```python
import sys, math, struct
sys.path.insert(0, 'dev')
from asmlib import Asm

KNAME = 'parallel_sum__linear_attn_block__mixer_s_mlp__prompt_kernel'

H_OFF, X1_OFF, O_OFF, G_OFF = 0x000000, 0x200000, 0x400000, 0x600000
KV_OFF, FL_OFF, TS_OFF = 0xD00000, 0xD10000, 0xE00000
WS_BYTES = 0x1000000
KV_Z, KV_CS, KV_CNT_CS, KV_CNT_KV = 4096, 4608, 6144, 6400
FH, FX1, FO, FG = 0, 1, 2, 3
GBLK = 229376
RING = 0x10000
SC = 0x24000
S1, S2, NMU, RHO, RHL = SC, SC + 1024, SC + 2048, SC + 2304, SC + 2560
PQ, X1P, CS3L = SC, SC + 9216, SC + 10240
OOB = 0x80000000

def f2u(x): return struct.unpack('<I', struct.pack('<f', x))[0]
LOG2E = 1.4426950408889634
GC0 = -2.0 * math.sqrt(2.0 / math.pi) * LOG2E
GC1 = GC0 * 0.044715

sX, sQKV, sWO, sW1, sW2, sW3, sW4, sOUT, sWS, sDBG = 28, 32, 36, 40, 44, 48, 52, 56, 60, 64
sR, sJ, sW, sTH, sHI = 68, 69, 70, 71, 72
sT0, sT1, sT2, sT3, sT4, sT5 = 73, 74, 75, 76, 77, 78
sEPS = 80
sONE, sSEL0, sSEL1 = 82, 83, 84
sA, sB, sC, sD = 85, 86, 87, 88
sPOLL = 92
sCNT = 90
sTSP = 100

def srd(n): return f's[{n}:{n+3}]'
def vr(n, k=1): return f'v{n}' if k == 1 else f'v[{n}:{n+k-1}]'

STAGES = ([('w1', s) for s in range(4)] + [('kv', s) for s in range(8)] + [('w2', s) for s in range(4)] +
          [('wq', s) for s in range(4)] + [('p0', s) for s in range(4)] + [('hf', s) for s in range(2)] +
          [('p1', s) for s in range(4)] + [('p2', s) for s in range(4)] + [('wo', s) for s in range(4)] +
          [('w4', s) for s in range(14)])
NST = len(STAGES)
AREL = 27

def plan_slots():
    free = [RING + i * 0x4000 for i in range(5)]
    slot = {}; issue = {}
    nxt = 0
    def drain(b):
        nonlocal nxt
        while free and nxt < NST:
            slot[nxt] = free.pop(0); issue.setdefault(b, []).append(nxt); nxt += 1
    drain(-1)
    for b in range(NST):
        if b >= 2: free.append(slot[b - 2])
        if b == AREL: free.extend([0, 0x4000, 0x8000, 0xC000])
        drain(b)
    return slot, issue
SLOT, ISSUE = plan_slots()


class Gen:
    def __init__(self, opt):
        self.opt = opt
        self.barsC = []; self.barsH = []

    def prologue(self, a):
        a('s_cmp_ge_u32 s2, 256\ns_cbranch_scc1 L_end')
        a('s_load_dwordx16 s[4:19], s[0:1], 0\ns_load_dwordx4 s[20:23], s[0:1], 64\ns_load_dwordx2 s[24:25], s[0:1], 80')
        if self.opt.get('prof'):
            a(f's_memrealtime s[26:27]\ns_memtime s[96:97]')
        m = self.opt.get('map', 'same')
        if m == 'same':
            a(f's_and_b32 s{sR}, s2, 7\ns_lshr_b32 s{sT0}, s2, 6\ns_lshl_b32 s{sT0}, s{sT0}, 3\ns_or_b32 s{sR}, s{sR}, s{sT0}')
            a(f's_lshr_b32 s{sJ}, s2, 3\ns_and_b32 s{sJ}, s{sJ}, 7')
        elif m == 'h4':
            a(f's_and_b32 s{sR}, s2, 3\ns_lshr_b32 s{sT0}, s2, 5\ns_lshl_b32 s{sT0}, s{sT0}, 2\ns_or_b32 s{sR}, s{sR}, s{sT0}')
            a(f's_lshr_b32 s{sJ}, s2, 2\ns_and_b32 s{sJ}, s{sJ}, 7')
        elif m == 'cross':
            a(f's_lshr_b32 s{sR}, s2, 3\ns_and_b32 s{sJ}, s2, 7')
        a('v_lshrrev_b32 v1, 6, v0\nv_and_b32 v0, 63, v0')
        a(f'v_readfirstlane_b32 s{sT1}, v1')
        a(f's_and_b32 s{sW}, s{sT1}, 3\ns_and_b32 s{sTH}, s{sT1}, 1\ns_lshr_b32 s{sHI}, s{sW}, 1')
        a(f's_mov_b32 s{sEPS}, {f2u(1e-6):#x}\ns_mov_b32 s{sEPS+1}, {f2u(1e-6):#x}')
        a(f's_mov_b32 s{sONE}, 0x3f803f80\ns_mov_b32 s{sSEL0}, 0x00003f80\ns_mov_b32 s{sSEL1}, 0x3f800000')
        for (s, n) in ((sX, 2 << 20), (sQKV, 512 * 3072), (sWO, 512 * 1024), (sW1, 512 * 1024), (sW2, 512 * 1024),
                       (sW3, 512 * 3584), (sW4, 1792 * 1024), (sOUT, 2 << 20), (sWS, WS_BYTES), (sDBG, 256)):
            a(f's_mov_b32 s{s+2}, {n}\ns_mov_b32 s{s+3}, 0x20000')
        a('s_waitcnt lgkmcnt(0)')
        for (s, p) in ((sX, 4), (sQKV, 6), (sWO, 8), (sW1, 12), (sW2, 14), (sW3, 16), (sW4, 18), (sOUT, 20), (sDBG, 22), (sWS, 24)):
            a(f's_mov_b32 s{s}, s{p}\ns_and_b32 s{s+1}, s{p+1}, 0xffff')
        a(f's_cmp_ge_u32 s{sT1}, 4\ns_cbranch_scc1 L_helper')

    def run_steps(self, a, steps):
        n = len(steps)
        sched = {}
        for i, s in enumerate(steps):
            sched.setdefault(s['at'], []).append(i)
        def items(i):
            s = steps[i]
            out = []
            if s.get('pre'): out.append(('pre', i))
            out += [('rd', i, t) for t in s['reads']]
            return out
        def emit(it):
            if it[0] == 'pre':
                steps[it[1]]['pre']()
            elif it[0] == 'rd':
                steps[it[1]]['tok'] = a(it[2])
            else:
                it[1]()
        for i in sched.get(-1, []):
            for it in items(i): emit(it)
        for k in range(n):
            s = steps[k]
            if s.get('hook'): s['hook']()
            pend = []
            for i in sched.get(k, []):
                if i == k:
                    for it in items(i): emit(it)
                else:
                    pend += items(i)
            pend += [('post', f) for f in s.get('post', [])]
            vt = s['vm']() if s.get('vm') else None
            a.wait_both(s.get('tok'), vt)
            nm = len(s['mfmas'])
            per = -(-len([p for p in pend if p[0] != 'pre']) // nm) if pend else 0
            for mi, m in enumerate(s['mfmas']):
                a(m)
                c = 0
                while pend and (c < per or mi == nm - 1):
                    it = pend.pop(0)
                    emit(it)
                    if it[0] != 'pre': c += 1

    def barC(self, a, name):
        self.barsC.append(name); a('s_barrier')

    def gelu(self, a, pairs, tmp):
        P = lambda r: vr(r, 2)
        for i, (ac, cs, st, o) in enumerate(pairs):
            a(f'v_pk_fma_f32 {P(ac)}, {P(cs)}, {P(st)}, {P(ac)} op_sel:[0,0,0] op_sel_hi:[1,0,1]')
        for i, (ac, cs, st, o) in enumerate(pairs):
            a(f'v_pk_mul_f32 {P(tmp+2*i)}, {P(ac)}, {P(ac)}')
        for i, (ac, cs, st, o) in enumerate(pairs):
            a(f'v_pk_fma_f32 {P(tmp+2*i)}, {P(tmp+2*i)}, {P(st+2)}, {P(st)} op_sel:[0,0,1] op_sel_hi:[1,0,1]')
        for i, (ac, cs, st, o) in enumerate(pairs):
            a(f'v_pk_mul_f32 {P(tmp+2*i)}, {P(tmp+2*i)}, {P(ac)}')
        for i in range(2 * len(pairs)):
            a(f'v_exp_f32_e64 v{tmp+i}, v{tmp+i}')
        for i, (ac, cs, st, o) in enumerate(pairs):
            a(f'v_pk_fma_f32 {P(tmp+2*i)}, {P(tmp+2*i)}, {P(st+2)}, {P(st+2)} op_sel:[0,1,1] op_sel_hi:[1,1,1]')
        for i in range(2 * len(pairs)):
            a(f'v_rcp_f32_e64 v{tmp+i}, v{tmp+i}')
        for i, (ac, cs, st, o) in enumerate(pairs):
            a(f'v_pk_mul_f32 {P(tmp+2*i)}, {P(tmp+2*i)}, {P(ac)}')
        for i, (ac, cs, st, o) in enumerate(pairs):
            a(f'v_cvt_pk_bf16_f32 v{o}, v{tmp+2*i}, v{tmp+2*i+1}')

    def phi_tail(self, a, acs, outs, tmp):
        P = lambda r: vr(r, 2)
        n = len(acs)
        for i in range(2 * n): a(f'v_min_f32_e64 v{tmp+i}, v{tmp+i}, 0')
        for i in range(2 * n): a(f'v_exp_f32_e64 v{tmp+i}, v{tmp+i}')
        for ac in acs:
            a(f'v_max_f32_e64 v{ac}, v{ac}, s{sEPS}\nv_max_f32_e64 v{ac+1}, v{ac+1}, s{sEPS}')
        for i, ac in enumerate(acs): a(f'v_pk_add_f32 {P(ac)}, {P(ac)}, {P(tmp+2*i)}')
        for i, ac in enumerate(acs): a(f'v_cvt_pk_bf16_f32 v{outs[i]}, v{ac}, v{ac+1}')

    def compute(self, a):
        opt = self.opt
        P = lambda r: vr(r, 2)
        XB = [2, 3, 4, 5]; PAT16, WK16 = 6, 7
        PATN = [8, 9]; PATP = [10, 11, 12, 13]; PAT3 = [14, 15]
        WK = [16, 17, 18, 19]
        CELLV, CELLT, LL16, RDX = 20, 21, 22, 23
        RES = 24; QST = 40; PST = 196
        ONES = 56
        T = [240 + i for i in range(16)]
        q, i16, rr, c, h, t32, fsub = 228, 229, 230, 231, 232, 233, 234
        a(f'v_lshrrev_b32 v{q}, 4, v0\nv_and_b32 v{i16}, 15, v0\nv_lshrrev_b32 v{rr}, 2, v{i16}\nv_and_b32 v{c}, 3, v0')
        a(f'v_lshrrev_b32 v{h}, 5, v0\nv_and_b32 v{t32}, 31, v0\nv_and_b32 v{fsub}, 1, v{q}')
        a(f'v_lshlrev_b32 v{LL16}, 4, v0')
        a(f's_or_b32 s{sT0}, s{sR}, s{sW}\ns_cmp_lg_u32 s{sT0}, 0\ns_cbranch_scc1 L_nozero')
        a(f'v_mov_b32 v{T[0]}, 0\nv_mov_b32 v{T[1]}, 0\nv_mov_b32 v{T[2]}, 0\nv_mov_b32 v{T[3]}, 0')
        a(f's_lshl_b32 s{sT0}, s{sJ}, 13\ns_add_u32 s{sT0}, s{sT0}, {KV_OFF}\ns_add_u32 s{sT2}, s{sT0}, 4096')
        for u in range(8):
            a(f'buffer_store_dwordx4 {vr(T[0],4)}, v{LL16}, {srd(sWS)}, s{sT0 if u < 4 else sT2} offen offset:{(u&3)*1024} sc1')
        a(f'v_lshlrev_b32 v{T[4]}, 12, v{h}\nv_lshl_add_u32 v{T[4]}, v{t32}, 4, v{T[4]}')
        a(f's_lshl_b32 s{sT0}, s{sJ}, 9\ns_add_u32 s{sT0}, s{sT0}, {FL_OFF}\ns_add_u32 s{sT2}, s{sT0}, 8192')
        a(f'buffer_store_dwordx4 {vr(T[0],4)}, v{T[4]}, {srd(sWS)}, s{sT0} offen sc1')
        a(f'buffer_store_dwordx4 {vr(T[0],4)}, v{T[4]}, {srd(sWS)}, s{sT2} offen sc1')
        a(f'v_mov_b32 v{T[5]}, 1\ns_lshl_b32 s{sT0}, s{sJ}, 2\nv_mov_b32 v{T[6]}, s{sT0}')
        a.wait_vm0()
        a('s_mov_b64 exec, 1')
        a(f'buffer_store_dword v{T[5]}, v{T[6]}, {srd(sDBG)}, 0 offen sc1')
        a('s_mov_b64 exec, -1')
        a('L_nozero:')
        a.vm = []
        CSR = 220
        a(f's_lshl_b32 s{sT0}, s{sR}, 4\ns_mul_i32 s{sT0}, s{sT0}, 3584\ns_mul_i32 s{sT2}, s{sJ}, 448\ns_add_u32 s{sT0}, s{sT0}, s{sT2}')
        a(f's_mul_i32 s{sT2}, s{sW}, 112\ns_add_u32 s{sT0}, s{sT0}, s{sT2}')
        a(f'v_mul_u32_u24 v{T[0]}, {8*3584}, v{h}\nv_lshl_add_u32 v{T[0]}, v{t32}, 2, v{T[0]}')
        a(f'v_mov_b32 v{T[1]}, {OOB}\nv_cmp_gt_u32 vcc, 28, v{t32}\nv_cndmask_b32 v{T[0]}, v{T[1]}, v{T[0]}, vcc')
        for i in range(8):
            cstok = a(f'buffer_load_dword v{CSR+i}, v{T[0]}, {srd(sW3)}, s{sT0} offen')
            if i < 7: a(f's_add_u32 s{sT0}, s{sT0}, 3584')
        if opt.get('pf', 1):
            a(f's_lshl_b32 s{sT0}, s2, 2\ns_add_u32 s{sT0}, s{sT0}, s{sW}')
            a(f'v_lshlrev_b32 v{T[2]}, 6, v0')
            for k, (s, lanes) in enumerate(((sQKV, 24), (sW2, 8), (sW4, 28), (sWO, 8))):
                a(f'v_cmp_gt_u32 vcc, {lanes}, v0\ns_mul_i32 s{sT2}, s{sT0}, {lanes*64}\nv_cndmask_b32 v{T[3]}, v{T[1]}, v{T[2]}, vcc')
                a(f'buffer_load_dword v{236+k}, v{T[3]}, {srd(s)}, s{sT2} offen')
        for m in range(4):
            a(f'v_or_b32 v{T[0]}, {4*m}, v{q}\nv_xor_b32 v{T[0]}, v{T[0]}, v{i16}\nv_lshlrev_b32 v{T[0]}, 4, v{T[0]}')
            a(f'v_lshl_add_u32 v{XB[m]}, v{i16}, 10, v{T[0]}')
        a(f'v_lshrrev_b32 v{T[4]}, 1, v{rr}\nv_lshlrev_b32 v{T[4]}, 2, v{T[4]}\nv_lshrrev_b32 v{T[5]}, 1, v{c}')
        a(f'v_and_b32 v{T[6]}, 1, v{c}\nv_lshlrev_b32 v{T[6]}, 3, v{T[6]}')
        a(f's_lshl_b32 s{sT0}, s{sW}, 1\nv_add_u32 v{T[7]}, s{sT0}, v{T[5]}\nv_xor_b32 v{T[7]}, v{T[7]}, v{T[4]}')
        a(f'v_lshlrev_b32 v{T[8]}, 1, v{fsub}\nv_xor_b32 v{T[7]}, v{T[7]}, v{T[8]}\nv_lshl_add_u32 v{T[7]}, v{T[7]}, 4, v{T[6]}')
        a(f'v_lshl_add_u32 v{T[9]}, v{q}, 3, v{rr}\nv_lshl_add_u32 v{PAT16}, v{T[9]}, 7, v{T[7]}')
        a(f's_lshl_b32 s{sT0}, s{sHI}, 2\nv_add3_u32 v{T[7]}, s{sT0}, v{T[8]}, v{T[5]}\nv_xor_b32 v{T[7]}, v{T[7]}, v{T[4]}')
        a(f's_lshl_b32 s{sT2}, s{sHI}, 13')
        a(f'v_lshlrev_b32 v{T[9]}, 1, v{h}\nv_xor_b32 v{T[9]}, v{T[9]}, v{T[7]}\nv_lshl_add_u32 v{T[9]}, v{T[9]}, 4, v{T[6]}')
        a(f'v_lshl_add_u32 v{T[10]}, v{h}, 3, v{rr}\nv_lshl_add_u32 v{T[9]}, v{T[10]}, 7, v{T[9]}')
        a(f'v_add_u32 v{PATN[0]}, s{sT2}, v{T[9]}\nv_xor_b32 v{PATN[1]}, 64, v{PATN[0]}')
        a(f'v_lshl_add_u32 v{T[9]}, v{T[7]}, 4, v{T[6]}\nv_lshl_add_u32 v{T[10]}, v{h}, 2, v{rr}\nv_lshl_add_u32 v{PAT3[0]}, v{T[10]}, 7, v{T[9]}')
        a(f'v_xor_b32 v{PAT3[1]}, 32, v{PAT3[0]}\nv_add_u32 v{PAT3[1]}, 1024, v{PAT3[1]}')
        a(f'v_add_u32 v{PATP[0]}, s{sT2}, v{PAT3[0]}\nv_add_u32 v{PATP[1]}, s{sT2}, v{PAT3[1]}')
        a(f'v_xor_b32 v{PATP[2]}, 64, v{PATP[0]}\nv_xor_b32 v{PATP[3]}, 64, v{PATP[1]}')
        a(f'v_lshlrev_b32 v{CELLV}, 10, v{h}\nv_lshl_add_u32 v{CELLV}, v{t32}, 4, v{CELLV}')
        a(f's_lshl_b32 s{sT0}, s{sTH}, 9\nv_add_u32 v{CELLT}, s{sT0}, v{CELLV}')
        for i in range(4): a(f'v_mov_b32 v{ONES+i}, s{sONE}')
        HV = [212, 213, 214, 215]
        a(f's_lshl_b32 s{sT0}, s{sTH}, 5\nv_add_u32 v{T[0]}, s{sT0}, v{t32}')
        a(f's_lshl_b32 s{sT2}, s{sHI}, 13\nv_lshl_add_u32 v{T[2]}, v{h}, 10, s{sT2}')
        for g, d in enumerate((-1, 1, -2, 2)):
            a(f'v_add_u32 v{T[3]}, {d}, v{T[0]}\nv_ashrrev_i32 v{T[4]}, 6, v{T[3]}\nv_add_u32 v{T[4]}, s{sR}, v{T[4]}')
            a(f'v_and_b32 v{T[3]}, 63, v{T[3]}\nv_lshl_add_u32 v{T[3]}, v{T[3]}, 4, v{T[2]}\nv_lshl_add_u32 v{T[3]}, v{T[4]}, 16, v{T[3]}')
            a(f'v_cmp_gt_u32 vcc, 32, v{T[4]}\nv_cndmask_b32 v{HV[g]}, v{T[1]}, v{T[3]}, vcc')
        STA, STB, XE, PSA = 216, 217, 218, 219
        a(f'v_lshlrev_b32 v{STA}, 4, v{i16}\nv_add_u32 v{STA}, {SC}, v{STA}')
        a(f'v_lshlrev_b32 v{STB}, 4, v{q}\nv_add_u32 v{STB}, {NMU}, v{STB}')
        a(f'v_lshlrev_b32 v{PSA}, 4, v{T[0]}\nv_add_u32 v{PSA}, {S2}, v{PSA}')
        a(f's_lshl_b32 s{sT0}, s{sJ}, 3\ns_lshl_b32 s{sT2}, s{sHI}, 2\ns_add_u32 s{sT0}, s{sT0}, s{sT2}')
        a(f'v_xor_b32 v{XE}, s{sT0}, v{i16}\nv_lshlrev_b32 v{XE}, 4, v{XE}\nv_lshl_add_u32 v{XE}, v{h}, 3, v{XE}\nv_lshl_add_u32 v{XE}, v{T[0]}, 10, v{XE}')
        a(f's_xor_b32 s{sT0}, s{sW}, 2\ns_lshl_b32 s{sT0}, s{sT0}, 12\ns_add_u32 s{sT0}, s{sT0}, {SC}\nv_add_u32 v{RDX}, s{sT0}, v{LL16}')
        a(f's_lshl_b32 s{sA}, s{sR}, 16')
        a(f's_lshl_b32 s{sT0}, s{sJ}, 2\ns_add_u32 s{sT0}, s{sT0}, s{sW}\ns_lshl_b32 s{sT0}, s{sT0}, 11\ns_add_u32 s{sB}, s{sA}, s{sT0}')
        a(f's_lshl_b32 s{sC}, s{sJ}, 13\ns_add_u32 s{sC}, s{sC}, {KV_OFF}')
        a(f's_mul_i32 s{sD}, s{sR}, {GBLK}\ns_add_u32 s{sD}, s{sD}, {G_OFF}')

        bar = lambda n: (lambda: self.barC(a, n))

        def stage_pre(st, wks, pats, extra=None):
            def f():
                if extra: extra()
                self.barC(a, f'B{st}')
                for wk, pt in zip(wks, pats):
                    a(f'v_add_u32 v{wk}, {SLOT[st]}, v{pt}')
            return f

        def steps_q(first, acc, cs, sets, base_at):
            st = []
            for ks in range(16):
                sb = sets[ks % 3]; stg = first + ks // 4
                reads = [f'ds_read_b64_tr_b16 {vr(sb+16,2)}, v{WK16} offset:{(ks%4)*4096}',
                         f'ds_read_b64_tr_b16 {vr(sb+18,2)}, v{WK16} offset:{(ks%4)*4096+512}']
                reads += [f'ds_read_b128 {vr(sb+4*tt,4)}, v{XB[ks&3]} offset:{tt*16384+(ks>>2)*256}' for tt in range(4)]
                mf = [f'v_mfma_f32_16x16x32_bf16 {vr(cs,4)}, {vr(sb+16,4)}, {vr(ONES,4)}, {vr(cs,4) if ks else 0}']
                mf += [f'v_mfma_f32_16x16x32_bf16 {vr(acc+4*tt,4)}, {vr(sb+16,4)}, {vr(sb+4*tt,4)}, {vr(acc+4*tt,4) if ks else 0}' for tt in range(4)]
                st.append(dict(reads=reads, mfmas=mf, at=base_at + ks - 2, stage=stg if ks % 4 == 0 else None))
            return st

        HACC, HCS, HSETS = 60, 76, [80, 100, 120]
        KACC, VACC, KCS, VCS, KSETS = 140, 156, 172, 176, [180, 96]
        steps = steps_q(0, HACC, HCS, HSETS, 0)
        steps[0]['at'] = -1; steps[1]['at'] = -1
        for s in steps:
            if s['stage'] is not None: s['pre'] = stage_pre(s['stage'], [WK16], [PAT16])
        nh = len(steps)

        htok = {}
        def h_epilogue():
            ST = 80; TMP = 100; OUT = 116
            for tt in range(4):
                tk = a(f'ds_read_b128 {vr(ST+4*tt,4)}, v{STA} offset:{tt*256}')
            a.wait_lg(tk)
            for pr in range(2):
                pairs = []
                for u in range(2):
                    tt = 2 * pr + u
                    for d in range(2):
                        pairs.append((HACC + 4*tt + 2*d, HCS + 2*d, ST + 4*tt, OUT + 4*pr + 2*u + d))
                self.gelu(a, pairs, TMP)
                a(f'v_permlane16_swap_b32 v{OUT+4*pr}, v{OUT+4*pr+2}\nv_permlane16_swap_b32 v{OUT+4*pr+1}, v{OUT+4*pr+3}')
                htok['st'] = a(f'buffer_store_dwordx4 {vr(OUT+4*pr,4)}, v{CELLV}, {srd(sWS)}, s{sB} offen offset:{pr*512} sc1')
            CT = 124
            a.wait_vm(cstok)
            for i in range(8):
                for f in range(2):
                    a(f'v_dot2_f32_bf16 v{CT+f}, v{CSR+i}, s{sSEL0 if f == 0 else sSEL1}, {("v%d"%(CT+f)) if i else 0}')
            a(f'v_and_b32 v{CT+2}, 31, v0\nv_lshrrev_b32 v{CT+3}, 5, v0\nv_lshlrev_b32 v{CT+3}, 2, v{CT+3}\nv_lshl_add_u32 v{CT+3}, v{CT+2}, 3, v{CT+3}')
            a(f'v_mov_b32 v{CT+5}, {OOB}\nv_cmp_gt_u32 vcc, 28, v{CT+2}\nv_cndmask_b32 v{CT+4}, v{CT+5}, v{CT+3}, vcc')
            a(f'v_permlane32_swap_b32 v{CT}, v{CT+1}\nv_add_f32 v{CT}, v{CT}, v{CT+1}')
            a(f's_mul_i32 s{sT0}, s{sW}, 224\ns_add_u32 s{sT0}, s{sT0}, s{sC}\ns_add_u32 s{sT0}, s{sT0}, {KV_CS}')
            htok['cs'] = a(f'buffer_atomic_add_f32 v{CT}, v{CT+4}, {srd(sWS)}, s{sT0} offen')

        for ks in range(16):
            sb = KSETS[ks % 2]; stg = 4 + ks // 2
            o = (ks % 2) * 4096
            reads = [f'ds_read_b64_tr_b16 {vr(sb+16,2)}, v{WK16} offset:{o}', f'ds_read_b64_tr_b16 {vr(sb+18,2)}, v{WK16} offset:{o+512}',
                     f'ds_read_b128 {vr(sb,4)}, v{XB[ks&3]} offset:{(ks>>2)*256}',
                     f'ds_read_b64_tr_b16 {vr(sb+20,2)}, v{WK16} offset:{o+8192}', f'ds_read_b64_tr_b16 {vr(sb+22,2)}, v{WK16} offset:{o+8192+512}']
            reads += [f'ds_read_b128 {vr(sb+4*tt,4)}, v{XB[ks&3]} offset:{tt*16384+(ks>>2)*256}' for tt in range(1, 4)]
            mf = [f'v_mfma_f32_16x16x32_bf16 {vr(KCS,4)}, {vr(ONES,4)}, {vr(sb+16,4)}, {vr(KCS,4) if ks else 0}',
                  f'v_mfma_f32_16x16x32_bf16 {vr(VCS,4)}, {vr(ONES,4)}, {vr(sb+20,4)}, {vr(VCS,4) if ks else 0}']
            for tt in range(4):
                mf.append(f'v_mfma_f32_16x16x32_bf16 {vr(KACC+4*tt,4)}, {vr(sb+4*tt,4)}, {vr(sb+16,4)}, {vr(KACC+4*tt,4) if ks else 0}')
                mf.append(f'v_mfma_f32_16x16x32_bf16 {vr(VACC+4*tt,4)}, {vr(sb+4*tt,4)}, {vr(sb+20,4)}, {vr(VACC+4*tt,4) if ks else 0}')
            s = dict(reads=reads, mfmas=mf, at=nh + ks - 1)
            if ks % 2 == 0:
                extra = None
                if stg == opt.get('fh_bar', 7): extra = lambda: a.wait_vm(htok['st'])
                if stg == 10: extra = lambda: a.wait_vm(htok['cs'])
                s['pre'] = stage_pre(stg, [WK16], [PAT16], extra)
            steps.append(s)
        steps[nh]['hook'] = h_epilogue
        nkv = len(steps)

        ASETS = [228, 236, 244]
        def steps_ks(first, nstage, pats, natural, acc, bfrag, asets, base, setphase=0, init=True, c_init=None):
            st = []
            for n in range(4 * nstage):
                stg = first + n // 4; i = n % 4
                sb = asets[(n + setphase) % 3]
                reads = []
                for t in range(2):
                    for rd in range(2):
                        if natural:
                            reads.append(f'ds_read_b64_tr_b16 {vr(sb+4*t+2*rd,2)}, v{WK[t]} offset:{i*2048+rd*512}')
                        else:
                            reads.append(f'ds_read_b64_tr_b16 {vr(sb+4*t+2*rd,2)}, v{WK[2*t+rd]} offset:{i*2048}')
                b = bfrag(n)
                c0 = vr(acc if (n or c_init is None) else c_init, 16)
                c1 = vr(acc + 16, 16) if (n or not init) else 0
                mf = [f'v_mfma_f32_32x32x16_bf16 {vr(acc,16)}, {vr(sb,4)}, {vr(b,4)}, {c0}',
                      f'v_mfma_f32_32x32x16_bf16 {vr(acc+16,16)}, {vr(sb+4,4)}, {vr(b,4)}, {c1}']
                s = dict(reads=reads, mfmas=mf, at=base + n - 2)
                if i == 0: s['pre'] = stage_pre(stg, WK[:len(pats)], pats)
                st.append(s)
            return st

        HF = 60; P2ACC = 140
        p2 = steps_ks(12, 4, PATN, True, P2ACC, lambda n: HF + 4 * n, ASETS, nkv)
        hl = {}
        def p2_pre0():
            self.barC(a, 'B12')
            for wk, pt in zip(WK[:2], PATN): a(f'v_add_u32 v{wk}, {SLOT[12]}, v{pt}')
        p2[0]['pre'] = p2_pre0
        p2[0]['at'] = nkv; p2[1]['at'] = nkv
        r0, r1 = p2[0]['reads'], p2[1]['reads']
        p2[0]['reads'] = []; p2[1]['reads'] = []; p2[0]['pre'] = None
        def kv_epilogue():
            p2_pre0()
            for n in range(16):
                sg, i = n // 4, n % 4
                if i % 2 == 0: a(f's_mov_b32 s{sT0}, {H_OFF + sg*16384 + (i>>1)*4096}')
                hl[n] = a(f'buffer_load_dwordx4 {vr(HF+4*n,4)}, v{HV[sg]}, {srd(sWS)}, s{sT0} offen offset:{(i&1)*2048} sc1')
            SN, SR_, SL = 180, 196, 124
            for tt in range(4): a(f'ds_read_b128 {vr(SN+4*tt,4)}, v{STB} offset:{tt*64}')
            for tt in range(4): a(f'ds_read_b128 {vr(SR_+4*tt,4)}, v{STB} offset:{tt*64+256}')
            for tt in range(4): tk = a(f'ds_read_b128 {vr(SL+4*tt,4)}, v{STB} offset:{tt*64+512}')
            a.wait_lg(tk)
            for u in range(8):
                a(f'v_pk_fma_f32 {P(KACC+2*u)}, {P(SN+2*u)}, {P(KCS)}, {P(KACC+2*u)} op_sel_hi:[1,0,1]')
            for u in range(8):
                a(f'v_pk_fma_f32 {P(VACC+2*u)}, {P(SN+2*u)}, {P(VCS)}, {P(VACC+2*u)} op_sel_hi:[1,0,1]')
            for u in range(8):
                a(f'v_pk_mul_f32 {P(SL+2*u)}, {P(SL+2*u)}, {P(KACC+2*u)}')
            for u in range(8):
                a(f'v_pk_fma_f32 {P(KACC+2*u)}, {P(KACC+2*u)}, {P(SR_+2*u)}, s[{sEPS}:{sEPS+1}]')
            for u in range(8):
                a(f'v_pk_mul_f32 {P(VACC+2*u)}, {P(VACC+2*u)}, {P(SR_+2*u)}')
            PKR, PVR = 180, 188
            for u in range(8): a(f'v_cvt_pk_bf16_f32 v{PVR+u}, v{VACC+2*u}, v{VACC+2*u+1}')
            self.phi_tail(a, [KACC + 2*u for u in range(8)], [PKR + u for u in range(8)], SL)
            KVA, ZA = 172, 176
            a(f'v_mfma_f32_16x16x32_bf16 {vr(KVA,4)}, {vr(PKR,4)}, {vr(PVR,4)}, 0')
            a(f'v_mfma_f32_16x16x32_bf16 {vr(ZA,4)}, {vr(PKR,4)}, {vr(ONES,4)}, 0')
            a(f'v_mfma_f32_16x16x32_bf16 {vr(KVA,4)}, {vr(PKR+4,4)}, {vr(PVR+4,4)}, {vr(KVA,4)}')
            a(f'v_mfma_f32_16x16x32_bf16 {vr(ZA,4)}, {vr(PKR+4,4)}, {vr(ONES,4)}, {vr(ZA,4)}')
            for t in r0: p2[0]['tok'] = a(t)
            for t in r1: p2[1]['tok'] = a(t)
            for tt in range(4):
                a(f'ds_read_b128 {vr(QST+4*tt,4)}, v{STA} offset:{1024+tt*256}')
            a(f'ds_read_b64 {vr(PST,2)}, v{PSA}')
            XR = 124
            a(f'v_xor_b32 v{XR+8}, 16, v{XE}\nv_xor_b32 v{XR+9}, 32, v{XE}\nv_xor_b32 v{XR+10}, 48, v{XE}')
            a(f'ds_read_b64 {vr(XR,2)}, v{XE}')
            for g in range(1, 4): tk = a(f'ds_read_b64 {vr(XR+2*g,2)}, v{XR+7+g}')
            a(f'v_lshlrev_b32 v{XR+12}, 2, v0\ns_lshl_b32 s{sT0}, s{sW}, 10\ns_add_u32 s{sT0}, s{sT0}, s{sC}')
            for k in range(4):
                a(f'buffer_atomic_add_f32 v{KVA+k}, v{XR+12}, {srd(sWS)}, s{sT0} offen offset:{k*256}')
            a(f'v_and_b32 v{XR+13}, 15, v0')
            a(f'v_cmp_eq_u32 vcc, 1, v{XR+13}\nv_cndmask_b32 v{ZA}, v{ZA}, v{ZA+1}, vcc')
            a(f'v_cmp_eq_u32 vcc, 2, v{XR+13}\nv_cndmask_b32 v{ZA}, v{ZA}, v{ZA+2}, vcc')
            a(f'v_cmp_eq_u32 vcc, 3, v{XR+13}\nv_cndmask_b32 v{ZA}, v{ZA}, v{ZA+3}, vcc')
            a(f'v_lshrrev_b32 v{XR+14}, 4, v0\nv_lshl_add_u32 v{XR+14}, v{XR+14}, 2, v{XR+13}\nv_lshlrev_b32 v{XR+14}, 2, v{XR+14}')
            a(f'v_mov_b32 v{XR+15}, {OOB}\nv_cmp_gt_u32 vcc, 4, v{XR+13}\nv_cndmask_b32 v{XR+14}, v{XR+15}, v{XR+14}, vcc')
            a(f's_lshl_b32 s{sT0}, s{sW}, 6\ns_add_u32 s{sT0}, s{sT0}, s{sC}\ns_add_u32 s{sT0}, s{sT0}, {KV_Z}')
            a(f'buffer_atomic_add_f32 v{ZA}, v{XR+14}, {srd(sWS)}, s{sT0} offen')
            a.wait_lg(tk)
            for g in range(4):
                for d in range(2):
                    a(f'v_lshlrev_b32 v{RES+4*g+2*d}, 16, v{XR+2*g+d}\nv_and_b32 v{RES+4*g+2*d+1}, 0xffff0000, v{XR+2*g+d}')
            for u in range(8):
                a(f'v_pk_add_f32 {P(P2ACC+2*u)}, {P(RES+2*u)}, {P(PST)} op_sel_hi:[1,0]')
            for u in range(8):
                a(f'v_pk_mul_f32 {P(P2ACC+2*u)}, {P(P2ACC+2*u)}, {P(PST)} op_sel:[0,1] op_sel_hi:[1,1]')
        p2[0]['hook'] = kv_epilogue
        for n, s in enumerate(p2):
            s['vm'] = (lambda n=n: hl[n])
        steps += p2
        np2 = len(steps)

        qs = steps_q(16, HACC, HCS, HSETS, np2)
        x1tok = {}
        for s in qs:
            if s['stage'] is not None:
                extra = None
                if s['stage'] == opt.get('fx_bar', 18): extra = lambda: a.wait_vm(x1tok['st'])
                s['pre'] = stage_pre(s['stage'], [WK16], [PAT16], extra)
        qr0, qr1 = qs[0]['reads'], qs[1]['reads']
        qs[0]['reads'] = []; qs[1]['reads'] = []; qs[0]['pre'] = None
        qs[0]['at'] = np2; qs[1]['at'] = np2
        def exchange(acc, rcv, nb):
            a(f'v_xor_b32 v{rcv}, 8192, v{RDX}')
            for g in range(4):
                a(f'ds_write_b128 v{rcv}, {vr(acc+16+4*g,4)} offset:{g*1024}')
            a.wait_lg0()
            self.barC(a, nb)
            for g in range(4):
                tk = a(f'ds_read_b128 {vr(rcv+4*g,4)}, v{RDX} offset:{g*1024}')
            return tk
        def p2_epilogue():
            RCV = 180; OUT = 196
            tk = exchange(P2ACC, RCV, 'B16')
            a(f'v_add_u32 v{WK16}, {SLOT[16]}, v{PAT16}')
            for t in qr0: qs[0]['tok'] = a(t)
            a(f's_lshl_b32 s{sT0}, s{sJ}, 1\ns_add_u32 s{sT0}, s{sT0}, s{sHI}\ns_lshl_b32 s{sT0}, s{sT0}, 12\ns_add_u32 s{sT0}, s{sT0}, s{sA}\ns_add_u32 s{sT0}, s{sT0}, {X1_OFF}')
            a.wait_lg(tk)
            for u in range(8): a(f'v_pk_add_f32 {P(P2ACC+2*u)}, {P(P2ACC+2*u)}, {P(RCV+2*u)}')
            for u in range(8):
                a(f'v_cvt_pk_bf16_f32 v{OUT+u}, v{P2ACC+2*u}, v{P2ACC+2*u+1}')
                if u % 4 == 3:
                    x1tok['st'] = a(f'buffer_store_dwordx4 {vr(OUT+u-3,4)}, v{CELLT}, {srd(sWS)}, s{sT0} offen offset:{(u>>2)*2048} sc1')
            for t in qr1: qs[1]['tok'] = a(t)
            for u in range(8): a(f'v_pk_add_f32 {P(RES+2*u)}, {P(RES+2*u)}, {P(P2ACC+2*u)}')
        qs[0]['hook'] = p2_epilogue
        steps += qs
        nq = len(steps)

        BST = 128; A3 = [60, 68, 76]; ACA, ACB = 84, 100
        GST = 40; GT = 44; CSG = 116; GOUT = 124
        X1B, CSB, CSB2, HFB = 2, 3, 4, 5
        HP = [6, 7]
        def q_epilogue():
            TMP = 100; OUT = 116; QP = 80
            for u in range(8):
                a(f'v_pk_fma_f32 {P(HACC+2*u)}, {P(HCS+2*(u&1))}, {P(QST+4*(u>>1))}, {P(HACC+2*u)} op_sel_hi:[1,0,1]')
            for u in range(8):
                a(f'v_pk_mul_f32 {P(TMP+2*u)}, {P(HACC+2*u)}, {P(QST+4*(u>>1)+2)} op_sel_hi:[1,0]')
            for u in range(8):
                a(f'v_pk_fma_f32 {P(HACC+2*u)}, {P(HACC+2*u)}, {P(QST+4*(u>>1))}, s[{sEPS}:{sEPS+1}] op_sel:[0,1,0] op_sel_hi:[1,1,1]')
            self.phi_tail(a, [HACC + 2*u for u in range(8)], [OUT + u for u in range(8)], TMP)
            a(f's_lshl_b32 s{sT0}, s{sW}, 11\ns_add_u32 s{sT0}, s{sT0}, {PQ}\nv_lshlrev_b32 v{QP}, 3, v0\nv_add_u32 v{QP}, s{sT0}, v{QP}')
            for tt in range(4): a(f'ds_write_b64 v{QP}, {vr(OUT+2*tt,2)} offset:{tt*512}')
            a(f's_lshl_b32 s{sT0}, s{sTH}, 10\nv_add_u32 v{X1B}, s{sT0}, v{LL16}')
            a(f's_lshl_b32 s{sT2}, s{sHI}, 15\nv_add_u32 v{HFB}, s{sT2}, v{X1B}')
            a(f's_and_b32 s{sT3}, s{sJ}, 1\ns_lshl_b32 s{sT4}, s{sT3}, 5')
            a(f's_lshl_b32 s{sT0}, s{sHI}, 5\ns_add_u32 s{sT0}, s{sT0}, s{sT4}\ns_lshl_b32 s{sT0}, s{sT0}, 2\ns_add_u32 s{sT0}, s{sT0}, {CS3L}')
            a(f'v_lshrrev_b32 v{QP+1}, 5, v0\nv_lshlrev_b32 v{QP+1}, 4, v{QP+1}\nv_add_u32 v{CSB}, s{sT0}, v{QP+1}')
            a(f's_cmp_eq_u32 s{sT3}, 0\ns_cselect_b32 s{sT5}, 192, 0')
            a(f's_lshl_b32 s{sT0}, s{sHI}, 4\ns_add_u32 s{sT0}, s{sT0}, s{sT5}\ns_lshl_b32 s{sT0}, s{sT0}, 2\ns_add_u32 s{sT0}, s{sT0}, {CS3L}')
            a(f'v_add_u32 v{CSB2}, s{sT0}, v{QP+1}')
            a(f's_lshl_b32 s{sT0}, s{sHI}, 5\nv_xor_b32 v{HP[0]}, s{sT0}, v{PAT3[0]}\nv_xor_b32 v{HP[1]}, s{sT0}, v{PAT3[1]}')
            a(f's_mul_i32 s{sT0}, s{sJ}, 14\ns_lshr_b32 s{sT4}, s{sT4}, 4\ns_lshl_b32 s{sT2}, s{sHI}, 1\ns_add_u32 s{sB}, s{sT0}, s{sT4}\ns_add_u32 s{sB}, s{sB}, s{sT2}')
            a(f's_lshl_b32 s{sB}, s{sB}, 11\ns_add_u32 s{sB}, s{sB}, s{sD}')
            a(f's_lshr_b32 s{sT5}, s{sT5}, 4\ns_add_u32 s{sC}, s{sT0}, s{sT5}\ns_add_u32 s{sC}, s{sC}, s{sHI}\ns_lshl_b32 s{sC}, s{sC}, 11\ns_add_u32 s{sC}, s{sC}, s{sD}')
            a.wait_lg0()
            self.barC(a, 'XA')

        def steps_p3(first, nstage, acc, pats, base, kind, phase):
            st = []
            for n in range(4 * nstage):
                stg = first + n // 4
                sb = A3[(n + phase) % 3]
                reads = []; mf = []
                for u in range(2):
                    i = 2 * n + u; s_ = i % 8
                    reads += [f'ds_read_b64_tr_b16 {vr(sb+4*u+2*rd,2)}, v{WK[rd]} offset:{s_*2048}' for rd in range(2)]
                    if kind == 'p0':
                        reads.append(f'ds_read_b128 {vr(BST+4*i,4)}, v{X1B} offset:{i*2048}'); b = BST + 4 * i
                    elif kind == 'hf':
                        b = HB[(n % 3)] + 4 * u
                        reads.append(f'ds_read_b128 {vr(b,4)}, v{HFB} offset:{i*2048}')
                    else:
                        b = BST + 4 * i
                    mf.append(f'v_mfma_f32_32x32x16_bf16 {vr(acc,16)}, {vr(sb+4*u,4)}, {vr(b,4)}, {vr(acc,16) if i else 0}')
                s = dict(reads=reads, mfmas=mf, at=base + n - 2)
                if n % 4 == 0: s['pre'] = stage_pre(stg, WK[:2], pats)
                st.append(s)
            return st
        HB = [44, 116, 52]
        gtok = {}
        def g_epi(acc, csreg, csoff, ng, sbase, imm0):
            for b in range(ng // 2):
                for g in range(2):
                    tk = a(f'ds_read_b128 {vr(CSG+4*g,4)}, v{csreg} offset:{csoff+(2*b+g)*32}')
                a.wait_lg(tk)
                pairs = [(acc + 8*b + 2*u, CSG + 2*u, GST, GOUT + u) for u in range(4)]
                self.gelu(a, pairs, GT)
                gtok['st'] = a(f'buffer_store_dwordx4 {vr(GOUT,4)}, v{CELLT}, {srd(sWS)}, s{sbase} offen offset:{imm0+b*2048} sc1')
        def p0_epilogue():
            t = GT
            a(f's_lshl_b32 s{sT0}, s{sTH}, 8\ns_add_u32 s{sT0}, s{sT0}, {X1P}\nv_and_b32 v{t}, 31, v0\nv_lshlrev_b32 v{t}, 3, v{t}\nv_add_u32 v{t}, s{sT0}, v{t}')
            a(f'ds_read_b64 {vr(t+2,2)}, v{t}')
            tk = a(f'ds_read_b64 {vr(t+4,2)}, v{t} offset:512')
            a.wait_lg(tk)
            a(f'v_add_f32 v{t+2}, v{t+2}, v{t+4}\nv_add_f32 v{t+3}, v{t+3}, v{t+5}')
            a(f'v_mul_f32 v{GST}, {f2u(-1/512):#x}, v{t+2}\nv_mul_f32 v{t+3}, {f2u(1/512):#x}, v{t+3}')
            a(f'v_fma_f32 v{t+3}, -v{GST}, v{GST}, v{t+3}\nv_max_f32 v{t+3}, 0, v{t+3}\nv_add_f32 v{t+3}, {f2u(1e-5):#x}, v{t+3}')
            a(f'v_rsq_f32 v{t+4}, v{t+3}\nv_sqrt_f32 v{GST+3}, v{t+3}')
            a(f'v_mul_f32 v{GST+1}, {f2u(GC0):#x}, v{t+4}\nv_mul_f32 v{t+5}, v{t+4}, v{t+4}\nv_mul_f32 v{t+5}, v{t+5}, v{t+4}\nv_mul_f32 v{GST+2}, {f2u(GC1):#x}, v{t+5}')
            g_epi(ACA, CSB, 0, 4, sB, 0)
            a(f's_add_u32 s{sB}, s{sB}, 8192')
        def hf_send():
            t = GT
            a(f'v_lshlrev_b32 v{t}, 4, v0\ns_lshl_b32 s{sT0}, s{sW}, 11\ns_add_u32 s{sT0}, s{sT0}, {SC}\nv_add_u32 v{t}, s{sT0}, v{t}')
            a(f'ds_write_b128 v{t}, {vr(ACB+8,4)}')
            gtok['hfw'] = a(f'ds_write_b128 v{t}, {vr(ACB+12,4)} offset:1024')
            a(f'v_xor_b32 v{HFB}, 4096, v{t}')
        def p1_epilogue():
            a(f'ds_read_b128 {vr(ACB+8,4)}, v{HFB}')
            tk = a(f'ds_read_b128 {vr(ACB+12,4)}, v{HFB} offset:1024')
            g_epi(ACA, CSB, 256, 4, sB, 0)
            a(f's_add_u32 s{sB}, s{sB}, 8192')
            a.wait_lg(tk)
            for u in range(4): a(f'v_pk_add_f32 {P(ACB+2*u)}, {P(ACB+2*u)}, {P(ACB+8+2*u)}')
            g_epi(ACB, CSB2, 0, 2, sC, 0)

        p0 = steps_p3(20, 4, ACA, PAT3, nq, 'p0', 0)
        p0[0]['at'] = nq; p0[1]['at'] = nq; p0[0]['hook'] = q_epilogue
        steps += p0; n0 = len(steps)
        hf = steps_p3(24, 2, ACB, HP, n0, 'hf', 16)
        for k in range(2):
            bs = [t for t in hf[k]['reads'] if 'b128' in t]
            hf[k]['reads'] = [t for t in hf[k]['reads'] if 'b128' not in t]
            hf[k]['late'] = bs
        def hf_hook():
            p0_epilogue()
            for k in range(2):
                for t in hf[k]['late']: hf[k]['tok'] = a(t)
        hf[0]['hook'] = hf_hook
        steps += hf; n1 = len(steps)
        p1 = steps_p3(26, 4, ACA, PAT3, n1, 'p', 24)
        p1[0]['hook'] = hf_send
        old = p1[4]['pre']
        p1[4]['pre'] = lambda: (a.wait_lg(gtok['hfw']), old())
        steps += p1; n2 = len(steps)
        p2_ = steps_p3(30, 4, ACA, PAT3, n2, 'p', 40)
        p2_[0]['hook'] = p1_epilogue
        steps += p2_; n3 = len(steps)

        P4ACC = 84; FR = 128
        wo = steps_ks(34, 4, PATN, True, P4ACC, lambda n: FR + 4 * n, A3, n3, setphase=56, c_init=RES)
        ol = {}
        def p3_last_epilogue():
            a(f's_lshl_b32 s{sT0}, s{sHI}, 13\ns_add_u32 s{sT2}, s{sT0}, s{sA}\ns_add_u32 s{sT2}, s{sT2}, {O_OFF}\ns_add_u32 s{sD}, s{sD}, s{sT0}')
            for n in range(16):
                sg, i = n // 4, n % 4
                if i % 2 == 0: a(f's_add_u32 s{sT0}, s{sT2}, {sg*16384 + (i>>1)*4096}')
                ol[n] = a(f'buffer_load_dwordx4 {vr(FR+4*n,4)}, v{CELLT}, {srd(sWS)}, s{sT0} offen offset:{(i&1)*2048} sc1')
            g_epi(ACA, CSB, 512, 4, sB, 0)
        wo[0]['hook'] = p3_last_epilogue
        for n, s in enumerate(wo): s['vm'] = (lambda n=n: ol[n])
        gb = opt.get('fg_bar', 35) - 34
        oldw = wo[4 * gb]['pre']
        wo[4 * gb]['pre'] = lambda: (a.wait_vm(gtok['st']), oldw())
        steps += wo; n4 = len(steps)
        NG = 32
        w4 = steps_ks(38, 14, PATP, False, P4ACC, lambda n: FR + 4 * (n % NG), A3, n4, setphase=72, init=False)
        gl = {}
        def gload(n):
            sg, i = n // 4, n % 4
            if i % 2 == 0: a(f's_add_u32 s{sT0}, s{sD}, {sg*16384 + (i>>1)*4096}')
            gl[n] = a(f'buffer_load_dwordx4 {vr(FR+4*(n%NG),4)}, v{CELLT}, {srd(sWS)}, s{sT0} offen offset:{(i&1)*2048} sc1')
        w4[0]['at'] = n4; w4[1]['at'] = n4
        pre38 = w4[0]['pre']
        def w4_pre():
            pre38()
            for n in range(NG): gload(n)
        w4[0]['pre'] = w4_pre
        for n, s in enumerate(w4):
            s['vm'] = (lambda n=n: gl[n])
            if n >= 1 and n - 1 + NG < 56:
                s['post'] = [lambda m=n - 1 + NG: gload(m)]
        steps += w4

        self.run_steps(a, steps)
        RCV = 128; OUT = 144
        tk = exchange(P4ACC, RCV, 'RB2')
        VO = 160
        a(f's_lshl_b32 s{sT0}, s{sTH}, 5\nv_and_b32 v{VO}, 31, v0\nv_add_u32 v{VO}, s{sT0}, v{VO}\nv_lshlrev_b32 v{VO}, 10, v{VO}')
        a(f'v_lshrrev_b32 v{VO+1}, 5, v0\nv_lshl_add_u32 v{VO}, v{VO+1}, 4, v{VO}')
        a(f's_lshl_b32 s{sT0}, s{sJ}, 1\ns_add_u32 s{sT0}, s{sT0}, s{sHI}\ns_lshl_b32 s{sT0}, s{sT0}, 6\ns_add_u32 s{sT0}, s{sT0}, s{sA}')
        a.wait_lg(tk)
        for u in range(8): a(f'v_pk_add_f32 {P(P4ACC+2*u)}, {P(P4ACC+2*u)}, {P(RCV+2*u)}')
        for u in range(8): a(f'v_cvt_pk_bf16_f32 v{OUT+u}, v{P4ACC+2*u}, v{P4ACC+2*u+1}')
        for b in range(2):
            a(f'v_permlane32_swap_b32 v{OUT+4*b}, v{OUT+4*b+2}\nv_permlane32_swap_b32 v{OUT+4*b+1}, v{OUT+4*b+3}')
            a(f'buffer_store_dwordx4 {vr(OUT+4*b,4)}, v{VO}, {srd(sOUT)}, s{sT0} offen offset:{b*32}')
        if opt.get('prof'):
            a(f's_memrealtime s[{sTSP}:{sTSP+1}]\ns_memtime s[98:99]\ns_waitcnt lgkmcnt(0)\ns_sub_u32 s98, s98, s96')
            a(f's_lshl_b32 s{sT0}, s2, 3\ns_add_u32 s{sT0}, s{sT0}, s{sW}\ns_lshl_b32 s{sT0}, s{sT0}, 8\ns_add_u32 s{sT0}, s{sT0}, {TS_OFF}')
            a(f'v_mov_b32 v2, s26\nv_mov_b32 v3, s{sTSP}\nv_mov_b32 v4, s98\nv_mov_b32 v5, 0\nv_mov_b32 v6, 0\ns_mov_b64 exec, 1')
            a(f'buffer_store_dwordx4 v[2:5], v6, {srd(sWS)}, s{sT0} offen')
        a('s_endpgm')

    def helper(self, a):
        opt = self.opt
        prof = opt.get('prof')
        VX = 1
        V1K, VQ, VKV, VW3, VHF = 4, 8, 12, 16, 20
        VX1 = [24, 25]; VFL, VFP, VF3, VONE, VCT, VTS = 26, 27, 28, 29, 30, 31
        CELLV = 32; VFX = 33
        T = [40 + i for i in range(16)]
        nstamp = [0]
        def stamp(last=False):
            if prof:
                if nstamp[0]:
                    a(f's_waitcnt lgkmcnt(0)\nv_writelane_b32 v{VTS}, s{sTSP}, {nstamp[0]-1}')
                    a.lg = []
                if not last: a(f's_memrealtime s[{sTSP}:{sTSP+1}]')
                nstamp[0] += 1
        def bar(n):
            self.barsH.append(n); a('s_barrier')
        a(f's_lshl_b32 s{sT0}, s{sR}, 2\ns_add_u32 s{sT0}, s{sT0}, s{sW}\ns_lshl_b32 s{sT0}, s{sT0}, 14')
        a(f'v_lshl_add_u32 v{VX}, v0, 4, s{sT0}')
        a(f's_lshl_b32 s{sA}, s{sW}, 14\ns_lshl_b32 s{sB}, s{sW}, 12')
        for i in range(16):
            if i % 4 == 0:
                a(f's_add_u32 m0, s{sA}, {(i>>2)*4096}\ns_mov_b32 s{sT2}, {(i>>2)*4096}')
            a(f'v_xor_b32 v{2+(i&1)}, {i<<4}, v{VX}')
            xtok = a(f'buffer_load_dwordx4 v{2+(i&1)}, {srd(sX)}, s{sT2} offen offset:{(i&3)*1024} lds')
        row, pos, sw = T[0], T[1], T[2]
        a(f'v_lshrrev_b32 v{row}, 3, v0\nv_and_b32 v{pos}, 7, v0\nv_lshrrev_b32 v{sw}, 4, v0\nv_and_b32 v{sw}, 1, v{sw}\nv_lshlrev_b32 v{sw}, 2, v{sw}')
        a(f'v_xor_b32 v{pos}, v{pos}, v{sw}')
        a(f'v_lshlrev_b32 v{T[3]}, 4, v{pos}\nv_xor_b32 v{T[4]}, 32, v{T[3]}')
        def mk(dst, RS, sbase):
            a(f's_mov_b32 s{sT3}, {RS}\nv_mul_lo_u32 v{T[5]}, v{row}, s{sT3}\nv_add_u32 v{T[5]}, s{sbase}, v{T[5]}')
            for i in range(4):
                a(f'v_add_u32 v{dst+i}, v{T[5]}, v{T[3+(i&1)]}')
                if i: a(f'v_add_u32 v{dst+i}, {i*(8*RS-1024)}, v{dst+i}')
        a(f's_lshl_b32 s{sT0}, s{sJ}, 7\ns_lshl_b32 s{sT2}, s{sW}, 15\ns_add_u32 s{sT2}, s{sT2}, s{sT0}')
        mk(V1K, 1024, sT2)

        def issue(st):
            kind, sg = STAGES[st]
            s, v, so = {'w1': (sW1, V1K, sg * 131072), 'w2': (sW2, V1K, sg * 131072), 'wo': (sWO, V1K, sg * 131072),
                        'w4': (sW4, V1K, sg * 131072), 'wq': (sQKV, VQ, sg * 128 * 3072), 'kv': (sQKV, VKV, sg * 64 * 3072),
                        'p0': (sW3, VW3, sg * 128 * 3584), 'p1': (sW3, VW3, sg * 128 * 3584 + 128), 'p2': (sW3, VW3, sg * 128 * 3584 + 256),
                        'hf': (sW3, VHF, sg * 128 * 3584)}[kind]
            a(f's_add_u32 m0, s{sB}, {SLOT[st]}\ns_mov_b32 s{sT2}, {so}')
            for i in range(4):
                tk = a(f'buffer_load_dwordx4 v{v+i}, {srd(s)}, s{sT2} offen offset:{i*1024} lds')
            stok[st] = tk
        stok = {}
        for st in ISSUE[-1][:4]: issue(st)
        a(f's_lshl_b32 s{sT0}, s{sJ}, 7\ns_mul_i32 s{sT2}, s{sW}, {32*3072}\ns_add_u32 s{sT2}, s{sT2}, s{sT0}')
        mk(VQ, 3072, sT2)
        a(f's_mul_i32 s{sT2}, s{sTH}, {32*3072}\ns_add_u32 s{sT2}, s{sT2}, s{sT0}\ns_add_u32 s{sT4}, s{sHI}, 1\ns_lshl_b32 s{sT4}, s{sT4}, 10\ns_add_u32 s{sT2}, s{sT2}, s{sT4}')
        mk(VKV, 3072, sT2)
        for st in ISSUE[-1][4:]: issue(st)
        a(f's_mul_i32 s{sT0}, s{sJ}, 448\ns_mul_i32 s{sT2}, s{sW}, {32*3584}\ns_add_u32 s{sT0}, s{sT0}, s{sT2}')
        a(f's_and_b32 s{sT4}, s{sJ}, 1\ns_lshl_b32 s{sT2}, s{sT4}, 6\ns_add_u32 s{sT2}, s{sT2}, s{sT0}')
        mk(VW3, 3584, sT2)
        a(f's_cmp_eq_u32 s{sT4}, 0\ns_cselect_b32 s{sT2}, 384, 0\ns_add_u32 s{sT2}, s{sT2}, s{sT0}')
        a(f'v_lshrrev_b32 v{T[6]}, 2, v{pos}\nv_lshlrev_b32 v{T[6]}, 8, v{T[6]}\nv_add_u32 v{row}, v{row}, v{T[6]}')
        a(f'v_and_b32 v{T[3]}, 63, v{T[3]}\nv_and_b32 v{T[4]}, 63, v{T[4]}')
        mk(VHF, 3584, sT2)
        a(f'v_lshrrev_b32 v{T[0]}, 5, v0\nv_and_b32 v{T[1]}, 31, v0\nv_lshlrev_b32 v{CELLV}, 10, v{T[0]}\nv_lshl_add_u32 v{CELLV}, v{T[1]}, 4, v{CELLV}')
        a(f's_lshl_b32 s{sC}, s{sR}, 16\ns_add_u32 s{sT0}, s{sC}, s{sB}\ns_add_u32 s{sT0}, s{sT0}, {X1_OFF}')
        a(f'v_add_u32 v{VX1[0]}, s{sT0}, v{CELLV}\nv_subrev_u32 v{VX1[1]}, 512, v{VX1[0]}')
        a(f's_lshl_b32 s{sT0}, s{sR}, 7\ns_add_u32 s{sT0}, s{sT0}, {FL_OFF}\ns_lshl_b32 s{sT2}, s{sJ}, 2\ns_add_u32 s{sT2}, s{sT2}, s{sT0}')
        a(f's_lshl_b32 s{sD}, s{sJ}, 13\ns_add_u32 s{sD}, s{sD}, {KV_OFF}')
        a(f's_cmp_eq_u32 s{sW}, 0\ns_cselect_b32 s{sT2}, s{sT2}, {OOB}\ns_cselect_b32 s{sT3}, s{sD}, {OOB}')
        a(f'v_mov_b32 v{VFL}, s{sT2}\nv_mov_b32 v{VCT}, s{sT3}\nv_mov_b32 v{VONE}, 1')
        a(f'v_and_b32 v{T[2]}, 7, v0\nv_lshlrev_b32 v{T[2]}, 2, v{T[2]}\nv_add_u32 v{VFP}, s{sT0}, v{T[2]}')
        a(f's_cmp_eq_u32 s{sR}, 0\ns_cselect_b32 s{sT2}, 0, -128\ns_cmp_eq_u32 s{sR}, 31\ns_cselect_b32 s{sT3}, 0, 128')
        a(f'v_lshrrev_b32 v{T[3]}, 3, v0\nv_mov_b32 v{T[4]}, 0\nv_mov_b32 v{T[5]}, s{sT2}\nv_mov_b32 v{T[6]}, s{sT3}')
        a(f'v_cmp_eq_u32 vcc, 1, v{T[3]}\nv_cndmask_b32 v{T[4]}, v{T[4]}, v{T[5]}, vcc\nv_cmp_eq_u32 vcc, 2, v{T[3]}\nv_cndmask_b32 v{T[4]}, v{T[4]}, v{T[6]}, vcc')
        a(f'v_add_u32 v{VF3}, v{VFP}, v{T[4]}')
        if prof: a(f'v_mov_b32 v{VTS}, 0\nv_writelane_b32 v{VTS}, s26, 63')

        F = 64
        q, i16 = T[8], T[9]
        a(f'v_lshrrev_b32 v{q}, 4, v0\nv_and_b32 v{i16}, 15, v0')
        for m in range(4):
            a(f'v_or_b32 v{T[0]}, {4*m}, v{q}\nv_xor_b32 v{T[0]}, v{T[0]}, v{i16}\nv_lshlrev_b32 v{T[0]}, 4, v{T[0]}')
            a(f'v_lshl_add_u32 v{T[0]}, v{i16}, 10, v{T[0]}\nv_add_u32 v{T[10+m]}, s{sA}, v{T[0]}')
        a.wait_vm(xtok)
        stamp()
        toks = [a(f'ds_read_b128 {vr(F+4*ks,4)}, v{T[10+(ks&3)]} offset:{(ks>>2)*256}') for ks in range(16)]
        SA = 36
        def dots(base, n, first):
            for d in range(n):
                z = first and d < 2
                a(f'v_dot2_f32_bf16 v{SA+(d&1)}, v{base+d}, s{sONE}, {0 if z else "v%d"%(SA+(d&1))}')
                a(f'v_dot2_f32_bf16 v{SA+2+(d&1)}, v{base+d}, v{base+d}, {0 if z else "v%d"%(SA+2+(d&1))}')
        for ks in range(0, 16, 2):
            a.wait_lg(toks[ks + 1])
            dots(F + 4 * ks, 8, ks == 0)
        s1, s2 = SA, SA + 2
        a(f'v_add_f32 v{s1}, v{SA}, v{SA+1}\nv_add_f32 v{s2}, v{SA+2}, v{SA+3}')
        for sw_ in ('v_permlane32_swap_b32', 'v_permlane16_swap_b32'):
            a(f'v_mov_b32 v{s1+1}, v{s1}\nv_mov_b32 v{s2+1}, v{s2}\n{sw_} v{s1}, v{s1+1}\n{sw_} v{s2}, v{s2+1}')
            a(f'v_add_f32 v{s1}, v{s1}, v{s1+1}\nv_add_f32 v{s2}, v{s2}, v{s2+1}')
        R = 64
        a(f'v_mul_f32 v{R}, {f2u(-1/512):#x}, v{s1}\nv_mul_f32 v{s2}, {f2u(1/512):#x}, v{s2}')
        a(f'v_fma_f32 v{s2}, -v{R}, v{R}, v{s2}\nv_max_f32 v{s2}, 0, v{s2}\nv_add_f32 v{s1}, {f2u(1e-5):#x}, v{s2}')
        a(f'v_rsq_f32 v{R+5}, v{s1}\nv_mov_b32 v{R+4}, v{R}\nv_mov_b32 v{R+7}, 0')
        a(f'v_mul_f32 v{R+6}, {f2u(LOG2E):#x}, v{R+5}\nv_mul_f32 v{s1}, v{R+5}, v{R+5}\nv_mul_f32 v{s1}, v{s1}, v{s2}\nv_add_f32 v{s1}, {f2u(1e-5):#x}, v{s1}')
        a(f'v_rsq_f32 v{s1}, v{s1}\nv_mul_f32 v{s1}, v{s1}, v{R+5}')
        a(f'v_rcp_f32 v{R+3}, v{s1}\nv_mul_f32 v{R+1}, {f2u(GC0):#x}, v{s1}\nv_mul_f32 v{s2}, v{s1}, v{s1}\nv_mul_f32 v{s2}, v{s2}, v{s1}\nv_mul_f32 v{R+2}, {f2u(GC1):#x}, v{s2}')
        a(f's_lshl_b32 s{sT0}, s{sW}, 4\nv_add_u32 v{T[0]}, s{sT0}, v{i16}\nv_lshlrev_b32 v{T[1]}, 4, v{T[0]}\nv_lshlrev_b32 v{T[0]}, 2, v{T[0]}')
        a(f'v_add_u32 v{T[1]}, {S1}, v{T[1]}\nv_add_u32 v{T[0]}, {NMU}, v{T[0]}')
        a(f'ds_write_b128 v{T[1]}, {vr(R,4)}\nds_write_b128 v{T[1]}, {vr(R+4,4)} offset:1024')
        a(f'ds_write_b32 v{T[0]}, v{R}\nds_write_b32 v{T[0]}, v{R+5} offset:256\nds_write_b32 v{T[0]}, v{R+6} offset:512')

        npoll = [0]; misc = {}
        VZA, VCK = 34, 35
        a(f'v_and_b32 v{VZA}, 7, v0\nv_lshlrev_b32 v{VZA}, 2, v{VZA}\nv_mov_b32 v{T[14]}, {OOB}\ns_cmp_eq_u32 s{sW}, 0\ns_cselect_b64 vcc, -1, 0\nv_cndmask_b32 v{VZA}, v{T[14]}, v{VZA}, vcc')
        def only_h0(body):
            npoll[0] += 1
            L = f'L_nh0_{npoll[0]}'
            a(f's_cmp_lg_u32 s{sW}, 0\ns_cbranch_scc1 {L}')
            vm, lg = list(a.vm), list(a.lg)
            body()
            a.vm, a.lg = vm, lg
            a(f'{L}:')
        def vpoll(vaddr, ftype):
            def body():
                L = f'L_poll{npoll[0]}'
                a(f's_mov_b32 s{sCNT}, {opt.get("spin", 200000)}\ns_mov_b32 s{sT0}, {ftype*4096}')
                a(f'{L}:')
                a(f'buffer_load_dword v{T[15]}, v{vaddr}, {srd(sWS)}, s{sT0} offen sc1')
                a(f's_sub_u32 s{sCNT}, s{sCNT}, 1\ns_waitcnt vmcnt(0)\nv_cmp_ne_u32 vcc, 1, v{T[15]}')
                a(f's_cmp_eq_u32 s{sCNT}, 0\ns_cbranch_scc1 {L}d\ns_cbranch_vccnz {L}\n{L}d:')
            only_h0(body)
        def check_issue(key, vdst, vaddr, sr, off):
            a(f's_mov_b32 s{sT0}, {off}')
            misc[key] = a(f'buffer_load_dword v{vdst}, v{vaddr}, {srd(sr)}, s{sT0} offen sc1')
        def check_wait(key, vdst, vaddr, sr, off, val):
            a.wait_vm(misc[key])
            def body():
                L = f'L_poll{npoll[0]}'
                a(f's_mov_b32 s{sCNT}, {opt.get("spin", 200000)}\ns_mov_b32 s{sT0}, {off}')
                a(f'{L}:')
                a(f'v_cmp_ne_u32 vcc, {val}, v{vdst}\ns_sub_u32 s{sCNT}, s{sCNT}, 1\ns_cbranch_vccz {L}d\ns_cmp_eq_u32 s{sCNT}, 0\ns_cbranch_scc1 {L}d')
                a(f'buffer_load_dword v{vdst}, v{vaddr}, {srd(sr)}, s{sT0} offen sc1')
                a(f's_waitcnt vmcnt(0)\ns_branch {L}\n{L}d:')
            only_h0(body)
        def flag(ftype):
            a(f's_mov_b32 s{sT0}, {ftype*4096}\ns_mov_b64 exec, 1')
            a(f'buffer_store_dword v{VONE}, v{VFL}, {srd(sWS)}, s{sT0} offen sc1')
            a('s_mov_b64 exec, -1')
        def count(off):
            a(f's_mov_b32 s{sT0}, {off}\ns_mov_b64 exec, 1')
            a(f'buffer_atomic_add v{VONE}, v{VCT}, {srd(sWS)}, s{sT0} offen')
            a('s_mov_b64 exec, -1')

        x1tok = {}
        PQR = 64; KVR = 72; ZR = 76; XF = 96
        def x1_stats(sg):
            a('s_setprio 3')
            if sg == 0:
                a(f's_lshl_b32 s{sT0}, s{sTH}, 10\ns_lshl_b32 s{sT2}, s{sHI}, 13\ns_add_u32 s{sT0}, s{sT0}, s{sT2}\nv_lshl_add_u32 v{VFX}, v0, 4, s{sT0}')
            tk = [a(f'ds_read_b128 {vr(XF+4*u,4)}, v{VFX} offset:{sg*16384+u*2048}') for u in range(4)]
            a.wait_lg(tk[1]); dots(XF, 8, sg == 0)
            a.wait_lg(tk[3]); dots(XF + 8, 8, False)
            if sg == 3:
                a(f'v_add_f32 v{SA}, v{SA}, v{SA+1}\nv_add_f32 v{SA+2}, v{SA+2}, v{SA+3}')
                a(f'v_mov_b32 v{SA+1}, v{SA}\nv_mov_b32 v{SA+3}, v{SA+2}\nv_permlane32_swap_b32 v{SA}, v{SA+1}\nv_permlane32_swap_b32 v{SA+2}, v{SA+3}')
                a(f'v_add_f32 v{SA}, v{SA}, v{SA+1}\nv_add_f32 v{SA+1}, v{SA+2}, v{SA+3}')
                a(f's_lshl_b32 s{sT0}, s{sTH}, 8\ns_lshl_b32 s{sT2}, s{sHI}, 9\ns_add_u32 s{sT0}, s{sT0}, s{sT2}\ns_add_u32 s{sT0}, s{sT0}, {X1P}')
                a(f'v_and_b32 v{T[0]}, 31, v0\nv_lshl_add_u32 v{T[0]}, v{T[0]}, 3, s{sT0}')
                a(f'ds_write_b64 v{T[0]}, {vr(SA,2)}')
                a.wait_lg0()
            a('s_setprio 0')
        def kv_loads():
            a(f'v_lshlrev_b32 v{T[0]}, 2, v0\ns_lshl_b32 s{sT0}, s{sW}, 10\ns_add_u32 s{sT0}, s{sT0}, s{sD}')
            for k in range(4): a(f'buffer_load_dword v{KVR+k}, v{T[0]}, {srd(sWS)}, s{sT0} offen offset:{k*256} sc1')
            a(f'v_lshrrev_b32 v{T[1]}, 4, v0\nv_lshlrev_b32 v{T[1]}, 4, v{T[1]}\ns_lshl_b32 s{sT0}, s{sW}, 6\ns_add_u32 s{sT0}, s{sT0}, s{sD}\ns_add_u32 s{sT0}, s{sT0}, {KV_Z}')
            misc['kv'] = a(f'buffer_load_dwordx4 {vr(ZR,4)}, v{T[1]}, {srd(sWS)}, s{sT0} offen sc1')
        def pq_reads():
            a(f's_lshl_b32 s{sT0}, s{sW}, 11\ns_add_u32 s{sT0}, s{sT0}, {PQ}\nv_lshl_add_u32 v{T[0]}, v0, 3, s{sT0}')
            for tt in range(4): a(f'ds_read_b64 {vr(PQR+2*tt,2)}, v{T[0]} offset:{tt*512}')
            a.wait_lg0()
        def o_compute():
            a.wait_vm(misc['kv'])
            AK, AZ, NUM, DEN, OUT = 80, 82, 96, 112, 84
            a(f'v_cvt_pk_bf16_f32 v{AK}, v{KVR}, v{KVR+1}\nv_cvt_pk_bf16_f32 v{AK+1}, v{KVR+2}, v{KVR+3}')
            a(f'v_cvt_pk_bf16_f32 v{AZ}, v{ZR}, v{ZR+1}\nv_cvt_pk_bf16_f32 v{AZ+1}, v{ZR+2}, v{ZR+3}')
            a('s_setprio 3')
            for tt in range(4):
                a(f'v_mfma_f32_16x16x16_bf16 {vr(DEN+4*tt,4)}, {vr(AZ,2)}, {vr(PQR+2*tt,2)}, 0')
            for tt in range(4):
                a(f'v_mfma_f32_16x16x16_bf16 {vr(NUM+4*tt,4)}, {vr(AK,2)}, {vr(PQR+2*tt,2)}, 0')
            a('s_setprio 0')
            for tt in range(4): a(f'v_add_f32 v{DEN+4*tt}, s{sEPS}, v{DEN+4*tt}')
            for tt in range(4): a(f'v_rcp_f32 v{DEN+4*tt}, v{DEN+4*tt}')
            for tt in range(4):
                for e in range(4): a(f'v_mul_f32 v{NUM+4*tt+e}, v{NUM+4*tt+e}, v{DEN+4*tt}')
            for u in range(8): a(f'v_cvt_pk_bf16_f32 v{OUT+u}, v{NUM+2*u}, v{NUM+2*u+1}')
            a(f's_lshl_b32 s{sT0}, s{sJ}, 2\ns_add_u32 s{sT0}, s{sT0}, s{sW}\ns_lshl_b32 s{sT0}, s{sT0}, 11\ns_add_u32 s{sT0}, s{sT0}, s{sC}\ns_add_u32 s{sT0}, s{sT0}, {O_OFF}')
            for pr in range(2):
                a(f'v_permlane16_swap_b32 v{OUT+4*pr}, v{OUT+4*pr+2}\nv_permlane16_swap_b32 v{OUT+4*pr+1}, v{OUT+4*pr+3}')
                misc['o'] = a(f'buffer_store_dwordx4 {vr(OUT+4*pr,4)}, v{CELLV}, {srd(sWS)}, s{sT0} offen offset:{pr*512} sc1')
        def cs3_load():
            a(f's_lshl_b32 s{sT0}, s{sW}, 8\ns_add_u32 m0, s{sT0}, {CS3L}\ns_add_u32 s{sT0}, s{sT0}, s{sD}\ns_add_u32 s{sT0}, s{sT0}, {KV_CS}\nv_lshlrev_b32 v{T[0]}, 2, v0')
            misc['cs'] = a(f'buffer_load_dword v{T[0]}, {srd(sWS)}, s{sT0} offen sc1 lds')

        fhb, fxb, fgb = opt.get('fh_bar', 7), opt.get('fx_bar', 18), opt.get('fg_bar', 35)
        for b in range(NST):
            if b == 20:
                vpoll(VFP, FX1)
                bar('XA'); stamp()
                for sg in range(4):
                    a(f's_add_u32 m0, s{sB}, {sg*16384}\ns_mov_b32 s{sT2}, {sg*16384}')
                    for u in range(4):
                        x1tok[sg] = a(f'buffer_load_dwordx4 v{VX1[u&1]}, {srd(sWS)}, s{sT2} offen offset:{u*1024} sc1 lds')
            if b == 0: a.wait_lg0()
            if b == 3: check_wait('z', VCK, VZA, sDBG, 0, 1)
            if b == 12: vpoll(VF3, FH)
            if b == 17: check_wait('ccs', VCK, VCT, sWS, KV_CNT_CS, 32)
            if b == 23: check_wait('ckv', VCK, VCT, sWS, KV_CNT_KV, 32)
            if b == 34: vpoll(VFP, FO)
            if b == 38: vpoll(VFP, FG)
            a.wait_vm(stok[b])
            if 20 <= b < 24: a.wait_vm(x1tok[b - 20])
            if b == 24: a.wait_vm(misc['cs'])
            if b == 27: a.wait_vm(misc['o'])
            bar(f'B{b}')
            stamp()
            if b == fhb: flag(FH)
            if b == fxb: flag(FX1); count(KV_CNT_KV)
            if b == fgb: flag(FG)
            if b == 27: flag(FO)
            if b == 10: count(KV_CNT_CS)
            if b == 1: check_issue('z', VCK, VZA, sDBG, 0)
            if b == 15: check_issue('ccs', VCK, VCT, sWS, KV_CNT_CS)
            if b == 21: check_issue('ckv', VCK, VCT, sWS, KV_CNT_KV)
            if b == 17: cs3_load()
            if b == 23: kv_loads()
            for st in ISSUE.get(b, []): issue(st)
            if b == 20: pq_reads()
            if 20 <= b < 24: x1_stats(b - 20)
            if b == 25: o_compute()
        if prof:
            stamp(True)
            a(f's_lshl_b32 s{sT0}, s2, 3\ns_add_u32 s{sT0}, s{sT0}, s{sW}\ns_add_u32 s{sT0}, s{sT0}, 4\ns_lshl_b32 s{sT0}, s{sT0}, 8\ns_add_u32 s{sT0}, s{sT0}, {TS_OFF}')
            a(f'v_lshlrev_b32 v2, 2, v0\nbuffer_store_dword v{VTS}, v2, {srd(sWS)}, s{sT0} offen')
            if opt.get('dbgts'):
                a(f's_cmp_lg_u32 s2, {opt["dbgts"]}\ns_cbranch_scc1 L_nodbg\ns_cmp_lg_u32 s{sW}, 0\ns_cbranch_scc1 L_nodbg')
                a(f'v_readlane_b32 s{sT2}, v{VTS}, 63')
                for k, idx in enumerate((0, 1, 5, 13, 21, 36, 40, 53)):
                    a(f'v_readlane_b32 s{sT0}, v{VTS}, {idx}\ns_sub_u32 s{sT0}, s{sT0}, s{sT2}\nv_mov_b32 v3, s{sT0}\nv_mov_b32 v4, {32+4*k}\nbuffer_store_dword v3, v4, {srd(sDBG)}, 0 offen')
                a('L_nodbg:')
        a('s_endpgm')

    def build(self):
        a = Asm()
        self.prologue(a)
        self.compute(a)
        a.lg = []; a.vm = []
        a('L_helper:')
        self.helper(a)
        a('L_end:\ns_endpgm')
        assert self.barsC[:-1] == self.barsH and self.barsC[-1] == 'RB2', (self.barsC, self.barsH)
        ref = open(f'cdna_kernels/{KNAME[:-7]}.s.ref').read().split('\n')
        head = [l for l in ref if l.startswith(';') and '@launch' not in l]
        out = '\n'.join(head) + '\n; @launch grid=(256,1,1) block=(512,1,1) lds=163840\n'
        out += f'.amdgcn_target "amdgcn-amd-amdhsa--gfx950"\n.text\n.globl {KNAME}\n.p2align 8\n.type {KNAME},@function\n{KNAME}:\n'
        out += a.text()
        out += f'''.section .rodata,"a"
.p2align 6
.amdhsa_kernel {KNAME}
  .amdhsa_next_free_vgpr 256
  .amdhsa_next_free_sgpr 102
  .amdhsa_accum_offset 256
  .amdhsa_group_segment_fixed_size 0
  .amdhsa_kernarg_size 88
  .amdhsa_user_sgpr_count 2
  .amdhsa_user_sgpr_kernarg_segment_ptr 1
  .amdhsa_system_sgpr_workgroup_id_x 1
.end_amdhsa_kernel
'''
        return out, a


def generate(**opt):
    g = Gen(opt)
    return g.build()[0]

if __name__ == '__main__':
    opt = {}
    for arg in sys.argv[2:]:
        k, v = arg.split('=')
        opt[k] = int(v) if v.lstrip('-').isdigit() else v
    g = Gen(opt)
    txt, a = g.build()
    open(sys.argv[1], 'w').write(txt)
    print('instructions', len(a.ins), 'pads', a.npad, 'slots', [hex(SLOT[s]) for s in range(NST)])
```

```python
import re

REG_RE = re.compile(r'\b([vs])(?:(\d+)|\[(\d+):(\d+)\])')
TRANS = ('v_exp_f32', 'v_log_f32', 'v_rcp_f32', 'v_rsq_f32', 'v_sqrt_f32', 'v_sin_f32', 'v_cos_f32')


def regs_of(tok):
    out = set()
    for m in REG_RE.finditer(tok):
        f = m.group(1)
        if m.group(2) is not None:
            out.add((f, int(m.group(2))))
        else:
            for i in range(int(m.group(3)), int(m.group(4)) + 1):
                out.add((f, i))
    if re.search(r'\bvcc\b', tok):
        out.add(('s', 106)); out.add(('s', 107))
    if re.search(r'\bm0\b', tok):
        out.add(('s', 124))
    return out


def split_ops(s):
    ops, depth, cur = [], 0, ''
    for ch in s:
        if ch == '[': depth += 1
        if ch == ']': depth -= 1
        if ch == ',' and depth == 0:
            ops.append(cur.strip()); cur = ''
        else:
            cur += ch
    if cur.strip():
        ops.append(cur.strip())
    return ops


class Ins:
    __slots__ = ('text', 'mn', 'cls', 'rd', 'wr', 'states', 'passes', 'A', 'B', 'C', 'storedata', 'islabel')

    def __init__(self, text):
        self.text = text
        self.islabel = text.endswith(':') or text.startswith('.')
        self.rd = set(); self.wr = set(); self.states = 1; self.passes = 0
        self.A = self.B = self.C = set(); self.storedata = set()
        if self.islabel:
            self.mn = ''; self.cls = 'label'; self.states = 0
            return
        parts = text.split(None, 1)
        mn = parts[0]
        base = re.sub(r'_(e32|e64|dpp|sdwa)$', '', mn)
        self.mn = base
        rest = parts[1] if len(parts) > 1 else ''
        ops = split_ops(rest)
        R = [regs_of(o) for o in ops]
        if base.startswith('v_mfma'):
            self.cls = 'mfma'
            self.wr = R[0]; self.A = R[1]; self.B = R[2]; self.C = R[3]
            self.rd = R[1] | R[2] | R[3]
            self.passes = 8 if '32x32' in base else 4
        elif base.startswith('v_cmp'):
            self.cls = 'valu'
            self.wr = R[0]; self.rd = set().union(*R[1:])
        elif base.startswith('v_permlane'):
            self.cls = 'valu'
            self.wr = R[0] | R[1]; self.rd = R[0] | R[1]
        elif base in ('v_readfirstlane_b32', 'v_readlane_b32'):
            self.cls = 'valu'
            self.wr = R[0]; self.rd = set().union(*R[1:])
        elif base.startswith('v_'):
            self.cls = 'valu'
            self.wr = set(R[0]); self.rd = set().union(*R[1:]) if len(R) > 1 else set()
            if base in ('v_fmac_f32', 'v_writelane_b32', 'v_dot2c_f32_bf16'):
                self.rd |= R[0]
            if base == 'v_cndmask_b32' and len(ops) == 3:
                self.rd |= {('s', 106), ('s', 107)}
            if '_co_' in base:
                self.wr |= R[1]
        elif base.startswith('ds_read'):
            self.cls = 'ds'; self.wr = R[0]; self.rd = R[1]
        elif base.startswith('ds_write') or base.startswith('ds_add'):
            self.cls = 'ds'; self.rd = set().union(*R)
        elif base.startswith('buffer_'):
            self.cls = 'vmem'
            lds = bool(re.search(r'\blds\b', rest))
            if 'load' in base and not lds:
                self.wr = R[0]; self.rd = set().union(*R[1:])
            elif lds:
                self.rd = set().union(*R) | {('s', 124)}
            else:
                self.rd = set().union(*R)
                if 'x4' in base or 'x3' in base:
                    self.storedata = R[0]
        elif base == 's_nop':
            self.cls = 'salu'; self.states = int(ops[0], 0) + 1
        elif base.startswith('s_'):
            self.cls = 'salu'
            if base.startswith(('s_cmp', 's_cbranch', 's_branch', 's_waitcnt', 's_barrier', 's_endpgm', 's_setprio', 's_sleep', 's_bitcmp')):
                self.rd = set().union(*R) if R else set()
            else:
                self.wr = R[0] if R else set(); self.rd = set().union(*R[1:]) if len(R) > 1 else set()
        else:
            raise ValueError('unknown instr ' + text)


def need(p, c):
    n = 0
    vw = {r for r in p.wr if r[0] == 'v'}
    sw = {r for r in p.wr if r[0] == 's'}
    if p.cls == 'valu':
        isdot = p.mn.startswith('v_dot')
        if c.cls == 'mfma' and vw & c.rd:
            n = max(n, 3 if isdot else 2)
        if c.cls == 'valu':
            if p.mn in TRANS and c.mn not in TRANS and vw & c.rd: n = max(n, 1)
            if c.mn.startswith('v_permlane') and vw & c.rd: n = max(n, 2)
            if c.mn in ('v_readfirstlane_b32', 'v_readlane_b32') and vw & c.rd: n = max(n, 1)
            if 'dpp' in c.text or 'row_' in c.text or 'quad_perm' in c.text:
                if vw & c.rd: n = max(n, 2)
            if sw & c.rd: n = max(n, 4 if c.mn in ('v_readlane_b32', 'v_writelane_b32') else 2)
        if isdot and vw & (c.rd | c.wr):
            if c.mn == p.mn:
                ops = split_ops(c.text.split(None, 1)[1])
                ab = regs_of(ops[1]) | regs_of(ops[2])
                if vw & ab: n = max(n, 3)
            else:
                n = max(n, 3)
        if c.cls == 'vmem' and sw & c.rd: n = max(n, 5)
        if c.cls == 'salu' and sw & c.rd: n = max(n, 1)
    if p.cls == 'mfma':
        big = 12 if p.passes == 8 else 8
        if c.cls in ('valu', 'ds', 'vmem') and p.wr & (c.rd | c.wr): n = max(n, big)
        if c.cls == 'mfma':
            if p.wr & (c.A | c.B): n = max(n, big)
            if p.wr & c.C and not (p.wr == c.C and p.passes == c.passes): n = max(n, big - 2)
            if p.wr & c.wr and not (p.wr == c.C and p.passes == c.passes): n = max(n, big - 2)
        if c.cls == 'valu' and p.C & c.wr: n = max(n, 7 if p.passes == 8 else 3)
    if p.cls == 'salu' and ('s', 124) in p.wr and c.cls == 'vmem' and ('s', 124) in c.rd:
        n = max(n, 1)
    if p.cls == 'vmem' and p.storedata and c.cls in ('valu', 'mfma') and p.storedata & c.wr:
        n = max(n, 2)
    if p.cls == 'vmem' and p.storedata and c.cls in ('ds', 'vmem') and p.storedata & c.wr:
        n = max(n, 1)
    return n


class Asm:
    def __init__(self):
        self.ins = []
        self.lg = []
        self.vm = []
        self.ntok = 0
        self.npad = 0
        self.inj = []; self.inj_every = 0; self.inj_cnt = 0; self.in_inj = False

    def raw(self, text):
        i = Ins(text)
        if not i.islabel:
            dist = 0; req = 0
            for p in reversed(self.ins):
                if p.islabel:
                    continue
                if dist >= 20: break
                r = need(p, i) - dist
                req = max(req, r)
                dist += p.states
            while req > 0:
                k = min(req, 16)
                self.ins.append(Ins(f's_nop {k-1}')); self.npad += 1
                req -= k
        self.ins.append(i)
        return i

    def __call__(self, text):
        tok = self.ntok
        for line in text.split('\n'):
            line = line.split(';')[0].strip()
            if line:
                i = self.raw(line)
                if i.cls == 'ds':
                    self.ntok += 1; self.lg.append(self.ntok)
                elif i.cls == 'vmem':
                    self.ntok += 1; self.vm.append(self.ntok)
                tok = self.ntok
                if self.inj and not self.in_inj and i.cls in ('valu', 'mfma'):
                    self.inj_cnt += 8 if i.cls == 'mfma' and i.passes == 8 else (4 if i.cls == 'mfma' else (2 if i.mn in TRANS else 1))
                    if self.inj_cnt >= self.inj_every:
                        self.inj_cnt = 0
                        self.in_inj = True
                        self.inj.pop(0)()
                        self.in_inj = False
        return tok

    def record(self, fn):
        saved = (self.ins, list(self.lg), list(self.vm), self.npad)
        self.ins = []
        fn()
        lines = [i.text for i in self.ins if i.mn != 's_nop']
        self.ins, self.lg, self.vm, self.npad = saved
        return lines

    def inject(self, fns, every):
        self.inj += list(fns); self.inj_every = every; self.inj_cnt = 0

    def flush_inject(self):
        self.in_inj = True
        while self.inj: self.inj.pop(0)()
        self.in_inj = False

    def wait_lg(self, tok):
        if tok not in self.lg: return
        n = len(self.lg) - 1 - self.lg.index(tok)
        n = min(n, 15)
        self.raw(f's_waitcnt lgkmcnt({n})')
        self.lg = self.lg[len(self.lg) - n:] if n else []

    def wait_vm(self, tok):
        if tok not in self.vm: return
        n = len(self.vm) - 1 - self.vm.index(tok)
        n = min(n, 63)
        self.raw(f's_waitcnt vmcnt({n})')
        self.vm = self.vm[len(self.vm) - n:] if n else []

    def wait_both(self, lt, vt):
        a = lt in self.lg; b = vt in self.vm
        if a and b:
            n = min(len(self.lg) - 1 - self.lg.index(lt), 15)
            m = min(len(self.vm) - 1 - self.vm.index(vt), 63)
            self.raw(f's_waitcnt vmcnt({m}) lgkmcnt({n})')
            self.lg = self.lg[len(self.lg) - n:] if n else []
            self.vm = self.vm[len(self.vm) - m:] if m else []
        elif a:
            self.wait_lg(lt)
        elif b:
            self.wait_vm(vt)

    def wait_lg0(self, force=False):
        if self.lg or force:
            self.raw('s_waitcnt lgkmcnt(0)'); self.lg = []

    def wait_vm0(self, force=False):
        if self.vm or force:
            self.raw('s_waitcnt vmcnt(0)'); self.vm = []

    def text(self):
        return '\n'.join(('' if i.islabel else '    ') + i.text for i in self.ins) + '\n'


def sizes_of(text_lines, prefix=''):
    import subprocess, os, tempfile
    d = tempfile.mkdtemp()
    src = '.amdgcn_target "amdgcn-amd-amdhsa--gfx950"\n.text\n' + prefix + '\n'.join(text_lines) + '\n'
    open(d + '/a.s', 'w').write(src)
    r = subprocess.run(['clang', '-x', 'assembler', '-target', 'amdgcn-amd-amdhsa', '-mcpu=gfx950', '-c', d + '/a.s', '-o', d + '/a.o'], capture_output=True, text=True)
    assert r.returncode == 0, r.stderr
    out = subprocess.run(['llvm-objdump', '-d', '--mcpu=gfx950', d + '/a.o'], capture_output=True, text=True).stdout
    sz = [4 * len(l.split('//')[1].split(':')[1].split()) for l in out.split('\n') if '//' in l]
    return sz

E64_OK = ('v_mov_b32', 'v_add_u32', 'v_and_b32', 'v_or_b32', 'v_xor_b32', 'v_lshlrev_b32', 'v_lshrrev_b32', 'v_add_f32', 'v_mul_f32',
          'v_max_f32', 'v_min_f32', 'v_exp_f32', 'v_rcp_f32', 'v_rsq_f32', 'v_sqrt_f32', 'v_permlane16_swap_b32', 'v_permlane32_swap_b32',
          'v_cndmask_b32', 'v_sub_u32', 'v_subrev_u32', 'v_ashrrev_i32')

def align_pass(a, prefix, minrun=3):
    ins = a.ins
    real = [i for i in ins if not i.islabel]
    sz = sizes_of([i.text for i in ins], prefix)
    assert len(sz) == len(real), (len(sz), len(real))
    size = {id(i): s for i, s in zip(real, sz)}
    out = []; off = 0; fixed = 0; nops = 0
    for k, i in enumerate(ins):
        if i.islabel:
            out.append(i); continue
        s = size[id(i)]
        if s == 8 and off % 8 == 4:
            run = 0
            for j in ins[k:]:
                if j.islabel: continue
                if size[id(j)] != 8: break
                run += 1
            if run >= minrun:
                done = False
                for p in range(len(out) - 1, max(len(out) - 2, -1), -1):
                    q = out[p]
                    if q.islabel: break
                    if size.get(id(q), 4) == 4 and q.cls == 'valu' and q.text.split()[0] in E64_OK:
                        t = q.text.split(None, 1)
                        n = Ins(t[0] + '_e64 ' + t[1]); size[id(n)] = 8
                        out[p] = n; off += 4; done = True; fixed += 1
                        break
                if not done:
                    n = Ins('s_nop 0'); size[id(n)] = 4
                    out.append(n); off += 4; nops += 1
        out.append(i); off += s
    a.ins = out
    return fixed, nops
```

```python
import sys, math, struct
sys.path.insert(0, 'dev')
from asmlib import Asm, align_pass

KNAME = 'parallel_sum__linear_attn_block__mixer_s_mlp__prompt_kernel'

H_OFF, X1_OFF, O_OFF, G_OFF = 0x000000, 0x200000, 0x400000, 0x600000
KV_OFF, FL_OFF, XS_OFF, TS_OFF = 0xE00000, 0xD10000, 0xD20000, 0x1000000
CF_OFF = 0xD00000
WS_BYTES = 0x1200000
KVP, KV_Z, KV_FIN, KV_CS = 4608, 4096, 0x24000, 0x28000
CF_CS, CF_A = 0, 1024
NREP = 4
FH, FX1, FO, FG = 0, 1, 2, 3
GBLK = 229376
RING = 0x10000
SC = 0x24000
S1, S2, NMU, RHO, RHL = SC, SC + 1024, SC + 2048, SC + 2304, SC + 2560
PQ, X1P, CS3L = SC, SC + 9216, SC + 10240
OOB = 0x80000000

def f2u(x): return struct.unpack('<I', struct.pack('<f', x))[0]
LOG2E = 1.4426950408889634
GC0 = -2.0 * math.sqrt(2.0 / math.pi) * LOG2E
GC1 = GC0 * 0.044715

sX, sQKV, sWO, sW1, sW2, sW3, sW4, sOUT, sWS, sDBG = 28, 32, 36, 40, 44, 48, 52, 56, 60, 64
sR, sJ, sW, sTH, sHI = 68, 69, 70, 71, 72
sT0, sT1, sT2, sT3, sT4, sT5 = 73, 74, 75, 76, 77, 78
sEPS = 80
sONE, sSEL0, sSEL1 = 82, 83, 84
sA, sB, sC, sD = 85, 86, 87, 88
sI0 = 79
sCODE = 92
sCNT = 90
sROT = 89
sBG = 91
sK1, sK3 = 92, 96
sTSP = 100

def srd(n): return f's[{n}:{n+3}]'
def vr(n, k=1): return f'v{n}' if k == 1 else f'v[{n}:{n+k-1}]'

STAGES = ([('w1', s) for s in range(4)] + [('kv', s) for s in range(8)] + [('w2', s) for s in range(4)] +
          [('wq', s) for s in range(4)] + [('p0', s) for s in range(4)] + [('hf', s) for s in range(2)] +
          [('p1', s) for s in range(4)] + [('p2', s) for s in range(4)] + [('wo', s) for s in range(4)] +
          [('w4', s) for s in range(14)])
NST = len(STAGES)
AREL = 27

def plan_slots(opt):
    free = [RING + i * 0x4000 for i in range(5)]
    slot = {}; issue = {}
    quota = {13: opt.get('q13', 0), 16: opt.get('q16', 1), 17: 2, 24: 2, 27: 1, 30: opt.get('q30', 3), 34: opt.get('q34', 1), 35: 2, 36: 1, 37: 2}
    jit = opt.get('jit', 3)
    nxt = 0
    def drain(key, q, b):
        nonlocal nxt
        while free and nxt < NST and (q > 0 or nxt <= b + 2) and not (b >= 38 and nxt > b + jit):
            slot[nxt] = free.pop(0); issue.setdefault(key, []).append(nxt); nxt += 1; q -= 1
    drain(-1, 5, -1)
    for b in range(NST):
        if b == 20:
            free.extend([slot[18], slot[19]]); drain('QE', 2, 19)
        if b >= 2 and b not in (20, 21): free.append(slot[b - 2])
        if b == AREL: free.extend([0, 0x4000, 0x8000, 0xC000])
        drain(b, quota.get(b, 1), b)
    assert nxt == NST
    return slot, issue


class Gen:
    def __init__(self, opt):
        self.opt = opt
        self.barsC = []; self.barsS = []; self.barsL = []
        global SLOT, ISSUE
        SLOT, ISSUE = plan_slots(opt)

    def prologue(self, a):
        a('s_cmp_ge_u32 s2, 256\ns_cbranch_scc1 L_end')
        a('s_load_dwordx16 s[4:19], s[0:1], 0\ns_load_dwordx4 s[20:23], s[0:1], 64\ns_load_dwordx2 s[24:25], s[0:1], 80')
        if self.opt.get('prof'):
            a(f's_memrealtime s[26:27]\ns_memtime s[90:91]')
        m = self.opt.get('map', 'same')
        if m == 'same':
            a(f's_and_b32 s{sR}, s2, 7\ns_lshr_b32 s{sT0}, s2, 6\ns_lshl_b32 s{sT0}, s{sT0}, 3\ns_or_b32 s{sR}, s{sR}, s{sT0}')
            a(f's_lshr_b32 s{sJ}, s2, 3\ns_and_b32 s{sJ}, s{sJ}, 7')
        elif m == 'h4':
            a(f's_and_b32 s{sR}, s2, 3\ns_lshr_b32 s{sT0}, s2, 5\ns_lshl_b32 s{sT0}, s{sT0}, 2\ns_or_b32 s{sR}, s{sR}, s{sT0}')
            a(f's_lshr_b32 s{sJ}, s2, 2\ns_and_b32 s{sJ}, s{sJ}, 7')
        elif m == 'cross':
            a(f's_lshr_b32 s{sR}, s2, 3\ns_and_b32 s{sJ}, s2, 7')
        a('v_lshrrev_b32 v1, 6, v0\nv_and_b32 v0, 63, v0')
        a(f'v_readfirstlane_b32 s{sT1}, v1')
        a(f's_mov_b32 s{sX+2}, {2<<20}\ns_mov_b32 s{sX+3}, 0x20000')
        a(f's_and_b32 s{sW}, s{sT1}, 3\ns_and_b32 s{sTH}, s{sT1}, 1\ns_lshr_b32 s{sHI}, s{sW}, 1')
        a(f's_add_u32 s{sROT}, s{sR}, s{sJ}\ns_and_b32 s{sROT}, s{sROT}, 3')
        a(f's_cmp_lt_u32 s{sT1}, 4\ns_cbranch_scc1 L_compute')

    def srds(self, a, skipx=False, skip1=False):
        a(f's_mov_b32 s{sEPS}, {f2u(1e-6):#x}\ns_mov_b32 s{sEPS+1}, {f2u(1e-6):#x}\ns_mov_b32 s{sONE}, 0x3f803f80')
        for (s, p, n) in ((sX, 4, 2 << 20), (sW1, 12, 512 * 1024), (sQKV, 6, 512 * 3072), (sWO, 8, 512 * 1024), (sW2, 14, 512 * 1024),
                          (sW3, 16, 512 * 3584), (sW4, 18, 1792 * 1024), (sOUT, 20, 2 << 20), (sWS, 24, WS_BYTES), (sDBG, 22, 256)):
            if s == sX and skipx: continue
            if s == sW1 and skip1: continue
            a(f's_mov_b32 s{s}, s{p}\ns_and_b32 s{s+1}, s{p+1}, 0xffff\ns_mov_b32 s{s+2}, {n}\ns_mov_b32 s{s+3}, 0x20000')

    def run_steps(self, a, steps):
        n = len(steps)
        sched = {}
        for i, s in enumerate(steps):
            sched.setdefault(s['at'], []).append(i)
        def items(i):
            s = steps[i]
            out = []
            if s.get('pre'): out.append(('pre', i))
            out += [('rd', i, t) for t in s['reads']]
            return out
        def emit(it):
            if it[0] == 'pre':
                steps[it[1]]['pre']()
            elif it[0] == 'rd':
                steps[it[1]]['tok'] = a(it[2])
            else:
                it[1]()
        for i in sched.get(-1, []):
            for it in items(i): emit(it)
        for k in range(n):
            s = steps[k]
            if s.get('hook'): s['hook']()
            pend = []
            for i in sched.get(k, []):
                if i == k:
                    for it in items(i): emit(it)
                else:
                    pend += items(i)
            pend += [('post', f) for f in s.get('post', [])]
            vt = s['vm']() if s.get('vm') else None
            a.wait_both(s.get('tok'), vt)
            nm = len(s['mfmas'])
            per = -(-len([p for p in pend if p[0] != 'pre']) // nm) if pend else 0
            for mi, m in enumerate(s['mfmas']):
                a(m)
                c = 0
                while pend and (c < per or mi == nm - 1):
                    it = pend.pop(0)
                    emit(it)
                    if it[0] != 'pre': c += 1

    def barC(self, a, name):
        self.barsC.append(name); a('s_barrier')

    def gelu(self, a, pairs, tmp, after_first=None):
        P = lambda r: vr(r, 2)
        for i, (ac, cs, st, o) in enumerate(pairs):
            a(f'v_pk_fma_f32 {P(ac)}, {P(cs)}, {P(st)}, {P(ac)} op_sel:[0,0,0] op_sel_hi:[1,0,1]')
        if after_first: after_first()
        for i, (ac, cs, st, o) in enumerate(pairs):
            a(f'v_pk_mul_f32 {P(tmp+2*i)}, {P(ac)}, {P(ac)}')
        for i, (ac, cs, st, o) in enumerate(pairs):
            a(f'v_pk_fma_f32 {P(tmp+2*i)}, {P(tmp+2*i)}, {P(st+2)}, {P(st)} op_sel:[0,0,1] op_sel_hi:[1,0,1]')
        for i, (ac, cs, st, o) in enumerate(pairs):
            a(f'v_pk_mul_f32 {P(tmp+2*i)}, {P(tmp+2*i)}, {P(ac)}')
        for i in range(2 * len(pairs)):
            a(f'v_exp_f32_e64 v{tmp+i}, v{tmp+i}')
        for i, (ac, cs, st, o) in enumerate(pairs):
            a(f'v_pk_fma_f32 {P(tmp+2*i)}, {P(tmp+2*i)}, {P(st+2)}, {P(st+2)} op_sel:[0,1,1] op_sel_hi:[1,1,1]')
        for i in range(2 * len(pairs)):
            a(f'v_rcp_f32_e64 v{tmp+i}, v{tmp+i}')
        for i, (ac, cs, st, o) in enumerate(pairs):
            a(f'v_pk_mul_f32 {P(tmp+2*i)}, {P(tmp+2*i)}, {P(ac)}')
        for i, (ac, cs, st, o) in enumerate(pairs):
            a(f'v_cvt_pk_bf16_f32 v{o}, v{tmp+2*i}, v{tmp+2*i+1}')

    def phi_tail(self, a, acs, outs, tmp):
        P = lambda r: vr(r, 2)
        n = len(acs)
        for i in range(2 * n): a(f'v_min_f32_e64 v{tmp+i}, v{tmp+i}, 0')
        for i in range(2 * n): a(f'v_exp_f32_e64 v{tmp+i}, v{tmp+i}')
        for ac in acs:
            a(f'v_max_f32_e64 v{ac}, v{ac}, s{sEPS}\nv_max_f32_e64 v{ac+1}, v{ac+1}, s{sEPS}')
        for i, ac in enumerate(acs): a(f'v_pk_add_f32 {P(ac)}, {P(ac)}, {P(tmp+2*i)}')
        for i, ac in enumerate(acs): a(f'v_cvt_pk_bf16_f32 v{outs[i]}, v{ac}, v{ac+1}')

    def compute(self, a):
        opt = self.opt
        P = lambda r: vr(r, 2)
        XB = [2, 3, 4, 5]; PAT16, WK16 = 6, 7
        PATN = [8, 9]; PATP = [10, 11, 12, 13]; PAT3 = [14, 15]
        WK = [16, 17, 18, 19]
        CELLV, CELLT, LL16, RDX = 20, 21, 22, 23
        RES = 24; QST = 40; PST = 196
        ONES = 56
        STA, STB, XE, PSA = 1, 54, 19, 18
        HV = [252, 253, 254, 255]
        T = [240 + i for i in range(12)]
        q, i16, rr, c, h, t32, fsub = 228, 229, 230, 231, 232, 233, 234
        a(f'v_lshrrev_b32 v{q}, 4, v0\nv_and_b32 v{i16}, 15, v0\nv_lshrrev_b32 v{rr}, 2, v{i16}\nv_and_b32 v{c}, 3, v0')
        a(f'v_lshrrev_b32 v{h}, 5, v0\nv_and_b32 v{t32}, 31, v0\nv_and_b32 v{fsub}, 1, v{q}')
        a(f'v_lshlrev_b32 v{LL16}, 4, v0')
        a(f'v_lshlrev_b32 v{T[2]}, 3, v0')
        a(f's_lshr_b32 s{sT3}, s2, 3\ns_lshl_b32 s{sT3}, s{sT3}, 2\ns_add_u32 s{sT3}, s{sT3}, s{sW}\ns_lshl_b32 s{sT3}, s{sT3}, 9')
        a(f's_getpc_b64 s[{sCODE}:{sCODE+1}]\nL_pc:\ns_sub_u32 s{sCODE}, s{sCODE}, L_pc-{KNAME}\ns_subb_u32 s{sCODE+1}, s{sCODE+1}, 0')
        a(f's_and_b32 s{sCODE+1}, s{sCODE+1}, 0xffff\ns_mov_b32 s{sCODE+2}, L_end-{KNAME}\ns_mov_b32 s{sCODE+3}, 0x20000')
        if opt.get('cpf', 1): a(f'buffer_load_dword v24, v{T[2]}, {srd(sCODE)}, s{sT3} offen')
        a('s_waitcnt lgkmcnt(0)')
        self.srds(a)
        a(f's_lshr_b32 s{sT0}, s{sR}, 2\ns_or_b32 s{sT0}, s{sT0}, s{sW}\ns_cmp_lg_u32 s{sT0}, 0\ns_cbranch_scc1 L_nozero')
        vm0 = list(a.vm)
        a(f'v_mov_b32 v{T[4]}, 0\nv_mov_b32 v{T[5]}, 0\nv_mov_b32 v{T[6]}, 0\nv_mov_b32 v{T[7]}, 0')
        a(f's_lshl_b32 s{sT3}, s{sJ}, 2\ns_add_u32 s{sT3}, s{sT3}, s{sR}')
        a(f's_lshl_b32 s{sT0}, s{sT3}, 10\ns_add_u32 s{sT0}, s{sT0}, {CF_OFF}')
        a(f'buffer_store_dwordx4 {vr(T[4],4)}, v{LL16}, {srd(sWS)}, s{sT0} offen sc1')
        a(f's_lshl_b32 s{sT0}, s{sJ}, 18\ns_lshl_b32 s{sT2}, s{sR}, 13\ns_add_u32 s{sT0}, s{sT0}, s{sT2}\ns_add_u32 s{sT0}, s{sT0}, {KV_OFF}\ns_add_u32 s{sT2}, s{sT0}, 4096')
        for u in range(5):
            a(f'buffer_store_dwordx4 {vr(T[4],4)}, v{LL16}, {srd(sWS)}, s{sT0 if u < 4 else sT2} offen offset:{(u&3)*1024} sc1')
        a(f'v_lshlrev_b32 v{T[8]}, 12, v{q}\nv_lshl_add_u32 v{T[8]}, v{i16}, 3, v{T[8]}')
        a(f's_lshl_b32 s{sT0}, s{sT3}, 7\ns_add_u32 s{sT0}, s{sT0}, {FL_OFF}')
        a(f'buffer_store_dwordx2 {vr(T[4],2)}, v{T[8]}, {srd(sWS)}, s{sT0} offen sc1')
        a(f'v_mov_b32 v{T[9]}, 1\ns_lshl_b32 s{sT0}, s{sT3}, 2\nv_mov_b32 v{T[10]}, s{sT0}')
        a.wait_vm0()
        a('s_mov_b64 exec, 1')
        a(f'buffer_store_dword v{T[9]}, v{T[10]}, {srd(sDBG)}, 0 offen sc1')
        a('s_mov_b64 exec, -1')
        a('L_nozero:')
        a.vm = vm0
        a(f'v_mov_b32 v{T[1]}, {OOB}')
        for m in range(4):
            a(f'v_or_b32 v{T[0]}, {4*m}, v{q}\nv_xor_b32 v{T[0]}, v{T[0]}, v{i16}\nv_lshlrev_b32 v{T[0]}, 4, v{T[0]}')
            a(f'v_lshl_add_u32 v{XB[m]}, v{i16}, 8, v{T[0]}')
        a(f'v_lshrrev_b32 v{T[4]}, 1, v{rr}\nv_lshlrev_b32 v{T[4]}, 2, v{T[4]}\nv_lshrrev_b32 v{T[5]}, 1, v{c}')
        a(f'v_and_b32 v{T[6]}, 1, v{c}\nv_lshlrev_b32 v{T[6]}, 3, v{T[6]}')
        a(f's_lshl_b32 s{sT0}, s{sW}, 1\nv_add_u32 v{T[7]}, s{sT0}, v{T[5]}\nv_xor_b32 v{T[7]}, v{T[7]}, v{T[4]}')
        a(f'v_lshlrev_b32 v{T[8]}, 1, v{fsub}\nv_xor_b32 v{T[7]}, v{T[7]}, v{T[8]}\nv_lshl_add_u32 v{T[7]}, v{T[7]}, 4, v{T[6]}')
        a(f'v_lshl_add_u32 v{T[9]}, v{q}, 3, v{rr}\nv_lshl_add_u32 v{PAT16}, v{T[9]}, 7, v{T[7]}')
        a(f's_lshl_b32 s{sT0}, s{sHI}, 2\nv_add3_u32 v{T[7]}, s{sT0}, v{T[8]}, v{T[5]}\nv_xor_b32 v{T[7]}, v{T[7]}, v{T[4]}')
        a(f's_lshl_b32 s{sT2}, s{sHI}, 13')
        a(f'v_lshlrev_b32 v{T[9]}, 1, v{h}\nv_xor_b32 v{T[9]}, v{T[9]}, v{T[7]}\nv_lshl_add_u32 v{T[9]}, v{T[9]}, 4, v{T[6]}')
        a(f'v_lshl_add_u32 v{T[10]}, v{h}, 3, v{rr}\nv_lshl_add_u32 v{T[9]}, v{T[10]}, 7, v{T[9]}')
        a(f'v_add_u32 v{PATN[0]}, s{sT2}, v{T[9]}\nv_xor_b32 v{PATN[1]}, 64, v{PATN[0]}')
        a(f'v_lshl_add_u32 v{T[9]}, v{T[7]}, 4, v{T[6]}\nv_lshl_add_u32 v{T[10]}, v{h}, 2, v{rr}\nv_lshl_add_u32 v{PAT3[0]}, v{T[10]}, 7, v{T[9]}')
        a(f'v_xor_b32 v{PAT3[1]}, 32, v{PAT3[0]}\nv_add_u32 v{PAT3[1]}, 1024, v{PAT3[1]}')
        a(f'v_add_u32 v{PATP[0]}, s{sT2}, v{PAT3[0]}\nv_add_u32 v{PATP[1]}, s{sT2}, v{PAT3[1]}')
        a(f'v_xor_b32 v{PATP[2]}, 64, v{PATP[0]}\nv_xor_b32 v{PATP[3]}, 64, v{PATP[1]}')
        a(f'v_lshlrev_b32 v{CELLV}, 10, v{h}\nv_lshl_add_u32 v{CELLV}, v{t32}, 4, v{CELLV}')
        a(f's_lshl_b32 s{sT0}, s{sTH}, 9\nv_add_u32 v{CELLT}, s{sT0}, v{CELLV}')
        for i in range(4): a(f'v_mov_b32 v{ONES+i}, s{sONE}')
        a(f's_lshl_b32 s{sT0}, s{sTH}, 5\nv_add_u32 v{T[0]}, s{sT0}, v{t32}')
        a(f's_lshl_b32 s{sT2}, s{sHI}, 13\nv_lshl_add_u32 v{T[2]}, v{h}, 10, s{sT2}')
        for g, d in enumerate((-1, 1, -2, 2)):
            a(f'v_add_u32 v{T[3]}, {d}, v{T[0]}\nv_ashrrev_i32 v{T[4]}, 6, v{T[3]}\nv_add_u32 v{T[4]}, s{sR}, v{T[4]}')
            a(f'v_and_b32 v{T[3]}, 63, v{T[3]}\nv_lshl_add_u32 v{T[3]}, v{T[3]}, 4, v{T[2]}\nv_lshl_add_u32 v{T[3]}, v{T[4]}, 16, v{T[3]}')
            a(f'v_cmp_gt_u32 vcc, 32, v{T[4]}\nv_cndmask_b32 v{HV[g]}, v{T[1]}, v{T[3]}, vcc')
        a(f'v_lshlrev_b32 v{STA}, 4, v{i16}\nv_add_u32 v{STA}, {SC}, v{STA}')
        a(f'v_lshlrev_b32 v{STB}, 4, v{q}\nv_add_u32 v{STB}, {NMU}, v{STB}')
        a(f'v_lshlrev_b32 v{PSA}, 4, v{T[0]}\nv_add_u32 v{PSA}, {S2}, v{PSA}')
        a(f's_and_b32 s{sT0}, s{sJ}, 1\ns_lshl_b32 s{sT0}, s{sT0}, 3\ns_lshl_b32 s{sT2}, s{sHI}, 2\ns_add_u32 s{sT0}, s{sT0}, s{sT2}')
        a(f's_lshr_b32 s{sT2}, s{sJ}, 1\ns_sub_u32 s{sT2}, s{sT2}, s{sROT}\ns_and_b32 s{sT2}, s{sT2}, 3\ns_lshl_b32 s{sT2}, s{sT2}, 14')
        a(f'v_xor_b32 v{XE}, s{sT0}, v{i16}\nv_lshlrev_b32 v{XE}, 4, v{XE}\nv_lshl_add_u32 v{XE}, v{h}, 3, v{XE}\nv_lshl_add_u32 v{XE}, v{T[0]}, 8, v{XE}\nv_add_u32 v{XE}, s{sT2}, v{XE}')
        a(f's_xor_b32 s{sT0}, s{sW}, 2\ns_lshl_b32 s{sT0}, s{sT0}, 12\ns_add_u32 s{sT0}, s{sT0}, {SC}\nv_add_u32 v{RDX}, s{sT0}, v{LL16}')
        a(f's_lshl_b32 s{sA}, s{sR}, 16')
        a(f's_lshl_b32 s{sT0}, s{sJ}, 2\ns_add_u32 s{sT0}, s{sT0}, s{sW}\ns_lshl_b32 s{sT0}, s{sT0}, 11\ns_add_u32 s{sB}, s{sA}, s{sT0}')
        a(f's_lshl_b32 s{sC}, s{sJ}, 18\ns_and_b32 s{sT0}, s{sR}, 3\ns_lshl_b32 s{sT0}, s{sT0}, 13\ns_add_u32 s{sC}, s{sC}, s{sT0}\ns_add_u32 s{sC}, s{sC}, {KV_OFF}')
        a(f's_mul_i32 s{sD}, s{sR}, {GBLK}\ns_add_u32 s{sD}, s{sD}, {G_OFF}')

        def cst(k):
            if opt.get('prof') and opt.get('cset', 0) == k // 8: a(f's_memrealtime s[{4+2*(k%8)}:{5+2*(k%8)}]')
        def stage_pre(st, wks, pats, extra=None, after=None):
            def f():
                if extra: extra()
                self.barC(a, f'B{st}')
                for wk, pt in zip(wks, pats):
                    a(f'v_add_u32 v{wk}, {SLOT[st]}, v{pt}')
                if after: after()
            return f

        def steps_q(first, acc, cs, sets, base_at):
            st = []
            for ks in range(16):
                sb = sets[ks % 3]; stg = first + ks // 4
                reads = [f'ds_read_b64_tr_b16 {vr(sb+16,2)}, v{WK16} offset:{(ks%4)*4096}',
                         f'ds_read_b64_tr_b16 {vr(sb+18,2)}, v{WK16} offset:{(ks%4)*4096+512}']
                reads += [f'ds_read_b128 {vr(sb+4*tt,4)}, v{XB[ks&3]} offset:{tt*4096+(ks>>2)*16384}' for tt in range(4)]
                mf = [f'v_mfma_f32_16x16x32_bf16 {vr(cs,4)}, {vr(sb+16,4)}, {vr(ONES,4)}, {vr(cs,4) if ks else 0}']
                mf += [f'v_mfma_f32_16x16x32_bf16 {vr(acc+4*tt,4)}, {vr(sb+16,4)}, {vr(sb+4*tt,4)}, {vr(acc+4*tt,4) if ks else 0}' for tt in range(4)]
                st.append(dict(reads=reads, mfmas=mf, at=base_at + ks - 2, stage=stg if ks % 4 == 0 else None))
            return st

        HACC, HCS, HSETS = 60, 76, [80, 100, 120]
        KACC, VACC, KCS, VCS, KSETS = 140, 156, 172, 176, [180, 204]
        HF = 60; P2ACC = 140
        steps = steps_q(0, HACC, HCS, HSETS, 0)
        steps[0]['at'] = -1; steps[1]['at'] = -1
        for s in steps:
            if s['stage'] is not None: s['pre'] = stage_pre(s['stage'], [WK16], [PAT16])
        nh = len(steps)

        htok = {}
        HST = 80
        def h_stats_reads():
            for tt in range(4):
                htok['s'] = a(f'ds_read_b128 {vr(228+4*tt,4)}, v{STA} offset:{tt*256}')
        def h_epilogue():
            ST = 228; TMP = 100; OUT = 116
            a.wait_lg(htok['s'])
            pairs = [(HACC + 2*u, HCS + 2*(u & 1), ST + 4*(u >> 1), OUT + u) for u in range(8)]
            self.gelu(a, pairs, TMP)
            for pr in range(2):
                a(f'v_permlane16_swap_b32 v{OUT+4*pr}, v{OUT+4*pr+2}\nv_permlane16_swap_b32 v{OUT+4*pr+1}, v{OUT+4*pr+3}')
                htok['st'] = a(f'buffer_store_dwordx4 {vr(OUT+4*pr,4)}, v{CELLV}, {srd(sWS)}, s{sB} offen offset:{pr*512} sc1')
            cst(0)

        hl = {}
        def hload(n):
            sg, i = n // 4, n % 4
            if i % 2 == 0: a(f's_mov_b32 s{sI0}, {H_OFF + sg*16384 + (i>>1)*4096}')
            hl[n] = a(f'buffer_load_dwordx4 {vr(HF+4*n,4)}, v{HV[sg]}, {srd(sWS)}, s{sI0} offen offset:{(i&1)*2048} sc1')
        for ks in range(16):
            sb = KSETS[ks % 2]; stg = 4 + ks // 2
            o = (ks % 2) * 4096
            reads = [f'ds_read_b64_tr_b16 {vr(sb+16,2)}, v{WK16} offset:{o}', f'ds_read_b64_tr_b16 {vr(sb+18,2)}, v{WK16} offset:{o+512}',
                     f'ds_read_b128 {vr(sb,4)}, v{XB[ks&3]} offset:{(ks>>2)*16384}',
                     f'ds_read_b64_tr_b16 {vr(sb+20,2)}, v{WK16} offset:{o+8192}', f'ds_read_b64_tr_b16 {vr(sb+22,2)}, v{WK16} offset:{o+8192+512}']
            reads += [f'ds_read_b128 {vr(sb+4*tt,4)}, v{XB[ks&3]} offset:{tt*4096+(ks>>2)*16384}' for tt in range(1, 4)]
            mf = [f'v_mfma_f32_16x16x32_bf16 {vr(KCS,4)}, {vr(ONES,4)}, {vr(sb+16,4)}, {vr(KCS,4) if ks else 0}',
                  f'v_mfma_f32_16x16x32_bf16 {vr(VCS,4)}, {vr(ONES,4)}, {vr(sb+20,4)}, {vr(VCS,4) if ks else 0}']
            for tt in range(4):
                mf.append(f'v_mfma_f32_16x16x32_bf16 {vr(KACC+4*tt,4)}, {vr(sb+4*tt,4)}, {vr(sb+16,4)}, {vr(KACC+4*tt,4) if ks else 0}')
                mf.append(f'v_mfma_f32_16x16x32_bf16 {vr(VACC+4*tt,4)}, {vr(sb+4*tt,4)}, {vr(sb+20,4)}, {vr(VACC+4*tt,4) if ks else 0}')
            s = dict(reads=reads, mfmas=mf, at=nh + ks - 1)
            if ks % 2 == 0:
                extra = after = None
                if stg == opt.get('fh_bar', 6): extra = lambda: (a.wait_vm(htok['st']), cst(1))
                if stg == opt.get('hl_bar', 11): after = lambda: a.inject([lambda n=n: hload(n) for n in range(16)], opt.get('hl_every', 16))
                if stg == 4: after = h_stats_reads
                s['pre'] = stage_pre(stg, [WK16], [PAT16], extra, after)
            steps.append(s)
        kr0, kp0 = steps[nh]['reads'], steps[nh]['pre']
        steps[nh]['reads'] = []; steps[nh]['pre'] = None
        def h_hook():
            kp0()
            for t in kr0: steps[nh]['tok'] = a(t)
            h_epilogue()
        steps[nh]['hook'] = h_hook
        nkv = len(steps)

        ASETS = [228, 236, 244]
        def steps_ks(first, nstage, pats, natural, acc, bfrag, asets, base, setphase=0, init=True, c_init=None):
            st = []
            for n in range(4 * nstage):
                stg = first + n // 4; i = n % 4
                sb = asets[(n + setphase) % 3]
                reads = []
                for t in range(2):
                    for rd in range(2):
                        if natural:
                            reads.append(f'ds_read_b64_tr_b16 {vr(sb+4*t+2*rd,2)}, v{WK[t]} offset:{i*2048+rd*512}')
                        else:
                            reads.append(f'ds_read_b64_tr_b16 {vr(sb+4*t+2*rd,2)}, v{WK[2*t+rd]} offset:{i*2048}')
                b = bfrag(n)
                c0 = vr(acc if (n or c_init is None) else c_init, 16)
                c1 = vr(acc + 16, 16) if (n or not init) else 0
                mf = [f'v_mfma_f32_32x32x16_bf16 {vr(acc,16)}, {vr(sb,4)}, {vr(b,4)}, {c0}',
                      f'v_mfma_f32_32x32x16_bf16 {vr(acc+16,16)}, {vr(sb+4,4)}, {vr(b,4)}, {c1}']
                s = dict(reads=reads, mfmas=mf, at=base + n - 2)
                if i == 0: s['pre'] = stage_pre(stg, WK[:len(pats)], pats)
                st.append(s)
            return st

        p2 = steps_ks(12, 4, PATN, True, P2ACC, lambda n: HF + 4 * n, ASETS, nkv)
        p2[0]['at'] = nkv - 1; p2[1]['at'] = nkv - 1
        def kv_epilogue():
            cst(16)
            SN, SR_, SL = 180, 196, 124
            for tt in range(4): a(f'ds_read_b128 {vr(SN+4*tt,4)}, v{STB} offset:{tt*64}')
            for tt in range(4): tk1 = a(f'ds_read_b128 {vr(SL+4*tt,4)}, v{STB} offset:{tt*64+512}')
            for tt in range(4): tk = a(f'ds_read_b128 {vr(SR_+4*tt,4)}, v{STB} offset:{tt*64+256}')
            XR = 212
            a(f'v_xor_b32 v{XR+8}, 16, v{XE}\nv_xor_b32 v{XR+9}, 32, v{XE}\nv_xor_b32 v{XR+10}, 48, v{XE}')
            a(f'v_lshlrev_b32 v{XR+12}, 2, v0\nv_and_b32 v{XR+13}, 15, v0')
            a(f'v_lshrrev_b32 v{XR+14}, 4, v0\nv_lshl_add_u32 v{XR+14}, v{XR+14}, 2, v{XR+13}\nv_lshlrev_b32 v{XR+14}, 2, v{XR+14}')
            a(f'v_mov_b32 v{XR+15}, {OOB}\nv_cmp_gt_u32 vcc, 4, v{XR+13}\nv_cndmask_b32 v{XR+14}, v{XR+15}, v{XR+14}, vcc')
            a.wait_lg(tk1)
            for u in range(8):
                a(f'v_pk_fma_f32 {P(KACC+2*u)}, {P(SN+2*u)}, {P(KCS)}, {P(KACC+2*u)} op_sel_hi:[1,0,1]')
            for u in range(8):
                a(f'v_pk_fma_f32 {P(VACC+2*u)}, {P(SN+2*u)}, {P(VCS)}, {P(VACC+2*u)} op_sel_hi:[1,0,1]')
            for u in range(8):
                a(f'v_pk_mul_f32 {P(SL+2*u)}, {P(SL+2*u)}, {P(KACC+2*u)}')
            a.wait_lg(tk)
            a(f'ds_read_b64 {vr(XR,2)}, v{XE}')
            for g in range(1, 4): a(f'ds_read_b64 {vr(XR+2*g,2)}, v{XR+7+g}')
            for tt in range(4):
                a(f'ds_read_b128 {vr(QST+4*tt,4)}, v{STA} offset:{1024+tt*256}')
            for u in range(8):
                a(f'v_pk_fma_f32 {P(KACC+2*u)}, {P(KACC+2*u)}, {P(SR_+2*u)}, s[{sEPS}:{sEPS+1}]')
            for u in range(8):
                a(f'v_pk_mul_f32 {P(VACC+2*u)}, {P(VACC+2*u)}, {P(SR_+2*u)}')
            tk = a(f'ds_read_b64 {vr(PST,2)}, v{PSA}')
            cst(17)
            PKR, PVR = 180, 188
            for u in range(8): a(f'v_cvt_pk_bf16_f32 v{PVR+u}, v{VACC+2*u}, v{VACC+2*u+1}')
            self.phi_tail(a, [KACC + 2*u for u in range(8)], [PKR + u for u in range(8)], SL)
            KVA, ZA = 172, 176
            cst(18)
            a(f'v_mfma_f32_16x16x32_bf16 {vr(KVA,4)}, {vr(PKR,4)}, {vr(PVR,4)}, 0')
            a(f'v_mfma_f32_16x16x32_bf16 {vr(ZA,4)}, {vr(PKR,4)}, {vr(ONES,4)}, 0')
            a(f'v_mfma_f32_16x16x32_bf16 {vr(KVA,4)}, {vr(PKR+4,4)}, {vr(PVR+4,4)}, {vr(KVA,4)}')
            a(f'v_mfma_f32_16x16x32_bf16 {vr(ZA,4)}, {vr(PKR+4,4)}, {vr(ONES,4)}, {vr(ZA,4)}')
            a.wait_lg(tk)
            for g in range(4):
                for d in range(2):
                    a(f'v_lshlrev_b32 v{RES+4*g+2*d}, 16, v{XR+2*g+d}\nv_and_b32 v{RES+4*g+2*d+1}, 0xffff0000, v{XR+2*g+d}')
            a.flush_inject()
            cst(19)
            a(f'v_cmp_eq_u32 vcc, 1, v{XR+13}\ns_lshl_b32 s{sT0}, s{sW}, 10\ns_add_u32 s{sT0}, s{sT0}, s{sC}\nv_cndmask_b32 v{ZA}, v{ZA}, v{ZA+1}, vcc')
            for k in range(4):
                a(f'buffer_atomic_add_f32 v{KVA+k}, v{XR+12}, {srd(sWS)}, s{sT0} offen offset:{k*256}')
                if k < 2: a(f'v_cmp_eq_u32 vcc, {k+2}, v{XR+13}\nv_cndmask_b32 v{ZA}, v{ZA}, v{ZA+k+2}, vcc')
            a(f's_lshl_b32 s{sT0}, s{sW}, 6\ns_add_u32 s{sT0}, s{sT0}, s{sC}\ns_add_u32 s{sT0}, s{sT0}, {KV_Z}')
            a(f'buffer_atomic_add_f32 v{ZA}, v{XR+14}, {srd(sWS)}, s{sT0} offen')
            for u in range(8):
                a(f'v_pk_add_f32 {P(P2ACC+2*u)}, {P(RES+2*u)}, {P(PST)} op_sel_hi:[1,0]')
            for u in range(8):
                a(f'v_pk_mul_f32 {P(P2ACC+2*u)}, {P(P2ACC+2*u)}, {P(PST)} op_sel:[0,1] op_sel_hi:[1,1]')
        p2[0]['hook'] = kv_epilogue
        for n, s in enumerate(p2):
            s['vm'] = (lambda n=n: hl[n])
            if n in (1, 8, 15): s['hook'] = (lambda n=n: cst({1: 20, 8: 21, 15: 22}[n]))
        steps += p2
        np2 = len(steps)

        qs = steps_q(16, HACC, HCS, HSETS, np2)
        x1tok = {}
        for s in qs:
            if s['stage'] is not None:
                extra = None
                if s['stage'] == opt.get('fx_bar', 17): extra = lambda: (a.wait_vm(x1tok['st']), cst(3))
                s['pre'] = stage_pre(s['stage'], [WK16], [PAT16], extra)
        qr0, qr1 = qs[0]['reads'], qs[1]['reads']
        qs[0]['reads'] = []; qs[1]['reads'] = []; qs[0]['pre'] = None
        qs[0]['at'] = np2; qs[1]['at'] = np2
        def exchange(acc, rcv, nb, between=None):
            a(f'v_xor_b32 v{rcv}, 8192, v{RDX}')
            for g in range(4):
                a(f'ds_write_b128 v{rcv}, {vr(acc+16+4*g,4)} offset:{g*1024}')
            if between: between()
            a.wait_lg0()
            self.barC(a, nb)
            return [a(f'ds_read_b128 {vr(rcv+4*g,4)}, v{RDX} offset:{g*1024}') for g in range(4)]
        def p2_epilogue():
            RCV = 180; OUT = 196; SS = 204
            cst(23)
            def between():
                a(f's_lshl_b32 s{sT2}, s{sJ}, 1\ns_add_u32 s{sT2}, s{sT2}, s{sHI}\ns_lshl_b32 s{sT0}, s{sT2}, 12\ns_add_u32 s{sT0}, s{sT0}, s{sA}\ns_add_u32 s{sT0}, s{sT0}, {X1_OFF}')
                a(f's_lshl_b32 s{sT2}, s{sT2}, 9\ns_lshl_b32 s{sT3}, s{sR}, 13\ns_add_u32 s{sT2}, s{sT2}, s{sT3}\ns_lshl_b32 s{sT3}, s{sTH}, 8\ns_add_u32 s{sT2}, s{sT2}, s{sT3}\ns_add_u32 s{sT2}, s{sT2}, {XS_OFF}')
                a(f'v_add_u32 v{WK16}, {SLOT[16]}, v{PAT16}')
                a(f'v_and_b32 v{SS+8}, 31, v0\nv_lshrrev_b32 v{SS+9}, 5, v0\nv_lshlrev_b32 v{SS+9}, 2, v{SS+9}\nv_lshl_add_u32 v{SS+8}, v{SS+8}, 3, v{SS+9}')
            tk = exchange(P2ACC, RCV, 'B16', between)
            for t in qr0: qs[0]['tok'] = a(t)
            for b in range(2):
                a.wait_lg(tk[2*b+1])
                for u in range(4*b, 4*b+4): a(f'v_pk_add_f32 {P(P2ACC+2*u)}, {P(P2ACC+2*u)}, {P(RCV+2*u)}')
                for u in range(4*b, 4*b+4): a(f'v_cvt_pk_bf16_f32 v{OUT+u}, v{P2ACC+2*u}, v{P2ACC+2*u+1}')
                a(f'buffer_store_dwordx4 {vr(OUT+4*b,4)}, v{CELLT}, {srd(sWS)}, s{sT0} offen offset:{b*2048} sc1')
            a(f'v_pk_add_f32 {P(SS)}, {P(P2ACC)}, {P(P2ACC+2)}\nv_pk_mul_f32 {P(SS+2)}, {P(P2ACC)}, {P(P2ACC)}')
            a(f'v_pk_add_f32 {P(SS+4)}, {P(P2ACC+4)}, {P(P2ACC+6)}\nv_pk_mul_f32 {P(SS+6)}, {P(P2ACC+2)}, {P(P2ACC+2)}')
            for u in range(2, 8):
                k = 4 * (u & 1)
                a(f'v_pk_fma_f32 {P(SS+2+k)}, {P(P2ACC+2*u)}, {P(P2ACC+2*u)}, {P(SS+2+k)}')
                if u >= 4: a(f'v_pk_add_f32 {P(SS+k)}, {P(SS+k)}, {P(P2ACC+2*u)}')
            a(f'v_pk_add_f32 {P(SS)}, {P(SS)}, {P(SS+4)}\nv_pk_add_f32 {P(SS+2)}, {P(SS+2)}, {P(SS+6)}')
            a(f'v_add_f32 v{SS}, v{SS}, v{SS+1}\nv_add_f32 v{SS+2}, v{SS+2}, v{SS+3}')
            for t in qr1: qs[1]['tok'] = a(t)
            a(f'v_permlane32_swap_b32 v{SS}, v{SS+2}\nv_add_f32 v{SS}, v{SS}, v{SS+2}')
            x1tok['st'] = a(f'buffer_store_dword v{SS}, v{SS+8}, {srd(sWS)}, s{sT2} offen sc1')
            cst(2)
            for u in range(8): a(f'v_pk_add_f32 {P(RES+2*u)}, {P(RES+2*u)}, {P(P2ACC+2*u)}')
        qs[0]['hook'] = p2_epilogue
        steps += qs
        nq = len(steps)

        BST = 128; A3 = [60, 68, 76]; ACA, ACB = 84, 100
        GST = 40; GT = 44; CSG = 112
        X1B, CSB, CSB2, HFB = 2, 3, 4, 5
        HP = [6, 7]
        def q_epilogue():
            TMP = 100; OUT = 116; QP = 80
            self.barC(a, 'QE')
            for u in range(8):
                a(f'v_pk_fma_f32 {P(HACC+2*u)}, {P(HCS+2*(u&1))}, {P(QST+4*(u>>1))}, {P(HACC+2*u)} op_sel_hi:[1,0,1]')
            for u in range(8):
                a(f'v_pk_mul_f32 {P(TMP+2*u)}, {P(HACC+2*u)}, {P(QST+4*(u>>1)+2)} op_sel_hi:[1,0]')
            for u in range(8):
                a(f'v_pk_fma_f32 {P(HACC+2*u)}, {P(HACC+2*u)}, {P(QST+4*(u>>1))}, s[{sEPS}:{sEPS+1}] op_sel:[0,1,0] op_sel_hi:[1,1,1]')
            self.phi_tail(a, [HACC + 2*u for u in range(8)], [OUT + u for u in range(8)], TMP)
            a(f's_lshl_b32 s{sT0}, s{sW}, 11\ns_add_u32 s{sT0}, s{sT0}, {PQ}\nv_lshlrev_b32 v{QP}, 3, v0\nv_add_u32 v{QP}, s{sT0}, v{QP}')
            for tt in range(4): a(f'ds_write_b64 v{QP}, {vr(OUT+2*tt,2)} offset:{tt*512}')
            a(f's_lshl_b32 s{sT0}, s{sTH}, 10\nv_add_u32 v{X1B}, s{sT0}, v{LL16}')
            a(f's_lshl_b32 s{sT2}, s{sHI}, 15\nv_add_u32 v{HFB}, s{sT2}, v{X1B}')
            a(f's_and_b32 s{sT3}, s{sJ}, 1\ns_lshl_b32 s{sT4}, s{sT3}, 5')
            a(f's_lshl_b32 s{sT0}, s{sHI}, 5\ns_add_u32 s{sT0}, s{sT0}, s{sT4}\ns_lshl_b32 s{sT0}, s{sT0}, 2\ns_add_u32 s{sT0}, s{sT0}, {CS3L}')
            a(f'v_lshrrev_b32 v{QP+1}, 5, v0\nv_lshlrev_b32 v{QP+1}, 4, v{QP+1}\nv_add_u32 v{CSB}, s{sT0}, v{QP+1}')
            a(f's_cmp_eq_u32 s{sT3}, 0\ns_cselect_b32 s{sT5}, 192, 0')
            a(f's_lshl_b32 s{sT0}, s{sHI}, 4\ns_add_u32 s{sT0}, s{sT0}, s{sT5}\ns_lshl_b32 s{sT0}, s{sT0}, 2\ns_add_u32 s{sT0}, s{sT0}, {CS3L}')
            a(f'v_add_u32 v{CSB2}, s{sT0}, v{QP+1}')
            a(f's_lshl_b32 s{sT0}, s{sHI}, 5\nv_xor_b32 v{HP[0]}, s{sT0}, v{PAT3[0]}\nv_xor_b32 v{HP[1]}, s{sT0}, v{PAT3[1]}')
            a(f'v_and_b32 v{STA}, 31, v0\nv_lshlrev_b32 v{STA}, 4, v{STA}\ns_lshl_b32 s{sT0}, s{sTH}, 9\ns_add_u32 s{sT0}, s{sT0}, {X1P}\nv_add_u32 v{STA}, s{sT0}, v{STA}')
            a(f's_mul_i32 s{sT0}, s{sJ}, 14\ns_lshr_b32 s{sT4}, s{sT4}, 4\ns_lshl_b32 s{sT2}, s{sHI}, 1\ns_add_u32 s{sB}, s{sT0}, s{sT4}\ns_add_u32 s{sB}, s{sB}, s{sT2}')
            a(f's_lshl_b32 s{sB}, s{sB}, 11\ns_add_u32 s{sB}, s{sB}, s{sD}')
            a(f's_lshr_b32 s{sT5}, s{sT5}, 4\ns_add_u32 s{sC}, s{sT0}, s{sT5}\ns_add_u32 s{sC}, s{sC}, s{sHI}\ns_lshl_b32 s{sC}, s{sC}, 11\ns_add_u32 s{sC}, s{sC}, s{sD}')
            a.wait_lg0()
            self.barC(a, 'XA')

        HB = [44, 116, 52]
        def steps_p3(first, nstage, acc, pats, base, kind, phase):
            st = []
            for n in range(4 * nstage):
                stg = first + n // 4
                sb = A3[(n + phase) % 3]
                reads = []; mf = []
                for u in range(2):
                    i = 2 * n + u; s_ = i % 8
                    reads += [f'ds_read_b64_tr_b16 {vr(sb+4*u+2*rd,2)}, v{WK[rd]} offset:{s_*2048}' for rd in range(2)]
                    if kind == 'p0':
                        reads.append(f'ds_read_b128 {vr(BST+4*i,4)}, v{X1B} offset:{i*2048}'); b = BST + 4 * i
                    elif kind == 'hf':
                        b = HB[(n % 3)] + 4 * u
                        reads.append(f'ds_read_b128 {vr(b,4)}, v{HFB} offset:{i*2048}')
                    else:
                        b = BST + 4 * i
                    mf.append(f'v_mfma_f32_32x32x16_bf16 {vr(acc,16)}, {vr(sb+4*u,4)}, {vr(b,4)}, {vr(acc,16) if i else 0}')
                s = dict(reads=reads, mfmas=mf, at=base + n - 2)
                if n % 4 == 0: s['pre'] = stage_pre(stg, WK[:2], pats)
                st.append(s)
            return st
        gtok = {}
        def cs_reads(csreg, csoff, ng):
            def one(g):
                gtok['cs'] = a(f'ds_read_b128 {vr(CSG+4*g,4)}, v{csreg} offset:{csoff+g*32}')
            return [lambda g=g: one(g) for g in range(ng)]
        def g_epi(acc, ng, sbase, after_first=None, cs_=None):
            a.wait_lg(gtok['cs'])
            pairs = [(acc + 2*u, CSG + 2*u, GST, acc + 8*(u >> 2) + (u & 3)) for u in range(2 * ng)]
            self.gelu(a, pairs, GT, after_first)
            if cs_: cst(cs_)
            for b in range(ng // 2):
                gtok['st'] = a(f'buffer_store_dwordx4 {vr(acc+8*b,4)}, v{CELLT}, {srd(sWS)}, s{sbase} offen offset:{b*2048} sc1')
        def hf_send():
            t = GT
            a(f's_lshl_b32 s{sT0}, s{sW}, 11\ns_add_u32 s{sT0}, s{sT0}, {SC}\nv_add_u32 v{t}, s{sT0}, v{LL16}')
            a(f'ds_write_b128 v{t}, {vr(ACB+8,4)}')
            gtok['hfw'] = a(f'ds_write_b128 v{t}, {vr(ACB+12,4)} offset:1024')
            a(f'v_xor_b32 v{HFB}, 4096, v{t}')

        p0 = steps_p3(20, 4, ACA, PAT3, nq, 'p0', 0)
        p0[0]['at'] = nq; p0[1]['at'] = nq; p0[0]['hook'] = q_epilogue
        p0[15]['post'] = [lambda: a(f'ds_read_b128 {vr(GST,4)}, v{STA}')] + cs_reads(CSB, 0, 4)
        steps += p0; n0 = len(steps)
        hf = steps_p3(24, 2, ACB, HP, n0, 'hf', 16)
        for k in range(2):
            hf[k]['late'] = [t for t in hf[k]['reads'] if 'b128' in t]
            hf[k]['reads'] = [t for t in hf[k]['reads'] if 'b128' not in t]
        def hf_hook():
            g_epi(ACA, 4, sB)
            for k in range(2):
                for t in hf[k]['late']: hf[k]['tok'] = a(t)
            a(f's_add_u32 s{sB}, s{sB}, 8192')
        hf[0]['hook'] = hf_hook
        steps += hf; n1 = len(steps)
        p1 = steps_p3(26, 4, ACA, PAT3, n1, 'p', 24)
        p1[0]['hook'] = hf_send
        old = p1[4]['pre']
        p1[4]['pre'] = lambda: (a.wait_lg(gtok['hfw']), old())
        def hf_recv():
            a(f'ds_read_b128 {vr(ACB+8,4)}, v{HFB}')
            gtok['hfr'] = a(f'ds_read_b128 {vr(ACB+12,4)}, v{HFB} offset:1024')
        def hf_add(k):
            a.wait_lg(gtok['hfr'])
            for u in range(4*k, 4*k+4): a(f'v_add_f32_e64 v{ACB+u}, v{ACB+u}, v{ACB+8+u}')
        p1[8]['post'] = [hf_recv]
        p1[11]['post'] = [lambda: hf_add(0)]
        p1[12]['post'] = [lambda: hf_add(1)]
        p1[15]['post'] = cs_reads(CSB, 256, 4)
        steps += p1; n2 = len(steps)
        p2_ = steps_p3(30, 4, ACA, PAT3, n2, 'p', 40)
        def p1_epilogue():
            cst(8)
            g_epi(ACA, 4, sB, lambda: [f() for f in cs_reads(CSB2, 0, 2)], 9)
            a(f's_add_u32 s{sB}, s{sB}, 8192')
            cst(10)
            g_epi(ACB, 2, sC, None, 11)
            cst(12)
        p2_[0]['hook'] = p1_epilogue
        p2_[15]['post'] = cs_reads(CSB, 512, 4)
        p2_[1]['hook'] = lambda: cst(13)
        p2_[2]['hook'] = lambda: cst(14)
        p2_[3]['hook'] = lambda: cst(15)
        steps += p2_; n3 = len(steps)

        P4ACC = 84; FR = 128
        wo = steps_ks(34, 4, PATN, True, P4ACC, lambda n: FR + 4 * n, A3, n3, setphase=56, c_init=RES)
        ol = {}
        def oload(n):
            sg, i = n // 4, n % 4
            if i % 2 == 0: a(f's_add_u32 s{sI0}, s{sT5}, {sg*16384 + (i>>1)*4096}')
            ol[n] = a(f'buffer_load_dwordx4 {vr(FR+4*n,4)}, v{CELLT}, {srd(sWS)}, s{sI0} offen offset:{(i&1)*2048} sc1')
        def p3_last_epilogue():
            a(f's_lshl_b32 s{sT0}, s{sHI}, 13\ns_add_u32 s{sT5}, s{sT0}, s{sA}\ns_add_u32 s{sT5}, s{sT5}, {O_OFF}\ns_add_u32 s{sD}, s{sD}, s{sT0}')
            g_epi(ACA, 4, sB)
            cst(6)
            self.barC(a, 'OB')
            k0 = opt.get('ol_pre', 10)
            for n in range(k0): oload(n)
            a.inject([lambda n=n: oload(n) for n in range(k0, 16)], 8)
        wo[0]['hook'] = p3_last_epilogue
        for n, s in enumerate(wo): s['vm'] = (lambda n=n: ol[n])
        ogs = opt.get('og_step', 0)
        def og():
            a.wait_vm(gtok['st'])
            cst(7)
            self.barC(a, 'OG')
        oh = wo[ogs].get('hook')
        wo[ogs]['hook'] = (lambda: (oh(), og())) if oh else og
        steps += wo; n4 = len(steps)
        NG = opt.get('ng', 12)
        w4 = steps_ks(38, 14, PATP, False, P4ACC, lambda n: FR + 4 * (n % 32), A3, n4, setphase=72, init=False)
        gl = {}
        def gload(n):
            sg, i = n // 4, n % 4
            if i % 2 == 0: a(f's_add_u32 s{sI0}, s{sD}, {sg*16384 + (i>>1)*4096}')
            gl[n] = a(f'buffer_load_dwordx4 {vr(FR+4*(n%32),4)}, v{CELLT}, {srd(sWS)}, s{sI0} offen offset:{(i&1)*2048} sc1')
        w4[0]['at'] = n4; w4[1]['at'] = n4
        pre38 = w4[0]['pre']
        NG0 = opt.get('ng0', 8)
        def w4_pre():
            pre38()
            for n in range(NG0): gload(n)
        w4[0]['pre'] = w4_pre
        nxt = NG0
        for n, s in enumerate(w4):
            s['vm'] = (lambda n=n: gl[n])
            post = []
            while nxt < 56 and nxt < n + 1 + NG and len(post) < 2:
                post.append(lambda m=nxt: gload(m)); nxt += 1
            s['post'] = post
        steps += w4

        self.run_steps(a, steps)
        RCV = 128; OUT = 144; VO = 160
        def between():
            a(f's_lshl_b32 s{sT0}, s{sTH}, 5\nv_and_b32 v{VO}, 31, v0\nv_add_u32 v{VO}, s{sT0}, v{VO}\nv_lshlrev_b32 v{VO}, 10, v{VO}')
            a(f'v_lshrrev_b32 v{VO+1}, 5, v0\nv_lshl_add_u32 v{VO}, v{VO+1}, 4, v{VO}')
            a(f's_lshl_b32 s{sT0}, s{sJ}, 1\ns_add_u32 s{sT0}, s{sT0}, s{sHI}\ns_lshl_b32 s{sT0}, s{sT0}, 6\ns_add_u32 s{sT0}, s{sT0}, s{sA}')
        tk = exchange(P4ACC, RCV, 'RB2', between)
        for b in range(2):
            a.wait_lg(tk[2*b+1])
            for u in range(4*b, 4*b+4): a(f'v_pk_add_f32 {P(P4ACC+2*u)}, {P(P4ACC+2*u)}, {P(RCV+2*u)}')
            for u in range(4*b, 4*b+4): a(f'v_cvt_pk_bf16_f32 v{OUT+u}, v{P4ACC+2*u}, v{P4ACC+2*u+1}')
            a(f'v_permlane32_swap_b32 v{OUT+4*b}, v{OUT+4*b+2}\nv_permlane32_swap_b32 v{OUT+4*b+1}, v{OUT+4*b+3}')
            a(f'buffer_store_dwordx4 {vr(OUT+4*b,4)}, v{VO}, {srd(sOUT)}, s{sT0} offen offset:{b*32} {opt.get("outflag", "")}')
        if opt.get('padto'):
            a(f'L_pad:\ns_memrealtime s[{sTSP}:{sTSP+1}]\ns_waitcnt lgkmcnt(0)\ns_sub_u32 s{sT0}, s{sTSP}, s26\ns_cmp_lt_u32 s{sT0}, {opt["padto"]}\ns_cbranch_scc1 L_pad')
        if opt.get('prof'):
            a(f's_memrealtime s[{sTSP}:{sTSP+1}]\ns_memtime s[98:99]\ns_waitcnt lgkmcnt(0)\ns_sub_u32 s98, s98, s90')
            a(f's_lshl_b32 s{sT0}, s2, 3\ns_add_u32 s{sT0}, s{sT0}, s{sW}\ns_lshl_b32 s{sT0}, s{sT0}, 8\ns_add_u32 s{sT0}, s{sT0}, {TS_OFF}')
            a(f'v_mov_b32 v2, s26\nv_mov_b32 v3, s{sTSP}\nv_mov_b32 v4, s98\nv_mov_b32 v5, 0\nv_mov_b32 v6, 0\ns_mov_b64 exec, 1')
            a(f'buffer_store_dwordx4 v[2:5], v6, {srd(sWS)}, s{sT0} offen')
            for k in range(8): a(f'v_mov_b32 v7, s{4+2*k}\nbuffer_store_dword v7, v6, {srd(sWS)}, s{sT0} offen offset:{16+4*k}')
        a('s_endpgm')

    def helper(self, a):
        opt = self.opt
        prof = opt.get('prof')
        E = lambda name, d: opt.get(name, d)
        ogs = E('og_step', 0); ogp = 35 + (ogs > 2) + (ogs > 6) + (ogs > 10)
        BARS = [f'B{i}' for i in range(20)] + ['QE', 'XA'] + [f'B{i}' for i in range(20, 35)] + ['OB'] + [f'B{i}' for i in range(35, ogp)] + ['OG'] + [f'B{i}' for i in range(ogp, NST)]
        IDX = {n: i for i, n in enumerate(BARS)}
        T = [40 + i for i in range(16)]
        V1K, VQ, VKV, VW3, VHF = 4, 8, 12, 16, 20
        row, pos, sw = T[0], T[1], T[2]
        def mk(dst, RS, sbase):
            a(f'v_mul_u32_u24 v{T[5]}, {RS}, v{row}\nv_add_u32 v{T[5]}, s{sbase}, v{T[5]}')
            for i in range(4):
                a(f'v_add_u32 v{dst+i}, v{T[5]}, v{T[3+(i&1)]}')
                if i: a(f'v_add_u32 v{dst+i}, {i*(8*RS-1024)}, v{dst+i}')
        stok = {}
        def issue(st):
            kind, sg = STAGES[st]
            if len(a.vm) > E('pace', 32): a.wait_vm(a.vm[-E('pace', 32) - 1])
            s, v, so, RS = {'w1': (sW1, V1K, None, 1024), 'w2': (sW2, V1K, sg * 131072, 1024), 'wo': (sWO, V1K, sg * 131072, 1024),
                            'w4': (sW4, V1K, sg * 131072, 1024), 'wq': (sQKV, VQ, None, 3072), 'kv': (sQKV, VQ, None, 3072),
                            'p0': (sW3, VW3, sg * 128 * 3584, 3584), 'p1': (sW3, VW3, sg * 128 * 3584 + 128, 3584),
                            'p2': (sW3, VW3, sg * 128 * 3584 + 256, 3584), 'hf': (sW3, VHF, sg * 128 * 3584, 3584)}[kind]
            for g in range(4):
                a(f's_mov_b32 m0, {SLOT[st] + g*4096}')
                if so is not None: a(f's_mov_b32 s{sT2}, {so + g*32*RS}')
                elif kind == 'w1': a(f's_add_u32 s{sT2}, s{sK1+sg}, {g*32*RS}')
                elif kind == 'wq': a(f's_add_u32 s{sT2}, s{sK3+sg}, {g*32*RS}')
                else: a(f's_add_u32 s{sT2}, s{sK3+(sg>>1)}, {((sg&1)*64 + (g&1)*32)*RS + 1024*(1 + (g>>1))}')
                for i in range(4):
                    stok[st] = a(f'buffer_load_dwordx4 v{v+i}, {srd(s)}, s{sT2} offen offset:{i*1024} lds')
        VAR = 95
        def arrive(idx):
            if prof == 2:
                a(f's_memtime s[0:1]\ns_waitcnt lgkmcnt(0)')
                a.lg = []
                if isinstance(idx, int): a(f'v_writelane_b32 v{VAR}, s0, {idx + 1}')
                else: a(f's_add_u32 s1, s{idx}, 1\ns_mov_b32 m0, s1\nv_writelane_b32 v{VAR}, s0, m0')
        def dump_arrive(slot):
            if prof:
                a(f's_lshl_b32 s{sT0}, s2, 2\ns_add_u32 s{sT0}, s{sT0}, s{sW}\ns_lshl_b32 s{sT0}, s{sT0}, 8\ns_add_u32 s{sT0}, s{sT0}, {TS_OFF + 0x80000}')
                a(f'v_lshlrev_b32 v2, 2, v0\nbuffer_store_dword v{VAR}, v2, {srd(sWS)}, s{sT0} offen')
        if prof: a(f'v_mov_b32 v{VAR}, 0')
        a(f's_cmp_eq_u32 s{sW}, 0\ns_cbranch_scc1 L_sync\ns_cmp_lt_u32 s{sW}, 3\ns_cbranch_scc1 L_back')
        a(f'v_lshrrev_b32 v{row}, 3, v0\nv_and_b32 v{pos}, 7, v0\nv_lshrrev_b32 v{sw}, 4, v0\nv_and_b32 v{sw}, 1, v{sw}\nv_lshlrev_b32 v{sw}, 2, v{sw}')
        a(f'v_xor_b32 v{pos}, v{pos}, v{sw}')
        a(f'v_lshlrev_b32 v{T[3]}, 4, v{pos}\nv_xor_b32 v{T[4]}, 32, v{T[3]}')
        a(f's_lshl_b32 s{sT0}, s{sJ}, 7')
        mk(V1K, 1024, sT0)
        a(f's_mov_b32 s{sW1+2}, {512*1024}\ns_mov_b32 s{sW1+3}, 0x20000')
        for sg in range(4):
            a(f's_add_u32 s{sT3}, s{sROT}, {sg}\ns_and_b32 s{sT3}, s{sT3}, 3\ns_lshl_b32 s{sK1+sg}, s{sT3}, 17\ns_mul_i32 s{sK3+sg}, s{sT3}, {128*3072}')
        a('s_waitcnt lgkmcnt(0)')
        a(f's_mov_b32 s{sW1}, s12\ns_and_b32 s{sW1+1}, s13, 0xffff')
        issue(0); issue(1)
        a('s_branch L_loader')
        vmL = list(a.vm); a.vm = []
        a('L_back:')
        sSW = sHI
        a(f'v_lshrrev_b32 v2, 4, v0\nv_and_b32 v3, 15, v0\nv_xor_b32 v3, v3, v2\nv_lshlrev_b32 v3, 4, v3')
        a(f's_lshl_b32 s{sT0}, s{sR}, 1\ns_add_u32 s{sT0}, s{sT0}, s{sSW}\ns_lshl_b32 s{sT0}, s{sT0}, 15')
        a(f'v_lshl_add_u32 v2, v2, 10, s{sT0}\nv_add_u32 v2, v2, v3')
        for u in range(1, 4): a(f'v_xor_b32 v{2+u}, {u<<6}, v2\nv_add_u32 v{2+u}, {u*3072}, v{2+u}')
        a(f's_lshl_b32 s{sI0}, s{sSW}, 13\ns_mov_b32 s{sB}, s{sROT}')
        a('s_waitcnt lgkmcnt(0)')
        a(f's_mov_b32 s{sX}, s4\ns_and_b32 s{sX+1}, s5, 0xffff')
        xtok = {}
        def x_chunk(sg):
            for half in range(2):
                a(f's_add_u32 m0, s{sI0}, {sg*16384 + half*4096}\ns_lshl_b32 s{sT2}, s{sB}, 8')
                if half: a(f's_add_u32 s{sT2}, s{sT2}, 16384')
                for u in range(4):
                    xtok[sg] = a(f'buffer_load_dwordx4 v{2+u}, {srd(sX)}, s{sT2} offen offset:{u*1024} lds')
            if sg < 3: a(f's_add_u32 s{sB}, s{sB}, 1\ns_and_b32 s{sB}, s{sB}, 3')
        x_chunk(0); x_chunk(1)
        self.srds(a, skipx=True)

        F = 64; SSUM, SGR, HONE = 80, 84, 88
        q, i16 = T[8], T[9]
        SW1, SW2 = 92, 93
        def stats_setup():
            a(f'v_lshrrev_b32 v{q}, 4, v0\nv_and_b32 v{i16}, 15, v0\ns_lshl_b32 s{sT0}, s{sW}, 12')
            for m in range(4):
                a(f'v_or_b32 v{T[0]}, {4*m}, v{q}\nv_xor_b32 v{T[0]}, v{T[0]}, v{i16}\nv_lshlrev_b32 v{T[0]}, 4, v{T[0]}')
                a(f'v_lshl_add_u32 v{T[0]}, v{i16}, 8, v{T[0]}\nv_add_u32 v{T[10+m]}, s{sT0}, v{T[0]}')
            for i in range(4): a(f'v_mov_b32 v{HONE+i}, s{sONE}')
            a(f'v_and_b32 v{T[0]}, 3, v0\nv_lshrrev_b32 v{T[2]}, 2, v{i16}')
            a(f'v_cmp_eq_u32 s[14:15], 1, v{T[0]}\nv_cmp_eq_u32 s[16:17], 2, v{T[0]}\nv_cmp_eq_u32 s[12:13], 3, v{T[0]}\nv_cmp_eq_u32 s[10:11], v{T[2]}, v{q}')
            a(f's_lshl_b32 s{sT0}, s{sW}, 4\nv_add_u32 v{SW1}, s{sT0}, v{i16}\nv_lshlrev_b32 v{SW2}, 4, v{SW1}\nv_lshlrev_b32 v{SW1}, 2, v{SW1}')
            a(f'v_add_u32 v{SW2}, {S1}, v{SW2}\nv_add_u32 v{SW1}, {NMU}, v{SW1}')
        def stats_chunks(sgs):
            tk = {(sg, m): a(f'ds_read_b128 {vr(F+32*(sg&1)+4*m if False else (F if (sg&1)==0 else 96)+4*m,4)}, v{T[10+m]} offset:{sg*16384}') for sg in sgs for m in range(4)}
            a('s_setprio 3')
            for sg in sgs:
                for m in range(4):
                    a.wait_lg(tk[(sg, m)])
                    z = sg == 0 and m == 0
                    f = (F if (sg & 1) == 0 else 96) + 4 * m
                    a(f'v_mfma_f32_16x16x32_bf16 {vr(SGR,4)}, {vr(f,4)}, {vr(f,4)}, {0 if z else vr(SGR,4)}')
                    a(f'v_mfma_f32_16x16x32_bf16 {vr(SSUM,4)}, {vr(HONE,4)}, {vr(f,4)}, {0 if z else vr(SSUM,4)}')
            a('s_setprio 0')
        def stats_final():
            s1, s2 = 36, 37
            a('s_setprio 3')
            R = 64
            a(f'v_cndmask_b32 v{s2}, v{SGR}, v{SGR+1}, s[14:15]\nv_mul_f32 v{R}, {f2u(-1/512):#x}, v{SSUM}\nv_cndmask_b32 v{s2}, v{s2}, v{SGR+2}, s[16:17]')
            a(f'v_mov_b32 v{R+7}, 0\nv_cndmask_b32 v{s2}, v{s2}, v{SGR+3}, s[12:13]\nv_mul_f32 v{s1}, v{R}, v{R}\nv_mov_b32 v{R+4}, v{R}')
            a(f's_mov_b32 s{sT0}, {f2u(1/512):#x}\nv_fma_f32 v{s2}, v{s2}, s{sT0}, -v{s1}\nv_max_f32 v{s2}, 0, v{s2}\nv_add_f32 v{s1}, {f2u(1e-5):#x}, v{s2}')
            a(f'v_rsq_f32 v{R+5}, v{s1}\nv_rcp_f32 v{s1}, v{s1}\ns_mov_b32 s{sT0}, {f2u(1e-5):#x}')
            a(f'v_mul_f32 v{R+6}, {f2u(LOG2E):#x}, v{R+5}\nv_fma_f32 v{s1}, v{s1}, v{s2}, s{sT0}')
            a(f'v_rsq_f32 v{s1}, v{s1}\nv_mul_f32 v{s1}, v{s1}, v{R+5}')
            a(f'v_rcp_f32 v{R+3}, v{s1}\nv_mul_f32 v{s2}, v{s1}, v{s1}\nv_mul_f32 v{R+1}, {f2u(GC0):#x}, v{s1}\nv_mul_f32 v{s2}, {f2u(0.044715):#x}, v{s2}\nv_mul_f32 v{R+2}, v{R+1}, v{s2}')
            a('s_mov_b64 exec, s[10:11]')
            a(f'ds_write_b128 v{SW2}, {vr(R,4)}\nds_write_b128 v{SW2}, {vr(R+4,4)} offset:1024')
            a(f'ds_write_b32 v{SW1}, v{R}\nds_write_b32 v{SW1}, v{R+5} offset:256\nds_write_b32 v{SW1}, v{R+6} offset:512')
            a('s_mov_b64 exec, -1\ns_setprio 0')
            a.wait_lg0()
        def stats_after(b):
            if b in (0, 1): stats_chunks([b])
            if b == 2: stats_chunks([2, 3])
            if b == 3: stats_final()

        VFL, VFP, VF3, VONE, VCT, CELLV, VZA, VCK, VFO = 26, 27, 28, 29, 30, 32, 34, 35, 33
        OB = T[14]
        pf = opt.get('pf', 1); t3 = opt.get('t3', 1)
        nlab = [0]
        def lab(p):
            nlab[0] += 1
            return f'L_{p}{nlab[0]}'
        def common_regs():
            a(f'v_mov_b32 v{OB}, {OOB}\nv_lshlrev_b32 v{T[15]}, 7, v0\nv_mov_b32 v{VONE}, 1')
            a(f'v_lshrrev_b32 v{T[0]}, 5, v0\nv_and_b32 v{T[1]}, 31, v0\nv_lshlrev_b32 v{CELLV}, 10, v{T[0]}\nv_lshl_add_u32 v{CELLV}, v{T[1]}, 4, v{CELLV}')
            a(f's_lshl_b32 s{sC}, s{sR}, 16\ns_lshl_b32 s{sD}, s{sJ}, 18\ns_add_u32 s{sD}, s{sD}, {KV_OFF}\ns_lshl_b32 s{sA}, s{sJ}, 12\ns_add_u32 s{sA}, s{sA}, {CF_OFF}')
        def one_lane(text):
            a('s_mov_b64 exec, 1'); a(text); a('s_mov_b64 exec, -1')
        def count(off, idx):
            a(f's_lshr_b32 s{sT0}, s{idx}, 3\ns_lshl_b32 s{sT0}, s{sT0}, 7\ns_and_b32 s{sT2}, s{idx}, 7\ns_lshl_b32 s{sT2}, s{sT2}, 2\ns_add_u32 s{sT0}, s{sT0}, s{sT2}')
            a(f's_add_u32 s{sT0}, s{sT0}, s{sA}\ns_add_u32 s{sT0}, s{sT0}, {off}\nv_mov_b32 v{T[7]}, 0')
            one_lane(f'buffer_store_dword v{VONE}, v{T[7]}, {srd(sWS)}, s{sT0} offen sc1')

        sBC = sCNT; sSP = sBG
        common_regs()
        def touch(s, lines, dst, pitch=None, off=0):
            n = lines // 2
            a(f's_lshl_b32 s{sT0}, s2, 1\ns_add_u32 s{sT0}, s{sT0}, s{sSW}\ns_mul_i32 s{sT0}, s{sT0}, {pitch or n*128}')
            if off: a(f's_add_u32 s{sT0}, s{sT0}, {off}')
            a(f'v_cmp_gt_u32 vcc, {n}, v0\nv_cndmask_b32 v{T[7]}, v{OB}, v{T[15]}, vcc')
            return a(f'buffer_load_dword v{dst}, v{T[7]}, {srd(s)}, s{sT0} offen')
        CSR = 128; CA = 160
        def cs_loads():
            a(f's_lshr_b32 s{sT0}, s{sR}, 1\ns_mul_i32 s{sT0}, s{sT0}, {32*3584}\ns_mul_i32 s{sT2}, s{sJ}, 448\ns_add_u32 s{sT0}, s{sT0}, s{sT2}')
            a(f's_and_b32 s{sT2}, s{sR}, 1\ns_lshl_b32 s{sT2}, s{sT2}, 1\ns_add_u32 s{sT2}, s{sT2}, s{sSW}\ns_mul_i32 s{sT2}, s{sT2}, 112\ns_add_u32 s{sT0}, s{sT0}, s{sT2}')
            a(f'v_lshrrev_b32 v{T[6]}, 5, v0\nv_mul_u32_u24 v{T[6]}, {16*3584}, v{T[6]}\nv_and_b32 v{T[5]}, 31, v0\nv_lshl_add_u32 v{T[6]}, v{T[5]}, 2, v{T[6]}')
            a(f'v_cmp_gt_u32 vcc, 28, v{T[5]}\nv_cndmask_b32 v{T[6]}, v{OB}, v{T[6]}, vcc')
            for i in range(16):
                a(f'buffer_load_dword v{CSR+i}, v{T[6]}, {srd(sW3)}, s{sT0} offen')
                if i < 15: a(f's_add_u32 s{sT0}, s{sT0}, 3584')
        if pf: touch(sQKV, 32, 6, 3072, 1024)
        if E('cs0', 0): cs_loads()
        stats_setup()
        barsD = []
        for b in range(5):
            if b == 0: a.wait_vm(xtok[0])
            if b == 1: a.wait_vm(xtok[1])
            if b == 2: a.wait_vm(xtok[3])
            arrive(b); barsD.append(f'B{b}'); a('s_barrier')
            if b == 0: x_chunk(2); x_chunk(3)
            stats_after(b)
            if b == E('e_pf', 2):
                if pf: touch(sW2, 16, 7); touch(sQKV, 16, 7, 3072)
                if pf and E('w3pf', 0) == 2: touch(sW3, 56, 7)
        a(f's_mov_b32 s{sBC}, 5')
        LONG = sum(1 << (IDX[n] + 1) for n in ('B4', 'B11', 'B12', 'B15', 'B16', 'B19', 'QE', 'XA', 'B24', 'B30', 'B34'))
        a(f's_mov_b32 s4, {LONG & 0xffffffff}\ns_mov_b32 s5, {LONG >> 32}')
        def yield_(dl):
            L = lab('y')
            a(f's_cmp_ge_u32 s{sBC}, {IDX[dl]}\ns_cbranch_scc1 {L}')
            arrive(str(sBC))
            a(f's_barrier\ns_add_u32 s{sBC}, s{sBC}, 1\n{L}:')
        def earliest(name):
            L = lab('e')
            a(f'{L}:\ns_cmp_gt_u32 s{sBC}, {IDX[name]}\ns_cbranch_scc1 {L}d')
            arrive(str(sBC))
            a(f's_barrier\ns_add_u32 s{sBC}, s{sBC}, 1\ns_branch {L}\n{L}d:')
        def nbwait(dl, lg=False):
            L = lab('w')
            a(f'{L}:\ns_bitcmp1_b64 s[4:5], s{sBC}\ns_cselect_b32 s{sSP}, {E("nspin", 12)}, 1')
            a(f'{L}s:\ns_getreg_b32 s{sT0}, hwreg(HW_REG_IB_STS)\ns_and_b32 s{sT0}, s{sT0}, {0xf00 if lg else 0xc0000f}\ns_cbranch_scc0 {L}d')
            a(f's_sub_u32 s{sSP}, s{sSP}, 1\ns_cmp_lg_u32 s{sSP}, 0\ns_cbranch_scc1 {L}s')
            a(f's_cmp_ge_u32 s{sBC}, {IDX[dl]}\ns_cbranch_scc1 {L}d')
            if not lg: arrive(str(sBC))
            a(f's_barrier\ns_add_u32 s{sBC}, s{sBC}, 1\ns_branch {L}')
            a(f'{L}d:\ns_waitcnt {"lgkmcnt" if lg else "vmcnt"}(0)')
        def spin(off, n, dl):
            L = lab('c')
            a(f'v_and_b32 v{VCT}, {n-1}, v0\nv_lshrrev_b32 v{T[7]}, 3, v{VCT}\nv_and_b32 v{VCT}, 7, v{VCT}\nv_lshlrev_b32 v{VCT}, 2, v{VCT}\nv_lshl_add_u32 v{VCT}, v{T[7]}, 7, v{VCT}')
            a(f's_mov_b32 s6, {opt.get("spin", 200000)}\ns_add_u32 s9, s{sA}, {off}')
            a(f'{L}:\nbuffer_load_dword v{VCK}, v{VCT}, {srd(sWS)}, s9 offen sc1')
            nbwait(dl)
            a(f'v_cmp_ne_u32 vcc, 1, v{VCK}\ns_sub_u32 s6, s6, 1\ns_cmp_eq_u32 s6, 0\ns_cbranch_scc1 {L}d\ns_cbranch_vccnz {L}\n{L}d:')
        def sliced(fn, dl, n=None):
            lines = a.record(fn); n = n or E('bgn', 22)
            while lines:
                m = n
                while any(x.startswith('s_setprio 3') for x in lines[:m]) and not any(x.startswith('s_setprio 0') for x in lines[:m]): m += 1
                a('\n'.join(lines[:m])); lines = lines[m:]
                if lines: yield_(dl)
        def cs_sum():
            for i in range(16):
                r_ = CSR + i
                if i == 0:
                    a(f'v_lshlrev_b32 v{CA}, 16, v{r_}\nv_and_b32 v{CA+1}, 0xffff0000, v{r_}')
                else:
                    a(f'v_lshlrev_b32 v{CA+4}, 16, v{r_}\nv_and_b32 v{CA+5}, 0xffff0000, v{r_}')
                    a(f'v_add_f32 v{CA}, v{CA}, v{CA+4}\nv_add_f32 v{CA+1}, v{CA+1}, v{CA+5}')
        if not E('cs0', 0):
            earliest(E('e_cs', 'B6'))
            cs_loads()
        nbwait('B24')
        sliced(cs_sum, 'B24')
        a(f'v_permlane32_swap_b32 v{CA}, v{CA+1}\nv_add_f32 v{CA}, v{CA}, v{CA+1}')
        a(f'v_and_b32 v{T[5]}, 31, v0\nv_lshrrev_b32 v{T[6]}, 5, v0\nv_lshlrev_b32 v{T[6]}, 2, v{T[6]}\nv_lshl_add_u32 v{T[6]}, v{T[5]}, 3, v{T[6]}')
        a(f'v_cmp_gt_u32 vcc, 28, v{T[5]}\nv_cndmask_b32 v{T[6]}, v{OB}, v{T[6]}, vcc')
        a(f's_lshr_b32 s{sT0}, s{sR}, 1\ns_lshl_b32 s{sT0}, s{sT0}, 10\ns_and_b32 s{sT2}, s{sR}, 1\ns_lshl_b32 s{sT2}, s{sT2}, 1\ns_add_u32 s{sT2}, s{sT2}, s{sSW}\ns_mul_i32 s{sT2}, s{sT2}, 224')
        a(f's_add_u32 s{sT0}, s{sT0}, s{sT2}\ns_add_u32 s{sT0}, s{sT0}, s{sD}\ns_add_u32 s{sT0}, s{sT0}, {KV_CS}')
        a(f'buffer_store_dword v{CA}, v{T[6]}, {srd(sWS)}, s{sT0} offen sc1')
        nbwait('B24')
        earliest('B5')
        a(f's_lshl_b32 s9, s{sR}, 1\ns_add_u32 s9, s9, s{sSW}')
        count(CF_CS, 9)
        earliest(E('e_csc', 'B15'))
        PQR = 64; KVR = 192; ZR = 200
        AK, AZ, NUM, DEN, OUT = 96, 100, 104, 136, 168
        spin(CF_CS, 64, 'B24')
        a(f'v_lshlrev_b32 v{T[0]}, 3, v0\nv_cmp_gt_u32 vcc, 56, v0\nv_cndmask_b32 v{T[0]}, v{OB}, v{T[0]}, vcc')
        a(f's_mul_i32 s{sT2}, s{sSW}, 448\ns_add_u32 s{sT2}, s{sT2}, s{sD}\ns_add_u32 s{sT2}, s{sT2}, {KV_CS}')
        for k in range(16):
            if k % 4 == 0: a(f's_add_u32 s{sT0}, s{sT2}, {k*1024}')
            a(f'buffer_load_dwordx2 {vr(CSR+2*k,2)}, v{T[0]}, {srd(sWS)}, s{sT0} offen offset:{(k&3)*1024} sc1')
        def cs_fin():
            for st in (16, 8, 4, 2):
                for k in range(st): a(f'v_add_f32 v{CSR+k}, v{CSR+k}, v{CSR+st+k}')
        nbwait('B24')
        sliced(cs_fin, 'B24')
        a(f's_mul_i32 s{sT0}, s{sSW}, 448\ns_add_u32 s{sT0}, s{sT0}, {CS3L}\nv_lshl_add_u32 v{T[0]}, v0, 3, s{sT0}')
        earliest('B17')
        a(f'v_cmp_gt_u32 vcc, 56, v0\ns_mov_b64 exec, vcc\nds_write_b64 v{T[0]}, {vr(CSR,2)}\ns_mov_b64 exec, -1\ns_waitcnt lgkmcnt(0)')
        if pf and E('e_p4', 'B13') == 'D': touch(sWO, 16, 8); touch(sW4, 56, 9)
        a(f's_lshl_b32 s7, s{sJ}, 1\ns_add_u32 s7, s7, s{sSW}\ns_lshl_b32 s8, s7, 2\ns_lshl_b32 s7, s7, 12\ns_add_u32 s7, s7, s{sC}\ns_add_u32 s7, s7, {O_OFF}')
        a(f's_lshl_b32 s{sT0}, s{sR}, 7\ns_add_u32 s8, s8, s{sT0}\ns_add_u32 s8, s8, {FL_OFF + FO*4096}\nv_mov_b32 v{VFO}, s8')
        earliest('XA')
        a(f's_lshl_b32 s{sT0}, s{sSW}, 12\ns_add_u32 s{sT0}, s{sT0}, {PQ}\nv_lshl_add_u32 v{T[0]}, v0, 3, s{sT0}')
        for k in range(8): a(f'ds_read_b64 {vr(PQR+2*k,2)}, v{T[0]} offset:{k*512}')
        a('s_waitcnt lgkmcnt(0)')
        earliest(E('e_kvb', 'XA'))
        spin(CF_A, 32, 'OB')
        a(f'v_lshlrev_b32 v{T[0]}, 2, v0\nv_lshrrev_b32 v{T[1]}, 4, v0\nv_lshlrev_b32 v{T[1]}, 4, v{T[1]}')
        for rep in range(NREP):
            a(f's_lshl_b32 s{sT0}, s{sSW}, 11\ns_add_u32 s{sT2}, s{sT0}, s{sD}\ns_add_u32 s{sT2}, s{sT2}, {8192*rep}')
            for k in range(8): a(f'buffer_load_dword v{KVR+16*rep+k}, v{T[0]}, {srd(sWS)}, s{sT2} offen offset:{k*256} sc1')
            a(f's_lshl_b32 s{sT2}, s{sSW}, 7\ns_add_u32 s{sT2}, s{sT2}, s{sD}\ns_add_u32 s{sT2}, s{sT2}, {KV_Z + 8192*rep}')
            for hh in range(2): a(f'buffer_load_dwordx4 {vr(ZR+16*rep+4*hh,4)}, v{T[1]}, {srd(sWS)}, s{sT2} offen offset:{hh*64} sc1')
            if rep == 1: yield_('OB')
        nbwait('OB')
        def kv_sum():
            for k in range(32): a(f'v_add_f32 v{KVR+k}, v{KVR+k}, v{KVR+32+k}')
            for k in range(16): a(f'v_add_f32 v{KVR+k}, v{KVR+k}, v{KVR+16+k}')
            for hh in range(2):
                a(f'v_cvt_pk_bf16_f32 v{AK+2*hh}, v{KVR+4*hh}, v{KVR+4*hh+1}\nv_cvt_pk_bf16_f32 v{AK+2*hh+1}, v{KVR+4*hh+2}, v{KVR+4*hh+3}')
                a(f'v_cvt_pk_bf16_f32 v{AZ+2*hh}, v{ZR+4*hh}, v{ZR+4*hh+1}\nv_cvt_pk_bf16_f32 v{AZ+2*hh+1}, v{ZR+4*hh+2}, v{ZR+4*hh+3}')
        if E('dprio', 1): a(f's_setprio {E("dprio", 1)}')
        sliced(kv_sum, 'OB', E('bgn2', 60))
        def o_compute():
            a('s_setprio 3')
            for k in range(8): a(f'v_mfma_f32_16x16x16_bf16 {vr(DEN+4*k,4)}, {vr(AZ+2*(k>>2),2)}, {vr(PQR+2*k,2)}, 0')
            for k in range(8): a(f'v_mfma_f32_16x16x16_bf16 {vr(NUM+4*k,4)}, {vr(AK+2*(k>>2),2)}, {vr(PQR+2*k,2)}, 0')
            a('s_setprio 0')
            if E('dprio', 1): a(f's_setprio {E("dprio", 1)}')
            for k in range(8): a(f'v_add_f32 v{DEN+4*k}, s{sEPS}, v{DEN+4*k}')
            for k in range(8): a(f'v_rcp_f32 v{DEN+4*k}, v{DEN+4*k}')
            for pr in range(4):
                for k in (2*pr, 2*pr+1):
                    for e in range(4): a(f'v_mul_f32 v{NUM+4*k+e}, v{NUM+4*k+e}, v{DEN+4*k}')
                for u in range(4*pr, 4*pr+4): a(f'v_cvt_pk_bf16_f32 v{OUT+u}, v{NUM+2*u}, v{NUM+2*u+1}')
                a(f'v_permlane16_swap_b32 v{OUT+4*pr}, v{OUT+4*pr+2}\nv_permlane16_swap_b32 v{OUT+4*pr+1}, v{OUT+4*pr+3}')
                a(f'buffer_store_dwordx4 {vr(OUT+4*pr,4)}, v{CELLV}, {srd(sWS)}, s7 offen offset:{(pr>>1)*2048+(pr&1)*512} sc1')
        sliced(o_compute, 'OB', E('bgn3', 40))
        nbwait('OB')
        one_lane(f'buffer_store_dword v{VONE}, v{VFO}, {srd(sWS)}, 0 offen sc1')
        if prof: a(f's_mov_b32 s10, s{sBC}'); earliest('B50')
        else: nbwait('B51')
        if prof:
            a(f's_lshl_b32 s{sT0}, s2, 3\ns_add_u32 s{sT0}, s{sT0}, s{sW}\ns_add_u32 s{sT0}, s{sT0}, 5\ns_lshl_b32 s{sT0}, s{sT0}, 8\ns_add_u32 s{sT0}, s{sT0}, {TS_OFF}')
            a(f'v_mov_b32 v2, s10\nv_mov_b32 v3, 0')
            one_lane(f'buffer_store_dword v2, v3, {srd(sWS)}, s{sT0} offen')
            dump_arrive(0)
        a('s_endpgm')

        a('L_sync:')
        a.vm = []; a.lg = []
        VTS, VTC = 31, 94
        a('s_waitcnt lgkmcnt(0)')
        self.srds(a, skipx=True)
        if prof: a(f'v_mov_b32 v{VTS}, 0\nv_mov_b32 v{VTC}, 0\nv_writelane_b32 v{VTS}, s26, 63')
        nstamp = [0]
        def stamp(last=False):
            if prof:
                if nstamp[0]:
                    a(f's_waitcnt lgkmcnt(0)\nv_writelane_b32 v{VTS}, s{sTSP}, {nstamp[0]-1}\nv_writelane_b32 v{VTC}, s98, {nstamp[0]-1}')
                    a.lg = []
                if not last: a(f's_memrealtime s[{sTSP}:{sTSP+1}]\ns_memtime s[98:99]')
                nstamp[0] += 1
        common_regs()
        a(f's_lshl_b32 s{sT0}, s{sR}, 7\ns_add_u32 s{sT0}, s{sT0}, {FL_OFF}\ns_lshl_b32 s{sT2}, s{sJ}, 2\ns_add_u32 s{sT2}, s{sT2}, s{sT0}\nv_mov_b32 v{VFL}, s{sT2}')
        a(f'v_and_b32 v{VZA}, 7, v0\nv_lshlrev_b32 v{VZA}, 2, v{VZA}\nv_add_u32 v{VFP}, s{sT0}, v{VZA}')
        a(f'v_and_b32 v{VZA}, 15, v0\nv_lshlrev_b32 v{VZA}, 2, v{VZA}\nv_add_u32 v{VFO}, s{sT0}, v{VZA}\nv_and_b32 v{VZA}, 31, v0\nv_lshlrev_b32 v{VZA}, 2, v{VZA}')
        a(f's_cmp_eq_u32 s{sR}, 0\ns_cselect_b32 s{sT2}, 0, -128\ns_cmp_eq_u32 s{sR}, 31\ns_cselect_b32 s{sT3}, 0, 128')
        a(f'v_lshrrev_b32 v{T[3]}, 3, v0\nv_mov_b32 v{T[4]}, 0\nv_mov_b32 v{T[5]}, s{sT2}\nv_mov_b32 v{T[6]}, s{sT3}')
        a(f'v_cmp_eq_u32 vcc, 1, v{T[3]}\nv_cndmask_b32 v{T[4]}, v{T[4]}, v{T[5]}, vcc\nv_cmp_eq_u32 vcc, 2, v{T[3]}\nv_cndmask_b32 v{T[4]}, v{T[4]}, v{T[6]}, vcc')
        a(f'v_add_u32 v{VF3}, v{VFP}, v{T[4]}')
        a(f's_add_u32 s{sT0}, s{sC}, {X1_OFF}\nv_add_u32 v12, s{sT0}, v{CELLV}\nv_subrev_u32 v13, 512, v12')
        stats_setup()
        stamp()
        def touch3(s, rows, dst):
            n = rows // 32
            a(f's_lshr_b32 s{sT0}, s2, 3\ns_mul_i32 s{sT0}, s{sT0}, {n*1024}\ns_add_u32 s{sT0}, s{sT0}, 384')
            a(f'v_lshlrev_b32 v{T[7]}, 10, v0\nv_cmp_gt_u32 vcc, {n}, v0\nv_cndmask_b32 v{T[7]}, v{OB}, v{T[7]}, vcc')
            return a(f'buffer_load_dword v{dst}, v{T[7]}, {srd(s)}, s{sT0} offen')
        def check_issue(vaddr, sr, off):
            a(f's_mov_b32 s{sT0}, {off}\nbuffer_load_dword v{VCK}, v{vaddr}, {srd(sr)}, s{sT0} offen sc1')
        def check_wait(vaddr, sr, off, val):
            L = lab('p')
            a(f's_mov_b32 s{sCNT}, {opt.get("spin", 200000)}\ns_mov_b32 s{sT0}, {off}')
            a(f'{L}:')
            a(f's_waitcnt vmcnt(0)\nv_cmp_ne_u32 vcc, {val}, v{VCK}\ns_sub_u32 s{sCNT}, s{sCNT}, 1\ns_cmp_eq_u32 s{sCNT}, 0\ns_cbranch_vccz {L}d\ns_cbranch_scc1 {L}d')
            a(f'buffer_load_dword v{VCK}, v{vaddr}, {srd(sr)}, s{sT0} offen sc1\ns_branch {L}\n{L}d:')
            a.vm = []
        def poll(vaddr, sr, off, val):
            n = E('pp', 1)
            if n <= 1:
                check_issue(vaddr, sr, off); check_wait(vaddr, sr, off, val); return
            L = lab('q'); R = [VCK, 36, 37, 38][:n]
            ld = lambda r: a(f'buffer_load_dword v{r}, v{vaddr}, {srd(sr)}, s{sT0} offen sc1')
            a(f's_mov_b32 s{sCNT}, {opt.get("spin", 200000)}\ns_mov_b32 s{sT0}, {off}')
            for r in R[:-1]:
                ld(r); a(f's_sleep {E("psl", 2)}')
            a(f'{L}:')
            for k in range(n):
                ld(R[(k - 1) % n])
                a(f's_waitcnt vmcnt({n-1})\nv_cmp_ne_u32 vcc, {val}, v{R[k]}\ns_sub_u32 s{sCNT}, s{sCNT}, 1\ns_cmp_lt_i32 s{sCNT}, 0\ns_cbranch_vccz {L}d\ns_cbranch_scc1 {L}d')
            a(f's_branch {L}\n{L}d:')
            a.vm = []
            for _ in range(n - 1):
                a.ntok += 1; a.vm.append(a.ntok)
        def flag(ftype):
            a(f's_mov_b32 s{sT0}, {ftype*4096}')
            one_lane(f'buffer_store_dword v{VONE}, v{VFL}, {srd(sWS)}, s{sT0} offen sc1')
        XS = 128; xt = {}
        def xs_loads():
            a(f's_lshl_b32 s{sT0}, s{sR}, 13\ns_add_u32 s{sT0}, s{sT0}, {XS_OFF}\ns_add_u32 s{sT2}, s{sT0}, 4096\nv_lshlrev_b32 v{T[0]}, 3, v0')
            for k in range(16):
                xt['s'] = a(f'buffer_load_dwordx2 {vr(XS+2*k,2)}, v{T[0]}, {srd(sWS)}, s{sT0 if k < 8 else sT2} offen offset:{(k&7)*512} sc1')
        def x1_tail():
            for k in range(8):
                a(f's_mov_b32 m0, {32768 + k*4096}\ns_mov_b32 s{sT2}, {32768 + k*4096}')
                for u in range(4): xt[22 + (k >> 2)] = a(f'buffer_load_dwordx4 v{12+(u&1)}, {srd(sWS)}, s{sT2} offen offset:{u*1024} sc1 lds')
        def xs_final(part):
            G = XS + 4; t = XS + 1
            if part == 0:
                a.wait_vm(xt['s'])
                for st in (16, 8, 4, 2):
                    for k in range(st): a(f'v_add_f32 v{XS+k}, v{XS+k}, v{XS+st+k}')
                return
            a(f'v_mul_f32 v{G}, {f2u(-1/512):#x}, v{XS}\nv_mul_f32 v{t}, {f2u(1/512):#x}, v{t}')
            a(f'v_fma_f32 v{t}, -v{G}, v{G}, v{t}\nv_max_f32 v{t}, 0, v{t}\nv_add_f32 v{t}, {f2u(1e-5):#x}, v{t}')
            a(f'v_rsq_f32 v{t+1}, v{t}\nv_sqrt_f32 v{G+3}, v{t}')
            a(f'v_mul_f32 v{G+1}, {f2u(GC0):#x}, v{t+1}\nv_mul_f32 v{t+2}, v{t+1}, v{t+1}\nv_mul_f32 v{t+2}, v{t+2}, v{t+1}\nv_mul_f32 v{G+2}, {f2u(GC1):#x}, v{t+2}')
            a(f'v_lshlrev_b32 v{T[0]}, 4, v0\nv_add_u32 v{T[0]}, {X1P}, v{T[0]}')
            a(f'ds_write_b128 v{T[0]}, {vr(G,4)}\ns_waitcnt lgkmcnt(0)')
        fhb, fxb, hlb = f"B{E('fh_bar', 6)}", f"B{E('fx_bar', 17)}", f"B{E('hl_bar', 11)}"
        for n in BARS:
            if n == 'XA': poll(VFP, sWS, FX1 * 4096, 1)
            if n == 'OB': check_wait(VFO, sWS, FO * 4096, 1)
            if n == hlb: poll(VF3, sWS, FH * 4096, 1)
            if n == 'B38': poll(VFP, sWS, FG * 4096, 1)
            if n in ('B22', 'B23'): a.wait_vm(xt[int(n[1:])])
            arrive(IDX[n]); self.barsS.append(n); a('s_barrier')
            stamp()
            if n == fhb: flag(FH)
            if n == fxb: flag(FX1)
            if n == 'OG': flag(FG)
            if n == fxb: count(CF_A, sR)
            if n == 'XA': xs_loads(); x1_tail()
            if n == 'B2': check_issue(VZA, sDBG, 0)
            if n[0] == 'B': stats_after(int(n[1:]))
            if n == 'B4': check_wait(VZA, sDBG, 0, 1)
            if n == 'B20': xs_final(0)
            if n == 'B21': xs_final(1)
            if n == E('e_foc', 'B34'): check_issue(VFO, sWS, FO * 4096)
            if pf and n == E('e_p4', 'B13'):
                for (sr, nl) in ((sWO, 16), (sW4, 56)):
                    a(f's_mul_i32 s{sT0}, s2, {nl*128}\nv_cmp_gt_u32 vcc, {nl}, v0\nv_cndmask_b32 v{T[7]}, v{OB}, v{T[15]}, vcc\nbuffer_load_dword v9, v{T[7]}, {srd(sr)}, s{sT0} offen')
            if t3:
                if n == E('e_t3q', 'B4'): touch3(sQKV, 1536, 7)
                if n == E('e_t32', 'B7'): touch3(sW2, 512, 8)
                if n == E('e_t33', 'B13'): touch3(sW3, 1792, 10)
                if n == E('e_t33b', 'B24'): touch3(sW3, 1792, 11)
                if n == E('e_t34', 'B30'): touch3(sWO, 512, 11); touch3(sW4, 1792, 11)
                if n == 'B38': touch3(sW4, 1792, 11)
            if n == 'B43' and not prof: break
        if prof:
            stamp(True)
            a(f's_lshl_b32 s{sT0}, s2, 3\ns_add_u32 s{sT0}, s{sT0}, 4\ns_lshl_b32 s{sT0}, s{sT0}, 8\ns_add_u32 s{sT0}, s{sT0}, {TS_OFF}')
            a(f'v_lshlrev_b32 v2, 2, v0\nbuffer_store_dword v{VTS}, v2, {srd(sWS)}, s{sT0} offen\nbuffer_store_dword v{VTC}, v2, {srd(sWS)}, s{sT0} offen offset:256')
            dump_arrive(0)
        a('s_endpgm')

        a('L_loader:')
        a.vm = vmL; a.lg = []
        VX1 = [24, 25]
        self.srds(a, skipx=True, skip1=True)
        mk(VQ, 3072, sT0)
        a(f's_mul_i32 s{sT0}, s{sJ}, 448\ns_and_b32 s{sT4}, s{sJ}, 1\ns_lshl_b32 s{sT2}, s{sT4}, 6\ns_add_u32 s{sT2}, s{sT2}, s{sT0}')
        mk(VW3, 3584, sT2)
        a(f's_cmp_eq_u32 s{sT4}, 0\ns_cselect_b32 s{sT2}, 384, 0\ns_add_u32 s{sT2}, s{sT2}, s{sT0}')
        a(f'v_lshrrev_b32 v{T[6]}, 2, v{pos}\nv_lshlrev_b32 v{T[6]}, 8, v{T[6]}\nv_add_u32 v{row}, v{row}, v{T[6]}')
        a(f'v_and_b32 v{T[3]}, 63, v{T[3]}\nv_and_b32 v{T[4]}, 63, v{T[4]}')
        mk(VHF, 3584, sT2)
        a(f'v_lshrrev_b32 v{T[0]}, 5, v0\nv_and_b32 v{T[1]}, 31, v0\nv_lshlrev_b32 v{T[0]}, 10, v{T[0]}\nv_lshl_add_u32 v{T[0]}, v{T[1]}, 4, v{T[0]}')
        a(f's_lshl_b32 s{sT0}, s{sR}, 16\ns_add_u32 s{sT0}, s{sT0}, {X1_OFF}')
        a(f'v_add_u32 v{VX1[0]}, s{sT0}, v{T[0]}\nv_subrev_u32 v{VX1[1]}, 512, v{VX1[0]}')
        stats_setup()
        x1tok = {}
        def x1_chunk(sg):
            for g in range(4):
                a(f's_mov_b32 m0, {sg*16384 + g*4096}\ns_mov_b32 s{sT2}, {sg*16384 + g*4096}')
                for u in range(4):
                    x1tok[sg] = a(f'buffer_load_dwordx4 v{VX1[u&1]}, {srd(sWS)}, s{sT2} offen offset:{u*1024} sc1 lds')
        for n in BARS:
            b = int(n[1:]) if n[0] == 'B' else None
            if b is not None:
                a.wait_vm(stok[b])
                if b in (20, 21): a.wait_vm(x1tok[b - 20])
            arrive(IDX[n]); self.barsL.append(n); a('s_barrier')
            if n == 'XA': x1_chunk(0); x1_chunk(1)
            if b == 0: issue(2)
            if b == 1: issue(3); issue(4)
            if b in (2, 3): stats_after(b)
            for st in ISSUE.get(b if b is not None else n, []): issue(st)
            if b in (0, 1): stats_after(b)
        dump_arrive(0)
        a('s_endpgm')

    def build(self):
        a = Asm()
        self.prologue(a)
        self.helper(a)
        a.lg = []; a.vm = []
        a('L_compute:')
        self.compute(a)
        a('L_end:\ns_endpgm')
        assert self.barsC[:-1] == self.barsL and self.barsC[-1] == 'RB2' and self.barsL[:len(self.barsS)] == self.barsS, (self.barsC, self.barsL, self.barsS)
        if self.opt.get('align', 3): self.alstat = align_pass(a, KNAME + ':\n', self.opt.get('align', 3))
        ref = open(f'cdna_kernels/{KNAME[:-7]}.s.ref').read().split('\n')
        head = [l for l in ref if l.startswith(';') and '@launch' not in l]
        out = '\n'.join(head) + '\n; @launch grid=(256,1,1) block=(512,1,1) lds=163840\n'
        out += f'.amdgcn_target "amdgcn-amd-amdhsa--gfx950"\n.text\n.globl {KNAME}\n.p2align 8\n.type {KNAME},@function\n{KNAME}:\n'
        out += a.text()
        out += f'''.section .rodata,"a"
.p2align 6
.amdhsa_kernel {KNAME}
  .amdhsa_next_free_vgpr 256
  .amdhsa_next_free_sgpr 102
  .amdhsa_accum_offset 256
  .amdhsa_group_segment_fixed_size 0
  .amdhsa_kernarg_size 88
  .amdhsa_user_sgpr_count 2
  .amdhsa_user_sgpr_kernarg_segment_ptr 1
  .amdhsa_system_sgpr_workgroup_id_x 1
.end_amdhsa_kernel
'''
        return out, a


def generate(**opt):
    g = Gen(opt)
    return g.build()[0]

if __name__ == '__main__':
    opt = {}
    for arg in sys.argv[2:]:
        k, v = arg.split('=')
        opt[k] = int(v) if v.lstrip('-').isdigit() else v
    g = Gen(opt)
    txt, a = g.build()
    open(sys.argv[1], 'w').write(txt)
    print('instructions', len(a.ins), 'pads', a.npad, 'align', getattr(g, 'alstat', None), 'issue', ISSUE)
```

```python
import sys, math, struct
sys.path.insert(0, 'dev')
from asmlib import Asm, align_pass

KNAME = 'parallel_sum__linear_attn_block__mixer_s_mlp__prompt_kernel'

H_OFF, X1_OFF, O_OFF, G_OFF = 0x000000, 0x200000, 0x400000, 0x600000
KV_OFF, FL_OFF, XS_OFF, TS_OFF = 0xE00000, 0xD10000, 0xD20000, 0x1000000
CF_OFF = 0xD00000
WS_BYTES = 0x1200000
KVP, KV_Z, KV_FIN, KV_CS = 4608, 4096, 0x24000, 0x28000
CF_CS, CF_A, CF_B = 0, 1024, 2048
NREP = 4
FH, FX1, FO, FG0, FG1, FG2 = 0, 1, 2, 3, 4, 5
GBLK = 229376
RING = 0x10000
SC = 0x24000
S1, S2, NMU, RHO, RHL = SC, SC + 1024, SC + 2048, SC + 2304, SC + 2560
PQ, X1P, CS3L = SC, SC + 9216, SC + 10240
OOB = 0x80000000

def f2u(x): return struct.unpack('<I', struct.pack('<f', x))[0]
LOG2E = 1.4426950408889634
GC0 = -2.0 * math.sqrt(2.0 / math.pi) * LOG2E
GC1 = GC0 * 0.044715

sX, sQKV, sWO, sW1, sW2, sW3, sW4, sOUT, sWS, sDBG = 28, 32, 36, 40, 44, 48, 52, 56, 60, 64
sR, sJ, sW, sTH, sHI = 68, 69, 70, 71, 72
sT0, sT1, sT2, sT3, sT4, sT5 = 73, 74, 75, 76, 77, 78
sEPS = 80
sONE, sSEL0, sSEL1 = 82, 83, 84
sA, sB, sC, sD = 85, 86, 87, 88
sI0 = 79
sCODE = 92
sCNT = 90
sROT = 89
sRG = 3
sKG = 22
sKC = 96
sBG = 91
sK1, sK3, sK5, sKX = 92, 96, 4, 18
sTSP = 100

def srd(n): return f's[{n}:{n+3}]'
def vr(n, k=1): return f'v{n}' if k == 1 else f'v[{n}:{n+k-1}]'

STAGES = ([('w1', s) for s in range(4)] + [('kv', s) for s in range(8)] + [('w2', s) for s in range(4)] +
          [('wq', s) for s in range(4)] + [('p0', s) for s in range(4)] + [('hf', s) for s in range(2)] +
          [('p1', s) for s in range(4)] + [('p2', s) for s in range(4)] +
          [])
STAGES0 = list(STAGES)
def set_order(order):
    STAGES[:] = STAGES0 + [(k, s) for k in order.split('.') for s in range(2 if k == 'gh' else 4)]
set_order('g0.g1.gh.wo.g2')
def g_rows(kind, s):
    if kind == 'gh': return 896 * s + 192, 896 * s + 640
    p = int(kind[1])
    return 448 * s + 64 * p, 448 * s + 256 + 64 * p
NST = len(STAGES)
AREL = 27

def plan_slots(opt):
    free = [RING + i * 0x4000 for i in range(5)]
    slot = {}; issue = {}
    quota = {13: opt.get('q13', 0), 16: opt.get('q16', 1), 17: 2, 24: 2, 27: 1, 30: opt.get('q30', 3), 34: opt.get('q34', 1)}
    jit = opt.get('jit', 4)
    regs = [int(x) for x in str(opt.get('regs', '')).split('.') if x]
    nxt = 0
    def drain(key, q, b):
        nonlocal nxt
        while free and nxt < NST and (nxt in regs or ((q > 0 or nxt <= b + 2) and not (b >= 35 and nxt > b + jit))):
            slot[nxt] = free.pop(0); issue.setdefault(key, []).append(nxt); q -= nxt not in regs; nxt += 1
    drain(-1, 5, -1)
    for b in range(NST):
        if b == 20:
            free.extend([slot[18], slot[19]]); drain('QE', 2, 19)
        if b >= 2 and b not in (20, 21): free.append(slot[b - 2])
        if b == AREL: free.extend([0, 0x4000, 0x8000, 0xC000])
        if b == 15 and opt.get('rb17', 1): drain('RB1', quota.get(b, 1), b)
        else: drain(b, quota.get(b, 1), b)
    assert nxt == NST
    return slot, issue


class Gen:
    def __init__(self, opt):
        self.opt = opt
        self.barsC = []; self.barsS = []; self.barsL = []; self.dnames = []
        global SLOT, ISSUE
        set_order(opt.get('order', 'g0.g1.gh.g2.wo' if opt.get('kv2', 0) else 'g0.wo.g1.gh.g2'))
        SLOT, ISSUE = plan_slots(opt)

    def prologue(self, a):
        a('s_cmp_ge_u32 s2, 256\ns_cbranch_scc1 L_end')
        a('s_load_dwordx16 s[4:19], s[0:1], 0\ns_load_dwordx4 s[20:23], s[0:1], 64\ns_load_dwordx2 s[24:25], s[0:1], 80')
        if self.opt.get('prof'):
            a(f's_memrealtime s[26:27]\ns_memtime s[90:91]')
        m = self.opt.get('map', 'h4')
        if m == 'same':
            a(f's_and_b32 s{sR}, s2, 7\ns_lshr_b32 s{sT0}, s2, 6\ns_lshl_b32 s{sT0}, s{sT0}, 3\ns_or_b32 s{sR}, s{sR}, s{sT0}')
            a(f's_lshr_b32 s{sJ}, s2, 3\ns_and_b32 s{sJ}, s{sJ}, 7')
        elif m == 'h4':
            a(f's_and_b32 s{sR}, s2, 3\ns_lshr_b32 s{sT0}, s2, 5\ns_lshl_b32 s{sT0}, s{sT0}, 2\ns_or_b32 s{sR}, s{sR}, s{sT0}')
            a(f's_lshr_b32 s{sJ}, s2, 2\ns_and_b32 s{sJ}, s{sJ}, 7')
        elif m == 'cross':
            a(f's_lshr_b32 s{sR}, s2, 3\ns_and_b32 s{sJ}, s2, 7')
        a('v_lshrrev_b32 v1, 6, v0\nv_and_b32 v0, 63, v0')
        a(f'v_readfirstlane_b32 s{sT1}, v1')
        a(f's_mov_b32 s{sX+2}, {2<<20}\ns_mov_b32 s{sX+3}, 0x20000')
        a(f's_and_b32 s{sW}, s{sT1}, 3\ns_and_b32 s{sTH}, s{sT1}, 1\ns_lshr_b32 s{sHI}, s{sW}, 1')
        sh = {'same': 3, 'h4': 2, 'cross': 5}[m] if self.opt.get('rot2', 0) else 8
        a(f's_lshr_b32 s{sROT}, s{sR}, {sh}\ns_add_u32 s{sROT}, s{sROT}, s{sR}\ns_add_u32 s{sROT}, s{sROT}, s{sJ}\ns_and_b32 s{sROT}, s{sROT}, 3')
        sh2 = {'same': 3, 'h4': 2, 'cross': 5}[m]
        if self.opt.get('rotg', 1): a(f's_lshr_b32 s{sRG}, s{sR}, {sh2}\ns_add_u32 s{sRG}, s{sRG}, s{sJ}\ns_and_b32 s{sRG}, s{sRG}, 3')
        else: a(f's_mov_b32 s{sRG}, 0')
        a(f's_cmp_lt_u32 s{sT1}, 4\ns_cbranch_scc1 L_compute')

    def srds(self, a, skipx=False, skip1=False):
        a(f's_mov_b32 s{sEPS}, {f2u(1e-6):#x}\ns_mov_b32 s{sEPS+1}, {f2u(1e-6):#x}\ns_mov_b32 s{sONE}, 0x3f803f80')
        for (s, p, n) in ((sX, 4, 2 << 20), (sW1, 12, 512 * 1024), (sQKV, 6, 512 * 3072), (sWO, 8, 512 * 1024), (sW2, 14, 512 * 1024),
                          (sW3, 16, 512 * 3584), (sW4, 18, 1792 * 1024), (sOUT, 20, 2 << 20), (sWS, 24, WS_BYTES), (sDBG, 22, 256)):
            if s == sX and skipx: continue
            if s == sW1 and skip1: continue
            a(f's_mov_b32 s{s}, s{p}\ns_and_b32 s{s+1}, s{p+1}, 0xffff\ns_mov_b32 s{s+2}, {n}\ns_mov_b32 s{s+3}, 0x20000')

    def run_steps(self, a, steps):
        n = len(steps)
        sched = {}
        for i, s in enumerate(steps):
            sched.setdefault(s['at'], []).append(i)
        def items(i):
            s = steps[i]
            out = []
            if s.get('pre'): out.append(('pre', i))
            out += [('rd', i, t) for t in s['reads']]
            return out
        def emit(it):
            if it[0] == 'pre':
                steps[it[1]]['pre']()
            elif it[0] == 'rd':
                steps[it[1]]['tok'] = a(it[2])
            else:
                it[1]()
        for i in sched.get(-1, []):
            for it in items(i): emit(it)
        for k in range(n):
            s = steps[k]
            if s.get('hook'): s['hook']()
            pend = []
            for i in sched.get(k, []):
                if i == k:
                    for it in items(i): emit(it)
                else:
                    pend += items(i)
            pend += [('post', f) for f in s.get('post', [])]
            vt = s['vm']() if s.get('vm') else None
            a.wait_both(s.get('tok'), vt)
            nm = len(s['mfmas'])
            per = -(-len([p for p in pend if p[0] != 'pre']) // nm) if pend else 0
            for mi, m in enumerate(s['mfmas']):
                a(m)
                if s.get('tail') and s['tail'][mi]: s['tail'][mi]()
                c = 0
                while pend and (c < per or mi == nm - 1):
                    it = pend.pop(0)
                    emit(it)
                    if it[0] != 'pre': c += 1

    def barC(self, a, name):
        self.barsC.append(name); a('s_barrier')

    def gelu(self, a, pairs, tmp, after_first=None):
        P = lambda r: vr(r, 2)
        for i, (ac, cs, st, o) in enumerate(pairs):
            a(f'v_pk_fma_f32 {P(ac)}, {P(cs)}, {P(st)}, {P(ac)} op_sel:[0,0,0] op_sel_hi:[1,0,1]')
        if after_first: after_first()
        for i, (ac, cs, st, o) in enumerate(pairs):
            a(f'v_pk_mul_f32 {P(tmp+2*i)}, {P(ac)}, {P(ac)}')
        for i, (ac, cs, st, o) in enumerate(pairs):
            a(f'v_pk_fma_f32 {P(tmp+2*i)}, {P(tmp+2*i)}, {P(st+2)}, {P(st)} op_sel:[0,0,1] op_sel_hi:[1,0,1]')
        for i, (ac, cs, st, o) in enumerate(pairs):
            a(f'v_pk_mul_f32 {P(tmp+2*i)}, {P(tmp+2*i)}, {P(ac)}')
        for i in range(2 * len(pairs)):
            a(f'v_exp_f32_e64 v{tmp+i}, v{tmp+i}')
        for i, (ac, cs, st, o) in enumerate(pairs):
            a(f'v_pk_fma_f32 {P(tmp+2*i)}, {P(tmp+2*i)}, {P(st+2)}, {P(st+2)} op_sel:[0,1,1] op_sel_hi:[1,1,1]')
        for i in range(2 * len(pairs)):
            a(f'v_rcp_f32_e64 v{tmp+i}, v{tmp+i}')
        for i, (ac, cs, st, o) in enumerate(pairs):
            a(f'v_pk_mul_f32 {P(tmp+2*i)}, {P(tmp+2*i)}, {P(ac)}')
        for i, (ac, cs, st, o) in enumerate(pairs):
            a(f'v_cvt_pk_bf16_f32 v{o}, v{tmp+2*i}, v{tmp+2*i+1}')

    def phi_tail(self, a, acs, outs, tmp):
        P = lambda r: vr(r, 2)
        n = len(acs)
        for i in range(2 * n): a(f'v_exp_f32_e64 v{tmp+i}, v{tmp+i} clamp')
        for ac in acs:
            a(f'v_max_f32_e64 v{ac}, v{ac}, s{sEPS}\nv_max_f32_e64 v{ac+1}, v{ac+1}, s{sEPS}')
        for i, ac in enumerate(acs): a(f'v_pk_add_f32 {P(ac)}, {P(ac)}, {P(tmp+2*i)}')
        for i, ac in enumerate(acs): a(f'v_cvt_pk_bf16_f32 v{outs[i]}, v{ac}, v{ac+1}')

    def compute(self, a):
        opt = self.opt
        P = lambda r: vr(r, 2)
        XB = [2, 3, 4, 5]; PAT16, WK16 = 6, 7
        PATN = [8, 9]; PATP = [10, 11, 12, 13]; PAT3 = [14, 15]
        WK = [16, 17, 18, 19]
        CELLV, CELLT, LL16, RDX = 20, 21, 22, 23
        RES = 24; QST = 40; PST = 196
        ONES = 56
        STA, STB, XE, PSA = 1, 54, 19, 18
        HV = [252, 253, 254, 255]
        T = [240 + i for i in range(12)]
        q, i16, rr, c, h, t32, fsub = 228, 229, 230, 231, 232, 233, 234
        a(f'v_lshrrev_b32 v{q}, 4, v0\nv_and_b32 v{i16}, 15, v0\nv_lshrrev_b32 v{rr}, 2, v{i16}\nv_and_b32 v{c}, 3, v0')
        a(f'v_lshrrev_b32 v{h}, 5, v0\nv_and_b32 v{t32}, 31, v0\nv_and_b32 v{fsub}, 1, v{q}')
        a(f'v_lshlrev_b32 v{LL16}, 4, v0')
        a(f'v_lshlrev_b32 v{T[2]}, 3, v0')
        a(f's_lshr_b32 s{sT3}, s2, 3\ns_lshl_b32 s{sT3}, s{sT3}, 2\ns_add_u32 s{sT3}, s{sT3}, s{sW}\ns_lshl_b32 s{sT3}, s{sT3}, 9')
        a(f's_getpc_b64 s[{sCODE}:{sCODE+1}]\nL_pc:\ns_sub_u32 s{sCODE}, s{sCODE}, L_pc-{KNAME}\ns_subb_u32 s{sCODE+1}, s{sCODE+1}, 0')
        a(f's_and_b32 s{sCODE+1}, s{sCODE+1}, 0xffff\ns_mov_b32 s{sCODE+2}, L_end-{KNAME}\ns_mov_b32 s{sCODE+3}, 0x20000')
        if opt.get('cpf', 1): a(f'buffer_load_dword v24, v{T[2]}, {srd(sCODE)}, s{sT3} offen')
        if opt.get('t0', 0):
            a(f's_lshl_b32 s{sT0}, s{sR}, 3\ns_add_u32 s{sT0}, s{sT0}, s{sJ}\ns_lshl_b32 s{sT0}, s{sT0}, 2\ns_add_u32 s{sT0}, s{sT0}, s{sW}\ns_lshl_b32 s{sT2}, s{sT0}, 9\ns_lshl_b32 s{sT0}, s{sT0}, 11')
            a(f'v_lshlrev_b32 v{T[3]}, 5, v0\ns_mov_b32 s{sW1+2}, {512*1024}\ns_mov_b32 s{sW1+3}, 0x20000')
        a('s_waitcnt lgkmcnt(0)')
        if opt.get('t0', 0):
            a(f's_mov_b32 s{sX}, s4\ns_and_b32 s{sX+1}, s5, 0xffff\nbuffer_load_dword v25, v{T[3]}, {srd(sX)}, s{sT0} offen')
            a(f's_mov_b32 s{sW1}, s12\ns_and_b32 s{sW1+1}, s13, 0xffff\nbuffer_load_dword v26, v{T[2]}, {srd(sW1)}, s{sT2} offen')
        self.srds(a)
        a(f's_lshr_b32 s{sT0}, s{sR}, 2\ns_or_b32 s{sT0}, s{sT0}, s{sW}\ns_cmp_lg_u32 s{sT0}, 0\ns_cbranch_scc1 L_nozero')
        vm0 = list(a.vm)
        a(f'v_mov_b32 v{T[4]}, 0\nv_mov_b32 v{T[5]}, 0\nv_mov_b32 v{T[6]}, 0\nv_mov_b32 v{T[7]}, 0')
        a(f's_lshl_b32 s{sT3}, s{sJ}, 2\ns_add_u32 s{sT3}, s{sT3}, s{sR}')
        a(f's_lshl_b32 s{sT0}, s{sT3}, 10\ns_add_u32 s{sT0}, s{sT0}, {CF_OFF}')
        a(f'buffer_store_dwordx4 {vr(T[4],4)}, v{LL16}, {srd(sWS)}, s{sT0} offen sc1')
        a(f's_lshl_b32 s{sT0}, s{sJ}, 18\ns_lshl_b32 s{sT2}, s{sR}, 13\ns_add_u32 s{sT0}, s{sT0}, s{sT2}\ns_add_u32 s{sT0}, s{sT0}, {KV_OFF}\ns_add_u32 s{sT2}, s{sT0}, 4096')
        for u in range(0 if opt.get('kv2', 0) else 5):
            a(f'buffer_store_dwordx4 {vr(T[4],4)}, v{LL16}, {srd(sWS)}, s{sT0 if u < 4 else sT2} offen offset:{(u&3)*1024} sc1')
        a(f'v_lshlrev_b32 v{T[8]}, 12, v{q}\nv_lshl_add_u32 v{T[8]}, v{i16}, 3, v{T[8]}')
        a(f's_lshl_b32 s{sT0}, s{sT3}, 7\ns_add_u32 s{sT0}, s{sT0}, {FL_OFF}')
        a(f'buffer_store_dwordx2 {vr(T[4],2)}, v{T[8]}, {srd(sWS)}, s{sT0} offen sc1\ns_add_u32 s{sT0}, s{sT0}, 16384')
        a(f'buffer_store_dwordx2 {vr(T[4],2)}, v{T[8]}, {srd(sWS)}, s{sT0} offen sc1')
        a(f'v_mov_b32 v{T[9]}, 1\ns_lshl_b32 s{sT0}, s{sT3}, 2\nv_mov_b32 v{T[10]}, s{sT0}')
        a.wait_vm0()
        a('s_mov_b64 exec, 1')
        a(f'buffer_store_dword v{T[9]}, v{T[10]}, {srd(sDBG)}, 0 offen sc1')
        a('s_mov_b64 exec, -1')
        a('L_nozero:')
        a.vm = vm0
        a(f'v_mov_b32 v{T[1]}, {OOB}')
        for m in range(4):
            a(f'v_or_b32 v{T[0]}, {4*m}, v{q}\nv_xor_b32 v{T[0]}, v{T[0]}, v{i16}\nv_lshlrev_b32 v{T[0]}, 4, v{T[0]}')
            a(f'v_lshl_add_u32 v{XB[m]}, v{i16}, 8, v{T[0]}')
        a(f'v_lshrrev_b32 v{T[4]}, 1, v{rr}\nv_lshlrev_b32 v{T[4]}, 2, v{T[4]}\nv_lshrrev_b32 v{T[5]}, 1, v{c}')
        a(f'v_and_b32 v{T[6]}, 1, v{c}\nv_lshlrev_b32 v{T[6]}, 3, v{T[6]}')
        a(f's_lshl_b32 s{sT0}, s{sW}, 1\nv_add_u32 v{T[7]}, s{sT0}, v{T[5]}\nv_xor_b32 v{T[7]}, v{T[7]}, v{T[4]}')
        a(f'v_lshlrev_b32 v{T[8]}, 1, v{fsub}\nv_xor_b32 v{T[7]}, v{T[7]}, v{T[8]}\nv_lshl_add_u32 v{T[7]}, v{T[7]}, 4, v{T[6]}')
        a(f'v_lshl_add_u32 v{T[9]}, v{q}, 3, v{rr}\nv_lshl_add_u32 v{PAT16}, v{T[9]}, 7, v{T[7]}')
        a(f's_lshl_b32 s{sT0}, s{sHI}, 2\nv_add3_u32 v{T[7]}, s{sT0}, v{T[8]}, v{T[5]}\nv_xor_b32 v{T[7]}, v{T[7]}, v{T[4]}')
        a(f's_lshl_b32 s{sT2}, s{sHI}, 13')
        a(f'v_lshlrev_b32 v{T[9]}, 1, v{h}\nv_xor_b32 v{T[9]}, v{T[9]}, v{T[7]}\nv_lshl_add_u32 v{T[9]}, v{T[9]}, 4, v{T[6]}')
        a(f'v_lshl_add_u32 v{T[10]}, v{h}, 3, v{rr}\nv_lshl_add_u32 v{T[9]}, v{T[10]}, 7, v{T[9]}')
        a(f'v_add_u32 v{PATN[0]}, s{sT2}, v{T[9]}\nv_xor_b32 v{PATN[1]}, 64, v{PATN[0]}')
        a(f'v_lshl_add_u32 v{T[9]}, v{T[7]}, 4, v{T[6]}\nv_lshl_add_u32 v{T[10]}, v{h}, 2, v{rr}\nv_lshl_add_u32 v{PAT3[0]}, v{T[10]}, 7, v{T[9]}')
        a(f'v_xor_b32 v{PAT3[1]}, 32, v{PAT3[0]}\nv_add_u32 v{PAT3[1]}, 1024, v{PAT3[1]}')
        a(f'v_add_u32 v{PATP[0]}, s{sT2}, v{PAT3[0]}\nv_add_u32 v{PATP[1]}, s{sT2}, v{PAT3[1]}')
        a(f'v_xor_b32 v{PATP[2]}, 64, v{PATP[0]}\nv_xor_b32 v{PATP[3]}, 64, v{PATP[1]}')
        a(f'v_lshlrev_b32 v{CELLV}, 10, v{h}\nv_lshl_add_u32 v{CELLV}, v{t32}, 4, v{CELLV}')
        a(f's_lshl_b32 s{sT0}, s{sTH}, 9\nv_add_u32 v{CELLT}, s{sT0}, v{CELLV}')
        for i in range(4): a(f'v_mov_b32 v{ONES+i}, s{sONE}')
        a(f's_lshl_b32 s{sT0}, s{sTH}, 5\nv_add_u32 v{T[0]}, s{sT0}, v{t32}')
        a(f's_lshl_b32 s{sT2}, s{sHI}, 13\nv_lshl_add_u32 v{T[2]}, v{h}, 10, s{sT2}')
        rot = opt.get('rot', 0)
        for g in range(4):
            if rot: a(f's_add_u32 s{sT0}, s{sROT}, {g}\ns_and_b32 s{sT0}, s{sT0}, 3')
            else: a(f's_mov_b32 s{sT0}, {g}')
            a(f's_lshl_b32 s{sKC+g}, s{sT0}, 14\ns_lshr_b32 s{sT3}, s{sT0}, 1\ns_add_u32 s{sT3}, s{sT3}, 1\ns_sub_u32 s{sT4}, 0, s{sT3}\ns_bitcmp1_b32 s{sT0}, 0\ns_cselect_b32 s{sT3}, s{sT3}, s{sT4}')
            a(f'v_add_u32 v{T[3]}, s{sT3}, v{T[0]}\nv_ashrrev_i32 v{T[4]}, 6, v{T[3]}\nv_add_u32 v{T[4]}, s{sR}, v{T[4]}')
            a(f'v_and_b32 v{T[3]}, 63, v{T[3]}\nv_lshl_add_u32 v{T[3]}, v{T[3]}, 4, v{T[2]}\nv_lshl_add_u32 v{T[3]}, v{T[4]}, 16, v{T[3]}\nv_add_u32 v{T[3]}, s{sKC+g}, v{T[3]}')
            a(f'v_cmp_gt_u32 vcc, 32, v{T[4]}\nv_cndmask_b32 v{HV[g]}, v{T[1]}, v{T[3]}, vcc')
        a(f'v_lshlrev_b32 v{STA}, 4, v{i16}\nv_add_u32 v{STA}, {SC}, v{STA}')
        a(f'v_lshlrev_b32 v{STB}, 4, v{q}\nv_add_u32 v{STB}, {NMU}, v{STB}')
        a(f'v_lshlrev_b32 v{PSA}, 4, v{T[0]}\nv_add_u32 v{PSA}, {S2}, v{PSA}')
        a(f's_and_b32 s{sT0}, s{sJ}, 1\ns_lshl_b32 s{sT0}, s{sT0}, 3\ns_lshl_b32 s{sT2}, s{sHI}, 2\ns_add_u32 s{sT0}, s{sT0}, s{sT2}')
        a(f's_lshr_b32 s{sT2}, s{sJ}, 1\ns_sub_u32 s{sT2}, s{sT2}, s{sROT}\ns_and_b32 s{sT2}, s{sT2}, 3\ns_lshl_b32 s{sT2}, s{sT2}, 14')
        a(f'v_xor_b32 v{XE}, s{sT0}, v{i16}\nv_lshlrev_b32 v{XE}, 4, v{XE}\nv_lshl_add_u32 v{XE}, v{h}, 3, v{XE}\nv_lshl_add_u32 v{XE}, v{T[0]}, 8, v{XE}\nv_add_u32 v{XE}, s{sT2}, v{XE}')
        a(f's_xor_b32 s{sT0}, s{sW}, 2\ns_lshl_b32 s{sT0}, s{sT0}, 12\ns_add_u32 s{sT0}, s{sT0}, {SC}\nv_add_u32 v{RDX}, s{sT0}, v{LL16}')
        a(f's_lshl_b32 s{sA}, s{sR}, 16')
        a(f's_lshl_b32 s{sT0}, s{sJ}, 2\ns_add_u32 s{sT0}, s{sT0}, s{sW}\ns_lshl_b32 s{sT0}, s{sT0}, 11\ns_add_u32 s{sB}, s{sA}, s{sT0}')
        if opt.get('kv2', 0): a(f's_mul_i32 s{sT0}, s{sR}, {KVP}')
        else: a(f's_and_b32 s{sT0}, s{sR}, 3\ns_lshl_b32 s{sT0}, s{sT0}, 13')
        a(f's_lshl_b32 s{sC}, s{sJ}, 18\ns_add_u32 s{sC}, s{sC}, s{sT0}\ns_add_u32 s{sC}, s{sC}, {KV_OFF}')
        a(f's_mul_i32 s{sD}, s{sR}, {GBLK}\ns_add_u32 s{sD}, s{sD}, {G_OFF}')

        def cst(k):
            if opt.get('prof') in (1, 2) and opt.get('cset', 0) == k // 8: a(f's_memrealtime s[{4+2*(k%8)}:{5+2*(k%8)}]')
        def stage_pre(st, wks, pats, extra=None, after=None):
            def f():
                if extra: extra()
                self.barC(a, f'B{st}')
                for wk, pt in zip(wks, pats):
                    a(f'v_add_u32 v{wk}, {SLOT[st]}, v{pt}')
                if after: after()
            return f

        def steps_q(first, acc, cs, sets, base_at):
            st = []
            for ks in range(16):
                sb = sets[ks % 3]; stg = first + ks // 4
                reads = [f'ds_read_b64_tr_b16 {vr(sb+16,2)}, v{WK16} offset:{(ks%4)*4096}',
                         f'ds_read_b64_tr_b16 {vr(sb+18,2)}, v{WK16} offset:{(ks%4)*4096+512}']
                reads += [f'ds_read_b128 {vr(sb+4*tt,4)}, v{XB[ks&3]} offset:{tt*4096+(ks>>2)*16384}' for tt in range(4)]
                mf = [f'v_mfma_f32_16x16x32_bf16 {vr(cs,4)}, {vr(sb+16,4)}, {vr(ONES,4)}, {vr(cs,4) if ks else 0}']
                mf += [f'v_mfma_f32_16x16x32_bf16 {vr(acc+4*tt,4)}, {vr(sb+16,4)}, {vr(sb+4*tt,4)}, {vr(acc+4*tt,4) if ks else 0}' for tt in range(4)]
                st.append(dict(reads=reads, mfmas=mf, at=base_at + ks - 2, stage=stg if ks % 4 == 0 else None))
            return st

        HACC, HCS, HSETS = 60, 76, [80, 100, 120]
        KACC, VACC, KCS, VCS, KSETS = 140, 156, 172, 176, [180, 204]
        HF = 60; P2ACC = 140
        steps = steps_q(0, HACC, HCS, HSETS, 0)
        steps[0]['at'] = -1; steps[1]['at'] = -1
        for s in steps:
            if s['stage'] is not None: s['pre'] = stage_pre(s['stage'], [WK16], [PAT16])
        nh = len(steps)

        htok = {}
        HST = 80
        def h_stats_reads():
            for tt in range(4):
                htok['s'] = a(f'ds_read_b128 {vr(228+4*tt,4)}, v{STA} offset:{tt*256}')
        def h_epilogue():
            ST = 228; TMP = 100; OUT = 116
            a.wait_lg(htok['s'])
            pairs = [(HACC + 2*u, HCS + 2*(u & 1), ST + 4*(u >> 1), OUT + u) for u in range(8)]
            self.gelu(a, pairs, TMP)
            for pr in range(2):
                a(f'v_permlane16_swap_b32 v{OUT+4*pr}, v{OUT+4*pr+2}\nv_permlane16_swap_b32 v{OUT+4*pr+1}, v{OUT+4*pr+3}')
                htok['st'] = a(f'buffer_store_dwordx4 {vr(OUT+4*pr,4)}, v{CELLV}, {srd(sWS)}, s{sB} offen offset:{pr*512} sc1')
            cst(0)

        hl = {}; xp = {}
        def hload(n):
            sg, i = n // 4, n % 4
            if i % 2 == 0: a(f's_mov_b32 s{sI0}, {H_OFF + (i>>1)*4096}')
            hl[n] = a(f'buffer_load_dwordx4 {vr(HF+4*n,4)}, v{HV[sg]}, {srd(sWS)}, s{sI0} offen offset:{(i&1)*2048} sc1')
        for ks in range(16):
            sb = KSETS[ks % 2]; stg = 4 + ks // 2
            o = (ks % 2) * 4096
            reads = [f'ds_read_b64_tr_b16 {vr(sb+16,2)}, v{WK16} offset:{o}', f'ds_read_b64_tr_b16 {vr(sb+18,2)}, v{WK16} offset:{o+512}',
                     f'ds_read_b128 {vr(sb,4)}, v{XB[ks&3]} offset:{(ks>>2)*16384}',
                     f'ds_read_b64_tr_b16 {vr(sb+20,2)}, v{WK16} offset:{o+8192}', f'ds_read_b64_tr_b16 {vr(sb+22,2)}, v{WK16} offset:{o+8192+512}']
            reads += [f'ds_read_b128 {vr(sb+4*tt,4)}, v{XB[ks&3]} offset:{tt*4096+(ks>>2)*16384}' for tt in range(1, 4)]
            mf = [f'v_mfma_f32_16x16x32_bf16 {vr(KCS,4)}, {vr(ONES,4)}, {vr(sb+16,4)}, {vr(KCS,4) if ks else 0}',
                  f'v_mfma_f32_16x16x32_bf16 {vr(VCS,4)}, {vr(ONES,4)}, {vr(sb+20,4)}, {vr(VCS,4) if ks else 0}']
            for tt in range(4):
                mf.append(f'v_mfma_f32_16x16x32_bf16 {vr(KACC+4*tt,4)}, {vr(sb+4*tt,4)}, {vr(sb+16,4)}, {vr(KACC+4*tt,4) if ks else 0}')
                mf.append(f'v_mfma_f32_16x16x32_bf16 {vr(VACC+4*tt,4)}, {vr(sb+4*tt,4)}, {vr(sb+20,4)}, {vr(VACC+4*tt,4) if ks else 0}')
            s = dict(reads=reads, mfmas=mf, at=nh + ks - 1)
            if ks % 2 == 0:
                extra = after = None
                if stg == opt.get('fh_bar', 6): extra = lambda: (a.wait_vm(htok['st']), cst(1))
                if stg == opt.get('hl_bar', 11): after = lambda: a.inject([lambda n=n: hload(n) for n in range(16)], opt.get('hl_every', 16))
                if stg == 4: after = h_stats_reads
                if stg == opt.get('hl_bar', 11) - 1: after = lambda: xn_prep()
                if stg == opt.get('hl_bar', 11): extra = lambda: xn_prep2()
                s['pre'] = stage_pre(stg, [WK16], [PAT16], extra, after)
            steps.append(s)
        kr0, kp0 = steps[nh]['reads'], steps[nh]['pre']
        steps[nh]['reads'] = []; steps[nh]['pre'] = None
        def h_hook():
            kp0()
            for t in kr0: steps[nh]['tok'] = a(t)
            h_epilogue()
        steps[nh]['hook'] = h_hook
        nkv = len(steps)

        ASETS = [228, 236, 244]
        def steps_ks(first, nstage, pats, natural, acc, bfrag, asets, base, setphase=0, init=True, c_init=None):
            st = []
            for n in range(4 * nstage):
                stg = first + n // 4; i = n % 4
                sb = asets[(n + setphase) % 3]
                reads = []
                for t in range(2):
                    for rd in range(2):
                        if natural:
                            reads.append(f'ds_read_b64_tr_b16 {vr(sb+4*t+2*rd,2)}, v{WK[t]} offset:{i*2048+rd*512}')
                        else:
                            reads.append(f'ds_read_b64_tr_b16 {vr(sb+4*t+2*rd,2)}, v{WK[2*t+rd]} offset:{i*2048}')
                b = bfrag(n)
                c0 = vr(acc if (n or c_init is None) else c_init, 16)
                c1 = vr(acc + 16, 16) if (n or not init) else 0
                mf = [f'v_mfma_f32_32x32x16_bf16 {vr(acc,16)}, {vr(sb,4)}, {vr(b,4)}, {c0}',
                      f'v_mfma_f32_32x32x16_bf16 {vr(acc+16,16)}, {vr(sb+4,4)}, {vr(b,4)}, {c1}']
                s = dict(reads=reads, mfmas=mf, at=base + n - 2)
                if i == 0: s['pre'] = stage_pre(stg, WK[:len(pats)], pats)
                st.append(s)
            return st

        p2 = steps_ks(12, 4, PATN, True, P2ACC, lambda n: HF + 4 * n, ASETS, nkv, c_init=124)
        p2[0]['at'] = nkv - 1; p2[1]['at'] = nkv - 1
        XN = 124
        def xn_prep():
            XR = 228
            a(f'v_xor_b32 v{XR+8}, 16, v{XE}\nv_xor_b32 v{XR+9}, 32, v{XE}\nv_xor_b32 v{XR+10}, 48, v{XE}')
            a(f'ds_read_b64 {vr(XR,2)}, v{XE}')
            for g in range(1, 4): a(f'ds_read_b64 {vr(XR+2*g,2)}, v{XR+7+g}')
            xp['t'] = a(f'ds_read_b64 {vr(XR+12,2)}, v{PSA}')
        def xn_prep2():
            XR = 228
            a.wait_lg(xp['t'])
            for g in range(4):
                for d in range(2):
                    a(f'v_lshlrev_b32 v{RES+4*g+2*d}, 16, v{XR+2*g+d}\nv_and_b32 v{RES+4*g+2*d+1}, 0xffff0000, v{XR+2*g+d}')
            a(f'v_mul_f32 v{XR+12}, v{XR+12}, v{XR+13}')
            for u in range(16): a(f'v_fma_f32 v{XN+u}, v{RES+u}, v{XR+13}, v{XR+12}')
        def kv_epilogue():
            cst(16)
            SN, SR_, SL = 180, 196, 212
            for tt in range(4): a(f'ds_read_b128 {vr(SN+4*tt,4)}, v{STB} offset:{tt*64}')
            for tt in range(4): tk1 = a(f'ds_read_b128 {vr(SL+4*tt,4)}, v{STB} offset:{tt*64+512}')
            for tt in range(4): tk = a(f'ds_read_b128 {vr(SR_+4*tt,4)}, v{STB} offset:{tt*64+256}')
            a.wait_lg(tk1)
            for u in range(8):
                a(f'v_pk_fma_f32 {P(KACC+2*u)}, {P(SN+2*u)}, {P(KCS)}, {P(KACC+2*u)} op_sel_hi:[1,0,1]')
            for u in range(8):
                a(f'v_pk_fma_f32 {P(VACC+2*u)}, {P(SN+2*u)}, {P(VCS)}, {P(VACC+2*u)} op_sel_hi:[1,0,1]')
            for u in range(8):
                a(f'v_pk_mul_f32 {P(SL+2*u)}, {P(SL+2*u)}, {P(KACC+2*u)}')
            a.wait_lg(tk)
            for tt in range(4):
                a(f'ds_read_b128 {vr(QST+4*tt,4)}, v{STA} offset:{1024+tt*256}')
            for u in range(8):
                a(f'v_pk_fma_f32 {P(KACC+2*u)}, {P(KACC+2*u)}, {P(SR_+2*u)}, s[{sEPS}:{sEPS+1}]')
            for u in range(8):
                a(f'v_pk_mul_f32 {P(VACC+2*u)}, {P(VACC+2*u)}, {P(SR_+2*u)}')
            cst(17)
            PKR, PVR = 180, 188
            for u in range(8): a(f'v_cvt_pk_bf16_f32 v{PVR+u}, v{VACC+2*u}, v{VACC+2*u+1}')
            self.phi_tail(a, [KACC + 2*u for u in range(8)], [PKR + u for u in range(8)], SL)
            KVA, ZA = 172, 176
            XR = 196
            cst(18)
            a(f'v_mfma_f32_16x16x32_bf16 {vr(ZA,4)}, {vr(PKR,4)}, {vr(ONES,4)}, 0')
            a(f'v_mfma_f32_16x16x32_bf16 {vr(KVA,4)}, {vr(PVR,4)}, {vr(PKR,4)}, 0')
            a(f'v_mfma_f32_16x16x32_bf16 {vr(ZA,4)}, {vr(PKR+4,4)}, {vr(ONES,4)}, {vr(ZA,4)}')
            a(f'v_mfma_f32_16x16x32_bf16 {vr(KVA,4)}, {vr(PVR+4,4)}, {vr(PKR+4,4)}, {vr(KVA,4)}')
            a(f'v_and_b32 v{XR+3}, 15, v0\nv_lshrrev_b32 v{XR+4}, 4, v0\nv_lshlrev_b32 v{XR+2}, 8, v{XR+4}\nv_lshl_add_u32 v{XR+2}, v{XR+3}, 2, v{XR+2}')
            if opt.get('kv2', 0): a(f'v_lshlrev_b32 v{XR+2}, 2, v0')
            a(f'v_lshl_add_u32 v{XR+4}, v{XR+4}, 2, v{XR+3}\nv_lshlrev_b32 v{XR+4}, 2, v{XR+4}')
            a(f'v_mov_b32 v{XR+5}, {OOB}\nv_cmp_gt_u32 vcc, 4, v{XR+3}\ns_lshl_b32 s{sT0}, s{sW}, 10\ns_add_u32 s{sT0}, s{sT0}, s{sC}\nv_cndmask_b32 v{XR+4}, v{XR+5}, v{XR+4}, vcc')
            a.flush_inject()
            cst(19)
            a(f'v_cmp_eq_u32 vcc, 1, v{XR+3}\ns_lshl_b32 s{sT2}, s{sW}, 6\ns_add_u32 s{sT2}, s{sT2}, s{sC}\ns_add_u32 s{sT2}, s{sT2}, {KV_Z}\nv_cndmask_b32 v{ZA}, v{ZA}, v{ZA+1}, vcc')
            for k in range(4):
                if k < 2: a(f'v_cmp_eq_u32 vcc, {k+2}, v{XR+3}')
                a(f'buffer_store_dword v{KVA+k}, v{XR+2}, {srd(sWS)}, s{sT0} offen offset:{k*256} sc1' if opt.get('kv2', 0) else f'buffer_atomic_add_f32 v{KVA+k}, v{XR+2}, {srd(sWS)}, s{sT0} offen offset:{k*64}')
                if k < 2: a(f'v_cndmask_b32 v{ZA}, v{ZA}, v{ZA+k+2}, vcc')
            htok['kv'] = a(f'buffer_store_dword v{ZA}, v{XR+4}, {srd(sWS)}, s{sT2} offen sc1' if opt.get('kv2', 0) else f'buffer_atomic_add_f32 v{ZA}, v{XR+4}, {srd(sWS)}, s{sT2} offen')
        p2[0]['hook'] = kv_epilogue
        if opt.get('kv2', 0):
            kb = 4 * (opt.get('fa_bar', 15) - 12)
            okb = p2[kb]['pre']
            p2[kb]['pre'] = lambda: (a.wait_vm(htok['kv']), okb())
        for n, s in enumerate(p2):
            s['vm'] = (lambda n=n: hl[n])
            if n in (1, 8, 15): s['hook'] = (lambda n=n: cst({1: 20, 8: 21, 15: 22}[n]))
        steps += p2
        np2 = len(steps)

        qs = steps_q(16, HACC, HCS, HSETS, np2)
        x1tok = {}
        for s in qs:
            if s['stage'] is not None:
                extra = None
                if s['stage'] == opt.get('fx_bar', 17): extra = lambda: (a.wait_vm(x1tok['st']), cst(3))
                s['pre'] = stage_pre(s['stage'], [WK16], [PAT16], extra)
        qr0, qr1 = qs[0]['reads'], qs[1]['reads']
        qs[0]['reads'] = []; qs[1]['reads'] = []; qs[0]['pre'] = None
        qs[0]['at'] = np2; qs[1]['at'] = np2
        def early_send(st, acc, rcv):
            a_, b_ = st[-2], st[-1]
            m0, m1 = a_['mfmas']; m2, m3 = b_['mfmas']
            va, vb = a_['vm'], b_['vm']
            a_['mfmas'] = [m1]
            b_['mfmas'] = [m3, m0, m2]
            b_['tail'] = [None, lambda: a(f'v_xor_b32 v{rcv}, 8192, v{RDX}'), None]
        def exchange(acc, rcv, nb, between=None):
            if not opt.get('esend', 1): a(f'v_xor_b32 v{rcv}, 8192, v{RDX}')
            for g in range(4):
                a(f'ds_write_b128 v{rcv}, {vr(acc+16+4*g,4)} offset:{g*1024}')
            if between: between()
            a.wait_lg0()
            self.barC(a, nb)
            return [a(f'ds_read_b128 {vr(rcv+4*g,4)}, v{RDX} offset:{g*1024}') for g in range(4)]
        def p2_epilogue():
            RCV = 180; OUT = 196; SS = 204
            cst(23)
            def between():
                a(f's_lshl_b32 s{sT2}, s{sJ}, 1\ns_add_u32 s{sT2}, s{sT2}, s{sHI}\ns_lshl_b32 s{sT0}, s{sT2}, 12\ns_add_u32 s{sT0}, s{sT0}, s{sA}\ns_add_u32 s{sT0}, s{sT0}, {X1_OFF}')
                a(f's_lshl_b32 s{sT2}, s{sT2}, 9\ns_lshl_b32 s{sT3}, s{sR}, 13\ns_add_u32 s{sT2}, s{sT2}, s{sT3}\ns_lshl_b32 s{sT3}, s{sTH}, 8\ns_add_u32 s{sT2}, s{sT2}, s{sT3}\ns_add_u32 s{sT2}, s{sT2}, {XS_OFF}')
                a(f'v_add_u32 v{WK16}, {SLOT[16]}, v{PAT16}')
                a(f'v_and_b32 v{SS+8}, 31, v0\nv_lshrrev_b32 v{SS+9}, 5, v0\nv_lshlrev_b32 v{SS+9}, 2, v{SS+9}\nv_lshl_add_u32 v{SS+8}, v{SS+8}, 3, v{SS+9}')
            tk = exchange(P2ACC, RCV, 'RB1', between)
            for b in range(2):
                a.wait_lg(tk[2*b+1])
                for u in range(4*b, 4*b+4): a(f'v_pk_add_f32 {P(P2ACC+2*u)}, {P(P2ACC+2*u)}, {P(RCV+2*u)}')
                for u in range(4*b, 4*b+4): a(f'v_cvt_pk_bf16_f32 v{OUT+u}, v{P2ACC+2*u}, v{P2ACC+2*u+1}')
                a(f'buffer_store_dwordx4 {vr(OUT+4*b,4)}, v{CELLT}, {srd(sWS)}, s{sT0} offen offset:{b*2048} sc1')
            a(f'v_pk_add_f32 {P(SS)}, {P(P2ACC)}, {P(P2ACC+2)}\nv_pk_mul_f32 {P(SS+2)}, {P(P2ACC)}, {P(P2ACC)}')
            a(f'v_pk_add_f32 {P(SS+4)}, {P(P2ACC+4)}, {P(P2ACC+6)}\nv_pk_mul_f32 {P(SS+6)}, {P(P2ACC+2)}, {P(P2ACC+2)}')
            for u in range(2, 8):
                k = 4 * (u & 1)
                a(f'v_pk_fma_f32 {P(SS+2+k)}, {P(P2ACC+2*u)}, {P(P2ACC+2*u)}, {P(SS+2+k)}')
                if u >= 4: a(f'v_pk_add_f32 {P(SS+k)}, {P(SS+k)}, {P(P2ACC+2*u)}')
            a(f'v_pk_add_f32 {P(SS)}, {P(SS)}, {P(SS+4)}\nv_pk_add_f32 {P(SS+2)}, {P(SS+2)}, {P(SS+6)}')
            a(f'v_add_f32 v{SS}, v{SS}, v{SS+1}\nv_add_f32 v{SS+2}, v{SS+2}, v{SS+3}')
            a(f'v_permlane32_swap_b32 v{SS}, v{SS+2}\nv_add_f32 v{SS}, v{SS}, v{SS+2}')
            x1tok['st'] = a(f'buffer_store_dword v{SS}, v{SS+8}, {srd(sWS)}, s{sT2} offen sc1')
            cst(2)
            for u in range(8): a(f'v_pk_add_f32 {P(RES+2*u)}, {P(RES+2*u)}, {P(P2ACC+2*u)}')
            if opt.get('fx_bar', 17) == 16:
                a.wait_vm(x1tok['st']); cst(3)
            self.barC(a, 'B16')
            for t in qr0: qs[0]['tok'] = a(t)
            for t in qr1: qs[1]['tok'] = a(t)
        qs[0]['hook'] = p2_epilogue
        if opt.get('esend', 1): early_send(p2, P2ACC, 180)
        steps += qs
        nq = len(steps)

        BST = 128; A3 = [60, 68, 76]; ACA, ACB = 84, 100
        GST = 40; GT = 44; CSG = 112
        X1B, CSB, CSB2, HFB = 2, 3, 4, 5
        HP = [6, 7]
        def q_epilogue():
            TMP = 100; OUT = 116; QP = 80
            self.barC(a, 'QE')
            for u in range(8):
                a(f'v_pk_fma_f32 {P(HACC+2*u)}, {P(HCS+2*(u&1))}, {P(QST+4*(u>>1))}, {P(HACC+2*u)} op_sel_hi:[1,0,1]')
            for u in range(8):
                a(f'v_pk_mul_f32 {P(TMP+2*u)}, {P(HACC+2*u)}, {P(QST+4*(u>>1)+2)} op_sel_hi:[1,0]')
            for u in range(8):
                a(f'v_pk_fma_f32 {P(HACC+2*u)}, {P(HACC+2*u)}, {P(QST+4*(u>>1))}, s[{sEPS}:{sEPS+1}] op_sel:[0,1,0] op_sel_hi:[1,1,1]')
            self.phi_tail(a, [HACC + 2*u for u in range(8)], [OUT + u for u in range(8)], TMP)
            a(f's_lshl_b32 s{sT0}, s{sW}, 11\ns_add_u32 s{sT0}, s{sT0}, {PQ}\nv_lshlrev_b32 v{QP}, 3, v0\nv_add_u32 v{QP}, s{sT0}, v{QP}')
            for tt in range(4): a(f'ds_write_b64 v{QP}, {vr(OUT+2*tt,2)} offset:{tt*512}')
            a(f's_lshl_b32 s{sT0}, s{sTH}, 10\nv_add_u32 v{X1B}, s{sT0}, v{LL16}')
            a(f's_lshl_b32 s{sT2}, s{sHI}, 15\nv_add_u32 v{HFB}, s{sT2}, v{X1B}')
            a(f's_and_b32 s{sT3}, s{sJ}, 1\ns_lshl_b32 s{sT4}, s{sT3}, 5')
            a(f's_lshl_b32 s{sT0}, s{sHI}, 5\ns_add_u32 s{sT0}, s{sT0}, s{sT4}\ns_lshl_b32 s{sT0}, s{sT0}, 2\ns_add_u32 s{sT0}, s{sT0}, {CS3L}')
            a(f'v_lshrrev_b32 v{QP+1}, 5, v0\nv_lshlrev_b32 v{QP+1}, 4, v{QP+1}\nv_add_u32 v{CSB}, s{sT0}, v{QP+1}')
            a(f's_cmp_eq_u32 s{sT3}, 0\ns_cselect_b32 s{sT5}, 192, 0')
            a(f's_lshl_b32 s{sT0}, s{sHI}, 4\ns_add_u32 s{sT0}, s{sT0}, s{sT5}\ns_lshl_b32 s{sT0}, s{sT0}, 2\ns_add_u32 s{sT0}, s{sT0}, {CS3L}')
            a(f'v_add_u32 v{CSB2}, s{sT0}, v{QP+1}')
            a(f's_lshl_b32 s{sT0}, s{sHI}, 5\nv_xor_b32 v{HP[0]}, s{sT0}, v{PAT3[0]}\nv_xor_b32 v{HP[1]}, s{sT0}, v{PAT3[1]}')
            a(f'v_and_b32 v{STA}, 31, v0\nv_lshlrev_b32 v{STA}, 4, v{STA}\ns_lshl_b32 s{sT0}, s{sTH}, 9\ns_add_u32 s{sT0}, s{sT0}, {X1P}\nv_add_u32 v{STA}, s{sT0}, v{STA}')
            a(f's_mul_i32 s{sT0}, s{sJ}, 14\ns_lshr_b32 s{sT4}, s{sT4}, 4\ns_lshl_b32 s{sT2}, s{sHI}, 1\ns_add_u32 s{sB}, s{sT0}, s{sT4}\ns_add_u32 s{sB}, s{sB}, s{sT2}')
            a(f's_lshl_b32 s{sB}, s{sB}, 11\ns_add_u32 s{sB}, s{sB}, s{sD}')
            a(f's_lshr_b32 s{sT5}, s{sT5}, 4\ns_add_u32 s{sC}, s{sT0}, s{sT5}\ns_add_u32 s{sC}, s{sC}, s{sHI}\ns_lshl_b32 s{sC}, s{sC}, 11\ns_add_u32 s{sC}, s{sC}, s{sD}')
            a.wait_lg0()
            self.barC(a, 'XA')

        HB = [44, 116, 52]
        def steps_p3(first, nstage, acc, pats, base, kind, phase):
            st = []
            for n in range(4 * nstage):
                stg = first + n // 4
                sb = A3[(n + phase) % 3]
                reads = []; mf = []
                for u in range(2):
                    i = 2 * n + u; s_ = i % 8
                    reads += [f'ds_read_b64_tr_b16 {vr(sb+4*u+2*rd,2)}, v{WK[rd]} offset:{s_*2048}' for rd in range(2)]
                    if kind == 'p0':
                        reads.append(f'ds_read_b128 {vr(BST+4*i,4)}, v{X1B} offset:{i*2048}'); b = BST + 4 * i
                    elif kind == 'hf':
                        b = HB[(n % 3)] + 4 * u
                        reads.append(f'ds_read_b128 {vr(b,4)}, v{HFB} offset:{i*2048}')
                    else:
                        b = BST + 4 * i
                    mf.append(f'v_mfma_f32_32x32x16_bf16 {vr(acc,16)}, {vr(sb+4*u,4)}, {vr(b,4)}, {vr(acc,16) if i else 0}')
                s = dict(reads=reads, mfmas=mf, at=base + n - 2)
                if n % 4 == 0: s['pre'] = stage_pre(stg, WK[:2], pats)
                st.append(s)
            return st
        gtok = {}
        def cs_reads(csreg, csoff, ng):
            def one(g):
                gtok['cs'] = a(f'ds_read_b128 {vr(CSG+4*g,4)}, v{csreg} offset:{csoff+g*32}')
            return [lambda g=g: one(g) for g in range(ng)]
        def g_epi(acc, ng, sbase, after_first=None, cs_=None):
            a.wait_lg(gtok['cs'])
            pairs = [(acc + 2*u, CSG + 2*u, GST, acc + 8*(u >> 2) + (u & 3)) for u in range(2 * ng)]
            self.gelu(a, pairs, GT, after_first)
            if cs_: cst(cs_)
            for b in range(ng // 2):
                gtok['st'] = a(f'buffer_store_dwordx4 {vr(acc+8*b,4)}, v{CELLT}, {srd(sWS)}, s{sbase} offen offset:{b*2048} sc1')
        def hf_send():
            t = GT
            a(f's_lshl_b32 s{sT0}, s{sW}, 11\ns_add_u32 s{sT0}, s{sT0}, {SC}\nv_add_u32 v{t}, s{sT0}, v{LL16}')
            a(f'ds_write_b128 v{t}, {vr(ACB+8,4)}')
            gtok['hfw'] = a(f'ds_write_b128 v{t}, {vr(ACB+12,4)} offset:1024')
            a(f'v_xor_b32 v{HFB}, 4096, v{t}')

        p0 = steps_p3(20, 4, ACA, PAT3, nq, 'p0', 0)
        p0[0]['at'] = nq; p0[1]['at'] = nq; p0[0]['hook'] = q_epilogue
        p0[15]['post'] = [lambda: a(f'ds_read_b128 {vr(GST,4)}, v{STA}')] + cs_reads(CSB, 0, 4)
        steps += p0; n0 = len(steps)
        hf = steps_p3(24, 2, ACB, HP, n0, 'hf', 16)
        for k in range(2):
            hf[k]['late'] = [t for t in hf[k]['reads'] if 'b128' in t]
            hf[k]['reads'] = [t for t in hf[k]['reads'] if 'b128' not in t]
        def hf_hook():
            g_epi(ACA, 4, sB)
            gtok['g0'] = gtok['st']
            for k in range(2):
                for t in hf[k]['late']: hf[k]['tok'] = a(t)
            a(f's_add_u32 s{sB}, s{sB}, 8192')
        hf[0]['hook'] = hf_hook
        steps += hf; n1 = len(steps)
        p1 = steps_p3(26, 4, ACA, PAT3, n1, 'p', 24)
        p1[0]['hook'] = hf_send
        old = p1[4]['pre']
        p1[4]['pre'] = lambda: (a.wait_lg(gtok['hfw']), old())
        def hf_recv():
            a(f'ds_read_b128 {vr(ACB+8,4)}, v{HFB}')
            gtok['hfr'] = a(f'ds_read_b128 {vr(ACB+12,4)}, v{HFB} offset:1024')
        def hf_add(k):
            a.wait_lg(gtok['hfr'])
            for u in range(4*k, 4*k+4): a(f'v_add_f32_e64 v{ACB+u}, v{ACB+u}, v{ACB+8+u}')
        p1[8]['post'] = [hf_recv]
        p1[11]['post'] = [lambda: hf_add(0)]
        p1[12]['post'] = [lambda: hf_add(1)]
        p1[15]['post'] = cs_reads(CSB, 256, 4)
        steps += p1; n2 = len(steps)
        p2_ = steps_p3(30, 4, ACA, PAT3, n2, 'p', 40)
        def p1_epilogue():
            cst(8)
            g_epi(ACA, 4, sB, lambda: [f() for f in cs_reads(CSB2, 0, 2)], 9)
            a(f's_add_u32 s{sB}, s{sB}, 8192')
            cst(10)
            g_epi(ACB, 2, sC, None, 11)
            gtok['g1'] = gtok['st']
            cst(12)
        p2_[0]['hook'] = p1_epilogue
        p2_[15]['post'] = cs_reads(CSB, 512, 4)
        p2_[1]['hook'] = lambda: cst(13)
        p2_[2]['hook'] = lambda: cst(14)
        p2_[3]['hook'] = lambda: cst(15)
        steps += p2_; n3 = len(steps)

        P4ACC = 84; FR = 128
        p4 = []
        fl = {}
        def fload(n):
            kind, sg = STAGES[34 + n // 4]; i = n % 4
            if i % 2 == 0:
                if i: a(f's_add_u32 s{sI0}, s{sI0}, 4096')
                elif kind == 'wo': a(f's_add_u32 s{sI0}, s{sT5}, s{sKC+sg}')
                elif kind == 'gh': a(f's_add_u32 s{sI0}, s{sRG}, {sg}\ns_and_b32 s{sI0}, s{sI0}, 1\ns_mul_i32 s{sI0}, s{sI0}, {896*128}\ns_add_u32 s{sI0}, s{sI0}, s{sT4}')
                else:
                    a(f's_add_u32 s{sI0}, s{sD}, s{sKG+sg}')
                    if kind != 'g0': a(f's_add_u32 s{sI0}, s{sI0}, {g_rows(kind, 0)[0]*128}')
            fl[n] = a(f'buffer_load_dwordx4 {vr(FR+4*(n%32),4)}, v{CELLT}, {srd(sWS)}, s{sI0} offen offset:{(i&1)*2048} sc1')
        firsts = {}
        for first in range(34, NST):
            kind, sg = STAGES[first]
            if sg: continue
            cnt = 2 if kind == 'gh' else 4; nat = kind == 'wo'
            k0 = 4 * (first - 34); firsts[k0] = {'g0': FG0, 'g1': FG1, 'gh': FG1, 'wo': FO, 'g2': FG2}[kind]
            p4 += steps_ks(first, cnt, PATN if nat else PATP, nat, P4ACC, lambda n, k0=k0: FR + 4 * ((n + k0) % 32), A3, n3 + k0,
                           setphase=56 + k0, init=(first == 34), c_init=RES if first == 34 else None)
        NG = opt.get('ng', 10); NG0 = opt.get('ng0', 8)
        def p3_last_epilogue():
            a(f's_lshl_b32 s{sT0}, s{sHI}, 13\ns_add_u32 s{sT5}, s{sT0}, s{sA}\ns_add_u32 s{sT5}, s{sT5}, {O_OFF}')
            a(f's_mul_i32 s{sT4}, s{sHI}, {448*128}\ns_add_u32 s{sT4}, s{sT4}, s{sD}\ns_add_u32 s{sT4}, s{sT4}, {192*128}\ns_lshl_b32 s{sT0}, s{sHI}, 15\ns_add_u32 s{sD}, s{sD}, s{sT0}')
            for k in range(4): a(f's_add_u32 s{sT0}, s{sRG}, {k}\ns_and_b32 s{sT0}, s{sT0}, 3\ns_mul_i32 s{sKG+k}, s{sT0}, {448*128}\ns_lshl_b32 s{sKC+k}, s{sT0}, 14')
            a.inject([lambda n=n: fload(n) for n in range(NG0)], opt.get('fl_every', 12))
            g_epi(ACA, 4, sB)
            a.flush_inject()
            gtok['g2'] = gtok['st']
            cst(6)
        p4[0]['hook'] = p3_last_epilogue
        nxt = NG0
        self.need = {}
        for n, s in enumerate(p4):
            s['vm'] = (lambda n=n: fl[n])
            post = []
            while nxt < 72 and nxt < n + 1 + NG and len(post) < 2:
                if nxt in firsts: self.need.setdefault(firsts[nxt], 34 + (n + 2) // 4)
                post.append(lambda m=nxt: fload(m)); nxt += 1
            s['post'] = post
        def add_wait(step, key):
            o = step['pre']
            step['pre'] = lambda: (a.wait_vm(gtok[key]), o())
        add_wait(p1[4], 'g0'); add_wait(p2_[12], 'g1'); add_wait(p4[4 * (opt.get('fg2_bar', 36) - 34)], 'g2')
        if opt.get('esend', 1): early_send(p4, P4ACC, 128)
        steps += p4

        if opt.get('cprio', 2): a(f's_setprio {opt.get("cprio", 2)}')
        self.run_steps(a, steps)
        RCV = 128; OUT = 144; VO = 160
        def between():
            a(f's_lshl_b32 s{sT0}, s{sTH}, 5\nv_and_b32 v{VO}, 31, v0\nv_add_u32 v{VO}, s{sT0}, v{VO}\nv_lshlrev_b32 v{VO}, 10, v{VO}')
            a(f'v_lshrrev_b32 v{VO+1}, 5, v0\nv_lshl_add_u32 v{VO}, v{VO+1}, 4, v{VO}')
            a(f's_lshl_b32 s{sT0}, s{sJ}, 1\ns_add_u32 s{sT0}, s{sT0}, s{sHI}\ns_lshl_b32 s{sT0}, s{sT0}, 6\ns_add_u32 s{sT0}, s{sT0}, s{sA}')
        tk = exchange(P4ACC, RCV, 'RB2', between)
        for b in range(2):
            a.wait_lg(tk[2*b+1])
            for u in range(4*b, 4*b+4): a(f'v_pk_add_f32 {P(P4ACC+2*u)}, {P(P4ACC+2*u)}, {P(RCV+2*u)}')
            for u in range(4*b, 4*b+4): a(f'v_cvt_pk_bf16_f32 v{OUT+u}, v{P4ACC+2*u}, v{P4ACC+2*u+1}')
            a(f'v_permlane32_swap_b32 v{OUT+4*b}, v{OUT+4*b+2}\nv_permlane32_swap_b32 v{OUT+4*b+1}, v{OUT+4*b+3}')
            a(f'buffer_store_dwordx4 {vr(OUT+4*b,4)}, v{VO}, {srd(sOUT)}, s{sT0} offen offset:{b*32} {opt.get("outflag", "")}')
        if opt.get('padto'):
            a(f'L_pad:\ns_memrealtime s[{sTSP}:{sTSP+1}]\ns_waitcnt lgkmcnt(0)\ns_sub_u32 s{sT0}, s{sTSP}, s26\ns_cmp_lt_u32 s{sT0}, {opt["padto"]}\ns_cbranch_scc1 L_pad')
        if opt.get('prof'):
            a(f's_memrealtime s[{sTSP}:{sTSP+1}]\ns_memtime s[98:99]\ns_waitcnt lgkmcnt(0)\ns_sub_u32 s98, s98, s90')
            a(f's_lshl_b32 s{sT0}, s2, 3\ns_add_u32 s{sT0}, s{sT0}, s{sW}\ns_lshl_b32 s{sT0}, s{sT0}, 8\ns_add_u32 s{sT0}, s{sT0}, {TS_OFF}')
            a(f'v_mov_b32 v2, s26\nv_mov_b32 v3, s{sTSP}\nv_mov_b32 v4, s98\nv_mov_b32 v5, 0\nv_mov_b32 v6, 0\ns_mov_b64 exec, 1')
            a(f'buffer_store_dwordx4 v[2:5], v6, {srd(sWS)}, s{sT0} offen')
            for k in range(8 if opt.get('prof') != 3 else 0): a(f'v_mov_b32 v7, s{4+2*k}\nbuffer_store_dword v7, v6, {srd(sWS)}, s{sT0} offen offset:{16+4*k}')
        a('s_endpgm')

    def helper(self, a):
        opt = self.opt
        prof = opt.get('prof') if opt.get('prof') != 3 else None
        E = lambda name, d: opt.get(name, d)
        BARS = [f'B{i}' for i in range(16)] + ['RB1'] + [f'B{i}' for i in range(16, 20)] + ['QE', 'XA'] + [f'B{i}' for i in range(20, NST)]
        ODL = f'B{self.need[FO]}'
        IDX = {n: i for i, n in enumerate(BARS)}
        T = [40 + i for i in range(16)]
        V1K, VQ, VW3, VHF = 4, 8, 12, 16
        row, pos, sw = T[0], T[1], T[2]
        def mk(dst, RS, sbase):
            a(f'v_mul_u32_u24 v{T[5]}, {RS}, v{row}\nv_add_u32 v{T[5]}, s{sbase}, v{T[5]}')
            for i in range(4):
                a(f'v_add_u32 v{dst+i}, v{T[5]}, v{T[3+(i&1)]}')
                if i: a(f'v_add_u32 v{dst+i}, {i*(8*RS-1024)}, v{dst+i}')
        stok = {}
        def issue(st, pace=True):
            kind, sg = STAGES[st]
            if pace and len(a.vm) > E('pace', 44): a.wait_vm(a.vm[-E('pace', 44) - 1])
            s, v = src_of(st)
            for g in range(4):
                a(f's_mov_b32 m0, {SLOT[st] + g*4096}')
                soff(st, g)
                for i in range(4):
                    stok[st] = a(f'buffer_load_dwordx4 v{v+i}, {srd(s)}, s{sT2} offen offset:{i*1024} lds')
        def src_of(st):
            kind, sg = STAGES[st]
            return {'w1': (sW1, V1K), 'w2': (sW2, V1K), 'wo': (sWO, V1K), 'wq': (sQKV, VQ), 'kv': (sQKV, VQ), 'p0': (sW3, VW3),
                    'p1': (sW3, VW3), 'p2': (sW3, VW3), 'hf': (sW3, VHF + 4 * sg)}.get(kind, (sW4, V1K))
        def soff(st, g, first=None):
            kind, sg = STAGES[st]
            rot = E('rot', 0)
            RS = 3072 if kind in ('wq', 'kv') else (3584 if kind in ('p0', 'p1', 'p2', 'hf') else 1024)
            if first is None: first = g == 0
            if kind == 'gh':
                if first: a(f's_add_u32 s{sI0}, s{sRG}, {sg}\ns_and_b32 s{sI0}, s{sI0}, 1\ns_mul_i32 s{sI0}, s{sI0}, {896*1024}')
                a(f's_add_u32 s{sT2}, s{sI0}, {(g_rows(kind, 0)[g >> 1] + 32*(g & 1))*1024}')
            elif kind[0] == 'g': a(f's_add_u32 s{sT2}, s{sKG+sg}, {(g_rows(kind, 0)[g >> 1] + 32*(g & 1))*1024}')
            elif kind == 'wo':
                if first: a(f's_add_u32 s{sI0}, s{sRG}, {sg}\ns_and_b32 s{sI0}, s{sI0}, 3\ns_lshl_b32 s{sI0}, s{sI0}, 17')
                a(f's_add_u32 s{sT2}, s{sI0}, {g*32*RS}')
            elif kind == 'w1' or (rot and kind == 'w2'): a(f's_add_u32 s{sT2}, s{sK1+sg}, {g*32*RS}')
            elif kind == 'w2': a(f's_mov_b32 s{sT2}, {sg*131072 + g*32*RS}')
            elif kind == 'wq': a(f's_add_u32 s{sT2}, s{sK3+sg}, {g*32*RS}')
            elif kind == 'kv': a(f's_add_u32 s{sT2}, s{sK3+(sg>>1)}, {((sg&1)*64 + (g&1)*32)*RS + 1024*(1 + (g>>1))}')
            elif kind == 'hf': a(f's_mov_b32 s{sT2}, {g*32*RS}')
            else: a(f's_add_u32 s{sT2}, s{sK5+sg}, {g*32*RS + dict(p0=0, p1=128, p2=256)[kind]}')
        REGS = [int(x) for x in str(E('regs', '')).split('.') if x]; RB = 96
        RLD = str(E('rld', 'B24.B24.B30.B30.B30')).split('.')[:len(REGS)]
        rtok = {}; wq_ = {0: [], 1: []}
        def reg_load(st, half, v):
            for g in range(2):
                soff(st, 2*half + g, g == 0)
                for i in range(4):
                    rtok[(st, half)] = a(f'buffer_load_dwordx4 {vr(RB + 32*REGS.index(st) + 16*g + 4*i, 4)}, v{v+i}, {srd(src_of(st)[0])}, s{sT2} offen offset:{i*1024}')
        def reg_step(n, half, vl, v):
            b = int(n[1:]) if n[0] == 'B' else None
            for st in ISSUE.get(b if b is not None else n, []):
                if st in REGS: wq_[half] += [(st, k0) for k0 in range(0, 8, E('wn', 4))]
            if wq_[half]:
                st, k0 = wq_[half].pop(0)
                a.wait_vm(rtok[(st, half)])
                a(f'v_add_u32 v{vl+1}, {SLOT[st] + half*8192}, v{vl}')
                for k in range(k0, k0 + E('wn', 4)): a(f'ds_write_b128 v{vl+1}, {vr(RB + 32*REGS.index(st) + 4*k, 4)} offset:{k*1024}')
            assert b is None or all(x[0] > b + 1 for x in wq_[half])
            for k, w in enumerate(RLD):
                if w == n: reg_load(REGS[k], half, (v if STAGES[REGS[k]][0][0] != 'p' else (20 if half else VW3)))
        VAR = 61
        def arrive(idx):
            if prof == 2:
                a(f's_memtime s[0:1]\ns_waitcnt lgkmcnt(0)')
                a.lg = []
                if isinstance(idx, int): a(f'v_writelane_b32 v{VAR}, s0, {idx + 1}')
                else: a(f's_add_u32 s1, s{idx}, 1\ns_mov_b32 m0, s1\nv_writelane_b32 v{VAR}, s0, m0')
        def dump_arrive(slot):
            if prof:
                a(f's_lshl_b32 s{sT0}, s2, 2\ns_add_u32 s{sT0}, s{sT0}, s{sW}\ns_lshl_b32 s{sT0}, s{sT0}, 8\ns_add_u32 s{sT0}, s{sT0}, {TS_OFF + 0x80000}')
                a(f'v_lshlrev_b32 v2, 2, v0\nbuffer_store_dword v{VAR}, v2, {srd(sWS)}, s{sT0} offen')
        if prof: a(f'v_mov_b32 v{VAR}, 0')
        a(f's_cmp_eq_u32 s{sW}, 0\ns_cbranch_scc1 L_sync\ns_cmp_lt_u32 s{sW}, 3\ns_cbranch_scc1 L_back')
        a(f'v_lshrrev_b32 v{row}, 3, v0\nv_and_b32 v{pos}, 7, v0\nv_lshrrev_b32 v{sw}, 4, v0\nv_and_b32 v{sw}, 1, v{sw}\nv_lshlrev_b32 v{sw}, 2, v{sw}')
        a(f'v_xor_b32 v{pos}, v{pos}, v{sw}')
        a(f'v_lshlrev_b32 v{T[3]}, 4, v{pos}\nv_xor_b32 v{T[4]}, 32, v{T[3]}')
        a(f's_lshl_b32 s{sT0}, s{sJ}, 7')
        mk(V1K, 1024, sT0)
        a(f's_mov_b32 s{sW1+2}, {512*1024}\ns_mov_b32 s{sW1+3}, 0x20000')
        for sg in range(4):
            a(f's_add_u32 s{sT3}, s{sROT}, {sg}\ns_and_b32 s{sT3}, s{sT3}, 3\ns_lshl_b32 s{sK1+sg}, s{sT3}, 17\ns_mul_i32 s{sK3+sg}, s{sT3}, {128*3072}')
        a('s_waitcnt lgkmcnt(0)')
        a(f's_mov_b32 s{sW1}, s12\ns_and_b32 s{sW1+1}, s13, 0xffff')
        issue(0); issue(1)
        if E('st', 0): issue(2, False)
        a('s_branch L_loader')
        vmL = list(a.vm); a.vm = []
        a('L_back:')
        sSW = sHI
        a(f'v_lshrrev_b32 v2, 4, v0\nv_and_b32 v3, 15, v0\nv_xor_b32 v3, v3, v2\nv_lshlrev_b32 v3, 4, v3')
        a(f's_lshl_b32 s{sT0}, s{sR}, 1\ns_add_u32 s{sT0}, s{sT0}, s{sSW}\ns_lshl_b32 s{sT0}, s{sT0}, 15')
        a(f'v_lshl_add_u32 v2, v2, 10, s{sT0}\nv_add_u32 v2, v2, v3')
        for u in range(1, 4): a(f'v_xor_b32 v{2+u}, {u<<6}, v2\nv_add_u32 v{2+u}, {u*3072}, v{2+u}')
        a(f's_lshl_b32 s{sI0}, s{sSW}, 13\ns_mov_b32 s{sB}, s{sROT}')
        a('s_waitcnt lgkmcnt(0)')
        a(f's_mov_b32 s{sX}, s4\ns_and_b32 s{sX+1}, s5, 0xffff')
        xtok = {}
        def x_chunk(sg):
            for half in range(2):
                a(f's_add_u32 m0, s{sI0}, {sg*16384 + half*4096}\ns_lshl_b32 s{sT2}, s{sB}, 8')
                if half: a(f's_add_u32 s{sT2}, s{sT2}, 16384')
                for u in range(4):
                    xtok[sg] = a(f'buffer_load_dwordx4 v{2+u}, {srd(sX)}, s{sT2} offen offset:{u*1024} lds')
            if sg < 3: a(f's_add_u32 s{sB}, s{sB}, 1\ns_and_b32 s{sB}, s{sB}, 3')
        x_chunk(0)
        if E('xdel', 1): self.srds(a, skipx=True)
        x_chunk(1)
        if not E('xdel', 1): self.srds(a, skipx=True)
        if E('st', 0): x_chunk(2)

        F = 64; SSUM, SGR, HONE = 80, 84, 88
        q, i16 = T[8], T[9]
        SW1, SW2 = 92, 93
        def stats_setup():
            a(f'v_lshrrev_b32 v{q}, 4, v0\nv_and_b32 v{i16}, 15, v0\ns_lshl_b32 s{sT0}, s{sW}, 12')
            for m in range(4):
                a(f'v_or_b32 v{T[0]}, {4*m}, v{q}\nv_xor_b32 v{T[0]}, v{T[0]}, v{i16}\nv_lshlrev_b32 v{T[0]}, 4, v{T[0]}')
                a(f'v_lshl_add_u32 v{T[0]}, v{i16}, 8, v{T[0]}\nv_add_u32 v{T[10+m]}, s{sT0}, v{T[0]}')
            for i in range(4): a(f'v_mov_b32 v{HONE+i}, s{sONE}')
            a(f'v_and_b32 v{T[0]}, 3, v0\nv_lshrrev_b32 v{T[2]}, 2, v{i16}')
            a(f'v_cmp_eq_u32 s[14:15], 1, v{T[0]}\nv_cmp_eq_u32 s[16:17], 2, v{T[0]}\nv_cmp_eq_u32 s[12:13], 3, v{T[0]}\nv_cmp_eq_u32 s[10:11], v{T[2]}, v{q}')
            a(f's_lshl_b32 s{sT0}, s{sW}, 4\nv_add_u32 v{SW1}, s{sT0}, v{i16}\nv_lshlrev_b32 v{SW2}, 4, v{SW1}\nv_lshlrev_b32 v{SW1}, 2, v{SW1}')
            a(f'v_add_u32 v{SW2}, {S1}, v{SW2}\nv_add_u32 v{SW1}, {NMU}, v{SW1}')
        def stats_chunks(sgs):
            tk = {(sg, m): a(f'ds_read_b128 {vr(F+32*(sg&1)+4*m if False else (F if (sg&1)==0 else 96)+4*m,4)}, v{T[10+m]} offset:{sg*16384}') for sg in sgs for m in range(4)}
            a('s_setprio 3')
            for sg in sgs:
                for m in range(4):
                    a.wait_lg(tk[(sg, m)])
                    z = sg == 0 and m == 0
                    f = (F if (sg & 1) == 0 else 96) + 4 * m
                    a(f'v_mfma_f32_16x16x32_bf16 {vr(SGR,4)}, {vr(f,4)}, {vr(f,4)}, {0 if z else vr(SGR,4)}')
                    a(f'v_mfma_f32_16x16x32_bf16 {vr(SSUM,4)}, {vr(HONE,4)}, {vr(f,4)}, {0 if z else vr(SSUM,4)}')
            a('s_setprio 0')
        def stats_final():
            s1, s2 = 36, 37
            a('s_setprio 3')
            R = 64
            a(f'v_cndmask_b32 v{s2}, v{SGR}, v{SGR+1}, s[14:15]\nv_mul_f32 v{R}, {f2u(-1/512):#x}, v{SSUM}\nv_cndmask_b32 v{s2}, v{s2}, v{SGR+2}, s[16:17]')
            a(f'v_mov_b32 v{R+7}, 0\nv_cndmask_b32 v{s2}, v{s2}, v{SGR+3}, s[12:13]\nv_mul_f32 v{s1}, v{R}, v{R}\nv_mov_b32 v{R+4}, v{R}')
            a(f's_mov_b32 s{sT0}, {f2u(1/512):#x}\nv_fma_f32 v{s2}, v{s2}, s{sT0}, -v{s1}\nv_max_f32 v{s2}, 0, v{s2}\nv_add_f32 v{s1}, {f2u(1e-5):#x}, v{s2}')
            a(f'v_rsq_f32 v{R+5}, v{s1}\nv_rcp_f32 v{s1}, v{s1}\ns_mov_b32 s{sT0}, {f2u(1e-5):#x}')
            a(f'v_mul_f32 v{R+6}, {f2u(LOG2E):#x}, v{R+5}\nv_fma_f32 v{s1}, v{s1}, v{s2}, s{sT0}')
            a(f'v_rsq_f32 v{s1}, v{s1}\nv_mul_f32 v{s1}, v{s1}, v{R+5}')
            a(f'v_rcp_f32 v{R+3}, v{s1}\nv_mul_f32 v{s2}, v{s1}, v{s1}\nv_mul_f32 v{R+1}, {f2u(GC0):#x}, v{s1}\nv_mul_f32 v{s2}, {f2u(0.044715):#x}, v{s2}\nv_mul_f32 v{R+2}, v{R+1}, v{s2}')
            a('s_mov_b64 exec, s[10:11]')
            a(f'ds_write_b128 v{SW2}, {vr(R,4)}\nds_write_b128 v{SW2}, {vr(R+4,4)} offset:1024')
            a(f'ds_write_b32 v{SW1}, v{R}\nds_write_b32 v{SW1}, v{R+5} offset:256\nds_write_b32 v{SW1}, v{R+6} offset:512')
            a('s_mov_b64 exec, -1\ns_setprio 0')
            a.wait_lg0()
        def stats_after(b):
            if b in (0, 1): stats_chunks([b])
            if E('st', 0) == 1:
                if b == 2: stats_chunks([2])
                if b == 3: stats_chunks([3]); stats_final()
            else:
                if b == 2: stats_chunks([2, 3])
                if b == 3: stats_final()

        VFL, VFP, VF3, VONE, VCT, CELLV, VZA, VCK, VFO = 26, 27, 28, 29, 30, 32, 34, 35, 33
        OB = T[14]
        pf = opt.get('pf', 1); t3 = opt.get('t3', 1)
        nlab = [0]
        def lab(p):
            nlab[0] += 1
            return f'L_{p}{nlab[0]}'
        def common_regs():
            a(f'v_mov_b32 v{OB}, {OOB}\nv_lshlrev_b32 v{T[15]}, 7, v0\nv_mov_b32 v{VONE}, 1')
            a(f'v_lshrrev_b32 v{T[0]}, 5, v0\nv_and_b32 v{T[1]}, 31, v0\nv_lshlrev_b32 v{CELLV}, 10, v{T[0]}\nv_lshl_add_u32 v{CELLV}, v{T[1]}, 4, v{CELLV}')
            a(f's_lshl_b32 s{sC}, s{sR}, 16\ns_lshl_b32 s{sD}, s{sJ}, 18\ns_add_u32 s{sD}, s{sD}, {KV_OFF}\ns_lshl_b32 s{sA}, s{sJ}, 12\ns_add_u32 s{sA}, s{sA}, {CF_OFF}')
        def one_lane(text):
            a('s_mov_b64 exec, 1'); a(text); a('s_mov_b64 exec, -1')
        def count(off, idx):
            a(f's_lshr_b32 s{sT0}, s{idx}, 3\ns_lshl_b32 s{sT0}, s{sT0}, 7\ns_and_b32 s{sT2}, s{idx}, 7\ns_lshl_b32 s{sT2}, s{sT2}, 2\ns_add_u32 s{sT0}, s{sT0}, s{sT2}')
            a(f's_add_u32 s{sT0}, s{sT0}, s{sA}\ns_add_u32 s{sT0}, s{sT0}, {off}\nv_mov_b32 v{T[7]}, 0')
            one_lane(f'buffer_store_dword v{VONE}, v{T[7]}, {srd(sWS)}, s{sT0} offen sc1')

        sBC = sCNT; sSP = sBG
        common_regs()
        def touch(s, lines, dst, pitch=None, off=0):
            n = lines // 2
            a(f's_lshl_b32 s{sT0}, s2, 1\ns_add_u32 s{sT0}, s{sT0}, s{sSW}\ns_mul_i32 s{sT0}, s{sT0}, {pitch or n*128}')
            if off: a(f's_add_u32 s{sT0}, s{sT0}, {off}')
            a(f'v_cmp_gt_u32 vcc, {n}, v0\nv_cndmask_b32 v{T[7]}, v{OB}, v{T[15]}, vcc')
            return a(f'buffer_load_dword v{dst}, v{T[7]}, {srd(s)}, s{sT0} offen')
        CSR = 128; CA = 160
        def cs_loads(y=None):
            a(f's_lshr_b32 s{sT0}, s{sR}, 1\ns_mul_i32 s{sT0}, s{sT0}, {32*3584}\ns_mul_i32 s{sT2}, s{sJ}, 448\ns_add_u32 s{sT0}, s{sT0}, s{sT2}')
            a(f's_and_b32 s{sT2}, s{sR}, 1\ns_lshl_b32 s{sT2}, s{sT2}, 1\ns_add_u32 s{sT2}, s{sT2}, s{sSW}\ns_mul_i32 s{sT2}, s{sT2}, 112\ns_add_u32 s{sT0}, s{sT0}, s{sT2}')
            a(f'v_lshrrev_b32 v{T[6]}, 5, v0\nv_mul_u32_u24 v{T[6]}, {16*3584}, v{T[6]}\nv_and_b32 v{T[5]}, 31, v0\nv_lshl_add_u32 v{T[6]}, v{T[5]}, 2, v{T[6]}')
            a(f'v_cmp_gt_u32 vcc, 28, v{T[5]}\nv_cndmask_b32 v{T[6]}, v{OB}, v{T[6]}, vcc')
            for i in range(16):
                a(f'buffer_load_dword v{CSR+i}, v{T[6]}, {srd(sW3)}, s{sT0} offen')
                if i < 15: a(f's_add_u32 s{sT0}, s{sT0}, 3584')
                if y and i in (5, 10): y()
        if pf: touch(sQKV, 32, 6, 3072, 1024)
        if E('cs0', 0): cs_loads()
        stats_setup()
        barsD = []
        for b in range(5):
            if b == 0: a.wait_vm(xtok[0])
            if b == 1: a.wait_vm(xtok[1])
            if b == 2: a.wait_vm(xtok[2 if E('st', 0) == 1 else 3])
            if b == 3: a.wait_vm(xtok[3])
            arrive(b); barsD.append(f'B{b}'); a('s_barrier')
            if b == 0:
                if not E('st', 0): x_chunk(2)
                x_chunk(3)
            stats_after(b)
            if b == E('e_pf', 2):
                if pf: touch(sW2, 16, 7); touch(sQKV, 16, 7, 3072)
                if pf and E('w3pf', 0) == 2: touch(sW3, 56, 7)
        a(f's_mov_b32 s{sBC}, 5')
        LONG = sum(1 << (IDX[n] + 1) for n in E('long', 'B4.B12.QE.XA.B24.B30.B34').split('.'))
        a(f's_mov_b32 s4, {LONG & 0xffffffff}\ns_mov_b32 s5, {LONG >> 32}')
        VDS = 39; nds = [0]
        if prof: a(f'v_mov_b32 v{VDS}, 0')
        def dst(name):
            if prof:
                a(f's_memrealtime s[0:1]\ns_waitcnt lgkmcnt(0)\nv_writelane_b32 v{VDS}, s0, {nds[0]}')
                self.dnames.append(name); nds[0] += 1
        def yield_(dl):
            L = lab('y')
            a(f's_cmp_ge_u32 s{sBC}, {IDX[dl]}\ns_cbranch_scc1 {L}')
            arrive(str(sBC))
            a(f's_barrier\ns_add_u32 s{sBC}, s{sBC}, 1\n{L}:')
        def earliest(name):
            L = lab('e')
            a(f'{L}:\ns_cmp_gt_u32 s{sBC}, {IDX[name]}\ns_cbranch_scc1 {L}d')
            arrive(str(sBC))
            a(f's_barrier\ns_add_u32 s{sBC}, s{sBC}, 1\ns_branch {L}\n{L}d:')
        def nbwait(dl, lg=False):
            L = lab('w')
            a(f'{L}:\ns_bitcmp1_b64 s[4:5], s{sBC}\ns_cselect_b32 s{sSP}, {E("nspin", 6)}, 1')
            a(f'{L}s:\ns_getreg_b32 s{sT0}, hwreg(HW_REG_IB_STS)\ns_and_b32 s{sT0}, s{sT0}, {0xf00 if lg else 0xc0000f}\ns_cbranch_scc0 {L}d')
            a(f's_sub_u32 s{sSP}, s{sSP}, 1\ns_cmp_lg_u32 s{sSP}, 0\ns_cbranch_scc1 {L}s')
            a(f's_cmp_ge_u32 s{sBC}, {IDX[dl]}\ns_cbranch_scc1 {L}d')
            if not lg: arrive(str(sBC))
            a(f's_barrier\ns_add_u32 s{sBC}, s{sBC}, 1\ns_branch {L}')
            a(f'{L}d:\ns_waitcnt {"lgkmcnt" if lg else "vmcnt"}(0)')
        def spin(off, n, dl):
            L = lab('c')
            a(f'v_and_b32 v{VCT}, {n-1}, v0\nv_lshrrev_b32 v{T[7]}, 3, v{VCT}\nv_and_b32 v{VCT}, 7, v{VCT}\nv_lshlrev_b32 v{VCT}, 2, v{VCT}\nv_lshl_add_u32 v{VCT}, v{T[7]}, 7, v{VCT}')
            a(f's_mov_b32 s6, {opt.get("spin", 200000)}\ns_add_u32 s9, s{sA}, {off}')
            a(f'{L}:\nbuffer_load_dword v{VCK}, v{VCT}, {srd(sWS)}, s9 offen sc1')
            nbwait(dl)
            a(f'v_cmp_ne_u32 vcc, 1, v{VCK}\ns_sub_u32 s6, s6, 1\ns_cmp_eq_u32 s6, 0\ns_cbranch_scc1 {L}d\ns_cbranch_vccnz {L}\n{L}d:')
        def sliced(fn, dl, n=None):
            lines = a.record(fn); n = n or E('bgn', 22)
            while lines:
                m = n
                while any(x.startswith('s_setprio 3') for x in lines[:m]) and not any(x.startswith('s_setprio 0') for x in lines[:m]): m += 1
                a('\n'.join(lines[:m])); lines = lines[m:]
                if lines: yield_(dl)
        def cs_sum():
            for i in range(16):
                r_ = CSR + i
                if i == 0:
                    a(f'v_lshlrev_b32 v{CA}, 16, v{r_}\nv_and_b32 v{CA+1}, 0xffff0000, v{r_}')
                else:
                    a(f'v_lshlrev_b32 v{CA+4}, 16, v{r_}\nv_and_b32 v{CA+5}, 0xffff0000, v{r_}')
                    a(f'v_add_f32 v{CA}, v{CA}, v{CA+4}\nv_add_f32 v{CA+1}, v{CA+1}, v{CA+5}')
        if not E('cs0', 0):
            earliest(E('e_cs', 'B6'))
            dst('csld0')
            cs_loads((lambda: yield_('XA')) if E('dsl', 0) else None)
        dst('csld1')
        nbwait('XA')
        dst('csld2')
        sliced(cs_sum, 'XA')
        a(f'v_permlane32_swap_b32 v{CA}, v{CA+1}\nv_add_f32 v{CA}, v{CA}, v{CA+1}')
        a(f'v_and_b32 v{T[5]}, 31, v0\nv_lshrrev_b32 v{T[6]}, 5, v0\nv_lshlrev_b32 v{T[6]}, 2, v{T[6]}\nv_lshl_add_u32 v{T[6]}, v{T[5]}, 3, v{T[6]}')
        a(f'v_cmp_gt_u32 vcc, 28, v{T[5]}\nv_cndmask_b32 v{T[6]}, v{OB}, v{T[6]}, vcc')
        a(f's_lshr_b32 s{sT0}, s{sR}, 1\ns_lshl_b32 s{sT0}, s{sT0}, 10\ns_and_b32 s{sT2}, s{sR}, 1\ns_lshl_b32 s{sT2}, s{sT2}, 1\ns_add_u32 s{sT2}, s{sT2}, s{sSW}\ns_mul_i32 s{sT2}, s{sT2}, 224')
        a(f's_add_u32 s{sT0}, s{sT0}, s{sT2}\ns_add_u32 s{sT0}, s{sT0}, s{sD}\ns_add_u32 s{sT0}, s{sT0}, {KV_CS}')
        a(f'buffer_store_dword v{CA}, v{T[6]}, {srd(sWS)}, s{sT0} offen sc1')
        dst('csst')
        nbwait('XA')
        dst('csack')
        earliest('B5')
        a(f's_lshl_b32 s9, s{sR}, 1\ns_add_u32 s9, s9, s{sSW}')
        count(CF_CS, 9)
        earliest(E('e_csc', 'B16'))
        PQR = 64; KVR = 192; ZR = 200
        AK, AZ, NUM, DEN, OUT = 96, 100, 104, 136, 168
        dst('cschk0')
        spin(CF_CS, 64, 'XA')
        dst('cschk1')
        a(f'v_lshlrev_b32 v{T[0]}, 4, v0\nv_cmp_gt_u32 vcc, 56, v0\nv_cndmask_b32 v{T[0]}, v{OB}, v{T[0]}, vcc')
        a(f's_lshl_b32 s{sT2}, s{sSW}, 13\ns_add_u32 s{sT2}, s{sT2}, s{sD}\ns_add_u32 s{sT2}, s{sT2}, {KV_CS}')
        for k in range(8):
            if k % 4 == 0: a(f's_add_u32 s{sT0}, s{sT2}, {k*1024}')
            a(f'buffer_load_dwordx4 {vr(CSR+4*k,4)}, v{T[0]}, {srd(sWS)}, s{sT0} offen offset:{(k&3)*1024} sc1')
            if k == 3 and E('dsl2', 0): yield_('XA')
        def cs_fin():
            for st in (16, 8, 4):
                for k in range(st): a(f'v_add_f32 v{CSR+k}, v{CSR+k}, v{CSR+st+k}')
        dst('csg0')
        nbwait('XA')
        dst('csg1')
        sliced(cs_fin, 'XA', 30)
        a(f'v_lshlrev_b32 v{T[0]}, 4, v0\nv_add_u32 v{T[0]}, {CS3L}, v{T[0]}')
        earliest('B16')
        Lc = lab('cs')
        a(f's_cmp_eq_u32 s{sSW}, 0\ns_cbranch_scc1 {Lc}a')
        a(f'ds_write_b128 v{T[0]}, {vr(CSR,4)} offset:1024\ns_waitcnt lgkmcnt(0)\n{Lc}a:')
        if pf and E('e_p4', 'B13') == 'D': touch(sWO, 16, 8); touch(sW4, 56, 9)
        a(f's_lshl_b32 s7, s{sJ}, 1\ns_add_u32 s7, s7, s{sSW}\ns_lshl_b32 s8, s7, 2\ns_lshl_b32 s7, s7, 12\ns_add_u32 s7, s7, s{sC}\ns_add_u32 s7, s7, {O_OFF}')
        a(f's_lshl_b32 s{sT0}, s{sR}, 7\ns_add_u32 s8, s8, s{sT0}\ns_add_u32 s8, s8, {FL_OFF + FO*4096}\nv_mov_b32 v{VFO}, s8')
        earliest('XA')
        a(f's_cmp_lg_u32 s{sSW}, 0\ns_cbranch_scc1 {Lc}b')
        a(f'ds_read_b128 {vr(CSR+4,4)}, v{T[0]} offset:1024\ns_waitcnt lgkmcnt(0)')
        for k in range(4): a(f'v_add_f32 v{CSR+k}, v{CSR+k}, v{CSR+4+k}')
        a(f'ds_write_b128 v{T[0]}, {vr(CSR,4)}\n{Lc}b:')
        a(f's_lshl_b32 s{sT0}, s{sSW}, 12\ns_add_u32 s{sT0}, s{sT0}, {PQ}\nv_lshl_add_u32 v{T[0]}, v0, 3, s{sT0}')
        for k in range(8): a(f'ds_read_b64 {vr(PQR+2*k,2)}, v{T[0]} offset:{k*512}')
        a('s_waitcnt lgkmcnt(0)')
        kv2 = E('kv2', 0)
        earliest(E('e_kvb', 'XA'))
        dst('kvchk0')
        spin(CF_A, 32, ODL)
        dst('kvchk1')
        if kv2:
            a(f's_lshl_b32 s20, s{sSW}, 5\ns_add_u32 s20, s20, s{sR}\ns_cmp_lt_u32 s20, 34\ns_cselect_b32 s21, 0, {OOB}\ns_lshl_b32 s22, s20, 7\ns_add_u32 s22, s22, s{sD}')
            a(f'v_lshrrev_b32 v{T[1]}, 3, v0\nv_mul_u32_u24 v{T[1]}, {KVP}, v{T[1]}\nv_and_b32 v{T[2]}, 7, v0\nv_lshlrev_b32 v{T[2]}, 4, v{T[2]}\nv_add3_u32 v{T[1]}, v{T[1]}, v{T[2]}, s21')
            for k in range(4):
                a(f's_add_u32 s{sT0}, s22, {k*8*KVP}\nbuffer_load_dwordx4 {vr(KVR+4*k,4)}, v{T[1]}, {srd(sWS)}, s{sT0} offen sc1')
            nbwait(ODL)
            dst('l2ld')
            for k in range(8): a(f'v_add_f32 v{KVR+k}, v{KVR+k}, v{KVR+8+k}')
            for k in range(4): a(f'v_add_f32 v{KVR+k}, v{KVR+k}, v{KVR+4+k}')
            for k in range(4): a(f'v_add_f32_dpp v{KVR+k}, v{KVR+k}, v{KVR+k} row_ror:8 row_mask:0xf bank_mask:0xf')
            for sw_ in ('v_permlane16_swap_b32', 'v_permlane32_swap_b32'):
                if sw_.startswith('v_permlane32'): yield_(ODL)
                for k in range(4): a(f'v_mov_b32 v{KVR+4+k}, v{KVR+k}')
                for k in range(4): a(f'{sw_} v{KVR+k}, v{KVR+4+k}')
                for k in range(4): a(f'v_add_f32 v{KVR+k}, v{KVR+k}, v{KVR+4+k}')
            a(f'v_cmp_gt_u32 vcc, 8, v0\nv_add_u32 v{T[2]}, s21, v{T[2]}\nv_cndmask_b32 v{T[2]}, v{OB}, v{T[2]}, vcc\ns_add_u32 s{sT0}, s22, {KV_FIN}')
            a(f'buffer_store_dwordx4 {vr(KVR,4)}, v{T[2]}, {srd(sWS)}, s{sT0} offen sc1')
            nbwait(ODL)
            count(CF_B, 20)
            dst('l2pub')
            earliest(E('e_kvc', 'B29'))
            spin(CF_B, 64, ODL)
            dst('l2chk')
            a(f'v_lshrrev_b32 v{T[1]}, 4, v0\nv_lshlrev_b32 v{T[1]}, 4, v{T[1]}\nv_and_b32 v{T[0]}, 3, v0\nv_lshl_add_u32 v{T[0]}, v{T[0]}, 8, v{T[1]}')
            a(f'v_bfe_u32 v{T[2]}, v0, 2, 2\nv_lshl_add_u32 v{T[0]}, v{T[2]}, 6, v{T[0]}')
        else:
            a(f'v_lshrrev_b32 v{T[1]}, 4, v0\nv_lshlrev_b32 v{T[1]}, 4, v{T[1]}\nv_and_b32 v{T[0]}, 15, v0\nv_lshl_add_u32 v{T[0]}, v{T[0]}, 6, v{T[1]}')
        fin = KV_FIN if kv2 else 0
        for rep in range(1 if kv2 else NREP):
            a(f's_lshl_b32 s{sT0}, s{sSW}, 11\ns_add_u32 s{sT2}, s{sT0}, s{sD}\ns_add_u32 s{sT2}, s{sT2}, {8192*rep + fin}')
            for hh in range(2): a(f'buffer_load_dwordx4 {vr(KVR+16*rep+4*hh,4)}, v{T[0]}, {srd(sWS)}, s{sT2} offen offset:{hh*1024} sc1')
            a(f's_lshl_b32 s{sT2}, s{sSW}, 7\ns_add_u32 s{sT2}, s{sT2}, s{sD}\ns_add_u32 s{sT2}, s{sT2}, {KV_Z + 8192*rep + fin}')
            for hh in range(2): a(f'buffer_load_dwordx4 {vr(ZR+16*rep+4*hh,4)}, v{T[1]}, {srd(sWS)}, s{sT2} offen offset:{hh*64} sc1')
        dst('kvg0')
        nbwait(ODL)
        dst('kvg1')
        def kv_sum():
            if not kv2:
                for k in range(32): a(f'v_add_f32 v{KVR+k}, v{KVR+k}, v{KVR+32+k}')
                for k in range(16): a(f'v_add_f32 v{KVR+k}, v{KVR+k}, v{KVR+16+k}')
            for hh in range(2):
                a(f'v_cvt_pk_bf16_f32 v{AK+2*hh}, v{KVR+4*hh}, v{KVR+4*hh+1}\nv_cvt_pk_bf16_f32 v{AK+2*hh+1}, v{KVR+4*hh+2}, v{KVR+4*hh+3}')
                a(f'v_cvt_pk_bf16_f32 v{AZ+2*hh}, v{ZR+4*hh}, v{ZR+4*hh+1}\nv_cvt_pk_bf16_f32 v{AZ+2*hh+1}, v{ZR+4*hh+2}, v{ZR+4*hh+3}')
        if E('dprio', 1): a(f's_setprio {E("dprio", 1)}')
        sliced(kv_sum, ODL, E('bgn2', 60))
        def o_compute():
            a('s_setprio 3')
            for k in range(8): a(f'v_mfma_f32_16x16x16_bf16 {vr(DEN+4*k,4)}, {vr(AZ+2*(k>>2),2)}, {vr(PQR+2*k,2)}, 0')
            for k in range(8): a(f'v_mfma_f32_16x16x16_bf16 {vr(NUM+4*k,4)}, {vr(AK+2*(k>>2),2)}, {vr(PQR+2*k,2)}, 0')
            a('s_setprio 0')
            if E('dprio', 1): a(f's_setprio {E("dprio", 1)}')
            for k in range(8): a(f'v_add_f32 v{DEN+4*k}, s{sEPS}, v{DEN+4*k}')
            for k in range(8): a(f'v_rcp_f32 v{DEN+4*k}, v{DEN+4*k}')
            for pr in range(4):
                for k in (2*pr, 2*pr+1):
                    for e in range(4): a(f'v_mul_f32 v{NUM+4*k+e}, v{NUM+4*k+e}, v{DEN+4*k}')
                for u in range(4*pr, 4*pr+4): a(f'v_cvt_pk_bf16_f32 v{OUT+u}, v{NUM+2*u}, v{NUM+2*u+1}')
                a(f'v_permlane16_swap_b32 v{OUT+4*pr}, v{OUT+4*pr+2}\nv_permlane16_swap_b32 v{OUT+4*pr+1}, v{OUT+4*pr+3}')
                a(f'buffer_store_dwordx4 {vr(OUT+4*pr,4)}, v{CELLV}, {srd(sWS)}, s7 offen offset:{(pr>>1)*2048+(pr&1)*512} sc1')
        dst('kvsum')
        sliced(o_compute, ODL, E('bgn3', 40))
        dst('ost')
        nbwait(ODL)
        dst('oack')
        one_lane(f'buffer_store_dword v{VONE}, v{VFO}, {srd(sWS)}, 0 offen sc1')
        if prof: a(f's_mov_b32 s10, s{sBC}'); earliest('B50')
        else: nbwait('B51')
        if prof:
            a(f's_lshl_b32 s{sT0}, s2, 3\ns_add_u32 s{sT0}, s{sT0}, s{sW}\ns_add_u32 s{sT0}, s{sT0}, 5\ns_lshl_b32 s{sT0}, s{sT0}, 8\ns_add_u32 s{sT0}, s{sT0}, {TS_OFF}')
            a(f'v_mov_b32 v2, s10\nv_mov_b32 v3, 0')
            a(f'v_lshlrev_b32 v3, 2, v0\nv_writelane_b32 v{VDS}, s10, 63\nbuffer_store_dword v{VDS}, v3, {srd(sWS)}, s{sT0} offen')
            dump_arrive(0)
        a('s_endpgm')

        a('L_sync:')
        a.vm = []; a.lg = []
        VTS, VTC = 31, 60
        a('s_waitcnt lgkmcnt(0)')
        self.srds(a, skipx=True)
        if prof: a(f'v_mov_b32 v{VTS}, 0\nv_mov_b32 v{VTC}, 0\nv_writelane_b32 v{VTS}, s26, 63')
        nstamp = [0]
        def stamp(last=False):
            if prof:
                if nstamp[0]:
                    a(f's_waitcnt lgkmcnt(0)\nv_writelane_b32 v{VTS}, s{sTSP}, {nstamp[0]-1}\nv_writelane_b32 v{VTC}, s98, {nstamp[0]-1}')
                    a.lg = []
                if not last: a(f's_memrealtime s[{sTSP}:{sTSP+1}]\ns_memtime s[98:99]')
                nstamp[0] += 1
        common_regs()
        a(f's_lshl_b32 s{sT0}, s{sR}, 7\ns_add_u32 s{sT0}, s{sT0}, {FL_OFF}\ns_lshl_b32 s{sT2}, s{sJ}, 2\ns_add_u32 s{sT2}, s{sT2}, s{sT0}\nv_mov_b32 v{VFL}, s{sT2}')
        a(f'v_and_b32 v{VZA}, 7, v0\nv_lshlrev_b32 v{VZA}, 2, v{VZA}\nv_add_u32 v{VFP}, s{sT0}, v{VZA}')
        a(f'v_and_b32 v{VZA}, 15, v0\nv_lshlrev_b32 v{VZA}, 2, v{VZA}\nv_add_u32 v{VFO}, s{sT0}, v{VZA}\nv_and_b32 v{VZA}, 31, v0\nv_lshlrev_b32 v{VZA}, 2, v{VZA}')
        a(f's_cmp_eq_u32 s{sR}, 0\ns_cselect_b32 s{sT2}, 0, -128\ns_cmp_eq_u32 s{sR}, 31\ns_cselect_b32 s{sT3}, 0, 128')
        a(f'v_lshrrev_b32 v{T[3]}, 3, v0\nv_mov_b32 v{T[4]}, 0\nv_mov_b32 v{T[5]}, s{sT2}\nv_mov_b32 v{T[6]}, s{sT3}')
        a(f'v_cmp_eq_u32 vcc, 1, v{T[3]}\nv_cndmask_b32 v{T[4]}, v{T[4]}, v{T[5]}, vcc\nv_cmp_eq_u32 vcc, 2, v{T[3]}\nv_cndmask_b32 v{T[4]}, v{T[4]}, v{T[6]}, vcc')
        a(f'v_add_u32 v{VF3}, v{VFP}, v{T[4]}')
        a(f's_add_u32 s{sT0}, s{sC}, {X1_OFF}\nv_add_u32 v12, s{sT0}, v{CELLV}\nv_subrev_u32 v13, 512, v12')
        stats_setup()
        stamp()
        def touch3(s, rows, dst):
            n = rows // 32
            a(f's_lshr_b32 s{sT0}, s2, 3\ns_mul_i32 s{sT0}, s{sT0}, {n*1024}\ns_add_u32 s{sT0}, s{sT0}, 384')
            a(f'v_lshlrev_b32 v{T[7]}, 10, v0\nv_cmp_gt_u32 vcc, {n}, v0\nv_cndmask_b32 v{T[7]}, v{OB}, v{T[7]}, vcc')
            return a(f'buffer_load_dword v{dst}, v{T[7]}, {srd(s)}, s{sT0} offen')
        def check_issue(vaddr, sr, off):
            a(f's_mov_b32 s{sT0}, {off}\nbuffer_load_dword v{VCK}, v{vaddr}, {srd(sr)}, s{sT0} offen sc1')
        def check_wait(vaddr, sr, off, val):
            L = lab('p')
            a(f's_mov_b32 s{sCNT}, {opt.get("spin", 200000)}\ns_mov_b32 s{sT0}, {off}')
            a(f'{L}:')
            a(f's_waitcnt vmcnt(0)\nv_cmp_ne_u32 vcc, {val}, v{VCK}\ns_sub_u32 s{sCNT}, s{sCNT}, 1\ns_cmp_eq_u32 s{sCNT}, 0\ns_cbranch_vccz {L}d\ns_cbranch_scc1 {L}d')
            a(f'buffer_load_dword v{VCK}, v{vaddr}, {srd(sr)}, s{sT0} offen sc1\ns_branch {L}\n{L}d:')
            a.vm = []
        early = []
        def pre_poll(vaddr, sr, off):
            r = [36, 37, 38][len(early)]
            a(f's_mov_b32 s{sT0}, {off}')
            early.append((r, a(f'buffer_load_dword v{r}, v{vaddr}, {srd(sr)}, s{sT0} offen sc1')))
        def poll(vaddr, sr, off, val):
            L = lab('q')
            check_issue(vaddr, sr, off)
            vm = list(a.vm)
            for r, tk in early:
                a.wait_vm(tk)
                a(f'v_cmp_ne_u32 vcc, {val}, v{r}\ns_nop 1\ns_cbranch_vccz {L}')
            early.clear()
            check_wait(vaddr, sr, off, val)
            a(f'{L}:')
            a.vm = vm[-1:]
        def flag(ftype):
            a(f's_mov_b32 s{sT0}, {ftype*4096}')
            one_lane(f'buffer_store_dword v{VONE}, v{VFL}, {srd(sWS)}, s{sT0} offen sc1')
        if REGS:
            a(f'v_lshrrev_b32 v{row}, 3, v0\nv_and_b32 v{pos}, 7, v0\nv_lshrrev_b32 v{sw}, 4, v0\nv_and_b32 v{sw}, 1, v{sw}\nv_lshlrev_b32 v{sw}, 2, v{sw}')
            a(f'v_xor_b32 v{pos}, v{pos}, v{sw}\nv_lshlrev_b32 v{T[3]}, 4, v{pos}\nv_xor_b32 v{T[4]}, 32, v{T[3]}\ns_lshl_b32 s{sT0}, s{sJ}, 7')
            mk(16, 1024, sT0)
            a(f's_mul_i32 s{sT0}, s{sJ}, 448\ns_and_b32 s{sT4}, s{sJ}, 1\ns_lshl_b32 s{sT2}, s{sT4}, 6\ns_add_u32 s{sT2}, s{sT2}, s{sT0}')
            mk(20, 3584, sT2)
            for sg in range(4):
                if E('rot', 0): a(f's_add_u32 s{sT3}, s{sROT}, {sg}\ns_and_b32 s{sT3}, s{sT3}, 3')
                else: a(f's_mov_b32 s{sT3}, {sg}')
                a(f's_mul_i32 s{sK5+sg}, s{sT3}, {128*3584}')
            a('v_lshlrev_b32 v14, 4, v0')
            for k in range(4): a(f's_add_u32 s{sT3}, s{sRG}, {k}\ns_and_b32 s{sT3}, s{sT3}, 3\ns_mul_i32 s{sKG+k}, s{sT3}, {448*1024}')
        XS = 64; xt = {}
        def xs_loads():
            a(f's_lshl_b32 s{sT0}, s{sR}, 13\ns_add_u32 s{sT0}, s{sT0}, {XS_OFF}\ns_add_u32 s{sT2}, s{sT0}, 4096\nv_lshlrev_b32 v{T[0]}, 3, v0')
            for k in range(16):
                xt['s'] = a(f'buffer_load_dwordx2 {vr(XS+2*k,2)}, v{T[0]}, {srd(sWS)}, s{sT0 if k < 8 else sT2} offen offset:{(k&7)*512} sc1')
        def x1_tail(c):
            if E('rot', 0): a(f's_add_u32 s{sT3}, s{sROT}, {2+c}\ns_and_b32 s{sT3}, s{sT3}, 3\ns_lshl_b32 s{sT3}, s{sT3}, 14')
            else: a(f's_mov_b32 s{sT3}, {(2+c)*16384}')
            for k in range(4*c, 4*c + 4):
                a(f's_mov_b32 m0, {32768 + k*4096}\ns_add_u32 s{sT2}, s{sT3}, {(k&3)*4096}')
                for u in range(4): xt[22 + c] = a(f'buffer_load_dwordx4 v{12+(u&1)}, {srd(sWS)}, s{sT2} offen offset:{u*1024} sc1 lds')
        def xs_final(part):
            G = XS + 4; t = XS + 1
            if part == 0:
                a.wait_vm(xt['s'])
                for st in (16, 8, 4, 2):
                    for k in range(st): a(f'v_add_f32 v{XS+k}, v{XS+k}, v{XS+st+k}')
                return
            a(f'v_mul_f32 v{G}, {f2u(-1/512):#x}, v{XS}\nv_mul_f32 v{t}, {f2u(1/512):#x}, v{t}')
            a(f'v_fma_f32 v{t}, -v{G}, v{G}, v{t}\nv_max_f32 v{t}, 0, v{t}\nv_add_f32 v{t}, {f2u(1e-5):#x}, v{t}')
            a(f'v_rsq_f32 v{t+1}, v{t}\nv_sqrt_f32 v{G+3}, v{t}')
            a(f'v_mul_f32 v{G+1}, {f2u(GC0):#x}, v{t+1}\nv_mul_f32 v{t+2}, v{t+1}, v{t+1}\nv_mul_f32 v{t+2}, v{t+2}, v{t+1}\nv_mul_f32 v{G+2}, {f2u(GC1):#x}, v{t+2}')
            a(f'v_lshlrev_b32 v{T[0]}, 4, v0\nv_add_u32 v{T[0]}, {X1P}, v{T[0]}')
            a(f'ds_write_b128 v{T[0]}, {vr(G,4)}\ns_waitcnt lgkmcnt(0)')
        fhb, fxb, hlb = f"B{E('fh_bar', 6)}", f"B{E('fx_bar', 17)}", f"B{E('hl_bar', 11)}"
        for n in BARS:
            if n == 'XA': poll(VFP, sWS, FX1 * 4096, 1)
            if n == E('e_g0w', 'B33'): check_wait(VFP, sWS, FG0 * 4096, 1)
            if n == f'B{self.need[FG1]}': check_wait(VFP, sWS, FG1 * 4096, 1)
            if n == f'B{self.need[FO]}': check_wait(VFO, sWS, FO * 4096, 1)
            if n == f'B{self.need[FG2]}': check_wait(VFP, sWS, FG2 * 4096, 1)
            if n == hlb: poll(VF3, sWS, FH * 4096, 1)
            if n in ('B22', 'B23') and not E('x1l', 1): a.wait_vm(xt[int(n[1:])])
            if n[0] == 'B' and int(n[1:]) in REGS: a.wait_lg0()
            arrive(IDX[n]); self.barsS.append(n); a('s_barrier')
            stamp()
            if n == fhb: flag(FH)
            if n == fxb: flag(FX1)
            if n == 'B27': flag(FG0)
            if n == 'B33': flag(FG1)
            if n == f"B{E('fg2_bar', 36)}": flag(FG2)
            if n == (f"B{E('fa_bar', 15)}" if E('kv2', 0) else fxb): count(CF_A, sR)
            if n == 'XA':
                if E('xsl', 0): a(f's_sleep {E("xsl", 0)}')
                if not E('x1l', 1): x1_tail(0); xs_loads(); x1_tail(1)
            if n == E('e_xs', 'B20') and E('x1l', 1): xs_loads()
            if n in E('pp_h', 'X').split('.'): pre_poll(VF3, sWS, FH * 4096)
            if n in E('pp_x', 'X').split('.'): pre_poll(VFP, sWS, FX1 * 4096)
            if n == 'B2': check_issue(VZA, sDBG, 0)
            if n == 'B15': pass
            if n[0] == 'B': stats_after(int(n[1:]))
            if n == 'B4': check_wait(VZA, sDBG, 0, 1)
            if n == 'B22': xs_final(0)
            if n == 'B23': xs_final(1)
            if n == E('e_g0i', 'B30'): check_issue(VFP, sWS, FG0 * 4096)
            if n == f'B{max(self.need[FG1] - E("cl", 2), 34)}': check_issue(VFP, sWS, FG1 * 4096)
            if n == f'B{max(self.need[FO] - E("cl", 2), 34)}': check_issue(VFO, sWS, FO * 4096)
            if n == f'B{self.need[FG2] - E("cl", 2)}': check_issue(VFP, sWS, FG2 * 4096)
            if pf and n == E('e_p4', 'B13'):
                for (sr, nl) in ((sWO, 16), (sW4, 56)):
                    a(f's_mul_i32 s{sT0}, s2, {nl*128}\nv_cmp_gt_u32 vcc, {nl}, v0\nv_cndmask_b32 v{T[7]}, v{OB}, v{T[15]}, vcc\nbuffer_load_dword v9, v{T[7]}, {srd(sr)}, s{sT0} offen')
            if t3:
                if n == E('e_t3q', 'B4'): touch3(sQKV, 1536, 7)
                if n == E('e_t32', 'B7'): touch3(sW2, 512, 8)
                if n == E('e_t33', 'B13'): touch3(sW3, 1792, 10)
                if n == E('e_t33b', 'B24'): touch3(sW3, 1792, 11)
                if n == E('e_t34', 'B28'): touch3(sW4, 1792, 11)
                if n == E('e_t35', 'B37'): touch3(sWO, 512, 11); touch3(sW4, 1792, 11)
            reg_step(n, 1, 14, 16)
            if n[0] == 'B' and int(n[1:]) >= max(self.need.values()) + 2 and not prof and not wq_[1] and not any(st in REGS for k, v in ISSUE.items() if isinstance(k, int) and k > int(n[1:]) for st in v):
                a.wait_lg0(); break
        if prof:
            stamp(True)
            a(f's_lshl_b32 s{sT0}, s2, 3\ns_add_u32 s{sT0}, s{sT0}, 4\ns_lshl_b32 s{sT0}, s{sT0}, 8\ns_add_u32 s{sT0}, s{sT0}, {TS_OFF}')
            a(f'v_lshlrev_b32 v2, 2, v0\nbuffer_store_dword v{VTS}, v2, {srd(sWS)}, s{sT0} offen\nbuffer_store_dword v{VTC}, v2, {srd(sWS)}, s{sT0} offen offset:256')
            dump_arrive(0)
        a('s_endpgm')

        a('L_loader:')
        a.vm = vmL; a.lg = []
        VX1 = [24, 25]
        self.srds(a, skipx=True, skip1=True)
        mk(VQ, 3072, sT0)
        a(f's_mul_i32 s{sT0}, s{sJ}, 448\ns_and_b32 s{sT4}, s{sJ}, 1\ns_lshl_b32 s{sT2}, s{sT4}, 6\ns_add_u32 s{sT2}, s{sT2}, s{sT0}')
        mk(VW3, 3584, sT2)
        a(f's_cmp_eq_u32 s{sT4}, 0\ns_cselect_b32 s{sT2}, 384, 0\ns_add_u32 s{sT2}, s{sT2}, s{sT0}')
        a(f'v_and_b32 v{T[3]}, 63, v{T[3]}\nv_and_b32 v{T[4]}, 63, v{T[4]}\nv_lshrrev_b32 v{T[6]}, 2, v{pos}')
        mk(VHF, 3584, sT2)
        for sg in range(4):
            if E('rot', 0): a(f's_add_u32 s{sT3}, s{sROT}, {sg}\ns_and_b32 s{sT3}, s{sT3}, 3')
            else: a(f's_mov_b32 s{sT3}, {sg}')
            a(f's_mul_i32 s{sK5+sg}, s{sT3}, {128*3584}\ns_lshl_b32 s{sKX+sg}, s{sT3}, 14')
        for k in range(4): a(f's_add_u32 s{sT3}, s{sRG}, {k}\ns_and_b32 s{sT3}, s{sT3}, 3\ns_mul_i32 s{sKG+k}, s{sT3}, {448*1024}')
        for sg in (1, 0):
            a(f's_sub_u32 s{sT3}, s{sK5+sg+2}, s{sK5+sg}\nv_mul_lo_u32 v{T[5]}, v{T[6]}, s{sT3}\nv_add_u32 v{T[5]}, s{sK5+sg}, v{T[5]}')
            for i in range(4): a(f'v_add_u32 v{VHF+4*sg+i}, v{VHF+i}, v{T[5]}')
        a(f'v_lshrrev_b32 v{T[0]}, 5, v0\nv_and_b32 v{T[1]}, 31, v0\nv_lshlrev_b32 v{T[0]}, 10, v{T[0]}\nv_lshl_add_u32 v{T[0]}, v{T[1]}, 4, v{T[0]}')
        a(f's_lshl_b32 s{sT0}, s{sR}, 16\ns_add_u32 s{sT0}, s{sT0}, {X1_OFF}')
        a(f'v_add_u32 v{VX1[0]}, s{sT0}, v{T[0]}\nv_subrev_u32 v{VX1[1]}, 512, v{VX1[0]}')
        stats_setup()
        a('v_lshlrev_b32 v26, 4, v0')
        x1tok = {}
        def x1_chunk(sg):
            for g in range(4):
                a(f's_mov_b32 m0, {sg*16384 + g*4096}\ns_add_u32 s{sT2}, s{sKX+sg}, {g*4096}')
                for u in range(4):
                    x1tok[sg] = a(f'buffer_load_dwordx4 v{VX1[u&1]}, {srd(sWS)}, s{sT2} offen offset:{u*1024} sc1 lds')
        for n in BARS:
            b = int(n[1:]) if n[0] == 'B' else None
            if b in REGS: a.wait_lg0()
            elif b is not None:
                a.wait_vm(stok[b])
                if b in ((20, 21, 22, 23) if E('x1l', 1) else (20, 21)): a.wait_vm(x1tok[b - 20])
            arrive(IDX[n]); self.barsL.append(n); a('s_barrier')
            if n == 'XA':
                for c in range(4 if E('x1l', 1) else 2): x1_chunk(c)
            if E('st', 0):
                if b == 0: issue(3, False)
                if b == 1: issue(4)
            else:
                if b == 0: issue(2); issue(3)
                if b == 1: issue(4)
            if b in (2, 3): stats_after(b)
            for st in ISSUE.get(b if b is not None else n, []):
                if st not in REGS: issue(st)
            reg_step(n, 0, 26, V1K)
            if b in (0, 1): stats_after(b)
        dump_arrive(0)
        a('s_endpgm')

    def build(self):
        a = Asm()
        dry = Asm(); self.compute(dry); self.barsC = []
        self.prologue(a)
        self.helper(a)
        a.lg = []; a.vm = []
        a('L_compute:')
        self.compute(a)
        a('L_end:\ns_endpgm')
        assert self.barsC[:-1] == self.barsL and self.barsC[-1] == 'RB2' and self.barsL[:len(self.barsS)] == self.barsS, (self.barsC, self.barsL, self.barsS)
        if self.opt.get('align', 3): self.alstat = align_pass(a, KNAME + ':\n', self.opt.get('align', 3))
        ref = open(f'cdna_kernels/{KNAME[:-7]}.s.ref').read().split('\n')
        head = [l for l in ref if l.startswith(';') and '@launch' not in l]
        if self.dnames: head.append('; dnames ' + ' '.join(self.dnames))
        out = '\n'.join(head) + '\n; @launch grid=(256,1,1) block=(512,1,1) lds=163840\n'
        out += f'.amdgcn_target "amdgcn-amd-amdhsa--gfx950"\n.text\n.globl {KNAME}\n.p2align 8\n.type {KNAME},@function\n{KNAME}:\n'
        out += a.text()
        out += f'''.section .rodata,"a"
.p2align 6
.amdhsa_kernel {KNAME}
  .amdhsa_next_free_vgpr 256
  .amdhsa_next_free_sgpr 102
  .amdhsa_accum_offset 256
  .amdhsa_group_segment_fixed_size 0
  .amdhsa_kernarg_size 88
  .amdhsa_user_sgpr_count 2
  .amdhsa_user_sgpr_kernarg_segment_ptr 1
  .amdhsa_system_sgpr_workgroup_id_x 1
.end_amdhsa_kernel
'''
        return out, a


def generate(**opt):
    g = Gen(opt)
    return g.build()[0]

if __name__ == '__main__':
    opt = {}
    for arg in sys.argv[2:]:
        k, v = arg.split('=')
        opt[k] = int(v) if v.lstrip('-').isdigit() else v
    g = Gen(opt)
    txt, a = g.build()
    open(sys.argv[1], 'w').write(txt)
    print('instructions', len(a.ins), 'pads', a.npad, 'align', getattr(g, 'alstat', None), 'issue', ISSUE)
```

```python
import sys, math, struct
sys.path.insert(0, 'dev')
from asmlib import Asm, align_pass

KNAME = 'parallel_sum__linear_attn_block__mixer_s_mlp__prompt_kernel'

H_OFF, X1_OFF, O_OFF, G_OFF = 0x000000, 0x200000, 0x400000, 0x600000
KV_OFF, FL_OFF, XS_OFF, TS_OFF = 0xE00000, 0xD10000, 0xD20000, 0x1000000
CF_OFF = 0xD00000
WS_BYTES = 0x1200000
KVP, KV_Z, KV_FIN, KV_CS = 4608, 4096, 0x24000, 0x28000
CF_CS, CF_A, CF_B = 0, 1024, 2048
NREP = 4
FH, FX1, FO, FG0, FG1, FG2 = 0, 1, 2, 3, 4, 5
GBLK = 229376
RING = 0x10000
SC = 0x24000
S1, S2, NMU, RHO, RHL = SC, SC + 1024, SC + 2048, SC + 2304, SC + 2560
PQ, X1P, CS3L = SC, SC + 9216, SC + 10240
OOB = 0x80000000

def f2u(x): return struct.unpack('<I', struct.pack('<f', x))[0]
LOG2E = 1.4426950408889634
GC0 = -2.0 * math.sqrt(2.0 / math.pi) * LOG2E
GC1 = GC0 * 0.044715

sX, sQKV, sWO, sW1, sW2, sW3, sW4, sOUT, sWS, sDBG = 28, 32, 36, 40, 44, 48, 52, 56, 60, 64
sR, sJ, sW, sTH, sHI = 68, 69, 70, 71, 72
sT0, sT1, sT2, sT3, sT4, sT5 = 73, 74, 75, 76, 77, 78
sEPS = 80
sONE, sSEL0, sSEL1 = 82, 83, 84
sA, sB, sC, sD = 85, 86, 87, 88
sI0 = 79
sCODE = 92
sCNT = 90
sROT = 89
sRG = 3
sKG = 22
sKC = 96
sBG = 91
sK1, sK3, sK5, sKX = 92, 96, 4, 18
sTSP = 100

def srd(n): return f's[{n}:{n+3}]'
def vr(n, k=1): return f'v{n}' if k == 1 else f'v[{n}:{n+k-1}]'

STAGES = ([('w1', s) for s in range(4)] + [('kv', s) for s in range(8)] + [('w2', s) for s in range(4)] +
          [('wq', s) for s in range(4)] + [('p0', s) for s in range(4)] + [('hf', s) for s in range(2)] +
          [('p1', s) for s in range(4)] + [('p2', s) for s in range(4)] +
          [])
STAGES0 = list(STAGES)
def set_order(order):
    STAGES[:] = STAGES0 + [(k, s) for k in order.split('.') for s in range(2 if k == 'gh' else 4)]
set_order('g0.g1.gh.wo.g2')
def g_rows(kind, s):
    if kind == 'gh': return 896 * s + 192, 896 * s + 640
    p = int(kind[1])
    return 448 * s + 64 * p, 448 * s + 256 + 64 * p
NST = len(STAGES)
AREL = 27

def plan_slots(opt):
    free = [RING + i * 0x4000 for i in range(5)]
    slot = {}; issue = {}
    quota = {13: opt.get('q13', 0), 16: opt.get('q16', 1), 17: 2, 24: 2, 27: 1, 30: opt.get('q30', 3), 34: opt.get('q34', 1)}
    jit = opt.get('jit', 4)
    regs = [int(x) for x in str(opt.get('regs', '')).split('.') if x]
    nxt = 0
    def drain(key, q, b):
        nonlocal nxt
        while free and nxt < NST and (nxt in regs or ((q > 0 or nxt <= b + 2) and not (b >= 35 and nxt > b + jit))):
            slot[nxt] = free.pop(0); issue.setdefault(key, []).append(nxt); q -= nxt not in regs; nxt += 1
    drain(-1, 5, -1)
    for b in range(NST):
        if b == 20:
            free.extend([slot[18], slot[19]]); drain('QE', 2, 19)
        if b >= 2 and b not in (20, 21): free.append(slot[b - 2])
        if b == AREL: free.extend([0, 0x4000, 0x8000, 0xC000])
        if b == 15 and opt.get('rb17', 1): drain('RB1', quota.get(b, 1), b)
        else: drain(b, quota.get(b, 1), b)
    assert nxt == NST
    return slot, issue


class Gen:
    def __init__(self, opt):
        self.opt = opt
        self.barsC = []; self.barsS = []; self.barsL = []; self.dnames = []
        global SLOT, ISSUE
        set_order(opt.get('order', 'g0.g1.gh.g2.wo' if opt.get('kv2', 0) else 'g0.wo.g1.gh.g2'))
        SLOT, ISSUE = plan_slots(opt)

    def prologue(self, a):
        a('s_cmp_ge_u32 s2, 256\ns_cbranch_scc1 L_end')
        a('s_load_dwordx16 s[4:19], s[0:1], 0\ns_load_dwordx4 s[20:23], s[0:1], 64\ns_load_dwordx2 s[24:25], s[0:1], 80')
        if self.opt.get('prof'):
            a(f's_memrealtime s[26:27]\ns_memtime s[90:91]')
        m = self.opt.get('map', 'h4')
        if m == 'same':
            a(f's_and_b32 s{sR}, s2, 7\ns_lshr_b32 s{sT0}, s2, 6\ns_lshl_b32 s{sT0}, s{sT0}, 3\ns_or_b32 s{sR}, s{sR}, s{sT0}')
            a(f's_lshr_b32 s{sJ}, s2, 3\ns_and_b32 s{sJ}, s{sJ}, 7')
        elif m == 'h4':
            a(f's_and_b32 s{sR}, s2, 3\ns_lshr_b32 s{sT0}, s2, 5\ns_lshl_b32 s{sT0}, s{sT0}, 2\ns_or_b32 s{sR}, s{sR}, s{sT0}')
            a(f's_lshr_b32 s{sJ}, s2, 2\ns_and_b32 s{sJ}, s{sJ}, 7')
        elif m == 'cross':
            a(f's_lshr_b32 s{sR}, s2, 3\ns_and_b32 s{sJ}, s2, 7')
        a('v_lshrrev_b32 v1, 6, v0\nv_and_b32 v0, 63, v0')
        a(f'v_readfirstlane_b32 s{sT1}, v1')
        a(f's_mov_b32 s{sX+2}, {2<<20}\ns_mov_b32 s{sX+3}, 0x20000')
        a(f's_and_b32 s{sW}, s{sT1}, 3\ns_and_b32 s{sTH}, s{sT1}, 1\ns_lshr_b32 s{sHI}, s{sW}, 1')
        sh = {'same': 3, 'h4': 2, 'cross': 5}[m] if self.opt.get('rot2', 1) else 8
        a(f's_lshr_b32 s{sROT}, s{sR}, {sh}\ns_add_u32 s{sROT}, s{sROT}, s{sR}\ns_add_u32 s{sROT}, s{sROT}, s{sJ}\ns_and_b32 s{sROT}, s{sROT}, 3')
        sh2 = {'same': 3, 'h4': 2, 'cross': 5}[m]
        if self.opt.get('rotg', 1): a(f's_lshr_b32 s{sRG}, s{sR}, {sh2}\ns_add_u32 s{sRG}, s{sRG}, s{sJ}\ns_and_b32 s{sRG}, s{sRG}, 3')
        else: a(f's_mov_b32 s{sRG}, 0')
        a(f's_cmp_lt_u32 s{sT1}, 4\ns_cbranch_scc1 L_compute')

    def srds(self, a, skipx=False, skip1=False):
        a(f's_mov_b32 s{sEPS}, {f2u(1e-6):#x}\ns_mov_b32 s{sEPS+1}, {f2u(1e-6):#x}\ns_mov_b32 s{sONE}, 0x3f803f80')
        for (s, p, n) in ((sX, 4, 2 << 20), (sW1, 12, 512 * 1024), (sQKV, 6, 512 * 3072), (sWO, 8, 512 * 1024), (sW2, 14, 512 * 1024),
                          (sW3, 16, 512 * 3584), (sW4, 18, 1792 * 1024), (sOUT, 20, 2 << 20), (sWS, 24, WS_BYTES), (sDBG, 22, 256)):
            if s == sX and skipx: continue
            if s == sW1 and skip1: continue
            a(f's_mov_b32 s{s}, s{p}\ns_and_b32 s{s+1}, s{p+1}, 0xffff\ns_mov_b32 s{s+2}, {n}\ns_mov_b32 s{s+3}, 0x20000')

    def run_steps(self, a, steps):
        n = len(steps)
        sched = {}
        for i, s in enumerate(steps):
            sched.setdefault(s['at'], []).append(i)
        def items(i):
            s = steps[i]
            out = []
            if s.get('pre'): out.append(('pre', i))
            out += [('rd', i, t) for t in s['reads']]
            return out
        def emit(it):
            if it[0] == 'pre':
                steps[it[1]]['pre']()
            elif it[0] == 'rd':
                steps[it[1]]['tok'] = a(it[2])
            else:
                it[1]()
        for i in sched.get(-1, []):
            for it in items(i): emit(it)
        for k in range(n):
            s = steps[k]
            if s.get('hook'): s['hook']()
            pend = []
            for i in sched.get(k, []):
                if i == k:
                    for it in items(i): emit(it)
                else:
                    pend += items(i)
            pend += [('post', f) for f in s.get('post', [])]
            vt = s['vm']() if s.get('vm') else None
            a.wait_both(s.get('tok'), vt)
            nm = len(s['mfmas'])
            per = -(-len([p for p in pend if p[0] != 'pre']) // nm) if pend else 0
            for mi, m in enumerate(s['mfmas']):
                a(m)
                if s.get('tail') and s['tail'][mi]: s['tail'][mi]()
                c = 0
                while pend and (c < per or mi == nm - 1):
                    it = pend.pop(0)
                    emit(it)
                    if it[0] != 'pre': c += 1

    def barC(self, a, name):
        self.barsC.append(name); a('s_barrier')

    def gelu(self, a, pairs, tmp, after_first=None):
        P = lambda r: vr(r, 2)
        for i, (ac, cs, st, o) in enumerate(pairs):
            a(f'v_pk_fma_f32 {P(ac)}, {P(cs)}, {P(st)}, {P(ac)} op_sel:[0,0,0] op_sel_hi:[1,0,1]')
        if after_first: after_first()
        for i, (ac, cs, st, o) in enumerate(pairs):
            a(f'v_pk_mul_f32 {P(tmp+2*i)}, {P(ac)}, {P(ac)}')
        for i, (ac, cs, st, o) in enumerate(pairs):
            a(f'v_pk_fma_f32 {P(tmp+2*i)}, {P(tmp+2*i)}, {P(st+2)}, {P(st)} op_sel:[0,0,1] op_sel_hi:[1,0,1]')
        for i, (ac, cs, st, o) in enumerate(pairs):
            a(f'v_pk_mul_f32 {P(tmp+2*i)}, {P(tmp+2*i)}, {P(ac)}')
        for i in range(2 * len(pairs)):
            a(f'v_exp_f32_e64 v{tmp+i}, v{tmp+i}')
        for i, (ac, cs, st, o) in enumerate(pairs):
            a(f'v_pk_fma_f32 {P(tmp+2*i)}, {P(tmp+2*i)}, {P(st+2)}, {P(st+2)} op_sel:[0,1,1] op_sel_hi:[1,1,1]')
        for i in range(2 * len(pairs)):
            a(f'v_rcp_f32_e64 v{tmp+i}, v{tmp+i}')
        for i, (ac, cs, st, o) in enumerate(pairs):
            a(f'v_pk_mul_f32 {P(tmp+2*i)}, {P(tmp+2*i)}, {P(ac)}')
        for i, (ac, cs, st, o) in enumerate(pairs):
            a(f'v_cvt_pk_bf16_f32 v{o}, v{tmp+2*i}, v{tmp+2*i+1}')

    def phi_tail(self, a, acs, outs, tmp):
        P = lambda r: vr(r, 2)
        n = len(acs)
        for i in range(2 * n): a(f'v_exp_f32_e64 v{tmp+i}, v{tmp+i} clamp')
        for ac in acs:
            a(f'v_max_f32_e64 v{ac}, v{ac}, s{sEPS}\nv_max_f32_e64 v{ac+1}, v{ac+1}, s{sEPS}')
        for i, ac in enumerate(acs): a(f'v_pk_add_f32 {P(ac)}, {P(ac)}, {P(tmp+2*i)}')
        for i, ac in enumerate(acs): a(f'v_cvt_pk_bf16_f32 v{outs[i]}, v{ac}, v{ac+1}')

    def compute(self, a):
        opt = self.opt
        P = lambda r: vr(r, 2)
        XB = [2, 3, 4, 5]; PAT16, WK16 = 6, 7
        PATN = [8, 9]; PATP = [10, 11, 12, 13]; PAT3 = [14, 15]
        WK = [16, 17, 18, 19]
        CELLV, CELLT, LL16, RDX = 20, 21, 22, 23
        RES = 24; QST = 40; PST = 196
        ONES = 56
        STA, STB, XE, PSA = 1, 54, 19, 18
        HV = [252, 253, 254, 255]
        T = [240 + i for i in range(12)]
        q, i16, rr, c, h, t32, fsub = 228, 229, 230, 231, 232, 233, 234
        a(f'v_lshrrev_b32 v{q}, 4, v0\nv_and_b32 v{i16}, 15, v0\nv_lshrrev_b32 v{rr}, 2, v{i16}\nv_and_b32 v{c}, 3, v0')
        a(f'v_lshrrev_b32 v{h}, 5, v0\nv_and_b32 v{t32}, 31, v0\nv_and_b32 v{fsub}, 1, v{q}')
        a(f'v_lshlrev_b32 v{LL16}, 4, v0')
        a(f'v_lshlrev_b32 v{T[2]}, 3, v0')
        a(f's_lshr_b32 s{sT3}, s2, 3\ns_lshl_b32 s{sT3}, s{sT3}, 2\ns_add_u32 s{sT3}, s{sT3}, s{sW}\ns_lshl_b32 s{sT3}, s{sT3}, 9')
        a(f's_getpc_b64 s[{sCODE}:{sCODE+1}]\nL_pc:\ns_sub_u32 s{sCODE}, s{sCODE}, L_pc-{KNAME}\ns_subb_u32 s{sCODE+1}, s{sCODE+1}, 0')
        a(f's_and_b32 s{sCODE+1}, s{sCODE+1}, 0xffff\ns_mov_b32 s{sCODE+2}, L_end-{KNAME}\ns_mov_b32 s{sCODE+3}, 0x20000')
        if opt.get('cpf', 1): a(f'buffer_load_dword v24, v{T[2]}, {srd(sCODE)}, s{sT3} offen')
        if opt.get('t0', 0):
            a(f's_lshl_b32 s{sT0}, s{sR}, 3\ns_add_u32 s{sT0}, s{sT0}, s{sJ}\ns_lshl_b32 s{sT0}, s{sT0}, 2\ns_add_u32 s{sT0}, s{sT0}, s{sW}\ns_lshl_b32 s{sT2}, s{sT0}, 9\ns_lshl_b32 s{sT0}, s{sT0}, 11')
            a(f'v_lshlrev_b32 v{T[3]}, 5, v0\ns_mov_b32 s{sW1+2}, {512*1024}\ns_mov_b32 s{sW1+3}, 0x20000')
        a('s_waitcnt lgkmcnt(0)')
        if opt.get('t0', 0):
            a(f's_mov_b32 s{sX}, s4\ns_and_b32 s{sX+1}, s5, 0xffff\nbuffer_load_dword v25, v{T[3]}, {srd(sX)}, s{sT0} offen')
            a(f's_mov_b32 s{sW1}, s12\ns_and_b32 s{sW1+1}, s13, 0xffff\nbuffer_load_dword v26, v{T[2]}, {srd(sW1)}, s{sT2} offen')
        self.srds(a)
        a(f's_lshr_b32 s{sT0}, s{sR}, 2\ns_or_b32 s{sT0}, s{sT0}, s{sW}\ns_cmp_lg_u32 s{sT0}, 0\ns_cbranch_scc1 L_nozero')
        vm0 = list(a.vm)
        a(f'v_mov_b32 v{T[4]}, 0\nv_mov_b32 v{T[5]}, 0\nv_mov_b32 v{T[6]}, 0\nv_mov_b32 v{T[7]}, 0')
        a(f's_lshl_b32 s{sT3}, s{sJ}, 2\ns_add_u32 s{sT3}, s{sT3}, s{sR}')
        a(f's_lshl_b32 s{sT0}, s{sT3}, 10\ns_add_u32 s{sT0}, s{sT0}, {CF_OFF}')
        a(f'buffer_store_dwordx4 {vr(T[4],4)}, v{LL16}, {srd(sWS)}, s{sT0} offen sc1')
        a(f's_lshl_b32 s{sT0}, s{sJ}, 18\ns_lshl_b32 s{sT2}, s{sR}, 13\ns_add_u32 s{sT0}, s{sT0}, s{sT2}\ns_add_u32 s{sT0}, s{sT0}, {KV_OFF}\ns_add_u32 s{sT2}, s{sT0}, 4096')
        for u in range(0 if opt.get('kv2', 0) else 5):
            a(f'buffer_store_dwordx4 {vr(T[4],4)}, v{LL16}, {srd(sWS)}, s{sT0 if u < 4 else sT2} offen offset:{(u&3)*1024} sc1')
        a(f'v_lshlrev_b32 v{T[8]}, 12, v{q}\nv_lshl_add_u32 v{T[8]}, v{i16}, 3, v{T[8]}')
        a(f's_lshl_b32 s{sT0}, s{sT3}, 7\ns_add_u32 s{sT0}, s{sT0}, {FL_OFF}')
        a(f'buffer_store_dwordx2 {vr(T[4],2)}, v{T[8]}, {srd(sWS)}, s{sT0} offen sc1\ns_add_u32 s{sT0}, s{sT0}, 16384')
        a(f'buffer_store_dwordx2 {vr(T[4],2)}, v{T[8]}, {srd(sWS)}, s{sT0} offen sc1')
        a(f'v_mov_b32 v{T[9]}, 1\ns_lshl_b32 s{sT0}, s{sT3}, 2\nv_mov_b32 v{T[10]}, s{sT0}')
        a.wait_vm0()
        a('s_mov_b64 exec, 1')
        a(f'buffer_store_dword v{T[9]}, v{T[10]}, {srd(sDBG)}, 0 offen sc1')
        a('s_mov_b64 exec, -1')
        a('L_nozero:')
        a.vm = vm0
        a(f'v_mov_b32 v{T[1]}, {OOB}')
        for m in range(4):
            a(f'v_or_b32 v{T[0]}, {4*m}, v{q}\nv_xor_b32 v{T[0]}, v{T[0]}, v{i16}\nv_lshlrev_b32 v{T[0]}, 4, v{T[0]}')
            a(f'v_lshl_add_u32 v{XB[m]}, v{i16}, 8, v{T[0]}')
        a(f'v_lshrrev_b32 v{T[4]}, 1, v{rr}\nv_lshlrev_b32 v{T[4]}, 2, v{T[4]}\nv_lshrrev_b32 v{T[5]}, 1, v{c}')
        a(f'v_and_b32 v{T[6]}, 1, v{c}\nv_lshlrev_b32 v{T[6]}, 3, v{T[6]}')
        a(f's_lshl_b32 s{sT0}, s{sW}, 1\nv_add_u32 v{T[7]}, s{sT0}, v{T[5]}\nv_xor_b32 v{T[7]}, v{T[7]}, v{T[4]}')
        a(f'v_lshlrev_b32 v{T[8]}, 1, v{fsub}\nv_xor_b32 v{T[7]}, v{T[7]}, v{T[8]}\nv_lshl_add_u32 v{T[7]}, v{T[7]}, 4, v{T[6]}')
        a(f'v_lshl_add_u32 v{T[9]}, v{q}, 3, v{rr}\nv_lshl_add_u32 v{PAT16}, v{T[9]}, 7, v{T[7]}')
        a(f's_lshl_b32 s{sT0}, s{sHI}, 2\nv_add3_u32 v{T[7]}, s{sT0}, v{T[8]}, v{T[5]}\nv_xor_b32 v{T[7]}, v{T[7]}, v{T[4]}')
        a(f's_lshl_b32 s{sT2}, s{sHI}, 13')
        a(f'v_lshlrev_b32 v{T[9]}, 1, v{h}\nv_xor_b32 v{T[9]}, v{T[9]}, v{T[7]}\nv_lshl_add_u32 v{T[9]}, v{T[9]}, 4, v{T[6]}')
        a(f'v_lshl_add_u32 v{T[10]}, v{h}, 3, v{rr}\nv_lshl_add_u32 v{T[9]}, v{T[10]}, 7, v{T[9]}')
        a(f'v_add_u32 v{PATN[0]}, s{sT2}, v{T[9]}\nv_xor_b32 v{PATN[1]}, 64, v{PATN[0]}')
        a(f'v_lshl_add_u32 v{T[9]}, v{T[7]}, 4, v{T[6]}\nv_lshl_add_u32 v{T[10]}, v{h}, 2, v{rr}\nv_lshl_add_u32 v{PAT3[0]}, v{T[10]}, 7, v{T[9]}')
        a(f'v_xor_b32 v{PAT3[1]}, 32, v{PAT3[0]}\nv_add_u32 v{PAT3[1]}, 1024, v{PAT3[1]}')
        a(f'v_add_u32 v{PATP[0]}, s{sT2}, v{PAT3[0]}\nv_add_u32 v{PATP[1]}, s{sT2}, v{PAT3[1]}')
        a(f'v_xor_b32 v{PATP[2]}, 64, v{PATP[0]}\nv_xor_b32 v{PATP[3]}, 64, v{PATP[1]}')
        a(f'v_lshlrev_b32 v{CELLV}, 10, v{h}\nv_lshl_add_u32 v{CELLV}, v{t32}, 4, v{CELLV}')
        a(f's_lshl_b32 s{sT0}, s{sTH}, 9\nv_add_u32 v{CELLT}, s{sT0}, v{CELLV}')
        for i in range(4): a(f'v_mov_b32 v{ONES+i}, s{sONE}')
        a(f's_lshl_b32 s{sT0}, s{sTH}, 5\nv_add_u32 v{T[0]}, s{sT0}, v{t32}')
        a(f's_lshl_b32 s{sT2}, s{sHI}, 13\nv_lshl_add_u32 v{T[2]}, v{h}, 10, s{sT2}')
        rot = opt.get('rot', 1)
        for g in range(4):
            if rot: a(f's_add_u32 s{sT0}, s{sROT}, {g}\ns_and_b32 s{sT0}, s{sT0}, 3')
            else: a(f's_mov_b32 s{sT0}, {g}')
            a(f's_lshl_b32 s{sKC+g}, s{sT0}, 14\ns_lshr_b32 s{sT3}, s{sT0}, 1\ns_add_u32 s{sT3}, s{sT3}, 1\ns_sub_u32 s{sT4}, 0, s{sT3}\ns_bitcmp1_b32 s{sT0}, 0\ns_cselect_b32 s{sT3}, s{sT3}, s{sT4}')
            a(f'v_add_u32 v{T[3]}, s{sT3}, v{T[0]}\nv_ashrrev_i32 v{T[4]}, 6, v{T[3]}\nv_add_u32 v{T[4]}, s{sR}, v{T[4]}')
            a(f'v_and_b32 v{T[3]}, 63, v{T[3]}\nv_lshl_add_u32 v{T[3]}, v{T[3]}, 4, v{T[2]}\nv_lshl_add_u32 v{T[3]}, v{T[4]}, 16, v{T[3]}\nv_add_u32 v{T[3]}, s{sKC+g}, v{T[3]}')
            a(f'v_cmp_gt_u32 vcc, 32, v{T[4]}\nv_cndmask_b32 v{HV[g]}, v{T[1]}, v{T[3]}, vcc')
        a(f'v_lshlrev_b32 v{STA}, 4, v{i16}\nv_add_u32 v{STA}, {SC}, v{STA}')
        a(f'v_lshlrev_b32 v{STB}, 4, v{q}\nv_add_u32 v{STB}, {NMU}, v{STB}')
        a(f'v_lshlrev_b32 v{PSA}, 4, v{T[0]}\nv_add_u32 v{PSA}, {S2}, v{PSA}')
        a(f's_and_b32 s{sT0}, s{sJ}, 1\ns_lshl_b32 s{sT0}, s{sT0}, 3\ns_lshl_b32 s{sT2}, s{sHI}, 2\ns_add_u32 s{sT0}, s{sT0}, s{sT2}')
        a(f's_lshr_b32 s{sT2}, s{sJ}, 1\ns_sub_u32 s{sT2}, s{sT2}, s{sROT}\ns_and_b32 s{sT2}, s{sT2}, 3\ns_lshl_b32 s{sT2}, s{sT2}, 14')
        a(f'v_xor_b32 v{XE}, s{sT0}, v{i16}\nv_lshlrev_b32 v{XE}, 4, v{XE}\nv_lshl_add_u32 v{XE}, v{h}, 3, v{XE}\nv_lshl_add_u32 v{XE}, v{T[0]}, 8, v{XE}\nv_add_u32 v{XE}, s{sT2}, v{XE}')
        a(f's_xor_b32 s{sT0}, s{sW}, 2\ns_lshl_b32 s{sT0}, s{sT0}, 12\ns_add_u32 s{sT0}, s{sT0}, {SC}\nv_add_u32 v{RDX}, s{sT0}, v{LL16}')
        a(f's_lshl_b32 s{sA}, s{sR}, 16')
        a(f's_lshl_b32 s{sT0}, s{sJ}, 2\ns_add_u32 s{sT0}, s{sT0}, s{sW}\ns_lshl_b32 s{sT0}, s{sT0}, 11\ns_add_u32 s{sB}, s{sA}, s{sT0}')
        if opt.get('kv2', 0): a(f's_mul_i32 s{sT0}, s{sR}, {KVP}')
        else: a(f's_and_b32 s{sT0}, s{sR}, 3\ns_lshl_b32 s{sT0}, s{sT0}, 13')
        a(f's_lshl_b32 s{sC}, s{sJ}, 18\ns_add_u32 s{sC}, s{sC}, s{sT0}\ns_add_u32 s{sC}, s{sC}, {KV_OFF}')
        a(f's_mul_i32 s{sD}, s{sR}, {GBLK}\ns_add_u32 s{sD}, s{sD}, {G_OFF}')

        def cst(k):
            if opt.get('prof') in (1, 2) and opt.get('cset', 0) == k // 8: a(f's_memrealtime s[{4+2*(k%8)}:{5+2*(k%8)}]')
        def stage_pre(st, wks, pats, extra=None, after=None):
            def f():
                if extra: extra()
                self.barC(a, f'B{st}')
                for wk, pt in zip(wks, pats):
                    a(f'v_add_u32 v{wk}, {SLOT[st]}, v{pt}')
                if after: after()
            return f

        def steps_q(first, acc, cs, sets, base_at):
            st = []
            for ks in range(16):
                sb = sets[ks % 3]; stg = first + ks // 4
                reads = [f'ds_read_b64_tr_b16 {vr(sb+16,2)}, v{WK16} offset:{(ks%4)*4096}',
                         f'ds_read_b64_tr_b16 {vr(sb+18,2)}, v{WK16} offset:{(ks%4)*4096+512}']
                reads += [f'ds_read_b128 {vr(sb+4*tt,4)}, v{XB[ks&3]} offset:{tt*4096+(ks>>2)*16384}' for tt in range(4)]
                mf = [f'v_mfma_f32_16x16x32_bf16 {vr(cs,4)}, {vr(sb+16,4)}, {vr(ONES,4)}, {vr(cs,4) if ks else 0}']
                mf += [f'v_mfma_f32_16x16x32_bf16 {vr(acc+4*tt,4)}, {vr(sb+16,4)}, {vr(sb+4*tt,4)}, {vr(acc+4*tt,4) if ks else 0}' for tt in range(4)]
                st.append(dict(reads=reads, mfmas=mf, at=base_at + ks - 2, stage=stg if ks % 4 == 0 else None))
            return st

        HACC, HCS, HSETS = 60, 76, [80, 100, 120]
        KACC, VACC, KCS, VCS, KSETS = 140, 156, 172, 176, [180, 204]
        HF = 60; P2ACC = 140
        steps = steps_q(0, HACC, HCS, HSETS, 0)
        steps[0]['at'] = -1; steps[1]['at'] = -1
        for s in steps:
            if s['stage'] is not None: s['pre'] = stage_pre(s['stage'], [WK16], [PAT16])
        nh = len(steps)

        htok = {}
        HST = 80
        def h_stats_reads():
            for tt in range(4):
                htok['s'] = a(f'ds_read_b128 {vr(228+4*tt,4)}, v{STA} offset:{tt*256}')
        def h_epilogue():
            ST = 228; TMP = 100; OUT = 116
            a.wait_lg(htok['s'])
            pairs = [(HACC + 2*u, HCS + 2*(u & 1), ST + 4*(u >> 1), OUT + u) for u in range(8)]
            self.gelu(a, pairs, TMP)
            for pr in range(2):
                a(f'v_permlane16_swap_b32 v{OUT+4*pr}, v{OUT+4*pr+2}\nv_permlane16_swap_b32 v{OUT+4*pr+1}, v{OUT+4*pr+3}')
                htok['st'] = a(f'buffer_store_dwordx4 {vr(OUT+4*pr,4)}, v{CELLV}, {srd(sWS)}, s{sB} offen offset:{pr*512} sc1')
            cst(0)

        hl = {}; xp = {}
        def hload(n):
            sg, i = n // 4, n % 4
            if i % 2 == 0: a(f's_mov_b32 s{sI0}, {H_OFF + (i>>1)*4096}')
            hl[n] = a(f'buffer_load_dwordx4 {vr(HF+4*n,4)}, v{HV[sg]}, {srd(sWS)}, s{sI0} offen offset:{(i&1)*2048} sc1')
        for ks in range(16):
            sb = KSETS[ks % 2]; stg = 4 + ks // 2
            o = (ks % 2) * 4096
            reads = [f'ds_read_b64_tr_b16 {vr(sb+16,2)}, v{WK16} offset:{o}', f'ds_read_b64_tr_b16 {vr(sb+18,2)}, v{WK16} offset:{o+512}',
                     f'ds_read_b128 {vr(sb,4)}, v{XB[ks&3]} offset:{(ks>>2)*16384}',
                     f'ds_read_b64_tr_b16 {vr(sb+20,2)}, v{WK16} offset:{o+8192}', f'ds_read_b64_tr_b16 {vr(sb+22,2)}, v{WK16} offset:{o+8192+512}']
            reads += [f'ds_read_b128 {vr(sb+4*tt,4)}, v{XB[ks&3]} offset:{tt*4096+(ks>>2)*16384}' for tt in range(1, 4)]
            mf = [f'v_mfma_f32_16x16x32_bf16 {vr(KCS,4)}, {vr(ONES,4)}, {vr(sb+16,4)}, {vr(KCS,4) if ks else 0}',
                  f'v_mfma_f32_16x16x32_bf16 {vr(VCS,4)}, {vr(ONES,4)}, {vr(sb+20,4)}, {vr(VCS,4) if ks else 0}']
            for tt in range(4):
                mf.append(f'v_mfma_f32_16x16x32_bf16 {vr(KACC+4*tt,4)}, {vr(sb+4*tt,4)}, {vr(sb+16,4)}, {vr(KACC+4*tt,4) if ks else 0}')
                mf.append(f'v_mfma_f32_16x16x32_bf16 {vr(VACC+4*tt,4)}, {vr(sb+4*tt,4)}, {vr(sb+20,4)}, {vr(VACC+4*tt,4) if ks else 0}')
            s = dict(reads=reads, mfmas=mf, at=nh + ks - 1)
            if ks % 2 == 0:
                extra = after = None
                if stg == opt.get('fh_bar', 6): extra = lambda: (a.wait_vm(htok['st']), cst(1))
                if stg == opt.get('hl_bar', 11): after = lambda: a.inject([lambda n=n: hload(n) for n in range(16)], opt.get('hl_every', 16))
                if stg == 4: after = h_stats_reads
                if stg == opt.get('hl_bar', 11) - 1: after = lambda: xn_prep()
                if stg == opt.get('hl_bar', 11): extra = lambda: xn_prep2()
                s['pre'] = stage_pre(stg, [WK16], [PAT16], extra, after)
            steps.append(s)
        kr0, kp0 = steps[nh]['reads'], steps[nh]['pre']
        steps[nh]['reads'] = []; steps[nh]['pre'] = None
        def h_hook():
            kp0()
            for t in kr0: steps[nh]['tok'] = a(t)
            h_epilogue()
        steps[nh]['hook'] = h_hook
        nkv = len(steps)

        ASETS = [228, 236, 244]
        def steps_ks(first, nstage, pats, natural, acc, bfrag, asets, base, setphase=0, init=True, c_init=None):
            st = []
            for n in range(4 * nstage):
                stg = first + n // 4; i = n % 4
                sb = asets[(n + setphase) % 3]
                reads = []
                for t in range(2):
                    for rd in range(2):
                        if natural:
                            reads.append(f'ds_read_b64_tr_b16 {vr(sb+4*t+2*rd,2)}, v{WK[t]} offset:{i*2048+rd*512}')
                        else:
                            reads.append(f'ds_read_b64_tr_b16 {vr(sb+4*t+2*rd,2)}, v{WK[2*t+rd]} offset:{i*2048}')
                b = bfrag(n)
                c0 = vr(acc if (n or c_init is None) else c_init, 16)
                c1 = vr(acc + 16, 16) if (n or not init) else 0
                mf = [f'v_mfma_f32_32x32x16_bf16 {vr(acc,16)}, {vr(sb,4)}, {vr(b,4)}, {c0}',
                      f'v_mfma_f32_32x32x16_bf16 {vr(acc+16,16)}, {vr(sb+4,4)}, {vr(b,4)}, {c1}']
                s = dict(reads=reads, mfmas=mf, at=base + n - 2)
                if i == 0: s['pre'] = stage_pre(stg, WK[:len(pats)], pats)
                st.append(s)
            return st

        p2 = steps_ks(12, 4, PATN, True, P2ACC, lambda n: HF + 4 * n, ASETS, nkv, c_init=124)
        p2[0]['at'] = nkv - 1; p2[1]['at'] = nkv - 1
        XN = 124
        def xn_prep():
            XR = 228
            a(f'v_xor_b32 v{XR+8}, 16, v{XE}\nv_xor_b32 v{XR+9}, 32, v{XE}\nv_xor_b32 v{XR+10}, 48, v{XE}')
            a(f'ds_read_b64 {vr(XR,2)}, v{XE}')
            for g in range(1, 4): a(f'ds_read_b64 {vr(XR+2*g,2)}, v{XR+7+g}')
            xp['t'] = a(f'ds_read_b64 {vr(XR+12,2)}, v{PSA}')
        def xn_prep2():
            XR = 228
            a.wait_lg(xp['t'])
            for g in range(4):
                for d in range(2):
                    a(f'v_lshlrev_b32 v{RES+4*g+2*d}, 16, v{XR+2*g+d}\nv_and_b32 v{RES+4*g+2*d+1}, 0xffff0000, v{XR+2*g+d}')
            a(f'v_mul_f32 v{XR+12}, v{XR+12}, v{XR+13}')
            for u in range(16): a(f'v_fma_f32 v{XN+u}, v{RES+u}, v{XR+13}, v{XR+12}')
        def kv_epilogue():
            cst(16)
            SN, SR_, SL = 180, 196, 212
            for tt in range(4): a(f'ds_read_b128 {vr(SN+4*tt,4)}, v{STB} offset:{tt*64}')
            for tt in range(4): tk1 = a(f'ds_read_b128 {vr(SL+4*tt,4)}, v{STB} offset:{tt*64+512}')
            for tt in range(4): tk = a(f'ds_read_b128 {vr(SR_+4*tt,4)}, v{STB} offset:{tt*64+256}')
            a.wait_lg(tk1)
            for u in range(8):
                a(f'v_pk_fma_f32 {P(KACC+2*u)}, {P(SN+2*u)}, {P(KCS)}, {P(KACC+2*u)} op_sel_hi:[1,0,1]')
            for u in range(8):
                a(f'v_pk_fma_f32 {P(VACC+2*u)}, {P(SN+2*u)}, {P(VCS)}, {P(VACC+2*u)} op_sel_hi:[1,0,1]')
            for u in range(8):
                a(f'v_pk_mul_f32 {P(SL+2*u)}, {P(SL+2*u)}, {P(KACC+2*u)}')
            a.wait_lg(tk)
            for tt in range(4):
                a(f'ds_read_b128 {vr(QST+4*tt,4)}, v{STA} offset:{1024+tt*256}')
            for u in range(8):
                a(f'v_pk_fma_f32 {P(KACC+2*u)}, {P(KACC+2*u)}, {P(SR_+2*u)}, s[{sEPS}:{sEPS+1}]')
            for u in range(8):
                a(f'v_pk_mul_f32 {P(VACC+2*u)}, {P(VACC+2*u)}, {P(SR_+2*u)}')
            cst(17)
            PKR, PVR = 180, 188
            for u in range(8): a(f'v_cvt_pk_bf16_f32 v{PVR+u}, v{VACC+2*u}, v{VACC+2*u+1}')
            self.phi_tail(a, [KACC + 2*u for u in range(8)], [PKR + u for u in range(8)], SL)
            KVA, ZA = 172, 176
            XR = 196
            cst(18)
            a(f'v_mfma_f32_16x16x32_bf16 {vr(ZA,4)}, {vr(PKR,4)}, {vr(ONES,4)}, 0')
            a(f'v_mfma_f32_16x16x32_bf16 {vr(KVA,4)}, {vr(PVR,4)}, {vr(PKR,4)}, 0')
            a(f'v_mfma_f32_16x16x32_bf16 {vr(ZA,4)}, {vr(PKR+4,4)}, {vr(ONES,4)}, {vr(ZA,4)}')
            a(f'v_mfma_f32_16x16x32_bf16 {vr(KVA,4)}, {vr(PVR+4,4)}, {vr(PKR+4,4)}, {vr(KVA,4)}')
            a(f'v_and_b32 v{XR+3}, 15, v0\nv_lshrrev_b32 v{XR+4}, 4, v0\nv_lshlrev_b32 v{XR+2}, 8, v{XR+4}\nv_lshl_add_u32 v{XR+2}, v{XR+3}, 2, v{XR+2}')
            if opt.get('kv2', 0): a(f'v_lshlrev_b32 v{XR+2}, 2, v0')
            a(f'v_lshl_add_u32 v{XR+4}, v{XR+4}, 2, v{XR+3}\nv_lshlrev_b32 v{XR+4}, 2, v{XR+4}')
            a(f'v_mov_b32 v{XR+5}, {OOB}\nv_cmp_gt_u32 vcc, 4, v{XR+3}\ns_lshl_b32 s{sT0}, s{sW}, 10\ns_add_u32 s{sT0}, s{sT0}, s{sC}\nv_cndmask_b32 v{XR+4}, v{XR+5}, v{XR+4}, vcc')
            a.flush_inject()
            cst(19)
            a(f'v_cmp_eq_u32 vcc, 1, v{XR+3}\ns_lshl_b32 s{sT2}, s{sW}, 6\ns_add_u32 s{sT2}, s{sT2}, s{sC}\ns_add_u32 s{sT2}, s{sT2}, {KV_Z}\nv_cndmask_b32 v{ZA}, v{ZA}, v{ZA+1}, vcc')
            for k in range(4):
                if k < 2: a(f'v_cmp_eq_u32 vcc, {k+2}, v{XR+3}')
                a(f'buffer_store_dword v{KVA+k}, v{XR+2}, {srd(sWS)}, s{sT0} offen offset:{k*256} sc1' if opt.get('kv2', 0) else f'buffer_atomic_add_f32 v{KVA+k}, v{XR+2}, {srd(sWS)}, s{sT0} offen offset:{k*64}')
                if k < 2: a(f'v_cndmask_b32 v{ZA}, v{ZA}, v{ZA+k+2}, vcc')
            htok['kv'] = a(f'buffer_store_dword v{ZA}, v{XR+4}, {srd(sWS)}, s{sT2} offen sc1' if opt.get('kv2', 0) else f'buffer_atomic_add_f32 v{ZA}, v{XR+4}, {srd(sWS)}, s{sT2} offen')
        p2[0]['hook'] = kv_epilogue
        if opt.get('kv2', 0):
            kb = 4 * (opt.get('fa_bar', 15) - 12)
            okb = p2[kb]['pre']
            p2[kb]['pre'] = lambda: (a.wait_vm(htok['kv']), okb())
        for n, s in enumerate(p2):
            s['vm'] = (lambda n=n: hl[n])
            if n in (1, 8, 15): s['hook'] = (lambda n=n: cst({1: 20, 8: 21, 15: 22}[n]))
        steps += p2
        np2 = len(steps)

        qs = steps_q(16, HACC, HCS, HSETS, np2)
        x1tok = {}
        for s in qs:
            if s['stage'] is not None:
                extra = None
                if s['stage'] == opt.get('fx_bar', 17): extra = lambda: (a.wait_vm(x1tok['st']), cst(3))
                s['pre'] = stage_pre(s['stage'], [WK16], [PAT16], extra)
        qr0, qr1 = qs[0]['reads'], qs[1]['reads']
        qs[0]['reads'] = []; qs[1]['reads'] = []; qs[0]['pre'] = None
        qs[0]['at'] = np2; qs[1]['at'] = np2
        def early_send(st, acc, rcv):
            a_, b_ = st[-2], st[-1]
            m0, m1 = a_['mfmas']; m2, m3 = b_['mfmas']
            va, vb = a_['vm'], b_['vm']
            a_['mfmas'] = [m1]
            b_['mfmas'] = [m3, m0, m2]
            b_['tail'] = [None, lambda: a(f'v_xor_b32 v{rcv}, 8192, v{RDX}'), None]
        def exchange(acc, rcv, nb, between=None):
            if not opt.get('esend', 1): a(f'v_xor_b32 v{rcv}, 8192, v{RDX}')
            for g in range(4):
                a(f'ds_write_b128 v{rcv}, {vr(acc+16+4*g,4)} offset:{g*1024}')
            if between: between()
            a.wait_lg0()
            self.barC(a, nb)
            return [a(f'ds_read_b128 {vr(rcv+4*g,4)}, v{RDX} offset:{g*1024}') for g in range(4)]
        def p2_epilogue():
            RCV = 180; OUT = 196; SS = 204
            cst(23)
            def between():
                a(f's_lshl_b32 s{sT2}, s{sJ}, 1\ns_add_u32 s{sT2}, s{sT2}, s{sHI}\ns_lshl_b32 s{sT0}, s{sT2}, 12\ns_add_u32 s{sT0}, s{sT0}, s{sA}\ns_add_u32 s{sT0}, s{sT0}, {X1_OFF}')
                a(f's_lshl_b32 s{sT2}, s{sT2}, 9\ns_lshl_b32 s{sT3}, s{sR}, 13\ns_add_u32 s{sT2}, s{sT2}, s{sT3}\ns_lshl_b32 s{sT3}, s{sTH}, 8\ns_add_u32 s{sT2}, s{sT2}, s{sT3}\ns_add_u32 s{sT2}, s{sT2}, {XS_OFF}')
                a(f'v_add_u32 v{WK16}, {SLOT[16]}, v{PAT16}')
                a(f'v_and_b32 v{SS+8}, 31, v0\nv_lshrrev_b32 v{SS+9}, 5, v0\nv_lshlrev_b32 v{SS+9}, 2, v{SS+9}\nv_lshl_add_u32 v{SS+8}, v{SS+8}, 3, v{SS+9}')
            tk = exchange(P2ACC, RCV, 'RB1', between)
            for b in range(2):
                a.wait_lg(tk[2*b+1])
                for u in range(4*b, 4*b+4): a(f'v_pk_add_f32 {P(P2ACC+2*u)}, {P(P2ACC+2*u)}, {P(RCV+2*u)}')
                for u in range(4*b, 4*b+4): a(f'v_cvt_pk_bf16_f32 v{OUT+u}, v{P2ACC+2*u}, v{P2ACC+2*u+1}')
                a(f'buffer_store_dwordx4 {vr(OUT+4*b,4)}, v{CELLT}, {srd(sWS)}, s{sT0} offen offset:{b*2048} sc1')
            a(f'v_pk_add_f32 {P(SS)}, {P(P2ACC)}, {P(P2ACC+2)}\nv_pk_mul_f32 {P(SS+2)}, {P(P2ACC)}, {P(P2ACC)}')
            a(f'v_pk_add_f32 {P(SS+4)}, {P(P2ACC+4)}, {P(P2ACC+6)}\nv_pk_mul_f32 {P(SS+6)}, {P(P2ACC+2)}, {P(P2ACC+2)}')
            for u in range(2, 8):
                k = 4 * (u & 1)
                a(f'v_pk_fma_f32 {P(SS+2+k)}, {P(P2ACC+2*u)}, {P(P2ACC+2*u)}, {P(SS+2+k)}')
                if u >= 4: a(f'v_pk_add_f32 {P(SS+k)}, {P(SS+k)}, {P(P2ACC+2*u)}')
            a(f'v_pk_add_f32 {P(SS)}, {P(SS)}, {P(SS+4)}\nv_pk_add_f32 {P(SS+2)}, {P(SS+2)}, {P(SS+6)}')
            a(f'v_add_f32 v{SS}, v{SS}, v{SS+1}\nv_add_f32 v{SS+2}, v{SS+2}, v{SS+3}')
            a(f'v_permlane32_swap_b32 v{SS}, v{SS+2}\nv_add_f32 v{SS}, v{SS}, v{SS+2}')
            x1tok['st'] = a(f'buffer_store_dword v{SS}, v{SS+8}, {srd(sWS)}, s{sT2} offen sc1')
            cst(2)
            for u in range(8): a(f'v_pk_add_f32 {P(RES+2*u)}, {P(RES+2*u)}, {P(P2ACC+2*u)}')
            if opt.get('fx_bar', 17) == 16:
                a.wait_vm(x1tok['st']); cst(3)
            self.barC(a, 'B16')
            for t in qr0: qs[0]['tok'] = a(t)
            for t in qr1: qs[1]['tok'] = a(t)
        qs[0]['hook'] = p2_epilogue
        if opt.get('esend', 1): early_send(p2, P2ACC, 180)
        steps += qs
        nq = len(steps)

        BST = 128; A3 = [60, 68, 76]; ACA, ACB = 84, 100
        GST = 40; GT = 44; CSG = 112
        X1B, CSB, CSB2, HFB = 2, 3, 4, 5
        HP = [6, 7]
        def q_epilogue():
            TMP = 100; OUT = 116; QP = 80
            self.barC(a, 'QE')
            for u in range(8):
                a(f'v_pk_fma_f32 {P(HACC+2*u)}, {P(HCS+2*(u&1))}, {P(QST+4*(u>>1))}, {P(HACC+2*u)} op_sel_hi:[1,0,1]')
            for u in range(8):
                a(f'v_pk_mul_f32 {P(TMP+2*u)}, {P(HACC+2*u)}, {P(QST+4*(u>>1)+2)} op_sel_hi:[1,0]')
            for u in range(8):
                a(f'v_pk_fma_f32 {P(HACC+2*u)}, {P(HACC+2*u)}, {P(QST+4*(u>>1))}, s[{sEPS}:{sEPS+1}] op_sel:[0,1,0] op_sel_hi:[1,1,1]')
            self.phi_tail(a, [HACC + 2*u for u in range(8)], [OUT + u for u in range(8)], TMP)
            a(f's_lshl_b32 s{sT0}, s{sW}, 11\ns_add_u32 s{sT0}, s{sT0}, {PQ}\nv_lshlrev_b32 v{QP}, 3, v0\nv_add_u32 v{QP}, s{sT0}, v{QP}')
            for tt in range(4): a(f'ds_write_b64 v{QP}, {vr(OUT+2*tt,2)} offset:{tt*512}')
            a(f's_lshl_b32 s{sT0}, s{sTH}, 10\nv_add_u32 v{X1B}, s{sT0}, v{LL16}')
            a(f's_lshl_b32 s{sT2}, s{sHI}, 15\nv_add_u32 v{HFB}, s{sT2}, v{X1B}')
            a(f's_and_b32 s{sT3}, s{sJ}, 1\ns_lshl_b32 s{sT4}, s{sT3}, 5')
            a(f's_lshl_b32 s{sT0}, s{sHI}, 5\ns_add_u32 s{sT0}, s{sT0}, s{sT4}\ns_lshl_b32 s{sT0}, s{sT0}, 2\ns_add_u32 s{sT0}, s{sT0}, {CS3L}')
            a(f'v_lshrrev_b32 v{QP+1}, 5, v0\nv_lshlrev_b32 v{QP+1}, 4, v{QP+1}\nv_add_u32 v{CSB}, s{sT0}, v{QP+1}')
            a(f's_cmp_eq_u32 s{sT3}, 0\ns_cselect_b32 s{sT5}, 192, 0')
            a(f's_lshl_b32 s{sT0}, s{sHI}, 4\ns_add_u32 s{sT0}, s{sT0}, s{sT5}\ns_lshl_b32 s{sT0}, s{sT0}, 2\ns_add_u32 s{sT0}, s{sT0}, {CS3L}')
            a(f'v_add_u32 v{CSB2}, s{sT0}, v{QP+1}')
            a(f's_lshl_b32 s{sT0}, s{sHI}, 5\nv_xor_b32 v{HP[0]}, s{sT0}, v{PAT3[0]}\nv_xor_b32 v{HP[1]}, s{sT0}, v{PAT3[1]}')
            a(f'v_and_b32 v{STA}, 31, v0\nv_lshlrev_b32 v{STA}, 4, v{STA}\ns_lshl_b32 s{sT0}, s{sTH}, 9\ns_add_u32 s{sT0}, s{sT0}, {X1P}\nv_add_u32 v{STA}, s{sT0}, v{STA}')
            a(f's_mul_i32 s{sT0}, s{sJ}, 14\ns_lshr_b32 s{sT4}, s{sT4}, 4\ns_lshl_b32 s{sT2}, s{sHI}, 1\ns_add_u32 s{sB}, s{sT0}, s{sT4}\ns_add_u32 s{sB}, s{sB}, s{sT2}')
            a(f's_lshl_b32 s{sB}, s{sB}, 11\ns_add_u32 s{sB}, s{sB}, s{sD}')
            a(f's_lshr_b32 s{sT5}, s{sT5}, 4\ns_add_u32 s{sC}, s{sT0}, s{sT5}\ns_add_u32 s{sC}, s{sC}, s{sHI}\ns_lshl_b32 s{sC}, s{sC}, 11\ns_add_u32 s{sC}, s{sC}, s{sD}')
            a.wait_lg0()
            self.barC(a, 'XA')

        HB = [44, 116, 52]
        def steps_p3(first, nstage, acc, pats, base, kind, phase):
            st = []
            for n in range(4 * nstage):
                stg = first + n // 4
                sb = A3[(n + phase) % 3]
                reads = []; mf = []
                for u in range(2):
                    i = 2 * n + u; s_ = i % 8
                    reads += [f'ds_read_b64_tr_b16 {vr(sb+4*u+2*rd,2)}, v{WK[rd]} offset:{s_*2048}' for rd in range(2)]
                    if kind == 'p0':
                        reads.append(f'ds_read_b128 {vr(BST+4*i,4)}, v{X1B} offset:{i*2048}'); b = BST + 4 * i
                    elif kind == 'hf':
                        b = HB[(n % 3)] + 4 * u
                        reads.append(f'ds_read_b128 {vr(b,4)}, v{HFB} offset:{i*2048}')
                    else:
                        b = BST + 4 * i
                    mf.append(f'v_mfma_f32_32x32x16_bf16 {vr(acc,16)}, {vr(sb+4*u,4)}, {vr(b,4)}, {vr(acc,16) if i else 0}')
                s = dict(reads=reads, mfmas=mf, at=base + n - 2)
                if n % 4 == 0: s['pre'] = stage_pre(stg, WK[:2], pats)
                st.append(s)
            return st
        gtok = {}
        def cs_reads(csreg, csoff, ng):
            def one(g):
                gtok['cs'] = a(f'ds_read_b128 {vr(CSG+4*g,4)}, v{csreg} offset:{csoff+g*32}')
            return [lambda g=g: one(g) for g in range(ng)]
        def g_epi(acc, ng, sbase, after_first=None, cs_=None):
            a.wait_lg(gtok['cs'])
            pairs = [(acc + 2*u, CSG + 2*u, GST, acc + 8*(u >> 2) + (u & 3)) for u in range(2 * ng)]
            self.gelu(a, pairs, GT, after_first)
            if cs_: cst(cs_)
            for b in range(ng // 2):
                gtok['st'] = a(f'buffer_store_dwordx4 {vr(acc+8*b,4)}, v{CELLT}, {srd(sWS)}, s{sbase} offen offset:{b*2048} sc1')
        def hf_send():
            t = GT
            a(f's_lshl_b32 s{sT0}, s{sW}, 11\ns_add_u32 s{sT0}, s{sT0}, {SC}\nv_add_u32 v{t}, s{sT0}, v{LL16}')
            a(f'ds_write_b128 v{t}, {vr(ACB+8,4)}')
            gtok['hfw'] = a(f'ds_write_b128 v{t}, {vr(ACB+12,4)} offset:1024')
            a(f'v_xor_b32 v{HFB}, 4096, v{t}')

        p0 = steps_p3(20, 4, ACA, PAT3, nq, 'p0', 0)
        p0[0]['at'] = nq; p0[1]['at'] = nq; p0[0]['hook'] = q_epilogue
        p0[15]['post'] = [lambda: a(f'ds_read_b128 {vr(GST,4)}, v{STA}')] + cs_reads(CSB, 0, 4)
        steps += p0; n0 = len(steps)
        hf = steps_p3(24, 2, ACB, HP, n0, 'hf', 16)
        for k in range(2):
            hf[k]['late'] = [t for t in hf[k]['reads'] if 'b128' in t]
            hf[k]['reads'] = [t for t in hf[k]['reads'] if 'b128' not in t]
        def hf_hook():
            g_epi(ACA, 4, sB)
            gtok['g0'] = gtok['st']
            for k in range(2):
                for t in hf[k]['late']: hf[k]['tok'] = a(t)
            a(f's_add_u32 s{sB}, s{sB}, 8192')
        hf[0]['hook'] = hf_hook
        steps += hf; n1 = len(steps)
        p1 = steps_p3(26, 4, ACA, PAT3, n1, 'p', 24)
        p1[0]['hook'] = hf_send
        old = p1[4]['pre']
        p1[4]['pre'] = lambda: (a.wait_lg(gtok['hfw']), old())
        def hf_recv():
            a(f'ds_read_b128 {vr(ACB+8,4)}, v{HFB}')
            gtok['hfr'] = a(f'ds_read_b128 {vr(ACB+12,4)}, v{HFB} offset:1024')
        def hf_add(k):
            a.wait_lg(gtok['hfr'])
            for u in range(4*k, 4*k+4): a(f'v_add_f32_e64 v{ACB+u}, v{ACB+u}, v{ACB+8+u}')
        p1[8]['post'] = [hf_recv]
        p1[11]['post'] = [lambda: hf_add(0)]
        p1[12]['post'] = [lambda: hf_add(1)]
        p1[15]['post'] = cs_reads(CSB, 256, 4)
        steps += p1; n2 = len(steps)
        p2_ = steps_p3(30, 4, ACA, PAT3, n2, 'p', 40)
        def p1_epilogue():
            cst(8)
            g_epi(ACA, 4, sB, lambda: [f() for f in cs_reads(CSB2, 0, 2)], 9)
            a(f's_add_u32 s{sB}, s{sB}, 8192')
            cst(10)
            g_epi(ACB, 2, sC, None, 11)
            gtok['g1'] = gtok['st']
            cst(12)
        p2_[0]['hook'] = p1_epilogue
        p2_[15]['post'] = cs_reads(CSB, 512, 4)
        p2_[1]['hook'] = lambda: cst(13)
        p2_[2]['hook'] = lambda: cst(14)
        p2_[3]['hook'] = lambda: cst(15)
        steps += p2_; n3 = len(steps)

        P4ACC = 84; FR = 128
        p4 = []
        fl = {}
        def fload(n):
            kind, sg = STAGES[34 + n // 4]; i = n % 4
            if i % 2 == 0:
                if i: a(f's_add_u32 s{sI0}, s{sI0}, 4096')
                elif kind == 'wo': a(f's_add_u32 s{sI0}, s{sT5}, s{sKC+sg}')
                elif kind == 'gh': a(f's_add_u32 s{sI0}, s{sRG}, {sg}\ns_and_b32 s{sI0}, s{sI0}, 1\ns_mul_i32 s{sI0}, s{sI0}, {896*128}\ns_add_u32 s{sI0}, s{sI0}, s{sT4}')
                else:
                    a(f's_add_u32 s{sI0}, s{sD}, s{sKG+sg}')
                    if kind != 'g0': a(f's_add_u32 s{sI0}, s{sI0}, {g_rows(kind, 0)[0]*128}')
            fl[n] = a(f'buffer_load_dwordx4 {vr(FR+4*(n%32),4)}, v{CELLT}, {srd(sWS)}, s{sI0} offen offset:{(i&1)*2048} sc1')
        firsts = {}
        for first in range(34, NST):
            kind, sg = STAGES[first]
            if sg: continue
            cnt = 2 if kind == 'gh' else 4; nat = kind == 'wo'
            k0 = 4 * (first - 34); firsts[k0] = {'g0': FG0, 'g1': FG1, 'gh': FG1, 'wo': FO, 'g2': FG2}[kind]
            p4 += steps_ks(first, cnt, PATN if nat else PATP, nat, P4ACC, lambda n, k0=k0: FR + 4 * ((n + k0) % 32), A3, n3 + k0,
                           setphase=56 + k0, init=(first == 34), c_init=RES if first == 34 else None)
        NG = opt.get('ng', 10); NG0 = opt.get('ng0', 8)
        def p3_last_epilogue():
            a(f's_lshl_b32 s{sT0}, s{sHI}, 13\ns_add_u32 s{sT5}, s{sT0}, s{sA}\ns_add_u32 s{sT5}, s{sT5}, {O_OFF}')
            a(f's_mul_i32 s{sT4}, s{sHI}, {448*128}\ns_add_u32 s{sT4}, s{sT4}, s{sD}\ns_add_u32 s{sT4}, s{sT4}, {192*128}\ns_lshl_b32 s{sT0}, s{sHI}, 15\ns_add_u32 s{sD}, s{sD}, s{sT0}')
            for k in range(4): a(f's_add_u32 s{sT0}, s{sRG}, {k}\ns_and_b32 s{sT0}, s{sT0}, 3\ns_mul_i32 s{sKG+k}, s{sT0}, {448*128}\ns_lshl_b32 s{sKC+k}, s{sT0}, 14')
            a.inject([lambda n=n: fload(n) for n in range(NG0)], opt.get('fl_every', 12))
            g_epi(ACA, 4, sB)
            a.flush_inject()
            gtok['g2'] = gtok['st']
            cst(6)
        p4[0]['hook'] = p3_last_epilogue
        nxt = NG0
        self.need = {}
        for n, s in enumerate(p4):
            s['vm'] = (lambda n=n: fl[n])
            post = []
            while nxt < 72 and nxt < n + 1 + NG and len(post) < 2:
                if nxt in firsts: self.need.setdefault(firsts[nxt], 34 + (n + 2) // 4)
                post.append(lambda m=nxt: fload(m)); nxt += 1
            s['post'] = post
        def add_wait(step, key):
            o = step['pre']
            step['pre'] = lambda: (a.wait_vm(gtok[key]), o())
        add_wait(p1[4], 'g0'); add_wait(p2_[12], 'g1'); add_wait(p4[4 * (opt.get('fg2_bar', 36) - 34)], 'g2')
        if opt.get('esend', 1): early_send(p4, P4ACC, 128)
        steps += p4

        if opt.get('cprio', 2): a(f's_setprio {opt.get("cprio", 2)}')
        self.run_steps(a, steps)
        RCV = 128; OUT = 144; VO = 160
        def between():
            a(f's_lshl_b32 s{sT0}, s{sTH}, 5\nv_and_b32 v{VO}, 31, v0\nv_add_u32 v{VO}, s{sT0}, v{VO}\nv_lshlrev_b32 v{VO}, 10, v{VO}')
            a(f'v_lshrrev_b32 v{VO+1}, 5, v0\nv_lshl_add_u32 v{VO}, v{VO+1}, 4, v{VO}')
            a(f's_lshl_b32 s{sT0}, s{sJ}, 1\ns_add_u32 s{sT0}, s{sT0}, s{sHI}\ns_lshl_b32 s{sT0}, s{sT0}, 6\ns_add_u32 s{sT0}, s{sT0}, s{sA}')
        tk = exchange(P4ACC, RCV, 'RB2', between)
        for b in range(2):
            a.wait_lg(tk[2*b+1])
            for u in range(4*b, 4*b+4): a(f'v_pk_add_f32 {P(P4ACC+2*u)}, {P(P4ACC+2*u)}, {P(RCV+2*u)}')
            for u in range(4*b, 4*b+4): a(f'v_cvt_pk_bf16_f32 v{OUT+u}, v{P4ACC+2*u}, v{P4ACC+2*u+1}')
            a(f'v_permlane32_swap_b32 v{OUT+4*b}, v{OUT+4*b+2}\nv_permlane32_swap_b32 v{OUT+4*b+1}, v{OUT+4*b+3}')
            a(f'buffer_store_dwordx4 {vr(OUT+4*b,4)}, v{VO}, {srd(sOUT)}, s{sT0} offen offset:{b*32} {opt.get("outflag", "")}')
        if opt.get('padto'):
            a(f'L_pad:\ns_memrealtime s[{sTSP}:{sTSP+1}]\ns_waitcnt lgkmcnt(0)\ns_sub_u32 s{sT0}, s{sTSP}, s26\ns_cmp_lt_u32 s{sT0}, {opt["padto"]}\ns_cbranch_scc1 L_pad')
        if opt.get('prof'):
            a(f's_memrealtime s[{sTSP}:{sTSP+1}]\ns_memtime s[98:99]\ns_waitcnt lgkmcnt(0)\ns_sub_u32 s98, s98, s90')
            a(f's_lshl_b32 s{sT0}, s2, 3\ns_add_u32 s{sT0}, s{sT0}, s{sW}\ns_lshl_b32 s{sT0}, s{sT0}, 8\ns_add_u32 s{sT0}, s{sT0}, {TS_OFF}')
            a(f'v_mov_b32 v2, s26\nv_mov_b32 v3, s{sTSP}\nv_mov_b32 v4, s98\nv_mov_b32 v5, 0\nv_mov_b32 v6, 0\ns_mov_b64 exec, 1')
            a(f'buffer_store_dwordx4 v[2:5], v6, {srd(sWS)}, s{sT0} offen')
            for k in range(8 if opt.get('prof') != 3 else 0): a(f'v_mov_b32 v7, s{4+2*k}\nbuffer_store_dword v7, v6, {srd(sWS)}, s{sT0} offen offset:{16+4*k}')
        a('s_endpgm')

    def helper(self, a):
        opt = self.opt
        prof = opt.get('prof') if opt.get('prof') != 3 else None
        E = lambda name, d: opt.get(name, d)
        BARS = [f'B{i}' for i in range(16)] + ['RB1'] + [f'B{i}' for i in range(16, 20)] + ['QE', 'XA'] + [f'B{i}' for i in range(20, NST)]
        ODL = f'B{self.need[FO]}'
        IDX = {n: i for i, n in enumerate(BARS)}
        T = [40 + i for i in range(16)]
        V1K, VQ, VW3, VHF = 4, 8, 12, 16
        row, pos, sw = T[0], T[1], T[2]
        def mk(dst, RS, sbase):
            a(f'v_mul_u32_u24 v{T[5]}, {RS}, v{row}\nv_add_u32 v{T[5]}, s{sbase}, v{T[5]}')
            for i in range(4):
                a(f'v_add_u32 v{dst+i}, v{T[5]}, v{T[3+(i&1)]}')
                if i: a(f'v_add_u32 v{dst+i}, {i*(8*RS-1024)}, v{dst+i}')
        stok = {}
        def issue(st, pace=True):
            kind, sg = STAGES[st]
            if pace and len(a.vm) > E('pace', 44): a.wait_vm(a.vm[-E('pace', 44) - 1])
            s, v = src_of(st)
            for g in range(4):
                a(f's_mov_b32 m0, {SLOT[st] + g*4096}')
                soff(st, g)
                for i in range(4):
                    stok[st] = a(f'buffer_load_dwordx4 v{v+i}, {srd(s)}, s{sT2} offen offset:{i*1024} lds')
        def src_of(st):
            kind, sg = STAGES[st]
            return {'w1': (sW1, V1K), 'w2': (sW2, V1K), 'wo': (sWO, V1K), 'wq': (sQKV, VQ), 'kv': (sQKV, VQ), 'p0': (sW3, VW3),
                    'p1': (sW3, VW3), 'p2': (sW3, VW3), 'hf': (sW3, VHF + 4 * sg)}.get(kind, (sW4, V1K))
        def soff(st, g, first=None):
            kind, sg = STAGES[st]
            rot = E('rot', 1)
            RS = 3072 if kind in ('wq', 'kv') else (3584 if kind in ('p0', 'p1', 'p2', 'hf') else 1024)
            if first is None: first = g == 0
            if kind == 'gh':
                if first: a(f's_add_u32 s{sI0}, s{sRG}, {sg}\ns_and_b32 s{sI0}, s{sI0}, 1\ns_mul_i32 s{sI0}, s{sI0}, {896*1024}')
                a(f's_add_u32 s{sT2}, s{sI0}, {(g_rows(kind, 0)[g >> 1] + 32*(g & 1))*1024}')
            elif kind[0] == 'g': a(f's_add_u32 s{sT2}, s{sKG+sg}, {(g_rows(kind, 0)[g >> 1] + 32*(g & 1))*1024}')
            elif kind == 'wo':
                if first: a(f's_add_u32 s{sI0}, s{sRG}, {sg}\ns_and_b32 s{sI0}, s{sI0}, 3\ns_lshl_b32 s{sI0}, s{sI0}, 17')
                a(f's_add_u32 s{sT2}, s{sI0}, {g*32*RS}')
            elif kind == 'w1' or (rot and kind == 'w2'): a(f's_add_u32 s{sT2}, s{sK1+sg}, {g*32*RS}')
            elif kind == 'w2': a(f's_mov_b32 s{sT2}, {sg*131072 + g*32*RS}')
            elif kind == 'wq': a(f's_add_u32 s{sT2}, s{sK3+sg}, {g*32*RS}')
            elif kind == 'kv': a(f's_add_u32 s{sT2}, s{sK3+(sg>>1)}, {((sg&1)*64 + (g&1)*32)*RS + 1024*(1 + (g>>1))}')
            elif kind == 'hf': a(f's_mov_b32 s{sT2}, {g*32*RS}')
            else: a(f's_add_u32 s{sT2}, s{sK5+sg}, {g*32*RS + dict(p0=0, p1=128, p2=256)[kind]}')
        REGS = [int(x) for x in str(E('regs', '')).split('.') if x]; RB = 96
        RLD = str(E('rld', 'B24.B24.B30.B30.B30')).split('.')[:len(REGS)]
        rtok = {}; wq_ = {0: [], 1: []}
        def reg_load(st, half, v):
            for g in range(2):
                soff(st, 2*half + g, g == 0)
                for i in range(4):
                    rtok[(st, half)] = a(f'buffer_load_dwordx4 {vr(RB + 32*REGS.index(st) + 16*g + 4*i, 4)}, v{v+i}, {srd(src_of(st)[0])}, s{sT2} offen offset:{i*1024}')
        def reg_step(n, half, vl, v):
            b = int(n[1:]) if n[0] == 'B' else None
            for st in ISSUE.get(b if b is not None else n, []):
                if st in REGS: wq_[half] += [(st, k0) for k0 in range(0, 8, E('wn', 4))]
            if wq_[half]:
                st, k0 = wq_[half].pop(0)
                a.wait_vm(rtok[(st, half)])
                a(f'v_add_u32 v{vl+1}, {SLOT[st] + half*8192}, v{vl}')
                for k in range(k0, k0 + E('wn', 4)): a(f'ds_write_b128 v{vl+1}, {vr(RB + 32*REGS.index(st) + 4*k, 4)} offset:{k*1024}')
            assert b is None or all(x[0] > b + 1 for x in wq_[half])
            for k, w in enumerate(RLD):
                if w == n: reg_load(REGS[k], half, (v if STAGES[REGS[k]][0][0] != 'p' else (20 if half else VW3)))
        VAR = 61
        def arrive(idx):
            if prof == 2:
                a(f's_memtime s[0:1]\ns_waitcnt lgkmcnt(0)')
                a.lg = []
                if isinstance(idx, int): a(f'v_writelane_b32 v{VAR}, s0, {idx + 1}')
                else: a(f's_add_u32 s1, s{idx}, 1\ns_mov_b32 m0, s1\nv_writelane_b32 v{VAR}, s0, m0')
        def dump_arrive(slot):
            if prof:
                a(f's_lshl_b32 s{sT0}, s2, 2\ns_add_u32 s{sT0}, s{sT0}, s{sW}\ns_lshl_b32 s{sT0}, s{sT0}, 8\ns_add_u32 s{sT0}, s{sT0}, {TS_OFF + 0x80000}')
                a(f'v_lshlrev_b32 v2, 2, v0\nbuffer_store_dword v{VAR}, v2, {srd(sWS)}, s{sT0} offen')
        if prof: a(f'v_mov_b32 v{VAR}, 0')
        a(f's_cmp_eq_u32 s{sW}, 0\ns_cbranch_scc1 L_sync\ns_cmp_lt_u32 s{sW}, 3\ns_cbranch_scc1 L_back')
        a(f'v_lshrrev_b32 v{row}, 3, v0\nv_and_b32 v{pos}, 7, v0\nv_lshrrev_b32 v{sw}, 4, v0\nv_and_b32 v{sw}, 1, v{sw}\nv_lshlrev_b32 v{sw}, 2, v{sw}')
        a(f'v_xor_b32 v{pos}, v{pos}, v{sw}')
        a(f'v_lshlrev_b32 v{T[3]}, 4, v{pos}\nv_xor_b32 v{T[4]}, 32, v{T[3]}')
        a(f's_lshl_b32 s{sT0}, s{sJ}, 7')
        mk(V1K, 1024, sT0)
        a(f's_mov_b32 s{sW1+2}, {512*1024}\ns_mov_b32 s{sW1+3}, 0x20000')
        for sg in range(4):
            a(f's_add_u32 s{sT3}, s{sROT}, {sg}\ns_and_b32 s{sT3}, s{sT3}, 3\ns_lshl_b32 s{sK1+sg}, s{sT3}, 17\ns_mul_i32 s{sK3+sg}, s{sT3}, {128*3072}')
        a('s_waitcnt lgkmcnt(0)')
        a(f's_mov_b32 s{sW1}, s12\ns_and_b32 s{sW1+1}, s13, 0xffff')
        issue(0); issue(1)
        if E('st', 0): issue(2, False)
        a('s_branch L_loader')
        vmL = list(a.vm); a.vm = []
        a('L_back:')
        sSW = sHI
        a(f'v_lshrrev_b32 v2, 4, v0\nv_and_b32 v3, 15, v0\nv_xor_b32 v3, v3, v2\nv_lshlrev_b32 v3, 4, v3')
        a(f's_lshl_b32 s{sT0}, s{sR}, 1\ns_add_u32 s{sT0}, s{sT0}, s{sSW}\ns_lshl_b32 s{sT0}, s{sT0}, 15')
        a(f'v_lshl_add_u32 v2, v2, 10, s{sT0}\nv_add_u32 v2, v2, v3')
        for u in range(1, 4): a(f'v_xor_b32 v{2+u}, {u<<6}, v2\nv_add_u32 v{2+u}, {u*3072}, v{2+u}')
        a(f's_lshl_b32 s{sI0}, s{sSW}, 13\ns_mov_b32 s{sB}, s{sROT}')
        a('s_waitcnt lgkmcnt(0)')
        a(f's_mov_b32 s{sX}, s4\ns_and_b32 s{sX+1}, s5, 0xffff')
        xtok = {}
        def x_chunk(sg):
            for half in range(2):
                a(f's_add_u32 m0, s{sI0}, {sg*16384 + half*4096}\ns_lshl_b32 s{sT2}, s{sB}, 8')
                if half: a(f's_add_u32 s{sT2}, s{sT2}, 16384')
                for u in range(4):
                    xtok[sg] = a(f'buffer_load_dwordx4 v{2+u}, {srd(sX)}, s{sT2} offen offset:{u*1024} lds')
            if sg < 3: a(f's_add_u32 s{sB}, s{sB}, 1\ns_and_b32 s{sB}, s{sB}, 3')
        x_chunk(0)
        if E('xdel', 1): self.srds(a, skipx=True)
        x_chunk(1)
        if not E('xdel', 1): self.srds(a, skipx=True)
        if E('st', 0): x_chunk(2)

        F = 64; SSUM, SGR, HONE = 80, 84, 88
        q, i16 = T[8], T[9]
        SW1, SW2 = 92, 93
        def stats_setup():
            a(f'v_lshrrev_b32 v{q}, 4, v0\nv_and_b32 v{i16}, 15, v0\ns_lshl_b32 s{sT0}, s{sW}, 12')
            for m in range(4):
                a(f'v_or_b32 v{T[0]}, {4*m}, v{q}\nv_xor_b32 v{T[0]}, v{T[0]}, v{i16}\nv_lshlrev_b32 v{T[0]}, 4, v{T[0]}')
                a(f'v_lshl_add_u32 v{T[0]}, v{i16}, 8, v{T[0]}\nv_add_u32 v{T[10+m]}, s{sT0}, v{T[0]}')
            for i in range(4): a(f'v_mov_b32 v{HONE+i}, s{sONE}')
            a(f'v_and_b32 v{T[0]}, 3, v0\nv_lshrrev_b32 v{T[2]}, 2, v{i16}')
            a(f'v_cmp_eq_u32 s[14:15], 1, v{T[0]}\nv_cmp_eq_u32 s[16:17], 2, v{T[0]}\nv_cmp_eq_u32 s[12:13], 3, v{T[0]}\nv_cmp_eq_u32 s[10:11], v{T[2]}, v{q}')
            a(f's_lshl_b32 s{sT0}, s{sW}, 4\nv_add_u32 v{SW1}, s{sT0}, v{i16}\nv_lshlrev_b32 v{SW2}, 4, v{SW1}\nv_lshlrev_b32 v{SW1}, 2, v{SW1}')
            a(f'v_add_u32 v{SW2}, {S1}, v{SW2}\nv_add_u32 v{SW1}, {NMU}, v{SW1}')
        def stats_chunks(sgs):
            tk = {(sg, m): a(f'ds_read_b128 {vr(F+32*(sg&1)+4*m if False else (F if (sg&1)==0 else 96)+4*m,4)}, v{T[10+m]} offset:{sg*16384}') for sg in sgs for m in range(4)}
            a('s_setprio 3')
            for sg in sgs:
                for m in range(4):
                    a.wait_lg(tk[(sg, m)])
                    z = sg == 0 and m == 0
                    f = (F if (sg & 1) == 0 else 96) + 4 * m
                    a(f'v_mfma_f32_16x16x32_bf16 {vr(SGR,4)}, {vr(f,4)}, {vr(f,4)}, {0 if z else vr(SGR,4)}')
                    a(f'v_mfma_f32_16x16x32_bf16 {vr(SSUM,4)}, {vr(HONE,4)}, {vr(f,4)}, {0 if z else vr(SSUM,4)}')
            a('s_setprio 0')
        def stats_final():
            s1, s2 = 36, 37
            a('s_setprio 3')
            R = 64
            a(f'v_cndmask_b32 v{s2}, v{SGR}, v{SGR+1}, s[14:15]\nv_mul_f32 v{R}, {f2u(-1/512):#x}, v{SSUM}\nv_cndmask_b32 v{s2}, v{s2}, v{SGR+2}, s[16:17]')
            a(f'v_mov_b32 v{R+7}, 0\nv_cndmask_b32 v{s2}, v{s2}, v{SGR+3}, s[12:13]\nv_mul_f32 v{s1}, v{R}, v{R}\nv_mov_b32 v{R+4}, v{R}')
            a(f's_mov_b32 s{sT0}, {f2u(1/512):#x}\nv_fma_f32 v{s2}, v{s2}, s{sT0}, -v{s1}\nv_max_f32 v{s2}, 0, v{s2}\nv_add_f32 v{s1}, {f2u(1e-5):#x}, v{s2}')
            a(f'v_rsq_f32 v{R+5}, v{s1}\nv_rcp_f32 v{s1}, v{s1}\ns_mov_b32 s{sT0}, {f2u(1e-5):#x}')
            a(f'v_mul_f32 v{R+6}, {f2u(LOG2E):#x}, v{R+5}\nv_fma_f32 v{s1}, v{s1}, v{s2}, s{sT0}')
            a(f'v_rsq_f32 v{s1}, v{s1}\nv_mul_f32 v{s1}, v{s1}, v{R+5}')
            a(f'v_rcp_f32 v{R+3}, v{s1}\nv_mul_f32 v{s2}, v{s1}, v{s1}\nv_mul_f32 v{R+1}, {f2u(GC0):#x}, v{s1}\nv_mul_f32 v{s2}, {f2u(0.044715):#x}, v{s2}\nv_mul_f32 v{R+2}, v{R+1}, v{s2}')
            a('s_mov_b64 exec, s[10:11]')
            a(f'ds_write_b128 v{SW2}, {vr(R,4)}\nds_write_b128 v{SW2}, {vr(R+4,4)} offset:1024')
            a(f'ds_write_b32 v{SW1}, v{R}\nds_write_b32 v{SW1}, v{R+5} offset:256\nds_write_b32 v{SW1}, v{R+6} offset:512')
            a('s_mov_b64 exec, -1\ns_setprio 0')
            a.wait_lg0()
        def stats_after(b):
            if b in (0, 1): stats_chunks([b])
            if E('st', 0) == 1:
                if b == 2: stats_chunks([2])
                if b == 3: stats_chunks([3]); stats_final()
            else:
                if b == 2: stats_chunks([2, 3])
                if b == 3: stats_final()

        VFL, VFP, VF3, VONE, VCT, CELLV, VZA, VCK, VFO = 26, 27, 28, 29, 30, 32, 34, 35, 33
        OB = T[14]
        pf = opt.get('pf', 1); t3 = opt.get('t3', 0)
        nlab = [0]
        def lab(p):
            nlab[0] += 1
            return f'L_{p}{nlab[0]}'
        def common_regs():
            a(f'v_mov_b32 v{OB}, {OOB}\nv_lshlrev_b32 v{T[15]}, 7, v0\nv_mov_b32 v{VONE}, 1')
            a(f'v_lshrrev_b32 v{T[0]}, 5, v0\nv_and_b32 v{T[1]}, 31, v0\nv_lshlrev_b32 v{CELLV}, 10, v{T[0]}\nv_lshl_add_u32 v{CELLV}, v{T[1]}, 4, v{CELLV}')
            a(f's_lshl_b32 s{sC}, s{sR}, 16\ns_lshl_b32 s{sD}, s{sJ}, 18\ns_add_u32 s{sD}, s{sD}, {KV_OFF}\ns_lshl_b32 s{sA}, s{sJ}, 12\ns_add_u32 s{sA}, s{sA}, {CF_OFF}')
        def one_lane(text):
            a('s_mov_b64 exec, 1'); a(text); a('s_mov_b64 exec, -1')
        def count(off, idx):
            a(f's_lshr_b32 s{sT0}, s{idx}, 3\ns_lshl_b32 s{sT0}, s{sT0}, 7\ns_and_b32 s{sT2}, s{idx}, 7\ns_lshl_b32 s{sT2}, s{sT2}, 2\ns_add_u32 s{sT0}, s{sT0}, s{sT2}')
            a(f's_add_u32 s{sT0}, s{sT0}, s{sA}\ns_add_u32 s{sT0}, s{sT0}, {off}\nv_mov_b32 v{T[7]}, 0')
            one_lane(f'buffer_store_dword v{VONE}, v{T[7]}, {srd(sWS)}, s{sT0} offen sc1')

        sBC = sCNT; sSP = sBG
        common_regs()
        def touch(s, lines, dst, pitch=None, off=0):
            n = lines // 2
            a(f's_lshl_b32 s{sT0}, s2, 1\ns_add_u32 s{sT0}, s{sT0}, s{sSW}\ns_mul_i32 s{sT0}, s{sT0}, {pitch or n*128}')
            if off: a(f's_add_u32 s{sT0}, s{sT0}, {off}')
            a(f'v_cmp_gt_u32 vcc, {n}, v0\nv_cndmask_b32 v{T[7]}, v{OB}, v{T[15]}, vcc')
            return a(f'buffer_load_dword v{dst}, v{T[7]}, {srd(s)}, s{sT0} offen')
        CSR = 128; CA = 160
        def cs_loads(y=None):
            a(f's_lshr_b32 s{sT0}, s{sR}, 1\ns_mul_i32 s{sT0}, s{sT0}, {32*3584}\ns_mul_i32 s{sT2}, s{sJ}, 448\ns_add_u32 s{sT0}, s{sT0}, s{sT2}')
            a(f's_and_b32 s{sT2}, s{sR}, 1\ns_lshl_b32 s{sT2}, s{sT2}, 1\ns_add_u32 s{sT2}, s{sT2}, s{sSW}\ns_mul_i32 s{sT2}, s{sT2}, 112\ns_add_u32 s{sT0}, s{sT0}, s{sT2}')
            a(f'v_lshrrev_b32 v{T[6]}, 5, v0\nv_mul_u32_u24 v{T[6]}, {16*3584}, v{T[6]}\nv_and_b32 v{T[5]}, 31, v0\nv_lshl_add_u32 v{T[6]}, v{T[5]}, 2, v{T[6]}')
            a(f'v_cmp_gt_u32 vcc, 28, v{T[5]}\nv_cndmask_b32 v{T[6]}, v{OB}, v{T[6]}, vcc')
            for i in range(16):
                a(f'buffer_load_dword v{CSR+i}, v{T[6]}, {srd(sW3)}, s{sT0} offen')
                if i < 15: a(f's_add_u32 s{sT0}, s{sT0}, 3584')
                if y and i in (5, 10): y()
        if pf: touch(sQKV, 32, 6, 3072, 1024)
        if E('cs0', 0): cs_loads()
        stats_setup()
        barsD = []
        for b in range(5):
            if b == 0: a.wait_vm(xtok[0])
            if b == 1: a.wait_vm(xtok[1])
            if b == 2: a.wait_vm(xtok[2 if E('st', 0) == 1 else 3])
            if b == 3: a.wait_vm(xtok[3])
            arrive(b); barsD.append(f'B{b}'); a('s_barrier')
            if b == 0:
                if not E('st', 0): x_chunk(2)
                x_chunk(3)
            stats_after(b)
            if b == E('e_pf', 2):
                if pf: touch(sW2, 16, 7); touch(sQKV, 16, 7, 3072)
                if pf and E('w3pf', 0) == 2: touch(sW3, 56, 7)
        a(f's_mov_b32 s{sBC}, 5')
        LONG = sum(1 << (IDX[n] + 1) for n in E('long', 'B4.B12.QE.XA.B24.B30.B34').split('.'))
        a(f's_mov_b32 s4, {LONG & 0xffffffff}\ns_mov_b32 s5, {LONG >> 32}')
        VDS = 39; nds = [0]
        if prof: a(f'v_mov_b32 v{VDS}, 0')
        def dst(name):
            if prof:
                a(f's_memrealtime s[0:1]\ns_waitcnt lgkmcnt(0)\nv_writelane_b32 v{VDS}, s0, {nds[0]}')
                self.dnames.append(name); nds[0] += 1
        def yield_(dl):
            L = lab('y')
            a(f's_cmp_ge_u32 s{sBC}, {IDX[dl]}\ns_cbranch_scc1 {L}')
            arrive(str(sBC))
            a(f's_barrier\ns_add_u32 s{sBC}, s{sBC}, 1\n{L}:')
        def earliest(name):
            L = lab('e')
            a(f'{L}:\ns_cmp_gt_u32 s{sBC}, {IDX[name]}\ns_cbranch_scc1 {L}d')
            arrive(str(sBC))
            a(f's_barrier\ns_add_u32 s{sBC}, s{sBC}, 1\ns_branch {L}\n{L}d:')
        def nbwait(dl, lg=False):
            L = lab('w')
            a(f'{L}:\ns_bitcmp1_b64 s[4:5], s{sBC}\ns_cselect_b32 s{sSP}, {E("nspin", 6)}, 1')
            a(f'{L}s:\ns_getreg_b32 s{sT0}, hwreg(HW_REG_IB_STS)\ns_and_b32 s{sT0}, s{sT0}, {0xf00 if lg else 0xc0000f}\ns_cbranch_scc0 {L}d')
            a(f's_sub_u32 s{sSP}, s{sSP}, 1\ns_cmp_lg_u32 s{sSP}, 0\ns_cbranch_scc1 {L}s')
            a(f's_cmp_ge_u32 s{sBC}, {IDX[dl]}\ns_cbranch_scc1 {L}d')
            if not lg: arrive(str(sBC))
            a(f's_barrier\ns_add_u32 s{sBC}, s{sBC}, 1\ns_branch {L}')
            a(f'{L}d:\ns_waitcnt {"lgkmcnt" if lg else "vmcnt"}(0)')
        def spin(off, n, dl):
            L = lab('c')
            a(f'v_and_b32 v{VCT}, {n-1}, v0\nv_lshrrev_b32 v{T[7]}, 3, v{VCT}\nv_and_b32 v{VCT}, 7, v{VCT}\nv_lshlrev_b32 v{VCT}, 2, v{VCT}\nv_lshl_add_u32 v{VCT}, v{T[7]}, 7, v{VCT}')
            a(f's_mov_b32 s6, {opt.get("spin", 200000)}\ns_add_u32 s9, s{sA}, {off}')
            a(f'{L}:\nbuffer_load_dword v{VCK}, v{VCT}, {srd(sWS)}, s9 offen sc1')
            nbwait(dl)
            a(f'v_cmp_ne_u32 vcc, 1, v{VCK}\ns_sub_u32 s6, s6, 1\ns_cmp_eq_u32 s6, 0\ns_cbranch_scc1 {L}d\ns_cbranch_vccnz {L}\n{L}d:')
        def sliced(fn, dl, n=None):
            lines = a.record(fn); n = n or E('bgn', 22)
            while lines:
                m = n
                while any(x.startswith('s_setprio 3') for x in lines[:m]) and not any(x.startswith('s_setprio 0') for x in lines[:m]): m += 1
                a('\n'.join(lines[:m])); lines = lines[m:]
                if lines: yield_(dl)
        def cs_sum():
            for i in range(16):
                r_ = CSR + i
                if i == 0:
                    a(f'v_lshlrev_b32 v{CA}, 16, v{r_}\nv_and_b32 v{CA+1}, 0xffff0000, v{r_}')
                else:
                    a(f'v_lshlrev_b32 v{CA+4}, 16, v{r_}\nv_and_b32 v{CA+5}, 0xffff0000, v{r_}')
                    a(f'v_add_f32 v{CA}, v{CA}, v{CA+4}\nv_add_f32 v{CA+1}, v{CA+1}, v{CA+5}')
        if not E('cs0', 0):
            earliest(E('e_cs', 'B6'))
            dst('csld0')
            cs_loads((lambda: yield_('XA')) if E('dsl', 0) else None)
        dst('csld1')
        nbwait('XA')
        dst('csld2')
        sliced(cs_sum, 'XA')
        a(f'v_permlane32_swap_b32 v{CA}, v{CA+1}\nv_add_f32 v{CA}, v{CA}, v{CA+1}')
        a(f'v_and_b32 v{T[5]}, 31, v0\nv_lshrrev_b32 v{T[6]}, 5, v0\nv_lshlrev_b32 v{T[6]}, 2, v{T[6]}\nv_lshl_add_u32 v{T[6]}, v{T[5]}, 3, v{T[6]}')
        a(f'v_cmp_gt_u32 vcc, 28, v{T[5]}\nv_cndmask_b32 v{T[6]}, v{OB}, v{T[6]}, vcc')
        a(f's_lshr_b32 s{sT0}, s{sR}, 1\ns_lshl_b32 s{sT0}, s{sT0}, 10\ns_and_b32 s{sT2}, s{sR}, 1\ns_lshl_b32 s{sT2}, s{sT2}, 1\ns_add_u32 s{sT2}, s{sT2}, s{sSW}\ns_mul_i32 s{sT2}, s{sT2}, 224')
        a(f's_add_u32 s{sT0}, s{sT0}, s{sT2}\ns_add_u32 s{sT0}, s{sT0}, s{sD}\ns_add_u32 s{sT0}, s{sT0}, {KV_CS}')
        a(f'buffer_store_dword v{CA}, v{T[6]}, {srd(sWS)}, s{sT0} offen sc1')
        dst('csst')
        nbwait('XA')
        dst('csack')
        earliest('B5')
        a(f's_lshl_b32 s9, s{sR}, 1\ns_add_u32 s9, s9, s{sSW}')
        count(CF_CS, 9)
        earliest(E('e_csc', 'B16'))
        PQR = 64; KVR = 192; ZR = 200
        AK, AZ, NUM, DEN, OUT = 96, 100, 104, 136, 168
        dst('cschk0')
        spin(CF_CS, 64, 'XA')
        dst('cschk1')
        a(f'v_lshlrev_b32 v{T[0]}, 4, v0\nv_cmp_gt_u32 vcc, 56, v0\nv_cndmask_b32 v{T[0]}, v{OB}, v{T[0]}, vcc')
        a(f's_lshl_b32 s{sT2}, s{sSW}, 13\ns_add_u32 s{sT2}, s{sT2}, s{sD}\ns_add_u32 s{sT2}, s{sT2}, {KV_CS}')
        for k in range(8):
            if k % 4 == 0: a(f's_add_u32 s{sT0}, s{sT2}, {k*1024}')
            a(f'buffer_load_dwordx4 {vr(CSR+4*k,4)}, v{T[0]}, {srd(sWS)}, s{sT0} offen offset:{(k&3)*1024} sc1')
            if k == 3 and E('dsl2', 0): yield_('XA')
        def cs_fin():
            for st in (16, 8, 4):
                for k in range(st): a(f'v_add_f32 v{CSR+k}, v{CSR+k}, v{CSR+st+k}')
        dst('csg0')
        nbwait('XA')
        dst('csg1')
        sliced(cs_fin, 'XA', 30)
        a(f'v_lshlrev_b32 v{T[0]}, 4, v0\nv_add_u32 v{T[0]}, {CS3L}, v{T[0]}')
        earliest('B16')
        Lc = lab('cs')
        a(f's_cmp_eq_u32 s{sSW}, 0\ns_cbranch_scc1 {Lc}a')
        a(f'ds_write_b128 v{T[0]}, {vr(CSR,4)} offset:1024\ns_waitcnt lgkmcnt(0)\n{Lc}a:')
        if pf and E('e_p4', 'B13') == 'D': touch(sWO, 16, 8); touch(sW4, 56, 9)
        a(f's_lshl_b32 s7, s{sJ}, 1\ns_add_u32 s7, s7, s{sSW}\ns_lshl_b32 s8, s7, 2\ns_lshl_b32 s7, s7, 12\ns_add_u32 s7, s7, s{sC}\ns_add_u32 s7, s7, {O_OFF}')
        a(f's_lshl_b32 s{sT0}, s{sR}, 7\ns_add_u32 s8, s8, s{sT0}\ns_add_u32 s8, s8, {FL_OFF + FO*4096}\nv_mov_b32 v{VFO}, s8')
        earliest('XA')
        a(f's_cmp_lg_u32 s{sSW}, 0\ns_cbranch_scc1 {Lc}b')
        a(f'ds_read_b128 {vr(CSR+4,4)}, v{T[0]} offset:1024\ns_waitcnt lgkmcnt(0)')
        for k in range(4): a(f'v_add_f32 v{CSR+k}, v{CSR+k}, v{CSR+4+k}')
        a(f'ds_write_b128 v{T[0]}, {vr(CSR,4)}\n{Lc}b:')
        a(f's_lshl_b32 s{sT0}, s{sSW}, 12\ns_add_u32 s{sT0}, s{sT0}, {PQ}\nv_lshl_add_u32 v{T[0]}, v0, 3, s{sT0}')
        for k in range(8): a(f'ds_read_b64 {vr(PQR+2*k,2)}, v{T[0]} offset:{k*512}')
        a('s_waitcnt lgkmcnt(0)')
        kv2 = E('kv2', 0)
        earliest(E('e_kvb', 'XA'))
        dst('kvchk0')
        spin(CF_A, 32, ODL)
        dst('kvchk1')
        if kv2:
            a(f's_lshl_b32 s20, s{sSW}, 5\ns_add_u32 s20, s20, s{sR}\ns_cmp_lt_u32 s20, 34\ns_cselect_b32 s21, 0, {OOB}\ns_lshl_b32 s22, s20, 7\ns_add_u32 s22, s22, s{sD}')
            a(f'v_lshrrev_b32 v{T[1]}, 3, v0\nv_mul_u32_u24 v{T[1]}, {KVP}, v{T[1]}\nv_and_b32 v{T[2]}, 7, v0\nv_lshlrev_b32 v{T[2]}, 4, v{T[2]}\nv_add3_u32 v{T[1]}, v{T[1]}, v{T[2]}, s21')
            for k in range(4):
                a(f's_add_u32 s{sT0}, s22, {k*8*KVP}\nbuffer_load_dwordx4 {vr(KVR+4*k,4)}, v{T[1]}, {srd(sWS)}, s{sT0} offen sc1')
            nbwait(ODL)
            dst('l2ld')
            for k in range(8): a(f'v_add_f32 v{KVR+k}, v{KVR+k}, v{KVR+8+k}')
            for k in range(4): a(f'v_add_f32 v{KVR+k}, v{KVR+k}, v{KVR+4+k}')
            for k in range(4): a(f'v_add_f32_dpp v{KVR+k}, v{KVR+k}, v{KVR+k} row_ror:8 row_mask:0xf bank_mask:0xf')
            for sw_ in ('v_permlane16_swap_b32', 'v_permlane32_swap_b32'):
                if sw_.startswith('v_permlane32'): yield_(ODL)
                for k in range(4): a(f'v_mov_b32 v{KVR+4+k}, v{KVR+k}')
                for k in range(4): a(f'{sw_} v{KVR+k}, v{KVR+4+k}')
                for k in range(4): a(f'v_add_f32 v{KVR+k}, v{KVR+k}, v{KVR+4+k}')
            a(f'v_cmp_gt_u32 vcc, 8, v0\nv_add_u32 v{T[2]}, s21, v{T[2]}\nv_cndmask_b32 v{T[2]}, v{OB}, v{T[2]}, vcc\ns_add_u32 s{sT0}, s22, {KV_FIN}')
            a(f'buffer_store_dwordx4 {vr(KVR,4)}, v{T[2]}, {srd(sWS)}, s{sT0} offen sc1')
            nbwait(ODL)
            count(CF_B, 20)
            dst('l2pub')
            earliest(E('e_kvc', 'B29'))
            spin(CF_B, 64, ODL)
            dst('l2chk')
            a(f'v_lshrrev_b32 v{T[1]}, 4, v0\nv_lshlrev_b32 v{T[1]}, 4, v{T[1]}\nv_and_b32 v{T[0]}, 3, v0\nv_lshl_add_u32 v{T[0]}, v{T[0]}, 8, v{T[1]}')
            a(f'v_bfe_u32 v{T[2]}, v0, 2, 2\nv_lshl_add_u32 v{T[0]}, v{T[2]}, 6, v{T[0]}')
        else:
            a(f'v_lshrrev_b32 v{T[1]}, 4, v0\nv_lshlrev_b32 v{T[1]}, 4, v{T[1]}\nv_and_b32 v{T[0]}, 15, v0\nv_lshl_add_u32 v{T[0]}, v{T[0]}, 6, v{T[1]}')
        fin = KV_FIN if kv2 else 0
        for rep in range(1 if kv2 else NREP):
            a(f's_lshl_b32 s{sT0}, s{sSW}, 11\ns_add_u32 s{sT2}, s{sT0}, s{sD}\ns_add_u32 s{sT2}, s{sT2}, {8192*rep + fin}')
            for hh in range(2): a(f'buffer_load_dwordx4 {vr(KVR+16*rep+4*hh,4)}, v{T[0]}, {srd(sWS)}, s{sT2} offen offset:{hh*1024} sc1')
            a(f's_lshl_b32 s{sT2}, s{sSW}, 7\ns_add_u32 s{sT2}, s{sT2}, s{sD}\ns_add_u32 s{sT2}, s{sT2}, {KV_Z + 8192*rep + fin}')
            for hh in range(2): a(f'buffer_load_dwordx4 {vr(ZR+16*rep+4*hh,4)}, v{T[1]}, {srd(sWS)}, s{sT2} offen offset:{hh*64} sc1')
        dst('kvg0')
        nbwait(ODL)
        dst('kvg1')
        def kv_sum():
            if not kv2:
                for k in range(32): a(f'v_add_f32 v{KVR+k}, v{KVR+k}, v{KVR+32+k}')
                for k in range(16): a(f'v_add_f32 v{KVR+k}, v{KVR+k}, v{KVR+16+k}')
            for hh in range(2):
                a(f'v_cvt_pk_bf16_f32 v{AK+2*hh}, v{KVR+4*hh}, v{KVR+4*hh+1}\nv_cvt_pk_bf16_f32 v{AK+2*hh+1}, v{KVR+4*hh+2}, v{KVR+4*hh+3}')
                a(f'v_cvt_pk_bf16_f32 v{AZ+2*hh}, v{ZR+4*hh}, v{ZR+4*hh+1}\nv_cvt_pk_bf16_f32 v{AZ+2*hh+1}, v{ZR+4*hh+2}, v{ZR+4*hh+3}')
        if E('dprio', 1): a(f's_setprio {E("dprio", 1)}')
        sliced(kv_sum, ODL, E('bgn2', 60))
        def o_compute():
            a('s_setprio 3')
            for k in range(8): a(f'v_mfma_f32_16x16x16_bf16 {vr(DEN+4*k,4)}, {vr(AZ+2*(k>>2),2)}, {vr(PQR+2*k,2)}, 0')
            for k in range(8): a(f'v_mfma_f32_16x16x16_bf16 {vr(NUM+4*k,4)}, {vr(AK+2*(k>>2),2)}, {vr(PQR+2*k,2)}, 0')
            a('s_setprio 0')
            if E('dprio', 1): a(f's_setprio {E("dprio", 1)}')
            for k in range(8): a(f'v_add_f32 v{DEN+4*k}, s{sEPS}, v{DEN+4*k}')
            for k in range(8): a(f'v_rcp_f32 v{DEN+4*k}, v{DEN+4*k}')
            for pr in range(4):
                for k in (2*pr, 2*pr+1):
                    for e in range(4): a(f'v_mul_f32 v{NUM+4*k+e}, v{NUM+4*k+e}, v{DEN+4*k}')
                for u in range(4*pr, 4*pr+4): a(f'v_cvt_pk_bf16_f32 v{OUT+u}, v{NUM+2*u}, v{NUM+2*u+1}')
                a(f'v_permlane16_swap_b32 v{OUT+4*pr}, v{OUT+4*pr+2}\nv_permlane16_swap_b32 v{OUT+4*pr+1}, v{OUT+4*pr+3}')
                a(f'buffer_store_dwordx4 {vr(OUT+4*pr,4)}, v{CELLV}, {srd(sWS)}, s7 offen offset:{(pr>>1)*2048+(pr&1)*512} sc1')
        dst('kvsum')
        sliced(o_compute, ODL, E('bgn3', 40))
        dst('ost')
        nbwait(ODL)
        dst('oack')
        one_lane(f'buffer_store_dword v{VONE}, v{VFO}, {srd(sWS)}, 0 offen sc1')
        if prof: a(f's_mov_b32 s10, s{sBC}'); earliest('B50')
        else: nbwait('B51')
        if prof:
            a(f's_lshl_b32 s{sT0}, s2, 3\ns_add_u32 s{sT0}, s{sT0}, s{sW}\ns_add_u32 s{sT0}, s{sT0}, 5\ns_lshl_b32 s{sT0}, s{sT0}, 8\ns_add_u32 s{sT0}, s{sT0}, {TS_OFF}')
            a(f'v_mov_b32 v2, s10\nv_mov_b32 v3, 0')
            a(f'v_lshlrev_b32 v3, 2, v0\nv_writelane_b32 v{VDS}, s10, 63\nbuffer_store_dword v{VDS}, v3, {srd(sWS)}, s{sT0} offen')
            dump_arrive(0)
        a('s_endpgm')

        a('L_sync:')
        a.vm = []; a.lg = []
        VTS, VTC = 31, 60
        a('s_waitcnt lgkmcnt(0)')
        self.srds(a, skipx=True)
        if prof: a(f'v_mov_b32 v{VTS}, 0\nv_mov_b32 v{VTC}, 0\nv_writelane_b32 v{VTS}, s26, 63')
        nstamp = [0]
        def stamp(last=False):
            if prof:
                if nstamp[0]:
                    a(f's_waitcnt lgkmcnt(0)\nv_writelane_b32 v{VTS}, s{sTSP}, {nstamp[0]-1}\nv_writelane_b32 v{VTC}, s98, {nstamp[0]-1}')
                    a.lg = []
                if not last: a(f's_memrealtime s[{sTSP}:{sTSP+1}]\ns_memtime s[98:99]')
                nstamp[0] += 1
        common_regs()
        a(f's_lshl_b32 s{sT0}, s{sR}, 7\ns_add_u32 s{sT0}, s{sT0}, {FL_OFF}\ns_lshl_b32 s{sT2}, s{sJ}, 2\ns_add_u32 s{sT2}, s{sT2}, s{sT0}\nv_mov_b32 v{VFL}, s{sT2}')
        a(f'v_and_b32 v{VZA}, 7, v0\nv_lshlrev_b32 v{VZA}, 2, v{VZA}\nv_add_u32 v{VFP}, s{sT0}, v{VZA}')
        a(f'v_and_b32 v{VZA}, 15, v0\nv_lshlrev_b32 v{VZA}, 2, v{VZA}\nv_add_u32 v{VFO}, s{sT0}, v{VZA}\nv_and_b32 v{VZA}, 31, v0\nv_lshlrev_b32 v{VZA}, 2, v{VZA}')
        a(f's_cmp_eq_u32 s{sR}, 0\ns_cselect_b32 s{sT2}, 0, -128\ns_cmp_eq_u32 s{sR}, 31\ns_cselect_b32 s{sT3}, 0, 128')
        a(f'v_lshrrev_b32 v{T[3]}, 3, v0\nv_mov_b32 v{T[4]}, 0\nv_mov_b32 v{T[5]}, s{sT2}\nv_mov_b32 v{T[6]}, s{sT3}')
        a(f'v_cmp_eq_u32 vcc, 1, v{T[3]}\nv_cndmask_b32 v{T[4]}, v{T[4]}, v{T[5]}, vcc\nv_cmp_eq_u32 vcc, 2, v{T[3]}\nv_cndmask_b32 v{T[4]}, v{T[4]}, v{T[6]}, vcc')
        a(f'v_add_u32 v{VF3}, v{VFP}, v{T[4]}')
        a(f's_add_u32 s{sT0}, s{sC}, {X1_OFF}\nv_add_u32 v12, s{sT0}, v{CELLV}\nv_subrev_u32 v13, 512, v12')
        stats_setup()
        stamp()
        def touch3(s, rows, dst):
            n = rows // 32
            a(f's_lshr_b32 s{sT0}, s2, 3\ns_mul_i32 s{sT0}, s{sT0}, {n*1024}\ns_add_u32 s{sT0}, s{sT0}, 384')
            a(f'v_lshlrev_b32 v{T[7]}, 10, v0\nv_cmp_gt_u32 vcc, {n}, v0\nv_cndmask_b32 v{T[7]}, v{OB}, v{T[7]}, vcc')
            return a(f'buffer_load_dword v{dst}, v{T[7]}, {srd(s)}, s{sT0} offen')
        def check_issue(vaddr, sr, off):
            a(f's_mov_b32 s{sT0}, {off}\nbuffer_load_dword v{VCK}, v{vaddr}, {srd(sr)}, s{sT0} offen sc1')
        def check_wait(vaddr, sr, off, val):
            L = lab('p')
            a(f's_mov_b32 s{sCNT}, {opt.get("spin", 200000)}\ns_mov_b32 s{sT0}, {off}')
            a(f'{L}:')
            a(f's_waitcnt vmcnt(0)\nv_cmp_ne_u32 vcc, {val}, v{VCK}\ns_sub_u32 s{sCNT}, s{sCNT}, 1\ns_cmp_eq_u32 s{sCNT}, 0\ns_cbranch_vccz {L}d\ns_cbranch_scc1 {L}d')
            a(f'buffer_load_dword v{VCK}, v{vaddr}, {srd(sr)}, s{sT0} offen sc1\ns_branch {L}\n{L}d:')
            a.vm = []
        early = []
        def pre_poll(vaddr, sr, off):
            r = [36, 37, 38][len(early)]
            a(f's_mov_b32 s{sT0}, {off}')
            early.append((r, a(f'buffer_load_dword v{r}, v{vaddr}, {srd(sr)}, s{sT0} offen sc1')))
        def poll(vaddr, sr, off, val):
            L = lab('q')
            check_issue(vaddr, sr, off)
            vm = list(a.vm)
            for r, tk in early:
                a.wait_vm(tk)
                a(f'v_cmp_ne_u32 vcc, {val}, v{r}\ns_nop 1\ns_cbranch_vccz {L}')
            early.clear()
            check_wait(vaddr, sr, off, val)
            a(f'{L}:')
            a.vm = vm[-1:]
        def flag(ftype):
            a(f's_mov_b32 s{sT0}, {ftype*4096}')
            one_lane(f'buffer_store_dword v{VONE}, v{VFL}, {srd(sWS)}, s{sT0} offen sc1')
        if REGS:
            a(f'v_lshrrev_b32 v{row}, 3, v0\nv_and_b32 v{pos}, 7, v0\nv_lshrrev_b32 v{sw}, 4, v0\nv_and_b32 v{sw}, 1, v{sw}\nv_lshlrev_b32 v{sw}, 2, v{sw}')
            a(f'v_xor_b32 v{pos}, v{pos}, v{sw}\nv_lshlrev_b32 v{T[3]}, 4, v{pos}\nv_xor_b32 v{T[4]}, 32, v{T[3]}\ns_lshl_b32 s{sT0}, s{sJ}, 7')
            mk(16, 1024, sT0)
            a(f's_mul_i32 s{sT0}, s{sJ}, 448\ns_and_b32 s{sT4}, s{sJ}, 1\ns_lshl_b32 s{sT2}, s{sT4}, 6\ns_add_u32 s{sT2}, s{sT2}, s{sT0}')
            mk(20, 3584, sT2)
            for sg in range(4):
                if E('rot', 1): a(f's_add_u32 s{sT3}, s{sROT}, {sg}\ns_and_b32 s{sT3}, s{sT3}, 3')
                else: a(f's_mov_b32 s{sT3}, {sg}')
                a(f's_mul_i32 s{sK5+sg}, s{sT3}, {128*3584}')
            a('v_lshlrev_b32 v14, 4, v0')
            for k in range(4): a(f's_add_u32 s{sT3}, s{sRG}, {k}\ns_and_b32 s{sT3}, s{sT3}, 3\ns_mul_i32 s{sKG+k}, s{sT3}, {448*1024}')
        XS = 64; xt = {}
        def xs_loads():
            a(f's_lshl_b32 s{sT0}, s{sR}, 13\ns_add_u32 s{sT0}, s{sT0}, {XS_OFF}\ns_add_u32 s{sT2}, s{sT0}, 4096\nv_lshlrev_b32 v{T[0]}, 3, v0')
            for k in range(16):
                xt['s'] = a(f'buffer_load_dwordx2 {vr(XS+2*k,2)}, v{T[0]}, {srd(sWS)}, s{sT0 if k < 8 else sT2} offen offset:{(k&7)*512} sc1')
        def x1_tail(c):
            if E('rot', 1): a(f's_add_u32 s{sT3}, s{sROT}, {2+c}\ns_and_b32 s{sT3}, s{sT3}, 3\ns_lshl_b32 s{sT3}, s{sT3}, 14')
            else: a(f's_mov_b32 s{sT3}, {(2+c)*16384}')
            for k in range(4*c, 4*c + 4):
                a(f's_mov_b32 m0, {32768 + k*4096}\ns_add_u32 s{sT2}, s{sT3}, {(k&3)*4096}')
                for u in range(4): xt[22 + c] = a(f'buffer_load_dwordx4 v{12+(u&1)}, {srd(sWS)}, s{sT2} offen offset:{u*1024} sc1 lds')
        def xs_final(part):
            G = XS + 4; t = XS + 1
            if part == 0:
                a.wait_vm(xt['s'])
                for st in (16, 8, 4, 2):
                    for k in range(st): a(f'v_add_f32 v{XS+k}, v{XS+k}, v{XS+st+k}')
                return
            a(f'v_mul_f32 v{G}, {f2u(-1/512):#x}, v{XS}\nv_mul_f32 v{t}, {f2u(1/512):#x}, v{t}')
            a(f'v_fma_f32 v{t}, -v{G}, v{G}, v{t}\nv_max_f32 v{t}, 0, v{t}\nv_add_f32 v{t}, {f2u(1e-5):#x}, v{t}')
            a(f'v_rsq_f32 v{t+1}, v{t}\nv_sqrt_f32 v{G+3}, v{t}')
            a(f'v_mul_f32 v{G+1}, {f2u(GC0):#x}, v{t+1}\nv_mul_f32 v{t+2}, v{t+1}, v{t+1}\nv_mul_f32 v{t+2}, v{t+2}, v{t+1}\nv_mul_f32 v{G+2}, {f2u(GC1):#x}, v{t+2}')
            a(f'v_lshlrev_b32 v{T[0]}, 4, v0\nv_add_u32 v{T[0]}, {X1P}, v{T[0]}')
            a(f'ds_write_b128 v{T[0]}, {vr(G,4)}\ns_waitcnt lgkmcnt(0)')
        fhb, fxb, hlb = f"B{E('fh_bar', 6)}", f"B{E('fx_bar', 17)}", f"B{E('hl_bar', 11)}"
        for n in BARS:
            if n == 'XA': poll(VFP, sWS, FX1 * 4096, 1)
            if n == E('e_g0w', 'B33'): check_wait(VFP, sWS, FG0 * 4096, 1)
            if n == f'B{self.need[FG1]}': check_wait(VFP, sWS, FG1 * 4096, 1)
            if n == f'B{self.need[FO]}': check_wait(VFO, sWS, FO * 4096, 1)
            if n == f'B{self.need[FG2]}': check_wait(VFP, sWS, FG2 * 4096, 1)
            if n == hlb: poll(VF3, sWS, FH * 4096, 1)
            if n in ('B22', 'B23') and not E('x1l', 1): a.wait_vm(xt[int(n[1:])])
            if n[0] == 'B' and int(n[1:]) in REGS: a.wait_lg0()
            arrive(IDX[n]); self.barsS.append(n); a('s_barrier')
            stamp()
            if n == fhb: flag(FH)
            if n == fxb: flag(FX1)
            if n == 'B27': flag(FG0)
            if n == 'B33': flag(FG1)
            if n == f"B{E('fg2_bar', 36)}": flag(FG2)
            if n == (f"B{E('fa_bar', 15)}" if E('kv2', 0) else fxb): count(CF_A, sR)
            if n == 'XA':
                if E('xsl', 0): a(f's_sleep {E("xsl", 0)}')
                if not E('x1l', 1): x1_tail(0); xs_loads(); x1_tail(1)
            if n == E('e_xs', 'B20') and E('x1l', 1): xs_loads()
            if n in E('pp_h', 'X').split('.'): pre_poll(VF3, sWS, FH * 4096)
            if n in E('pp_x', 'X').split('.'): pre_poll(VFP, sWS, FX1 * 4096)
            if n == 'B2': check_issue(VZA, sDBG, 0)
            if n == 'B15': pass
            if n[0] == 'B': stats_after(int(n[1:]))
            if n == 'B4': check_wait(VZA, sDBG, 0, 1)
            if n == 'B22': xs_final(0)
            if n == 'B23': xs_final(1)
            if n == E('e_g0i', 'B30'): check_issue(VFP, sWS, FG0 * 4096)
            if n == f'B{max(self.need[FG1] - E("cl", 2), 34)}': check_issue(VFP, sWS, FG1 * 4096)
            if n == f'B{max(self.need[FO] - E("cl", 2), 34)}': check_issue(VFO, sWS, FO * 4096)
            if n == f'B{self.need[FG2] - E("cl", 2)}': check_issue(VFP, sWS, FG2 * 4096)
            if pf and n == E('e_p4', 'B13'):
                for (sr, nl) in ((sWO, 16), (sW4, 56)):
                    a(f's_mul_i32 s{sT0}, s2, {nl*128}\nv_cmp_gt_u32 vcc, {nl}, v0\nv_cndmask_b32 v{T[7]}, v{OB}, v{T[15]}, vcc\nbuffer_load_dword v9, v{T[7]}, {srd(sr)}, s{sT0} offen')
            if t3:
                if n == E('e_t3q', 'B4'): touch3(sQKV, 1536, 7)
                if n == E('e_t32', 'B7'): touch3(sW2, 512, 8)
                if n == E('e_t33', 'B13'): touch3(sW3, 1792, 10)
                if n == E('e_t33b', 'B24'): touch3(sW3, 1792, 11)
                if n == E('e_t34', 'B28'): touch3(sW4, 1792, 11)
                if n == E('e_t35', 'B37'): touch3(sWO, 512, 11); touch3(sW4, 1792, 11)
            reg_step(n, 1, 14, 16)
            if n[0] == 'B' and int(n[1:]) >= max(self.need.values()) + 2 and not prof and not wq_[1] and not any(st in REGS for k, v in ISSUE.items() if isinstance(k, int) and k > int(n[1:]) for st in v):
                a.wait_lg0(); break
        if prof:
            stamp(True)
            a(f's_lshl_b32 s{sT0}, s2, 3\ns_add_u32 s{sT0}, s{sT0}, 4\ns_lshl_b32 s{sT0}, s{sT0}, 8\ns_add_u32 s{sT0}, s{sT0}, {TS_OFF}')
            a(f'v_lshlrev_b32 v2, 2, v0\nbuffer_store_dword v{VTS}, v2, {srd(sWS)}, s{sT0} offen\nbuffer_store_dword v{VTC}, v2, {srd(sWS)}, s{sT0} offen offset:256')
            dump_arrive(0)
        a('s_endpgm')

        a('L_loader:')
        a.vm = vmL; a.lg = []
        VX1 = [24, 25]
        self.srds(a, skipx=True, skip1=True)
        mk(VQ, 3072, sT0)
        a(f's_mul_i32 s{sT0}, s{sJ}, 448\ns_and_b32 s{sT4}, s{sJ}, 1\ns_lshl_b32 s{sT2}, s{sT4}, 6\ns_add_u32 s{sT2}, s{sT2}, s{sT0}')
        mk(VW3, 3584, sT2)
        a(f's_cmp_eq_u32 s{sT4}, 0\ns_cselect_b32 s{sT2}, 384, 0\ns_add_u32 s{sT2}, s{sT2}, s{sT0}')
        a(f'v_and_b32 v{T[3]}, 63, v{T[3]}\nv_and_b32 v{T[4]}, 63, v{T[4]}\nv_lshrrev_b32 v{T[6]}, 2, v{pos}')
        mk(VHF, 3584, sT2)
        for sg in range(4):
            if E('rot', 1): a(f's_add_u32 s{sT3}, s{sROT}, {sg}\ns_and_b32 s{sT3}, s{sT3}, 3')
            else: a(f's_mov_b32 s{sT3}, {sg}')
            a(f's_mul_i32 s{sK5+sg}, s{sT3}, {128*3584}\ns_lshl_b32 s{sKX+sg}, s{sT3}, 14')
        for k in range(4): a(f's_add_u32 s{sT3}, s{sRG}, {k}\ns_and_b32 s{sT3}, s{sT3}, 3\ns_mul_i32 s{sKG+k}, s{sT3}, {448*1024}')
        for sg in (1, 0):
            a(f's_sub_u32 s{sT3}, s{sK5+sg+2}, s{sK5+sg}\nv_mul_lo_u32 v{T[5]}, v{T[6]}, s{sT3}\nv_add_u32 v{T[5]}, s{sK5+sg}, v{T[5]}')
            for i in range(4): a(f'v_add_u32 v{VHF+4*sg+i}, v{VHF+i}, v{T[5]}')
        a(f'v_lshrrev_b32 v{T[0]}, 5, v0\nv_and_b32 v{T[1]}, 31, v0\nv_lshlrev_b32 v{T[0]}, 10, v{T[0]}\nv_lshl_add_u32 v{T[0]}, v{T[1]}, 4, v{T[0]}')
        a(f's_lshl_b32 s{sT0}, s{sR}, 16\ns_add_u32 s{sT0}, s{sT0}, {X1_OFF}')
        a(f'v_add_u32 v{VX1[0]}, s{sT0}, v{T[0]}\nv_subrev_u32 v{VX1[1]}, 512, v{VX1[0]}')
        stats_setup()
        a('v_lshlrev_b32 v26, 4, v0')
        x1tok = {}
        def x1_chunk(sg):
            for g in range(4):
                a(f's_mov_b32 m0, {sg*16384 + g*4096}\ns_add_u32 s{sT2}, s{sKX+sg}, {g*4096}')
                for u in range(4):
                    x1tok[sg] = a(f'buffer_load_dwordx4 v{VX1[u&1]}, {srd(sWS)}, s{sT2} offen offset:{u*1024} sc1 lds')
        for n in BARS:
            b = int(n[1:]) if n[0] == 'B' else None
            if b in REGS: a.wait_lg0()
            elif b is not None:
                a.wait_vm(stok[b])
                if b in ((20, 21, 22, 23) if E('x1l', 1) else (20, 21)): a.wait_vm(x1tok[b - 20])
            arrive(IDX[n]); self.barsL.append(n); a('s_barrier')
            if n == 'XA':
                for c in range(4 if E('x1l', 1) else 2): x1_chunk(c)
            if E('st', 0):
                if b == 0: issue(3, False)
                if b == 1: issue(4)
            else:
                if b == 0: issue(2); issue(3)
                if b == 1: issue(4)
            if b in (2, 3): stats_after(b)
            for st in ISSUE.get(b if b is not None else n, []):
                if st not in REGS: issue(st)
            reg_step(n, 0, 26, V1K)
            if b in (0, 1): stats_after(b)
        dump_arrive(0)
        a('s_endpgm')

    def build(self):
        a = Asm()
        dry = Asm(); self.compute(dry); self.barsC = []
        self.prologue(a)
        self.helper(a)
        a.lg = []; a.vm = []
        a('L_compute:')
        self.compute(a)
        a('L_end:\ns_endpgm')
        assert self.barsC[:-1] == self.barsL and self.barsC[-1] == 'RB2' and self.barsL[:len(self.barsS)] == self.barsS, (self.barsC, self.barsL, self.barsS)
        if self.opt.get('align', 3): self.alstat = align_pass(a, KNAME + ':\n', self.opt.get('align', 3))
        ref = open(f'cdna_kernels/{KNAME[:-7]}.s.ref').read().split('\n')
        head = [l for l in ref if l.startswith(';') and '@launch' not in l]
        if self.dnames: head.append('; dnames ' + ' '.join(self.dnames))
        out = '\n'.join(head) + '\n; @launch grid=(256,1,1) block=(512,1,1) lds=163840\n'
        out += f'.amdgcn_target "amdgcn-amd-amdhsa--gfx950"\n.text\n.globl {KNAME}\n.p2align 8\n.type {KNAME},@function\n{KNAME}:\n'
        out += a.text()
        out += f'''.section .rodata,"a"
.p2align 6
.amdhsa_kernel {KNAME}
  .amdhsa_next_free_vgpr 256
  .amdhsa_next_free_sgpr 102
  .amdhsa_accum_offset 256
  .amdhsa_group_segment_fixed_size 0
  .amdhsa_kernarg_size 88
  .amdhsa_user_sgpr_count 2
  .amdhsa_user_sgpr_kernarg_segment_ptr 1
  .amdhsa_system_sgpr_workgroup_id_x 1
.end_amdhsa_kernel
'''
        return out, a


def generate(**opt):
    g = Gen(opt)
    return g.build()[0]

if __name__ == '__main__':
    opt = {}
    for arg in sys.argv[2:]:
        k, v = arg.split('=')
        opt[k] = int(v) if v.lstrip('-').isdigit() else v
    g = Gen(opt)
    txt, a = g.build()
    open(sys.argv[1], 'w').write(txt)
    print('instructions', len(a.ins), 'pads', a.npad, 'align', getattr(g, 'alstat', None), 'issue', ISSUE)
```

```python
import sys, math, struct
sys.path.insert(0, 'dev')
import re
from asmlib import Asm, Ins, align_pass

KNAME = 'parallel_sum__linear_attn_block__mixer_s_mlp__prompt_kernel'

H_OFF, X1_OFF, O_OFF, G_OFF = 0x000000, 0x200000, 0x400000, 0x600000
KV_OFF, FL_OFF, XS_OFF, TS_OFF = 0xE00000, 0xD10000, 0xD20000, 0x1000000
CF_OFF = 0xD00000
WS_BYTES = 0x1200000
KVP, KV_Z, KV_FIN, KV_CS = 4608, 4096, 0x24000, 0x28000
CF_CS, CF_A, CF_B = 0, 1024, 2048
NREP = 4
FH, FX1, FO, FG0, FG1, FG2 = 0, 1, 2, 3, 4, 5
GBLK = 229376
RING = 0x10000
SC = 0x24000
S1, S2, NMU, RHO, RHL = SC, SC + 1024, SC + 2048, SC + 2304, SC + 2560
PQ, X1P, CS3L = SC, SC + 9216, SC + 10240
OOB = 0x80000000

def f2u(x): return struct.unpack('<I', struct.pack('<f', x))[0]
LOG2E = 1.4426950408889634
GC0 = -2.0 * math.sqrt(2.0 / math.pi) * LOG2E
GC1 = GC0 * 0.044715

sX, sQKV, sWO, sW1, sW2, sW3, sW4, sOUT, sWS, sDBG = 28, 32, 36, 40, 44, 48, 52, 56, 60, 64
sR, sJ, sW, sTH, sHI = 68, 69, 70, 71, 72
sT0, sT1, sT2, sT3, sT4, sT5 = 73, 74, 75, 76, 77, 78
sEPS = 80
sONE, sSEL0, sSEL1 = 82, 83, 84
sA, sB, sC, sD = 85, 86, 87, 88
sI0 = 79
sCODE = 92
sCNT = 90
sROT = 89
sRG = 3
sKG = 22
sKC = 96
sBG = 91
sK1, sK3, sK5, sKX = 92, 96, 4, 18
sTSP = 100

def srd(n): return f's[{n}:{n+3}]'
def vr(n, k=1): return f'v{n}' if k == 1 else f'v[{n}:{n+k-1}]'

STAGES = ([('w1', s) for s in range(4)] + [('kv', s) for s in range(8)] + [('w2', s) for s in range(4)] +
          [('wq', s) for s in range(4)] + [('p0', s) for s in range(4)] + [('hf', s) for s in range(2)] +
          [('p1', s) for s in range(4)] + [('p2', s) for s in range(4)] +
          [])
STAGES0 = list(STAGES)
def set_order(order):
    STAGES[:] = STAGES0 + [(k, s) for k in order.split('.') for s in range(2 if k == 'gh' else 4)]
set_order('g0.g1.gh.wo.g2')
def g_rows(kind, s):
    if kind == 'gh': return 896 * s + 192, 896 * s + 640
    p = int(kind[1])
    return 448 * s + 64 * p, 448 * s + 256 + 64 * p
NST = len(STAGES)
AREL = 27

def plan_slots(opt):
    free = [RING + i * 0x4000 for i in range(5)]
    slot = {}; issue = {}
    quota = {13: opt.get('q13', 0), 16: opt.get('q16', 1), 17: 2, 24: opt.get('q24', 3), 27: 1, 30: opt.get('q30', 4), 34: opt.get('q34', 1)}
    jit = opt.get('jit', 5)
    regs = [int(x) for x in str(opt.get('regs', '')).split('.') if x]
    nxt = 0
    def drain(key, q, b):
        nonlocal nxt
        while free and nxt < NST and (nxt in regs or ((q > 0 or nxt <= b + 2) and not (b >= 35 and nxt > b + jit))):
            slot[nxt] = free.pop(0); issue.setdefault(key, []).append(nxt); q -= nxt not in regs; nxt += 1
    drain(-1, 5, -1)
    for b in range(NST):
        if b == 20:
            free.extend([slot[18], slot[19]]); drain('QE', 2, 19)
        if b >= 2 and b not in (20, 21): free.append(slot[b - 2])
        if b == (24 if opt.get('hfv', 1) else AREL): free.extend([0, 0x4000, 0x8000, 0xC000])
        if b == 15 and opt.get('rb17', 1): drain('RB1', quota.get(b, 1), b)
        else: drain(b, quota.get(b, 1), b)
    assert nxt == NST
    return slot, issue


class Gen:
    def __init__(self, opt):
        self.opt = opt
        self.barsC = []; self.barsS = []; self.barsL = []; self.dnames = []
        global SLOT, ISSUE
        set_order(opt.get('order', 'g0.g1.gh.g2.wo' if opt.get('kv2', 0) else 'g0.wo.g1.gh.g2'))
        SLOT, ISSUE = plan_slots(opt)

    def prologue(self, a):
        a('s_cmp_ge_u32 s2, 256\ns_cbranch_scc1 L_end')
        a('s_load_dwordx16 s[4:19], s[0:1], 0\ns_load_dwordx4 s[20:23], s[0:1], 64\ns_load_dwordx2 s[24:25], s[0:1], 80')
        if self.opt.get('prof'):
            a(f's_memrealtime s[26:27]\ns_memtime s[90:91]')
        m = self.opt.get('map', 'h4')
        if m == 'same':
            a(f's_and_b32 s{sR}, s2, 7\ns_lshr_b32 s{sT0}, s2, 6\ns_lshl_b32 s{sT0}, s{sT0}, 3\ns_or_b32 s{sR}, s{sR}, s{sT0}')
            a(f's_lshr_b32 s{sJ}, s2, 3\ns_and_b32 s{sJ}, s{sJ}, 7')
        elif m == 'h4':
            a(f's_and_b32 s{sR}, s2, 3\ns_lshr_b32 s{sT0}, s2, 5\ns_lshl_b32 s{sT0}, s{sT0}, 2\ns_or_b32 s{sR}, s{sR}, s{sT0}')
            a(f's_lshr_b32 s{sJ}, s2, 2\ns_and_b32 s{sJ}, s{sJ}, 7')
        elif m == 'cross':
            a(f's_lshr_b32 s{sR}, s2, 3\ns_and_b32 s{sJ}, s2, 7')
        a('v_lshrrev_b32 v1, 6, v0\nv_and_b32 v0, 63, v0')
        a(f'v_readfirstlane_b32 s{sT1}, v1')
        a(f's_mov_b32 s{sX+2}, {2<<20}\ns_mov_b32 s{sX+3}, 0x20000')
        a(f's_and_b32 s{sW}, s{sT1}, 3\ns_and_b32 s{sTH}, s{sT1}, 1\ns_lshr_b32 s{sHI}, s{sW}, 1')
        sh = {'same': 3, 'h4': 2, 'cross': 5}[m] if self.opt.get('rot2', 1) else 8
        a(f's_lshr_b32 s{sROT}, s{sR}, {sh}\ns_add_u32 s{sROT}, s{sROT}, s{sR}\ns_add_u32 s{sROT}, s{sROT}, s{sJ}\ns_and_b32 s{sROT}, s{sROT}, 3')
        sh2 = {'same': 3, 'h4': 2, 'cross': 5}[m]
        if self.opt.get('rotg', 1): a(f's_lshr_b32 s{sRG}, s{sR}, {sh2}\ns_add_u32 s{sRG}, s{sRG}, s{sJ}\ns_and_b32 s{sRG}, s{sRG}, 3')
        else: a(f's_mov_b32 s{sRG}, 0')
        a(f's_cmp_lt_u32 s{sT1}, 4\ns_cbranch_scc1 L_compute')

    def srds(self, a, skipx=False, skip1=False):
        a(f's_mov_b32 s{sEPS}, {f2u(1e-6):#x}\ns_mov_b32 s{sEPS+1}, {f2u(1e-6):#x}\ns_mov_b32 s{sONE}, 0x3f803f80')
        for (s, p, n) in ((sX, 4, 2 << 20), (sW1, 12, 512 * 1024), (sQKV, 6, 512 * 3072), (sWO, 8, 512 * 1024), (sW2, 14, 512 * 1024),
                          (sW3, 16, 512 * 3584), (sW4, 18, 1792 * 1024), (sOUT, 20, 2 << 20), (sWS, 24, WS_BYTES), (sDBG, 22, 256)):
            if s == sX and skipx: continue
            if s == sW1 and skip1: continue
            a(f's_mov_b32 s{s}, s{p}\ns_and_b32 s{s+1}, s{p+1}, 0xffff\ns_mov_b32 s{s+2}, {n}\ns_mov_b32 s{s+3}, 0x20000')

    def run_steps(self, a, steps):
        n = len(steps)
        sched = {}
        for i, s in enumerate(steps):
            sched.setdefault(s['at'], []).append(i)
        def items(i):
            s = steps[i]
            out = []
            if s.get('pre'): out.append(('pre', i))
            out += [('rd', i, t) for t in s['reads']]
            return out
        def emit(it):
            if it[0] == 'pre':
                steps[it[1]]['pre']()
            elif it[0] == 'rd':
                steps[it[1]]['tok'] = a(it[2])
            else:
                it[1]()
        for i in sched.get(-1, []):
            for it in items(i): emit(it)
        for k in range(n):
            s = steps[k]
            if s.get('hook'): s['hook']()
            pend = []
            for i in sched.get(k, []):
                if i == k:
                    for it in items(i): emit(it)
                else:
                    pend += items(i)
            pend += [('post', f) for f in s.get('post', [])]
            vt = s['vm']() if s.get('vm') else None
            a.wait_both(s.get('tok'), vt)
            nm = len(s['mfmas'])
            per = -(-len([p for p in pend if p[0] != 'pre']) // nm) if pend else 0
            for mi, m in enumerate(s['mfmas']):
                a(m)
                if s.get('tail') and s['tail'][mi]: s['tail'][mi]()
                c = 0
                while pend and (c < per or mi == nm - 1):
                    it = pend.pop(0)
                    emit(it)
                    if it[0] != 'pre': c += 1
                    elif mi < nm - 1 and self.opt.get('bfast', 0):
                        per = -(-len(pend) // (nm - 1 - mi))
                        break

    def barC(self, a, name):
        self.barsC.append(name); a('s_barrier')

    def gelu(self, a, pairs, tmp, after_first=None):
        P = lambda r: vr(r, 2)
        for i, (ac, cs, st, o) in enumerate(pairs):
            a(f'v_pk_fma_f32 {P(ac)}, {P(cs)}, {P(st)}, {P(ac)} op_sel:[0,0,0] op_sel_hi:[1,0,1]')
        if after_first: after_first()
        for i, (ac, cs, st, o) in enumerate(pairs):
            a(f'v_pk_mul_f32 {P(tmp+2*i)}, {P(ac)}, {P(ac)}')
        for i, (ac, cs, st, o) in enumerate(pairs):
            a(f'v_pk_fma_f32 {P(tmp+2*i)}, {P(tmp+2*i)}, {P(st+2)}, {P(st)} op_sel:[0,0,1] op_sel_hi:[1,0,1]')
        for i, (ac, cs, st, o) in enumerate(pairs):
            a(f'v_pk_mul_f32 {P(tmp+2*i)}, {P(tmp+2*i)}, {P(ac)}')
        for i in range(2 * len(pairs)):
            a(f'v_exp_f32_e64 v{tmp+i}, v{tmp+i}')
        for i, (ac, cs, st, o) in enumerate(pairs):
            a(f'v_pk_fma_f32 {P(tmp+2*i)}, {P(tmp+2*i)}, {P(st+2)}, {P(st+2)} op_sel:[0,1,1] op_sel_hi:[1,1,1]')
        for i in range(2 * len(pairs)):
            a(f'v_rcp_f32_e64 v{tmp+i}, v{tmp+i}')
        for i, (ac, cs, st, o) in enumerate(pairs):
            a(f'v_pk_mul_f32 {P(tmp+2*i)}, {P(tmp+2*i)}, {P(ac)}')
        for i, (ac, cs, st, o) in enumerate(pairs):
            a(f'v_cvt_pk_bf16_f32 v{o}, v{tmp+2*i}, v{tmp+2*i+1}')

    def phi_tail(self, a, acs, outs, tmp):
        P = lambda r: vr(r, 2)
        n = len(acs)
        for i in range(2 * n): a(f'v_exp_f32_e64 v{tmp+i}, v{tmp+i} clamp')
        for ac in acs:
            a(f'v_max_f32_e64 v{ac}, v{ac}, s{sEPS}\nv_max_f32_e64 v{ac+1}, v{ac+1}, s{sEPS}')
        for i, ac in enumerate(acs): a(f'v_pk_add_f32 {P(ac)}, {P(ac)}, {P(tmp+2*i)}')
        for i, ac in enumerate(acs): a(f'v_cvt_pk_bf16_f32 v{outs[i]}, v{ac}, v{ac+1}')

    def compute(self, a):
        opt = self.opt
        P = lambda r: vr(r, 2)
        XB = [2, 3, 4, 5]; PAT16, WK16 = 6, 7
        PATN = [8, 9]; PATP = [10, 11, 12, 13]; PAT3 = [14, 15]
        WK = [16, 17, 18, 19]
        CELLV, CELLT, LL16, RDX = 20, 21, 22, 23
        RES = 24; QST = 40; PST = 196
        ONES = 56
        STA, STB, XE, PSA = 1, 54, 19, 18
        HV = [252, 253, 254, 255]
        T = [240 + i for i in range(12)]
        q, i16, rr, c, h, t32, fsub = 228, 229, 230, 231, 232, 233, 234
        a(f'v_lshrrev_b32 v{q}, 4, v0\nv_and_b32 v{i16}, 15, v0\nv_lshrrev_b32 v{rr}, 2, v{i16}\nv_and_b32 v{c}, 3, v0')
        a(f'v_lshrrev_b32 v{h}, 5, v0\nv_and_b32 v{t32}, 31, v0\nv_and_b32 v{fsub}, 1, v{q}')
        a(f'v_lshlrev_b32 v{LL16}, 4, v0')
        a(f'v_lshlrev_b32 v{T[2]}, 3, v0')
        a(f's_lshr_b32 s{sT3}, s2, 3\ns_lshl_b32 s{sT3}, s{sT3}, 2\ns_add_u32 s{sT3}, s{sT3}, s{sW}\ns_lshl_b32 s{sT3}, s{sT3}, 9')
        a(f's_getpc_b64 s[{sCODE}:{sCODE+1}]\nL_pc:\ns_sub_u32 s{sCODE}, s{sCODE}, L_pc-{KNAME}\ns_subb_u32 s{sCODE+1}, s{sCODE+1}, 0')
        a(f's_and_b32 s{sCODE+1}, s{sCODE+1}, 0xffff\ns_mov_b32 s{sCODE+2}, L_end-{KNAME}\ns_mov_b32 s{sCODE+3}, 0x20000')
        if opt.get('cpf', 1): a(f'buffer_load_dword v24, v{T[2]}, {srd(sCODE)}, s{sT3} offen')
        if opt.get('t0', 0):
            a(f's_lshl_b32 s{sT0}, s{sR}, 3\ns_add_u32 s{sT0}, s{sT0}, s{sJ}\ns_lshl_b32 s{sT0}, s{sT0}, 2\ns_add_u32 s{sT0}, s{sT0}, s{sW}\ns_lshl_b32 s{sT2}, s{sT0}, 9\ns_lshl_b32 s{sT0}, s{sT0}, 11')
            a(f'v_lshlrev_b32 v{T[3]}, 5, v0\ns_mov_b32 s{sW1+2}, {512*1024}\ns_mov_b32 s{sW1+3}, 0x20000')
        a('s_waitcnt lgkmcnt(0)')
        if opt.get('t0', 0):
            a(f's_mov_b32 s{sX}, s4\ns_and_b32 s{sX+1}, s5, 0xffff\nbuffer_load_dword v25, v{T[3]}, {srd(sX)}, s{sT0} offen')
            a(f's_mov_b32 s{sW1}, s12\ns_and_b32 s{sW1+1}, s13, 0xffff\nbuffer_load_dword v26, v{T[2]}, {srd(sW1)}, s{sT2} offen')
        self.srds(a)
        a(f's_lshr_b32 s{sT0}, s{sR}, 2\ns_or_b32 s{sT0}, s{sT0}, s{sW}\ns_cmp_lg_u32 s{sT0}, 0\ns_cbranch_scc1 L_nozero')
        vm0 = list(a.vm)
        a(f'v_mov_b32 v{T[4]}, 0\nv_mov_b32 v{T[5]}, 0\nv_mov_b32 v{T[6]}, 0\nv_mov_b32 v{T[7]}, 0')
        a(f's_lshl_b32 s{sT3}, s{sJ}, 2\ns_add_u32 s{sT3}, s{sT3}, s{sR}')
        a(f's_lshl_b32 s{sT0}, s{sT3}, 10\ns_add_u32 s{sT0}, s{sT0}, {CF_OFF}')
        a(f'buffer_store_dwordx4 {vr(T[4],4)}, v{LL16}, {srd(sWS)}, s{sT0} offen sc1')
        a(f's_lshl_b32 s{sT0}, s{sJ}, 18\ns_lshl_b32 s{sT2}, s{sR}, 13\ns_add_u32 s{sT0}, s{sT0}, s{sT2}\ns_add_u32 s{sT0}, s{sT0}, {KV_OFF}\ns_add_u32 s{sT2}, s{sT0}, 4096')
        for u in range(0 if opt.get('kv2', 0) else 5):
            a(f'buffer_store_dwordx4 {vr(T[4],4)}, v{LL16}, {srd(sWS)}, s{sT0 if u < 4 else sT2} offen offset:{(u&3)*1024} sc1')
        a(f'v_lshlrev_b32 v{T[8]}, 12, v{q}\nv_lshl_add_u32 v{T[8]}, v{i16}, 3, v{T[8]}')
        a(f's_lshl_b32 s{sT0}, s{sT3}, 7\ns_add_u32 s{sT0}, s{sT0}, {FL_OFF}')
        a(f'buffer_store_dwordx2 {vr(T[4],2)}, v{T[8]}, {srd(sWS)}, s{sT0} offen sc1\ns_add_u32 s{sT0}, s{sT0}, 16384')
        a(f'buffer_store_dwordx2 {vr(T[4],2)}, v{T[8]}, {srd(sWS)}, s{sT0} offen sc1')
        a(f'v_mov_b32 v{T[9]}, 1\ns_lshl_b32 s{sT0}, s{sT3}, 2\nv_mov_b32 v{T[10]}, s{sT0}')
        a.wait_vm0()
        a('s_mov_b64 exec, 1')
        a(f'buffer_store_dword v{T[9]}, v{T[10]}, {srd(sDBG)}, 0 offen sc1')
        a('s_mov_b64 exec, -1')
        a('L_nozero:')
        a.vm = vm0
        a(f'v_mov_b32 v{T[1]}, {OOB}')
        for m in range(4):
            a(f'v_or_b32 v{T[0]}, {4*m}, v{q}\nv_xor_b32 v{T[0]}, v{T[0]}, v{i16}\nv_lshlrev_b32 v{T[0]}, 4, v{T[0]}')
            a(f'v_lshl_add_u32 v{XB[m]}, v{i16}, 8, v{T[0]}')
        a(f'v_lshrrev_b32 v{T[4]}, 1, v{rr}\nv_lshlrev_b32 v{T[4]}, 2, v{T[4]}\nv_lshrrev_b32 v{T[5]}, 1, v{c}')
        a(f'v_and_b32 v{T[6]}, 1, v{c}\nv_lshlrev_b32 v{T[6]}, 3, v{T[6]}')
        a(f's_lshl_b32 s{sT0}, s{sW}, 1\nv_add_u32 v{T[7]}, s{sT0}, v{T[5]}\nv_xor_b32 v{T[7]}, v{T[7]}, v{T[4]}')
        a(f'v_lshlrev_b32 v{T[8]}, 1, v{fsub}\nv_xor_b32 v{T[7]}, v{T[7]}, v{T[8]}\nv_lshl_add_u32 v{T[7]}, v{T[7]}, 4, v{T[6]}')
        a(f'v_lshl_add_u32 v{T[9]}, v{q}, 3, v{rr}\nv_lshl_add_u32 v{PAT16}, v{T[9]}, 7, v{T[7]}')
        a(f's_lshl_b32 s{sT0}, s{sHI}, 2\nv_add3_u32 v{T[7]}, s{sT0}, v{T[8]}, v{T[5]}\nv_xor_b32 v{T[7]}, v{T[7]}, v{T[4]}')
        a(f's_lshl_b32 s{sT2}, s{sHI}, 13')
        a(f'v_lshlrev_b32 v{T[9]}, 1, v{h}\nv_xor_b32 v{T[9]}, v{T[9]}, v{T[7]}\nv_lshl_add_u32 v{T[9]}, v{T[9]}, 4, v{T[6]}')
        a(f'v_lshl_add_u32 v{T[10]}, v{h}, 3, v{rr}\nv_lshl_add_u32 v{T[9]}, v{T[10]}, 7, v{T[9]}')
        a(f'v_add_u32 v{PATN[0]}, s{sT2}, v{T[9]}\nv_xor_b32 v{PATN[1]}, 64, v{PATN[0]}')
        a(f'v_lshl_add_u32 v{T[9]}, v{T[7]}, 4, v{T[6]}\nv_lshl_add_u32 v{T[10]}, v{h}, 2, v{rr}\nv_lshl_add_u32 v{PAT3[0]}, v{T[10]}, 7, v{T[9]}')
        a(f'v_xor_b32 v{PAT3[1]}, 32, v{PAT3[0]}\nv_add_u32 v{PAT3[1]}, 1024, v{PAT3[1]}')
        a(f'v_add_u32 v{PATP[0]}, s{sT2}, v{PAT3[0]}\nv_add_u32 v{PATP[1]}, s{sT2}, v{PAT3[1]}')
        a(f'v_xor_b32 v{PATP[2]}, 64, v{PATP[0]}\nv_xor_b32 v{PATP[3]}, 64, v{PATP[1]}')
        a(f'v_lshlrev_b32 v{CELLV}, 10, v{h}\nv_lshl_add_u32 v{CELLV}, v{t32}, 4, v{CELLV}')
        a(f's_lshl_b32 s{sT0}, s{sTH}, 9\nv_add_u32 v{CELLT}, s{sT0}, v{CELLV}')
        for i in range(4): a(f'v_mov_b32 v{ONES+i}, s{sONE}')
        a(f's_lshl_b32 s{sT0}, s{sTH}, 5\nv_add_u32 v{T[0]}, s{sT0}, v{t32}')
        a(f's_lshl_b32 s{sT2}, s{sHI}, 13\nv_lshl_add_u32 v{T[2]}, v{h}, 10, s{sT2}')
        rot = opt.get('rot', 1)
        for g in range(4):
            if rot: a(f's_add_u32 s{sT0}, s{sROT}, {g}\ns_and_b32 s{sT0}, s{sT0}, 3')
            else: a(f's_mov_b32 s{sT0}, {g}')
            a(f's_lshl_b32 s{sKC+g}, s{sT0}, 14\ns_lshr_b32 s{sT3}, s{sT0}, 1\ns_add_u32 s{sT3}, s{sT3}, 1\ns_sub_u32 s{sT4}, 0, s{sT3}\ns_bitcmp1_b32 s{sT0}, 0\ns_cselect_b32 s{sT3}, s{sT3}, s{sT4}')
            a(f'v_add_u32 v{T[3]}, s{sT3}, v{T[0]}\nv_ashrrev_i32 v{T[4]}, 6, v{T[3]}\nv_add_u32 v{T[4]}, s{sR}, v{T[4]}')
            a(f'v_and_b32 v{T[3]}, 63, v{T[3]}\nv_lshl_add_u32 v{T[3]}, v{T[3]}, 4, v{T[2]}\nv_lshl_add_u32 v{T[3]}, v{T[4]}, 16, v{T[3]}\nv_add_u32 v{T[3]}, s{sKC+g}, v{T[3]}')
            a(f'v_cmp_gt_u32 vcc, 32, v{T[4]}\nv_cndmask_b32 v{HV[g]}, v{T[1]}, v{T[3]}, vcc')
        a(f'v_lshlrev_b32 v{STA}, 4, v{i16}\nv_add_u32 v{STA}, {SC}, v{STA}')
        a(f'v_lshlrev_b32 v{STB}, 4, v{q}\nv_add_u32 v{STB}, {NMU}, v{STB}')
        a(f'v_lshlrev_b32 v{PSA}, 4, v{T[0]}\nv_add_u32 v{PSA}, {S2}, v{PSA}')
        a(f's_and_b32 s{sT0}, s{sJ}, 1\ns_lshl_b32 s{sT0}, s{sT0}, 3\ns_lshl_b32 s{sT2}, s{sHI}, 2\ns_add_u32 s{sT0}, s{sT0}, s{sT2}')
        a(f's_lshr_b32 s{sT2}, s{sJ}, 1\ns_sub_u32 s{sT2}, s{sT2}, s{sROT}\ns_and_b32 s{sT2}, s{sT2}, 3\ns_lshl_b32 s{sT2}, s{sT2}, 14')
        a(f'v_xor_b32 v{XE}, s{sT0}, v{i16}\nv_lshlrev_b32 v{XE}, 4, v{XE}\nv_lshl_add_u32 v{XE}, v{h}, 3, v{XE}\nv_lshl_add_u32 v{XE}, v{T[0]}, 8, v{XE}\nv_add_u32 v{XE}, s{sT2}, v{XE}')
        a(f's_xor_b32 s{sT0}, s{sW}, 2\ns_lshl_b32 s{sT0}, s{sT0}, 12\ns_add_u32 s{sT0}, s{sT0}, {SC}\nv_add_u32 v{RDX}, s{sT0}, v{LL16}')
        a(f's_lshl_b32 s{sA}, s{sR}, 16')
        a(f's_lshl_b32 s{sT0}, s{sJ}, 2\ns_add_u32 s{sT0}, s{sT0}, s{sW}\ns_lshl_b32 s{sT0}, s{sT0}, 11\ns_add_u32 s{sB}, s{sA}, s{sT0}')
        if opt.get('kv2', 0): a(f's_mul_i32 s{sT0}, s{sR}, {KVP}')
        else: a(f's_and_b32 s{sT0}, s{sR}, 3\ns_lshl_b32 s{sT0}, s{sT0}, 13')
        a(f's_lshl_b32 s{sC}, s{sJ}, 18\ns_add_u32 s{sC}, s{sC}, s{sT0}\ns_add_u32 s{sC}, s{sC}, {KV_OFF}')
        a(f's_mul_i32 s{sD}, s{sR}, {GBLK}\ns_add_u32 s{sD}, s{sD}, {G_OFF}')

        def cst(k):
            if opt.get('prof') in (1, 2) and opt.get('cset', 0) == k // 8: a(f's_memrealtime s[{4+2*(k%8)}:{5+2*(k%8)}]')
        def stage_pre(st, wks, pats, extra=None, after=None):
            def f():
                for wk, pt in zip(wks, pats):
                    a(f'v_add_u32 v{wk}, {SLOT[st]}, v{pt}')
                if extra: extra()
                self.barC(a, f'B{st}')
                if after: after()
            return f

        def steps_q(first, acc, cs, sets, base_at):
            st = []
            for ks in range(16):
                sb = sets[ks % 3]; stg = first + ks // 4
                reads = [f'ds_read_b64_tr_b16 {vr(sb+16,2)}, v{WK16} offset:{(ks%4)*4096}',
                         f'ds_read_b64_tr_b16 {vr(sb+18,2)}, v{WK16} offset:{(ks%4)*4096+512}']
                reads += [f'ds_read_b128 {vr(sb+4*tt,4)}, v{XB[ks&3]} offset:{tt*4096+(ks>>2)*16384}' for tt in range(4)]
                mf = [f'v_mfma_f32_16x16x32_bf16 {vr(cs,4)}, {vr(sb+16,4)}, {vr(ONES,4)}, {vr(cs,4) if ks else 0}']
                mf += [f'v_mfma_f32_16x16x32_bf16 {vr(acc+4*tt,4)}, {vr(sb+16,4)}, {vr(sb+4*tt,4)}, {vr(acc+4*tt,4) if ks else 0}' for tt in range(4)]
                st.append(dict(reads=reads, mfmas=mf, at=base_at + ks - 2, stage=stg if ks % 4 == 0 else None))
            return st

        HACC, HCS, HSETS = 60, 76, [80, 100, 120]
        KACC, VACC, KCS, VCS, KSETS = 140, 156, 172, 176, [180, 204]
        HF = 60; P2ACC = 140
        steps = steps_q(0, HACC, HCS, HSETS, 0)
        steps[0]['at'] = -1; steps[1]['at'] = -1
        for s in steps:
            if s['stage'] is not None: s['pre'] = stage_pre(s['stage'], [WK16], [PAT16])
        nh = len(steps)

        htok = {}
        HST = 80
        def h_stats_reads():
            for tt in range(4):
                htok['s'] = a(f'ds_read_b128 {vr(228+4*tt,4)}, v{STA} offset:{tt*256}')
        def h_epilogue():
            ST = 228; TMP = 100; OUT = 116
            a.wait_lg(htok['s'])
            pairs = [(HACC + 2*u, HCS + 2*(u & 1), ST + 4*(u >> 1), OUT + u) for u in range(8)]
            self.gelu(a, pairs, TMP)
            for pr in range(2):
                a(f'v_permlane16_swap_b32 v{OUT+4*pr}, v{OUT+4*pr+2}\nv_permlane16_swap_b32 v{OUT+4*pr+1}, v{OUT+4*pr+3}')
                htok['st'] = a(f'buffer_store_dwordx4 {vr(OUT+4*pr,4)}, v{CELLV}, {srd(sWS)}, s{sB} offen offset:{pr*512} sc1')
            cst(0)

        hl = {}; xp = {}
        def hload(n):
            sg, i = n // 4, n % 4
            if i % 2 == 0: a(f's_mov_b32 s{sI0}, {H_OFF + (i>>1)*4096}')
            hl[n] = a(f'buffer_load_dwordx4 {vr(HF+4*n,4)}, v{HV[sg]}, {srd(sWS)}, s{sI0} offen offset:{(i&1)*2048} sc1')
        for ks in range(16):
            sb = KSETS[ks % 2]; stg = 4 + ks // 2
            o = (ks % 2) * 4096
            reads = [f'ds_read_b64_tr_b16 {vr(sb+16,2)}, v{WK16} offset:{o}', f'ds_read_b64_tr_b16 {vr(sb+18,2)}, v{WK16} offset:{o+512}',
                     f'ds_read_b128 {vr(sb,4)}, v{XB[ks&3]} offset:{(ks>>2)*16384}',
                     f'ds_read_b64_tr_b16 {vr(sb+20,2)}, v{WK16} offset:{o+8192}', f'ds_read_b64_tr_b16 {vr(sb+22,2)}, v{WK16} offset:{o+8192+512}']
            reads += [f'ds_read_b128 {vr(sb+4*tt,4)}, v{XB[ks&3]} offset:{tt*4096+(ks>>2)*16384}' for tt in range(1, 4)]
            mf = [f'v_mfma_f32_16x16x32_bf16 {vr(KCS,4)}, {vr(ONES,4)}, {vr(sb+16,4)}, {vr(KCS,4) if ks else 0}',
                  f'v_mfma_f32_16x16x32_bf16 {vr(VCS,4)}, {vr(ONES,4)}, {vr(sb+20,4)}, {vr(VCS,4) if ks else 0}']
            for tt in range(4):
                mf.append(f'v_mfma_f32_16x16x32_bf16 {vr(KACC+4*tt,4)}, {vr(sb+4*tt,4)}, {vr(sb+16,4)}, {vr(KACC+4*tt,4) if ks else 0}')
                mf.append(f'v_mfma_f32_16x16x32_bf16 {vr(VACC+4*tt,4)}, {vr(sb+4*tt,4)}, {vr(sb+20,4)}, {vr(VACC+4*tt,4) if ks else 0}')
            s = dict(reads=reads, mfmas=mf, at=nh + ks - 1)
            if ks % 2 == 0:
                extra = after = None
                if stg == opt.get('fh_bar', 6): extra = lambda: (a.wait_vm(htok['st']), cst(1))
                if stg == opt.get('hl_bar', 11): after = lambda: a.inject([lambda n=n: hload(n) for n in range(16)], opt.get('hl_every', 16))
                if stg == 4: after = h_stats_reads
                if stg == opt.get('hl_bar', 11) - 1: after = lambda: xn_prep()
                if stg == opt.get('hl_bar', 11): extra = lambda: xn_prep2()
                s['pre'] = stage_pre(stg, [WK16], [PAT16], extra, after)
            steps.append(s)
        kr0, kp0 = steps[nh]['reads'], steps[nh]['pre']
        steps[nh]['reads'] = []; steps[nh]['pre'] = None
        def h_hook():
            kp0()
            for t in kr0: steps[nh]['tok'] = a(t)
            h_epilogue()
        steps[nh]['hook'] = h_hook
        nkv = len(steps)

        ASETS = [228, 236, 244]
        def steps_ks(first, nstage, pats, natural, acc, bfrag, asets, base, setphase=0, init=True, c_init=None):
            st = []
            for n in range(4 * nstage):
                stg = first + n // 4; i = n % 4
                sb = asets[(n + setphase) % 3]
                reads = []
                for t in range(2):
                    for rd in range(2):
                        if natural:
                            reads.append(f'ds_read_b64_tr_b16 {vr(sb+4*t+2*rd,2)}, v{WK[t]} offset:{i*2048+rd*512}')
                        else:
                            reads.append(f'ds_read_b64_tr_b16 {vr(sb+4*t+2*rd,2)}, v{WK[2*t+rd]} offset:{i*2048}')
                b = bfrag(n)
                c0 = vr(acc if (n or c_init is None) else c_init, 16)
                c1 = vr(acc + 16, 16) if (n or not init) else 0
                mf = [f'v_mfma_f32_32x32x16_bf16 {vr(acc,16)}, {vr(sb,4)}, {vr(b,4)}, {c0}',
                      f'v_mfma_f32_32x32x16_bf16 {vr(acc+16,16)}, {vr(sb+4,4)}, {vr(b,4)}, {c1}']
                s = dict(reads=reads, mfmas=mf, at=base + n - 2)
                if i == 0: s['pre'] = stage_pre(stg, WK[:len(pats)], pats)
                st.append(s)
            return st

        p2 = steps_ks(12, 4, PATN, True, P2ACC, lambda n: HF + 4 * n, ASETS, nkv, c_init=124)
        p2[0]['at'] = nkv - 1; p2[1]['at'] = nkv - 1
        XN = 124
        def xn_prep():
            XR = 228
            a(f'v_xor_b32 v{XR+8}, 16, v{XE}\nv_xor_b32 v{XR+9}, 32, v{XE}\nv_xor_b32 v{XR+10}, 48, v{XE}')
            a(f'ds_read_b64 {vr(XR,2)}, v{XE}')
            for g in range(1, 4): a(f'ds_read_b64 {vr(XR+2*g,2)}, v{XR+7+g}')
            xp['t'] = a(f'ds_read_b64 {vr(XR+12,2)}, v{PSA}')
        def xn_prep2():
            XR = 228
            a.wait_lg(xp['t'])
            for g in range(4):
                for d in range(2):
                    a(f'v_lshlrev_b32 v{RES+4*g+2*d}, 16, v{XR+2*g+d}\nv_and_b32 v{RES+4*g+2*d+1}, 0xffff0000, v{XR+2*g+d}')
            a(f'v_mul_f32 v{XR+12}, v{XR+12}, v{XR+13}')
            for u in range(16): a(f'v_fma_f32 v{XN+u}, v{RES+u}, v{XR+13}, v{XR+12}')
        def kv_epilogue():
            cst(16)
            SN, SR_, SL = 180, 196, 212
            for tt in range(4): a(f'ds_read_b128 {vr(SN+4*tt,4)}, v{STB} offset:{tt*64}')
            for tt in range(4): tk1 = a(f'ds_read_b128 {vr(SL+4*tt,4)}, v{STB} offset:{tt*64+512}')
            for tt in range(4): tk = a(f'ds_read_b128 {vr(SR_+4*tt,4)}, v{STB} offset:{tt*64+256}')
            a.wait_lg(tk1)
            for u in range(8):
                a(f'v_pk_fma_f32 {P(KACC+2*u)}, {P(SN+2*u)}, {P(KCS)}, {P(KACC+2*u)} op_sel_hi:[1,0,1]')
            for u in range(8):
                a(f'v_pk_fma_f32 {P(VACC+2*u)}, {P(SN+2*u)}, {P(VCS)}, {P(VACC+2*u)} op_sel_hi:[1,0,1]')
            for u in range(8):
                a(f'v_pk_mul_f32 {P(SL+2*u)}, {P(SL+2*u)}, {P(KACC+2*u)}')
            a.wait_lg(tk)
            for tt in range(4):
                a(f'ds_read_b128 {vr(QST+4*tt,4)}, v{STA} offset:{1024+tt*256}')
            for u in range(8):
                a(f'v_pk_fma_f32 {P(KACC+2*u)}, {P(KACC+2*u)}, {P(SR_+2*u)}, s[{sEPS}:{sEPS+1}]')
            for u in range(8):
                a(f'v_pk_mul_f32 {P(VACC+2*u)}, {P(VACC+2*u)}, {P(SR_+2*u)}')
            cst(17)
            PKR, PVR = 180, 188
            for u in range(8): a(f'v_cvt_pk_bf16_f32 v{PVR+u}, v{VACC+2*u}, v{VACC+2*u+1}')
            self.phi_tail(a, [KACC + 2*u for u in range(8)], [PKR + u for u in range(8)], SL)
            KVA, ZA = 172, 176
            XR = 196
            cst(18)
            a(f'v_mfma_f32_16x16x32_bf16 {vr(ZA,4)}, {vr(PKR,4)}, {vr(ONES,4)}, 0')
            a(f'v_mfma_f32_16x16x32_bf16 {vr(KVA,4)}, {vr(PVR,4)}, {vr(PKR,4)}, 0')
            a(f'v_mfma_f32_16x16x32_bf16 {vr(ZA,4)}, {vr(PKR+4,4)}, {vr(ONES,4)}, {vr(ZA,4)}')
            a(f'v_mfma_f32_16x16x32_bf16 {vr(KVA,4)}, {vr(PVR+4,4)}, {vr(PKR+4,4)}, {vr(KVA,4)}')
            a(f'v_and_b32 v{XR+3}, 15, v0\nv_lshrrev_b32 v{XR+4}, 4, v0\nv_lshlrev_b32 v{XR+2}, 8, v{XR+4}\nv_lshl_add_u32 v{XR+2}, v{XR+3}, 2, v{XR+2}')
            if opt.get('kv2', 0): a(f'v_lshlrev_b32 v{XR+2}, 2, v0')
            a(f'v_lshl_add_u32 v{XR+4}, v{XR+4}, 2, v{XR+3}\nv_lshlrev_b32 v{XR+4}, 2, v{XR+4}')
            a(f'v_mov_b32 v{XR+5}, {OOB}\nv_cmp_gt_u32 vcc, 4, v{XR+3}\ns_lshl_b32 s{sT0}, s{sW}, 10\ns_add_u32 s{sT0}, s{sT0}, s{sC}\nv_cndmask_b32 v{XR+4}, v{XR+5}, v{XR+4}, vcc')
            a.flush_inject()
            cst(19)
            a(f'v_cmp_eq_u32 vcc, 1, v{XR+3}\ns_lshl_b32 s{sT2}, s{sW}, 6\ns_add_u32 s{sT2}, s{sT2}, s{sC}\ns_add_u32 s{sT2}, s{sT2}, {KV_Z}\nv_cndmask_b32 v{ZA}, v{ZA}, v{ZA+1}, vcc')
            for k in range(4):
                if k < 2: a(f'v_cmp_eq_u32 vcc, {k+2}, v{XR+3}')
                a(f'buffer_store_dword v{KVA+k}, v{XR+2}, {srd(sWS)}, s{sT0} offen offset:{k*256} sc1' if opt.get('kv2', 0) else f'buffer_atomic_add_f32 v{KVA+k}, v{XR+2}, {srd(sWS)}, s{sT0} offen offset:{k*64}')
                if k < 2: a(f'v_cndmask_b32 v{ZA}, v{ZA}, v{ZA+k+2}, vcc')
            htok['kv'] = a(f'buffer_store_dword v{ZA}, v{XR+4}, {srd(sWS)}, s{sT2} offen sc1' if opt.get('kv2', 0) else f'buffer_atomic_add_f32 v{ZA}, v{XR+4}, {srd(sWS)}, s{sT2} offen')
        p2[0]['hook'] = kv_epilogue
        if opt.get('kv2', 0):
            kb = 4 * (opt.get('fa_bar', 15) - 12)
            okb = p2[kb]['pre']
            p2[kb]['pre'] = lambda: (a.wait_vm(htok['kv']), okb())
        for n, s in enumerate(p2):
            s['vm'] = (lambda n=n: hl[n])
            if n in (1, 8, 15): s['hook'] = (lambda n=n: cst({1: 20, 8: 21, 15: 22}[n]))
        steps += p2
        np2 = len(steps)

        qs = steps_q(16, HACC, HCS, HSETS, np2)
        x1tok = {}
        for s in qs:
            if s['stage'] is not None:
                extra = None
                if s['stage'] == opt.get('fx_bar', 17): extra = lambda: (a.wait_vm(x1tok['st']), cst(3))
                s['pre'] = stage_pre(s['stage'], [WK16], [PAT16], extra)
        qr0, qr1 = qs[0]['reads'], qs[1]['reads']
        qs[0]['reads'] = []; qs[1]['reads'] = []; qs[0]['pre'] = None
        qs[0]['at'] = np2; qs[1]['at'] = np2
        def exchange(acc, rcv, nb, between=None):
            a(f'v_xor_b32 v{rcv}, 8192, v{RDX}')
            for g in range(4):
                a(f'ds_write_b128 v{rcv}, {vr(acc+16+4*g,4)} offset:{g*1024}')
            if between: between()
            a.wait_lg0()
            self.barC(a, nb)
            return [a(f'ds_read_b128 {vr(rcv+4*g,4)}, v{RDX} offset:{g*1024}') for g in range(4)]
        def unsplit_last(st, acc, rcv, nb, stg, natural, asets, phase, own, oth, xt):
            n0 = len(st) - 4
            pats = [PATN[0]] if natural else PATP[:2]
            def pre(o=st[n0].get('extra')):
                if o: o()
                self.barC(a, f'B{stg}')
                for k, pt in enumerate(pats):
                    a(f'v_add_u32 v{WK[k]}, {SLOT[stg]}, v{pt}\nv_xor_b32 v{WK[2+k]}, 8192, v{WK[k]}')
            st[n0]['pre'] = pre
            for i in range(4):
                s = st[n0 + i]; sb = asets[(n0 + i + phase) % 3]
                s['reads'] = []
                for u in range(2):
                    for rd in range(2):
                        if natural: s['reads'].append(f'ds_read_b64_tr_b16 {vr(sb+4*u+2*rd,2)}, v{WK[2*u]} offset:{i*2048+rd*512}')
                        else: s['reads'].append(f'ds_read_b64_tr_b16 {vr(sb+4*u+2*rd,2)}, v{WK[2*u+rd]} offset:{i*2048}')
                s['mfmas'] = [f'v_mfma_f32_32x32x16_bf16 {vr(acc,16)}, {vr(sb,4)}, {vr(own(i),4)}, {vr(acc,16)}',
                              f'v_mfma_f32_32x32x16_bf16 {vr(acc,16)}, {vr(sb+4,4)}, {vr(oth(i),4)}, {vr(acc,16)}']
            wt = {}
            def wr(g):
                if g == 0: a(f'v_xor_b32 v{rcv}, 8192, v{RDX}')
                wt[g] = a(f'ds_write_b128 v{rcv}, {vr(acc+16+4*g,4)} offset:{g*1024}')
            st[n0]['tail'] = [None, lambda: (wr(0), wr(1))]
            st[n0 + 1]['tail'] = [lambda: wr(2), lambda: wr(3)]
            def sync():
                a.wait_lg(wt[3])
                self.barC(a, nb)
                xt['tk'] = [a(f'ds_read_b128 {vr(rcv+4*g,4)}, v{RDX} offset:{g*1024}') for g in range(4)]
            st[n0 + 3]['tail'] = [sync, None]
        def p2_epilogue():
            RCV = 180; OUT = 196; SS = 204
            cst(23)
            def between():
                a(f's_lshl_b32 s{sT2}, s{sJ}, 1\ns_add_u32 s{sT2}, s{sT2}, s{sHI}\ns_lshl_b32 s{sT0}, s{sT2}, 12\ns_add_u32 s{sT0}, s{sT0}, s{sA}\ns_add_u32 s{sT0}, s{sT0}, {X1_OFF}')
                a(f's_lshl_b32 s{sT2}, s{sT2}, 9\ns_lshl_b32 s{sT3}, s{sR}, 13\ns_add_u32 s{sT2}, s{sT2}, s{sT3}\ns_lshl_b32 s{sT3}, s{sTH}, 8\ns_add_u32 s{sT2}, s{sT2}, s{sT3}\ns_add_u32 s{sT2}, s{sT2}, {XS_OFF}')
                a(f'v_add_u32 v{WK16}, {SLOT[16]}, v{PAT16}')
                a(f'v_and_b32 v{SS+8}, 31, v0\nv_lshrrev_b32 v{SS+9}, 5, v0\nv_lshlrev_b32 v{SS+9}, 2, v{SS+9}\nv_lshl_add_u32 v{SS+8}, v{SS+8}, 3, v{SS+9}')
            tk = exchange(P2ACC, RCV, 'RB1', between)
            for b in range(2):
                a.wait_lg(tk[2*b+1])
                for u in range(4*b, 4*b+4): a(f'v_pk_add_f32 {P(P2ACC+2*u)}, {P(P2ACC+2*u)}, {P(RCV+2*u)}')
                for u in range(4*b, 4*b+4): a(f'v_cvt_pk_bf16_f32 v{OUT+u}, v{P2ACC+2*u}, v{P2ACC+2*u+1}')
                a(f'buffer_store_dwordx4 {vr(OUT+4*b,4)}, v{CELLT}, {srd(sWS)}, s{sT0} offen offset:{b*2048} sc1')
            a(f'v_pk_add_f32 {P(SS)}, {P(P2ACC)}, {P(P2ACC+2)}\nv_pk_mul_f32 {P(SS+2)}, {P(P2ACC)}, {P(P2ACC)}')
            a(f'v_pk_add_f32 {P(SS+4)}, {P(P2ACC+4)}, {P(P2ACC+6)}\nv_pk_mul_f32 {P(SS+6)}, {P(P2ACC+2)}, {P(P2ACC+2)}')
            for u in range(2, 8):
                k = 4 * (u & 1)
                a(f'v_pk_fma_f32 {P(SS+2+k)}, {P(P2ACC+2*u)}, {P(P2ACC+2*u)}, {P(SS+2+k)}')
                if u >= 4: a(f'v_pk_add_f32 {P(SS+k)}, {P(SS+k)}, {P(P2ACC+2*u)}')
            a(f'v_pk_add_f32 {P(SS)}, {P(SS)}, {P(SS+4)}\nv_pk_add_f32 {P(SS+2)}, {P(SS+2)}, {P(SS+6)}')
            a(f'v_add_f32 v{SS}, v{SS}, v{SS+1}\nv_add_f32 v{SS+2}, v{SS+2}, v{SS+3}')
            a(f'v_permlane32_swap_b32 v{SS}, v{SS+2}\nv_add_f32 v{SS}, v{SS}, v{SS+2}')
            x1tok['st'] = a(f'buffer_store_dword v{SS}, v{SS+8}, {srd(sWS)}, s{sT2} offen sc1')
            cst(2)
            for u in range(8): a(f'v_pk_add_f32 {P(RES+2*u)}, {P(RES+2*u)}, {P(P2ACC+2*u)}')
            if opt.get('fx_bar', 17) == 16:
                a.wait_vm(x1tok['st']); cst(3)
            self.barC(a, 'B16')
            for t in qr0: qs[0]['tok'] = a(t)
            for t in qr1: qs[1]['tok'] = a(t)
        qs[0]['hook'] = p2_epilogue
        steps += qs
        nq = len(steps)

        BST = 128; A3 = [60, 68, 76]; ACA, ACB = 84, 100
        GST = 40; GT = 44; CSG = 112
        X1B, CSB, CSB2, HFB = 2, 3, 4, 5
        HP = [6, 7]
        def q_epilogue():
            TMP = 100; OUT = 116; QP = 80
            self.barC(a, 'QE')
            for u in range(8):
                a(f'v_pk_fma_f32 {P(HACC+2*u)}, {P(HCS+2*(u&1))}, {P(QST+4*(u>>1))}, {P(HACC+2*u)} op_sel_hi:[1,0,1]')
            for u in range(8):
                a(f'v_pk_mul_f32 {P(TMP+2*u)}, {P(HACC+2*u)}, {P(QST+4*(u>>1)+2)} op_sel_hi:[1,0]')
            for u in range(8):
                a(f'v_pk_fma_f32 {P(HACC+2*u)}, {P(HACC+2*u)}, {P(QST+4*(u>>1))}, s[{sEPS}:{sEPS+1}] op_sel:[0,1,0] op_sel_hi:[1,1,1]')
            self.phi_tail(a, [HACC + 2*u for u in range(8)], [OUT + u for u in range(8)], TMP)
            a(f's_lshl_b32 s{sT0}, s{sW}, 11\ns_add_u32 s{sT0}, s{sT0}, {PQ}\nv_lshlrev_b32 v{QP}, 3, v0\nv_add_u32 v{QP}, s{sT0}, v{QP}')
            for tt in range(4): a(f'ds_write_b64 v{QP}, {vr(OUT+2*tt,2)} offset:{tt*512}')
            a(f's_lshl_b32 s{sT0}, s{sTH}, 10\nv_add_u32 v{X1B}, s{sT0}, v{LL16}')
            a(f's_lshl_b32 s{sT2}, s{sHI}, 15\nv_add_u32 v{HFB}, s{sT2}, v{X1B}')
            a(f's_and_b32 s{sT3}, s{sJ}, 1\ns_lshl_b32 s{sT4}, s{sT3}, 5')
            a(f's_lshl_b32 s{sT0}, s{sHI}, 5\ns_add_u32 s{sT0}, s{sT0}, s{sT4}\ns_lshl_b32 s{sT0}, s{sT0}, 2\ns_add_u32 s{sT0}, s{sT0}, {CS3L}')
            a(f'v_lshrrev_b32 v{QP+1}, 5, v0\nv_lshlrev_b32 v{QP+1}, 4, v{QP+1}\nv_add_u32 v{CSB}, s{sT0}, v{QP+1}')
            a(f's_cmp_eq_u32 s{sT3}, 0\ns_cselect_b32 s{sT5}, 192, 0')
            a(f's_lshl_b32 s{sT0}, s{sHI}, 4\ns_add_u32 s{sT0}, s{sT0}, s{sT5}\ns_lshl_b32 s{sT0}, s{sT0}, 2\ns_add_u32 s{sT0}, s{sT0}, {CS3L}')
            a(f'v_add_u32 v{CSB2}, s{sT0}, v{QP+1}')
            a(f's_lshl_b32 s{sT0}, s{sHI}, 5\nv_xor_b32 v{HP[0]}, s{sT0}, v{PAT3[0]}\nv_xor_b32 v{HP[1]}, s{sT0}, v{PAT3[1]}')
            a(f'v_and_b32 v{STA}, 31, v0\nv_lshlrev_b32 v{STA}, 4, v{STA}\ns_lshl_b32 s{sT0}, s{sTH}, 9\ns_add_u32 s{sT0}, s{sT0}, {X1P}\nv_add_u32 v{STA}, s{sT0}, v{STA}')
            a(f's_mul_i32 s{sT0}, s{sJ}, 14\ns_lshr_b32 s{sT4}, s{sT4}, 4\ns_lshl_b32 s{sT2}, s{sHI}, 1\ns_add_u32 s{sB}, s{sT0}, s{sT4}\ns_add_u32 s{sB}, s{sB}, s{sT2}')
            a(f's_lshl_b32 s{sB}, s{sB}, 11\ns_add_u32 s{sB}, s{sB}, s{sD}')
            a(f's_lshr_b32 s{sT5}, s{sT5}, 4\ns_add_u32 s{sC}, s{sT0}, s{sT5}\ns_add_u32 s{sC}, s{sC}, s{sHI}\ns_lshl_b32 s{sC}, s{sC}, 11\ns_add_u32 s{sC}, s{sC}, s{sD}')
            a.wait_lg0()
            self.barC(a, 'XA')

        HB = [44, 116, 52]
        def steps_p3(first, nstage, acc, pats, base, kind, phase):
            st = []
            for n in range(4 * nstage):
                stg = first + n // 4
                sb = A3[(n + phase) % 3]
                reads = []; mf = []
                for u in range(2):
                    i = 2 * n + u; s_ = i % 8
                    reads += [f'ds_read_b64_tr_b16 {vr(sb+4*u+2*rd,2)}, v{WK[rd]} offset:{s_*2048}' for rd in range(2)]
                    if kind == 'p0':
                        reads.append(f'ds_read_b128 {vr(BST+4*i,4)}, v{X1B} offset:{i*2048}'); b = BST + 4 * i
                    elif kind == 'hf' and opt.get('hfv', 1):
                        b = BST + 4 * i
                    elif kind == 'hf':
                        b = HB[(n % 3)] + 4 * u
                        reads.append(f'ds_read_b128 {vr(b,4)}, v{HFB} offset:{i*2048}')
                    else:
                        b = BST + 4 * i
                    mf.append(f'v_mfma_f32_32x32x16_bf16 {vr(acc,16)}, {vr(sb+4*u,4)}, {vr(b,4)}, {vr(acc,16) if i else 0}')
                s = dict(reads=reads, mfmas=mf, at=base + n - 2)
                if n % 4 == 0: s['pre'] = stage_pre(stg, WK[:2], pats)
                st.append(s)
            return st
        gtok = {}
        def cs_reads(csreg, csoff, ng):
            def one(g):
                gtok['cs'] = a(f'ds_read_b128 {vr(CSG+4*g,4)}, v{csreg} offset:{csoff+g*32}')
            return [lambda g=g: one(g) for g in range(ng)]
        pend_st = []
        def g_epi(acc, ng, sbase, after_first=None, cs_=None, out=None, key=None, adv=False):
            a.wait_lg(gtok['cs'])
            o = (lambda u: acc + 8*(u >> 2) + (u & 3)) if out is None else (lambda u: out + u)
            pairs = [(acc + 2*u, CSG + 2*u, GST, o(u)) for u in range(2 * ng)]
            self.gelu(a, pairs, GT, after_first)
            if cs_: cst(cs_)
            def st(b):
                gtok[key] = a(f'buffer_store_dwordx4 {vr(o(4*b),4)}, v{CELLT}, {srd(sWS)}, s{sbase} offen offset:{b*2048} sc1')
                if adv and b == ng // 2 - 1: a(f's_add_u32 s{sbase}, s{sbase}, 8192')
            for b in range(ng // 2):
                if opt.get('dst', 1): pend_st.append(lambda b=b: st(b))
                else: st(b)
        def add_stores(step0, step1):
            def pop():
                if pend_st: pend_st.pop(0)()
            step0['tail'] = [pop, pop]; step1['tail'] = [pop, None]
        def hf_send():
            t = GT
            a(f's_lshl_b32 s{sT0}, s{sW}, 11\ns_add_u32 s{sT0}, s{sT0}, {SC}\nv_add_u32 v{t}, s{sT0}, v{LL16}')
            a(f'ds_write_b128 v{t}, {vr(ACB+8,4)}')
            gtok['hfw'] = a(f'ds_write_b128 v{t}, {vr(ACB+12,4)} offset:1024')
            a(f'v_xor_b32 v{HFB}, 4096, v{t}')

        p0 = steps_p3(20, 4, ACA, PAT3, nq, 'p0', 0)
        p0[0]['at'] = nq; p0[1]['at'] = nq; p0[0]['hook'] = q_epilogue
        p0[15]['post'] = [lambda: a(f'ds_read_b128 {vr(GST,4)}, v{STA}')] + cs_reads(CSB, 0, 4)
        steps += p0; n0 = len(steps)
        hf = steps_p3(24, 2, ACB, HP, n0, 'hf', 16)
        for k in range(2):
            hf[k]['late'] = [t for t in hf[k]['reads'] if 'b128' in t]
            hf[k]['reads'] = [t for t in hf[k]['reads'] if 'b128' not in t]
        def hf_hook():
            g_epi(ACA, 4, sB, key='g0', adv=True)
            for k in range(2):
                for t in hf[k]['late']: hf[k]['tok'] = a(t)
        mark = {}
        if opt.get('hfv', 1):
            o24 = hf[0]['pre']
            hf[0]['pre'] = lambda: (a.wait_lg(p0[15]['tok']), o24())
            def hf_hook(f=hf_hook):
                f(); mark['i'] = len(a.ins)
        def hf_dup():
            body = a.ins[mark['i']:]
            del a.ins[mark['i']:]
            def sub(t):
                m = re.match(r'(v_mfma_f32_32x32x16_bf16 v\[100:115\], v\[\d+:\d+\], )v\[(\d+):(\d+)\](.*)', t)
                return f'{m.group(1)}v[{int(m.group(2))+64}:{int(m.group(3))+64}]{m.group(4)}' if m else t
            a.ins += [Ins(f's_cmp_lg_u32 s{sHI}, 0'), Ins('s_cbranch_scc1 L_hf1')] + body + [Ins('s_branch L_hf2'), Ins('L_hf1:')]
            a.ins += [Ins(sub(i.text)) for i in body] + [Ins('L_hf2:')]
        hf[0]['hook'] = hf_hook
        add_stores(hf[0], hf[1])
        steps += hf; n1 = len(steps)
        p1 = steps_p3(26, 4, ACA, PAT3, n1, 'p', 24)
        p1[0]['hook'] = (lambda: (hf_dup(), hf_send())) if opt.get('hfv', 1) else hf_send
        old = p1[4]['pre']
        p1[4]['pre'] = lambda: (a.wait_lg(gtok['hfw']), old())
        def hf_recv():
            a(f'ds_read_b128 {vr(ACB+8,4)}, v{HFB}')
            gtok['hfr'] = a(f'ds_read_b128 {vr(ACB+12,4)}, v{HFB} offset:1024')
        def hf_add(k):
            a.wait_lg(gtok['hfr'])
            for u in range(4*k, 4*k+4): a(f'v_add_f32_e64 v{ACB+u}, v{ACB+u}, v{ACB+8+u}')
        p1[8]['post'] = [hf_recv]
        p1[11]['post'] = [lambda: hf_add(0)]
        p1[12]['post'] = [lambda: hf_add(1)]
        p1[15]['post'] = cs_reads(CSB, 256, 4)
        steps += p1; n2 = len(steps)
        p2_ = steps_p3(30, 4, ACA, PAT3, n2, 'p', 40)
        def p1_epilogue():
            cst(8)
            g_epi(ACA, 4, sB, lambda: [f() for f in cs_reads(CSB2, 0, 2)], 9, out=120, key='g1', adv=True)
            cst(10)
            g_epi(ACB, 2, sC, None, 11, key='g1')
            cst(12)
        p2_[0]['hook'] = p1_epilogue
        add_stores(p2_[0], p2_[1])
        p2_[15]['post'] = cs_reads(CSB, 512, 4)
        p2_[1]['hook'] = lambda: cst(13)
        p2_[2]['hook'] = lambda: cst(14)
        p2_[3]['hook'] = lambda: cst(15)
        steps += p2_; n3 = len(steps)

        P4ACC = 84; FR = 128
        p4 = []
        fl = {}
        def fload(n):
            kind, sg = STAGES[min(34 + n // 4, 51)]; i = n % 4
            if n == 72:
                d = 8192 if kind == 'wo' else 32768
                a(f's_lshl_b32 s{sT0}, s{sHI}, 1\ns_sub_u32 s{sT0}, 1, s{sT0}\ns_mul_i32 s{sT0}, s{sT0}, {d}\ns_add_u32 s{sI0}, s{sI0}, s{sT0}\ns_sub_u32 s{sI0}, s{sI0}, 4096')
            elif i % 2 == 0:
                if i: a(f's_add_u32 s{sI0}, s{sI0}, 4096')
                elif kind == 'wo': a(f's_add_u32 s{sI0}, s{sT5}, s{sKC+sg}')
                elif kind == 'gh': a(f's_add_u32 s{sI0}, s{sRG}, {sg}\ns_and_b32 s{sI0}, s{sI0}, 1\ns_mul_i32 s{sI0}, s{sI0}, {896*128}\ns_add_u32 s{sI0}, s{sI0}, s{sT4}')
                else:
                    a(f's_add_u32 s{sI0}, s{sD}, s{sKG+sg}')
                    if kind != 'g0': a(f's_add_u32 s{sI0}, s{sI0}, {g_rows(kind, 0)[0]*128}')
            fl[n] = a(f'buffer_load_dwordx4 {vr(FR+4*(n%32),4)}, v{CELLT}, {srd(sWS)}, s{sI0} offen offset:{(i&1)*2048} sc1')
        firsts = {}
        for first in range(34, NST):
            kind, sg = STAGES[first]
            if sg: continue
            cnt = 2 if kind == 'gh' else 4; nat = kind == 'wo'
            k0 = 4 * (first - 34); firsts[k0] = {'g0': FG0, 'g1': FG1, 'gh': FG1, 'wo': FO, 'g2': FG2}[kind]
            p4 += steps_ks(first, cnt, PATN if nat else PATP, nat, P4ACC, lambda n, k0=k0: FR + 4 * ((n + k0) % 32), A3, n3 + k0,
                           setphase=56 + k0, init=(first == 34), c_init=RES if first == 34 else None)
        NG = opt.get('ng', 10); NG0 = opt.get('ng0', 8)
        def p4_bases():
            a(f's_lshl_b32 s{sT0}, s{sHI}, 13\ns_add_u32 s{sT5}, s{sT0}, s{sA}\ns_add_u32 s{sT5}, s{sT5}, {O_OFF}')
            a(f's_mul_i32 s{sT4}, s{sHI}, {448*128}\ns_add_u32 s{sT4}, s{sT4}, s{sD}\ns_add_u32 s{sT4}, s{sT4}, {192*128}\ns_lshl_b32 s{sT0}, s{sHI}, 15\ns_add_u32 s{sD}, s{sD}, s{sT0}')
            for k in range(4): a(f's_add_u32 s{sT0}, s{sRG}, {k}\ns_and_b32 s{sT0}, s{sT0}, 3\ns_mul_i32 s{sKG+k}, s{sT0}, {448*128}\ns_lshl_b32 s{sKC+k}, s{sT0}, 14')
        EG = opt.get('eg', 0)
        if EG:
            k1 = opt.get('eg_step', 3)
            p2_[k1 - 1]['post'] = [p4_bases]
            for n in range(EG):
                st_ = p2_[min(k1 + n // opt.get('eg_rate', 2), 15)]
                assert n < 2 * min(k1 + n // opt.get('eg_rate', 2), 15)
                st_['post'] = st_.get('post', []) + [lambda n=n: fload(n)]
            NG0 = max(NG0, EG)
        def p3_last_epilogue():
            if not EG: p4_bases()
            a.inject([lambda n=n: fload(n) for n in range(EG, NG0)], opt.get('fl_every', 12))
            g_epi(ACA, 4, sB, out=116, key='g2')
            a.flush_inject()
            cst(6)
        p4[0]['hook'] = p3_last_epilogue
        add_stores(p4[0], p4[1])
        nxt = NG0
        self.need = {firsts[k]: 34 for k in firsts if 0 < k < NG0}
        for n, s in enumerate(p4):
            s['vm'] = (lambda n=n: fl[n + 4 if (n >= 68 and opt.get('us4', 1)) else n])
            post = []
            while nxt < (76 if opt.get('us4', 1) else 72) and nxt < n + 1 + NG + (4 if nxt >= 72 else 0) and len(post) < 2:
                if nxt in firsts: self.need.setdefault(firsts[nxt], 34 + (n + 2) // 4)
                post.append(lambda m=nxt: fload(m)); nxt += 1
            s['post'] = post
        def add_wait(step, key):
            o = step['pre']
            step['pre'] = lambda: (a.wait_vm(gtok[key]), o())
        add_wait(p1[4 * (opt.get('fg0_bar', 27) - 26)], 'g0'); add_wait(p2_[12] if opt.get('fg1_bar', 34) == 33 else p4[4 * (opt.get('fg1_bar', 34) - 34)], 'g1'); add_wait(p4[4 * (opt.get('fg2_bar', 37) - 34)], 'g2')
        x4 = {}
        if opt.get('us4', 1):
            kind51 = STAGES[51][0]
            unsplit_last(p4, P4ACC, 40, 'RB2', 51, kind51 == 'wo', A3, 56, lambda i: FR + 4 * ((68 + i) % 32), lambda i: FR + 4 * ((72 + i) % 32), x4)
        self.x4 = x4
        steps += p4

        if opt.get('cprio', 2): a(f's_setprio {opt.get("cprio", 2)}')
        self.run_steps(a, steps)
        RCV = 128; OUT = 144; VO = 160
        def between():
            a(f's_lshl_b32 s{sT0}, s{sTH}, 5\nv_and_b32 v{VO}, 31, v0\nv_add_u32 v{VO}, s{sT0}, v{VO}\nv_lshlrev_b32 v{VO}, 10, v{VO}')
            a(f'v_lshrrev_b32 v{VO+1}, 5, v0\nv_lshl_add_u32 v{VO}, v{VO+1}, 4, v{VO}')
            a(f's_lshl_b32 s{sT0}, s{sJ}, 1\ns_add_u32 s{sT0}, s{sT0}, s{sHI}\ns_lshl_b32 s{sT0}, s{sT0}, 6\ns_add_u32 s{sT0}, s{sT0}, s{sA}')
        if opt.get('us4', 1):
            RCV = 40; between(); tk = self.x4['tk']
        else: tk = exchange(P4ACC, RCV, 'RB2', between)
        for b in range(2):
            a.wait_lg(tk[2*b+1])
            for u in range(4*b, 4*b+4): a(f'v_pk_add_f32 {P(P4ACC+2*u)}, {P(P4ACC+2*u)}, {P(RCV+2*u)}')
            for u in range(4*b, 4*b+4): a(f'v_cvt_pk_bf16_f32 v{OUT+u}, v{P4ACC+2*u}, v{P4ACC+2*u+1}')
            a(f'v_permlane32_swap_b32 v{OUT+4*b}, v{OUT+4*b+2}\nv_permlane32_swap_b32 v{OUT+4*b+1}, v{OUT+4*b+3}')
            a(f'buffer_store_dwordx4 {vr(OUT+4*b,4)}, v{VO}, {srd(sOUT)}, s{sT0} offen offset:{b*32} {opt.get("outflag", "")}')
        if opt.get('padto'):
            a(f'L_pad:\ns_memrealtime s[{sTSP}:{sTSP+1}]\ns_waitcnt lgkmcnt(0)\ns_sub_u32 s{sT0}, s{sTSP}, s26\ns_cmp_lt_u32 s{sT0}, {opt["padto"]}\ns_cbranch_scc1 L_pad')
        if opt.get('prof'):
            a(f's_memrealtime s[{sTSP}:{sTSP+1}]\ns_memtime s[98:99]\ns_waitcnt lgkmcnt(0)\ns_sub_u32 s98, s98, s90')
            a(f's_lshl_b32 s{sT0}, s2, 3\ns_add_u32 s{sT0}, s{sT0}, s{sW}\ns_lshl_b32 s{sT0}, s{sT0}, 8\ns_add_u32 s{sT0}, s{sT0}, {TS_OFF}')
            a(f'v_mov_b32 v2, s26\nv_mov_b32 v3, s{sTSP}\nv_mov_b32 v4, s98\nv_mov_b32 v5, 0\nv_mov_b32 v6, 0\ns_mov_b64 exec, 1')
            a(f'buffer_store_dwordx4 v[2:5], v6, {srd(sWS)}, s{sT0} offen')
            for k in range(8 if opt.get('prof') != 3 else 0): a(f'v_mov_b32 v7, s{4+2*k}\nbuffer_store_dword v7, v6, {srd(sWS)}, s{sT0} offen offset:{16+4*k}')
        a('s_endpgm')

    def helper(self, a):
        opt = self.opt
        prof = opt.get('prof') if opt.get('prof') != 3 else None
        E = lambda name, d: opt.get(name, d)
        BARS = [f'B{i}' for i in range(16)] + ['RB1'] + [f'B{i}' for i in range(16, 20)] + ['QE', 'XA'] + [f'B{i}' for i in range(20, NST)]
        ODL = f'B{self.need[FO]}'
        IDX = {n: i for i, n in enumerate(BARS)}
        T = [40 + i for i in range(16)]
        V1K, VQ, VW3, VHF = 4, 8, 12, 16
        row, pos, sw = T[0], T[1], T[2]
        def mk(dst, RS, sbase):
            a(f'v_mul_u32_u24 v{T[5]}, {RS}, v{row}\nv_add_u32 v{T[5]}, s{sbase}, v{T[5]}')
            for i in range(4):
                a(f'v_add_u32 v{dst+i}, v{T[5]}, v{T[3+(i&1)]}')
                if i: a(f'v_add_u32 v{dst+i}, {i*(8*RS-1024)}, v{dst+i}')
        stok = {}
        two = E('two', 0)
        grp = [[0, 1] if two else [0, 1, 2, 3]]
        def issue(st, pace=True):
            kind, sg = STAGES[st]
            pc = E('pace', 44) // (2 if two else 1)
            if pace and len(a.vm) > pc: a.wait_vm(a.vm[-pc - 1])
            s, v = src_of(st)
            for g in grp[0]:
                a(f's_mov_b32 m0, {SLOT[st] + g*4096}')
                soff(st, g, g == grp[0][0])
                for i in range(4):
                    stok[st] = a(f'buffer_load_dwordx4 v{v+i}, {srd(s)}, s{sT2} offen offset:{i*1024} lds')
        def src_of(st):
            kind, sg = STAGES[st]
            return {'w1': (sW1, V1K), 'w2': (sW2, V1K), 'wo': (sWO, V1K), 'wq': (sQKV, VQ), 'kv': (sQKV, VQ), 'p0': (sW3, VW3),
                    'p1': (sW3, VW3), 'p2': (sW3, VW3), 'hf': (sW3, VHF + 4 * sg)}.get(kind, (sW4, V1K))
        def soff(st, g, first=None):
            kind, sg = STAGES[st]
            rot = E('rot', 1)
            RS = 3072 if kind in ('wq', 'kv') else (3584 if kind in ('p0', 'p1', 'p2', 'hf') else 1024)
            if first is None: first = g == 0
            if kind == 'gh':
                if first: a(f's_add_u32 s{sI0}, s{sRG}, {sg}\ns_and_b32 s{sI0}, s{sI0}, 1\ns_mul_i32 s{sI0}, s{sI0}, {896*1024}')
                a(f's_add_u32 s{sT2}, s{sI0}, {(g_rows(kind, 0)[g >> 1] + 32*(g & 1))*1024}')
            elif kind[0] == 'g': a(f's_add_u32 s{sT2}, s{sKG+sg}, {(g_rows(kind, 0)[g >> 1] + 32*(g & 1))*1024}')
            elif kind == 'wo':
                if first: a(f's_add_u32 s{sI0}, s{sRG}, {sg}\ns_and_b32 s{sI0}, s{sI0}, 3\ns_lshl_b32 s{sI0}, s{sI0}, 17')
                a(f's_add_u32 s{sT2}, s{sI0}, {g*32*RS}')
            elif kind == 'w1' or (rot and kind == 'w2'): a(f's_add_u32 s{sT2}, s{sK1+sg}, {g*32*RS}')
            elif kind == 'w2': a(f's_mov_b32 s{sT2}, {sg*131072 + g*32*RS}')
            elif kind == 'wq': a(f's_add_u32 s{sT2}, s{sK3+sg}, {g*32*RS}')
            elif kind == 'kv': a(f's_add_u32 s{sT2}, s{sK3+(sg>>1)}, {((sg&1)*64 + (g&1)*32)*RS + 1024*(1 + (g>>1))}')
            elif kind == 'hf': a(f's_mov_b32 s{sT2}, {g*32*RS}')
            else: a(f's_add_u32 s{sT2}, s{sK5+sg}, {g*32*RS + dict(p0=0, p1=128, p2=256)[kind]}')
        VAR = 61
        def arrive(idx):
            if prof == 2:
                a(f's_memtime s[0:1]\ns_waitcnt lgkmcnt(0)')
                a.lg = []
                if isinstance(idx, int): a(f'v_writelane_b32 v{VAR}, s0, {idx + 1}')
                else: a(f's_add_u32 s1, s{idx}, 1\ns_mov_b32 m0, s1\nv_writelane_b32 v{VAR}, s0, m0')
        def dump_arrive(slot):
            if prof:
                a(f's_lshl_b32 s{sT0}, s2, 2\ns_add_u32 s{sT0}, s{sT0}, s{sW}\ns_lshl_b32 s{sT0}, s{sT0}, 8\ns_add_u32 s{sT0}, s{sT0}, {TS_OFF + 0x80000}')
                a(f'v_lshlrev_b32 v2, 2, v0\nbuffer_store_dword v{VAR}, v2, {srd(sWS)}, s{sT0} offen')
        if prof: a(f'v_mov_b32 v{VAR}, 0')
        a(f's_cmp_eq_u32 s{sW}, 1\ns_cbranch_scc1 L_back\ns_cmp_eq_u32 s{sW}, 2\ns_cbranch_scc1 L_back')
        if not two: a(f's_cmp_eq_u32 s{sW}, 0\ns_cbranch_scc1 L_sync')
        a(f'v_lshrrev_b32 v{row}, 3, v0\nv_and_b32 v{pos}, 7, v0\nv_lshrrev_b32 v{sw}, 4, v0\nv_and_b32 v{sw}, 1, v{sw}\nv_lshlrev_b32 v{sw}, 2, v{sw}')
        a(f'v_xor_b32 v{pos}, v{pos}, v{sw}')
        a(f'v_lshlrev_b32 v{T[3]}, 4, v{pos}\nv_xor_b32 v{T[4]}, 32, v{T[3]}')
        a(f's_lshl_b32 s{sT0}, s{sJ}, 7')
        mk(V1K, 1024, sT0)
        a(f's_mov_b32 s{sW1+2}, {512*1024}\ns_mov_b32 s{sW1+3}, 0x20000')
        for sg in range(4):
            a(f's_add_u32 s{sT3}, s{sROT}, {sg}\ns_and_b32 s{sT3}, s{sT3}, 3\ns_lshl_b32 s{sK1+sg}, s{sT3}, 17\ns_mul_i32 s{sK3+sg}, s{sT3}, {128*3072}')
        a('s_waitcnt lgkmcnt(0)')
        a(f's_mov_b32 s{sW1}, s12\ns_and_b32 s{sW1+1}, s13, 0xffff')
        if two: a(f's_cmp_eq_u32 s{sW}, 0\ns_cbranch_scc1 L_sync0')
        def first_issue():
            issue(0); issue(1)
            if E('st', 0): issue(2, False)
        first_issue()
        a('s_branch L_loader')
        vmL = list(a.vm); stokL = dict(stok); a.vm = []
        if two:
            a('L_sync0:')
            grp[0] = [2, 3]; first_issue()
            a('s_branch L_sync')
        vmS = list(a.vm); stokS = dict(stok); a.vm = []
        VX1 = [24, 25]; x1tok = {}
        def loader_setup():
            self.srds(a, skipx=True, skip1=True)
            mk(VQ, 3072, sT0)
            a(f's_mul_i32 s{sT0}, s{sJ}, 448\ns_and_b32 s{sT4}, s{sJ}, 1\ns_lshl_b32 s{sT2}, s{sT4}, 6\ns_add_u32 s{sT2}, s{sT2}, s{sT0}')
            mk(VW3, 3584, sT2)
            a(f's_cmp_eq_u32 s{sT4}, 0\ns_cselect_b32 s{sT2}, 384, 0\ns_add_u32 s{sT2}, s{sT2}, s{sT0}')
            a(f'v_and_b32 v{T[3]}, 63, v{T[3]}\nv_and_b32 v{T[4]}, 63, v{T[4]}\nv_lshrrev_b32 v{T[6]}, 2, v{pos}')
            mk(VHF, 3584, sT2)
            for sg in range(4):
                if E('rot', 1): a(f's_add_u32 s{sT3}, s{sROT}, {sg}\ns_and_b32 s{sT3}, s{sT3}, 3')
                else: a(f's_mov_b32 s{sT3}, {sg}')
                a(f's_mul_i32 s{sK5+sg}, s{sT3}, {128*3584}\ns_lshl_b32 s{sKX+sg}, s{sT3}, 14')
            for k in range(4): a(f's_add_u32 s{sT3}, s{sRG}, {k}\ns_and_b32 s{sT3}, s{sT3}, 3\ns_mul_i32 s{sKG+k}, s{sT3}, {448*1024}')
            for sg in (1, 0):
                a(f's_sub_u32 s{sT3}, s{sK5+sg+2}, s{sK5+sg}\nv_mul_lo_u32 v{T[5]}, v{T[6]}, s{sT3}\nv_add_u32 v{T[5]}, s{sK5+sg}, v{T[5]}')
                for i in range(4): a(f'v_add_u32 v{VHF+4*sg+i}, v{VHF+i}, v{T[5]}')
            a(f'v_lshrrev_b32 v{T[0]}, 5, v0\nv_and_b32 v{T[1]}, 31, v0\nv_lshlrev_b32 v{T[0]}, 10, v{T[0]}\nv_lshl_add_u32 v{T[0]}, v{T[1]}, 4, v{T[0]}')
            a(f's_lshl_b32 s{sT0}, s{sR}, 16\ns_add_u32 s{sT0}, s{sT0}, {X1_OFF}')
            a(f'v_add_u32 v{VX1[0]}, s{sT0}, v{T[0]}\nv_subrev_u32 v{VX1[1]}, 512, v{VX1[0]}')
        def x1_chunk(sg):
            for g in grp[0]:
                a(f's_mov_b32 m0, {sg*16384 + g*4096}\ns_add_u32 s{sT2}, s{sKX+sg}, {g*4096}')
                for u in range(4):
                    x1tok[sg] = a(f'buffer_load_dwordx4 v{VX1[u&1]}, {srd(sWS)}, s{sT2} offen offset:{u*1024} sc1 lds')
        def load_before(n):
            b = int(n[1:]) if n[0] == 'B' else None
            if b is not None:
                a.wait_vm(stok[b])
                if b in (20, 21, 22, 23): a.wait_vm(x1tok[b - 20])
        def load_after(n):
            b = int(n[1:]) if n[0] == 'B' else None
            if n == 'XA':
                for c in range(4): x1_chunk(c)
            if E('st', 0):
                if b == 0: issue(3, False)
                if b == 1: issue(4)
            else:
                if b == 0: issue(2); issue(3)
                if b == 1: issue(4)
            if b in (2, 3): stats_after(b)
            for st in ISSUE.get(b if b is not None else n, []): issue(st)
            if b in (0, 1): stats_after(b)
        a('L_back:')
        sSW = sHI
        a(f'v_lshrrev_b32 v2, 4, v0\nv_and_b32 v3, 15, v0\nv_xor_b32 v3, v3, v2\nv_lshlrev_b32 v3, 4, v3')
        a(f's_lshl_b32 s{sT0}, s{sR}, 1\ns_add_u32 s{sT0}, s{sT0}, s{sSW}\ns_lshl_b32 s{sT0}, s{sT0}, 15')
        a(f'v_lshl_add_u32 v2, v2, 10, s{sT0}\nv_add_u32 v2, v2, v3')
        for u in range(1, 4): a(f'v_xor_b32 v{2+u}, {u<<6}, v2\nv_add_u32 v{2+u}, {u*3072}, v{2+u}')
        a(f's_lshl_b32 s{sI0}, s{sSW}, 13\ns_mov_b32 s{sB}, s{sROT}')
        a('s_waitcnt lgkmcnt(0)')
        a(f's_mov_b32 s{sX}, s4\ns_and_b32 s{sX+1}, s5, 0xffff')
        xtok = {}
        def x_chunk(sg):
            for half in range(2):
                a(f's_add_u32 m0, s{sI0}, {sg*16384 + half*4096}\ns_lshl_b32 s{sT2}, s{sB}, 8')
                if half: a(f's_add_u32 s{sT2}, s{sT2}, 16384')
                for u in range(4):
                    xtok[sg] = a(f'buffer_load_dwordx4 v{2+u}, {srd(sX)}, s{sT2} offen offset:{u*1024} lds')
            if sg < 3: a(f's_add_u32 s{sB}, s{sB}, 1\ns_and_b32 s{sB}, s{sB}, 3')
        x_chunk(0)
        if E('xdel', 1): self.srds(a, skipx=True)
        x_chunk(1)
        if not E('xdel', 1): self.srds(a, skipx=True)
        if E('st', 0): x_chunk(2)

        F = 64; SSUM, SGR, HONE = 80, 84, 88
        q, i16 = T[8], T[9]
        SW1, SW2 = 92, 93
        def stats_setup():
            a(f'v_lshrrev_b32 v{q}, 4, v0\nv_and_b32 v{i16}, 15, v0\ns_lshl_b32 s{sT0}, s{sW}, 12')
            for m in range(4):
                a(f'v_or_b32 v{T[0]}, {4*m}, v{q}\nv_xor_b32 v{T[0]}, v{T[0]}, v{i16}\nv_lshlrev_b32 v{T[0]}, 4, v{T[0]}')
                a(f'v_lshl_add_u32 v{T[0]}, v{i16}, 8, v{T[0]}\nv_add_u32 v{T[10+m]}, s{sT0}, v{T[0]}')
            for i in range(4): a(f'v_mov_b32 v{HONE+i}, s{sONE}')
            a(f'v_and_b32 v{T[0]}, 3, v0\nv_lshrrev_b32 v{T[2]}, 2, v{i16}')
            a(f'v_cmp_eq_u32 s[14:15], 1, v{T[0]}\nv_cmp_eq_u32 s[16:17], 2, v{T[0]}\nv_cmp_eq_u32 s[12:13], 3, v{T[0]}\nv_cmp_eq_u32 s[10:11], v{T[2]}, v{q}')
            a(f's_lshl_b32 s{sT0}, s{sW}, 4\nv_add_u32 v{SW1}, s{sT0}, v{i16}\nv_lshlrev_b32 v{SW2}, 4, v{SW1}\nv_lshlrev_b32 v{SW1}, 2, v{SW1}')
            a(f'v_add_u32 v{SW2}, {S1}, v{SW2}\nv_add_u32 v{SW1}, {NMU}, v{SW1}')
        stk = {}
        def stats_reads(sgs):
            for sg in sgs:
                for m in range(4): stk[(sg, m)] = a(f'ds_read_b128 {vr((F if (sg & 1) == 0 else 96) + 4*m, 4)}, v{T[10+m]} offset:{sg*16384}')
        def stats_mfma(sgs):
            a('s_setprio 3')
            for sg in sgs:
                for m in range(4):
                    a.wait_lg(stk[(sg, m)])
                    z = sg == 0 and m == 0
                    f = (F if (sg & 1) == 0 else 96) + 4 * m
                    a(f'v_mfma_f32_16x16x32_bf16 {vr(SGR,4)}, {vr(f,4)}, {vr(f,4)}, {0 if z else vr(SGR,4)}')
                    a(f'v_mfma_f32_16x16x32_bf16 {vr(SSUM,4)}, {vr(HONE,4)}, {vr(f,4)}, {0 if z else vr(SSUM,4)}')
            a('s_setprio 0')
        def stats_chunks(sgs):
            stats_reads(sgs); stats_mfma(sgs)
        def stats_final():
            s1, s2 = 36, 37
            a('s_setprio 3')
            R = 64
            a(f'v_cndmask_b32 v{s2}, v{SGR}, v{SGR+1}, s[14:15]\nv_mul_f32 v{R}, {f2u(-1/512):#x}, v{SSUM}\nv_cndmask_b32 v{s2}, v{s2}, v{SGR+2}, s[16:17]')
            a(f'v_mov_b32 v{R+7}, 0\nv_cndmask_b32 v{s2}, v{s2}, v{SGR+3}, s[12:13]\nv_mul_f32 v{s1}, v{R}, v{R}\nv_mov_b32 v{R+4}, v{R}')
            a(f's_mov_b32 s{sT0}, {f2u(1/512):#x}\nv_fma_f32 v{s2}, v{s2}, s{sT0}, -v{s1}\nv_max_f32 v{s2}, 0, v{s2}\nv_add_f32 v{s1}, {f2u(1e-5):#x}, v{s2}')
            a(f'v_rsq_f32 v{R+5}, v{s1}\nv_rcp_f32 v{s1}, v{s1}\ns_mov_b32 s{sT0}, {f2u(1e-5):#x}')
            a(f'v_mul_f32 v{R+6}, {f2u(LOG2E):#x}, v{R+5}\nv_fma_f32 v{s1}, v{s1}, v{s2}, s{sT0}')
            a(f'v_rsq_f32 v{s1}, v{s1}\nv_mul_f32 v{s1}, v{s1}, v{R+5}')
            a(f'v_rcp_f32 v{R+3}, v{s1}\nv_mul_f32 v{s2}, v{s1}, v{s1}\nv_mul_f32 v{R+1}, {f2u(GC0):#x}, v{s1}\nv_mul_f32 v{s2}, {f2u(0.044715):#x}, v{s2}\nv_mul_f32 v{R+2}, v{R+1}, v{s2}')
            a('s_mov_b64 exec, s[10:11]')
            a(f'ds_write_b128 v{SW2}, {vr(R,4)}\nds_write_b128 v{SW2}, {vr(R+4,4)} offset:1024')
            a(f'ds_write_b32 v{SW1}, v{R}\nds_write_b32 v{SW1}, v{R+5} offset:256\nds_write_b32 v{SW1}, v{R+6} offset:512')
            a('s_mov_b64 exec, -1\ns_setprio 0')
            a.wait_lg0()
        def stats_after(b):
            if b in (0, 1): stats_chunks([b])
            if E('st', 0) == 1:
                if b == 2: stats_chunks([2])
                if b == 3: stats_chunks([3]); stats_final()
            elif E('stsp', 1):
                if b == 2: stats_reads([2, 3]); stats_mfma([2])
                if b == 3: stats_mfma([3]); stats_final()
            else:
                if b == 2: stats_chunks([2, 3])
                if b == 3: stats_final()

        VFL, VFP, VF3, VONE, VCT, CELLV, VZA, VCK, VFO = 26, 27, 28, 29, 30, 32, 34, 35, 33
        OB = T[14]
        pf = opt.get('pf', 1); t3 = opt.get('t3', 0)
        nlab = [0]
        def lab(p):
            nlab[0] += 1
            return f'L_{p}{nlab[0]}'
        def common_regs():
            a(f'v_mov_b32 v{OB}, {OOB}\nv_lshlrev_b32 v{T[15]}, 7, v0\nv_mov_b32 v{VONE}, 1')
            a(f'v_lshrrev_b32 v{T[0]}, 5, v0\nv_and_b32 v{T[1]}, 31, v0\nv_lshlrev_b32 v{CELLV}, 10, v{T[0]}\nv_lshl_add_u32 v{CELLV}, v{T[1]}, 4, v{CELLV}')
            a(f's_lshl_b32 s{sC}, s{sR}, 16\ns_lshl_b32 s{sD}, s{sJ}, 18\ns_add_u32 s{sD}, s{sD}, {KV_OFF}\ns_lshl_b32 s{sA}, s{sJ}, 12\ns_add_u32 s{sA}, s{sA}, {CF_OFF}')
        def one_lane(text):
            a('s_mov_b64 exec, 1'); a(text); a('s_mov_b64 exec, -1')
        def count(off, idx):
            a(f's_lshr_b32 s{sT0}, s{idx}, 3\ns_lshl_b32 s{sT0}, s{sT0}, 7\ns_and_b32 s{sT2}, s{idx}, 7\ns_lshl_b32 s{sT2}, s{sT2}, 2\ns_add_u32 s{sT0}, s{sT0}, s{sT2}')
            a(f's_add_u32 s{sT0}, s{sT0}, s{sA}\ns_add_u32 s{sT0}, s{sT0}, {off}\nv_mov_b32 v{T[7]}, 0')
            one_lane(f'buffer_store_dword v{VONE}, v{T[7]}, {srd(sWS)}, s{sT0} offen sc1')

        sBC = sCNT; sSP = sBG
        common_regs()
        def touch(s, lines, dst, pitch=None, off=0):
            n = lines // 2
            a(f's_lshl_b32 s{sT0}, s2, 1\ns_add_u32 s{sT0}, s{sT0}, s{sSW}\ns_mul_i32 s{sT0}, s{sT0}, {pitch or n*128}')
            if off: a(f's_add_u32 s{sT0}, s{sT0}, {off}')
            a(f'v_cmp_gt_u32 vcc, {n}, v0\nv_cndmask_b32 v{T[7]}, v{OB}, v{T[15]}, vcc')
            return a(f'buffer_load_dword v{dst}, v{T[7]}, {srd(s)}, s{sT0} offen')
        CSR = 128; CA = 160
        def cs_loads(y=None):
            a(f's_lshr_b32 s{sT0}, s{sR}, 1\ns_mul_i32 s{sT0}, s{sT0}, {32*3584}\ns_mul_i32 s{sT2}, s{sJ}, 448\ns_add_u32 s{sT0}, s{sT0}, s{sT2}')
            a(f's_and_b32 s{sT2}, s{sR}, 1\ns_lshl_b32 s{sT2}, s{sT2}, 1\ns_add_u32 s{sT2}, s{sT2}, s{sSW}\ns_mul_i32 s{sT2}, s{sT2}, 112\ns_add_u32 s{sT0}, s{sT0}, s{sT2}')
            a(f'v_lshrrev_b32 v{T[6]}, 5, v0\nv_mul_u32_u24 v{T[6]}, {16*3584}, v{T[6]}\nv_and_b32 v{T[5]}, 31, v0\nv_lshl_add_u32 v{T[6]}, v{T[5]}, 2, v{T[6]}')
            a(f'v_cmp_gt_u32 vcc, 28, v{T[5]}\nv_cndmask_b32 v{T[6]}, v{OB}, v{T[6]}, vcc')
            for i in range(16):
                a(f'buffer_load_dword v{CSR+i}, v{T[6]}, {srd(sW3)}, s{sT0} offen')
                if i < 15: a(f's_add_u32 s{sT0}, s{sT0}, 3584')
                if y and i in (5, 10): y()
        if pf: touch(sQKV, 32, 6, 3072, 1024)
        if E('cs0', 0): cs_loads()
        stats_setup()
        barsD = []
        for b in range(5):
            if b == 0: a.wait_vm(xtok[0])
            if b == 1: a.wait_vm(xtok[1])
            if b == 2: a.wait_vm(xtok[2 if E('st', 0) == 1 else 3])
            if b == 3: a.wait_vm(xtok[3])
            arrive(b); barsD.append(f'B{b}'); a('s_barrier')
            if b == 0:
                if not E('st', 0): x_chunk(2)
                x_chunk(3)
            stats_after(b)
            if b == E('e_pf', 2):
                if pf: touch(sW2, 16, 7); touch(sQKV, 16, 7, 3072)
                if pf and E('w3pf', 0) == 2: touch(sW3, 56, 7)
        a(f's_mov_b32 s{sBC}, 5')
        LONG = sum(1 << (IDX[n] + 1) for n in E('long', 'B4.B12.QE.XA.B24.B30.B34').split('.'))
        a(f's_mov_b32 s4, {LONG & 0xffffffff}\ns_mov_b32 s5, {LONG >> 32}')
        VDS = 39; nds = [0]
        if prof: a(f'v_mov_b32 v{VDS}, 0')
        def dst(name):
            if prof:
                a(f's_memrealtime s[0:1]\ns_waitcnt lgkmcnt(0)\nv_writelane_b32 v{VDS}, s0, {nds[0]}')
                self.dnames.append(name); nds[0] += 1
        def yield_(dl):
            L = lab('y')
            a(f's_cmp_ge_u32 s{sBC}, {IDX[dl]}\ns_cbranch_scc1 {L}')
            arrive(str(sBC))
            a(f's_barrier\ns_add_u32 s{sBC}, s{sBC}, 1\n{L}:')
        def earliest(name):
            L = lab('e')
            a(f'{L}:\ns_cmp_gt_u32 s{sBC}, {IDX[name]}\ns_cbranch_scc1 {L}d')
            arrive(str(sBC))
            a(f's_barrier\ns_add_u32 s{sBC}, s{sBC}, 1\ns_branch {L}\n{L}d:')
        def nbwait(dl, lg=False):
            L = lab('w')
            a(f'{L}:\ns_bitcmp1_b64 s[4:5], s{sBC}\ns_cselect_b32 s{sSP}, {E("nspin", 6)}, 1')
            a(f'{L}s:\ns_getreg_b32 s{sT0}, hwreg(HW_REG_IB_STS)\ns_and_b32 s{sT0}, s{sT0}, {0xf00 if lg else 0xc0000f}\ns_cbranch_scc0 {L}d')
            a(f's_sub_u32 s{sSP}, s{sSP}, 1\ns_cmp_lg_u32 s{sSP}, 0\ns_cbranch_scc1 {L}s')
            a(f's_cmp_ge_u32 s{sBC}, {IDX[dl]}\ns_cbranch_scc1 {L}d')
            if not lg: arrive(str(sBC))
            a(f's_barrier\ns_add_u32 s{sBC}, s{sBC}, 1\ns_branch {L}')
            a(f'{L}d:\ns_waitcnt {"lgkmcnt" if lg else "vmcnt"}(0)')
        def spin(off, n, dl):
            L = lab('c')
            a(f'v_and_b32 v{VCT}, {n-1}, v0\nv_lshrrev_b32 v{T[7]}, 3, v{VCT}\nv_and_b32 v{VCT}, 7, v{VCT}\nv_lshlrev_b32 v{VCT}, 2, v{VCT}\nv_lshl_add_u32 v{VCT}, v{T[7]}, 7, v{VCT}')
            a(f's_mov_b32 s6, {opt.get("spin", 200000)}\ns_add_u32 s9, s{sA}, {off}')
            a(f'{L}:\nbuffer_load_dword v{VCK}, v{VCT}, {srd(sWS)}, s9 offen sc1')
            nbwait(dl)
            a(f'v_cmp_ne_u32 vcc, 1, v{VCK}\ns_sub_u32 s6, s6, 1\ns_cmp_eq_u32 s6, 0\ns_cbranch_scc1 {L}d\ns_cbranch_vccnz {L}\n{L}d:')
        def sliced(fn, dl, n=None):
            lines = a.record(fn); n = n or E('bgn', 22)
            while lines:
                m = n
                while any(x.startswith('s_setprio 3') for x in lines[:m]) and not any(x.startswith('s_setprio 0') for x in lines[:m]): m += 1
                a('\n'.join(lines[:m])); lines = lines[m:]
                if lines: yield_(dl)
        def cs_sum():
            for i in range(16):
                r_ = CSR + i
                if i == 0:
                    a(f'v_lshlrev_b32 v{CA}, 16, v{r_}\nv_and_b32 v{CA+1}, 0xffff0000, v{r_}')
                else:
                    a(f'v_lshlrev_b32 v{CA+4}, 16, v{r_}\nv_and_b32 v{CA+5}, 0xffff0000, v{r_}')
                    a(f'v_add_f32 v{CA}, v{CA}, v{CA+4}\nv_add_f32 v{CA+1}, v{CA+1}, v{CA+5}')
        if not E('cs0', 0):
            earliest(E('e_cs', 'B6'))
            dst('csld0')
            cs_loads((lambda: yield_('XA')) if E('dsl', 0) else None)
        dst('csld1')
        nbwait('XA')
        dst('csld2')
        sliced(cs_sum, 'XA')
        a(f'v_permlane32_swap_b32 v{CA}, v{CA+1}\nv_add_f32 v{CA}, v{CA}, v{CA+1}')
        a(f'v_and_b32 v{T[5]}, 31, v0\nv_lshrrev_b32 v{T[6]}, 5, v0\nv_lshlrev_b32 v{T[6]}, 2, v{T[6]}\nv_lshl_add_u32 v{T[6]}, v{T[5]}, 3, v{T[6]}')
        a(f'v_cmp_gt_u32 vcc, 28, v{T[5]}\nv_cndmask_b32 v{T[6]}, v{OB}, v{T[6]}, vcc')
        a(f's_lshr_b32 s{sT0}, s{sR}, 1\ns_lshl_b32 s{sT0}, s{sT0}, 10\ns_and_b32 s{sT2}, s{sR}, 1\ns_lshl_b32 s{sT2}, s{sT2}, 1\ns_add_u32 s{sT2}, s{sT2}, s{sSW}\ns_mul_i32 s{sT2}, s{sT2}, 224')
        a(f's_add_u32 s{sT0}, s{sT0}, s{sT2}\ns_add_u32 s{sT0}, s{sT0}, s{sD}\ns_add_u32 s{sT0}, s{sT0}, {KV_CS}')
        a(f'buffer_store_dword v{CA}, v{T[6]}, {srd(sWS)}, s{sT0} offen sc1')
        dst('csst')
        nbwait('XA')
        dst('csack')
        earliest('B5')
        a(f's_lshl_b32 s9, s{sR}, 1\ns_add_u32 s9, s9, s{sSW}')
        count(CF_CS, 9)
        earliest(E('e_csc', 'B16'))
        PQR = 64; KVR = 192; ZR = 200
        AK, AZ, NUM, DEN, OUT = 96, 100, 104, 136, 168
        dst('cschk0')
        spin(CF_CS, 64, 'XA')
        dst('cschk1')
        a(f'v_lshlrev_b32 v{T[0]}, 4, v0\nv_cmp_gt_u32 vcc, 56, v0\nv_cndmask_b32 v{T[0]}, v{OB}, v{T[0]}, vcc')
        a(f's_lshl_b32 s{sT2}, s{sSW}, 13\ns_add_u32 s{sT2}, s{sT2}, s{sD}\ns_add_u32 s{sT2}, s{sT2}, {KV_CS}')
        for k in range(8):
            if k % 4 == 0: a(f's_add_u32 s{sT0}, s{sT2}, {k*1024}')
            a(f'buffer_load_dwordx4 {vr(CSR+4*k,4)}, v{T[0]}, {srd(sWS)}, s{sT0} offen offset:{(k&3)*1024} sc1')
            if k == 3 and E('dsl2', 0): yield_('XA')
        def cs_fin():
            for st in (16, 8, 4):
                for k in range(st): a(f'v_add_f32 v{CSR+k}, v{CSR+k}, v{CSR+st+k}')
        dst('csg0')
        nbwait('XA')
        dst('csg1')
        sliced(cs_fin, 'XA', 30)
        a(f'v_lshlrev_b32 v{T[0]}, 4, v0\nv_add_u32 v{T[0]}, {CS3L}, v{T[0]}')
        earliest('B16')
        Lc = lab('cs')
        a(f's_cmp_eq_u32 s{sSW}, 0\ns_cbranch_scc1 {Lc}a')
        a(f'ds_write_b128 v{T[0]}, {vr(CSR,4)} offset:1024\ns_waitcnt lgkmcnt(0)\n{Lc}a:')
        if pf and E('e_p4', 'B13') == 'D': touch(sWO, 16, 8); touch(sW4, 56, 9)
        a(f's_lshl_b32 s7, s{sJ}, 1\ns_add_u32 s7, s7, s{sSW}\ns_lshl_b32 s8, s7, 2\ns_lshl_b32 s7, s7, 12\ns_add_u32 s7, s7, s{sC}\ns_add_u32 s7, s7, {O_OFF}')
        a(f's_lshl_b32 s{sT0}, s{sR}, 7\ns_add_u32 s8, s8, s{sT0}\ns_add_u32 s8, s8, {FL_OFF + FO*4096}\nv_mov_b32 v{VFO}, s8')
        earliest('XA')
        a(f's_cmp_lg_u32 s{sSW}, 0\ns_cbranch_scc1 {Lc}b')
        a(f'ds_read_b128 {vr(CSR+4,4)}, v{T[0]} offset:1024\ns_waitcnt lgkmcnt(0)')
        for k in range(4): a(f'v_add_f32 v{CSR+k}, v{CSR+k}, v{CSR+4+k}')
        a(f'ds_write_b128 v{T[0]}, {vr(CSR,4)}\n{Lc}b:')
        a(f's_lshl_b32 s{sT0}, s{sSW}, 12\ns_add_u32 s{sT0}, s{sT0}, {PQ}\nv_lshl_add_u32 v{T[0]}, v0, 3, s{sT0}')
        for k in range(8): a(f'ds_read_b64 {vr(PQR+2*k,2)}, v{T[0]} offset:{k*512}')
        a('s_waitcnt lgkmcnt(0)')
        kv2 = E('kv2', 0)
        earliest(E('e_kvb', 'XA'))
        dst('kvchk0')
        spin(CF_A, 32, ODL)
        dst('kvchk1')
        if kv2:
            a(f's_lshl_b32 s20, s{sSW}, 5\ns_add_u32 s20, s20, s{sR}\ns_cmp_lt_u32 s20, 34\ns_cselect_b32 s21, 0, {OOB}\ns_lshl_b32 s22, s20, 7\ns_add_u32 s22, s22, s{sD}')
            a(f'v_lshrrev_b32 v{T[1]}, 3, v0\nv_mul_u32_u24 v{T[1]}, {KVP}, v{T[1]}\nv_and_b32 v{T[2]}, 7, v0\nv_lshlrev_b32 v{T[2]}, 4, v{T[2]}\nv_add3_u32 v{T[1]}, v{T[1]}, v{T[2]}, s21')
            for k in range(4):
                a(f's_add_u32 s{sT0}, s22, {k*8*KVP}\nbuffer_load_dwordx4 {vr(KVR+4*k,4)}, v{T[1]}, {srd(sWS)}, s{sT0} offen sc1')
            nbwait(ODL)
            dst('l2ld')
            for k in range(8): a(f'v_add_f32 v{KVR+k}, v{KVR+k}, v{KVR+8+k}')
            for k in range(4): a(f'v_add_f32 v{KVR+k}, v{KVR+k}, v{KVR+4+k}')
            for k in range(4): a(f'v_add_f32_dpp v{KVR+k}, v{KVR+k}, v{KVR+k} row_ror:8 row_mask:0xf bank_mask:0xf')
            for sw_ in ('v_permlane16_swap_b32', 'v_permlane32_swap_b32'):
                if sw_.startswith('v_permlane32'): yield_(ODL)
                for k in range(4): a(f'v_mov_b32 v{KVR+4+k}, v{KVR+k}')
                for k in range(4): a(f'{sw_} v{KVR+k}, v{KVR+4+k}')
                for k in range(4): a(f'v_add_f32 v{KVR+k}, v{KVR+k}, v{KVR+4+k}')
            a(f'v_cmp_gt_u32 vcc, 8, v0\nv_add_u32 v{T[2]}, s21, v{T[2]}\nv_cndmask_b32 v{T[2]}, v{OB}, v{T[2]}, vcc\ns_add_u32 s{sT0}, s22, {KV_FIN}')
            a(f'buffer_store_dwordx4 {vr(KVR,4)}, v{T[2]}, {srd(sWS)}, s{sT0} offen sc1')
            nbwait(ODL)
            count(CF_B, 20)
            dst('l2pub')
            earliest(E('e_kvc', 'B29'))
            spin(CF_B, 64, ODL)
            dst('l2chk')
            a(f'v_lshrrev_b32 v{T[1]}, 4, v0\nv_lshlrev_b32 v{T[1]}, 4, v{T[1]}\nv_and_b32 v{T[0]}, 3, v0\nv_lshl_add_u32 v{T[0]}, v{T[0]}, 8, v{T[1]}')
            a(f'v_bfe_u32 v{T[2]}, v0, 2, 2\nv_lshl_add_u32 v{T[0]}, v{T[2]}, 6, v{T[0]}')
        else:
            a(f'v_lshrrev_b32 v{T[1]}, 4, v0\nv_lshlrev_b32 v{T[1]}, 4, v{T[1]}\nv_and_b32 v{T[0]}, 15, v0\nv_lshl_add_u32 v{T[0]}, v{T[0]}, 6, v{T[1]}')
        fin = KV_FIN if kv2 else 0
        for rep in range(1 if kv2 else NREP):
            a(f's_lshl_b32 s{sT0}, s{sSW}, 11\ns_add_u32 s{sT2}, s{sT0}, s{sD}\ns_add_u32 s{sT2}, s{sT2}, {8192*rep + fin}')
            for hh in range(2): a(f'buffer_load_dwordx4 {vr(KVR+16*rep+4*hh,4)}, v{T[0]}, {srd(sWS)}, s{sT2} offen offset:{hh*1024} sc1')
            a(f's_lshl_b32 s{sT2}, s{sSW}, 7\ns_add_u32 s{sT2}, s{sT2}, s{sD}\ns_add_u32 s{sT2}, s{sT2}, {KV_Z + 8192*rep + fin}')
            for hh in range(2): a(f'buffer_load_dwordx4 {vr(ZR+16*rep+4*hh,4)}, v{T[1]}, {srd(sWS)}, s{sT2} offen offset:{hh*64} sc1')
        dst('kvg0')
        nbwait(ODL)
        dst('kvg1')
        def kv_sum():
            if not kv2:
                for k in range(32): a(f'v_add_f32 v{KVR+k}, v{KVR+k}, v{KVR+32+k}')
                for k in range(16): a(f'v_add_f32 v{KVR+k}, v{KVR+k}, v{KVR+16+k}')
            for hh in range(2):
                a(f'v_cvt_pk_bf16_f32 v{AK+2*hh}, v{KVR+4*hh}, v{KVR+4*hh+1}\nv_cvt_pk_bf16_f32 v{AK+2*hh+1}, v{KVR+4*hh+2}, v{KVR+4*hh+3}')
                a(f'v_cvt_pk_bf16_f32 v{AZ+2*hh}, v{ZR+4*hh}, v{ZR+4*hh+1}\nv_cvt_pk_bf16_f32 v{AZ+2*hh+1}, v{ZR+4*hh+2}, v{ZR+4*hh+3}')
        if E('dprio', 1): a(f's_setprio {E("dprio", 1)}')
        sliced(kv_sum, ODL, E('bgn2', 60))
        def o_compute():
            a('s_setprio 3')
            for k in range(8): a(f'v_mfma_f32_16x16x16_bf16 {vr(DEN+4*k,4)}, {vr(AZ+2*(k>>2),2)}, {vr(PQR+2*k,2)}, 0')
            for k in range(8): a(f'v_mfma_f32_16x16x16_bf16 {vr(NUM+4*k,4)}, {vr(AK+2*(k>>2),2)}, {vr(PQR+2*k,2)}, 0')
            a('s_setprio 0')
            if E('dprio', 1): a(f's_setprio {E("dprio", 1)}')
            for k in range(8): a(f'v_add_f32 v{DEN+4*k}, s{sEPS}, v{DEN+4*k}')
            for k in range(8): a(f'v_rcp_f32 v{DEN+4*k}, v{DEN+4*k}')
            for pr in range(4):
                for k in (2*pr, 2*pr+1):
                    for e in range(4): a(f'v_mul_f32 v{NUM+4*k+e}, v{NUM+4*k+e}, v{DEN+4*k}')
                for u in range(4*pr, 4*pr+4): a(f'v_cvt_pk_bf16_f32 v{OUT+u}, v{NUM+2*u}, v{NUM+2*u+1}')
                a(f'v_permlane16_swap_b32 v{OUT+4*pr}, v{OUT+4*pr+2}\nv_permlane16_swap_b32 v{OUT+4*pr+1}, v{OUT+4*pr+3}')
                a(f'buffer_store_dwordx4 {vr(OUT+4*pr,4)}, v{CELLV}, {srd(sWS)}, s7 offen offset:{(pr>>1)*2048+(pr&1)*512} sc1')
        dst('kvsum')
        sliced(o_compute, ODL, E('bgn3', 40))
        dst('ost')
        nbwait(ODL)
        dst('oack')
        one_lane(f'buffer_store_dword v{VONE}, v{VFO}, {srd(sWS)}, 0 offen sc1')
        if prof: a(f's_mov_b32 s10, s{sBC}'); earliest('B50')
        else: nbwait('B51')
        if prof:
            a(f's_lshl_b32 s{sT0}, s2, 3\ns_add_u32 s{sT0}, s{sT0}, s{sW}\ns_add_u32 s{sT0}, s{sT0}, 5\ns_lshl_b32 s{sT0}, s{sT0}, 8\ns_add_u32 s{sT0}, s{sT0}, {TS_OFF}')
            a(f'v_mov_b32 v2, s10\nv_mov_b32 v3, 0')
            a(f'v_lshlrev_b32 v3, 2, v0\nv_writelane_b32 v{VDS}, s10, 63\nbuffer_store_dword v{VDS}, v3, {srd(sWS)}, s{sT0} offen')
            dump_arrive(0)
        a('s_endpgm')

        a('L_sync:')
        a.vm = vmS; a.lg = []; stok.update(stokS); grp[0] = [2, 3]
        VTS, VTC = 31, 60
        if two: loader_setup()
        else:
            a('s_waitcnt lgkmcnt(0)')
            self.srds(a, skipx=True)
        if prof: a(f'v_mov_b32 v{VTS}, 0\nv_mov_b32 v{VTC}, 0\nv_writelane_b32 v{VTS}, s26, 63')
        nstamp = [0]
        def stamp(last=False):
            if prof:
                if nstamp[0]:
                    a(f's_waitcnt lgkmcnt(0)\nv_writelane_b32 v{VTS}, s{sTSP}, {nstamp[0]-1}\nv_writelane_b32 v{VTC}, s26, {nstamp[0]-1}')
                    a.lg = []
                if not last: a(f's_memrealtime s[{sTSP}:{sTSP+1}]\ns_memtime s[26:27]')
                nstamp[0] += 1
        def flag_setup():
            common_regs()
            a(f's_lshl_b32 s{sT0}, s{sR}, 7\ns_add_u32 s{sT0}, s{sT0}, {FL_OFF}\ns_lshl_b32 s{sT2}, s{sJ}, 2\ns_add_u32 s{sT2}, s{sT2}, s{sT0}\nv_mov_b32 v{VFL}, s{sT2}')
            a(f'v_and_b32 v{VZA}, 7, v0\nv_lshlrev_b32 v{VZA}, 2, v{VZA}\nv_add_u32 v{VFP}, s{sT0}, v{VZA}')
            a(f'v_and_b32 v{VZA}, 15, v0\nv_lshlrev_b32 v{VZA}, 2, v{VZA}\nv_add_u32 v{VFO}, s{sT0}, v{VZA}\nv_and_b32 v{VZA}, 31, v0\nv_lshlrev_b32 v{VZA}, 2, v{VZA}')
            a(f's_cmp_eq_u32 s{sR}, 0\ns_cselect_b32 s{sT2}, 0, -128\ns_cmp_eq_u32 s{sR}, 31\ns_cselect_b32 s{sT3}, 0, 128')
            a(f'v_lshrrev_b32 v{T[3]}, 3, v0\nv_mov_b32 v{T[4]}, 0\nv_mov_b32 v{T[5]}, s{sT2}\nv_mov_b32 v{T[6]}, s{sT3}')
            a(f'v_cmp_eq_u32 vcc, 1, v{T[3]}\nv_cndmask_b32 v{T[4]}, v{T[4]}, v{T[5]}, vcc\nv_cmp_eq_u32 vcc, 2, v{T[3]}\nv_cndmask_b32 v{T[4]}, v{T[4]}, v{T[6]}, vcc')
            a(f'v_add_u32 v{VF3}, v{VFP}, v{T[4]}')
        if not E('late', 0): flag_setup()
        stats_setup()
        stamp()
        def touch3(s, rows, dst):
            n = rows // 32
            a(f's_lshr_b32 s{sT0}, s2, 3\ns_mul_i32 s{sT0}, s{sT0}, {n*1024}\ns_add_u32 s{sT0}, s{sT0}, 384')
            a(f'v_lshlrev_b32 v{T[7]}, 10, v0\nv_cmp_gt_u32 vcc, {n}, v0\nv_cndmask_b32 v{T[7]}, v{OB}, v{T[7]}, vcc')
            return a(f'buffer_load_dword v{dst}, v{T[7]}, {srd(s)}, s{sT0} offen')
        ck = {}
        def check_issue(vaddr, sr, off):
            ck['t'] = a(f's_mov_b32 s{sT0}, {off}\nbuffer_load_dword v{VCK}, v{vaddr}, {srd(sr)}, s{sT0} offen sc1')
        def check_wait(vaddr, sr, off, val):
            L = lab('p')
            a.wait_vm(ck['t'])
            a(f's_mov_b32 s{sCNT}, {opt.get("spin", 200000)}\ns_mov_b32 s{sT0}, {off}')
            a(f'{L}:')
            a(f'v_cmp_ne_u32 vcc, {val}, v{VCK}\ns_sub_u32 s{sCNT}, s{sCNT}, 1\ns_cmp_eq_u32 s{sCNT}, 0\ns_cbranch_vccz {L}d\ns_cbranch_scc1 {L}d')
            vm = list(a.vm)
            a(f'buffer_load_dword v{VCK}, v{vaddr}, {srd(sr)}, s{sT0} offen sc1\ns_waitcnt vmcnt(0)\ns_branch {L}\n{L}d:')
            a.vm = vm
        early = []
        def pre_poll(vaddr, sr, off):
            r = [36, 37, 38][len(early)]
            a(f's_mov_b32 s{sT0}, {off}')
            early.append((r, a(f'buffer_load_dword v{r}, v{vaddr}, {srd(sr)}, s{sT0} offen sc1')))
        def poll(vaddr, sr, off, val):
            L = lab('q')
            check_issue(vaddr, sr, off)
            check_wait(vaddr, sr, off, val)
        def flag(ftype):
            a(f's_mov_b32 s{sT0}, {ftype*4096}')
            one_lane(f'buffer_store_dword v{VONE}, v{VFL}, {srd(sWS)}, s{sT0} offen sc1')
        XS = 64; xt = {}
        def xs_loads():
            a(f's_lshl_b32 s{sT0}, s{sR}, 13\ns_add_u32 s{sT0}, s{sT0}, {XS_OFF}\ns_add_u32 s{sT2}, s{sT0}, 4096\nv_lshlrev_b32 v{T[0]}, 3, v0')
            for k in range(16):
                xt['s'] = a(f'buffer_load_dwordx2 {vr(XS+2*k,2)}, v{T[0]}, {srd(sWS)}, s{sT0 if k < 8 else sT2} offen offset:{(k&7)*512} sc1')
        def xs_final(part):
            G = XS + 4; t = XS + 1
            if part == 0:
                a.wait_vm(xt['s'])
                for st in (16, 8, 4, 2):
                    for k in range(st): a(f'v_add_f32 v{XS+k}, v{XS+k}, v{XS+st+k}')
                return
            a(f'v_mul_f32 v{G}, {f2u(-1/512):#x}, v{XS}\nv_mul_f32 v{t}, {f2u(1/512):#x}, v{t}')
            a(f'v_fma_f32 v{t}, -v{G}, v{G}, v{t}\nv_max_f32 v{t}, 0, v{t}\nv_add_f32 v{t}, {f2u(1e-5):#x}, v{t}')
            a(f'v_rsq_f32 v{t+1}, v{t}\nv_sqrt_f32 v{G+3}, v{t}')
            a(f'v_mul_f32 v{G+1}, {f2u(GC0):#x}, v{t+1}\nv_mul_f32 v{t+2}, v{t+1}, v{t+1}\nv_mul_f32 v{t+2}, v{t+2}, v{t+1}\nv_mul_f32 v{G+2}, {f2u(GC1):#x}, v{t+2}')
            a(f'v_lshlrev_b32 v{T[0]}, 4, v0\nv_add_u32 v{T[0]}, {X1P}, v{T[0]}')
            a(f'ds_write_b128 v{T[0]}, {vr(G,4)}\ns_waitcnt lgkmcnt(0)')
        fhb, fxb, hlb = f"B{E('fh_bar', 6)}", f"B{E('fx_bar', 17)}", f"B{E('hl_bar', 11)}"
        for n in BARS:
            if n == 'XA': check_wait(VFP, sWS, FX1 * 4096, 1)
            if n == E('e_g0w', 'B31' if E('eg', 0) else 'B34'): check_wait(VFP, sWS, FG0 * 4096, 1)
            if n == f'B{self.need[FG1]}': check_wait(VFP, sWS, FG1 * 4096, 1)
            if n == f'B{self.need[FO]}': check_wait(VFO, sWS, FO * 4096, 1)
            if n == f'B{self.need[FG2]}': check_wait(VFP, sWS, FG2 * 4096, 1)
            if n == hlb: check_wait(VF3, sWS, FH * 4096, 1)
            if two: load_before(n)
            arrive(IDX[n]); self.barsS.append(n); a('s_barrier')
            stamp()
            if n == fhb: flag(FH)
            if n == fxb: flag(FX1)
            if n == f"B{E('fg0_bar', 27)}": flag(FG0)
            if n == f"B{E('fg1_bar', 34)}": flag(FG1)
            if n == f"B{E('fg2_bar', 37)}": flag(FG2)
            if n == (f"B{E('fa_bar', 15)}" if E('kv2', 0) else fxb): count(CF_A, sR)
            if n == E('e_g0i', 'B30' if E('eg', 0) else 'B31'): check_issue(VFP, sWS, FG0 * 4096)
            if n == f'B{max(self.need[FG1] - E("cl", 2), 34)}': check_issue(VFP, sWS, FG1 * 4096)
            if n == f'B{max(self.need[FO] - E("cl", 2), 34)}': check_issue(VFO, sWS, FO * 4096)
            if n == f'B{self.need[FG2] - E("cl", 2)}': check_issue(VFP, sWS, FG2 * 4096)
            if n == 'QE': check_issue(VFP, sWS, FX1 * 4096)
            if n == BARS[IDX[hlb] - 1]: check_issue(VF3, sWS, FH * 4096)
            if n == 'B2': check_issue(VZA, sDBG, 0)
            if n == 'B15': pass
            if two: load_after(n)
            elif n[0] == 'B': stats_after(int(n[1:]))
            if n == 'B0' and E('late', 0): flag_setup()
            if n == E('e_xs', 'B20'): xs_loads()
            if n == 'B4': check_wait(VZA, sDBG, 0, 1)
            if n == 'B22': xs_final(0)
            if n == 'B23': xs_final(1)
            if pf and n == E('e_p4', 'B13'):
                for (sr, nl) in ((sWO, 16), (sW4, 56)):
                    a(f's_mul_i32 s{sT0}, s2, {nl*128}\nv_cmp_gt_u32 vcc, {nl}, v0\nv_cndmask_b32 v{T[7]}, v{OB}, v{T[15]}, vcc\nbuffer_load_dword v62, v{T[7]}, {srd(sr)}, s{sT0} offen')
            if t3:
                if n == E('e_t3q', 'B4'): touch3(sQKV, 1536, 63)
                if n == E('e_t32', 'B7'): touch3(sW2, 512, 63)
                if n == E('e_t33', 'B13'): touch3(sW3, 1792, 63)
                if n == E('e_t33b', 'B24'): touch3(sW3, 1792, 63)
                if n == E('e_t34', 'B28'): touch3(sW4, 1792, 63)
                if n == E('e_t35', 'B37'): touch3(sWO, 512, 63); touch3(sW4, 1792, 63)
            if n[0] == 'B' and int(n[1:]) >= max(self.need.values()) + 2 and not prof and not two: break
        if prof:
            stamp(True)
            a(f's_lshl_b32 s{sT0}, s2, 3\ns_add_u32 s{sT0}, s{sT0}, 4\ns_lshl_b32 s{sT0}, s{sT0}, 8\ns_add_u32 s{sT0}, s{sT0}, {TS_OFF}')
            a(f'v_lshlrev_b32 v2, 2, v0\nbuffer_store_dword v{VTS}, v2, {srd(sWS)}, s{sT0} offen\nbuffer_store_dword v{VTC}, v2, {srd(sWS)}, s{sT0} offen offset:256')
            dump_arrive(0)
        a('s_endpgm')

        a('L_loader:')
        a.vm = vmL; a.lg = []; stok.update(stokL); grp[0] = [0, 1] if two else [0, 1, 2, 3]
        loader_setup()
        stats_setup()
        for n in BARS:
            load_before(n)
            arrive(IDX[n]); self.barsL.append(n); a('s_barrier')
            load_after(n)
        dump_arrive(0)
        a('s_endpgm')

    def build(self):
        a = Asm()
        dry = Asm(); self.compute(dry); self.barsC = []
        self.prologue(a)
        self.helper(a)
        a.lg = []; a.vm = []
        a('L_compute:')
        self.compute(a)
        a('L_end:\ns_endpgm')
        assert self.barsC[:-1] == self.barsL and self.barsC[-1] == 'RB2' and self.barsL[:len(self.barsS)] == self.barsS, (self.barsC, self.barsL, self.barsS)
        if self.opt.get('align', 3): self.alstat = align_pass(a, KNAME + ':\n', self.opt.get('align', 3))
        ref = open(f'cdna_kernels/{KNAME[:-7]}.s.ref').read().split('\n')
        head = [l for l in ref if l.startswith(';') and '@launch' not in l]
        if self.dnames: head.append('; dnames ' + ' '.join(self.dnames))
        out = '\n'.join(head) + '\n; @launch grid=(256,1,1) block=(512,1,1) lds=163840\n'
        out += f'.amdgcn_target "amdgcn-amd-amdhsa--gfx950"\n.text\n.globl {KNAME}\n.p2align 8\n.type {KNAME},@function\n{KNAME}:\n'
        out += a.text()
        out += f'''.section .rodata,"a"
.p2align 6
.amdhsa_kernel {KNAME}
  .amdhsa_next_free_vgpr 256
  .amdhsa_next_free_sgpr 102
  .amdhsa_accum_offset 256
  .amdhsa_group_segment_fixed_size 0
  .amdhsa_kernarg_size 88
  .amdhsa_user_sgpr_count 2
  .amdhsa_user_sgpr_kernarg_segment_ptr 1
  .amdhsa_system_sgpr_workgroup_id_x 1
.end_amdhsa_kernel
'''
        return out, a


def generate(**opt):
    g = Gen(opt)
    return g.build()[0]

if __name__ == '__main__':
    opt = {}
    for arg in sys.argv[2:]:
        k, v = arg.split('=')
        opt[k] = int(v) if v.lstrip('-').isdigit() else v
    g = Gen(opt)
    txt, a = g.build()
    open(sys.argv[1], 'w').write(txt)
    print('instructions', len(a.ins), 'pads', a.npad, 'align', getattr(g, 'alstat', None), 'issue', ISSUE)
```

```python
import sys, math, struct
sys.path.insert(0, 'dev')
import re
from asmlib import Asm, Ins, align_pass

KNAME = 'parallel_sum__linear_attn_block__mixer_s_mlp__prompt_kernel'

H_OFF, X1_OFF, O_OFF, G_OFF = 0x000000, 0x200000, 0x400000, 0x600000
KV_OFF, FL_OFF, XS_OFF, TS_OFF = 0xE00000, 0xD10000, 0xD20000, 0x1000000
CF_OFF = 0xD00000
WS_BYTES = 0x1200000
KVP, KV_Z, KV_FIN, KV_CS = 4608, 4096, 0x24000, 0x28000
CF_CS, CF_A, CF_B = 0, 1024, 2048
NREP = 4
FH, FX1, FO, FG0, FG1, FG2 = 0, 1, 2, 3, 4, 5
GBLK = 229376
RING = 0x10000
SC = 0x24000
S1, S2, NMU, RHO, RHL = SC, SC + 1024, SC + 2048, SC + 2304, SC + 2560
PQ, X1P, CS3L = SC, SC + 9216, SC + 10240
OOB = 0x80000000

def f2u(x): return struct.unpack('<I', struct.pack('<f', x))[0]
LOG2E = 1.4426950408889634
GC0 = -2.0 * math.sqrt(2.0 / math.pi) * LOG2E
GC1 = GC0 * 0.044715

sX, sQKV, sWO, sW1, sW2, sW3, sW4, sOUT, sWS, sDBG = 28, 32, 36, 40, 44, 48, 52, 56, 60, 64
sR, sJ, sW, sTH, sHI = 68, 69, 70, 71, 72
sT0, sT1, sT2, sT3, sT4, sT5 = 73, 74, 75, 76, 77, 78
sEPS = 80
sONE, sSEL0, sSEL1 = 82, 83, 84
sA, sB, sC, sD = 85, 86, 87, 88
sI0 = 79
sCODE = 92
sCNT = 90
sROT = 89
sRG = 3
sKG = 22
sKC = 96
sBG = 91
sK1, sK3, sK5, sKX = 92, 96, 4, 18
sTSP = 100

def srd(n): return f's[{n}:{n+3}]'
def vr(n, k=1): return f'v{n}' if k == 1 else f'v[{n}:{n+k-1}]'

STAGES = ([('w1', s) for s in range(4)] + [('kv', s) for s in range(8)] + [('w2', s) for s in range(4)] +
          [('wq', s) for s in range(4)] + [('p0', s) for s in range(4)] + [('hf', s) for s in range(2)] +
          [('p1', s) for s in range(4)] + [('p2', s) for s in range(4)] +
          [])
STAGES0 = list(STAGES)
def set_order(order):
    STAGES[:] = STAGES0 + [(k, s) for k in order.split('.') for s in range(2 if k == 'gh' else 4)]
set_order('g0.g1.gh.wo.g2')
def g_rows(kind, s):
    if kind == 'gh': return 896 * s + 192, 896 * s + 640
    p = int(kind[1])
    return 448 * s + 64 * p, 448 * s + 256 + 64 * p
NST = len(STAGES)
AREL = 27

def plan_slots(opt):
    free = [RING + i * 0x4000 for i in range(5)]
    slot = {}; issue = {}
    quota = {13: opt.get('q13', 0), 16: opt.get('q16', 1), 17: 2, 24: opt.get('q24', 3), 27: 1, 30: opt.get('q30', 4), 34: opt.get('q34', 1)}
    jit = opt.get('jit', 5)
    regs = [int(x) for x in str(opt.get('regs', '')).split('.') if x]
    nxt = 0
    def drain(key, q, b):
        nonlocal nxt
        while free and nxt < NST and (nxt in regs or ((q > 0 or nxt <= b + 2) and not (b >= 35 and nxt > b + jit))):
            slot[nxt] = free.pop(0); issue.setdefault(key, []).append(nxt); q -= nxt not in regs; nxt += 1
    drain(-1, 5, -1)
    for b in range(NST):
        if b == 20:
            free.extend([slot[18], slot[19]]); drain('QE', 2, 19)
        er = [int(x) for x in str(opt.get('erel', '24.30.34')).split('.') if x != 'X']
        if b >= 2 and b not in (20, 21) and (b - 1) not in er: free.append(slot[b - 2])
        if b in er: free.append(slot[b - 1])
        if b == (24 if opt.get('hfv', 1) else AREL): free.extend([0, 0x4000, 0x8000, 0xC000])
        if b == 32 and opt.get('sc10', 1): free.append(SC)
        if SC in free and nxt > 47: free.remove(SC)
        if b == 15 and opt.get('rb17', 1): drain('RB1', quota.get(b, 1), b)
        else: drain(b, quota.get(b, 1), b)
    assert nxt == NST
    return slot, issue


class Gen:
    def __init__(self, opt):
        self.opt = opt
        self.barsC = []; self.barsS = []; self.barsL = []; self.dnames = []
        global SLOT, ISSUE
        set_order(opt.get('order', 'g0.g1.gh.g2.wo' if opt.get('kv2', 0) else 'g0.wo.g1.gh.g2'))
        SLOT, ISSUE = plan_slots(opt)

    def prologue(self, a):
        a('s_cmp_ge_u32 s2, 256\ns_cbranch_scc1 L_end')
        a('s_load_dwordx16 s[4:19], s[0:1], 0\ns_load_dwordx4 s[20:23], s[0:1], 64\ns_load_dwordx2 s[24:25], s[0:1], 80')
        if self.opt.get('prof'):
            a(f's_memrealtime s[26:27]\ns_memtime s[90:91]')
        m = self.opt.get('map', 'h4')
        if m == 'same':
            a(f's_and_b32 s{sR}, s2, 7\ns_lshr_b32 s{sT0}, s2, 6\ns_lshl_b32 s{sT0}, s{sT0}, 3\ns_or_b32 s{sR}, s{sR}, s{sT0}')
            a(f's_lshr_b32 s{sJ}, s2, 3\ns_and_b32 s{sJ}, s{sJ}, 7')
        elif m == 'h4':
            a(f's_and_b32 s{sR}, s2, 3\ns_lshr_b32 s{sT0}, s2, 5\ns_lshl_b32 s{sT0}, s{sT0}, 2\ns_or_b32 s{sR}, s{sR}, s{sT0}')
            a(f's_lshr_b32 s{sJ}, s2, 2\ns_and_b32 s{sJ}, s{sJ}, 7')
        elif m == 'cross':
            a(f's_lshr_b32 s{sR}, s2, 3\ns_and_b32 s{sJ}, s2, 7')
        a('v_lshrrev_b32 v1, 6, v0\nv_and_b32 v0, 63, v0')
        a(f'v_readfirstlane_b32 s{sT1}, v1')
        a(f's_mov_b32 s{sX+2}, {2<<20}\ns_mov_b32 s{sX+3}, 0x20000')
        a(f's_and_b32 s{sW}, s{sT1}, 3\ns_and_b32 s{sTH}, s{sT1}, 1\ns_lshr_b32 s{sHI}, s{sW}, 1')
        sh = {'same': 3, 'h4': 2, 'cross': 5}[m] if self.opt.get('rot2', 1) else 8
        a(f's_lshr_b32 s{sROT}, s{sR}, {sh}\ns_add_u32 s{sROT}, s{sROT}, s{sR}\ns_add_u32 s{sROT}, s{sROT}, s{sJ}\ns_and_b32 s{sROT}, s{sROT}, 3')
        sh2 = {'same': 3, 'h4': 2, 'cross': 5}[m]
        if self.opt.get('rotg', 1): a(f's_lshr_b32 s{sRG}, s{sR}, {sh2}\ns_add_u32 s{sRG}, s{sRG}, s{sJ}\ns_and_b32 s{sRG}, s{sRG}, 3')
        else: a(f's_mov_b32 s{sRG}, 0')
        a(f's_cmp_lt_u32 s{sT1}, 4\ns_cbranch_scc1 L_compute')

    def srds(self, a, skipx=False, skip1=False):
        a(f's_mov_b32 s{sEPS}, {f2u(1e-6):#x}\ns_mov_b32 s{sEPS+1}, {f2u(1e-6):#x}\ns_mov_b32 s{sONE}, 0x3f803f80')
        for (s, p, n) in ((sX, 4, 2 << 20), (sW1, 12, 512 * 1024), (sQKV, 6, 512 * 3072), (sWO, 8, 512 * 1024), (sW2, 14, 512 * 1024),
                          (sW3, 16, 512 * 3584), (sW4, 18, 1792 * 1024), (sOUT, 20, 2 << 20), (sWS, 24, WS_BYTES), (sDBG, 22, 256)):
            if s == sX and skipx: continue
            if s == sW1 and skip1: continue
            a(f's_mov_b32 s{s}, s{p}\ns_and_b32 s{s+1}, s{p+1}, 0xffff\ns_mov_b32 s{s+2}, {n}\ns_mov_b32 s{s+3}, 0x20000')

    def run_steps(self, a, steps):
        n = len(steps)
        sched = {}
        for i, s in enumerate(steps):
            sched.setdefault(s['at'], []).append(i)
        def items(i):
            s = steps[i]
            out = []
            if s.get('pre'): out.append(('pre', i))
            out += [('rd', i, t) for t in s['reads']]
            return out
        def emit(it):
            if it[0] == 'pre':
                steps[it[1]]['pre']()
            elif it[0] == 'rd':
                steps[it[1]]['tok'] = a(it[2])
            else:
                it[1]()
        for i in sched.get(-1, []):
            for it in items(i): emit(it)
        for k in range(n):
            s = steps[k]
            if s.get('hook'): s['hook']()
            pend = []
            for i in sched.get(k, []):
                if i == k:
                    for it in items(i): emit(it)
                else:
                    pend += items(i)
            pend += [('post', f) for f in s.get('post', [])]
            vt = s['vm']() if s.get('vm') else None
            a.wait_both(s.get('tok'), vt)
            nm = len(s['mfmas'])
            per = -(-len([p for p in pend if p[0] != 'pre']) // nm) if pend else 0
            for mi, m in enumerate(s['mfmas']):
                a(m)
                if s.get('tail') and s['tail'][mi]: s['tail'][mi]()
                c = 0
                while pend and (c < per or mi == nm - 1):
                    it = pend.pop(0)
                    emit(it)
                    if it[0] != 'pre': c += 1
                    elif mi < nm - 1 and self.opt.get('bfast', 0):
                        per = -(-len(pend) // (nm - 1 - mi))
                        break

    def barC(self, a, name):
        self.barsC.append(name); a('s_barrier')

    def gelu(self, a, pairs, tmp, after_first=None):
        P = lambda r: vr(r, 2)
        for i, (ac, cs, st, o) in enumerate(pairs):
            a(f'v_pk_fma_f32 {P(ac)}, {P(cs)}, {P(st)}, {P(ac)} op_sel:[0,0,0] op_sel_hi:[1,0,1]')
        if after_first: after_first()
        for i, (ac, cs, st, o) in enumerate(pairs):
            a(f'v_pk_mul_f32 {P(tmp+2*i)}, {P(ac)}, {P(ac)}')
        for i, (ac, cs, st, o) in enumerate(pairs):
            a(f'v_pk_fma_f32 {P(tmp+2*i)}, {P(tmp+2*i)}, {P(st+2)}, {P(st)} op_sel:[0,0,1] op_sel_hi:[1,0,1]')
        for i, (ac, cs, st, o) in enumerate(pairs):
            a(f'v_pk_mul_f32 {P(tmp+2*i)}, {P(tmp+2*i)}, {P(ac)}')
        for i in range(2 * len(pairs)):
            a(f'v_exp_f32_e64 v{tmp+i}, v{tmp+i}')
        for i, (ac, cs, st, o) in enumerate(pairs):
            a(f'v_pk_fma_f32 {P(tmp+2*i)}, {P(tmp+2*i)}, {P(st+2)}, {P(st+2)} op_sel:[0,1,1] op_sel_hi:[1,1,1]')
        for i in range(2 * len(pairs)):
            a(f'v_rcp_f32_e64 v{tmp+i}, v{tmp+i}')
        for i, (ac, cs, st, o) in enumerate(pairs):
            a(f'v_pk_mul_f32 {P(tmp+2*i)}, {P(tmp+2*i)}, {P(ac)}')
        for i, (ac, cs, st, o) in enumerate(pairs):
            a(f'v_cvt_pk_bf16_f32 v{o}, v{tmp+2*i}, v{tmp+2*i+1}')

    def phi_tail(self, a, acs, outs, tmp):
        P = lambda r: vr(r, 2)
        n = len(acs)
        for i in range(2 * n): a(f'v_exp_f32_e64 v{tmp+i}, v{tmp+i} clamp')
        for ac in acs:
            a(f'v_max_f32_e64 v{ac}, v{ac}, s{sEPS}\nv_max_f32_e64 v{ac+1}, v{ac+1}, s{sEPS}')
        for i, ac in enumerate(acs): a(f'v_pk_add_f32 {P(ac)}, {P(ac)}, {P(tmp+2*i)}')
        for i, ac in enumerate(acs): a(f'v_cvt_pk_bf16_f32 v{outs[i]}, v{ac}, v{ac+1}')

    def compute(self, a):
        opt = self.opt
        P = lambda r: vr(r, 2)
        XB = [2, 3, 4, 5]; PAT16, WK16 = 6, 7
        PATN = [8, 9]; PATP = [10, 11, 12, 13]; PAT3 = [14, 15]
        WK = [16, 17, 18, 19]
        CELLV, CELLT, LL16, RDX = 20, 21, 22, 23
        RES = 24; QST = 40; PST = 196
        ONES = 56
        STA, STB, XE, PSA = 1, 54, 19, 18
        HV = [252, 253, 254, 255]
        T = [240 + i for i in range(12)]
        q, i16, rr, c, h, t32, fsub = 228, 229, 230, 231, 232, 233, 234
        a(f'v_lshrrev_b32 v{q}, 4, v0\nv_and_b32 v{i16}, 15, v0\nv_lshrrev_b32 v{rr}, 2, v{i16}\nv_and_b32 v{c}, 3, v0')
        a(f'v_lshrrev_b32 v{h}, 5, v0\nv_and_b32 v{t32}, 31, v0\nv_and_b32 v{fsub}, 1, v{q}')
        a(f'v_lshlrev_b32 v{LL16}, 4, v0')
        a(f'v_lshlrev_b32 v{T[2]}, 3, v0')
        a(f's_lshr_b32 s{sT3}, s2, 3\ns_lshl_b32 s{sT3}, s{sT3}, 2\ns_add_u32 s{sT3}, s{sT3}, s{sW}\ns_lshl_b32 s{sT3}, s{sT3}, 9')
        a(f's_getpc_b64 s[{sCODE}:{sCODE+1}]\nL_pc:\ns_sub_u32 s{sCODE}, s{sCODE}, L_pc-{KNAME}\ns_subb_u32 s{sCODE+1}, s{sCODE+1}, 0')
        a(f's_and_b32 s{sCODE+1}, s{sCODE+1}, 0xffff\ns_mov_b32 s{sCODE+2}, L_end-{KNAME}\ns_mov_b32 s{sCODE+3}, 0x20000')
        if opt.get('cpf', 1): a(f'buffer_load_dword v24, v{T[2]}, {srd(sCODE)}, s{sT3} offen')
        if opt.get('t0', 0):
            a(f's_lshl_b32 s{sT0}, s{sR}, 3\ns_add_u32 s{sT0}, s{sT0}, s{sJ}\ns_lshl_b32 s{sT0}, s{sT0}, 2\ns_add_u32 s{sT0}, s{sT0}, s{sW}\ns_lshl_b32 s{sT2}, s{sT0}, 9\ns_lshl_b32 s{sT0}, s{sT0}, 11')
            a(f'v_lshlrev_b32 v{T[3]}, 5, v0\ns_mov_b32 s{sW1+2}, {512*1024}\ns_mov_b32 s{sW1+3}, 0x20000')
        a('s_waitcnt lgkmcnt(0)')
        if opt.get('t0', 0):
            a(f's_mov_b32 s{sX}, s4\ns_and_b32 s{sX+1}, s5, 0xffff\nbuffer_load_dword v25, v{T[3]}, {srd(sX)}, s{sT0} offen')
            a(f's_mov_b32 s{sW1}, s12\ns_and_b32 s{sW1+1}, s13, 0xffff\nbuffer_load_dword v26, v{T[2]}, {srd(sW1)}, s{sT2} offen')
        self.srds(a)
        a(f's_lshr_b32 s{sT0}, s{sR}, 2\ns_or_b32 s{sT0}, s{sT0}, s{sW}\ns_cmp_lg_u32 s{sT0}, 0\ns_cbranch_scc1 L_nozero')
        vm0 = list(a.vm)
        a(f'v_mov_b32 v{T[4]}, 0\nv_mov_b32 v{T[5]}, 0\nv_mov_b32 v{T[6]}, 0\nv_mov_b32 v{T[7]}, 0')
        a(f's_lshl_b32 s{sT3}, s{sJ}, 2\ns_add_u32 s{sT3}, s{sT3}, s{sR}')
        a(f's_lshl_b32 s{sT0}, s{sT3}, 10\ns_add_u32 s{sT0}, s{sT0}, {CF_OFF}')
        a(f'buffer_store_dwordx4 {vr(T[4],4)}, v{LL16}, {srd(sWS)}, s{sT0} offen sc1')
        a(f's_lshl_b32 s{sT0}, s{sJ}, 18\ns_lshl_b32 s{sT2}, s{sR}, 13\ns_add_u32 s{sT0}, s{sT0}, s{sT2}\ns_add_u32 s{sT0}, s{sT0}, {KV_OFF}\ns_add_u32 s{sT2}, s{sT0}, 4096')
        for u in range(0 if opt.get('kv2', 0) else 5):
            a(f'buffer_store_dwordx4 {vr(T[4],4)}, v{LL16}, {srd(sWS)}, s{sT0 if u < 4 else sT2} offen offset:{(u&3)*1024} sc1')
        a(f'v_lshlrev_b32 v{T[8]}, 12, v{q}\nv_lshl_add_u32 v{T[8]}, v{i16}, 3, v{T[8]}')
        a(f's_lshl_b32 s{sT0}, s{sT3}, 7\ns_add_u32 s{sT0}, s{sT0}, {FL_OFF}')
        a(f'buffer_store_dwordx2 {vr(T[4],2)}, v{T[8]}, {srd(sWS)}, s{sT0} offen sc1\ns_add_u32 s{sT0}, s{sT0}, 16384')
        a(f'buffer_store_dwordx2 {vr(T[4],2)}, v{T[8]}, {srd(sWS)}, s{sT0} offen sc1')
        a(f'v_mov_b32 v{T[9]}, 1\ns_lshl_b32 s{sT0}, s{sT3}, 2\nv_mov_b32 v{T[10]}, s{sT0}')
        a.wait_vm0()
        a('s_mov_b64 exec, 1')
        a(f'buffer_store_dword v{T[9]}, v{T[10]}, {srd(sDBG)}, 0 offen sc1')
        a('s_mov_b64 exec, -1')
        a('L_nozero:')
        a.vm = vm0
        a(f'v_mov_b32 v{T[1]}, {OOB}')
        for m in range(4):
            a(f'v_or_b32 v{T[0]}, {4*m}, v{q}\nv_xor_b32 v{T[0]}, v{T[0]}, v{i16}\nv_lshlrev_b32 v{T[0]}, 4, v{T[0]}')
            a(f'v_lshl_add_u32 v{XB[m]}, v{i16}, 8, v{T[0]}')
        a(f'v_lshrrev_b32 v{T[4]}, 1, v{rr}\nv_lshlrev_b32 v{T[4]}, 2, v{T[4]}\nv_lshrrev_b32 v{T[5]}, 1, v{c}')
        a(f'v_and_b32 v{T[6]}, 1, v{c}\nv_lshlrev_b32 v{T[6]}, 3, v{T[6]}')
        a(f's_lshl_b32 s{sT0}, s{sW}, 1\nv_add_u32 v{T[7]}, s{sT0}, v{T[5]}\nv_xor_b32 v{T[7]}, v{T[7]}, v{T[4]}')
        a(f'v_lshlrev_b32 v{T[8]}, 1, v{fsub}\nv_xor_b32 v{T[7]}, v{T[7]}, v{T[8]}\nv_lshl_add_u32 v{T[7]}, v{T[7]}, 4, v{T[6]}')
        a(f'v_lshl_add_u32 v{T[9]}, v{q}, 3, v{rr}\nv_lshl_add_u32 v{PAT16}, v{T[9]}, 7, v{T[7]}')
        a(f's_lshl_b32 s{sT0}, s{sHI}, 2\nv_add3_u32 v{T[7]}, s{sT0}, v{T[8]}, v{T[5]}\nv_xor_b32 v{T[7]}, v{T[7]}, v{T[4]}')
        a(f's_lshl_b32 s{sT2}, s{sHI}, 13')
        a(f'v_lshlrev_b32 v{T[9]}, 1, v{h}\nv_xor_b32 v{T[9]}, v{T[9]}, v{T[7]}\nv_lshl_add_u32 v{T[9]}, v{T[9]}, 4, v{T[6]}')
        a(f'v_lshl_add_u32 v{T[10]}, v{h}, 3, v{rr}\nv_lshl_add_u32 v{T[9]}, v{T[10]}, 7, v{T[9]}')
        a(f'v_add_u32 v{PATN[0]}, s{sT2}, v{T[9]}\nv_xor_b32 v{PATN[1]}, 64, v{PATN[0]}')
        a(f'v_lshl_add_u32 v{T[9]}, v{T[7]}, 4, v{T[6]}\nv_lshl_add_u32 v{T[10]}, v{h}, 2, v{rr}\nv_lshl_add_u32 v{PAT3[0]}, v{T[10]}, 7, v{T[9]}')
        a(f'v_xor_b32 v{PAT3[1]}, 32, v{PAT3[0]}\nv_add_u32 v{PAT3[1]}, 1024, v{PAT3[1]}')
        a(f'v_add_u32 v{PATP[0]}, s{sT2}, v{PAT3[0]}\nv_add_u32 v{PATP[1]}, s{sT2}, v{PAT3[1]}')
        a(f'v_xor_b32 v{PATP[2]}, 64, v{PATP[0]}\nv_xor_b32 v{PATP[3]}, 64, v{PATP[1]}')
        a(f'v_lshlrev_b32 v{CELLV}, 10, v{h}\nv_lshl_add_u32 v{CELLV}, v{t32}, 4, v{CELLV}')
        a(f's_lshl_b32 s{sT0}, s{sTH}, 9\nv_add_u32 v{CELLT}, s{sT0}, v{CELLV}')
        for i in range(4): a(f'v_mov_b32 v{ONES+i}, s{sONE}')
        a(f's_lshl_b32 s{sT0}, s{sTH}, 5\nv_add_u32 v{T[0]}, s{sT0}, v{t32}')
        a(f's_lshl_b32 s{sT2}, s{sHI}, 13\nv_lshl_add_u32 v{T[2]}, v{h}, 10, s{sT2}')
        rot = opt.get('rot', 1)
        for g in range(4):
            if rot: a(f's_add_u32 s{sT0}, s{sROT}, {g}\ns_and_b32 s{sT0}, s{sT0}, 3')
            else: a(f's_mov_b32 s{sT0}, {g}')
            a(f's_lshl_b32 s{sKC+g}, s{sT0}, 14\ns_lshr_b32 s{sT3}, s{sT0}, 1\ns_add_u32 s{sT3}, s{sT3}, 1\ns_sub_u32 s{sT4}, 0, s{sT3}\ns_bitcmp1_b32 s{sT0}, 0\ns_cselect_b32 s{sT3}, s{sT3}, s{sT4}')
            a(f'v_add_u32 v{T[3]}, s{sT3}, v{T[0]}\nv_ashrrev_i32 v{T[4]}, 6, v{T[3]}\nv_add_u32 v{T[4]}, s{sR}, v{T[4]}')
            if opt.get('ssh', 0): a(f'v_lshl_add_u32 v{T[3]}, v{T[0]}, 4, v{T[2]}\ns_lshl_b32 s{sT3}, s{sR}, 16\ns_add_u32 s{sT3}, s{sT3}, s{sKC+g}\nv_add_u32 v{T[3]}, s{sT3}, v{T[3]}')
            else: a(f'v_and_b32 v{T[3]}, 63, v{T[3]}\nv_lshl_add_u32 v{T[3]}, v{T[3]}, 4, v{T[2]}\nv_lshl_add_u32 v{T[3]}, v{T[4]}, 16, v{T[3]}\nv_add_u32 v{T[3]}, s{sKC+g}, v{T[3]}')
            a(f'v_cmp_gt_u32 vcc, 32, v{T[4]}\nv_cndmask_b32 v{HV[g]}, v{T[1]}, v{T[3]}, vcc')
        HS = [26, 27]
        if opt.get('ssh', 0):
            a(f's_lshr_b32 s{sT0}, s{sJ}, 1\ns_lshr_b32 s{sT3}, s{sT0}, 1\ns_add_u32 s{sT3}, s{sT3}, 1\ns_sub_u32 s{sT4}, 0, s{sT3}\ns_bitcmp1_b32 s{sT0}, 0\ns_cselect_b32 s{sT3}, s{sT4}, s{sT3}')
            for pr in range(2):
                a(f'v_add_u32 v{T[3]}, s{sT3}, v{t32}')
                if pr: a(f'v_add_u32 v{T[3]}, 32, v{T[3]}')
                a(f'v_ashrrev_i32 v{T[4]}, 6, v{T[3]}\nv_add_u32 v{T[4]}, s{sR}, v{T[4]}\nv_and_b32 v{T[3]}, 63, v{T[3]}\nv_lshlrev_b32 v{T[3]}, 4, v{T[3]}')
                a(f'v_lshl_add_u32 v{T[3]}, v{h}, 10, v{T[3]}\nv_lshl_add_u32 v{T[3]}, v{T[4]}, 16, v{T[3]}\nv_cmp_gt_u32 vcc, 32, v{T[4]}\nv_cndmask_b32 v{HS[pr]}, v{T[1]}, v{T[3]}, vcc')
        a(f'v_lshlrev_b32 v{STA}, 4, v{i16}\nv_add_u32 v{STA}, {SC}, v{STA}')
        a(f'v_lshlrev_b32 v{STB}, 4, v{q}\nv_add_u32 v{STB}, {NMU}, v{STB}')
        a(f'v_lshlrev_b32 v{PSA}, 4, v{T[0]}\nv_add_u32 v{PSA}, {S2}, v{PSA}')
        a(f's_and_b32 s{sT0}, s{sJ}, 1\ns_lshl_b32 s{sT0}, s{sT0}, 3\ns_lshl_b32 s{sT2}, s{sHI}, 2\ns_add_u32 s{sT0}, s{sT0}, s{sT2}')
        a(f's_lshr_b32 s{sT2}, s{sJ}, 1\ns_sub_u32 s{sT2}, s{sT2}, s{sROT}\ns_and_b32 s{sT2}, s{sT2}, 3\ns_lshl_b32 s{sT2}, s{sT2}, 14')
        a(f'v_xor_b32 v{XE}, s{sT0}, v{i16}\nv_lshlrev_b32 v{XE}, 4, v{XE}\nv_lshl_add_u32 v{XE}, v{h}, 3, v{XE}\nv_lshl_add_u32 v{XE}, v{T[0]}, 8, v{XE}\nv_add_u32 v{XE}, s{sT2}, v{XE}')
        a(f's_xor_b32 s{sT0}, s{sW}, 2\ns_lshl_b32 s{sT0}, s{sT0}, 12\ns_add_u32 s{sT0}, s{sT0}, {SC}\nv_add_u32 v{RDX}, s{sT0}, v{LL16}')
        a(f's_lshl_b32 s{sA}, s{sR}, 16')
        a(f's_lshl_b32 s{sT0}, s{sJ}, 2\ns_add_u32 s{sT0}, s{sT0}, s{sW}\ns_lshl_b32 s{sT0}, s{sT0}, 11')
        a(f's_mov_b32 s{sB}, s{sT0}' if opt.get('ssh', 0) else f's_add_u32 s{sB}, s{sA}, s{sT0}')
        if opt.get('kv2', 0): a(f's_mul_i32 s{sT0}, s{sR}, {KVP}')
        else: a(f's_and_b32 s{sT0}, s{sR}, 3\ns_lshl_b32 s{sT0}, s{sT0}, 13')
        a(f's_lshl_b32 s{sC}, s{sJ}, 18\ns_add_u32 s{sC}, s{sC}, s{sT0}\ns_add_u32 s{sC}, s{sC}, {KV_OFF}')
        a(f's_mul_i32 s{sD}, s{sR}, {GBLK}\ns_add_u32 s{sD}, s{sD}, {G_OFF}')

        def cst(k):
            if opt.get('prof') in (1, 2) and opt.get('cset', 0) == k // 8: a(f's_memrealtime s[{4+2*(k%8)}:{5+2*(k%8)}]')
        def stage_pre(st, wks, pats, extra=None, after=None):
            def f():
                for wk, pt in zip(wks, pats):
                    a(f'v_add_u32 v{wk}, {SLOT[st]}, v{pt}')
                if extra: extra()
                self.barC(a, f'B{st}')
                if after: after()
            return f

        def steps_q(first, acc, cs, sets, base_at):
            st = []
            for ks in range(16):
                sb = sets[ks % 3]; stg = first + ks // 4
                reads = [f'ds_read_b64_tr_b16 {vr(sb+16,2)}, v{WK16} offset:{(ks%4)*4096}',
                         f'ds_read_b64_tr_b16 {vr(sb+18,2)}, v{WK16} offset:{(ks%4)*4096+512}']
                reads += [f'ds_read_b128 {vr(sb+4*tt,4)}, v{XB[ks&3]} offset:{tt*4096+(ks>>2)*16384}' for tt in range(4)]
                mf = [f'v_mfma_f32_16x16x32_bf16 {vr(cs,4)}, {vr(sb+16,4)}, {vr(ONES,4)}, {vr(cs,4) if ks else 0}']
                mf += [f'v_mfma_f32_16x16x32_bf16 {vr(acc+4*tt,4)}, {vr(sb+16,4)}, {vr(sb+4*tt,4)}, {vr(acc+4*tt,4) if ks else 0}' for tt in range(4)]
                st.append(dict(reads=reads, mfmas=mf, at=base_at + ks - 2, stage=stg if ks % 4 == 0 else None))
            return st

        HACC, HCS, HSETS = 60, 76, [80, 100, 120]
        KACC, VACC, KCS, VCS, KSETS = 140, 156, 172, 176, [180, 204]
        ovl = opt.get('ovl', 0)
        HF = 60; P2ACC = 180 if ovl else 140
        steps = steps_q(0, HACC, HCS, HSETS, 0)
        steps[0]['at'] = -1; steps[1]['at'] = -1
        for s in steps:
            if s['stage'] is not None: s['pre'] = stage_pre(s['stage'], [WK16], [PAT16])
        nh = len(steps)

        htok = {}
        HST = 80
        def h_stats_reads():
            for tt in range(4):
                htok['s'] = a(f'ds_read_b128 {vr(228+4*tt,4)}, v{STA} offset:{tt*256}')
        def h_epilogue():
            ST = 228; TMP = 100; OUT = 116
            a.wait_lg(htok['s'])
            pairs = [(HACC + 2*u, HCS + 2*(u & 1), ST + 4*(u >> 1), OUT + u) for u in range(8)]
            self.gelu(a, pairs, TMP)
            for pr in range(2):
                a(f'v_permlane16_swap_b32 v{OUT+4*pr}, v{OUT+4*pr+2}\nv_permlane16_swap_b32 v{OUT+4*pr+1}, v{OUT+4*pr+3}')
                htok['st'] = a(f'buffer_store_dwordx4 {vr(OUT+4*pr,4)}, v{HS[pr]}, {srd(sWS)}, s{sB} offen sc1' if opt.get('ssh', 0) else f'buffer_store_dwordx4 {vr(OUT+4*pr,4)}, v{CELLV}, {srd(sWS)}, s{sB} offen offset:{pr*512} sc1')
            cst(0)

        hl = {}; xp = {}
        HX = 196; x2 = {}
        def hload(n):
            sg, i = n // 4, n % 4
            if n >= 16:
                if n == 16: a(f'v_xor_b32 v{HV[0]}, 8192, v{HV[3]}')
                if i % 2 == 0: a(f's_mov_b32 s{sI0}, {H_OFF + (i>>1)*4096}')
                hl[n] = a(f'buffer_load_dwordx4 {vr(HX+4*i,4)}, v{HV[0]}, {srd(sWS)}, s{sI0} offen offset:{(i&1)*2048} sc1')
                return
            if i % 2 == 0: a(f's_mov_b32 s{sI0}, {H_OFF + (i>>1)*4096}')
            hl[n] = a(f'buffer_load_dwordx4 {vr(HF+4*n,4)}, v{HV[sg]}, {srd(sWS)}, s{sI0} offen offset:{(i&1)*2048} sc1')
        for ks in range(16):
            sb = KSETS[ks % 2]; stg = 4 + ks // 2
            o = (ks % 2) * 4096
            reads = [f'ds_read_b64_tr_b16 {vr(sb+16,2)}, v{WK16} offset:{o}', f'ds_read_b64_tr_b16 {vr(sb+18,2)}, v{WK16} offset:{o+512}',
                     f'ds_read_b128 {vr(sb,4)}, v{XB[ks&3]} offset:{(ks>>2)*16384}',
                     f'ds_read_b64_tr_b16 {vr(sb+20,2)}, v{WK16} offset:{o+8192}', f'ds_read_b64_tr_b16 {vr(sb+22,2)}, v{WK16} offset:{o+8192+512}']
            reads += [f'ds_read_b128 {vr(sb+4*tt,4)}, v{XB[ks&3]} offset:{tt*4096+(ks>>2)*16384}' for tt in range(1, 4)]
            mf = [f'v_mfma_f32_16x16x32_bf16 {vr(KCS,4)}, {vr(ONES,4)}, {vr(sb+16,4)}, {vr(KCS,4) if ks else 0}',
                  f'v_mfma_f32_16x16x32_bf16 {vr(VCS,4)}, {vr(ONES,4)}, {vr(sb+20,4)}, {vr(VCS,4) if ks else 0}']
            for tt in range(4):
                mf.append(f'v_mfma_f32_16x16x32_bf16 {vr(KACC+4*tt,4)}, {vr(sb+4*tt,4)}, {vr(sb+16,4)}, {vr(KACC+4*tt,4) if ks else 0}')
                mf.append(f'v_mfma_f32_16x16x32_bf16 {vr(VACC+4*tt,4)}, {vr(sb+4*tt,4)}, {vr(sb+20,4)}, {vr(VACC+4*tt,4) if ks else 0}')
            s = dict(reads=reads, mfmas=mf, at=nh + ks - 1)
            if ks % 2 == 0:
                extra = after = None
                if stg == opt.get('fh_bar', 6): extra = lambda: (a.wait_vm(htok['st']), cst(1))
                if stg == opt.get('hl_bar', 11): after = lambda: a.inject([lambda n=n: hload(n) for n in range(16)], opt.get('hl_every', 16))
                if stg == 4: after = h_stats_reads
                if stg == opt.get('xn_bar', 11) - 1: after = lambda o=after: ((o() if o else None), xn_prep())
                if stg == opt.get('xn_bar', 11): extra = lambda: xn_prep2()
                s['pre'] = stage_pre(stg, [WK16], [PAT16], extra, after)
            steps.append(s)
        kr0, kp0 = steps[nh]['reads'], steps[nh]['pre']
        steps[nh]['reads'] = []; steps[nh]['pre'] = None
        def h_hook():
            kp0()
            for t in kr0: steps[nh]['tok'] = a(t)
            h_epilogue()
        steps[nh]['hook'] = h_hook
        nkv = len(steps)

        ASETS = [228, 236, 244]
        def steps_ks(first, nstage, pats, natural, acc, bfrag, asets, base, setphase=0, init=True, c_init=None):
            st = []
            for n in range(4 * nstage):
                stg = first + n // 4; i = n % 4
                sb = asets[(n + setphase) % 3]
                reads = []
                for t in range(2):
                    for rd in range(2):
                        if natural:
                            reads.append(f'ds_read_b64_tr_b16 {vr(sb+4*t+2*rd,2)}, v{WK[t]} offset:{i*2048+rd*512}')
                        else:
                            reads.append(f'ds_read_b64_tr_b16 {vr(sb+4*t+2*rd,2)}, v{WK[2*t+rd]} offset:{i*2048}')
                b = bfrag(n)
                c0 = vr(acc if (n or c_init is None) else c_init, 16)
                c1 = vr(acc + 16, 16) if (n or not init) else 0
                mf = [f'v_mfma_f32_32x32x16_bf16 {vr(acc,16)}, {vr(sb,4)}, {vr(b,4)}, {c0}',
                      f'v_mfma_f32_32x32x16_bf16 {vr(acc+16,16)}, {vr(sb+4,4)}, {vr(b,4)}, {c1}']
                s = dict(reads=reads, mfmas=mf, at=base + n - 2)
                if i == 0: s['pre'] = stage_pre(stg, WK[:len(pats)], pats)
                st.append(s)
            return st

        p2 = steps_ks(12, 4, PATN, True, P2ACC, lambda n: HF + 4 * n, ASETS, nkv, c_init=124)
        p2[0]['at'] = nkv - 1; p2[1]['at'] = nkv - 1
        if opt.get('hl_bar', 11) == 12:
            p2[0]['pre'] = (lambda o=p2[0]['pre']: (o(), a.inject([lambda n=n: hload(n) for n in range(16)], opt.get('hl_every', 16))))
        XN = 124
        def xn_prep():
            XR = 228
            a(f'v_xor_b32 v{XR+8}, 16, v{XE}\nv_xor_b32 v{XR+9}, 32, v{XE}\nv_xor_b32 v{XR+10}, 48, v{XE}')
            a(f'ds_read_b64 {vr(XR,2)}, v{XE}')
            for g in range(1, 4): a(f'ds_read_b64 {vr(XR+2*g,2)}, v{XR+7+g}')
            xp['t'] = a(f'ds_read_b64 {vr(XR+12,2)}, v{PSA}')
        def xn_prep2():
            XR = 228
            a.wait_lg(xp['t'])
            for g in range(4):
                for d in range(2):
                    a(f'v_lshlrev_b32 v{RES+4*g+2*d}, 16, v{XR+2*g+d}\nv_and_b32 v{RES+4*g+2*d+1}, 0xffff0000, v{XR+2*g+d}')
            a(f'v_mul_f32 v{XR+12}, v{XR+12}, v{XR+13}')
            for u in range(16): a(f'v_fma_f32 v{XN+u}, v{RES+u}, v{XR+13}, v{XR+12}')
        def kv_epilogue():
            cst(16)
            SN, SR_, SL = 180, 196, 212
            for tt in range(4): a(f'ds_read_b128 {vr(SN+4*tt,4)}, v{STB} offset:{tt*64}')
            for tt in range(4): tk1 = a(f'ds_read_b128 {vr(SL+4*tt,4)}, v{STB} offset:{tt*64+512}')
            for tt in range(4): tk = a(f'ds_read_b128 {vr(SR_+4*tt,4)}, v{STB} offset:{tt*64+256}')
            a.wait_lg(tk1)
            for u in range(8):
                a(f'v_pk_fma_f32 {P(KACC+2*u)}, {P(SN+2*u)}, {P(KCS)}, {P(KACC+2*u)} op_sel_hi:[1,0,1]')
            for u in range(8):
                a(f'v_pk_fma_f32 {P(VACC+2*u)}, {P(SN+2*u)}, {P(VCS)}, {P(VACC+2*u)} op_sel_hi:[1,0,1]')
            for u in range(8):
                a(f'v_pk_mul_f32 {P(SL+2*u)}, {P(SL+2*u)}, {P(KACC+2*u)}')
            a.wait_lg(tk)
            for tt in range(4):
                a(f'ds_read_b128 {vr(QST+4*tt,4)}, v{STA} offset:{1024+tt*256}')
            for u in range(8):
                a(f'v_pk_fma_f32 {P(KACC+2*u)}, {P(KACC+2*u)}, {P(SR_+2*u)}, s[{sEPS}:{sEPS+1}]')
            for u in range(8):
                a(f'v_pk_mul_f32 {P(VACC+2*u)}, {P(VACC+2*u)}, {P(SR_+2*u)}')
            cst(17)
            PKR, PVR = (164, 156) if ovl else (180, 188)
            for u in range(8): a(f'v_cvt_pk_bf16_f32 v{PVR+u}, v{VACC+2*u}, v{VACC+2*u+1}')
            KVA, ZA = 172, 176
            XR = 140 if ovl else 196
            def rest():
                if ovl:
                    for i in range(16): a(f'v_exp_f32_e64 v{SL+i}, v{SL+i} clamp\nv_max_f32_e64 v{KACC+i}, v{KACC+i}, s{sEPS}')
                    for i in range(16): a(f'v_add_f32_e64 v{KACC+i}, v{KACC+i}, v{SL+i}')
                    for u in range(8): a(f'v_cvt_pk_bf16_f32 v{PKR+u}, v{KACC+2*u}, v{KACC+2*u+1}')
                else:
                    self.phi_tail(a, [KACC + 2*u for u in range(8)], [PKR + u for u in range(8)], SL)
                cst(18)
                a(f'v_and_b32 v{XR+3}, 15, v0\nv_lshrrev_b32 v{XR+4}, 4, v0')
                a(f'v_mfma_f32_16x16x32_bf16 {vr(ZA,4)}, {vr(PKR,4)}, {vr(ONES,4)}, 0')
                a(f'v_mfma_f32_16x16x32_bf16 {vr(KVA,4)}, {vr(PVR,4)}, {vr(PKR,4)}, 0')
                a(f'v_mfma_f32_16x16x32_bf16 {vr(ZA,4)}, {vr(PKR+4,4)}, {vr(ONES,4)}, {vr(ZA,4)}')
                a(f'v_mfma_f32_16x16x32_bf16 {vr(KVA,4)}, {vr(PVR+4,4)}, {vr(PKR+4,4)}, {vr(KVA,4)}')
                a(f'v_lshlrev_b32 v{XR+2}, 8, v{XR+4}\nv_lshl_add_u32 v{XR+2}, v{XR+3}, 2, v{XR+2}')
                if opt.get('kv2', 0): a(f'v_lshlrev_b32 v{XR+2}, 2, v0')
                a(f'v_lshl_add_u32 v{XR+4}, v{XR+4}, 2, v{XR+3}\nv_lshlrev_b32 v{XR+4}, 2, v{XR+4}')
                a(f'v_mov_b32 v{XR+5}, {OOB}\nv_cmp_gt_u32 vcc, 4, v{XR+3}\nv_cndmask_b32 v{XR+4}, v{XR+5}, v{XR+4}, vcc')
                for k in range(1, 4): a(f'v_cmp_eq_u32 vcc, {k}, v{XR+3}\nv_cndmask_b32 v{ZA}, v{ZA}, v{ZA+k}, vcc')
            def atomics():
                a(f's_lshl_b32 s{sT3}, s{sW}, 10\ns_add_u32 s{sT3}, s{sT3}, s{sC}\ns_lshl_b32 s{sT4}, s{sW}, 6\ns_add_u32 s{sT4}, s{sT4}, s{sC}\ns_add_u32 s{sT4}, s{sT4}, {KV_Z}')
                for k in range(4):
                    a(f'buffer_store_dword v{KVA+k}, v{XR+2}, {srd(sWS)}, s{sT3} offen offset:{k*256} sc1' if opt.get('kv2', 0) else f'buffer_atomic_add_f32 v{KVA+k}, v{XR+2}, {srd(sWS)}, s{sT3} offen offset:{k*64}')
                htok['kv'] = a(f'buffer_store_dword v{ZA}, v{XR+4}, {srd(sWS)}, s{sT4} offen sc1' if opt.get('kv2', 0) else f'buffer_atomic_add_f32 v{ZA}, v{XR+4}, {srd(sWS)}, s{sT4} offen')
            htok['atomics'] = atomics
            if ovl:
                a.flush_inject()
                lines = a.record(rest)
                per = opt.get('ovl_n', 4)
                k = 0
                for st_ in p2:
                    tl = []
                    for _ in range(2):
                        part = lines[k:k + per]; k += per
                        tl.append((lambda part=part: a('\n'.join(part))) if part else None)
                    st_['tail'] = tl
                assert k >= len(lines)
                if opt.get('atp', 0) == 0: p2[(len(lines) // (2 * per)) + 1]['post'] = [atomics]
            else:
                rest()
                a.flush_inject()
                cst(19)
                if opt.get('x_noat', 0): htok['kv'] = None
                else: atomics()
        p2[0]['hook'] = kv_epilogue
        if opt.get('kv2', 0):
            kb = 4 * (opt.get('fa_bar', 15) - 12)
            okb = p2[kb]['pre']
            p2[kb]['pre'] = lambda: (a.wait_vm(htok['kv']), okb())
        for n, s in enumerate(p2):
            s['vm'] = (lambda n=n: hl[n])
            if n in (1, 8, 15): s['hook'] = (lambda n=n: cst({1: 20, 8: 21, 15: 22}[n]))
        steps += p2
        np2 = len(steps)

        qs = steps_q(16, HACC, HCS, HSETS, np2)
        x1tok = {}
        for s in qs:
            if s['stage'] is not None:
                extra = None
                if s['stage'] == opt.get('fx_bar', 17): extra = lambda: (a.wait_vm(x1tok['st']), cst(3))
                s['pre'] = stage_pre(s['stage'], [WK16], [PAT16], extra)
        qr0, qr1 = qs[0]['reads'], qs[1]['reads']
        qs[0]['reads'] = []; qs[1]['reads'] = []; qs[0]['pre'] = None
        qs[0]['at'] = np2; qs[1]['at'] = np2
        def exchange(acc, rcv, nb, between=None):
            a(f'v_xor_b32 v{rcv}, 8192, v{RDX}')
            for g in range(4):
                a(f'ds_write_b128 v{rcv}, {vr(acc+16+4*g,4)} offset:{g*1024}')
            if between: between()
            a.wait_lg0()
            self.barC(a, nb)
            return [a(f'ds_read_b128 {vr(rcv+4*g,4)}, v{RDX} offset:{g*1024}') for g in range(4)]
        def unsplit_last(st, acc, rcv, nb, stg, natural, asets, phase, own, oth, xt):
            n0 = len(st) - 4
            pats = [PATN[0]] if natural else PATP[:2]
            def pre(o=st[n0].get('extra')):
                if o: o()
                self.barC(a, f'B{stg}')
                for k, pt in enumerate(pats):
                    a(f'v_add_u32 v{WK[k]}, {SLOT[stg]}, v{pt}\nv_xor_b32 v{WK[2+k]}, 8192, v{WK[k]}')
            st[n0]['pre'] = pre
            for i in range(4):
                s = st[n0 + i]; sb = asets[(n0 + i + phase) % 3]
                s['reads'] = []
                for u in range(2):
                    for rd in range(2):
                        if natural: s['reads'].append(f'ds_read_b64_tr_b16 {vr(sb+4*u+2*rd,2)}, v{WK[2*u]} offset:{i*2048+rd*512}')
                        else: s['reads'].append(f'ds_read_b64_tr_b16 {vr(sb+4*u+2*rd,2)}, v{WK[2*u+rd]} offset:{i*2048}')
                s['mfmas'] = [f'v_mfma_f32_32x32x16_bf16 {vr(acc,16)}, {vr(sb,4)}, {vr(own(i),4)}, {vr(acc,16)}',
                              f'v_mfma_f32_32x32x16_bf16 {vr(acc,16)}, {vr(sb+4,4)}, {vr(oth(i),4)}, {vr(acc,16)}']
            wt = {}
            def wr(g):
                if g == 0: a(f'v_xor_b32 v{rcv}, 8192, v{RDX}')
                wt[g] = a(f'ds_write_b128 v{rcv}, {vr(acc+16+4*g,4)} offset:{g*1024}')
            st[n0]['tail'] = [None, lambda: (wr(0), wr(1))]
            st[n0 + 1]['tail'] = [lambda: wr(2), lambda: wr(3)]
            def sync():
                a.wait_lg(wt[3])
                self.barC(a, nb)
                xt['tk'] = [a(f'ds_read_b128 {vr(rcv+4*g,4)}, v{RDX} offset:{g*1024}') for g in range(4)]
            st[n0 + 3]['tail'] = [sync, None]
        def p2_epilogue():
            RCV, OUT, SS = (60, 76, 84) if ovl else (180, 196, 204)
            cst(23)
            def between():
                a(f's_lshl_b32 s{sT2}, s{sJ}, 1\ns_add_u32 s{sT2}, s{sT2}, s{sHI}\ns_lshl_b32 s{sT0}, s{sT2}, 12\ns_add_u32 s{sT0}, s{sT0}, s{sA}\ns_add_u32 s{sT0}, s{sT0}, {X1_OFF}')
                a(f's_lshl_b32 s{sT2}, s{sT2}, 9\ns_lshl_b32 s{sT3}, s{sR}, 13\ns_add_u32 s{sT2}, s{sT2}, s{sT3}\ns_lshl_b32 s{sT3}, s{sTH}, 8\ns_add_u32 s{sT2}, s{sT2}, s{sT3}\ns_add_u32 s{sT2}, s{sT2}, {XS_OFF}')
                a(f'v_add_u32 v{WK16}, {SLOT[16]}, v{PAT16}')
                a(f'v_and_b32 v{SS+8}, 31, v0\nv_lshrrev_b32 v{SS+9}, 5, v0\nv_lshlrev_b32 v{SS+9}, 2, v{SS+9}\nv_lshl_add_u32 v{SS+8}, v{SS+8}, 3, v{SS+9}')
            if opt.get('us2', 0):
                between(); tk = x2['tk']
            else: tk = exchange(P2ACC, RCV, 'RB1', between)
            for b in range(2):
                a.wait_lg(tk[2*b+1])
                for u in range(4*b, 4*b+4): a(f'v_pk_add_f32 {P(P2ACC+2*u)}, {P(P2ACC+2*u)}, {P(RCV+2*u)}')
                for u in range(4*b, 4*b+4): a(f'v_cvt_pk_bf16_f32 v{OUT+u}, v{P2ACC+2*u}, v{P2ACC+2*u+1}')
                a(f'buffer_store_dwordx4 {vr(OUT+4*b,4)}, v{CELLT}, {srd(sWS)}, s{sT0} offen offset:{b*2048} sc1')
            a(f'v_pk_add_f32 {P(SS)}, {P(P2ACC)}, {P(P2ACC+2)}\nv_pk_mul_f32 {P(SS+2)}, {P(P2ACC)}, {P(P2ACC)}')
            a(f'v_pk_add_f32 {P(SS+4)}, {P(P2ACC+4)}, {P(P2ACC+6)}\nv_pk_mul_f32 {P(SS+6)}, {P(P2ACC+2)}, {P(P2ACC+2)}')
            for u in range(2, 8):
                k = 4 * (u & 1)
                a(f'v_pk_fma_f32 {P(SS+2+k)}, {P(P2ACC+2*u)}, {P(P2ACC+2*u)}, {P(SS+2+k)}')
                if u >= 4: a(f'v_pk_add_f32 {P(SS+k)}, {P(SS+k)}, {P(P2ACC+2*u)}')
            a(f'v_pk_add_f32 {P(SS)}, {P(SS)}, {P(SS+4)}\nv_pk_add_f32 {P(SS+2)}, {P(SS+2)}, {P(SS+6)}')
            a(f'v_add_f32 v{SS}, v{SS}, v{SS+1}\nv_add_f32 v{SS+2}, v{SS+2}, v{SS+3}')
            a(f'v_permlane32_swap_b32 v{SS}, v{SS+2}\nv_add_f32 v{SS}, v{SS}, v{SS+2}')
            x1tok['st'] = a(f'buffer_store_dword v{SS}, v{SS+8}, {srd(sWS)}, s{sT2} offen sc1')
            cst(2)
            for u in range(8): a(f'v_pk_add_f32 {P(RES+2*u)}, {P(RES+2*u)}, {P(P2ACC+2*u)}')
            if ovl and opt.get('atp', 0) == 1: htok['atomics']()
            if opt.get('fx_bar', 17) == 16:
                a.wait_vm(x1tok['st']); cst(3)
            self.barC(a, 'B16')
            for t in qr0: qs[0]['tok'] = a(t)
            for t in qr1: qs[1]['tok'] = a(t)
        qs[0]['hook'] = p2_epilogue
        if opt.get('us2', 0):
            unsplit_last(p2, P2ACC, 180, 'RB1', 15, True, ASETS, 0, lambda i: HF + 4 * (12 + i), lambda i: HX + 4 * i, x2)
            for n in range(12, 16): p2[n]['vm'] = (lambda n=n: hl[n + 4])
            for n in range(4): p2[2 + n]['post'] = [lambda n=n: hload(16 + n)]
        steps += qs
        nq = len(steps)

        BST = 128; A3 = [60, 68, 76]; ACA, ACB = 84, 100
        GST = 40; GT = 44; CSG = 112
        X1B, CSB, CSB2, HFB = 2, 3, 4, 5
        HP = [6, 7]
        def q_epilogue():
            TMP = 100; OUT = 116; QP = 80
            a.wait_vm(htok['kv'])
            self.barC(a, 'QE')
            for u in range(8):
                a(f'v_pk_fma_f32 {P(HACC+2*u)}, {P(HCS+2*(u&1))}, {P(QST+4*(u>>1))}, {P(HACC+2*u)} op_sel_hi:[1,0,1]')
            for u in range(8):
                a(f'v_pk_mul_f32 {P(TMP+2*u)}, {P(HACC+2*u)}, {P(QST+4*(u>>1)+2)} op_sel_hi:[1,0]')
            for u in range(8):
                a(f'v_pk_fma_f32 {P(HACC+2*u)}, {P(HACC+2*u)}, {P(QST+4*(u>>1))}, s[{sEPS}:{sEPS+1}] op_sel:[0,1,0] op_sel_hi:[1,1,1]')
            self.phi_tail(a, [HACC + 2*u for u in range(8)], [OUT + u for u in range(8)], TMP)
            a(f's_lshl_b32 s{sT0}, s{sW}, 11\ns_add_u32 s{sT0}, s{sT0}, {PQ}\nv_lshlrev_b32 v{QP}, 3, v0\nv_add_u32 v{QP}, s{sT0}, v{QP}')
            for tt in range(4): a(f'ds_write_b64 v{QP}, {vr(OUT+2*tt,2)} offset:{tt*512}')
            a(f's_lshl_b32 s{sT0}, s{sTH}, 10\nv_add_u32 v{X1B}, s{sT0}, v{LL16}')
            a(f's_lshl_b32 s{sT2}, s{sHI}, 15\nv_add_u32 v{HFB}, s{sT2}, v{X1B}')
            a(f's_and_b32 s{sT3}, s{sJ}, 1\ns_lshl_b32 s{sT4}, s{sT3}, 5')
            a(f's_lshl_b32 s{sT0}, s{sHI}, 5\ns_add_u32 s{sT0}, s{sT0}, s{sT4}\ns_lshl_b32 s{sT0}, s{sT0}, 2\ns_add_u32 s{sT0}, s{sT0}, {CS3L}')
            a(f'v_lshrrev_b32 v{QP+1}, 5, v0\nv_lshlrev_b32 v{QP+1}, 4, v{QP+1}\nv_add_u32 v{CSB}, s{sT0}, v{QP+1}')
            a(f's_cmp_eq_u32 s{sT3}, 0\ns_cselect_b32 s{sT5}, 192, 0')
            a(f's_lshl_b32 s{sT0}, s{sHI}, 4\ns_add_u32 s{sT0}, s{sT0}, s{sT5}\ns_lshl_b32 s{sT0}, s{sT0}, 2\ns_add_u32 s{sT0}, s{sT0}, {CS3L}')
            a(f'v_add_u32 v{CSB2}, s{sT0}, v{QP+1}')
            a(f's_lshl_b32 s{sT0}, s{sHI}, 5\nv_xor_b32 v{HP[0]}, s{sT0}, v{PAT3[0]}\nv_xor_b32 v{HP[1]}, s{sT0}, v{PAT3[1]}')
            a(f'v_and_b32 v{STA}, 31, v0\nv_lshlrev_b32 v{STA}, 4, v{STA}\ns_lshl_b32 s{sT0}, s{sTH}, 9\ns_add_u32 s{sT0}, s{sT0}, {X1P}\nv_add_u32 v{STA}, s{sT0}, v{STA}')
            a(f's_mul_i32 s{sT0}, s{sJ}, 14\ns_lshr_b32 s{sT4}, s{sT4}, 4\ns_lshl_b32 s{sT2}, s{sHI}, 1\ns_add_u32 s{sB}, s{sT0}, s{sT4}\ns_add_u32 s{sB}, s{sB}, s{sT2}')
            a(f's_lshl_b32 s{sB}, s{sB}, 11\ns_add_u32 s{sB}, s{sB}, s{sD}')
            a(f's_lshr_b32 s{sT5}, s{sT5}, 4\ns_add_u32 s{sC}, s{sT0}, s{sT5}\ns_add_u32 s{sC}, s{sC}, s{sHI}\ns_lshl_b32 s{sC}, s{sC}, 11\ns_add_u32 s{sC}, s{sC}, s{sD}')
            a.wait_lg0()
            self.barC(a, 'XA')

        HB = [44, 116, 52]
        def steps_p3(first, nstage, acc, pats, base, kind, phase):
            st = []
            for n in range(4 * nstage):
                stg = first + n // 4
                sb = A3[(n + phase) % 3]
                reads = []; mf = []
                for u in range(2):
                    i = 2 * n + u; s_ = i % 8
                    reads += [f'ds_read_b64_tr_b16 {vr(sb+4*u+2*rd,2)}, v{WK[rd]} offset:{s_*2048}' for rd in range(2)]
                    if kind == 'p0':
                        reads.append(f'ds_read_b128 {vr(BST+4*i,4)}, v{X1B} offset:{i*2048}'); b = BST + 4 * i
                    elif kind == 'hf' and opt.get('hfv', 1):
                        b = BST + 4 * i
                    elif kind == 'hf':
                        b = HB[(n % 3)] + 4 * u
                        reads.append(f'ds_read_b128 {vr(b,4)}, v{HFB} offset:{i*2048}')
                    else:
                        b = BST + 4 * i
                    mf.append(f'v_mfma_f32_32x32x16_bf16 {vr(acc,16)}, {vr(sb+4*u,4)}, {vr(b,4)}, {vr(acc,16) if i else 0}')
                s = dict(reads=reads, mfmas=mf, at=base + n - 2)
                if n % 4 == 0: s['pre'] = stage_pre(stg, WK[:2], pats)
                st.append(s)
            return st
        gtok = {}
        def cs_reads(csreg, csoff, ng):
            def one(g):
                gtok['cs'] = a(f'ds_read_b128 {vr(CSG+4*g,4)}, v{csreg} offset:{csoff+g*32}')
            return [lambda g=g: one(g) for g in range(ng)]
        pend_st = []
        def g_epi(acc, ng, sbase, after_first=None, cs_=None, out=None, key=None, adv=False):
            a.wait_lg(gtok['cs'])
            o = (lambda u: acc + 8*(u >> 2) + (u & 3)) if out is None else (lambda u: out + u)
            pairs = [(acc + 2*u, CSG + 2*u, GST, o(u)) for u in range(2 * ng)]
            self.gelu(a, pairs, GT, after_first)
            if cs_: cst(cs_)
            def st(b):
                gtok[key] = a(f'buffer_store_dwordx4 {vr(o(4*b),4)}, v{CELLT}, {srd(sWS)}, s{sbase} offen offset:{b*2048} sc1')
                if adv and b == ng // 2 - 1: a(f's_add_u32 s{sbase}, s{sbase}, 8192')
            for b in range(ng // 2):
                if opt.get('dst', 1): pend_st.append(lambda b=b: st(b))
                else: st(b)
        def add_stores(step0, step1):
            def pop():
                if pend_st: pend_st.pop(0)()
            step0['tail'] = [pop, pop]; step1['tail'] = [pop, None]
        def hf_send():
            t = GT
            a(f's_lshl_b32 s{sT0}, s{sW}, 11\ns_add_u32 s{sT0}, s{sT0}, {SC}\nv_add_u32 v{t}, s{sT0}, v{LL16}')
            a(f'ds_write_b128 v{t}, {vr(ACB+8,4)}')
            gtok['hfw'] = a(f'ds_write_b128 v{t}, {vr(ACB+12,4)} offset:1024')
            a(f'v_xor_b32 v{HFB}, 4096, v{t}')

        p0 = steps_p3(20, 4, ACA, PAT3, nq, 'p0', 0)
        p0[0]['at'] = nq; p0[1]['at'] = nq; p0[0]['hook'] = q_epilogue
        p0[15]['post'] = [lambda: a(f'ds_read_b128 {vr(GST,4)}, v{STA}')] + cs_reads(CSB, 0, 4)
        steps += p0; n0 = len(steps)
        hf = steps_p3(24, 2, ACB, HP, n0, 'hf', 16)
        for k in range(2):
            hf[k]['late'] = [t for t in hf[k]['reads'] if 'b128' in t]
            hf[k]['reads'] = [t for t in hf[k]['reads'] if 'b128' not in t]
        def hf_hook():
            g_epi(ACA, 4, sB, key='g0', adv=True)
            for k in range(2):
                for t in hf[k]['late']: hf[k]['tok'] = a(t)
        mark = {}
        if opt.get('hfv', 1):
            o24 = hf[0]['pre']
            hf[0]['pre'] = lambda: (a.wait_lg(p0[15]['tok']), o24())
            def hf_hook(f=hf_hook):
                f(); mark['i'] = len(a.ins)
        def hf_dup():
            body = a.ins[mark['i']:]
            del a.ins[mark['i']:]
            def sub(t):
                m = re.match(r'(v_mfma_f32_32x32x16_bf16 v\[100:115\], v\[\d+:\d+\], )v\[(\d+):(\d+)\](.*)', t)
                return f'{m.group(1)}v[{int(m.group(2))+64}:{int(m.group(3))+64}]{m.group(4)}' if m else t
            a.ins += [Ins(f's_cmp_lg_u32 s{sHI}, 0'), Ins('s_cbranch_scc1 L_hf1')] + body + [Ins('s_branch L_hf2'), Ins('L_hf1:')]
            a.ins += [Ins(sub(i.text)) for i in body] + [Ins('L_hf2:')]
        hf[0]['hook'] = hf_hook
        add_stores(hf[0], hf[1])
        steps += hf; n1 = len(steps)
        p1 = steps_p3(26, 4, ACA, PAT3, n1, 'p', 24)
        p1[0]['hook'] = (lambda: (hf_dup(), hf_send())) if opt.get('hfv', 1) else hf_send
        old = p1[4]['pre']
        p1[4]['pre'] = lambda: (a.wait_lg(gtok['hfw']), old())
        def hf_recv():
            a(f'ds_read_b128 {vr(ACB+8,4)}, v{HFB}')
            gtok['hfr'] = a(f'ds_read_b128 {vr(ACB+12,4)}, v{HFB} offset:1024')
        def hf_add(k):
            a.wait_lg(gtok['hfr'])
            for u in range(4*k, 4*k+4): a(f'v_add_f32_e64 v{ACB+u}, v{ACB+u}, v{ACB+8+u}')
        p1[8]['post'] = [hf_recv]
        p1[11]['post'] = [lambda: hf_add(0)]
        p1[12]['post'] = [lambda: hf_add(1)]
        p1[15]['post'] = cs_reads(CSB, 256, 4)
        steps += p1; n2 = len(steps)
        p2_ = steps_p3(30, 4, ACA, PAT3, n2, 'p', 40)
        def p1_epilogue():
            cst(8)
            g_epi(ACA, 4, sB, lambda: [f() for f in cs_reads(CSB2, 0, 2)], 9, out=120, key='g1', adv=True)
            cst(10)
            g_epi(ACB, 2, sC, None, 11, key='g1')
            cst(12)
        p2_[0]['hook'] = p1_epilogue
        add_stores(p2_[0], p2_[1])
        p2_[2 if opt.get('sc10', 1) else 15]['post'] = cs_reads(CSB, 512, 4)
        p2_[1]['hook'] = lambda: cst(13)
        p2_[2]['hook'] = lambda: cst(14)
        p2_[3]['hook'] = lambda: cst(15)
        steps += p2_; n3 = len(steps)

        P4ACC = 84; FR = 128
        p4 = []
        fl = {}
        def fload(n):
            kind, sg = STAGES[min(34 + n // 4, 51)]; i = n % 4
            if n == 72:
                d = 8192 if kind == 'wo' else 32768
                a(f's_lshl_b32 s{sT0}, s{sHI}, 1\ns_sub_u32 s{sT0}, 1, s{sT0}\ns_mul_i32 s{sT0}, s{sT0}, {d}\ns_add_u32 s{sI0}, s{sI0}, s{sT0}\ns_sub_u32 s{sI0}, s{sI0}, 4096')
            elif i % 2 == 0:
                if i: a(f's_add_u32 s{sI0}, s{sI0}, 4096')
                elif kind == 'wo': a(f's_add_u32 s{sI0}, s{sT5}, s{sKC+sg}')
                elif kind == 'gh': a(f's_add_u32 s{sI0}, s{sRG}, {sg}\ns_and_b32 s{sI0}, s{sI0}, 1\ns_mul_i32 s{sI0}, s{sI0}, {896*128}\ns_add_u32 s{sI0}, s{sI0}, s{sT4}')
                else:
                    a(f's_add_u32 s{sI0}, s{sD}, s{sKG+sg}')
                    if kind != 'g0': a(f's_add_u32 s{sI0}, s{sI0}, {g_rows(kind, 0)[0]*128}')
            if opt.get('x_skip', 0) and kind != 'wo' and n % 4 >= 4 - opt['x_skip'] and n >= 4:
                fl[n] = fl[n - 1]; return
            fl[n] = a(f'buffer_load_dwordx4 {vr(FR+4*(n%32),4)}, v{CELLT}, {srd(sWS)}, s{sI0} offen offset:{(i&1)*2048} sc1')
        firsts = {}
        for first in range(34, NST):
            kind, sg = STAGES[first]
            if sg: continue
            cnt = 2 if kind == 'gh' else 4; nat = kind == 'wo'
            k0 = 4 * (first - 34); firsts[k0] = {'g0': FG0, 'g1': FG1, 'gh': FG1, 'wo': FO, 'g2': FG2}[kind]
            p4 += steps_ks(first, cnt, PATN if nat else PATP, nat, P4ACC, lambda n, k0=k0: FR + 4 * ((n + k0) % 32), A3, n3 + k0,
                           setphase=56 + k0, init=(first == 34), c_init=RES if first == 34 else None)
        NG = opt.get('ng', 10); NG0 = opt.get('ng0', 8)
        def p4_bases():
            a(f's_lshl_b32 s{sT0}, s{sHI}, 13\ns_add_u32 s{sT5}, s{sT0}, s{sA}\ns_add_u32 s{sT5}, s{sT5}, {O_OFF}')
            a(f's_mul_i32 s{sT4}, s{sHI}, {448*128}\ns_add_u32 s{sT4}, s{sT4}, s{sD}\ns_add_u32 s{sT4}, s{sT4}, {192*128}\ns_lshl_b32 s{sT0}, s{sHI}, 15\ns_add_u32 s{sD}, s{sD}, s{sT0}')
            for k in range(4): a(f's_add_u32 s{sT0}, s{sRG}, {k}\ns_and_b32 s{sT0}, s{sT0}, 3\ns_mul_i32 s{sKG+k}, s{sT0}, {448*128}\ns_lshl_b32 s{sKC+k}, s{sT0}, 14')
        EG = opt.get('eg', 0)
        if EG:
            k1 = opt.get('eg_step', 3)
            p2_[k1 - 1]['post'] = [p4_bases]
            for n in range(EG):
                st_ = p2_[min(k1 + n // opt.get('eg_rate', 2), 15)]
                assert n < 2 * min(k1 + n // opt.get('eg_rate', 2), 15)
                st_['post'] = st_.get('post', []) + [lambda n=n: fload(n)]
            NG0 = max(NG0, EG)
        def p3_last_epilogue():
            if not EG: p4_bases()
            a.inject([lambda n=n: fload(n) for n in range(EG, NG0)], opt.get('fl_every', 12))
            g_epi(ACA, 4, sB, out=116, key='g2')
            a.flush_inject()
            cst(6)
        p4[0]['hook'] = p3_last_epilogue
        add_stores(p4[0], p4[1])
        nxt = NG0
        self.need = {firsts[k]: 34 for k in firsts if 0 < k < NG0}
        for n, s in enumerate(p4):
            s['vm'] = (lambda n=n: fl[n + 4 if (n >= 68 and opt.get('us4', 1)) else n])
            post = []
            while nxt < (76 if opt.get('us4', 1) else 72) and nxt < n + 1 + NG + (4 if nxt >= 72 else 0) and len(post) < 2:
                if nxt in firsts: self.need.setdefault(firsts[nxt], 34 + (n + 2) // 4)
                post.append(lambda m=nxt: fload(m)); nxt += 1
            s['post'] = post
        def add_wait(step, key):
            o = step['pre']
            step['pre'] = lambda: (a.wait_vm(gtok[key]), o())
        for b_, nx, pv in ((30, p2_[0], p1[15]), (34, p4[0], p2_[15])):
            if str(b_) in str(opt.get('erel', '24.30.34')).split('.'):
                nx['pre'] = (lambda o=nx['pre'], pv=pv: (a.wait_lg(pv['tok']), o()))
        add_wait(p1[4 * (opt.get('fg0_bar', 27) - 26)], 'g0'); add_wait(p2_[12] if opt.get('fg1_bar', 34) == 33 else p4[4 * (opt.get('fg1_bar', 34) - 34)], 'g1'); add_wait(p4[4 * (opt.get('fg2_bar', 37) - 34)], 'g2')
        x4 = {}
        if opt.get('us4', 1):
            kind51 = STAGES[51][0]
            unsplit_last(p4, P4ACC, 40, 'RB2', 51, kind51 == 'wo', A3, 56, lambda i: FR + 4 * ((68 + i) % 32), lambda i: FR + 4 * ((72 + i) % 32), x4)
        self.x4 = x4
        steps += p4

        if opt.get('cprio', 2): a(f's_setprio {opt.get("cprio", 2)}')
        self.run_steps(a, steps)
        RCV = 128; OUT = 144; VO = 160
        def between():
            a(f's_lshl_b32 s{sT0}, s{sTH}, 5\nv_and_b32 v{VO}, 31, v0\nv_add_u32 v{VO}, s{sT0}, v{VO}\nv_lshlrev_b32 v{VO}, 10, v{VO}')
            a(f'v_lshrrev_b32 v{VO+1}, 5, v0\nv_lshl_add_u32 v{VO}, v{VO+1}, 4, v{VO}')
            a(f's_lshl_b32 s{sT0}, s{sJ}, 1\ns_add_u32 s{sT0}, s{sT0}, s{sHI}\ns_lshl_b32 s{sT0}, s{sT0}, 6\ns_add_u32 s{sT0}, s{sT0}, s{sA}')
        if opt.get('us4', 1):
            RCV = 40; between(); tk = self.x4['tk']
        else: tk = exchange(P4ACC, RCV, 'RB2', between)
        for b in range(2):
            a.wait_lg(tk[2*b+1])
            for u in range(4*b, 4*b+4): a(f'v_pk_add_f32 {P(P4ACC+2*u)}, {P(P4ACC+2*u)}, {P(RCV+2*u)}')
            for u in range(4*b, 4*b+4): a(f'v_cvt_pk_bf16_f32 v{OUT+u}, v{P4ACC+2*u}, v{P4ACC+2*u+1}')
            a(f'v_permlane32_swap_b32 v{OUT+4*b}, v{OUT+4*b+2}\nv_permlane32_swap_b32 v{OUT+4*b+1}, v{OUT+4*b+3}')
            a(f'buffer_store_dwordx4 {vr(OUT+4*b,4)}, v{VO}, {srd(sOUT)}, s{sT0} offen offset:{b*32} {opt.get("outflag", "")}')
        if opt.get('padto'):
            a(f'L_pad:\ns_memrealtime s[{sTSP}:{sTSP+1}]\ns_waitcnt lgkmcnt(0)\ns_sub_u32 s{sT0}, s{sTSP}, s26\ns_cmp_lt_u32 s{sT0}, {opt["padto"]}\ns_cbranch_scc1 L_pad')
        if opt.get('prof'):
            a(f's_memrealtime s[{sTSP}:{sTSP+1}]\ns_memtime s[98:99]\ns_waitcnt lgkmcnt(0)\ns_sub_u32 s98, s98, s90')
            a(f's_lshl_b32 s{sT0}, s2, 3\ns_add_u32 s{sT0}, s{sT0}, s{sW}\ns_lshl_b32 s{sT0}, s{sT0}, 8\ns_add_u32 s{sT0}, s{sT0}, {TS_OFF}')
            a(f'v_mov_b32 v2, s26\nv_mov_b32 v3, s{sTSP}\nv_mov_b32 v4, s98\nv_mov_b32 v5, 0\nv_mov_b32 v6, 0\ns_mov_b64 exec, 1')
            a(f'buffer_store_dwordx4 v[2:5], v6, {srd(sWS)}, s{sT0} offen')
            for k in range(8 if opt.get('prof') != 3 else 0): a(f'v_mov_b32 v7, s{4+2*k}\nbuffer_store_dword v7, v6, {srd(sWS)}, s{sT0} offen offset:{16+4*k}')
        a('s_endpgm')

    def helper(self, a):
        opt = self.opt
        prof = opt.get('prof') if opt.get('prof') != 3 else None
        E = lambda name, d: opt.get(name, d)
        BARS = [f'B{i}' for i in range(16)] + ['RB1'] + [f'B{i}' for i in range(16, 20)] + ['QE', 'XA'] + [f'B{i}' for i in range(20, NST)]
        ODL = f'B{self.need[FO]}'
        IDX = {n: i for i, n in enumerate(BARS)}
        T = [40 + i for i in range(16)]
        V1K, VQ, VW3, VHF = 4, 8, 12, 16
        row, pos, sw = T[0], T[1], T[2]
        def mk(dst, RS, sbase):
            a(f'v_mul_u32_u24 v{T[5]}, {RS}, v{row}\nv_add_u32 v{T[5]}, s{sbase}, v{T[5]}')
            for i in range(4):
                a(f'v_add_u32 v{dst+i}, v{T[5]}, v{T[3+(i&1)]}')
                if i: a(f'v_add_u32 v{dst+i}, {i*(8*RS-1024)}, v{dst+i}')
        stok = {}
        two = E('two', 0)
        grp = [[0, 1] if two else [0, 1, 2, 3]]
        def issue(st, pace=True):
            kind, sg = STAGES[st]
            pc = E('pace', 44) // (2 if two else 1)
            if pace and len(a.vm) > pc: a.wait_vm(a.vm[-pc - 1])
            s, v = src_of(st)
            for g in grp[0]:
                a(f's_mov_b32 m0, {SLOT[st] + g*4096}')
                soff(st, g, g == grp[0][0])
                for i in range(4):
                    stok[st] = a(f'buffer_load_dwordx4 v{v+i}, {srd(s)}, s{sT2} offen offset:{i*1024} lds')
        def src_of(st):
            kind, sg = STAGES[st]
            return {'w1': (sW1, V1K), 'w2': (sW2, V1K), 'wo': (sWO, V1K), 'wq': (sQKV, VQ), 'kv': (sQKV, VQ), 'p0': (sW3, VW3),
                    'p1': (sW3, VW3), 'p2': (sW3, VW3), 'hf': (sW3, VHF + 4 * sg)}.get(kind, (sW4, V1K))
        def soff(st, g, first=None):
            kind, sg = STAGES[st]
            rot = E('rot', 1)
            RS = 3072 if kind in ('wq', 'kv') else (3584 if kind in ('p0', 'p1', 'p2', 'hf') else 1024)
            if first is None: first = g == 0
            if kind == 'gh':
                if first: a(f's_add_u32 s{sI0}, s{sRG}, {sg}\ns_and_b32 s{sI0}, s{sI0}, 1\ns_mul_i32 s{sI0}, s{sI0}, {896*1024}')
                a(f's_add_u32 s{sT2}, s{sI0}, {(g_rows(kind, 0)[g >> 1] + 32*(g & 1))*1024}')
            elif kind[0] == 'g': a(f's_add_u32 s{sT2}, s{sKG+sg}, {(g_rows(kind, 0)[g >> 1] + 32*(g & 1))*1024}')
            elif kind == 'wo':
                if first: a(f's_add_u32 s{sI0}, s{sRG}, {sg}\ns_and_b32 s{sI0}, s{sI0}, 3\ns_lshl_b32 s{sI0}, s{sI0}, 17')
                a(f's_add_u32 s{sT2}, s{sI0}, {g*32*RS}')
            elif kind == 'w1' or (rot and kind == 'w2'): a(f's_add_u32 s{sT2}, s{sK1+sg}, {g*32*RS}')
            elif kind == 'w2': a(f's_mov_b32 s{sT2}, {sg*131072 + g*32*RS}')
            elif kind == 'wq': a(f's_add_u32 s{sT2}, s{sK3+sg}, {g*32*RS}')
            elif kind == 'kv': a(f's_add_u32 s{sT2}, s{sK3+(sg>>1)}, {((sg&1)*64 + (g&1)*32)*RS + 1024*(1 + (g>>1))}')
            elif kind == 'hf': a(f's_mov_b32 s{sT2}, {g*32*RS}')
            else: a(f's_add_u32 s{sT2}, s{sK5+sg}, {g*32*RS + dict(p0=0, p1=128, p2=256)[kind]}')
        VAR = 61
        def arrive(idx):
            if prof == 2:
                a(f's_memtime s[0:1]\ns_waitcnt lgkmcnt(0)')
                a.lg = []
                if isinstance(idx, int): a(f'v_writelane_b32 v{VAR}, s0, {idx + 1}')
                else: a(f's_add_u32 s1, s{idx}, 1\ns_mov_b32 m0, s1\nv_writelane_b32 v{VAR}, s0, m0')
        def dump_arrive(slot):
            if prof:
                a(f's_lshl_b32 s{sT0}, s2, 2\ns_add_u32 s{sT0}, s{sT0}, s{sW}\ns_lshl_b32 s{sT0}, s{sT0}, 8\ns_add_u32 s{sT0}, s{sT0}, {TS_OFF + 0x80000}')
                a(f'v_lshlrev_b32 v2, 2, v0\nbuffer_store_dword v{VAR}, v2, {srd(sWS)}, s{sT0} offen')
        if prof: a(f'v_mov_b32 v{VAR}, 0')
        a(f's_cmp_eq_u32 s{sW}, 1\ns_cbranch_scc1 L_back\ns_cmp_eq_u32 s{sW}, 2\ns_cbranch_scc1 L_back')
        if not two: a(f's_cmp_eq_u32 s{sW}, 0\ns_cbranch_scc1 L_sync')
        a(f'v_lshrrev_b32 v{row}, 3, v0\nv_and_b32 v{pos}, 7, v0\nv_lshrrev_b32 v{sw}, 4, v0\nv_and_b32 v{sw}, 1, v{sw}\nv_lshlrev_b32 v{sw}, 2, v{sw}')
        a(f'v_xor_b32 v{pos}, v{pos}, v{sw}')
        a(f'v_lshlrev_b32 v{T[3]}, 4, v{pos}\nv_xor_b32 v{T[4]}, 32, v{T[3]}')
        a(f's_lshl_b32 s{sT0}, s{sJ}, 7')
        mk(V1K, 1024, sT0)
        a(f's_mov_b32 s{sW1+2}, {512*1024}\ns_mov_b32 s{sW1+3}, 0x20000')
        for sg in range(4):
            a(f's_add_u32 s{sT3}, s{sROT}, {sg}\ns_and_b32 s{sT3}, s{sT3}, 3\ns_lshl_b32 s{sK1+sg}, s{sT3}, 17\ns_mul_i32 s{sK3+sg}, s{sT3}, {128*3072}')
        a('s_waitcnt lgkmcnt(0)')
        a(f's_mov_b32 s{sW1}, s12\ns_and_b32 s{sW1+1}, s13, 0xffff')
        if two: a(f's_cmp_eq_u32 s{sW}, 0\ns_cbranch_scc1 L_sync0')
        def first_issue():
            issue(0); issue(1)
            if E('st', 0): issue(2, False)
        first_issue()
        a('s_branch L_loader')
        vmL = list(a.vm); stokL = dict(stok); a.vm = []
        if two:
            a('L_sync0:')
            grp[0] = [2, 3]; first_issue()
            a('s_branch L_sync')
        vmS = list(a.vm); stokS = dict(stok); a.vm = []
        VX1 = [24, 25]; x1tok = {}
        def loader_setup():
            self.srds(a, skipx=True, skip1=True)
            mk(VQ, 3072, sT0)
            a(f's_mul_i32 s{sT0}, s{sJ}, 448\ns_and_b32 s{sT4}, s{sJ}, 1\ns_lshl_b32 s{sT2}, s{sT4}, 6\ns_add_u32 s{sT2}, s{sT2}, s{sT0}')
            mk(VW3, 3584, sT2)
            a(f's_cmp_eq_u32 s{sT4}, 0\ns_cselect_b32 s{sT2}, 384, 0\ns_add_u32 s{sT2}, s{sT2}, s{sT0}')
            a(f'v_and_b32 v{T[3]}, 63, v{T[3]}\nv_and_b32 v{T[4]}, 63, v{T[4]}\nv_lshrrev_b32 v{T[6]}, 2, v{pos}')
            mk(VHF, 3584, sT2)
            for sg in range(4):
                if E('rot', 1): a(f's_add_u32 s{sT3}, s{sROT}, {sg}\ns_and_b32 s{sT3}, s{sT3}, 3')
                else: a(f's_mov_b32 s{sT3}, {sg}')
                a(f's_mul_i32 s{sK5+sg}, s{sT3}, {128*3584}\ns_lshl_b32 s{sKX+sg}, s{sT3}, 14')
            for k in range(4): a(f's_add_u32 s{sT3}, s{sRG}, {k}\ns_and_b32 s{sT3}, s{sT3}, 3\ns_mul_i32 s{sKG+k}, s{sT3}, {448*1024}')
            for sg in (1, 0):
                a(f's_sub_u32 s{sT3}, s{sK5+sg+2}, s{sK5+sg}\nv_mul_lo_u32 v{T[5]}, v{T[6]}, s{sT3}\nv_add_u32 v{T[5]}, s{sK5+sg}, v{T[5]}')
                for i in range(4): a(f'v_add_u32 v{VHF+4*sg+i}, v{VHF+i}, v{T[5]}')
            a(f'v_lshrrev_b32 v{T[0]}, 5, v0\nv_and_b32 v{T[1]}, 31, v0\nv_lshlrev_b32 v{T[0]}, 10, v{T[0]}\nv_lshl_add_u32 v{T[0]}, v{T[1]}, 4, v{T[0]}')
            a(f's_lshl_b32 s{sT0}, s{sR}, 16\ns_add_u32 s{sT0}, s{sT0}, {X1_OFF}')
            a(f'v_add_u32 v{VX1[0]}, s{sT0}, v{T[0]}\nv_subrev_u32 v{VX1[1]}, 512, v{VX1[0]}')
        def x1_chunk(sg):
            for g in grp[0]:
                a(f's_mov_b32 m0, {sg*16384 + g*4096}\ns_add_u32 s{sT2}, s{sKX+sg}, {g*4096}')
                for u in range(4):
                    x1tok[sg] = a(f'buffer_load_dwordx4 v{VX1[u&1]}, {srd(sWS)}, s{sT2} offen offset:{u*1024} sc1 lds')
        def load_before(n):
            b = int(n[1:]) if n[0] == 'B' else None
            if b is not None:
                a.wait_vm(stok[b])
                if b in (20, 21, 22, 23): a.wait_vm(x1tok[b - 20])
        def load_after(n):
            b = int(n[1:]) if n[0] == 'B' else None
            if n == 'XA':
                for c in range(4): x1_chunk(c)
            if E('st', 0):
                if b == 0: issue(3, False)
                if b == 1: issue(4)
            else:
                if b == 0: issue(2); issue(3)
                if b == 1: issue(4)
            if b in (2, 3): stats_after(b)
            for st in ISSUE.get(b if b is not None else n, []): issue(st)
            if b in (0, 1): stats_after(b)
        a('L_back:')
        sSW = sHI
        a(f'v_lshrrev_b32 v2, 4, v0\nv_and_b32 v3, 15, v0\nv_xor_b32 v3, v3, v2\nv_lshlrev_b32 v3, 4, v3')
        a(f's_lshl_b32 s{sT0}, s{sR}, 1\ns_add_u32 s{sT0}, s{sT0}, s{sSW}\ns_lshl_b32 s{sT0}, s{sT0}, 15')
        a(f'v_lshl_add_u32 v2, v2, 10, s{sT0}\nv_add_u32 v2, v2, v3')
        for u in range(1, 4): a(f'v_xor_b32 v{2+u}, {u<<6}, v2\nv_add_u32 v{2+u}, {u*3072}, v{2+u}')
        a(f's_lshl_b32 s{sI0}, s{sSW}, 13\ns_mov_b32 s{sB}, s{sROT}')
        a('s_waitcnt lgkmcnt(0)')
        a(f's_mov_b32 s{sX}, s4\ns_and_b32 s{sX+1}, s5, 0xffff')
        xtok = {}
        def x_chunk(sg):
            for half in range(2):
                a(f's_add_u32 m0, s{sI0}, {sg*16384 + half*4096}\ns_lshl_b32 s{sT2}, s{sB}, 8')
                if half: a(f's_add_u32 s{sT2}, s{sT2}, 16384')
                for u in range(4):
                    xtok[sg] = a(f'buffer_load_dwordx4 v{2+u}, {srd(sX)}, s{sT2} offen offset:{u*1024} lds')
            if sg < 3: a(f's_add_u32 s{sB}, s{sB}, 1\ns_and_b32 s{sB}, s{sB}, 3')
        x_chunk(0)
        if E('xdel', 1): self.srds(a, skipx=True)
        x_chunk(1)
        if not E('xdel', 1): self.srds(a, skipx=True)
        if E('st', 0): x_chunk(2)

        F = 64; SSUM, SGR, HONE = 80, 84, 88
        q, i16 = T[8], T[9]
        SW1, SW2 = 92, 93
        def stats_setup():
            a(f'v_lshrrev_b32 v{q}, 4, v0\nv_and_b32 v{i16}, 15, v0\ns_lshl_b32 s{sT0}, s{sW}, 12')
            for m in range(4):
                a(f'v_or_b32 v{T[0]}, {4*m}, v{q}\nv_xor_b32 v{T[0]}, v{T[0]}, v{i16}\nv_lshlrev_b32 v{T[0]}, 4, v{T[0]}')
                a(f'v_lshl_add_u32 v{T[0]}, v{i16}, 8, v{T[0]}\nv_add_u32 v{T[10+m]}, s{sT0}, v{T[0]}')
            for i in range(4): a(f'v_mov_b32 v{HONE+i}, s{sONE}')
            a(f'v_and_b32 v{T[0]}, 3, v0\nv_lshrrev_b32 v{T[2]}, 2, v{i16}')
            a(f'v_cmp_eq_u32 s[14:15], 1, v{T[0]}\nv_cmp_eq_u32 s[16:17], 2, v{T[0]}\nv_cmp_eq_u32 s[12:13], 3, v{T[0]}\nv_cmp_eq_u32 s[10:11], v{T[2]}, v{q}')
            a(f's_lshl_b32 s{sT0}, s{sW}, 4\nv_add_u32 v{SW1}, s{sT0}, v{i16}\nv_lshlrev_b32 v{SW2}, 4, v{SW1}\nv_lshlrev_b32 v{SW1}, 2, v{SW1}')
            a(f'v_add_u32 v{SW2}, {S1}, v{SW2}\nv_add_u32 v{SW1}, {NMU}, v{SW1}')
        stk = {}
        def stats_reads(sgs):
            for sg in sgs:
                for m in range(4): stk[(sg, m)] = a(f'ds_read_b128 {vr((F if (sg & 1) == 0 else 96) + 4*m, 4)}, v{T[10+m]} offset:{sg*16384}')
        def stats_mfma(sgs):
            a('s_setprio 3')
            for sg in sgs:
                for m in range(4):
                    a.wait_lg(stk[(sg, m)])
                    z = sg == 0 and m == 0
                    f = (F if (sg & 1) == 0 else 96) + 4 * m
                    a(f'v_mfma_f32_16x16x32_bf16 {vr(SGR,4)}, {vr(f,4)}, {vr(f,4)}, {0 if z else vr(SGR,4)}')
                    a(f'v_mfma_f32_16x16x32_bf16 {vr(SSUM,4)}, {vr(HONE,4)}, {vr(f,4)}, {0 if z else vr(SSUM,4)}')
            a('s_setprio 0')
        def stats_chunks(sgs):
            stats_reads(sgs); stats_mfma(sgs)
        def stats_final():
            s1, s2 = 36, 37
            a('s_setprio 3')
            R = 64
            a(f'v_cndmask_b32 v{s2}, v{SGR}, v{SGR+1}, s[14:15]\nv_mul_f32 v{R}, {f2u(-1/512):#x}, v{SSUM}\nv_cndmask_b32 v{s2}, v{s2}, v{SGR+2}, s[16:17]')
            a(f'v_mov_b32 v{R+7}, 0\nv_cndmask_b32 v{s2}, v{s2}, v{SGR+3}, s[12:13]\nv_mul_f32 v{s1}, v{R}, v{R}\nv_mov_b32 v{R+4}, v{R}')
            a(f's_mov_b32 s{sT0}, {f2u(1/512):#x}\nv_fma_f32 v{s2}, v{s2}, s{sT0}, -v{s1}\nv_max_f32 v{s2}, 0, v{s2}\nv_add_f32 v{s1}, {f2u(1e-5):#x}, v{s2}')
            a(f'v_rsq_f32 v{R+5}, v{s1}\nv_rcp_f32 v{s1}, v{s1}\ns_mov_b32 s{sT0}, {f2u(1e-5):#x}')
            a(f'v_mul_f32 v{R+6}, {f2u(LOG2E):#x}, v{R+5}\nv_fma_f32 v{s1}, v{s1}, v{s2}, s{sT0}')
            a(f'v_rsq_f32 v{s1}, v{s1}\nv_mul_f32 v{s1}, v{s1}, v{R+5}')
            a(f'v_rcp_f32 v{R+3}, v{s1}\nv_mul_f32 v{s2}, v{s1}, v{s1}\nv_mul_f32 v{R+1}, {f2u(GC0):#x}, v{s1}\nv_mul_f32 v{s2}, {f2u(0.044715):#x}, v{s2}\nv_mul_f32 v{R+2}, v{R+1}, v{s2}')
            a('s_mov_b64 exec, s[10:11]')
            a(f'ds_write_b128 v{SW2}, {vr(R,4)}\nds_write_b128 v{SW2}, {vr(R+4,4)} offset:1024')
            a(f'ds_write_b32 v{SW1}, v{R}\nds_write_b32 v{SW1}, v{R+5} offset:256\nds_write_b32 v{SW1}, v{R+6} offset:512')
            a('s_mov_b64 exec, -1\ns_setprio 0')
            a.wait_lg0()
        def stats_after(b):
            if b in (0, 1): stats_chunks([b])
            if E('st', 0) == 1:
                if b == 2: stats_chunks([2])
                if b == 3: stats_chunks([3]); stats_final()
            elif E('stsp', 1):
                if b == 2: stats_reads([2, 3]); stats_mfma([2])
                if b == 3: stats_mfma([3]); stats_final()
            else:
                if b == 2: stats_chunks([2, 3])
                if b == 3: stats_final()

        VFL, VFP, VF3, VONE, VCT, CELLV, VZA, VCK, VFO = 26, 27, 28, 29, 30, 32, 34, 35, 33
        OB = T[14]
        pf = opt.get('pf', 1); t3 = opt.get('t3', 0)
        nlab = [0]
        def lab(p):
            nlab[0] += 1
            return f'L_{p}{nlab[0]}'
        def common_regs():
            a(f'v_mov_b32 v{OB}, {OOB}\nv_lshlrev_b32 v{T[15]}, 7, v0\nv_mov_b32 v{VONE}, 1')
            a(f'v_lshrrev_b32 v{T[0]}, 5, v0\nv_and_b32 v{T[1]}, 31, v0\nv_lshlrev_b32 v{CELLV}, 10, v{T[0]}\nv_lshl_add_u32 v{CELLV}, v{T[1]}, 4, v{CELLV}')
            a(f's_lshl_b32 s{sC}, s{sR}, 16\ns_lshl_b32 s{sD}, s{sJ}, 18\ns_add_u32 s{sD}, s{sD}, {KV_OFF}\ns_lshl_b32 s{sA}, s{sJ}, 12\ns_add_u32 s{sA}, s{sA}, {CF_OFF}')
        def one_lane(text):
            a('s_mov_b64 exec, 1'); a(text); a('s_mov_b64 exec, -1')
        def count(off, idx):
            a(f's_lshr_b32 s{sT0}, s{idx}, 3\ns_lshl_b32 s{sT0}, s{sT0}, 7\ns_and_b32 s{sT2}, s{idx}, 7\ns_lshl_b32 s{sT2}, s{sT2}, 2\ns_add_u32 s{sT0}, s{sT0}, s{sT2}')
            a(f's_add_u32 s{sT0}, s{sT0}, s{sA}\ns_add_u32 s{sT0}, s{sT0}, {off}\nv_mov_b32 v{T[7]}, 0')
            one_lane(f'buffer_store_dword v{VONE}, v{T[7]}, {srd(sWS)}, s{sT0} offen sc1')

        sBC = sCNT; sSP = sBG
        common_regs()
        def touch(s, lines, dst, pitch=None, off=0):
            n = lines // 2
            a(f's_lshl_b32 s{sT0}, s2, 1\ns_add_u32 s{sT0}, s{sT0}, s{sSW}\ns_mul_i32 s{sT0}, s{sT0}, {pitch or n*128}')
            if off: a(f's_add_u32 s{sT0}, s{sT0}, {off}')
            a(f'v_cmp_gt_u32 vcc, {n}, v0\nv_cndmask_b32 v{T[7]}, v{OB}, v{T[15]}, vcc')
            return a(f'buffer_load_dword v{dst}, v{T[7]}, {srd(s)}, s{sT0} offen')
        CSR = 128; CA = 160
        def cs_loads(y=None):
            a(f's_lshr_b32 s{sT0}, s{sR}, 1\ns_mul_i32 s{sT0}, s{sT0}, {32*3584}\ns_mul_i32 s{sT2}, s{sJ}, 448\ns_add_u32 s{sT0}, s{sT0}, s{sT2}')
            a(f's_and_b32 s{sT2}, s{sR}, 1\ns_lshl_b32 s{sT2}, s{sT2}, 1\ns_add_u32 s{sT2}, s{sT2}, s{sSW}\ns_mul_i32 s{sT2}, s{sT2}, 112\ns_add_u32 s{sT0}, s{sT0}, s{sT2}')
            a(f'v_lshrrev_b32 v{T[6]}, 5, v0\nv_mul_u32_u24 v{T[6]}, {16*3584}, v{T[6]}\nv_and_b32 v{T[5]}, 31, v0\nv_lshl_add_u32 v{T[6]}, v{T[5]}, 2, v{T[6]}')
            a(f'v_cmp_gt_u32 vcc, 28, v{T[5]}\nv_cndmask_b32 v{T[6]}, v{OB}, v{T[6]}, vcc')
            for i in range(16):
                a(f'buffer_load_dword v{CSR+i}, v{T[6]}, {srd(sW3)}, s{sT0} offen')
                if i < 15: a(f's_add_u32 s{sT0}, s{sT0}, 3584')
                if y and i in (5, 10): y()
        if pf: touch(sQKV, 32, 6, 3072, 1024)
        if E('cs0', 0): cs_loads()
        stats_setup()
        barsD = []
        for b in range(5):
            if b == 0: a.wait_vm(xtok[0])
            if b == 1: a.wait_vm(xtok[1])
            if b == 2: a.wait_vm(xtok[2 if E('st', 0) == 1 else 3])
            if b == 3: a.wait_vm(xtok[3])
            arrive(b); barsD.append(f'B{b}'); a('s_barrier')
            if b == 0:
                if not E('st', 0): x_chunk(2)
                x_chunk(3)
            stats_after(b)
            if b == E('e_pf', 2):
                if pf: touch(sW2, 16, 7); touch(sQKV, 16, 7, 3072)
                if pf and E('w3pf', 0) == 2: touch(sW3, 56, 7)
        a(f's_mov_b32 s{sBC}, 5')
        LONG = sum(1 << (IDX[n] + 1) for n in E('long', 'B4.B12.QE.XA.B24.B30.B34').split('.'))
        a(f's_mov_b32 s4, {LONG & 0xffffffff}\ns_mov_b32 s5, {LONG >> 32}')
        VDS = 39; nds = [0]
        if prof: a(f'v_mov_b32 v{VDS}, 0')
        def dst(name):
            if prof:
                a(f's_memrealtime s[0:1]\ns_waitcnt lgkmcnt(0)\nv_writelane_b32 v{VDS}, s0, {nds[0]}')
                self.dnames.append(name); nds[0] += 1
        def yield_(dl):
            L = lab('y')
            a(f's_cmp_ge_u32 s{sBC}, {IDX[dl]}\ns_cbranch_scc1 {L}')
            arrive(str(sBC))
            a(f's_barrier\ns_add_u32 s{sBC}, s{sBC}, 1\n{L}:')
        def earliest(name):
            L = lab('e')
            a(f'{L}:\ns_cmp_gt_u32 s{sBC}, {IDX[name]}\ns_cbranch_scc1 {L}d')
            arrive(str(sBC))
            a(f's_barrier\ns_add_u32 s{sBC}, s{sBC}, 1\ns_branch {L}\n{L}d:')
        def nbwait(dl, lg=False):
            L = lab('w')
            a(f'{L}:\ns_bitcmp1_b64 s[4:5], s{sBC}\ns_cselect_b32 s{sSP}, {E("nspin", 6)}, 1')
            a(f'{L}s:\ns_getreg_b32 s{sT0}, hwreg(HW_REG_IB_STS)\ns_and_b32 s{sT0}, s{sT0}, {0xf00 if lg else 0xc0000f}\ns_cbranch_scc0 {L}d')
            a(f's_sub_u32 s{sSP}, s{sSP}, 1\ns_cmp_lg_u32 s{sSP}, 0\ns_cbranch_scc1 {L}s')
            a(f's_cmp_ge_u32 s{sBC}, {IDX[dl]}\ns_cbranch_scc1 {L}d')
            if not lg: arrive(str(sBC))
            a(f's_barrier\ns_add_u32 s{sBC}, s{sBC}, 1\ns_branch {L}')
            a(f'{L}d:\ns_waitcnt {"lgkmcnt" if lg else "vmcnt"}(0)')
        def spin(off, n, dl):
            L = lab('c')
            a(f'v_and_b32 v{VCT}, {n-1}, v0\nv_lshrrev_b32 v{T[7]}, 3, v{VCT}\nv_and_b32 v{VCT}, 7, v{VCT}\nv_lshlrev_b32 v{VCT}, 2, v{VCT}\nv_lshl_add_u32 v{VCT}, v{T[7]}, 7, v{VCT}')
            a(f's_mov_b32 s6, {opt.get("spin", 200000)}\ns_add_u32 s9, s{sA}, {off}')
            a(f'{L}:\nbuffer_load_dword v{VCK}, v{VCT}, {srd(sWS)}, s9 offen sc1')
            nbwait(dl)
            a(f'v_cmp_ne_u32 vcc, 1, v{VCK}\ns_sub_u32 s6, s6, 1\ns_cmp_eq_u32 s6, 0\ns_cbranch_scc1 {L}d\ns_cbranch_vccnz {L}\n{L}d:')
        def sliced(fn, dl, n=None):
            lines = a.record(fn); n = n or E('bgn', 22)
            while lines:
                m = n
                while any(x.startswith('s_setprio 3') for x in lines[:m]) and not any(x.startswith('s_setprio 0') for x in lines[:m]): m += 1
                a('\n'.join(lines[:m])); lines = lines[m:]
                if lines: yield_(dl)
        def cs_sum():
            for i in range(16):
                r_ = CSR + i
                if i == 0:
                    a(f'v_lshlrev_b32 v{CA}, 16, v{r_}\nv_and_b32 v{CA+1}, 0xffff0000, v{r_}')
                else:
                    a(f'v_lshlrev_b32 v{CA+4}, 16, v{r_}\nv_and_b32 v{CA+5}, 0xffff0000, v{r_}')
                    a(f'v_add_f32 v{CA}, v{CA}, v{CA+4}\nv_add_f32 v{CA+1}, v{CA+1}, v{CA+5}')
        PQR = 64; KVR = 192; ZR = 200
        AK, AZ, NUM, DEN, OUT = 96, 100, 104, 136, 168
        Lc = lab('cs')
        def cs_chain():
            if not E('cs0', 0):
                earliest(E('e_cs', 'B6'))
                dst('csld0')
                cs_loads((lambda: yield_('XA')) if E('dsl', 0) else None)
            dst('csld1')
            nbwait('XA')
            dst('csld2')
            sliced(cs_sum, 'XA')
            a(f'v_permlane32_swap_b32 v{CA}, v{CA+1}\nv_add_f32 v{CA}, v{CA}, v{CA+1}')
            a(f'v_and_b32 v{T[5]}, 31, v0\nv_lshrrev_b32 v{T[6]}, 5, v0\nv_lshlrev_b32 v{T[6]}, 2, v{T[6]}\nv_lshl_add_u32 v{T[6]}, v{T[5]}, 3, v{T[6]}')
            a(f'v_cmp_gt_u32 vcc, 28, v{T[5]}\nv_cndmask_b32 v{T[6]}, v{OB}, v{T[6]}, vcc')
            a(f's_lshr_b32 s{sT0}, s{sR}, 1\ns_lshl_b32 s{sT0}, s{sT0}, 10\ns_and_b32 s{sT2}, s{sR}, 1\ns_lshl_b32 s{sT2}, s{sT2}, 1\ns_add_u32 s{sT2}, s{sT2}, s{sSW}\ns_mul_i32 s{sT2}, s{sT2}, 224')
            a(f's_add_u32 s{sT0}, s{sT0}, s{sT2}\ns_add_u32 s{sT0}, s{sT0}, s{sD}\ns_add_u32 s{sT0}, s{sT0}, {KV_CS}')
            a(f'buffer_store_dword v{CA}, v{T[6]}, {srd(sWS)}, s{sT0} offen sc1')
            dst('csst')
            nbwait('XA')
            dst('csack')
            earliest('B5')
            a(f's_lshl_b32 s9, s{sR}, 1\ns_add_u32 s9, s9, s{sSW}')
            count(CF_CS, 9)
            earliest(E('e_csc', 'B16'))
            dst('cschk0')
            spin(CF_CS, 64, 'XA')
            dst('cschk1')
            a(f'v_lshlrev_b32 v{T[0]}, 4, v0\nv_cmp_gt_u32 vcc, 56, v0\nv_cndmask_b32 v{T[0]}, v{OB}, v{T[0]}, vcc')
            a(f's_lshl_b32 s{sT2}, s{sSW}, 13\ns_add_u32 s{sT2}, s{sT2}, s{sD}\ns_add_u32 s{sT2}, s{sT2}, {KV_CS}')
            for k in range(8):
                if k % 4 == 0: a(f's_add_u32 s{sT0}, s{sT2}, {k*1024}')
                a(f'buffer_load_dwordx4 {vr(CSR+4*k,4)}, v{T[0]}, {srd(sWS)}, s{sT0} offen offset:{(k&3)*1024} sc1')
                if k == 3 and E('dsl2', 0): yield_('XA')
            def cs_fin():
                for st in (16, 8, 4):
                    for k in range(st): a(f'v_add_f32 v{CSR+k}, v{CSR+k}, v{CSR+st+k}')
            dst('csg0')
            nbwait('XA')
            dst('csg1')
            sliced(cs_fin, 'XA', 30)
            a(f'v_lshlrev_b32 v{T[0]}, 4, v0\nv_add_u32 v{T[0]}, {CS3L}, v{T[0]}')
            earliest('B16')
            a(f's_cmp_eq_u32 s{sSW}, 0\ns_cbranch_scc1 {Lc}a')
            a(f'ds_write_b128 v{T[0]}, {vr(CSR,4)} offset:1024\ns_waitcnt lgkmcnt(0)\n{Lc}a:')
        if E('x_nocs', 0):
            earliest(E('e_cs', 'B6')); touch(sW3, 56, 7)
        else: cs_chain()
        if pf and E('e_p4', 'B13') == 'D': touch(sWO, 16, 8); touch(sW4, 56, 9)
        a(f's_lshl_b32 s7, s{sJ}, 1\ns_add_u32 s7, s7, s{sSW}\ns_lshl_b32 s8, s7, 2\ns_lshl_b32 s7, s7, 12\ns_add_u32 s7, s7, s{sC}\ns_add_u32 s7, s7, {O_OFF}')
        a(f's_lshl_b32 s{sT0}, s{sR}, 7\ns_add_u32 s8, s8, s{sT0}\ns_add_u32 s8, s8, {FL_OFF + FO*4096}\nv_mov_b32 v{VFO}, s8')
        earliest('XA')
        a(f's_cmp_lg_u32 s{sSW}, 0\ns_cbranch_scc1 {Lc}b')
        a(f'ds_read_b128 {vr(CSR+4,4)}, v{T[0]} offset:1024\ns_waitcnt lgkmcnt(0)')
        for k in range(4): a(f'v_add_f32 v{CSR+k}, v{CSR+k}, v{CSR+4+k}')
        a(f'ds_write_b128 v{T[0]}, {vr(CSR,4)}\n{Lc}b:')
        a(f's_lshl_b32 s{sT0}, s{sSW}, 12\ns_add_u32 s{sT0}, s{sT0}, {PQ}\nv_lshl_add_u32 v{T[0]}, v0, 3, s{sT0}')
        for k in range(8): a(f'ds_read_b64 {vr(PQR+2*k,2)}, v{T[0]} offset:{k*512}')
        a('s_waitcnt lgkmcnt(0)')
        kv2 = E('kv2', 0)
        earliest(E('e_kvb', 'XA'))
        if E('x_noo', 0):
            one_lane(f'buffer_store_dword v{VONE}, v{VFO}, {srd(sWS)}, 0 offen sc1'); nbwait('B51'); a('s_endpgm')
        dst('kvchk0')
        spin(CF_A, 32, ODL)
        dst('kvchk1')
        if kv2:
            a(f's_lshl_b32 s20, s{sSW}, 5\ns_add_u32 s20, s20, s{sR}\ns_cmp_lt_u32 s20, 34\ns_cselect_b32 s21, 0, {OOB}\ns_lshl_b32 s22, s20, 7\ns_add_u32 s22, s22, s{sD}')
            a(f'v_lshrrev_b32 v{T[1]}, 3, v0\nv_mul_u32_u24 v{T[1]}, {KVP}, v{T[1]}\nv_and_b32 v{T[2]}, 7, v0\nv_lshlrev_b32 v{T[2]}, 4, v{T[2]}\nv_add3_u32 v{T[1]}, v{T[1]}, v{T[2]}, s21')
            for k in range(4):
                a(f's_add_u32 s{sT0}, s22, {k*8*KVP}\nbuffer_load_dwordx4 {vr(KVR+4*k,4)}, v{T[1]}, {srd(sWS)}, s{sT0} offen sc1')
            nbwait(ODL)
            dst('l2ld')
            for k in range(8): a(f'v_add_f32 v{KVR+k}, v{KVR+k}, v{KVR+8+k}')
            for k in range(4): a(f'v_add_f32 v{KVR+k}, v{KVR+k}, v{KVR+4+k}')
            for k in range(4): a(f'v_add_f32_dpp v{KVR+k}, v{KVR+k}, v{KVR+k} row_ror:8 row_mask:0xf bank_mask:0xf')
            for sw_ in ('v_permlane16_swap_b32', 'v_permlane32_swap_b32'):
                if sw_.startswith('v_permlane32'): yield_(ODL)
                for k in range(4): a(f'v_mov_b32 v{KVR+4+k}, v{KVR+k}')
                for k in range(4): a(f'{sw_} v{KVR+k}, v{KVR+4+k}')
                for k in range(4): a(f'v_add_f32 v{KVR+k}, v{KVR+k}, v{KVR+4+k}')
            a(f'v_cmp_gt_u32 vcc, 8, v0\nv_add_u32 v{T[2]}, s21, v{T[2]}\nv_cndmask_b32 v{T[2]}, v{OB}, v{T[2]}, vcc\ns_add_u32 s{sT0}, s22, {KV_FIN}')
            a(f'buffer_store_dwordx4 {vr(KVR,4)}, v{T[2]}, {srd(sWS)}, s{sT0} offen sc1')
            nbwait(ODL)
            count(CF_B, 20)
            dst('l2pub')
            earliest(E('e_kvc', 'B29'))
            spin(CF_B, 64, ODL)
            dst('l2chk')
            a(f'v_lshrrev_b32 v{T[1]}, 4, v0\nv_lshlrev_b32 v{T[1]}, 4, v{T[1]}\nv_and_b32 v{T[0]}, 3, v0\nv_lshl_add_u32 v{T[0]}, v{T[0]}, 8, v{T[1]}')
            a(f'v_bfe_u32 v{T[2]}, v0, 2, 2\nv_lshl_add_u32 v{T[0]}, v{T[2]}, 6, v{T[0]}')
        else:
            a(f'v_lshrrev_b32 v{T[1]}, 4, v0\nv_lshlrev_b32 v{T[1]}, 4, v{T[1]}\nv_and_b32 v{T[0]}, 15, v0\nv_lshl_add_u32 v{T[0]}, v{T[0]}, 6, v{T[1]}')
        fin = KV_FIN if kv2 else 0
        for rep in range(1 if kv2 else NREP):
            a(f's_lshl_b32 s{sT0}, s{sSW}, 11\ns_add_u32 s{sT2}, s{sT0}, s{sD}\ns_add_u32 s{sT2}, s{sT2}, {8192*rep + fin}')
            for hh in range(2): a(f'buffer_load_dwordx4 {vr(KVR+16*rep+4*hh,4)}, v{T[0]}, {srd(sWS)}, s{sT2} offen offset:{hh*1024} sc1')
            a(f's_lshl_b32 s{sT2}, s{sSW}, 7\ns_add_u32 s{sT2}, s{sT2}, s{sD}\ns_add_u32 s{sT2}, s{sT2}, {KV_Z + 8192*rep + fin}')
            for hh in range(2): a(f'buffer_load_dwordx4 {vr(ZR+16*rep+4*hh,4)}, v{T[1]}, {srd(sWS)}, s{sT2} offen offset:{hh*64} sc1')
        dst('kvg0')
        nbwait(ODL)
        dst('kvg1')
        def kv_sum():
            if not kv2:
                for k in range(32): a(f'v_add_f32 v{KVR+k}, v{KVR+k}, v{KVR+32+k}')
                for k in range(16): a(f'v_add_f32 v{KVR+k}, v{KVR+k}, v{KVR+16+k}')
            for hh in range(2):
                a(f'v_cvt_pk_bf16_f32 v{AK+2*hh}, v{KVR+4*hh}, v{KVR+4*hh+1}\nv_cvt_pk_bf16_f32 v{AK+2*hh+1}, v{KVR+4*hh+2}, v{KVR+4*hh+3}')
                a(f'v_cvt_pk_bf16_f32 v{AZ+2*hh}, v{ZR+4*hh}, v{ZR+4*hh+1}\nv_cvt_pk_bf16_f32 v{AZ+2*hh+1}, v{ZR+4*hh+2}, v{ZR+4*hh+3}')
        if E('dprio', 1): a(f's_setprio {E("dprio", 1)}')
        sliced(kv_sum, ODL, E('bgn2', 60))
        def o_compute():
            a('s_setprio 3')
            for k in range(8): a(f'v_mfma_f32_16x16x16_bf16 {vr(DEN+4*k,4)}, {vr(AZ+2*(k>>2),2)}, {vr(PQR+2*k,2)}, 0')
            for k in range(8): a(f'v_mfma_f32_16x16x16_bf16 {vr(NUM+4*k,4)}, {vr(AK+2*(k>>2),2)}, {vr(PQR+2*k,2)}, 0')
            a('s_setprio 0')
            if E('dprio', 1): a(f's_setprio {E("dprio", 1)}')
            for k in range(8): a(f'v_add_f32 v{DEN+4*k}, s{sEPS}, v{DEN+4*k}')
            for k in range(8): a(f'v_rcp_f32 v{DEN+4*k}, v{DEN+4*k}')
            for pr in range(4):
                for k in (2*pr, 2*pr+1):
                    for e in range(4): a(f'v_mul_f32 v{NUM+4*k+e}, v{NUM+4*k+e}, v{DEN+4*k}')
                for u in range(4*pr, 4*pr+4): a(f'v_cvt_pk_bf16_f32 v{OUT+u}, v{NUM+2*u}, v{NUM+2*u+1}')
                a(f'v_permlane16_swap_b32 v{OUT+4*pr}, v{OUT+4*pr+2}\nv_permlane16_swap_b32 v{OUT+4*pr+1}, v{OUT+4*pr+3}')
                a(f'buffer_store_dwordx4 {vr(OUT+4*pr,4)}, v{CELLV}, {srd(sWS)}, s7 offen offset:{(pr>>1)*2048+(pr&1)*512} sc1')
        dst('kvsum')
        sliced(o_compute, ODL, E('bgn3', 40))
        dst('ost')
        nbwait(ODL)
        dst('oack')
        one_lane(f'buffer_store_dword v{VONE}, v{VFO}, {srd(sWS)}, 0 offen sc1')
        if prof: a(f's_mov_b32 s10, s{sBC}'); earliest('B50')
        else: nbwait('B51')
        if prof:
            a(f's_lshl_b32 s{sT0}, s2, 3\ns_add_u32 s{sT0}, s{sT0}, s{sW}\ns_add_u32 s{sT0}, s{sT0}, 5\ns_lshl_b32 s{sT0}, s{sT0}, 8\ns_add_u32 s{sT0}, s{sT0}, {TS_OFF}')
            a(f'v_mov_b32 v2, s10\nv_mov_b32 v3, 0')
            a(f'v_lshlrev_b32 v3, 2, v0\nv_writelane_b32 v{VDS}, s10, 63\nbuffer_store_dword v{VDS}, v3, {srd(sWS)}, s{sT0} offen')
            dump_arrive(0)
        a('s_endpgm')

        a('L_sync:')
        a.vm = vmS; a.lg = []; stok.update(stokS); grp[0] = [2, 3]
        VTS, VTC = 31, 60
        if two: loader_setup()
        else:
            a('s_waitcnt lgkmcnt(0)')
            self.srds(a, skipx=True)
        if prof: a(f'v_mov_b32 v{VTS}, 0\nv_mov_b32 v{VTC}, 0\nv_writelane_b32 v{VTS}, s26, 63')
        nstamp = [0]
        def stamp(last=False):
            if prof:
                if nstamp[0]:
                    a(f's_waitcnt lgkmcnt(0)\nv_writelane_b32 v{VTS}, s{sTSP}, {nstamp[0]-1}\nv_writelane_b32 v{VTC}, s26, {nstamp[0]-1}')
                    a.lg = []
                if not last: a(f's_memrealtime s[{sTSP}:{sTSP+1}]\ns_memtime s[26:27]')
                nstamp[0] += 1
        def flag_setup():
            common_regs()
            a(f's_lshl_b32 s{sT0}, s{sR}, 7\ns_add_u32 s{sT0}, s{sT0}, {FL_OFF}\ns_lshl_b32 s{sT2}, s{sJ}, 2\ns_add_u32 s{sT2}, s{sT2}, s{sT0}\nv_mov_b32 v{VFL}, s{sT2}')
            a(f'v_and_b32 v{VZA}, 7, v0\nv_lshlrev_b32 v{VZA}, 2, v{VZA}\nv_add_u32 v{VFP}, s{sT0}, v{VZA}')
            a(f'v_and_b32 v{VZA}, 15, v0\nv_lshlrev_b32 v{VZA}, 2, v{VZA}\nv_add_u32 v{VFO}, s{sT0}, v{VZA}\nv_and_b32 v{VZA}, 31, v0\nv_lshlrev_b32 v{VZA}, 2, v{VZA}')
            a(f's_cmp_eq_u32 s{sR}, 0\ns_cselect_b32 s{sT2}, 0, -128\ns_cmp_eq_u32 s{sR}, 31\ns_cselect_b32 s{sT3}, 0, 128')
            a(f'v_lshrrev_b32 v{T[3]}, 3, v0\nv_mov_b32 v{T[4]}, 0\nv_mov_b32 v{T[5]}, s{sT2}\nv_mov_b32 v{T[6]}, s{sT3}')
            a(f'v_cmp_eq_u32 vcc, 1, v{T[3]}\nv_cndmask_b32 v{T[4]}, v{T[4]}, v{T[5]}, vcc\nv_cmp_eq_u32 vcc, 2, v{T[3]}\nv_cndmask_b32 v{T[4]}, v{T[4]}, v{T[6]}, vcc')
            a(f'v_add_u32 v{VF3}, v{VFP}, v{T[4]}')
        if not E('late', 0): flag_setup()
        stats_setup()
        stamp()
        def touch3(s, rows, dst):
            n = rows // 32
            a(f's_lshr_b32 s{sT0}, s2, 3\ns_mul_i32 s{sT0}, s{sT0}, {n*1024}\ns_add_u32 s{sT0}, s{sT0}, 384')
            a(f'v_lshlrev_b32 v{T[7]}, 10, v0\nv_cmp_gt_u32 vcc, {n}, v0\nv_cndmask_b32 v{T[7]}, v{OB}, v{T[7]}, vcc')
            return a(f'buffer_load_dword v{dst}, v{T[7]}, {srd(s)}, s{sT0} offen')
        ck = {}
        def check_issue(vaddr, sr, off):
            ck['t'] = a(f's_mov_b32 s{sT0}, {off}\nbuffer_load_dword v{VCK}, v{vaddr}, {srd(sr)}, s{sT0} offen sc1')
        def check_wait(vaddr, sr, off, val):
            L = lab('p')
            a.wait_vm(ck['t'])
            a(f's_mov_b32 s{sCNT}, {opt.get("spin", 200000)}\ns_mov_b32 s{sT0}, {off}')
            a(f'{L}:')
            a(f'v_cmp_ne_u32 vcc, {val}, v{VCK}\ns_sub_u32 s{sCNT}, s{sCNT}, 1\ns_cmp_eq_u32 s{sCNT}, 0\ns_cbranch_vccz {L}d\ns_cbranch_scc1 {L}d')
            vm = list(a.vm)
            a(f'buffer_load_dword v{VCK}, v{vaddr}, {srd(sr)}, s{sT0} offen sc1\ns_waitcnt vmcnt(0)\ns_branch {L}\n{L}d:')
            a.vm = vm
        early = []
        def pre_poll(vaddr, sr, off):
            r = [36, 37, 38][len(early)]
            a(f's_mov_b32 s{sT0}, {off}')
            early.append((r, a(f'buffer_load_dword v{r}, v{vaddr}, {srd(sr)}, s{sT0} offen sc1')))
        def poll(vaddr, sr, off, val):
            L = lab('q')
            check_issue(vaddr, sr, off)
            check_wait(vaddr, sr, off, val)
        def flag(ftype):
            a(f's_mov_b32 s{sT0}, {ftype*4096}')
            one_lane(f'buffer_store_dword v{VONE}, v{VFL}, {srd(sWS)}, s{sT0} offen sc1')
        XS = 64; xt = {}
        def xs_loads():
            a(f's_lshl_b32 s{sT0}, s{sR}, 13\ns_add_u32 s{sT0}, s{sT0}, {XS_OFF}\ns_add_u32 s{sT2}, s{sT0}, 4096\nv_lshlrev_b32 v{T[0]}, 3, v0')
            for k in range(16):
                xt['s'] = a(f'buffer_load_dwordx2 {vr(XS+2*k,2)}, v{T[0]}, {srd(sWS)}, s{sT0 if k < 8 else sT2} offen offset:{(k&7)*512} sc1')
        def xs_final(part):
            G = XS + 4; t = XS + 1
            if part == 0:
                a.wait_vm(xt['s'])
                for st in (16, 8, 4, 2):
                    for k in range(st): a(f'v_add_f32 v{XS+k}, v{XS+k}, v{XS+st+k}')
                return
            a(f'v_mul_f32 v{G}, {f2u(-1/512):#x}, v{XS}\nv_mul_f32 v{t}, {f2u(1/512):#x}, v{t}')
            a(f'v_fma_f32 v{t}, -v{G}, v{G}, v{t}\nv_max_f32 v{t}, 0, v{t}\nv_add_f32 v{t}, {f2u(1e-5):#x}, v{t}')
            a(f'v_rsq_f32 v{t+1}, v{t}\nv_sqrt_f32 v{G+3}, v{t}')
            a(f'v_mul_f32 v{G+1}, {f2u(GC0):#x}, v{t+1}\nv_mul_f32 v{t+2}, v{t+1}, v{t+1}\nv_mul_f32 v{t+2}, v{t+2}, v{t+1}\nv_mul_f32 v{G+2}, {f2u(GC1):#x}, v{t+2}')
            a(f'v_lshlrev_b32 v{T[0]}, 4, v0\nv_add_u32 v{T[0]}, {X1P}, v{T[0]}')
            a(f'ds_write_b128 v{T[0]}, {vr(G,4)}\ns_waitcnt lgkmcnt(0)')
        fhb, fxb, hlb = f"B{E('fh_bar', 6)}", f"B{E('fx_bar', 17)}", f"B{E('hl_bar', 11)}"
        for n in BARS:
            if n == 'XA': check_wait(VFP, sWS, FX1 * 4096, 1)
            if n == E('e_g0w', 'B31' if E('eg', 0) else 'B34'): check_wait(VFP, sWS, FG0 * 4096, 1)
            if n == f'B{self.need[FG1]}': check_wait(VFP, sWS, FG1 * 4096, 1)
            if n == f'B{self.need[FO]}': check_wait(VFO, sWS, FO * 4096, 1)
            if n == f'B{self.need[FG2]}': check_wait(VFP, sWS, FG2 * 4096, 1)
            if n == hlb: check_wait(VF3, sWS, FH * 4096, 1)
            if two: load_before(n)
            arrive(IDX[n]); self.barsS.append(n); a('s_barrier')
            stamp()
            if n == fhb: flag(FH)
            if n == fxb: flag(FX1)
            if n == f"B{E('fg0_bar', 27)}": flag(FG0)
            if n == f"B{E('fg1_bar', 34)}": flag(FG1)
            if n == f"B{E('fg2_bar', 37)}": flag(FG2)
            if n == (f"B{E('fa_bar', 15)}" if E('kv2', 0) else ('QE' if E('ovl', 0) and E('atp', 0) == 1 else fxb)): count(CF_A, sR)
            if n == E('e_g0i', 'B30' if E('eg', 0) else 'B31'): check_issue(VFP, sWS, FG0 * 4096)
            if n == f'B{max(self.need[FG1] - E("cl", 2), 34)}': check_issue(VFP, sWS, FG1 * 4096)
            if n == f'B{max(self.need[FO] - E("cl", 2), 34)}': check_issue(VFO, sWS, FO * 4096)
            if n == f'B{self.need[FG2] - E("cl", 2)}': check_issue(VFP, sWS, FG2 * 4096)
            if n == 'QE': check_issue(VFP, sWS, FX1 * 4096)
            if n == BARS[IDX[hlb] - E('hl_lead', 2)]: check_issue(VF3, sWS, FH * 4096)
            if n == 'B2': check_issue(VZA, sDBG, 0)
            if n == 'B15': pass
            if two: load_after(n)
            elif n[0] == 'B': stats_after(int(n[1:]))
            if n == 'B0' and E('late', 0): flag_setup()
            if n == E('e_xs', 'B20') and not E('x_noxs', 0): xs_loads()
            if n == 'B4': check_wait(VZA, sDBG, 0, 1)
            if n == 'B22' and not E('x_noxs', 0): xs_final(0)
            if n == 'B23': xs_final(1)
            if pf and n == E('e_p4', 'B13'):
                for (sr, nl) in ((sWO, 16), (sW4, 56)):
                    a(f's_mul_i32 s{sT0}, s2, {nl*128}\nv_cmp_gt_u32 vcc, {nl}, v0\nv_cndmask_b32 v{T[7]}, v{OB}, v{T[15]}, vcc\nbuffer_load_dword v62, v{T[7]}, {srd(sr)}, s{sT0} offen')
            if t3:
                if n == E('e_t3q', 'B4'): touch3(sQKV, 1536, 63)
                if n == E('e_t32', 'B7'): touch3(sW2, 512, 63)
                if n == E('e_t33', 'B13'): touch3(sW3, 1792, 63)
                if n == E('e_t33b', 'B24'): touch3(sW3, 1792, 63)
                if n == E('e_t34', 'B28'): touch3(sW4, 1792, 63)
                if n == E('e_t35', 'B37'): touch3(sWO, 512, 63); touch3(sW4, 1792, 63)
            if n[0] == 'B' and int(n[1:]) >= max(self.need.values()) + 2 and not prof and not two: break
        if prof:
            stamp(True)
            a(f's_lshl_b32 s{sT0}, s2, 3\ns_add_u32 s{sT0}, s{sT0}, 4\ns_lshl_b32 s{sT0}, s{sT0}, 8\ns_add_u32 s{sT0}, s{sT0}, {TS_OFF}')
            a(f'v_lshlrev_b32 v2, 2, v0\nbuffer_store_dword v{VTS}, v2, {srd(sWS)}, s{sT0} offen\nbuffer_store_dword v{VTC}, v2, {srd(sWS)}, s{sT0} offen offset:256')
            dump_arrive(0)
        a('s_endpgm')

        a('L_loader:')
        a.vm = vmL; a.lg = []; stok.update(stokL); grp[0] = [0, 1] if two else [0, 1, 2, 3]
        loader_setup()
        stats_setup()
        for n in BARS:
            load_before(n)
            arrive(IDX[n]); self.barsL.append(n); a('s_barrier')
            load_after(n)
        dump_arrive(0)
        a('s_endpgm')

    def build(self):
        a = Asm()
        dry = Asm(); self.compute(dry); self.barsC = []
        self.prologue(a)
        self.helper(a)
        a.lg = []; a.vm = []
        a('L_compute:')
        self.compute(a)
        a('L_end:\ns_endpgm')
        assert self.barsC[:-1] == self.barsL and self.barsC[-1] == 'RB2' and self.barsL[:len(self.barsS)] == self.barsS, (self.barsC, self.barsL, self.barsS)
        if self.opt.get('align', 3): self.alstat = align_pass(a, KNAME + ':\n', self.opt.get('align', 3))
        ref = open(f'cdna_kernels/{KNAME[:-7]}.s.ref').read().split('\n')
        head = [l for l in ref if l.startswith(';') and '@launch' not in l]
        if self.dnames: head.append('; dnames ' + ' '.join(self.dnames))
        out = '\n'.join(head) + '\n; @launch grid=(256,1,1) block=(512,1,1) lds=163840\n'
        out += f'.amdgcn_target "amdgcn-amd-amdhsa--gfx950"\n.text\n.globl {KNAME}\n.p2align 8\n.type {KNAME},@function\n{KNAME}:\n'
        out += a.text()
        out += f'''.section .rodata,"a"
.p2align 6
.amdhsa_kernel {KNAME}
  .amdhsa_next_free_vgpr 256
  .amdhsa_next_free_sgpr 102
  .amdhsa_accum_offset 256
  .amdhsa_group_segment_fixed_size 0
  .amdhsa_kernarg_size 88
  .amdhsa_user_sgpr_count 2
  .amdhsa_user_sgpr_kernarg_segment_ptr 1
  .amdhsa_system_sgpr_workgroup_id_x 1
.end_amdhsa_kernel
'''
        return out, a


def generate(**opt):
    g = Gen(opt)
    return g.build()[0]

if __name__ == '__main__':
    opt = {}
    for arg in sys.argv[2:]:
        k, v = arg.split('=')
        opt[k] = int(v) if v.lstrip('-').isdigit() else v
    g = Gen(opt)
    txt, a = g.build()
    open(sys.argv[1], 'w').write(txt)
    print('instructions', len(a.ins), 'pads', a.npad, 'align', getattr(g, 'alstat', None), 'issue', ISSUE)
```

```python
import sys, math, struct
sys.path.insert(0, 'dev')
import re
from asmlib import Asm, Ins, align_pass

KNAME = 'parallel_sum__linear_attn_block__mixer_s_mlp__prompt_kernel'

H_OFF, X1_OFF, O_OFF, G_OFF = 0x000000, 0x200000, 0x400000, 0x600000
KV_OFF, FL_OFF, XS_OFF, TS_OFF = 0xE00000, 0xD10000, 0xD20000, 0x1000000
CF_OFF = 0xD00000
WS_BYTES = 0x1200000
KVP, KV_Z, KV_FIN, KV_CS = 4608, 4096, 0x24000, 0x28000
CF_CS, CF_A, CF_B = 0, 1024, 2048
NREP = 4
FH, FX1, FO, FG0, FG1, FG2 = 0, 1, 2, 3, 4, 5
GBLK = 229376
RING = 0x10000
SC = 0x24000
S1, S2, NMU, RHO, RHL = SC, SC + 1024, SC + 2048, SC + 2304, SC + 2560
PQ, X1P, CS3L = SC, SC + 9216, SC + 10240
OOB = 0x80000000

def f2u(x): return struct.unpack('<I', struct.pack('<f', x))[0]
LOG2E = 1.4426950408889634
GC0 = -2.0 * math.sqrt(2.0 / math.pi) * LOG2E
GC1 = GC0 * 0.044715

sX, sQKV, sWO, sW1, sW2, sW3, sW4, sOUT, sWS, sDBG = 28, 32, 36, 40, 44, 48, 52, 56, 60, 64
sR, sJ, sW, sTH, sHI = 68, 69, 70, 71, 72
sT0, sT1, sT2, sT3, sT4, sT5 = 73, 74, 75, 76, 77, 78
sEPS = 80
sONE, sSEL0, sSEL1 = 82, 83, 84
sA, sB, sC, sD = 85, 86, 87, 88
sI0 = 79
sCODE = 92
sCNT = 90
sROT = 89
sRG = 3
sKG = 22
sKC = 96
sBG = 91
sK1, sK3, sK5, sKX = 92, 96, 4, 18
sTSP = 100

def srd(n): return f's[{n}:{n+3}]'
def vr(n, k=1): return f'v{n}' if k == 1 else f'v[{n}:{n+k-1}]'

STAGES = ([('w1', s) for s in range(4)] + [('kv', s) for s in range(8)] + [('w2', s) for s in range(4)] +
          [('wq', s) for s in range(4)] + [('p0', s) for s in range(4)] + [('hf', s) for s in range(2)] +
          [('p1', s) for s in range(4)] + [('p2', s) for s in range(4)] +
          [])
STAGES0 = list(STAGES)
def set_order(order):
    STAGES[:] = STAGES0 + [(k, s) for k in order.split('.') for s in range(2 if k == 'gh' else 4)]
set_order('g0.g1.gh.wo.g2')
def g_rows(kind, s):
    if kind == 'gh': return 896 * s + 192, 896 * s + 640
    p = int(kind[1])
    return 448 * s + 64 * p, 448 * s + 256 + 64 * p
NST = len(STAGES)
AREL = 27

def plan_slots(opt):
    free = [RING + i * 0x4000 for i in range(5)]
    slot = {}; issue = {}
    quota = {13: opt.get('q13', 0), 16: opt.get('q16', 1), 17: 2, 24: opt.get('q24', 3), 27: 1, 30: opt.get('q30', 4), 34: opt.get('q34', 1)}
    jit = opt.get('jit', 5)
    regs = [int(x) for x in str(opt.get('regs', '')).split('.') if x]
    nxt = 0
    def drain(key, q, b):
        nonlocal nxt
        while free and nxt < NST and (nxt in regs or ((q > 0 or nxt <= b + 2) and not (b >= 35 and nxt > b + jit))):
            slot[nxt] = free.pop(0); issue.setdefault(key, []).append(nxt); q -= nxt not in regs; nxt += 1
    drain(-1, 5, -1)
    for b in range(NST):
        if b == 20:
            free.extend([slot[18], slot[19]]); drain('QE', 2, 19)
        er = [int(x) for x in str(opt.get('erel', '24.30.34')).split('.') if x != 'X']
        if b >= 2 and b not in (20, 21) and (b - 1) not in er: free.append(slot[b - 2])
        if b in er: free.append(slot[b - 1])
        if b == (24 if opt.get('hfv', 1) else AREL): free.extend([0, 0x4000, 0x8000, 0xC000])
        if b == 32 and opt.get('sc10', 1): free.append(SC)
        if SC in free and nxt > 47: free.remove(SC)
        if b == 15 and opt.get('rb17', 1): drain('RB1', quota.get(b, 1), b)
        else: drain(b, quota.get(b, 1), b)
    assert nxt == NST
    return slot, issue


class Gen:
    def __init__(self, opt):
        self.opt = opt
        self.barsC = []; self.barsS = []; self.barsL = []; self.dnames = []
        global SLOT, ISSUE
        set_order(opt.get('order', 'g0.g1.gh.g2.wo' if opt.get('kv2', 0) else 'g0.wo.g1.gh.g2'))
        SLOT, ISSUE = plan_slots(opt)

    def prologue(self, a):
        a('s_cmp_ge_u32 s2, 256\ns_cbranch_scc1 L_end')
        a('s_load_dwordx16 s[4:19], s[0:1], 0\ns_load_dwordx4 s[20:23], s[0:1], 64\ns_load_dwordx2 s[24:25], s[0:1], 80')
        if self.opt.get('prof'):
            a(f's_memrealtime s[26:27]\ns_memtime s[90:91]')
        m = self.opt.get('map', 'h4')
        if m == 'same':
            a(f's_and_b32 s{sR}, s2, 7\ns_lshr_b32 s{sT0}, s2, 6\ns_lshl_b32 s{sT0}, s{sT0}, 3\ns_or_b32 s{sR}, s{sR}, s{sT0}')
            a(f's_lshr_b32 s{sJ}, s2, 3\ns_and_b32 s{sJ}, s{sJ}, 7')
        elif m == 'h4':
            a(f's_and_b32 s{sR}, s2, 3\ns_lshr_b32 s{sT0}, s2, 5\ns_lshl_b32 s{sT0}, s{sT0}, 2\ns_or_b32 s{sR}, s{sR}, s{sT0}')
            a(f's_lshr_b32 s{sJ}, s2, 2\ns_and_b32 s{sJ}, s{sJ}, 7')
        elif m == 'cross':
            a(f's_lshr_b32 s{sR}, s2, 3\ns_and_b32 s{sJ}, s2, 7')
        a('v_lshrrev_b32 v1, 6, v0\nv_and_b32 v0, 63, v0')
        a(f'v_readfirstlane_b32 s{sT1}, v1')
        a(f's_mov_b32 s{sX+2}, {2<<20}\ns_mov_b32 s{sX+3}, 0x20000')
        a(f's_and_b32 s{sW}, s{sT1}, 3\ns_and_b32 s{sTH}, s{sT1}, 1\ns_lshr_b32 s{sHI}, s{sW}, 1')
        sh = {'same': 3, 'h4': 2, 'cross': 5}[m] if self.opt.get('rot2', 1) else 8
        a(f's_lshr_b32 s{sROT}, s{sR}, {sh}\ns_add_u32 s{sROT}, s{sROT}, s{sR}\ns_add_u32 s{sROT}, s{sROT}, s{sJ}\ns_and_b32 s{sROT}, s{sROT}, 3')
        sh2 = {'same': 3, 'h4': 2, 'cross': 5}[m]
        if self.opt.get('rotg', 1): a(f's_lshr_b32 s{sRG}, s{sR}, {sh2}\ns_add_u32 s{sRG}, s{sRG}, s{sJ}\ns_and_b32 s{sRG}, s{sRG}, 3')
        else: a(f's_mov_b32 s{sRG}, 0')
        a(f's_cmp_lt_u32 s{sT1}, 4\ns_cbranch_scc1 L_compute')

    def srds(self, a, skipx=False, skip1=False):
        a(f's_mov_b32 s{sEPS}, {f2u(1e-6):#x}\ns_mov_b32 s{sEPS+1}, {f2u(1e-6):#x}\ns_mov_b32 s{sONE}, 0x3f803f80')
        for (s, p, n) in ((sX, 4, 2 << 20), (sW1, 12, 512 * 1024), (sQKV, 6, 512 * 3072), (sWO, 8, 512 * 1024), (sW2, 14, 512 * 1024),
                          (sW3, 16, 512 * 3584), (sW4, 18, 1792 * 1024), (sOUT, 20, 2 << 20), (sWS, 24, WS_BYTES), (sDBG, 22, 256)):
            if s == sX and skipx: continue
            if s == sW1 and skip1: continue
            a(f's_mov_b32 s{s}, s{p}\ns_and_b32 s{s+1}, s{p+1}, 0xffff\ns_mov_b32 s{s+2}, {n}\ns_mov_b32 s{s+3}, 0x20000')

    def run_steps(self, a, steps):
        n = len(steps)
        sched = {}
        for i, s in enumerate(steps):
            sched.setdefault(s['at'], []).append(i)
        def items(i):
            s = steps[i]
            out = []
            if s.get('pre'): out.append(('pre', i))
            out += [('rd', i, t) for t in s['reads']]
            return out
        def emit(it):
            if it[0] == 'pre':
                steps[it[1]]['pre']()
            elif it[0] == 'rd':
                steps[it[1]]['tok'] = a(it[2])
            else:
                it[1]()
        for i in sched.get(-1, []):
            for it in items(i): emit(it)
        for k in range(n):
            s = steps[k]
            if s.get('hook'): s['hook']()
            pend = []
            for i in sched.get(k, []):
                if i == k:
                    for it in items(i): emit(it)
                else:
                    pend += items(i)
            pend += [('post', f) for f in s.get('post', [])]
            vt = s['vm']() if s.get('vm') else None
            a.wait_both(s.get('tok'), vt)
            nm = len(s['mfmas'])
            per = -(-len([p for p in pend if p[0] != 'pre']) // nm) if pend else 0
            for mi, m in enumerate(s['mfmas']):
                a(m)
                if s.get('tail') and s['tail'][mi]: s['tail'][mi]()
                c = 0
                while pend and (c < per or mi == nm - 1):
                    it = pend.pop(0)
                    emit(it)
                    if it[0] != 'pre': c += 1
                    elif mi < nm - 1 and self.opt.get('bfast', 0):
                        per = -(-len(pend) // (nm - 1 - mi))
                        break

    def barC(self, a, name):
        self.barsC.append(name); a('s_barrier')

    def gelu(self, a, pairs, tmp, after_first=None):
        P = lambda r: vr(r, 2)
        for i, (ac, cs, st, o) in enumerate(pairs):
            a(f'v_pk_fma_f32 {P(ac)}, {P(cs)}, {P(st)}, {P(ac)} op_sel:[0,0,0] op_sel_hi:[1,0,1]')
        if after_first: after_first()
        for i, (ac, cs, st, o) in enumerate(pairs):
            a(f'v_pk_mul_f32 {P(tmp+2*i)}, {P(ac)}, {P(ac)}')
        for i, (ac, cs, st, o) in enumerate(pairs):
            a(f'v_pk_fma_f32 {P(tmp+2*i)}, {P(tmp+2*i)}, {P(st+2)}, {P(st)} op_sel:[0,0,1] op_sel_hi:[1,0,1]')
        for i, (ac, cs, st, o) in enumerate(pairs):
            a(f'v_pk_mul_f32 {P(tmp+2*i)}, {P(tmp+2*i)}, {P(ac)}')
        for i in range(2 * len(pairs)):
            a(f'v_exp_f32_e64 v{tmp+i}, v{tmp+i}')
        for i, (ac, cs, st, o) in enumerate(pairs):
            a(f'v_pk_fma_f32 {P(tmp+2*i)}, {P(tmp+2*i)}, {P(st+2)}, {P(st+2)} op_sel:[0,1,1] op_sel_hi:[1,1,1]')
        for i in range(2 * len(pairs)):
            a(f'v_rcp_f32_e64 v{tmp+i}, v{tmp+i}')
        for i, (ac, cs, st, o) in enumerate(pairs):
            a(f'v_pk_mul_f32 {P(tmp+2*i)}, {P(tmp+2*i)}, {P(ac)}')
        for i, (ac, cs, st, o) in enumerate(pairs):
            a(f'v_cvt_pk_bf16_f32 v{o}, v{tmp+2*i}, v{tmp+2*i+1}')

    def phi_tail(self, a, acs, outs, tmp):
        P = lambda r: vr(r, 2)
        n = len(acs)
        for i in range(2 * n): a(f'v_exp_f32_e64 v{tmp+i}, v{tmp+i} clamp')
        for ac in acs:
            a(f'v_max_f32_e64 v{ac}, v{ac}, s{sEPS}\nv_max_f32_e64 v{ac+1}, v{ac+1}, s{sEPS}')
        for i, ac in enumerate(acs): a(f'v_pk_add_f32 {P(ac)}, {P(ac)}, {P(tmp+2*i)}')
        for i, ac in enumerate(acs): a(f'v_cvt_pk_bf16_f32 v{outs[i]}, v{ac}, v{ac+1}')

    def compute(self, a):
        opt = self.opt
        P = lambda r: vr(r, 2)
        XB = [2, 3, 4, 5]; PAT16, WK16 = 6, 7
        PATN = [8, 9]; PATP = [10, 11, 12, 13]; PAT3 = [14, 15]
        WK = [16, 17, 18, 19]
        CELLV, CELLT, LL16, RDX = 20, 21, 22, 23
        RES = 24; QST = 40; PST = 196
        ONES = 56
        STA, STB, XE, PSA = 1, 54, 19, 18
        HV = [252, 253, 254, 255]
        T = [240 + i for i in range(12)]
        q, i16, rr, c, h, t32, fsub = 228, 229, 230, 231, 232, 233, 234
        a(f'v_lshrrev_b32 v{q}, 4, v0\nv_and_b32 v{i16}, 15, v0\nv_lshrrev_b32 v{rr}, 2, v{i16}\nv_and_b32 v{c}, 3, v0')
        a(f'v_lshrrev_b32 v{h}, 5, v0\nv_and_b32 v{t32}, 31, v0\nv_and_b32 v{fsub}, 1, v{q}')
        a(f'v_lshlrev_b32 v{LL16}, 4, v0')
        a(f'v_lshlrev_b32 v{T[2]}, 3, v0')
        a(f's_lshr_b32 s{sT3}, s2, 3\ns_lshl_b32 s{sT3}, s{sT3}, 2\ns_add_u32 s{sT3}, s{sT3}, s{sW}\ns_lshl_b32 s{sT3}, s{sT3}, 9')
        a(f's_getpc_b64 s[{sCODE}:{sCODE+1}]\nL_pc:\ns_sub_u32 s{sCODE}, s{sCODE}, L_pc-{KNAME}\ns_subb_u32 s{sCODE+1}, s{sCODE+1}, 0')
        a(f's_and_b32 s{sCODE+1}, s{sCODE+1}, 0xffff\ns_mov_b32 s{sCODE+2}, L_end-{KNAME}\ns_mov_b32 s{sCODE+3}, 0x20000')
        if opt.get('cpf', 1): a(f'buffer_load_dword v24, v{T[2]}, {srd(sCODE)}, s{sT3} offen')
        if opt.get('t0', 0):
            a(f's_lshl_b32 s{sT0}, s{sR}, 3\ns_add_u32 s{sT0}, s{sT0}, s{sJ}\ns_lshl_b32 s{sT0}, s{sT0}, 2\ns_add_u32 s{sT0}, s{sT0}, s{sW}\ns_lshl_b32 s{sT2}, s{sT0}, 9\ns_lshl_b32 s{sT0}, s{sT0}, 11')
            a(f'v_lshlrev_b32 v{T[3]}, 5, v0\ns_mov_b32 s{sW1+2}, {512*1024}\ns_mov_b32 s{sW1+3}, 0x20000')
        a('s_waitcnt lgkmcnt(0)')
        if opt.get('t0', 0):
            a(f's_mov_b32 s{sX}, s4\ns_and_b32 s{sX+1}, s5, 0xffff\nbuffer_load_dword v25, v{T[3]}, {srd(sX)}, s{sT0} offen')
            a(f's_mov_b32 s{sW1}, s12\ns_and_b32 s{sW1+1}, s13, 0xffff\nbuffer_load_dword v26, v{T[2]}, {srd(sW1)}, s{sT2} offen')
        self.srds(a)
        a(f's_lshr_b32 s{sT0}, s{sR}, 2\ns_or_b32 s{sT0}, s{sT0}, s{sW}\ns_cmp_lg_u32 s{sT0}, 0\ns_cbranch_scc1 L_nozero')
        vm0 = list(a.vm)
        a(f'v_mov_b32 v{T[4]}, 0\nv_mov_b32 v{T[5]}, 0\nv_mov_b32 v{T[6]}, 0\nv_mov_b32 v{T[7]}, 0')
        a(f's_lshl_b32 s{sT3}, s{sJ}, 2\ns_add_u32 s{sT3}, s{sT3}, s{sR}')
        a(f's_lshl_b32 s{sT0}, s{sT3}, 10\ns_add_u32 s{sT0}, s{sT0}, {CF_OFF}')
        a(f'buffer_store_dwordx4 {vr(T[4],4)}, v{LL16}, {srd(sWS)}, s{sT0} offen sc1')
        a(f's_lshl_b32 s{sT0}, s{sJ}, 18\ns_lshl_b32 s{sT2}, s{sR}, 13\ns_add_u32 s{sT0}, s{sT0}, s{sT2}\ns_add_u32 s{sT0}, s{sT0}, {KV_OFF}\ns_add_u32 s{sT2}, s{sT0}, 4096')
        for u in range(0 if opt.get('kv2', 0) else 5):
            a(f'buffer_store_dwordx4 {vr(T[4],4)}, v{LL16}, {srd(sWS)}, s{sT0 if u < 4 else sT2} offen offset:{(u&3)*1024} sc1')
        a(f'v_lshlrev_b32 v{T[8]}, 12, v{q}\nv_lshl_add_u32 v{T[8]}, v{i16}, 3, v{T[8]}')
        a(f's_lshl_b32 s{sT0}, s{sT3}, 7\ns_add_u32 s{sT0}, s{sT0}, {FL_OFF}')
        a(f'buffer_store_dwordx2 {vr(T[4],2)}, v{T[8]}, {srd(sWS)}, s{sT0} offen sc1\ns_add_u32 s{sT0}, s{sT0}, 16384')
        a(f'buffer_store_dwordx2 {vr(T[4],2)}, v{T[8]}, {srd(sWS)}, s{sT0} offen sc1')
        a(f'v_mov_b32 v{T[9]}, 1\ns_lshl_b32 s{sT0}, s{sT3}, 2\nv_mov_b32 v{T[10]}, s{sT0}')
        a.wait_vm0()
        a('s_mov_b64 exec, 1')
        a(f'buffer_store_dword v{T[9]}, v{T[10]}, {srd(sDBG)}, 0 offen sc1')
        a('s_mov_b64 exec, -1')
        a('L_nozero:')
        a.vm = vm0
        a(f'v_mov_b32 v{T[1]}, {OOB}')
        for m in range(4):
            a(f'v_or_b32 v{T[0]}, {4*m}, v{q}\nv_xor_b32 v{T[0]}, v{T[0]}, v{i16}\nv_lshlrev_b32 v{T[0]}, 4, v{T[0]}')
            a(f'v_lshl_add_u32 v{XB[m]}, v{i16}, 8, v{T[0]}')
        a(f'v_lshrrev_b32 v{T[4]}, 1, v{rr}\nv_lshlrev_b32 v{T[4]}, 2, v{T[4]}\nv_lshrrev_b32 v{T[5]}, 1, v{c}')
        a(f'v_and_b32 v{T[6]}, 1, v{c}\nv_lshlrev_b32 v{T[6]}, 3, v{T[6]}')
        a(f's_lshl_b32 s{sT0}, s{sW}, 1\nv_add_u32 v{T[7]}, s{sT0}, v{T[5]}\nv_xor_b32 v{T[7]}, v{T[7]}, v{T[4]}')
        a(f'v_lshlrev_b32 v{T[8]}, 1, v{fsub}\nv_xor_b32 v{T[7]}, v{T[7]}, v{T[8]}\nv_lshl_add_u32 v{T[7]}, v{T[7]}, 4, v{T[6]}')
        a(f'v_lshl_add_u32 v{T[9]}, v{q}, 3, v{rr}\nv_lshl_add_u32 v{PAT16}, v{T[9]}, 7, v{T[7]}')
        a(f's_lshl_b32 s{sT0}, s{sHI}, 2\nv_add3_u32 v{T[7]}, s{sT0}, v{T[8]}, v{T[5]}\nv_xor_b32 v{T[7]}, v{T[7]}, v{T[4]}')
        a(f's_lshl_b32 s{sT2}, s{sHI}, 13')
        a(f'v_lshlrev_b32 v{T[9]}, 1, v{h}\nv_xor_b32 v{T[9]}, v{T[9]}, v{T[7]}\nv_lshl_add_u32 v{T[9]}, v{T[9]}, 4, v{T[6]}')
        a(f'v_lshl_add_u32 v{T[10]}, v{h}, 3, v{rr}\nv_lshl_add_u32 v{T[9]}, v{T[10]}, 7, v{T[9]}')
        a(f'v_add_u32 v{PATN[0]}, s{sT2}, v{T[9]}\nv_xor_b32 v{PATN[1]}, 64, v{PATN[0]}')
        a(f'v_lshl_add_u32 v{T[9]}, v{T[7]}, 4, v{T[6]}\nv_lshl_add_u32 v{T[10]}, v{h}, 2, v{rr}\nv_lshl_add_u32 v{PAT3[0]}, v{T[10]}, 7, v{T[9]}')
        a(f'v_xor_b32 v{PAT3[1]}, 32, v{PAT3[0]}\nv_add_u32 v{PAT3[1]}, 1024, v{PAT3[1]}')
        a(f'v_add_u32 v{PATP[0]}, s{sT2}, v{PAT3[0]}\nv_add_u32 v{PATP[1]}, s{sT2}, v{PAT3[1]}')
        a(f'v_xor_b32 v{PATP[2]}, 64, v{PATP[0]}\nv_xor_b32 v{PATP[3]}, 64, v{PATP[1]}')
        a(f'v_lshlrev_b32 v{CELLV}, 10, v{h}\nv_lshl_add_u32 v{CELLV}, v{t32}, 4, v{CELLV}')
        a(f's_lshl_b32 s{sT0}, s{sTH}, 9\nv_add_u32 v{CELLT}, s{sT0}, v{CELLV}')
        for i in range(4): a(f'v_mov_b32 v{ONES+i}, s{sONE}')
        a(f's_lshl_b32 s{sT0}, s{sTH}, 5\nv_add_u32 v{T[0]}, s{sT0}, v{t32}')
        a(f's_lshl_b32 s{sT2}, s{sHI}, 13\nv_lshl_add_u32 v{T[2]}, v{h}, 10, s{sT2}')
        rot = opt.get('rot', 1)
        for g in range(4):
            if rot: a(f's_add_u32 s{sT0}, s{sROT}, {g}\ns_and_b32 s{sT0}, s{sT0}, 3')
            else: a(f's_mov_b32 s{sT0}, {g}')
            a(f's_lshl_b32 s{sKC+g}, s{sT0}, 14\ns_lshr_b32 s{sT3}, s{sT0}, 1\ns_add_u32 s{sT3}, s{sT3}, 1\ns_sub_u32 s{sT4}, 0, s{sT3}\ns_bitcmp1_b32 s{sT0}, 0\ns_cselect_b32 s{sT3}, s{sT3}, s{sT4}')
            a(f'v_add_u32 v{T[3]}, s{sT3}, v{T[0]}\nv_ashrrev_i32 v{T[4]}, 6, v{T[3]}\nv_add_u32 v{T[4]}, s{sR}, v{T[4]}')
            if opt.get('ssh', 0): a(f'v_lshl_add_u32 v{T[3]}, v{T[0]}, 4, v{T[2]}\ns_lshl_b32 s{sT3}, s{sR}, 16\ns_add_u32 s{sT3}, s{sT3}, s{sKC+g}\nv_add_u32 v{T[3]}, s{sT3}, v{T[3]}')
            else: a(f'v_and_b32 v{T[3]}, 63, v{T[3]}\nv_lshl_add_u32 v{T[3]}, v{T[3]}, 4, v{T[2]}\nv_lshl_add_u32 v{T[3]}, v{T[4]}, 16, v{T[3]}\nv_add_u32 v{T[3]}, s{sKC+g}, v{T[3]}')
            a(f'v_cmp_gt_u32 vcc, 32, v{T[4]}\nv_cndmask_b32 v{HV[g]}, v{T[1]}, v{T[3]}, vcc')
        HS = [26, 27]
        if opt.get('ssh', 0):
            a(f's_lshr_b32 s{sT0}, s{sJ}, 1\ns_lshr_b32 s{sT3}, s{sT0}, 1\ns_add_u32 s{sT3}, s{sT3}, 1\ns_sub_u32 s{sT4}, 0, s{sT3}\ns_bitcmp1_b32 s{sT0}, 0\ns_cselect_b32 s{sT3}, s{sT4}, s{sT3}')
            for pr in range(2):
                a(f'v_add_u32 v{T[3]}, s{sT3}, v{t32}')
                if pr: a(f'v_add_u32 v{T[3]}, 32, v{T[3]}')
                a(f'v_ashrrev_i32 v{T[4]}, 6, v{T[3]}\nv_add_u32 v{T[4]}, s{sR}, v{T[4]}\nv_and_b32 v{T[3]}, 63, v{T[3]}\nv_lshlrev_b32 v{T[3]}, 4, v{T[3]}')
                a(f'v_lshl_add_u32 v{T[3]}, v{h}, 10, v{T[3]}\nv_lshl_add_u32 v{T[3]}, v{T[4]}, 16, v{T[3]}\nv_cmp_gt_u32 vcc, 32, v{T[4]}\nv_cndmask_b32 v{HS[pr]}, v{T[1]}, v{T[3]}, vcc')
        a(f'v_lshlrev_b32 v{STA}, 4, v{i16}\nv_add_u32 v{STA}, {SC}, v{STA}')
        a(f'v_lshlrev_b32 v{STB}, 4, v{q}\nv_add_u32 v{STB}, {NMU}, v{STB}')
        a(f'v_lshlrev_b32 v{PSA}, 4, v{T[0]}\nv_add_u32 v{PSA}, {S2}, v{PSA}')
        a(f's_and_b32 s{sT0}, s{sJ}, 1\ns_lshl_b32 s{sT0}, s{sT0}, 3\ns_lshl_b32 s{sT2}, s{sHI}, 2\ns_add_u32 s{sT0}, s{sT0}, s{sT2}')
        a(f's_lshr_b32 s{sT2}, s{sJ}, 1\ns_sub_u32 s{sT2}, s{sT2}, s{sROT}\ns_and_b32 s{sT2}, s{sT2}, 3\ns_lshl_b32 s{sT2}, s{sT2}, 14')
        a(f'v_xor_b32 v{XE}, s{sT0}, v{i16}\nv_lshlrev_b32 v{XE}, 4, v{XE}\nv_lshl_add_u32 v{XE}, v{h}, 3, v{XE}\nv_lshl_add_u32 v{XE}, v{T[0]}, 8, v{XE}\nv_add_u32 v{XE}, s{sT2}, v{XE}')
        a(f's_xor_b32 s{sT0}, s{sW}, 2\ns_lshl_b32 s{sT0}, s{sT0}, 12\ns_add_u32 s{sT0}, s{sT0}, {SC}\nv_add_u32 v{RDX}, s{sT0}, v{LL16}')
        a(f's_lshl_b32 s{sA}, s{sR}, 16')
        a(f's_lshl_b32 s{sT0}, s{sJ}, 2\ns_add_u32 s{sT0}, s{sT0}, s{sW}\ns_lshl_b32 s{sT0}, s{sT0}, 11')
        a(f's_mov_b32 s{sB}, s{sT0}' if opt.get('ssh', 0) else f's_add_u32 s{sB}, s{sA}, s{sT0}')
        if opt.get('kv2', 0): a(f's_mul_i32 s{sT0}, s{sR}, {KVP}')
        else: a(f's_and_b32 s{sT0}, s{sR}, 3\ns_lshl_b32 s{sT0}, s{sT0}, 13')
        a(f's_lshl_b32 s{sC}, s{sJ}, 18\ns_add_u32 s{sC}, s{sC}, s{sT0}\ns_add_u32 s{sC}, s{sC}, {KV_OFF}')
        a(f's_mul_i32 s{sD}, s{sR}, {GBLK}\ns_add_u32 s{sD}, s{sD}, {G_OFF}')

        def cst(k):
            if opt.get('prof') in (1, 2) and opt.get('cset', 0) == k // 8: a(f's_memrealtime s[{4+2*(k%8)}:{5+2*(k%8)}]')
        def stage_pre(st, wks, pats, extra=None, after=None):
            def f():
                for wk, pt in zip(wks, pats):
                    a(f'v_add_u32 v{wk}, {SLOT[st]}, v{pt}')
                if extra: extra()
                self.barC(a, f'B{st}')
                if after: after()
            return f

        def steps_q(first, acc, cs, sets, base_at):
            st = []
            for ks in range(16):
                sb = sets[ks % 3]; stg = first + ks // 4
                reads = [f'ds_read_b64_tr_b16 {vr(sb+16,2)}, v{WK16} offset:{(ks%4)*4096}',
                         f'ds_read_b64_tr_b16 {vr(sb+18,2)}, v{WK16} offset:{(ks%4)*4096+512}']
                reads += [f'ds_read_b128 {vr(sb+4*tt,4)}, v{XB[ks&3]} offset:{tt*4096+(ks>>2)*16384}' for tt in range(4)]
                mf = [f'v_mfma_f32_16x16x32_bf16 {vr(cs,4)}, {vr(sb+16,4)}, {vr(ONES,4)}, {vr(cs,4) if ks else 0}']
                mf += [f'v_mfma_f32_16x16x32_bf16 {vr(acc+4*tt,4)}, {vr(sb+16,4)}, {vr(sb+4*tt,4)}, {vr(acc+4*tt,4) if ks else 0}' for tt in range(4)]
                st.append(dict(reads=reads, mfmas=mf, at=base_at + ks - 2, stage=stg if ks % 4 == 0 else None))
            return st

        HACC, HCS, HSETS = 60, 76, [80, 100, 120]
        KACC, VACC, KCS, VCS, KSETS = 140, 156, 172, 176, [180, 204]
        ovl = opt.get('ovl', 0)
        HF = 60; P2ACC = 180 if ovl else 140
        steps = steps_q(0, HACC, HCS, HSETS, 0)
        steps[0]['at'] = -1; steps[1]['at'] = -1
        for s in steps:
            if s['stage'] is not None: s['pre'] = stage_pre(s['stage'], [WK16], [PAT16])
        nh = len(steps)

        htok = {}
        HST = 80
        def h_stats_reads():
            for tt in range(4):
                htok['s'] = a(f'ds_read_b128 {vr(228+4*tt,4)}, v{STA} offset:{tt*256}')
        def h_epilogue():
            ST = 228; TMP = 100; OUT = 116
            a.wait_lg(htok['s'])
            pairs = [(HACC + 2*u, HCS + 2*(u & 1), ST + 4*(u >> 1), OUT + u) for u in range(8)]
            self.gelu(a, pairs, TMP)
            for pr in range(2):
                a(f'v_permlane16_swap_b32 v{OUT+4*pr}, v{OUT+4*pr+2}\nv_permlane16_swap_b32 v{OUT+4*pr+1}, v{OUT+4*pr+3}')
                htok['st'] = a(f'buffer_store_dwordx4 {vr(OUT+4*pr,4)}, v{HS[pr]}, {srd(sWS)}, s{sB} offen sc1' if opt.get('ssh', 0) else f'buffer_store_dwordx4 {vr(OUT+4*pr,4)}, v{CELLV}, {srd(sWS)}, s{sB} offen offset:{pr*512} sc1')
            cst(0)

        hl = {}; xp = {}
        HX = 196; x2 = {}
        def hload(n):
            sg, i = n // 4, n % 4
            if n >= 16:
                if n == 16: a(f'v_xor_b32 v{HV[0]}, 8192, v{HV[3]}')
                if i % 2 == 0: a(f's_mov_b32 s{sI0}, {H_OFF + (i>>1)*4096}')
                hl[n] = a(f'buffer_load_dwordx4 {vr(HX+4*i,4)}, v{HV[0]}, {srd(sWS)}, s{sI0} offen offset:{(i&1)*2048} sc1')
                return
            if i % 2 == 0: a(f's_mov_b32 s{sI0}, {H_OFF + (i>>1)*4096}')
            hl[n] = a(f'buffer_load_dwordx4 {vr(HF+4*n,4)}, v{HV[sg]}, {srd(sWS)}, s{sI0} offen offset:{(i&1)*2048} sc1')
        for ks in range(16):
            sb = KSETS[ks % 2]; stg = 4 + ks // 2
            o = (ks % 2) * 4096
            reads = [f'ds_read_b64_tr_b16 {vr(sb+16,2)}, v{WK16} offset:{o}', f'ds_read_b64_tr_b16 {vr(sb+18,2)}, v{WK16} offset:{o+512}',
                     f'ds_read_b128 {vr(sb,4)}, v{XB[ks&3]} offset:{(ks>>2)*16384}',
                     f'ds_read_b64_tr_b16 {vr(sb+20,2)}, v{WK16} offset:{o+8192}', f'ds_read_b64_tr_b16 {vr(sb+22,2)}, v{WK16} offset:{o+8192+512}']
            reads += [f'ds_read_b128 {vr(sb+4*tt,4)}, v{XB[ks&3]} offset:{tt*4096+(ks>>2)*16384}' for tt in range(1, 4)]
            mf = [f'v_mfma_f32_16x16x32_bf16 {vr(KCS,4)}, {vr(ONES,4)}, {vr(sb+16,4)}, {vr(KCS,4) if ks else 0}',
                  f'v_mfma_f32_16x16x32_bf16 {vr(VCS,4)}, {vr(ONES,4)}, {vr(sb+20,4)}, {vr(VCS,4) if ks else 0}']
            for tt in range(4):
                mf.append(f'v_mfma_f32_16x16x32_bf16 {vr(KACC+4*tt,4)}, {vr(sb+4*tt,4)}, {vr(sb+16,4)}, {vr(KACC+4*tt,4) if ks else 0}')
                mf.append(f'v_mfma_f32_16x16x32_bf16 {vr(VACC+4*tt,4)}, {vr(sb+4*tt,4)}, {vr(sb+20,4)}, {vr(VACC+4*tt,4) if ks else 0}')
            s = dict(reads=reads, mfmas=mf, at=nh + ks - 1)
            if ks % 2 == 0:
                extra = after = None
                if stg == opt.get('fh_bar', 6): extra = lambda: (a.wait_vm(htok['st']), cst(1))
                if stg == opt.get('hl_bar', 11): after = lambda: a.inject([lambda n=n: hload(n) for n in range(16)], opt.get('hl_every', 16))
                if stg == 4: after = h_stats_reads
                if stg == opt.get('xn_bar', 11) - 1: after = lambda o=after: ((o() if o else None), xn_prep())
                if stg == opt.get('xn_bar', 11): extra = lambda: xn_prep2()
                s['pre'] = stage_pre(stg, [WK16], [PAT16], extra, after)
            steps.append(s)
        kr0, kp0 = steps[nh]['reads'], steps[nh]['pre']
        steps[nh]['reads'] = []; steps[nh]['pre'] = None
        def h_hook():
            kp0()
            for t in kr0: steps[nh]['tok'] = a(t)
            h_epilogue()
        steps[nh]['hook'] = h_hook
        nkv = len(steps)

        ASETS = [228, 236, 244]
        def steps_ks(first, nstage, pats, natural, acc, bfrag, asets, base, setphase=0, init=True, c_init=None):
            st = []
            for n in range(4 * nstage):
                stg = first + n // 4; i = n % 4
                sb = asets[(n + setphase) % 3]
                reads = []
                for t in range(2):
                    for rd in range(2):
                        if natural:
                            reads.append(f'ds_read_b64_tr_b16 {vr(sb+4*t+2*rd,2)}, v{WK[t]} offset:{i*2048+rd*512}')
                        else:
                            reads.append(f'ds_read_b64_tr_b16 {vr(sb+4*t+2*rd,2)}, v{WK[2*t+rd]} offset:{i*2048}')
                b = bfrag(n)
                c0 = vr(acc if (n or c_init is None) else c_init, 16)
                c1 = vr(acc + 16, 16) if (n or not init) else 0
                mf = [f'v_mfma_f32_32x32x16_bf16 {vr(acc,16)}, {vr(sb,4)}, {vr(b,4)}, {c0}',
                      f'v_mfma_f32_32x32x16_bf16 {vr(acc+16,16)}, {vr(sb+4,4)}, {vr(b,4)}, {c1}']
                s = dict(reads=reads, mfmas=mf, at=base + n - 2)
                if i == 0: s['pre'] = stage_pre(stg, WK[:len(pats)], pats)
                st.append(s)
            return st

        p2 = steps_ks(12, 4, PATN, True, P2ACC, lambda n: HF + 4 * n, ASETS, nkv, c_init=124)
        p2[0]['at'] = nkv - 1; p2[1]['at'] = nkv - 1
        if opt.get('hl_bar', 11) == 12:
            p2[0]['pre'] = (lambda o=p2[0]['pre']: (o(), a.inject([lambda n=n: hload(n) for n in range(16)], opt.get('hl_every', 16))))
        XN = 124
        def xn_prep():
            XR = 228
            a(f'v_xor_b32 v{XR+8}, 16, v{XE}\nv_xor_b32 v{XR+9}, 32, v{XE}\nv_xor_b32 v{XR+10}, 48, v{XE}')
            a(f'ds_read_b64 {vr(XR,2)}, v{XE}')
            for g in range(1, 4): a(f'ds_read_b64 {vr(XR+2*g,2)}, v{XR+7+g}')
            xp['t'] = a(f'ds_read_b64 {vr(XR+12,2)}, v{PSA}')
        def xn_prep2():
            XR = 228
            a.wait_lg(xp['t'])
            for g in range(4):
                for d in range(2):
                    a(f'v_lshlrev_b32 v{RES+4*g+2*d}, 16, v{XR+2*g+d}\nv_and_b32 v{RES+4*g+2*d+1}, 0xffff0000, v{XR+2*g+d}')
            a(f'v_mul_f32 v{XR+12}, v{XR+12}, v{XR+13}')
            for u in range(16): a(f'v_fma_f32 v{XN+u}, v{RES+u}, v{XR+13}, v{XR+12}')
        def kv_epilogue():
            cst(16)
            SN, SR_, SL = 180, 196, 212
            for tt in range(4): a(f'ds_read_b128 {vr(SN+4*tt,4)}, v{STB} offset:{tt*64}')
            for tt in range(4): tk1 = a(f'ds_read_b128 {vr(SL+4*tt,4)}, v{STB} offset:{tt*64+512}')
            for tt in range(4): tk = a(f'ds_read_b128 {vr(SR_+4*tt,4)}, v{STB} offset:{tt*64+256}')
            a.wait_lg(tk1)
            for u in range(8):
                a(f'v_pk_fma_f32 {P(KACC+2*u)}, {P(SN+2*u)}, {P(KCS)}, {P(KACC+2*u)} op_sel_hi:[1,0,1]')
            for u in range(8):
                a(f'v_pk_fma_f32 {P(VACC+2*u)}, {P(SN+2*u)}, {P(VCS)}, {P(VACC+2*u)} op_sel_hi:[1,0,1]')
            for u in range(8):
                a(f'v_pk_mul_f32 {P(SL+2*u)}, {P(SL+2*u)}, {P(KACC+2*u)}')
            a.wait_lg(tk)
            for tt in range(4):
                a(f'ds_read_b128 {vr(QST+4*tt,4)}, v{STA} offset:{1024+tt*256}')
            for u in range(8):
                a(f'v_pk_fma_f32 {P(KACC+2*u)}, {P(KACC+2*u)}, {P(SR_+2*u)}, s[{sEPS}:{sEPS+1}]')
            for u in range(8):
                a(f'v_pk_mul_f32 {P(VACC+2*u)}, {P(VACC+2*u)}, {P(SR_+2*u)}')
            cst(17)
            PKR, PVR = (164, 156) if ovl else (180, 188)
            for u in range(8): a(f'v_cvt_pk_bf16_f32 v{PVR+u}, v{VACC+2*u}, v{VACC+2*u+1}')
            KVA, ZA = 172, 176
            XR = 140 if ovl else 196
            def rest():
                if ovl:
                    for i in range(16): a(f'v_exp_f32_e64 v{SL+i}, v{SL+i} clamp\nv_max_f32_e64 v{KACC+i}, v{KACC+i}, s{sEPS}')
                    for i in range(16): a(f'v_add_f32_e64 v{KACC+i}, v{KACC+i}, v{SL+i}')
                    for u in range(8): a(f'v_cvt_pk_bf16_f32 v{PKR+u}, v{KACC+2*u}, v{KACC+2*u+1}')
                else:
                    self.phi_tail(a, [KACC + 2*u for u in range(8)], [PKR + u for u in range(8)], SL)
                cst(18)
                a(f'v_and_b32 v{XR+3}, 15, v0\nv_lshrrev_b32 v{XR+4}, 4, v0')
                a(f'v_mfma_f32_16x16x32_bf16 {vr(ZA,4)}, {vr(PKR,4)}, {vr(ONES,4)}, 0')
                a(f'v_mfma_f32_16x16x32_bf16 {vr(KVA,4)}, {vr(PVR,4)}, {vr(PKR,4)}, 0')
                a(f'v_mfma_f32_16x16x32_bf16 {vr(ZA,4)}, {vr(PKR+4,4)}, {vr(ONES,4)}, {vr(ZA,4)}')
                a(f'v_mfma_f32_16x16x32_bf16 {vr(KVA,4)}, {vr(PVR+4,4)}, {vr(PKR+4,4)}, {vr(KVA,4)}')
                a(f'v_lshlrev_b32 v{XR+2}, 8, v{XR+4}\nv_lshl_add_u32 v{XR+2}, v{XR+3}, 2, v{XR+2}')
                if opt.get('kv2', 0): a(f'v_lshlrev_b32 v{XR+2}, 2, v0')
                a(f'v_lshl_add_u32 v{XR+4}, v{XR+4}, 2, v{XR+3}\nv_lshlrev_b32 v{XR+4}, 2, v{XR+4}')
                a(f'v_mov_b32 v{XR+5}, {OOB}\nv_cmp_gt_u32 vcc, 4, v{XR+3}\nv_cndmask_b32 v{XR+4}, v{XR+5}, v{XR+4}, vcc')
                for k in range(1, 4): a(f'v_cmp_eq_u32 vcc, {k}, v{XR+3}\nv_cndmask_b32 v{ZA}, v{ZA}, v{ZA+k}, vcc')
            def atomics():
                a(f's_lshl_b32 s{sT3}, s{sW}, 10\ns_add_u32 s{sT3}, s{sT3}, s{sC}\ns_lshl_b32 s{sT4}, s{sW}, 6\ns_add_u32 s{sT4}, s{sT4}, s{sC}\ns_add_u32 s{sT4}, s{sT4}, {KV_Z}')
                for k in range(4):
                    a(f'buffer_store_dword v{KVA+k}, v{XR+2}, {srd(sWS)}, s{sT3} offen offset:{k*256} sc1' if opt.get('kv2', 0) else f'buffer_atomic_add_f32 v{KVA+k}, v{XR+2}, {srd(sWS)}, s{sT3} offen offset:{k*64}')
                htok['kv'] = a(f'buffer_store_dword v{ZA}, v{XR+4}, {srd(sWS)}, s{sT4} offen sc1' if opt.get('kv2', 0) else f'buffer_atomic_add_f32 v{ZA}, v{XR+4}, {srd(sWS)}, s{sT4} offen')
            htok['atomics'] = atomics
            if ovl:
                a.flush_inject()
                lines = a.record(rest)
                per = opt.get('ovl_n', 4)
                k = 0
                for st_ in p2:
                    tl = []
                    for _ in range(2):
                        part = lines[k:k + per]; k += per
                        tl.append((lambda part=part: a('\n'.join(part))) if part else None)
                    st_['tail'] = tl
                assert k >= len(lines)
                if opt.get('atp', 0) == 0: p2[(len(lines) // (2 * per)) + 1]['post'] = [atomics]
            else:
                rest()
                a.flush_inject()
                cst(19)
                if opt.get('x_noat', 0): htok['kv'] = None
                else: atomics()
        p2[0]['hook'] = kv_epilogue
        if opt.get('kv2', 0):
            kb = 4 * (opt.get('fa_bar', 15) - 12)
            okb = p2[kb]['pre']
            p2[kb]['pre'] = lambda: (a.wait_vm(htok['kv']), okb())
        for n, s in enumerate(p2):
            s['vm'] = (lambda n=n: hl[n])
            if n in (1, 8, 15): s['hook'] = (lambda n=n: cst({1: 20, 8: 21, 15: 22}[n]))
        steps += p2
        np2 = len(steps)

        qs = steps_q(16, HACC, HCS, HSETS, np2)
        x1tok = {}
        for s in qs:
            if s['stage'] is not None:
                extra = None
                if s['stage'] == opt.get('fx_bar', 17): extra = lambda: (a.wait_vm(x1tok['st']), cst(3))
                s['pre'] = stage_pre(s['stage'], [WK16], [PAT16], extra)
        qr0, qr1 = qs[0]['reads'], qs[1]['reads']
        qs[0]['reads'] = []; qs[1]['reads'] = []; qs[0]['pre'] = None
        qs[0]['at'] = np2; qs[1]['at'] = np2
        def exchange(acc, rcv, nb, between=None):
            a(f'v_xor_b32 v{rcv}, 8192, v{RDX}')
            for g in range(4):
                a(f'ds_write_b128 v{rcv}, {vr(acc+16+4*g,4)} offset:{g*1024}')
            if between: between()
            a.wait_lg0()
            self.barC(a, nb)
            return [a(f'ds_read_b128 {vr(rcv+4*g,4)}, v{RDX} offset:{g*1024}') for g in range(4)]
        def unsplit_last(st, acc, rcv, nb, stg, natural, asets, phase, own, oth, xt):
            n0 = len(st) - 4
            pats = [PATN[0]] if natural else PATP[:2]
            def pre(o=st[n0].get('extra')):
                if o: o()
                self.barC(a, f'B{stg}')
                for k, pt in enumerate(pats):
                    a(f'v_add_u32 v{WK[k]}, {SLOT[stg]}, v{pt}\nv_xor_b32 v{WK[2+k]}, 8192, v{WK[k]}')
            st[n0]['pre'] = pre
            for i in range(4):
                s = st[n0 + i]; sb = asets[(n0 + i + phase) % 3]
                s['reads'] = []
                for u in range(2):
                    for rd in range(2):
                        if natural: s['reads'].append(f'ds_read_b64_tr_b16 {vr(sb+4*u+2*rd,2)}, v{WK[2*u]} offset:{i*2048+rd*512}')
                        else: s['reads'].append(f'ds_read_b64_tr_b16 {vr(sb+4*u+2*rd,2)}, v{WK[2*u+rd]} offset:{i*2048}')
                s['mfmas'] = [f'v_mfma_f32_32x32x16_bf16 {vr(acc,16)}, {vr(sb,4)}, {vr(own(i),4)}, {vr(acc,16)}',
                              f'v_mfma_f32_32x32x16_bf16 {vr(acc,16)}, {vr(sb+4,4)}, {vr(oth(i),4)}, {vr(acc,16)}']
            wt = {}
            def wr(g):
                if g == 0: a(f'v_xor_b32 v{rcv}, 8192, v{RDX}')
                wt[g] = a(f'ds_write_b128 v{rcv}, {vr(acc+16+4*g,4)} offset:{g*1024}')
            st[n0]['tail'] = [None, lambda: (wr(0), wr(1))]
            st[n0 + 1]['tail'] = [lambda: wr(2), lambda: wr(3)]
            def sync():
                a.wait_lg(wt[3])
                self.barC(a, nb)
                xt['tk'] = [a(f'ds_read_b128 {vr(rcv+4*g,4)}, v{RDX} offset:{g*1024}') for g in range(4)]
            st[n0 + 3]['tail'] = [sync, None]
        def p2_epilogue():
            RCV, OUT, SS = (60, 76, 84) if ovl else (180, 196, 204)
            cst(23)
            def between():
                a(f's_lshl_b32 s{sT2}, s{sJ}, 1\ns_add_u32 s{sT2}, s{sT2}, s{sHI}\ns_lshl_b32 s{sT0}, s{sT2}, 12\ns_add_u32 s{sT0}, s{sT0}, s{sA}\ns_add_u32 s{sT0}, s{sT0}, {X1_OFF}')
                a(f's_lshl_b32 s{sT2}, s{sT2}, 9\ns_lshl_b32 s{sT3}, s{sR}, 13\ns_add_u32 s{sT2}, s{sT2}, s{sT3}\ns_lshl_b32 s{sT3}, s{sTH}, 8\ns_add_u32 s{sT2}, s{sT2}, s{sT3}\ns_add_u32 s{sT2}, s{sT2}, {XS_OFF}')
                a(f'v_add_u32 v{WK16}, {SLOT[16]}, v{PAT16}')
                a(f'v_and_b32 v{SS+8}, 31, v0\nv_lshrrev_b32 v{SS+9}, 5, v0\nv_lshlrev_b32 v{SS+9}, 2, v{SS+9}\nv_lshl_add_u32 v{SS+8}, v{SS+8}, 3, v{SS+9}')
            if opt.get('us2', 0):
                between(); tk = x2['tk']
            else: tk = exchange(P2ACC, RCV, 'RB1', between)
            for b in range(2):
                a.wait_lg(tk[2*b+1])
                for u in range(4*b, 4*b+4): a(f'v_pk_add_f32 {P(P2ACC+2*u)}, {P(P2ACC+2*u)}, {P(RCV+2*u)}')
                for u in range(4*b, 4*b+4): a(f'v_cvt_pk_bf16_f32 v{OUT+u}, v{P2ACC+2*u}, v{P2ACC+2*u+1}')
                a(f'buffer_store_dwordx4 {vr(OUT+4*b,4)}, v{CELLT}, {srd(sWS)}, s{sT0} offen offset:{b*2048} sc1')
            a(f'v_pk_add_f32 {P(SS)}, {P(P2ACC)}, {P(P2ACC+2)}\nv_pk_mul_f32 {P(SS+2)}, {P(P2ACC)}, {P(P2ACC)}')
            a(f'v_pk_add_f32 {P(SS+4)}, {P(P2ACC+4)}, {P(P2ACC+6)}\nv_pk_mul_f32 {P(SS+6)}, {P(P2ACC+2)}, {P(P2ACC+2)}')
            for u in range(2, 8):
                k = 4 * (u & 1)
                a(f'v_pk_fma_f32 {P(SS+2+k)}, {P(P2ACC+2*u)}, {P(P2ACC+2*u)}, {P(SS+2+k)}')
                if u >= 4: a(f'v_pk_add_f32 {P(SS+k)}, {P(SS+k)}, {P(P2ACC+2*u)}')
            a(f'v_pk_add_f32 {P(SS)}, {P(SS)}, {P(SS+4)}\nv_pk_add_f32 {P(SS+2)}, {P(SS+2)}, {P(SS+6)}')
            a(f'v_add_f32 v{SS}, v{SS}, v{SS+1}\nv_add_f32 v{SS+2}, v{SS+2}, v{SS+3}')
            a(f'v_permlane32_swap_b32 v{SS}, v{SS+2}\nv_add_f32 v{SS}, v{SS}, v{SS+2}')
            x1tok['st'] = a(f'buffer_store_dword v{SS}, v{SS+8}, {srd(sWS)}, s{sT2} offen sc1')
            cst(2)
            for u in range(8): a(f'v_pk_add_f32 {P(RES+2*u)}, {P(RES+2*u)}, {P(P2ACC+2*u)}')
            if ovl and opt.get('atp', 0) == 1: htok['atomics']()
            if opt.get('fx_bar', 17) == 16:
                a.wait_vm(x1tok['st']); cst(3)
            self.barC(a, 'B16')
            for t in qr0: qs[0]['tok'] = a(t)
            for t in qr1: qs[1]['tok'] = a(t)
        qs[0]['hook'] = p2_epilogue
        if opt.get('us2', 0):
            unsplit_last(p2, P2ACC, 180, 'RB1', 15, True, ASETS, 0, lambda i: HF + 4 * (12 + i), lambda i: HX + 4 * i, x2)
            for n in range(12, 16): p2[n]['vm'] = (lambda n=n: hl[n + 4])
            for n in range(4): p2[2 + n]['post'] = [lambda n=n: hload(16 + n)]
        steps += qs
        nq = len(steps)

        BST = 128; A3 = [60, 68, 76]; ACA, ACB = 84, 100
        GST = 40; GT = 44; CSG = 112
        X1B, CSB, CSB2, HFB = 2, 3, 4, 5
        HP = [6, 7]
        def q_epilogue():
            TMP = 100; OUT = 116; QP = 80
            a.wait_vm(htok['kv'])
            self.barC(a, 'QE')
            for u in range(8):
                a(f'v_pk_fma_f32 {P(HACC+2*u)}, {P(HCS+2*(u&1))}, {P(QST+4*(u>>1))}, {P(HACC+2*u)} op_sel_hi:[1,0,1]')
            for u in range(8):
                a(f'v_pk_mul_f32 {P(TMP+2*u)}, {P(HACC+2*u)}, {P(QST+4*(u>>1)+2)} op_sel_hi:[1,0]')
            for u in range(8):
                a(f'v_pk_fma_f32 {P(HACC+2*u)}, {P(HACC+2*u)}, {P(QST+4*(u>>1))}, s[{sEPS}:{sEPS+1}] op_sel:[0,1,0] op_sel_hi:[1,1,1]')
            self.phi_tail(a, [HACC + 2*u for u in range(8)], [OUT + u for u in range(8)], TMP)
            a(f's_lshl_b32 s{sT0}, s{sW}, 11\ns_add_u32 s{sT0}, s{sT0}, {PQ}\nv_lshlrev_b32 v{QP}, 3, v0\nv_add_u32 v{QP}, s{sT0}, v{QP}')
            for tt in range(4): a(f'ds_write_b64 v{QP}, {vr(OUT+2*tt,2)} offset:{tt*512}')
            a(f's_lshl_b32 s{sT0}, s{sTH}, 10\nv_add_u32 v{X1B}, s{sT0}, v{LL16}')
            a(f's_lshl_b32 s{sT2}, s{sHI}, 15\nv_add_u32 v{HFB}, s{sT2}, v{X1B}')
            a(f's_and_b32 s{sT3}, s{sJ}, 1\ns_lshl_b32 s{sT4}, s{sT3}, 5')
            a(f's_lshl_b32 s{sT0}, s{sHI}, 5\ns_add_u32 s{sT0}, s{sT0}, s{sT4}\ns_lshl_b32 s{sT0}, s{sT0}, 2\ns_add_u32 s{sT0}, s{sT0}, {CS3L}')
            a(f'v_lshrrev_b32 v{QP+1}, 5, v0\nv_lshlrev_b32 v{QP+1}, 4, v{QP+1}\nv_add_u32 v{CSB}, s{sT0}, v{QP+1}')
            a(f's_cmp_eq_u32 s{sT3}, 0\ns_cselect_b32 s{sT5}, 192, 0')
            a(f's_lshl_b32 s{sT0}, s{sHI}, 4\ns_add_u32 s{sT0}, s{sT0}, s{sT5}\ns_lshl_b32 s{sT0}, s{sT0}, 2\ns_add_u32 s{sT0}, s{sT0}, {CS3L}')
            a(f'v_add_u32 v{CSB2}, s{sT0}, v{QP+1}')
            a(f's_lshl_b32 s{sT0}, s{sHI}, 5\nv_xor_b32 v{HP[0]}, s{sT0}, v{PAT3[0]}\nv_xor_b32 v{HP[1]}, s{sT0}, v{PAT3[1]}')
            a(f'v_and_b32 v{STA}, 31, v0\nv_lshlrev_b32 v{STA}, 4, v{STA}\ns_lshl_b32 s{sT0}, s{sTH}, 9\ns_add_u32 s{sT0}, s{sT0}, {X1P}\nv_add_u32 v{STA}, s{sT0}, v{STA}')
            a(f's_mul_i32 s{sT0}, s{sJ}, 14\ns_lshr_b32 s{sT4}, s{sT4}, 4\ns_lshl_b32 s{sT2}, s{sHI}, 1\ns_add_u32 s{sB}, s{sT0}, s{sT4}\ns_add_u32 s{sB}, s{sB}, s{sT2}')
            a(f's_lshl_b32 s{sB}, s{sB}, 11\ns_add_u32 s{sB}, s{sB}, s{sD}')
            a(f's_lshr_b32 s{sT5}, s{sT5}, 4\ns_add_u32 s{sC}, s{sT0}, s{sT5}\ns_add_u32 s{sC}, s{sC}, s{sHI}\ns_lshl_b32 s{sC}, s{sC}, 11\ns_add_u32 s{sC}, s{sC}, s{sD}')
            a.wait_lg0()
            self.barC(a, 'XA')

        HB = [44, 116, 52]
        def steps_p3(first, nstage, acc, pats, base, kind, phase):
            st = []
            for n in range(4 * nstage):
                stg = first + n // 4
                sb = A3[(n + phase) % 3]
                reads = []; mf = []
                for u in range(2):
                    i = 2 * n + u; s_ = i % 8
                    reads += [f'ds_read_b64_tr_b16 {vr(sb+4*u+2*rd,2)}, v{WK[rd]} offset:{s_*2048}' for rd in range(2)]
                    if kind == 'p0':
                        reads.append(f'ds_read_b128 {vr(BST+4*i,4)}, v{X1B} offset:{i*2048}'); b = BST + 4 * i
                    elif kind == 'hf' and opt.get('hfv', 1):
                        b = BST + 4 * i
                    elif kind == 'hf':
                        b = HB[(n % 3)] + 4 * u
                        reads.append(f'ds_read_b128 {vr(b,4)}, v{HFB} offset:{i*2048}')
                    else:
                        b = BST + 4 * i
                    mf.append(f'v_mfma_f32_32x32x16_bf16 {vr(acc,16)}, {vr(sb+4*u,4)}, {vr(b,4)}, {vr(acc,16) if i else 0}')
                s = dict(reads=reads, mfmas=mf, at=base + n - 2)
                if n % 4 == 0: s['pre'] = stage_pre(stg, WK[:2], pats)
                st.append(s)
            return st
        gtok = {}
        def cs_reads(csreg, csoff, ng):
            def one(g):
                gtok['cs'] = a(f'ds_read_b128 {vr(CSG+4*g,4)}, v{csreg} offset:{csoff+g*32}')
            return [lambda g=g: one(g) for g in range(ng)]
        pend_st = []
        def g_epi(acc, ng, sbase, after_first=None, cs_=None, out=None, key=None, adv=False):
            a.wait_lg(gtok['cs'])
            o = (lambda u: acc + 8*(u >> 2) + (u & 3)) if out is None else (lambda u: out + u)
            pairs = [(acc + 2*u, CSG + 2*u, GST, o(u)) for u in range(2 * ng)]
            self.gelu(a, pairs, GT, after_first)
            if cs_: cst(cs_)
            def st(b):
                gtok[key] = a(f'buffer_store_dwordx4 {vr(o(4*b),4)}, v{CELLT}, {srd(sWS)}, s{sbase} offen offset:{b*2048} sc1')
                if adv and b == ng // 2 - 1: a(f's_add_u32 s{sbase}, s{sbase}, 8192')
            for b in range(ng // 2):
                if opt.get('dst', 1): pend_st.append(lambda b=b: st(b))
                else: st(b)
        def add_stores(step0, step1):
            def pop():
                if pend_st: pend_st.pop(0)()
            step0['tail'] = [pop, pop]; step1['tail'] = [pop, None]
        def hf_send():
            t = GT
            a(f's_lshl_b32 s{sT0}, s{sW}, 11\ns_add_u32 s{sT0}, s{sT0}, {SC}\nv_add_u32 v{t}, s{sT0}, v{LL16}')
            a(f'ds_write_b128 v{t}, {vr(ACB+8,4)}')
            gtok['hfw'] = a(f'ds_write_b128 v{t}, {vr(ACB+12,4)} offset:1024')
            a(f'v_xor_b32 v{HFB}, 4096, v{t}')

        p0 = steps_p3(20, 4, ACA, PAT3, nq, 'p0', 0)
        p0[0]['at'] = nq; p0[1]['at'] = nq; p0[0]['hook'] = q_epilogue
        p0[15]['post'] = [lambda: a(f'ds_read_b128 {vr(GST,4)}, v{STA}')] + cs_reads(CSB, 0, 4)
        steps += p0; n0 = len(steps)
        hf = steps_p3(24, 2, ACB, HP, n0, 'hf', 16)
        for k in range(2):
            hf[k]['late'] = [t for t in hf[k]['reads'] if 'b128' in t]
            hf[k]['reads'] = [t for t in hf[k]['reads'] if 'b128' not in t]
        def hf_hook():
            g_epi(ACA, 4, sB, key='g0', adv=True)
            for k in range(2):
                for t in hf[k]['late']: hf[k]['tok'] = a(t)
        mark = {}
        if opt.get('hfv', 1):
            o24 = hf[0]['pre']
            hf[0]['pre'] = lambda: (a.wait_lg(p0[15]['tok']), o24())
            def hf_hook(f=hf_hook):
                f(); mark['i'] = len(a.ins)
        def hf_dup():
            body = a.ins[mark['i']:]
            del a.ins[mark['i']:]
            def sub(t):
                m = re.match(r'(v_mfma_f32_32x32x16_bf16 v\[100:115\], v\[\d+:\d+\], )v\[(\d+):(\d+)\](.*)', t)
                return f'{m.group(1)}v[{int(m.group(2))+64}:{int(m.group(3))+64}]{m.group(4)}' if m else t
            a.ins += [Ins(f's_cmp_lg_u32 s{sHI}, 0'), Ins('s_cbranch_scc1 L_hf1')] + body + [Ins('s_branch L_hf2'), Ins('L_hf1:')]
            a.ins += [Ins(sub(i.text)) for i in body] + [Ins('L_hf2:')]
        hf[0]['hook'] = hf_hook
        add_stores(hf[0], hf[1])
        steps += hf; n1 = len(steps)
        p1 = steps_p3(26, 4, ACA, PAT3, n1, 'p', 24)
        p1[0]['hook'] = (lambda: (hf_dup(), hf_send())) if opt.get('hfv', 1) else hf_send
        old = p1[4]['pre']
        p1[4]['pre'] = lambda: (a.wait_lg(gtok['hfw']), old())
        def hf_recv():
            a(f'ds_read_b128 {vr(ACB+8,4)}, v{HFB}')
            gtok['hfr'] = a(f'ds_read_b128 {vr(ACB+12,4)}, v{HFB} offset:1024')
        def hf_add(k):
            a.wait_lg(gtok['hfr'])
            for u in range(4*k, 4*k+4): a(f'v_add_f32_e64 v{ACB+u}, v{ACB+u}, v{ACB+8+u}')
        p1[8]['post'] = [hf_recv]
        p1[11]['post'] = [lambda: hf_add(0)]
        p1[12]['post'] = [lambda: hf_add(1)]
        p1[15]['post'] = cs_reads(CSB, 256, 4)
        steps += p1; n2 = len(steps)
        p2_ = steps_p3(30, 4, ACA, PAT3, n2, 'p', 40)
        def p1_epilogue():
            cst(8)
            g_epi(ACA, 4, sB, lambda: [f() for f in cs_reads(CSB2, 0, 2)], 9, out=120, key='g1', adv=True)
            cst(10)
            g_epi(ACB, 2, sC, None, 11, key='g1')
            cst(12)
        p2_[0]['hook'] = p1_epilogue
        add_stores(p2_[0], p2_[1])
        p2_[2 if opt.get('sc10', 1) else 15]['post'] = cs_reads(CSB, 512, 4)
        p2_[1]['hook'] = lambda: cst(13)
        p2_[2]['hook'] = lambda: cst(14)
        p2_[3]['hook'] = lambda: cst(15)
        steps += p2_; n3 = len(steps)

        P4ACC = 84; FR = 128
        p4 = []
        fl = {}
        def fload(n):
            kind, sg = STAGES[min(34 + n // 4, 51)]; i = n % 4
            if n == 72:
                d = 8192 if kind == 'wo' else 32768
                a(f's_lshl_b32 s{sT0}, s{sHI}, 1\ns_sub_u32 s{sT0}, 1, s{sT0}\ns_mul_i32 s{sT0}, s{sT0}, {d}\ns_add_u32 s{sI0}, s{sI0}, s{sT0}\ns_sub_u32 s{sI0}, s{sI0}, 4096')
            elif i % 2 == 0:
                if i: a(f's_add_u32 s{sI0}, s{sI0}, 4096')
                elif kind == 'wo': a(f's_add_u32 s{sI0}, s{sT5}, s{sKC+sg}')
                elif kind == 'gh': a(f's_add_u32 s{sI0}, s{sRG}, {sg}\ns_and_b32 s{sI0}, s{sI0}, 1\ns_mul_i32 s{sI0}, s{sI0}, {896*128}\ns_add_u32 s{sI0}, s{sI0}, s{sT4}')
                else:
                    a(f's_add_u32 s{sI0}, s{sD}, s{sKG+sg}')
                    if kind != 'g0': a(f's_add_u32 s{sI0}, s{sI0}, {g_rows(kind, 0)[0]*128}')
            if opt.get('x_skip', 0) and kind != 'wo' and n % 4 >= 4 - opt['x_skip'] and n >= 4:
                fl[n] = fl[n - 1]; return
            fl[n] = a(f'buffer_load_dwordx4 {vr(FR+4*(n%32),4)}, v{CELLT}, {srd(sWS)}, s{sI0} offen offset:{(i&1)*2048} sc1')
        firsts = {}
        for first in range(34, NST):
            kind, sg = STAGES[first]
            if sg: continue
            cnt = 2 if kind == 'gh' else 4; nat = kind == 'wo'
            k0 = 4 * (first - 34); firsts[k0] = {'g0': FG0, 'g1': FG1, 'gh': FG1, 'wo': FO, 'g2': FG2}[kind]
            p4 += steps_ks(first, cnt, PATN if nat else PATP, nat, P4ACC, lambda n, k0=k0: FR + 4 * ((n + k0) % 32), A3, n3 + k0,
                           setphase=56 + k0, init=(first == 34), c_init=RES if first == 34 else None)
        NG = opt.get('ng', 10); NG0 = opt.get('ng0', 8)
        def p4_bases():
            a(f's_lshl_b32 s{sT0}, s{sHI}, 13\ns_add_u32 s{sT5}, s{sT0}, s{sA}\ns_add_u32 s{sT5}, s{sT5}, {O_OFF}')
            a(f's_mul_i32 s{sT4}, s{sHI}, {448*128}\ns_add_u32 s{sT4}, s{sT4}, s{sD}\ns_add_u32 s{sT4}, s{sT4}, {192*128}\ns_lshl_b32 s{sT0}, s{sHI}, 15\ns_add_u32 s{sD}, s{sD}, s{sT0}')
            for k in range(4): a(f's_add_u32 s{sT0}, s{sRG}, {k}\ns_and_b32 s{sT0}, s{sT0}, 3\ns_mul_i32 s{sKG+k}, s{sT0}, {448*128}\ns_lshl_b32 s{sKC+k}, s{sT0}, 14')
        EG = opt.get('eg', 0)
        if EG:
            k1 = opt.get('eg_step', 3)
            p2_[k1 - 1]['post'] = [p4_bases]
            for n in range(EG):
                st_ = p2_[min(k1 + n // opt.get('eg_rate', 2), 15)]
                assert n < 2 * min(k1 + n // opt.get('eg_rate', 2), 15)
                st_['post'] = st_.get('post', []) + [lambda n=n: fload(n)]
            NG0 = max(NG0, EG)
        def p3_last_epilogue():
            if not EG: p4_bases()
            a.inject([lambda n=n: fload(n) for n in range(EG, NG0)], opt.get('fl_every', 12))
            g_epi(ACA, 4, sB, out=116, key='g2')
            a.flush_inject()
            cst(6)
        p4[0]['hook'] = p3_last_epilogue
        add_stores(p4[0], p4[1])
        nxt = NG0
        self.need = {firsts[k]: 34 for k in firsts if 0 < k < NG0}
        for n, s in enumerate(p4):
            s['vm'] = (lambda n=n: fl[n + 4 if (n >= 68 and opt.get('us4', 1)) else n])
            post = []
            while nxt < (76 if opt.get('us4', 1) else 72) and nxt < n + 1 + NG + (4 if nxt >= 72 else 0) and len(post) < 2:
                if nxt in firsts: self.need.setdefault(firsts[nxt], 34 + (n + 2) // 4)
                post.append(lambda m=nxt: fload(m)); nxt += 1
            s['post'] = post
        def add_wait(step, key):
            o = step['pre']
            step['pre'] = lambda: (a.wait_vm(gtok[key]), o())
        for b_, nx, pv in ((30, p2_[0], p1[15]), (34, p4[0], p2_[15])):
            if str(b_) in str(opt.get('erel', '24.30.34')).split('.'):
                nx['pre'] = (lambda o=nx['pre'], pv=pv: (a.wait_lg(pv['tok']), o()))
        add_wait(p1[4 * (opt.get('fg0_bar', 27) - 26)], 'g0'); add_wait(p2_[12] if opt.get('fg1_bar', 34) == 33 else p4[4 * (opt.get('fg1_bar', 34) - 34)], 'g1'); add_wait(p4[4 * (opt.get('fg2_bar', 37) - 34)], 'g2')
        x4 = {}
        if opt.get('us4', 1):
            kind51 = STAGES[51][0]
            unsplit_last(p4, P4ACC, 40, 'RB2', 51, kind51 == 'wo', A3, 56, lambda i: FR + 4 * ((68 + i) % 32), lambda i: FR + 4 * ((72 + i) % 32), x4)
        self.x4 = x4
        steps += p4

        if opt.get('cprio', 2): a(f's_setprio {opt.get("cprio", 2)}')
        self.run_steps(a, steps)
        RCV = 128; OUT = 144; VO = 160
        def between():
            a(f's_lshl_b32 s{sT0}, s{sTH}, 5\nv_and_b32 v{VO}, 31, v0\nv_add_u32 v{VO}, s{sT0}, v{VO}\nv_lshlrev_b32 v{VO}, 10, v{VO}')
            a(f'v_lshrrev_b32 v{VO+1}, 5, v0\nv_lshl_add_u32 v{VO}, v{VO+1}, 4, v{VO}')
            a(f's_lshl_b32 s{sT0}, s{sJ}, 1\ns_add_u32 s{sT0}, s{sT0}, s{sHI}\ns_lshl_b32 s{sT0}, s{sT0}, 6\ns_add_u32 s{sT0}, s{sT0}, s{sA}')
        if opt.get('us4', 1):
            RCV = 40; between(); tk = self.x4['tk']
        else: tk = exchange(P4ACC, RCV, 'RB2', between)
        for b in range(2):
            a.wait_lg(tk[2*b+1])
            for u in range(4*b, 4*b+4): a(f'v_pk_add_f32 {P(P4ACC+2*u)}, {P(P4ACC+2*u)}, {P(RCV+2*u)}')
            for u in range(4*b, 4*b+4): a(f'v_cvt_pk_bf16_f32 v{OUT+u}, v{P4ACC+2*u}, v{P4ACC+2*u+1}')
            a(f'v_permlane32_swap_b32 v{OUT+4*b}, v{OUT+4*b+2}\nv_permlane32_swap_b32 v{OUT+4*b+1}, v{OUT+4*b+3}')
            a(f'buffer_store_dwordx4 {vr(OUT+4*b,4)}, v{VO}, {srd(sOUT)}, s{sT0} offen offset:{b*32} {opt.get("outflag", "")}')
        if opt.get('padto'):
            a(f'L_pad:\ns_memrealtime s[{sTSP}:{sTSP+1}]\ns_waitcnt lgkmcnt(0)\ns_sub_u32 s{sT0}, s{sTSP}, s26\ns_cmp_lt_u32 s{sT0}, {opt["padto"]}\ns_cbranch_scc1 L_pad')
        if opt.get('prof'):
            a(f's_memrealtime s[{sTSP}:{sTSP+1}]\ns_memtime s[98:99]\ns_waitcnt lgkmcnt(0)\ns_sub_u32 s98, s98, s90')
            a(f's_lshl_b32 s{sT0}, s2, 3\ns_add_u32 s{sT0}, s{sT0}, s{sW}\ns_lshl_b32 s{sT0}, s{sT0}, 8\ns_add_u32 s{sT0}, s{sT0}, {TS_OFF}')
            a(f'v_mov_b32 v2, s26\nv_mov_b32 v3, s{sTSP}\nv_mov_b32 v4, s98\nv_mov_b32 v5, 0\nv_mov_b32 v6, 0\ns_mov_b64 exec, 1')
            a(f'buffer_store_dwordx4 v[2:5], v6, {srd(sWS)}, s{sT0} offen')
            for k in range(8 if opt.get('prof') != 3 else 0): a(f'v_mov_b32 v7, s{4+2*k}\nbuffer_store_dword v7, v6, {srd(sWS)}, s{sT0} offen offset:{16+4*k}')
        a('s_endpgm')

    def helper(self, a):
        opt = self.opt
        prof = opt.get('prof') if opt.get('prof') != 3 else None
        E = lambda name, d: opt.get(name, d)
        BARS = [f'B{i}' for i in range(16)] + ['RB1'] + [f'B{i}' for i in range(16, 20)] + ['QE', 'XA'] + [f'B{i}' for i in range(20, NST)]
        ODL = f'B{self.need[FO]}'
        IDX = {n: i for i, n in enumerate(BARS)}
        T = [40 + i for i in range(16)]
        V1K, VQ, VW3, VHF = 4, 8, 12, 16
        row, pos, sw = T[0], T[1], T[2]
        def mk(dst, RS, sbase):
            a(f'v_mul_u32_u24 v{T[5]}, {RS}, v{row}\nv_add_u32 v{T[5]}, s{sbase}, v{T[5]}')
            for i in range(4):
                a(f'v_add_u32 v{dst+i}, v{T[5]}, v{T[3+(i&1)]}')
                if i: a(f'v_add_u32 v{dst+i}, {i*(8*RS-1024)}, v{dst+i}')
        stok = {}
        two = E('two', 0)
        grp = [[0, 1] if two else [0, 1, 2, 3]]
        def issue(st, pace=True):
            kind, sg = STAGES[st]
            pc = E('pace', 44) // (2 if two else 1)
            if pace and len(a.vm) > pc: a.wait_vm(a.vm[-pc - 1])
            s, v = src_of(st)
            for g in grp[0]:
                a(f's_mov_b32 m0, {SLOT[st] + g*4096}')
                soff(st, g, g == grp[0][0])
                for i in range(4):
                    stok[st] = a(f'buffer_load_dwordx4 v{v+i}, {srd(s)}, s{sT2} offen offset:{i*1024} lds')
        def src_of(st):
            kind, sg = STAGES[st]
            return {'w1': (sW1, V1K), 'w2': (sW2, V1K), 'wo': (sWO, V1K), 'wq': (sQKV, VQ), 'kv': (sQKV, VQ), 'p0': (sW3, VW3),
                    'p1': (sW3, VW3), 'p2': (sW3, VW3), 'hf': (sW3, VHF + 4 * sg)}.get(kind, (sW4, V1K))
        def soff(st, g, first=None):
            kind, sg = STAGES[st]
            rot = E('rot', 1)
            RS = 3072 if kind in ('wq', 'kv') else (3584 if kind in ('p0', 'p1', 'p2', 'hf') else 1024)
            if first is None: first = g == 0
            if kind == 'gh':
                if first: a(f's_add_u32 s{sI0}, s{sRG}, {sg}\ns_and_b32 s{sI0}, s{sI0}, 1\ns_mul_i32 s{sI0}, s{sI0}, {896*1024}')
                a(f's_add_u32 s{sT2}, s{sI0}, {(g_rows(kind, 0)[g >> 1] + 32*(g & 1))*1024}')
            elif kind[0] == 'g': a(f's_add_u32 s{sT2}, s{sKG+sg}, {(g_rows(kind, 0)[g >> 1] + 32*(g & 1))*1024}')
            elif kind == 'wo':
                if first: a(f's_add_u32 s{sI0}, s{sRG}, {sg}\ns_and_b32 s{sI0}, s{sI0}, 3\ns_lshl_b32 s{sI0}, s{sI0}, 17')
                a(f's_add_u32 s{sT2}, s{sI0}, {g*32*RS}')
            elif kind == 'w1' or (rot and kind == 'w2'): a(f's_add_u32 s{sT2}, s{sK1+sg}, {g*32*RS}')
            elif kind == 'w2': a(f's_mov_b32 s{sT2}, {sg*131072 + g*32*RS}')
            elif kind == 'wq': a(f's_add_u32 s{sT2}, s{sK3+sg}, {g*32*RS}')
            elif kind == 'kv': a(f's_add_u32 s{sT2}, s{sK3+(sg>>1)}, {((sg&1)*64 + (g&1)*32)*RS + 1024*(1 + (g>>1))}')
            elif kind == 'hf': a(f's_mov_b32 s{sT2}, {g*32*RS}')
            else: a(f's_add_u32 s{sT2}, s{sK5+sg}, {g*32*RS + dict(p0=0, p1=128, p2=256)[kind]}')
        VAR = 61
        def arrive(idx):
            if prof == 2:
                a(f's_memtime s[0:1]\ns_waitcnt lgkmcnt(0)')
                a.lg = []
                if isinstance(idx, int): a(f'v_writelane_b32 v{VAR}, s0, {idx + 1}')
                else: a(f's_add_u32 s1, s{idx}, 1\ns_mov_b32 m0, s1\nv_writelane_b32 v{VAR}, s0, m0')
        def dump_arrive(slot):
            if prof:
                a(f's_lshl_b32 s{sT0}, s2, 2\ns_add_u32 s{sT0}, s{sT0}, s{sW}\ns_lshl_b32 s{sT0}, s{sT0}, 8\ns_add_u32 s{sT0}, s{sT0}, {TS_OFF + 0x80000}')
                a(f'v_lshlrev_b32 v2, 2, v0\nbuffer_store_dword v{VAR}, v2, {srd(sWS)}, s{sT0} offen')
        if prof: a(f'v_mov_b32 v{VAR}, 0')
        a(f's_cmp_eq_u32 s{sW}, 1\ns_cbranch_scc1 L_back\ns_cmp_eq_u32 s{sW}, 2\ns_cbranch_scc1 L_back')
        if not two: a(f's_cmp_eq_u32 s{sW}, 0\ns_cbranch_scc1 L_sync')
        a(f'v_lshrrev_b32 v{row}, 3, v0\nv_and_b32 v{pos}, 7, v0\nv_lshrrev_b32 v{sw}, 4, v0\nv_and_b32 v{sw}, 1, v{sw}\nv_lshlrev_b32 v{sw}, 2, v{sw}')
        a(f'v_xor_b32 v{pos}, v{pos}, v{sw}')
        a(f'v_lshlrev_b32 v{T[3]}, 4, v{pos}\nv_xor_b32 v{T[4]}, 32, v{T[3]}')
        a(f's_lshl_b32 s{sT0}, s{sJ}, 7')
        mk(V1K, 1024, sT0)
        a(f's_mov_b32 s{sW1+2}, {512*1024}\ns_mov_b32 s{sW1+3}, 0x20000')
        for sg in range(4):
            a(f's_add_u32 s{sT3}, s{sROT}, {sg}\ns_and_b32 s{sT3}, s{sT3}, 3\ns_lshl_b32 s{sK1+sg}, s{sT3}, 17\ns_mul_i32 s{sK3+sg}, s{sT3}, {128*3072}')
        a('s_waitcnt lgkmcnt(0)')
        a(f's_mov_b32 s{sW1}, s12\ns_and_b32 s{sW1+1}, s13, 0xffff')
        if two: a(f's_cmp_eq_u32 s{sW}, 0\ns_cbranch_scc1 L_sync0')
        def first_issue():
            issue(0); issue(1)
            if E('st', 0): issue(2, False)
        first_issue()
        a('s_branch L_loader')
        vmL = list(a.vm); stokL = dict(stok); a.vm = []
        if two:
            a('L_sync0:')
            grp[0] = [2, 3]; first_issue()
            a('s_branch L_sync')
        vmS = list(a.vm); stokS = dict(stok); a.vm = []
        VX1 = [24, 25]; x1tok = {}
        def loader_setup():
            self.srds(a, skipx=True, skip1=True)
            mk(VQ, 3072, sT0)
            a(f's_mul_i32 s{sT0}, s{sJ}, 448\ns_and_b32 s{sT4}, s{sJ}, 1\ns_lshl_b32 s{sT2}, s{sT4}, 6\ns_add_u32 s{sT2}, s{sT2}, s{sT0}')
            mk(VW3, 3584, sT2)
            a(f's_cmp_eq_u32 s{sT4}, 0\ns_cselect_b32 s{sT2}, 384, 0\ns_add_u32 s{sT2}, s{sT2}, s{sT0}')
            a(f'v_and_b32 v{T[3]}, 63, v{T[3]}\nv_and_b32 v{T[4]}, 63, v{T[4]}\nv_lshrrev_b32 v{T[6]}, 2, v{pos}')
            mk(VHF, 3584, sT2)
            for sg in range(4):
                if E('rot', 1): a(f's_add_u32 s{sT3}, s{sROT}, {sg}\ns_and_b32 s{sT3}, s{sT3}, 3')
                else: a(f's_mov_b32 s{sT3}, {sg}')
                a(f's_mul_i32 s{sK5+sg}, s{sT3}, {128*3584}\ns_lshl_b32 s{sKX+sg}, s{sT3}, 14')
            for k in range(4): a(f's_add_u32 s{sT3}, s{sRG}, {k}\ns_and_b32 s{sT3}, s{sT3}, 3\ns_mul_i32 s{sKG+k}, s{sT3}, {448*1024}')
            for sg in (1, 0):
                a(f's_sub_u32 s{sT3}, s{sK5+sg+2}, s{sK5+sg}\nv_mul_lo_u32 v{T[5]}, v{T[6]}, s{sT3}\nv_add_u32 v{T[5]}, s{sK5+sg}, v{T[5]}')
                for i in range(4): a(f'v_add_u32 v{VHF+4*sg+i}, v{VHF+i}, v{T[5]}')
            a(f'v_lshrrev_b32 v{T[0]}, 5, v0\nv_and_b32 v{T[1]}, 31, v0\nv_lshlrev_b32 v{T[0]}, 10, v{T[0]}\nv_lshl_add_u32 v{T[0]}, v{T[1]}, 4, v{T[0]}')
            a(f's_lshl_b32 s{sT0}, s{sR}, 16\ns_add_u32 s{sT0}, s{sT0}, {X1_OFF}')
            a(f'v_add_u32 v{VX1[0]}, s{sT0}, v{T[0]}\nv_subrev_u32 v{VX1[1]}, 512, v{VX1[0]}')
        def x1_chunk(sg):
            for g in grp[0]:
                a(f's_mov_b32 m0, {sg*16384 + g*4096}\ns_add_u32 s{sT2}, s{sKX+sg}, {g*4096}')
                for u in range(4):
                    x1tok[sg] = a(f'buffer_load_dwordx4 v{VX1[u&1]}, {srd(sWS)}, s{sT2} offen offset:{u*1024} sc1 lds')
        def load_before(n):
            b = int(n[1:]) if n[0] == 'B' else None
            if b is not None:
                a.wait_vm(stok[b])
                if b in (20, 21, 22, 23): a.wait_vm(x1tok[b - 20])
        def load_after(n):
            b = int(n[1:]) if n[0] == 'B' else None
            if n == 'XA':
                for c in range(4): x1_chunk(c)
            if E('st', 0):
                if b == 0: issue(3, False)
                if b == 1: issue(4)
            else:
                if b == 0: issue(2)
                if b == (0 if E('st3', 1) else 1): issue(3)
                if b == 1: issue(4)
            if b in (2, 3): stats_after(b)
            for st in ISSUE.get(b if b is not None else n, []): issue(st)
            if b in (0, 1): stats_after(b)
        a('L_back:')
        sSW = sHI
        a(f'v_lshrrev_b32 v2, 4, v0\nv_and_b32 v3, 15, v0\nv_xor_b32 v3, v3, v2\nv_lshlrev_b32 v3, 4, v3')
        a(f's_lshl_b32 s{sT0}, s{sR}, 1\ns_add_u32 s{sT0}, s{sT0}, s{sSW}\ns_lshl_b32 s{sT0}, s{sT0}, 15')
        a(f'v_lshl_add_u32 v2, v2, 10, s{sT0}\nv_add_u32 v2, v2, v3')
        for u in range(1, 4): a(f'v_xor_b32 v{2+u}, {u<<6}, v2\nv_add_u32 v{2+u}, {u*3072}, v{2+u}')
        a(f's_lshl_b32 s{sI0}, s{sSW}, 13\ns_mov_b32 s{sB}, s{sROT}')
        a('s_waitcnt lgkmcnt(0)')
        a(f's_mov_b32 s{sX}, s4\ns_and_b32 s{sX+1}, s5, 0xffff')
        xtok = {}
        def x_chunk(sg):
            for half in range(2):
                a(f's_add_u32 m0, s{sI0}, {sg*16384 + half*4096}\ns_lshl_b32 s{sT2}, s{sB}, 8')
                if half: a(f's_add_u32 s{sT2}, s{sT2}, 16384')
                for u in range(4):
                    xtok[sg] = a(f'buffer_load_dwordx4 v{2+u}, {srd(sX)}, s{sT2} offen offset:{u*1024} lds')
            if sg < 3: a(f's_add_u32 s{sB}, s{sB}, 1\ns_and_b32 s{sB}, s{sB}, 3')
        x_chunk(0)
        if E('xdel', 1): self.srds(a, skipx=True)
        x_chunk(1)
        if not E('xdel', 1): self.srds(a, skipx=True)
        if E('st', 0): x_chunk(2)

        F = 64; SSUM, SGR, HONE = 128, 136, 144
        q, i16 = T[8], T[9]
        SW1, SW2 = 148, 149
        def stats_setup():
            a(f'v_lshrrev_b32 v{q}, 4, v0\nv_and_b32 v{i16}, 15, v0')
            for m in range(4):
                a(f'v_or_b32 v{T[0]}, {4*m}, v{q}\nv_xor_b32 v{T[0]}, v{T[0]}, v{i16}\nv_lshlrev_b32 v{T[0]}, 4, v{T[0]}')
                a(f'v_lshl_add_u32 v{T[0]}, v{i16}, 8, v{T[0]}\nv_add_u32 v{T[10+m]}, s{sI0}, v{T[0]}')
            for i in range(4): a(f'v_mov_b32 v{HONE+i}, s{sONE}')
            a(f'v_and_b32 v{T[0]}, 3, v0\nv_lshrrev_b32 v{T[2]}, 2, v{i16}')
            a(f'v_cmp_eq_u32 s[14:15], 1, v{T[0]}\nv_cmp_eq_u32 s[16:17], 2, v{T[0]}\nv_cmp_eq_u32 s[12:13], 3, v{T[0]}\nv_cmp_eq_u32 s[10:11], v{T[2]}, v{q}')
            a(f's_lshl_b32 s{sT0}, s{sSW}, 5\nv_add_u32 v{SW1}, s{sT0}, v{i16}\nv_lshlrev_b32 v{SW2}, 4, v{SW1}\nv_lshlrev_b32 v{SW1}, 2, v{SW1}')
            a(f'v_add_u32 v{SW2}, {S1}, v{SW2}\nv_add_u32 v{SW1}, {NMU}, v{SW1}')
        stk = {}
        fr = lambda sg, t, m: F + 32 * (sg & 1) + 16 * t + 4 * m
        def stats_reads(sg):
            for m in range(4):
                for t in range(2): stk[(sg, t, m)] = a(f'ds_read_b128 {vr(fr(sg, t, m), 4)}, v{T[10+m]} offset:{sg*16384 + t*4096}')
        def stats_mfma(sg):
            if E('sprio', 3): a(f's_setprio {E("sprio", 3)}')
            for m in range(4):
                a.wait_lg(stk[(sg, 1, m)])
                z = sg == 0 and m == 0
                for t in range(2):
                    f = fr(sg, t, m)
                    a(f'v_mfma_f32_16x16x32_bf16 {vr(SGR+4*t,4)}, {vr(f,4)}, {vr(f,4)}, {0 if z else vr(SGR+4*t,4)}')
                    a(f'v_mfma_f32_16x16x32_bf16 {vr(SSUM+4*t,4)}, {vr(HONE,4)}, {vr(f,4)}, {0 if z else vr(SSUM+4*t,4)}')
            a('s_setprio 0')
        def stats_final():
            a('s_setprio 3')
            a(f's_mov_b32 s{sT0}, {f2u(1/512):#x}\ns_mov_b32 s{sT2}, {f2u(1e-5):#x}')
            def chain(t):
                s1, s2, R, G_, S_ = 36 + 2*t, 37 + 2*t, 64 + 8*t, SGR + 4*t, SSUM + 4*t
                if t: s2 = 56
                return [f'v_cndmask_b32 v{s2}, v{G_}, v{G_+1}, s[14:15]', f'v_mul_f32 v{R}, {f2u(-1/512):#x}, v{S_}', f'v_cndmask_b32 v{s2}, v{s2}, v{G_+2}, s[16:17]',
                        f'v_mov_b32 v{R+7}, 0', f'v_cndmask_b32 v{s2}, v{s2}, v{G_+3}, s[12:13]', f'v_mul_f32 v{s1}, v{R}, v{R}', f'v_mov_b32 v{R+4}, v{R}',
                        f'v_fma_f32 v{s2}, v{s2}, s{sT0}, -v{s1}', f'v_max_f32 v{s2}, 0, v{s2}', f'v_add_f32 v{s1}, s{sT2}, v{s2}',
                        f'v_rsq_f32 v{R+5}, v{s1}', f'v_rcp_f32 v{s1}, v{s1}', f'v_mul_f32 v{R+6}, {f2u(LOG2E):#x}, v{R+5}', f'v_fma_f32 v{s1}, v{s1}, v{s2}, s{sT2}',
                        f'v_rsq_f32 v{s1}, v{s1}', f'v_mul_f32 v{s1}, v{s1}, v{R+5}', f'v_rcp_f32 v{R+3}, v{s1}', f'v_mul_f32 v{s2}, v{s1}, v{s1}',
                        f'v_mul_f32 v{R+1}, {f2u(GC0):#x}, v{s1}', f'v_mul_f32 v{s2}, {f2u(0.044715):#x}, v{s2}', f'v_mul_f32 v{R+2}, v{R+1}, v{s2}']
            for x, y in zip(chain(0), chain(1)): a(x + '\n' + y)
            a('s_mov_b64 exec, s[10:11]')
            for t in range(2): a(f'ds_write_b128 v{SW2}, {vr(64+8*t,4)} offset:{t*256}')
            for t in range(2):
                R = 64 + 8*t
                a(f'ds_write_b128 v{SW2}, {vr(R+4,4)} offset:{1024 + t*256}')
                a(f'ds_write_b32 v{SW1}, v{R} offset:{t*64}\nds_write_b32 v{SW1}, v{R+5} offset:{256 + t*64}\nds_write_b32 v{SW1}, v{R+6} offset:{512 + t*64}')
            a('s_mov_b64 exec, -1\ns_setprio 0')
            a.wait_lg0()
        def stats_after(b): pass

        VFL, VFP, VF3, VONE, VCT, CELLV, VZA, VCK, VFO = 26, 27, 28, 29, 30, 32, 34, 35, 33
        OB = T[14]
        pf = opt.get('pf', 1); t3 = opt.get('t3', 0)
        nlab = [0]
        def lab(p):
            nlab[0] += 1
            return f'L_{p}{nlab[0]}'
        def common_regs():
            a(f'v_mov_b32 v{OB}, {OOB}\nv_lshlrev_b32 v{T[15]}, 7, v0\nv_mov_b32 v{VONE}, 1')
            a(f'v_lshrrev_b32 v{T[0]}, 5, v0\nv_and_b32 v{T[1]}, 31, v0\nv_lshlrev_b32 v{CELLV}, 10, v{T[0]}\nv_lshl_add_u32 v{CELLV}, v{T[1]}, 4, v{CELLV}')
            a(f's_lshl_b32 s{sC}, s{sR}, 16\ns_lshl_b32 s{sD}, s{sJ}, 18\ns_add_u32 s{sD}, s{sD}, {KV_OFF}\ns_lshl_b32 s{sA}, s{sJ}, 12\ns_add_u32 s{sA}, s{sA}, {CF_OFF}')
        def one_lane(text):
            a('s_mov_b64 exec, 1'); a(text); a('s_mov_b64 exec, -1')
        def count(off, idx):
            a(f's_lshr_b32 s{sT0}, s{idx}, 3\ns_lshl_b32 s{sT0}, s{sT0}, 7\ns_and_b32 s{sT2}, s{idx}, 7\ns_lshl_b32 s{sT2}, s{sT2}, 2\ns_add_u32 s{sT0}, s{sT0}, s{sT2}')
            a(f's_add_u32 s{sT0}, s{sT0}, s{sA}\ns_add_u32 s{sT0}, s{sT0}, {off}\nv_mov_b32 v{T[7]}, 0')
            one_lane(f'buffer_store_dword v{VONE}, v{T[7]}, {srd(sWS)}, s{sT0} offen sc1')

        sBC = sCNT; sSP = sBG
        common_regs()
        def touch(s, lines, dst, pitch=None, off=0):
            n = lines // 2
            a(f's_lshl_b32 s{sT0}, s2, 1\ns_add_u32 s{sT0}, s{sT0}, s{sSW}\ns_mul_i32 s{sT0}, s{sT0}, {pitch or n*128}')
            if off: a(f's_add_u32 s{sT0}, s{sT0}, {off}')
            a(f'v_cmp_gt_u32 vcc, {n}, v0\nv_cndmask_b32 v{T[7]}, v{OB}, v{T[15]}, vcc')
            return a(f'buffer_load_dword v{dst}, v{T[7]}, {srd(s)}, s{sT0} offen')
        CSR = 160; CA = 192
        def cs_loads(y=None):
            a(f's_lshr_b32 s{sT0}, s{sR}, 1\ns_mul_i32 s{sT0}, s{sT0}, {32*3584}\ns_mul_i32 s{sT2}, s{sJ}, 448\ns_add_u32 s{sT0}, s{sT0}, s{sT2}')
            a(f's_and_b32 s{sT2}, s{sR}, 1\ns_lshl_b32 s{sT2}, s{sT2}, 1\ns_add_u32 s{sT2}, s{sT2}, s{sSW}\ns_mul_i32 s{sT2}, s{sT2}, 112\ns_add_u32 s{sT0}, s{sT0}, s{sT2}')
            a(f'v_lshrrev_b32 v{T[6]}, 5, v0\nv_mul_u32_u24 v{T[6]}, {16*3584}, v{T[6]}\nv_and_b32 v{T[5]}, 31, v0\nv_lshl_add_u32 v{T[6]}, v{T[5]}, 2, v{T[6]}')
            a(f'v_cmp_gt_u32 vcc, 28, v{T[5]}\nv_cndmask_b32 v{T[6]}, v{OB}, v{T[6]}, vcc')
            for i in range(16):
                a(f'buffer_load_dword v{CSR+i}, v{T[6]}, {srd(sW3)}, s{sT0} offen')
                if i < 15: a(f's_add_u32 s{sT0}, s{sT0}, 3584')
                if y and i in (5, 10): y()
        if pf: touch(sQKV, 32, 6, 3072, 1024)
        if E('cs0', 0): cs_loads()
        stats_setup()
        barsD = []
        pre0 = E('spre', 1)
        for b in range(5):
            if b < 4:
                a.wait_vm(xtok[b]); stats_reads(b)
                if b < pre0 or (b == 3 and E('s3pre', 1)): stats_mfma(b)
            arrive(b); barsD.append(f'B{b}'); a('s_barrier')
            if b == 0:
                if not E('st', 0): x_chunk(2)
                x_chunk(3)
            if pre0 <= b < (3 if E('s3pre', 1) else 4): stats_mfma(b)
            if b == 3: stats_final()
            if b == E('e_pf', 2):
                if pf: touch(sW2, 16, 7); touch(sQKV, 16, 7, 3072)
                if pf and E('w3pf', 0) == 2: touch(sW3, 56, 7)
        a(f's_mov_b32 s{sBC}, 5')
        LONG = sum(1 << (IDX[n] + 1) for n in E('long', 'B4.B12.QE.XA.B24.B30.B34').split('.'))
        a(f's_mov_b32 s4, {LONG & 0xffffffff}\ns_mov_b32 s5, {LONG >> 32}')
        VDS = 39; nds = [0]
        if prof: a(f'v_mov_b32 v{VDS}, 0')
        def dst(name):
            if prof:
                a(f's_memrealtime s[0:1]\ns_waitcnt lgkmcnt(0)\nv_writelane_b32 v{VDS}, s0, {nds[0]}')
                self.dnames.append(name); nds[0] += 1
        def yield_(dl):
            L = lab('y')
            a(f's_cmp_ge_u32 s{sBC}, {IDX[dl]}\ns_cbranch_scc1 {L}')
            arrive(str(sBC))
            a(f's_barrier\ns_add_u32 s{sBC}, s{sBC}, 1\n{L}:')
        def earliest(name):
            L = lab('e')
            a(f'{L}:\ns_cmp_gt_u32 s{sBC}, {IDX[name]}\ns_cbranch_scc1 {L}d')
            arrive(str(sBC))
            a(f's_barrier\ns_add_u32 s{sBC}, s{sBC}, 1\ns_branch {L}\n{L}d:')
        def nbwait(dl, lg=False):
            L = lab('w')
            a(f'{L}:\ns_bitcmp1_b64 s[4:5], s{sBC}\ns_cselect_b32 s{sSP}, {E("nspin", 6)}, 1')
            a(f'{L}s:\ns_getreg_b32 s{sT0}, hwreg(HW_REG_IB_STS)\ns_and_b32 s{sT0}, s{sT0}, {0xf00 if lg else 0xc0000f}\ns_cbranch_scc0 {L}d')
            a(f's_sub_u32 s{sSP}, s{sSP}, 1\ns_cmp_lg_u32 s{sSP}, 0\ns_cbranch_scc1 {L}s')
            a(f's_cmp_ge_u32 s{sBC}, {IDX[dl]}\ns_cbranch_scc1 {L}d')
            if not lg: arrive(str(sBC))
            a(f's_barrier\ns_add_u32 s{sBC}, s{sBC}, 1\ns_branch {L}')
            a(f'{L}d:\ns_waitcnt {"lgkmcnt" if lg else "vmcnt"}(0)')
        def spin(off, n, dl):
            L = lab('c')
            a(f'v_and_b32 v{VCT}, {n-1}, v0\nv_lshrrev_b32 v{T[7]}, 3, v{VCT}\nv_and_b32 v{VCT}, 7, v{VCT}\nv_lshlrev_b32 v{VCT}, 2, v{VCT}\nv_lshl_add_u32 v{VCT}, v{T[7]}, 7, v{VCT}')
            a(f's_mov_b32 s6, {opt.get("spin", 200000)}\ns_add_u32 s9, s{sA}, {off}')
            a(f'{L}:\nbuffer_load_dword v{VCK}, v{VCT}, {srd(sWS)}, s9 offen sc1')
            nbwait(dl)
            a(f'v_cmp_ne_u32 vcc, 1, v{VCK}\ns_sub_u32 s6, s6, 1\ns_cmp_eq_u32 s6, 0\ns_cbranch_scc1 {L}d\ns_cbranch_vccnz {L}\n{L}d:')
        def sliced(fn, dl, n=None):
            lines = a.record(fn); n = n or E('bgn', 22)
            while lines:
                m = n
                while any(x.startswith('s_setprio 3') for x in lines[:m]) and not any(x.startswith('s_setprio 0') for x in lines[:m]): m += 1
                a('\n'.join(lines[:m])); lines = lines[m:]
                if lines: yield_(dl)
        def cs_sum():
            for i in range(16):
                r_ = CSR + i
                if i == 0:
                    a(f'v_lshlrev_b32 v{CA}, 16, v{r_}\nv_and_b32 v{CA+1}, 0xffff0000, v{r_}')
                else:
                    a(f'v_lshlrev_b32 v{CA+4}, 16, v{r_}\nv_and_b32 v{CA+5}, 0xffff0000, v{r_}')
                    a(f'v_add_f32 v{CA}, v{CA}, v{CA+4}\nv_add_f32 v{CA+1}, v{CA+1}, v{CA+5}')
        PQR = 64; KVR = 192; ZR = 200
        AK, AZ, NUM, DEN, OUT = 96, 100, 104, 136, 168
        Lc = lab('cs')
        def cs_chain():
            if not E('cs0', 0):
                earliest(E('e_cs', 'B6'))
                dst('csld0')
                cs_loads((lambda: yield_('XA')) if E('dsl', 0) else None)
            dst('csld1')
            nbwait('XA')
            dst('csld2')
            sliced(cs_sum, 'XA')
            a(f'v_permlane32_swap_b32 v{CA}, v{CA+1}\nv_add_f32 v{CA}, v{CA}, v{CA+1}')
            a(f'v_and_b32 v{T[5]}, 31, v0\nv_lshrrev_b32 v{T[6]}, 5, v0\nv_lshlrev_b32 v{T[6]}, 2, v{T[6]}\nv_lshl_add_u32 v{T[6]}, v{T[5]}, 3, v{T[6]}')
            a(f'v_cmp_gt_u32 vcc, 28, v{T[5]}\nv_cndmask_b32 v{T[6]}, v{OB}, v{T[6]}, vcc')
            a(f's_lshr_b32 s{sT0}, s{sR}, 1\ns_lshl_b32 s{sT0}, s{sT0}, 10\ns_and_b32 s{sT2}, s{sR}, 1\ns_lshl_b32 s{sT2}, s{sT2}, 1\ns_add_u32 s{sT2}, s{sT2}, s{sSW}\ns_mul_i32 s{sT2}, s{sT2}, 224')
            a(f's_add_u32 s{sT0}, s{sT0}, s{sT2}\ns_add_u32 s{sT0}, s{sT0}, s{sD}\ns_add_u32 s{sT0}, s{sT0}, {KV_CS}')
            a(f'buffer_store_dword v{CA}, v{T[6]}, {srd(sWS)}, s{sT0} offen sc1')
            dst('csst')
            nbwait('XA')
            dst('csack')
            earliest('B5')
            a(f's_lshl_b32 s9, s{sR}, 1\ns_add_u32 s9, s9, s{sSW}')
            count(CF_CS, 9)
            earliest(E('e_csc', 'B16'))
            dst('cschk0')
            spin(CF_CS, 64, 'XA')
            dst('cschk1')
            a(f'v_lshlrev_b32 v{T[0]}, 4, v0\nv_cmp_gt_u32 vcc, 56, v0\nv_cndmask_b32 v{T[0]}, v{OB}, v{T[0]}, vcc')
            a(f's_lshl_b32 s{sT2}, s{sSW}, 13\ns_add_u32 s{sT2}, s{sT2}, s{sD}\ns_add_u32 s{sT2}, s{sT2}, {KV_CS}')
            for k in range(8):
                if k % 4 == 0: a(f's_add_u32 s{sT0}, s{sT2}, {k*1024}')
                a(f'buffer_load_dwordx4 {vr(CSR+4*k,4)}, v{T[0]}, {srd(sWS)}, s{sT0} offen offset:{(k&3)*1024} sc1')
                if k == 3 and E('dsl2', 0): yield_('XA')
            def cs_fin():
                for st in (16, 8, 4):
                    for k in range(st): a(f'v_add_f32 v{CSR+k}, v{CSR+k}, v{CSR+st+k}')
            dst('csg0')
            nbwait('XA')
            dst('csg1')
            sliced(cs_fin, 'XA', 30)
            a(f'v_lshlrev_b32 v{T[0]}, 4, v0\nv_add_u32 v{T[0]}, {CS3L}, v{T[0]}')
            earliest('B16')
            a(f's_cmp_eq_u32 s{sSW}, 0\ns_cbranch_scc1 {Lc}a')
            a(f'ds_write_b128 v{T[0]}, {vr(CSR,4)} offset:1024\ns_waitcnt lgkmcnt(0)\n{Lc}a:')
        if E('x_nocs', 0):
            earliest(E('e_cs', 'B6')); touch(sW3, 56, 7)
        else: cs_chain()
        if pf and E('e_p4', 'B13') == 'D': touch(sWO, 16, 8); touch(sW4, 56, 9)
        a(f's_lshl_b32 s7, s{sJ}, 1\ns_add_u32 s7, s7, s{sSW}\ns_lshl_b32 s8, s7, 2\ns_lshl_b32 s7, s7, 12\ns_add_u32 s7, s7, s{sC}\ns_add_u32 s7, s7, {O_OFF}')
        a(f's_lshl_b32 s{sT0}, s{sR}, 7\ns_add_u32 s8, s8, s{sT0}\ns_add_u32 s8, s8, {FL_OFF + FO*4096}\nv_mov_b32 v{VFO}, s8')
        earliest('XA')
        a(f's_cmp_lg_u32 s{sSW}, 0\ns_cbranch_scc1 {Lc}b')
        a(f'ds_read_b128 {vr(CSR+4,4)}, v{T[0]} offset:1024\ns_waitcnt lgkmcnt(0)')
        for k in range(4): a(f'v_add_f32 v{CSR+k}, v{CSR+k}, v{CSR+4+k}')
        a(f'ds_write_b128 v{T[0]}, {vr(CSR,4)}\n{Lc}b:')
        a(f's_lshl_b32 s{sT0}, s{sSW}, 12\ns_add_u32 s{sT0}, s{sT0}, {PQ}\nv_lshl_add_u32 v{T[0]}, v0, 3, s{sT0}')
        for k in range(8): a(f'ds_read_b64 {vr(PQR+2*k,2)}, v{T[0]} offset:{k*512}')
        a('s_waitcnt lgkmcnt(0)')
        kv2 = E('kv2', 0)
        earliest(E('e_kvb', 'XA'))
        if E('x_noo', 0):
            one_lane(f'buffer_store_dword v{VONE}, v{VFO}, {srd(sWS)}, 0 offen sc1'); nbwait('B51'); a('s_endpgm')
        dst('kvchk0')
        spin(CF_A, 32, ODL)
        dst('kvchk1')
        if kv2:
            a(f's_lshl_b32 s20, s{sSW}, 5\ns_add_u32 s20, s20, s{sR}\ns_cmp_lt_u32 s20, 34\ns_cselect_b32 s21, 0, {OOB}\ns_lshl_b32 s22, s20, 7\ns_add_u32 s22, s22, s{sD}')
            a(f'v_lshrrev_b32 v{T[1]}, 3, v0\nv_mul_u32_u24 v{T[1]}, {KVP}, v{T[1]}\nv_and_b32 v{T[2]}, 7, v0\nv_lshlrev_b32 v{T[2]}, 4, v{T[2]}\nv_add3_u32 v{T[1]}, v{T[1]}, v{T[2]}, s21')
            for k in range(4):
                a(f's_add_u32 s{sT0}, s22, {k*8*KVP}\nbuffer_load_dwordx4 {vr(KVR+4*k,4)}, v{T[1]}, {srd(sWS)}, s{sT0} offen sc1')
            nbwait(ODL)
            dst('l2ld')
            for k in range(8): a(f'v_add_f32 v{KVR+k}, v{KVR+k}, v{KVR+8+k}')
            for k in range(4): a(f'v_add_f32 v{KVR+k}, v{KVR+k}, v{KVR+4+k}')
            for k in range(4): a(f'v_add_f32_dpp v{KVR+k}, v{KVR+k}, v{KVR+k} row_ror:8 row_mask:0xf bank_mask:0xf')
            for sw_ in ('v_permlane16_swap_b32', 'v_permlane32_swap_b32'):
                if sw_.startswith('v_permlane32'): yield_(ODL)
                for k in range(4): a(f'v_mov_b32 v{KVR+4+k}, v{KVR+k}')
                for k in range(4): a(f'{sw_} v{KVR+k}, v{KVR+4+k}')
                for k in range(4): a(f'v_add_f32 v{KVR+k}, v{KVR+k}, v{KVR+4+k}')
            a(f'v_cmp_gt_u32 vcc, 8, v0\nv_add_u32 v{T[2]}, s21, v{T[2]}\nv_cndmask_b32 v{T[2]}, v{OB}, v{T[2]}, vcc\ns_add_u32 s{sT0}, s22, {KV_FIN}')
            a(f'buffer_store_dwordx4 {vr(KVR,4)}, v{T[2]}, {srd(sWS)}, s{sT0} offen sc1')
            nbwait(ODL)
            count(CF_B, 20)
            dst('l2pub')
            earliest(E('e_kvc', 'B29'))
            spin(CF_B, 64, ODL)
            dst('l2chk')
            a(f'v_lshrrev_b32 v{T[1]}, 4, v0\nv_lshlrev_b32 v{T[1]}, 4, v{T[1]}\nv_and_b32 v{T[0]}, 3, v0\nv_lshl_add_u32 v{T[0]}, v{T[0]}, 8, v{T[1]}')
            a(f'v_bfe_u32 v{T[2]}, v0, 2, 2\nv_lshl_add_u32 v{T[0]}, v{T[2]}, 6, v{T[0]}')
        else:
            a(f'v_lshrrev_b32 v{T[1]}, 4, v0\nv_lshlrev_b32 v{T[1]}, 4, v{T[1]}\nv_and_b32 v{T[0]}, 15, v0\nv_lshl_add_u32 v{T[0]}, v{T[0]}, 6, v{T[1]}')
        fin = KV_FIN if kv2 else 0
        for rep in range(1 if kv2 else NREP):
            a(f's_lshl_b32 s{sT0}, s{sSW}, 11\ns_add_u32 s{sT2}, s{sT0}, s{sD}\ns_add_u32 s{sT2}, s{sT2}, {8192*rep + fin}')
            for hh in range(2): a(f'buffer_load_dwordx4 {vr(KVR+16*rep+4*hh,4)}, v{T[0]}, {srd(sWS)}, s{sT2} offen offset:{hh*1024} sc1')
            a(f's_lshl_b32 s{sT2}, s{sSW}, 7\ns_add_u32 s{sT2}, s{sT2}, s{sD}\ns_add_u32 s{sT2}, s{sT2}, {KV_Z + 8192*rep + fin}')
            for hh in range(2): a(f'buffer_load_dwordx4 {vr(ZR+16*rep+4*hh,4)}, v{T[1]}, {srd(sWS)}, s{sT2} offen offset:{hh*64} sc1')
        dst('kvg0')
        nbwait(ODL)
        dst('kvg1')
        def kv_sum():
            if not kv2:
                for k in range(32): a(f'v_add_f32 v{KVR+k}, v{KVR+k}, v{KVR+32+k}')
                for k in range(16): a(f'v_add_f32 v{KVR+k}, v{KVR+k}, v{KVR+16+k}')
            for hh in range(2):
                a(f'v_cvt_pk_bf16_f32 v{AK+2*hh}, v{KVR+4*hh}, v{KVR+4*hh+1}\nv_cvt_pk_bf16_f32 v{AK+2*hh+1}, v{KVR+4*hh+2}, v{KVR+4*hh+3}')
                a(f'v_cvt_pk_bf16_f32 v{AZ+2*hh}, v{ZR+4*hh}, v{ZR+4*hh+1}\nv_cvt_pk_bf16_f32 v{AZ+2*hh+1}, v{ZR+4*hh+2}, v{ZR+4*hh+3}')
        if E('dprio', 1): a(f's_setprio {E("dprio", 1)}')
        sliced(kv_sum, ODL, E('bgn2', 60))
        def o_compute():
            a('s_setprio 3')
            for k in range(8): a(f'v_mfma_f32_16x16x16_bf16 {vr(DEN+4*k,4)}, {vr(AZ+2*(k>>2),2)}, {vr(PQR+2*k,2)}, 0')
            for k in range(8): a(f'v_mfma_f32_16x16x16_bf16 {vr(NUM+4*k,4)}, {vr(AK+2*(k>>2),2)}, {vr(PQR+2*k,2)}, 0')
            a('s_setprio 0')
            if E('dprio', 1): a(f's_setprio {E("dprio", 1)}')
            for k in range(8): a(f'v_add_f32 v{DEN+4*k}, s{sEPS}, v{DEN+4*k}')
            for k in range(8): a(f'v_rcp_f32 v{DEN+4*k}, v{DEN+4*k}')
            for pr in range(4):
                for k in (2*pr, 2*pr+1):
                    for e in range(4): a(f'v_mul_f32 v{NUM+4*k+e}, v{NUM+4*k+e}, v{DEN+4*k}')
                for u in range(4*pr, 4*pr+4): a(f'v_cvt_pk_bf16_f32 v{OUT+u}, v{NUM+2*u}, v{NUM+2*u+1}')
                a(f'v_permlane16_swap_b32 v{OUT+4*pr}, v{OUT+4*pr+2}\nv_permlane16_swap_b32 v{OUT+4*pr+1}, v{OUT+4*pr+3}')
                a(f'buffer_store_dwordx4 {vr(OUT+4*pr,4)}, v{CELLV}, {srd(sWS)}, s7 offen offset:{(pr>>1)*2048+(pr&1)*512} sc1')
        dst('kvsum')
        sliced(o_compute, ODL, E('bgn3', 40))
        dst('ost')
        nbwait(ODL)
        dst('oack')
        one_lane(f'buffer_store_dword v{VONE}, v{VFO}, {srd(sWS)}, 0 offen sc1')
        if prof: a(f's_mov_b32 s10, s{sBC}'); earliest('B50')
        else: nbwait('B51')
        if prof:
            a(f's_lshl_b32 s{sT0}, s2, 3\ns_add_u32 s{sT0}, s{sT0}, s{sW}\ns_add_u32 s{sT0}, s{sT0}, 5\ns_lshl_b32 s{sT0}, s{sT0}, 8\ns_add_u32 s{sT0}, s{sT0}, {TS_OFF}')
            a(f'v_mov_b32 v2, s10\nv_mov_b32 v3, 0')
            a(f'v_lshlrev_b32 v3, 2, v0\nv_writelane_b32 v{VDS}, s10, 63\nbuffer_store_dword v{VDS}, v3, {srd(sWS)}, s{sT0} offen')
            dump_arrive(0)
        a('s_endpgm')

        a('L_sync:')
        a.vm = vmS; a.lg = []; stok.update(stokS); grp[0] = [2, 3]
        VTS, VTC = 31, 60
        if two: loader_setup()
        else:
            a('s_waitcnt lgkmcnt(0)')
            self.srds(a, skipx=True)
        if prof: a(f'v_mov_b32 v{VTS}, 0\nv_mov_b32 v{VTC}, 0\nv_writelane_b32 v{VTS}, s26, 63')
        nstamp = [0]
        def stamp(last=False):
            if prof:
                if nstamp[0]:
                    a(f's_waitcnt lgkmcnt(0)\nv_writelane_b32 v{VTS}, s{sTSP}, {nstamp[0]-1}\nv_writelane_b32 v{VTC}, s26, {nstamp[0]-1}')
                    a.lg = []
                if not last: a(f's_memrealtime s[{sTSP}:{sTSP+1}]\ns_memtime s[26:27]')
                nstamp[0] += 1
        def flag_setup():
            common_regs()
            a(f's_lshl_b32 s{sT0}, s{sR}, 7\ns_add_u32 s{sT0}, s{sT0}, {FL_OFF}\ns_lshl_b32 s{sT2}, s{sJ}, 2\ns_add_u32 s{sT2}, s{sT2}, s{sT0}\nv_mov_b32 v{VFL}, s{sT2}')
            a(f'v_and_b32 v{VZA}, 7, v0\nv_lshlrev_b32 v{VZA}, 2, v{VZA}\nv_add_u32 v{VFP}, s{sT0}, v{VZA}')
            a(f'v_and_b32 v{VZA}, 15, v0\nv_lshlrev_b32 v{VZA}, 2, v{VZA}\nv_add_u32 v{VFO}, s{sT0}, v{VZA}\nv_and_b32 v{VZA}, 31, v0\nv_lshlrev_b32 v{VZA}, 2, v{VZA}')
            a(f's_cmp_eq_u32 s{sR}, 0\ns_cselect_b32 s{sT2}, 0, -128\ns_cmp_eq_u32 s{sR}, 31\ns_cselect_b32 s{sT3}, 0, 128')
            a(f'v_lshrrev_b32 v{T[3]}, 3, v0\nv_mov_b32 v{T[4]}, 0\nv_mov_b32 v{T[5]}, s{sT2}\nv_mov_b32 v{T[6]}, s{sT3}')
            a(f'v_cmp_eq_u32 vcc, 1, v{T[3]}\nv_cndmask_b32 v{T[4]}, v{T[4]}, v{T[5]}, vcc\nv_cmp_eq_u32 vcc, 2, v{T[3]}\nv_cndmask_b32 v{T[4]}, v{T[4]}, v{T[6]}, vcc')
            a(f'v_add_u32 v{VF3}, v{VFP}, v{T[4]}')
        if not E('late', 0): flag_setup()
        stamp()
        def touch3(s, rows, dst):
            n = rows // 32
            a(f's_lshr_b32 s{sT0}, s2, 3\ns_mul_i32 s{sT0}, s{sT0}, {n*1024}\ns_add_u32 s{sT0}, s{sT0}, 384')
            a(f'v_lshlrev_b32 v{T[7]}, 10, v0\nv_cmp_gt_u32 vcc, {n}, v0\nv_cndmask_b32 v{T[7]}, v{OB}, v{T[7]}, vcc')
            return a(f'buffer_load_dword v{dst}, v{T[7]}, {srd(s)}, s{sT0} offen')
        ck = {}
        def check_issue(vaddr, sr, off):
            ck['t'] = a(f's_mov_b32 s{sT0}, {off}\nbuffer_load_dword v{VCK}, v{vaddr}, {srd(sr)}, s{sT0} offen sc1')
        def check_wait(vaddr, sr, off, val):
            L = lab('p')
            a.wait_vm(ck['t'])
            a(f's_mov_b32 s{sCNT}, {opt.get("spin", 200000)}\ns_mov_b32 s{sT0}, {off}')
            a(f'{L}:')
            a(f'v_cmp_ne_u32 vcc, {val}, v{VCK}\ns_sub_u32 s{sCNT}, s{sCNT}, 1\ns_cmp_eq_u32 s{sCNT}, 0\ns_cbranch_vccz {L}d\ns_cbranch_scc1 {L}d')
            vm = list(a.vm)
            a(f'buffer_load_dword v{VCK}, v{vaddr}, {srd(sr)}, s{sT0} offen sc1\ns_waitcnt vmcnt(0)\ns_branch {L}\n{L}d:')
            a.vm = vm
        early = []
        def pre_poll(vaddr, sr, off):
            r = [36, 37, 38][len(early)]
            a(f's_mov_b32 s{sT0}, {off}')
            early.append((r, a(f'buffer_load_dword v{r}, v{vaddr}, {srd(sr)}, s{sT0} offen sc1')))
        def poll(vaddr, sr, off, val):
            L = lab('q')
            check_issue(vaddr, sr, off)
            check_wait(vaddr, sr, off, val)
        def flag(ftype):
            a(f's_mov_b32 s{sT0}, {ftype*4096}')
            one_lane(f'buffer_store_dword v{VONE}, v{VFL}, {srd(sWS)}, s{sT0} offen sc1')
        XS = 64; xt = {}
        def xs_loads():
            a(f's_lshl_b32 s{sT0}, s{sR}, 13\ns_add_u32 s{sT0}, s{sT0}, {XS_OFF}\ns_add_u32 s{sT2}, s{sT0}, 4096\nv_lshlrev_b32 v{T[0]}, 3, v0')
            for k in range(16):
                xt['s'] = a(f'buffer_load_dwordx2 {vr(XS+2*k,2)}, v{T[0]}, {srd(sWS)}, s{sT0 if k < 8 else sT2} offen offset:{(k&7)*512} sc1')
        def xs_final(part):
            G = XS + 4; t = XS + 1
            if part == 0:
                a.wait_vm(xt['s'])
                for st in (16, 8, 4, 2):
                    for k in range(st): a(f'v_add_f32 v{XS+k}, v{XS+k}, v{XS+st+k}')
                return
            a(f'v_mul_f32 v{G}, {f2u(-1/512):#x}, v{XS}\nv_mul_f32 v{t}, {f2u(1/512):#x}, v{t}')
            a(f'v_fma_f32 v{t}, -v{G}, v{G}, v{t}\nv_max_f32 v{t}, 0, v{t}\nv_add_f32 v{t}, {f2u(1e-5):#x}, v{t}')
            a(f'v_rsq_f32 v{t+1}, v{t}\nv_sqrt_f32 v{G+3}, v{t}')
            a(f'v_mul_f32 v{G+1}, {f2u(GC0):#x}, v{t+1}\nv_mul_f32 v{t+2}, v{t+1}, v{t+1}\nv_mul_f32 v{t+2}, v{t+2}, v{t+1}\nv_mul_f32 v{G+2}, {f2u(GC1):#x}, v{t+2}')
            a(f'v_lshlrev_b32 v{T[0]}, 4, v0\nv_add_u32 v{T[0]}, {X1P}, v{T[0]}')
            a(f'ds_write_b128 v{T[0]}, {vr(G,4)}\ns_waitcnt lgkmcnt(0)')
        fhb, fxb, hlb = f"B{E('fh_bar', 6)}", f"B{E('fx_bar', 17)}", f"B{E('hl_bar', 11)}"
        for n in BARS:
            if n == 'XA': check_wait(VFP, sWS, FX1 * 4096, 1)
            if n == E('e_g0w', 'B31' if E('eg', 0) else 'B34'): check_wait(VFP, sWS, FG0 * 4096, 1)
            if n == f'B{self.need[FG1]}': check_wait(VFP, sWS, FG1 * 4096, 1)
            if n == f'B{self.need[FO]}': check_wait(VFO, sWS, FO * 4096, 1)
            if n == f'B{self.need[FG2]}': check_wait(VFP, sWS, FG2 * 4096, 1)
            if n == hlb: check_wait(VF3, sWS, FH * 4096, 1)
            if two: load_before(n)
            arrive(IDX[n]); self.barsS.append(n); a('s_barrier')
            stamp()
            if n == fhb: flag(FH)
            if n == fxb: flag(FX1)
            if n == f"B{E('fg0_bar', 27)}": flag(FG0)
            if n == f"B{E('fg1_bar', 34)}": flag(FG1)
            if n == f"B{E('fg2_bar', 37)}": flag(FG2)
            if n == (f"B{E('fa_bar', 15)}" if E('kv2', 0) else ('QE' if E('ovl', 0) and E('atp', 0) == 1 else fxb)): count(CF_A, sR)
            if n == E('e_g0i', 'B30' if E('eg', 0) else 'B31'): check_issue(VFP, sWS, FG0 * 4096)
            if n == f'B{max(self.need[FG1] - E("cl", 2), 34)}': check_issue(VFP, sWS, FG1 * 4096)
            if n == f'B{max(self.need[FO] - E("cl", 2), 34)}': check_issue(VFO, sWS, FO * 4096)
            if n == f'B{self.need[FG2] - E("cl", 2)}': check_issue(VFP, sWS, FG2 * 4096)
            if n == 'QE': check_issue(VFP, sWS, FX1 * 4096)
            if n == BARS[IDX[hlb] - E('hl_lead', 2)]: check_issue(VF3, sWS, FH * 4096)
            if n == 'B2': check_issue(VZA, sDBG, 0)
            if n == 'B15': pass
            if two: load_after(n)
            elif n[0] == 'B': stats_after(int(n[1:]))
            if n == 'B0' and E('late', 0): flag_setup()
            if n == E('e_xs', 'B20') and not E('x_noxs', 0): xs_loads()
            if n == 'B4': check_wait(VZA, sDBG, 0, 1)
            if n == 'B22' and not E('x_noxs', 0): xs_final(0)
            if n == 'B23': xs_final(1)
            if pf and n == E('e_p4', 'B13'):
                for (sr, nl) in ((sWO, 16), (sW4, 56)):
                    a(f's_mul_i32 s{sT0}, s2, {nl*128}\nv_cmp_gt_u32 vcc, {nl}, v0\nv_cndmask_b32 v{T[7]}, v{OB}, v{T[15]}, vcc\nbuffer_load_dword v62, v{T[7]}, {srd(sr)}, s{sT0} offen')
            if t3:
                if n == E('e_t3q', 'B4'): touch3(sQKV, 1536, 63)
                if n == E('e_t32', 'B7'): touch3(sW2, 512, 63)
                if n == E('e_t33', 'B13'): touch3(sW3, 1792, 63)
                if n == E('e_t33b', 'B24'): touch3(sW3, 1792, 63)
                if n == E('e_t34', 'B28'): touch3(sW4, 1792, 63)
                if n == E('e_t35', 'B37'): touch3(sWO, 512, 63); touch3(sW4, 1792, 63)
            if n[0] == 'B' and int(n[1:]) >= max(self.need.values()) + 2 and not prof and not two: break
        if prof:
            stamp(True)
            a(f's_lshl_b32 s{sT0}, s2, 3\ns_add_u32 s{sT0}, s{sT0}, 4\ns_lshl_b32 s{sT0}, s{sT0}, 8\ns_add_u32 s{sT0}, s{sT0}, {TS_OFF}')
            a(f'v_lshlrev_b32 v2, 2, v0\nbuffer_store_dword v{VTS}, v2, {srd(sWS)}, s{sT0} offen\nbuffer_store_dword v{VTC}, v2, {srd(sWS)}, s{sT0} offen offset:256')
            dump_arrive(0)
        a('s_endpgm')

        a('L_loader:')
        a.vm = vmL; a.lg = []; stok.update(stokL); grp[0] = [0, 1] if two else [0, 1, 2, 3]
        loader_setup()
        for n in BARS:
            load_before(n)
            arrive(IDX[n]); self.barsL.append(n); a('s_barrier')
            load_after(n)
        dump_arrive(0)
        a('s_endpgm')

    def build(self):
        a = Asm()
        dry = Asm(); self.compute(dry); self.barsC = []
        self.prologue(a)
        self.helper(a)
        a.lg = []; a.vm = []
        a('L_compute:')
        self.compute(a)
        a('L_end:\ns_endpgm')
        assert self.barsC[:-1] == self.barsL and self.barsC[-1] == 'RB2' and self.barsL[:len(self.barsS)] == self.barsS, (self.barsC, self.barsL, self.barsS)
        if self.opt.get('align', 3): self.alstat = align_pass(a, KNAME + ':\n', self.opt.get('align', 3))
        ref = open(f'cdna_kernels/{KNAME[:-7]}.s.ref').read().split('\n')
        head = [l for l in ref if l.startswith(';') and '@launch' not in l]
        head += ['; One persistent launch: 256 workgroups = 32 row blocks (64 tokens) x 8 column blocks, one per CU.',
                 '; Waves 0-3 compute (MFMA), wave 4 publishes/polls hand-off flags, waves 5-6 do background work (x tile, row',
                 '; statistics, column sums of w3, attention output), wave 7 streams weight tiles into an LDS ring.',
                 '; Layer norms are applied after the GEMMs as rho*(x@W - mu*colsum(W)).  Tiles exchanged between workgroups go',
                 '; through d_ws with write-through stores and flags that this launch zeroes itself (announced in d_debug).']
        if self.dnames: head.append('; dnames ' + ' '.join(self.dnames))
        out = '\n'.join(head) + '\n; @launch grid=(256,1,1) block=(512,1,1) lds=163840\n'
        out += f'.amdgcn_target "amdgcn-amd-amdhsa--gfx950"\n.text\n.globl {KNAME}\n.p2align 8\n.type {KNAME},@function\n{KNAME}:\n'
        out += a.text()
        out += f'''.section .rodata,"a"
.p2align 6
.amdhsa_kernel {KNAME}
  .amdhsa_next_free_vgpr 256
  .amdhsa_next_free_sgpr 102
  .amdhsa_accum_offset 256
  .amdhsa_group_segment_fixed_size 0
  .amdhsa_kernarg_size 88
  .amdhsa_user_sgpr_count 2
  .amdhsa_user_sgpr_kernarg_segment_ptr 1
  .amdhsa_system_sgpr_workgroup_id_x 1
.end_amdhsa_kernel
'''
        return out, a


def generate(**opt):
    g = Gen(opt)
    return g.build()[0]

if __name__ == '__main__':
    opt = {}
    for arg in sys.argv[2:]:
        k, v = arg.split('=')
        opt[k] = int(v) if v.lstrip('-').isdigit() else v
    g = Gen(opt)
    txt, a = g.build()
    open(sys.argv[1], 'w').write(txt)
    print('instructions', len(a.ins), 'pads', a.npad, 'align', getattr(g, 'alstat', None), 'issue', ISSUE)
```

```python
import sys, math, struct
sys.path.insert(0, 'dev')
import re
from asmlib import Asm, Ins, align_pass

KNAME = 'parallel_sum__linear_attn_block__mixer_s_mlp__prompt_kernel'

H_OFF, X1_OFF, O_OFF, G_OFF = 0x000000, 0x200000, 0x400000, 0x600000
KV_OFF, FL_OFF, XS_OFF, TS_OFF = 0xE00000, 0xD10000, 0xD20000, 0x1000000
CF_OFF = 0xD00000
WS_BYTES = 0x1200000
KVP, KV_Z, KV_FIN, KV_CS = 4608, 4096, 0x24000, 0x28000
CF_CS, CF_A, CF_B = 0, 1024, 2048
NREP = 4
FH, FX1, FO, FG0, FG1, FG2 = 0, 1, 2, 3, 4, 5
GBLK = 229376
RING = 0x10000
SC = 0x24000
S1, S2, NMU, RHO, RHL = SC, SC + 1024, SC + 2048, SC + 2304, SC + 2560
PQ, X1P, CS3L = SC, SC + 9216, SC + 10240
OOB = 0x80000000

def f2u(x): return struct.unpack('<I', struct.pack('<f', x))[0]
LOG2E = 1.4426950408889634
GC0 = -2.0 * math.sqrt(2.0 / math.pi) * LOG2E
GC1 = GC0 * 0.044715

sX, sQKV, sWO, sW1, sW2, sW3, sW4, sOUT, sWS, sDBG = 28, 32, 36, 40, 44, 48, 52, 56, 60, 64
sR, sJ, sW, sTH, sHI = 68, 69, 70, 71, 72
sT0, sT1, sT2, sT3, sT4, sT5 = 73, 74, 75, 76, 77, 78
sEPS = 80
sONE, sSEL0, sSEL1 = 82, 83, 84
sA, sB, sC, sD = 85, 86, 87, 88
sI0 = 79
sCODE = 92
sCNT = 90
sROT = 89
sRG = 3
sKG = 22
sKC = 96
sBG = 91
sK1, sK3, sK5, sKX = 92, 96, 4, 18
sTSP = 100

def srd(n): return f's[{n}:{n+3}]'
def vr(n, k=1): return f'v{n}' if k == 1 else f'v[{n}:{n+k-1}]'

STAGES = ([('w1', s) for s in range(4)] + [('kv', s) for s in range(8)] + [('w2', s) for s in range(4)] +
          [('wq', s) for s in range(4)] + [('p0', s) for s in range(4)] + [('hf', s) for s in range(2)] +
          [('p1', s) for s in range(4)] + [('p2', s) for s in range(4)] +
          [])
STAGES0 = list(STAGES)
def set_order(order):
    STAGES[:] = STAGES0 + [(k, s) for k in order.split('.') for s in range(2 if k == 'gh' else 4)]
set_order('g0.g1.gh.wo.g2')
def g_rows(kind, s):
    if kind == 'gh': return 896 * s + 192, 896 * s + 640
    p = int(kind[1])
    return 448 * s + 64 * p, 448 * s + 256 + 64 * p
NST = len(STAGES)
AREL = 27

def plan_slots(opt):
    free = [RING + i * 0x4000 for i in range(5)]
    slot = {}; issue = {}
    quota = {13: opt.get('q13', 0), 16: opt.get('q16', 1), 17: 2, 24: opt.get('q24', 3), 27: 1, 30: opt.get('q30', 4), 34: opt.get('q34', 1)}
    jit = opt.get('jit', 5)
    regs = [int(x) for x in str(opt.get('regs', '')).split('.') if x]
    nxt = 0
    def drain(key, q, b):
        nonlocal nxt
        while free and nxt < NST and (nxt in regs or ((q > 0 or nxt <= b + 2) and not (b >= 35 and nxt > b + jit))):
            slot[nxt] = free.pop(0); issue.setdefault(key, []).append(nxt); q -= nxt not in regs; nxt += 1
    drain(-1, 5, -1)
    for b in range(NST):
        if b == 20:
            free.extend([slot[18], slot[19]]); drain('QE', 2, 19)
        er = [int(x) for x in str(opt.get('erel', '24.30.34')).split('.') if x != 'X']
        if b >= 2 and b not in (20, 21) and (b - 1) not in er: free.append(slot[b - 2])
        if b in er: free.append(slot[b - 1])
        if b == (24 if opt.get('hfv', 1) else AREL): free.extend([0, 0x4000, 0x8000, 0xC000])
        if b == 32 and opt.get('sc10', 1): free.append(SC)
        if SC in free and nxt > 47: free.remove(SC)
        if b == 15 and opt.get('rb17', 1): drain('RB1', quota.get(b, 1), b)
        else: drain(b, quota.get(b, 1), b)
    assert nxt == NST
    return slot, issue


class Gen:
    def __init__(self, opt):
        self.opt = opt
        self.barsC = []; self.barsS = []; self.barsL = []; self.dnames = []
        global SLOT, ISSUE
        set_order(opt.get('order', 'g0.g1.gh.g2.wo' if opt.get('kv2', 0) else 'g0.wo.g1.gh.g2'))
        SLOT, ISSUE = plan_slots(opt)

    def prologue(self, a):
        a('s_cmp_ge_u32 s2, 256\ns_cbranch_scc1 L_end')
        a('s_load_dwordx16 s[4:19], s[0:1], 0\ns_load_dwordx4 s[20:23], s[0:1], 64\ns_load_dwordx2 s[24:25], s[0:1], 80')
        if self.opt.get('prof'):
            a(f's_memrealtime s[26:27]\ns_memtime s[90:91]')
        m = self.opt.get('map', 'h4')
        if m == 'same':
            a(f's_and_b32 s{sR}, s2, 7\ns_lshr_b32 s{sT0}, s2, 6\ns_lshl_b32 s{sT0}, s{sT0}, 3\ns_or_b32 s{sR}, s{sR}, s{sT0}')
            a(f's_lshr_b32 s{sJ}, s2, 3\ns_and_b32 s{sJ}, s{sJ}, 7')
        elif m == 'h4':
            a(f's_and_b32 s{sR}, s2, 3\ns_lshr_b32 s{sT0}, s2, 5\ns_lshl_b32 s{sT0}, s{sT0}, 2\ns_or_b32 s{sR}, s{sR}, s{sT0}')
            a(f's_lshr_b32 s{sJ}, s2, 2\ns_and_b32 s{sJ}, s{sJ}, 7')
        elif m == 'cross':
            a(f's_lshr_b32 s{sR}, s2, 3\ns_and_b32 s{sJ}, s2, 7')
        a('v_lshrrev_b32 v1, 6, v0\nv_and_b32 v0, 63, v0')
        a(f'v_readfirstlane_b32 s{sT1}, v1')
        a(f's_mov_b32 s{sX+2}, {2<<20}\ns_mov_b32 s{sX+3}, 0x20000')
        a(f's_and_b32 s{sW}, s{sT1}, 3\ns_and_b32 s{sTH}, s{sT1}, 1\ns_lshr_b32 s{sHI}, s{sW}, 1')
        sh = {'same': 3, 'h4': 2, 'cross': 5}[m] if self.opt.get('rot2', 1) else 8
        a(f's_lshr_b32 s{sROT}, s{sR}, {sh}\ns_add_u32 s{sROT}, s{sROT}, s{sR}\ns_add_u32 s{sROT}, s{sROT}, s{sJ}\ns_and_b32 s{sROT}, s{sROT}, 3')
        sh2 = {'same': 3, 'h4': 2, 'cross': 5}[m]
        if self.opt.get('rotg', 1): a(f's_lshr_b32 s{sRG}, s{sR}, {sh2}\ns_add_u32 s{sRG}, s{sRG}, s{sJ}\ns_and_b32 s{sRG}, s{sRG}, 3')
        else: a(f's_mov_b32 s{sRG}, 0')
        a(f's_cmp_lt_u32 s{sT1}, 4\ns_cbranch_scc1 L_compute')

    def srds(self, a, skipx=False, skip1=False):
        a(f's_mov_b32 s{sEPS}, {f2u(1e-6):#x}\ns_mov_b32 s{sEPS+1}, {f2u(1e-6):#x}\ns_mov_b32 s{sONE}, 0x3f803f80')
        for (s, p, n) in ((sX, 4, 2 << 20), (sW1, 12, 512 * 1024), (sQKV, 6, 512 * 3072), (sWO, 8, 512 * 1024), (sW2, 14, 512 * 1024),
                          (sW3, 16, 512 * 3584), (sW4, 18, 1792 * 1024), (sOUT, 20, 2 << 20), (sWS, 24, WS_BYTES), (sDBG, 22, 256)):
            if s == sX and skipx: continue
            if s == sW1 and skip1: continue
            a(f's_mov_b32 s{s}, s{p}\ns_and_b32 s{s+1}, s{p+1}, 0xffff\ns_mov_b32 s{s+2}, {n}\ns_mov_b32 s{s+3}, 0x20000')

    def run_steps(self, a, steps):
        n = len(steps)
        sched = {}
        for i, s in enumerate(steps):
            sched.setdefault(s['at'], []).append(i)
        def items(i):
            s = steps[i]
            out = []
            if s.get('pre'): out.append(('pre', i))
            out += [('rd', i, t) for t in s['reads']]
            return out
        def emit(it):
            if it[0] == 'pre':
                steps[it[1]]['pre']()
            elif it[0] == 'rd':
                steps[it[1]]['tok'] = a(it[2])
            else:
                it[1]()
        for i in sched.get(-1, []):
            for it in items(i): emit(it)
        for k in range(n):
            s = steps[k]
            if s.get('hook'): s['hook']()
            pend = []
            for i in sched.get(k, []):
                if i == k:
                    for it in items(i): emit(it)
                else:
                    pend += items(i)
            pend += [('post', f) for f in s.get('post', [])]
            vt = s['vm']() if s.get('vm') else None
            a.wait_both(s.get('tok'), vt)
            nm = len(s['mfmas'])
            per = -(-len([p for p in pend if p[0] != 'pre']) // nm) if pend else 0
            for mi, m in enumerate(s['mfmas']):
                a(m)
                if s.get('tail') and s['tail'][mi]: s['tail'][mi]()
                c = 0
                while pend and (c < per or mi == nm - 1):
                    it = pend.pop(0)
                    emit(it)
                    if it[0] != 'pre': c += 1
                    elif mi < nm - 1 and self.opt.get('bfast', 0):
                        per = -(-len(pend) // (nm - 1 - mi))
                        break

    def barC(self, a, name):
        self.barsC.append(name); a('s_barrier')

    def gelu(self, a, pairs, tmp, after_first=None):
        P = lambda r: vr(r, 2)
        for i, (ac, cs, st, o) in enumerate(pairs):
            a(f'v_pk_fma_f32 {P(ac)}, {P(cs)}, {P(st)}, {P(ac)} op_sel:[0,0,0] op_sel_hi:[1,0,1]')
        if after_first: after_first()
        for i, (ac, cs, st, o) in enumerate(pairs):
            a(f'v_pk_mul_f32 {P(tmp+2*i)}, {P(ac)}, {P(ac)}')
        for i, (ac, cs, st, o) in enumerate(pairs):
            a(f'v_pk_fma_f32 {P(tmp+2*i)}, {P(tmp+2*i)}, {P(st+2)}, {P(st)} op_sel:[0,0,1] op_sel_hi:[1,0,1]')
        for i, (ac, cs, st, o) in enumerate(pairs):
            a(f'v_pk_mul_f32 {P(tmp+2*i)}, {P(tmp+2*i)}, {P(ac)}')
        for i in range(2 * len(pairs)):
            a(f'v_exp_f32_e64 v{tmp+i}, v{tmp+i}')
        for i, (ac, cs, st, o) in enumerate(pairs):
            a(f'v_pk_fma_f32 {P(tmp+2*i)}, {P(tmp+2*i)}, {P(st+2)}, {P(st+2)} op_sel:[0,1,1] op_sel_hi:[1,1,1]')
        for i in range(2 * len(pairs)):
            a(f'v_rcp_f32_e64 v{tmp+i}, v{tmp+i}')
        for i, (ac, cs, st, o) in enumerate(pairs):
            a(f'v_pk_mul_f32 {P(tmp+2*i)}, {P(tmp+2*i)}, {P(ac)}')
        for i, (ac, cs, st, o) in enumerate(pairs):
            a(f'v_cvt_pk_bf16_f32 v{o}, v{tmp+2*i}, v{tmp+2*i+1}')

    def phi_tail(self, a, acs, outs, tmp):
        P = lambda r: vr(r, 2)
        n = len(acs)
        for i in range(2 * n): a(f'v_exp_f32_e64 v{tmp+i}, v{tmp+i} clamp')
        for ac in acs:
            a(f'v_max_f32_e64 v{ac}, v{ac}, s{sEPS}\nv_max_f32_e64 v{ac+1}, v{ac+1}, s{sEPS}')
        for i, ac in enumerate(acs): a(f'v_pk_add_f32 {P(ac)}, {P(ac)}, {P(tmp+2*i)}')
        for i, ac in enumerate(acs): a(f'v_cvt_pk_bf16_f32 v{outs[i]}, v{ac}, v{ac+1}')

    def compute(self, a):
        opt = self.opt
        P = lambda r: vr(r, 2)
        XB = [2, 3, 4, 5]; PAT16, WK16 = 6, 7
        PATN = [8, 9]; PATP = [10, 11, 12, 13]; PAT3 = [14, 15]
        WK = [16, 17, 18, 19]
        CELLV, CELLT, LL16, RDX = 20, 21, 22, 23
        RES = 24; QST = 40; PST = 196
        ONES = 56
        STA, STB, XE, PSA = 1, 54, 19, 18
        HV = [252, 253, 254, 255]
        T = [240 + i for i in range(12)]
        q, i16, rr, c, h, t32, fsub = 228, 229, 230, 231, 232, 233, 234
        a(f'v_lshrrev_b32 v{q}, 4, v0\nv_and_b32 v{i16}, 15, v0\nv_lshrrev_b32 v{rr}, 2, v{i16}\nv_and_b32 v{c}, 3, v0')
        a(f'v_lshrrev_b32 v{h}, 5, v0\nv_and_b32 v{t32}, 31, v0\nv_and_b32 v{fsub}, 1, v{q}')
        a(f'v_lshlrev_b32 v{LL16}, 4, v0')
        a(f'v_lshlrev_b32 v{T[2]}, 3, v0')
        a(f's_lshr_b32 s{sT3}, s2, 3\ns_lshl_b32 s{sT3}, s{sT3}, 2\ns_add_u32 s{sT3}, s{sT3}, s{sW}\ns_lshl_b32 s{sT3}, s{sT3}, 9')
        a(f's_getpc_b64 s[{sCODE}:{sCODE+1}]\nL_pc:\ns_sub_u32 s{sCODE}, s{sCODE}, L_pc-{KNAME}\ns_subb_u32 s{sCODE+1}, s{sCODE+1}, 0')
        a(f's_and_b32 s{sCODE+1}, s{sCODE+1}, 0xffff\ns_mov_b32 s{sCODE+2}, L_end-{KNAME}\ns_mov_b32 s{sCODE+3}, 0x20000')
        if opt.get('cpf', 1): a(f'buffer_load_dword v24, v{T[2]}, {srd(sCODE)}, s{sT3} offen')
        if opt.get('t0', 0):
            a(f's_lshl_b32 s{sT0}, s{sR}, 3\ns_add_u32 s{sT0}, s{sT0}, s{sJ}\ns_lshl_b32 s{sT0}, s{sT0}, 2\ns_add_u32 s{sT0}, s{sT0}, s{sW}\ns_lshl_b32 s{sT2}, s{sT0}, 9\ns_lshl_b32 s{sT0}, s{sT0}, 11')
            a(f'v_lshlrev_b32 v{T[3]}, 5, v0\ns_mov_b32 s{sW1+2}, {512*1024}\ns_mov_b32 s{sW1+3}, 0x20000')
        a('s_waitcnt lgkmcnt(0)')
        if opt.get('t0', 0):
            a(f's_mov_b32 s{sX}, s4\ns_and_b32 s{sX+1}, s5, 0xffff\nbuffer_load_dword v25, v{T[3]}, {srd(sX)}, s{sT0} offen')
            a(f's_mov_b32 s{sW1}, s12\ns_and_b32 s{sW1+1}, s13, 0xffff\nbuffer_load_dword v26, v{T[2]}, {srd(sW1)}, s{sT2} offen')
        self.srds(a)
        a(f's_lshr_b32 s{sT0}, s{sR}, 2\ns_or_b32 s{sT0}, s{sT0}, s{sW}\ns_cmp_lg_u32 s{sT0}, 0\ns_cbranch_scc1 L_nozero')
        vm0 = list(a.vm)
        a(f'v_mov_b32 v{T[4]}, 0\nv_mov_b32 v{T[5]}, 0\nv_mov_b32 v{T[6]}, 0\nv_mov_b32 v{T[7]}, 0')
        a(f's_lshl_b32 s{sT3}, s{sJ}, 2\ns_add_u32 s{sT3}, s{sT3}, s{sR}')
        a(f's_lshl_b32 s{sT0}, s{sT3}, 10\ns_add_u32 s{sT0}, s{sT0}, {CF_OFF}')
        a(f'buffer_store_dwordx4 {vr(T[4],4)}, v{LL16}, {srd(sWS)}, s{sT0} offen sc1')
        a(f's_lshl_b32 s{sT0}, s{sJ}, 18\ns_lshl_b32 s{sT2}, s{sR}, 13\ns_add_u32 s{sT0}, s{sT0}, s{sT2}\ns_add_u32 s{sT0}, s{sT0}, {KV_OFF}\ns_add_u32 s{sT2}, s{sT0}, 4096')
        for u in range(0 if opt.get('kv2', 0) else 5):
            a(f'buffer_store_dwordx4 {vr(T[4],4)}, v{LL16}, {srd(sWS)}, s{sT0 if u < 4 else sT2} offen offset:{(u&3)*1024} sc1')
        a(f'v_lshlrev_b32 v{T[8]}, 12, v{q}\nv_lshl_add_u32 v{T[8]}, v{i16}, 3, v{T[8]}')
        a(f's_lshl_b32 s{sT0}, s{sT3}, 7\ns_add_u32 s{sT0}, s{sT0}, {FL_OFF}')
        a(f'buffer_store_dwordx2 {vr(T[4],2)}, v{T[8]}, {srd(sWS)}, s{sT0} offen sc1\ns_add_u32 s{sT0}, s{sT0}, 16384')
        a(f'buffer_store_dwordx2 {vr(T[4],2)}, v{T[8]}, {srd(sWS)}, s{sT0} offen sc1')
        a(f'v_mov_b32 v{T[9]}, 1\ns_lshl_b32 s{sT0}, s{sT3}, 2\nv_mov_b32 v{T[10]}, s{sT0}')
        a.wait_vm0()
        a('s_mov_b64 exec, 1')
        a(f'buffer_store_dword v{T[9]}, v{T[10]}, {srd(sDBG)}, 0 offen sc1')
        a('s_mov_b64 exec, -1')
        a('L_nozero:')
        a.vm = vm0
        a(f'v_mov_b32 v{T[1]}, {OOB}')
        for m in range(4):
            a(f'v_or_b32 v{T[0]}, {4*m}, v{q}\nv_xor_b32 v{T[0]}, v{T[0]}, v{i16}\nv_lshlrev_b32 v{T[0]}, 4, v{T[0]}')
            a(f'v_lshl_add_u32 v{XB[m]}, v{i16}, 8, v{T[0]}')
        a(f'v_lshrrev_b32 v{T[4]}, 1, v{rr}\nv_lshlrev_b32 v{T[4]}, 2, v{T[4]}\nv_lshrrev_b32 v{T[5]}, 1, v{c}')
        a(f'v_and_b32 v{T[6]}, 1, v{c}\nv_lshlrev_b32 v{T[6]}, 3, v{T[6]}')
        a(f's_lshl_b32 s{sT0}, s{sW}, 1\nv_add_u32 v{T[7]}, s{sT0}, v{T[5]}\nv_xor_b32 v{T[7]}, v{T[7]}, v{T[4]}')
        a(f'v_lshlrev_b32 v{T[8]}, 1, v{fsub}\nv_xor_b32 v{T[7]}, v{T[7]}, v{T[8]}\nv_lshl_add_u32 v{T[7]}, v{T[7]}, 4, v{T[6]}')
        a(f'v_lshl_add_u32 v{T[9]}, v{q}, 3, v{rr}\nv_lshl_add_u32 v{PAT16}, v{T[9]}, 7, v{T[7]}')
        a(f's_lshl_b32 s{sT0}, s{sHI}, 2\nv_add3_u32 v{T[7]}, s{sT0}, v{T[8]}, v{T[5]}\nv_xor_b32 v{T[7]}, v{T[7]}, v{T[4]}')
        a(f's_lshl_b32 s{sT2}, s{sHI}, 13')
        a(f'v_lshlrev_b32 v{T[9]}, 1, v{h}\nv_xor_b32 v{T[9]}, v{T[9]}, v{T[7]}\nv_lshl_add_u32 v{T[9]}, v{T[9]}, 4, v{T[6]}')
        a(f'v_lshl_add_u32 v{T[10]}, v{h}, 3, v{rr}\nv_lshl_add_u32 v{T[9]}, v{T[10]}, 7, v{T[9]}')
        a(f'v_add_u32 v{PATN[0]}, s{sT2}, v{T[9]}\nv_xor_b32 v{PATN[1]}, 64, v{PATN[0]}')
        a(f'v_lshl_add_u32 v{T[9]}, v{T[7]}, 4, v{T[6]}\nv_lshl_add_u32 v{T[10]}, v{h}, 2, v{rr}\nv_lshl_add_u32 v{PAT3[0]}, v{T[10]}, 7, v{T[9]}')
        a(f'v_xor_b32 v{PAT3[1]}, 32, v{PAT3[0]}\nv_add_u32 v{PAT3[1]}, 1024, v{PAT3[1]}')
        a(f'v_add_u32 v{PATP[0]}, s{sT2}, v{PAT3[0]}\nv_add_u32 v{PATP[1]}, s{sT2}, v{PAT3[1]}')
        a(f'v_xor_b32 v{PATP[2]}, 64, v{PATP[0]}\nv_xor_b32 v{PATP[3]}, 64, v{PATP[1]}')
        a(f'v_lshlrev_b32 v{CELLV}, 10, v{h}\nv_lshl_add_u32 v{CELLV}, v{t32}, 4, v{CELLV}')
        a(f's_lshl_b32 s{sT0}, s{sTH}, 9\nv_add_u32 v{CELLT}, s{sT0}, v{CELLV}')
        for i in range(4): a(f'v_mov_b32 v{ONES+i}, s{sONE}')
        a(f's_lshl_b32 s{sT0}, s{sTH}, 5\nv_add_u32 v{T[0]}, s{sT0}, v{t32}')
        a(f's_lshl_b32 s{sT2}, s{sHI}, 13\nv_lshl_add_u32 v{T[2]}, v{h}, 10, s{sT2}')
        rot = opt.get('rot', 1)
        for g in range(4):
            if rot: a(f's_add_u32 s{sT0}, s{sROT}, {g}\ns_and_b32 s{sT0}, s{sT0}, 3')
            else: a(f's_mov_b32 s{sT0}, {g}')
            a(f's_lshl_b32 s{sKC+g}, s{sT0}, 14\ns_lshr_b32 s{sT3}, s{sT0}, 1\ns_add_u32 s{sT3}, s{sT3}, 1\ns_sub_u32 s{sT4}, 0, s{sT3}\ns_bitcmp1_b32 s{sT0}, 0\ns_cselect_b32 s{sT3}, s{sT3}, s{sT4}')
            a(f'v_add_u32 v{T[3]}, s{sT3}, v{T[0]}\nv_ashrrev_i32 v{T[4]}, 6, v{T[3]}\nv_add_u32 v{T[4]}, s{sR}, v{T[4]}')
            if opt.get('ssh', 0): a(f'v_lshl_add_u32 v{T[3]}, v{T[0]}, 4, v{T[2]}\ns_lshl_b32 s{sT3}, s{sR}, 16\ns_add_u32 s{sT3}, s{sT3}, s{sKC+g}\nv_add_u32 v{T[3]}, s{sT3}, v{T[3]}')
            else: a(f'v_and_b32 v{T[3]}, 63, v{T[3]}\nv_lshl_add_u32 v{T[3]}, v{T[3]}, 4, v{T[2]}\nv_lshl_add_u32 v{T[3]}, v{T[4]}, 16, v{T[3]}\nv_add_u32 v{T[3]}, s{sKC+g}, v{T[3]}')
            a(f'v_cmp_gt_u32 vcc, 32, v{T[4]}\nv_cndmask_b32 v{HV[g]}, v{T[1]}, v{T[3]}, vcc')
        HS = [26, 27]
        if opt.get('ssh', 0):
            a(f's_lshr_b32 s{sT0}, s{sJ}, 1\ns_lshr_b32 s{sT3}, s{sT0}, 1\ns_add_u32 s{sT3}, s{sT3}, 1\ns_sub_u32 s{sT4}, 0, s{sT3}\ns_bitcmp1_b32 s{sT0}, 0\ns_cselect_b32 s{sT3}, s{sT4}, s{sT3}')
            for pr in range(2):
                a(f'v_add_u32 v{T[3]}, s{sT3}, v{t32}')
                if pr: a(f'v_add_u32 v{T[3]}, 32, v{T[3]}')
                a(f'v_ashrrev_i32 v{T[4]}, 6, v{T[3]}\nv_add_u32 v{T[4]}, s{sR}, v{T[4]}\nv_and_b32 v{T[3]}, 63, v{T[3]}\nv_lshlrev_b32 v{T[3]}, 4, v{T[3]}')
                a(f'v_lshl_add_u32 v{T[3]}, v{h}, 10, v{T[3]}\nv_lshl_add_u32 v{T[3]}, v{T[4]}, 16, v{T[3]}\nv_cmp_gt_u32 vcc, 32, v{T[4]}\nv_cndmask_b32 v{HS[pr]}, v{T[1]}, v{T[3]}, vcc')
        a(f'v_lshlrev_b32 v{STA}, 4, v{i16}\nv_add_u32 v{STA}, {SC}, v{STA}')
        a(f'v_lshlrev_b32 v{STB}, 4, v{q}\nv_add_u32 v{STB}, {NMU}, v{STB}')
        a(f'v_lshlrev_b32 v{PSA}, 4, v{T[0]}\nv_add_u32 v{PSA}, {S2}, v{PSA}')
        a(f's_and_b32 s{sT0}, s{sJ}, 1\ns_lshl_b32 s{sT0}, s{sT0}, 3\ns_lshl_b32 s{sT2}, s{sHI}, 2\ns_add_u32 s{sT0}, s{sT0}, s{sT2}')
        a(f's_lshr_b32 s{sT2}, s{sJ}, 1\ns_sub_u32 s{sT2}, s{sT2}, s{sROT}\ns_and_b32 s{sT2}, s{sT2}, 3\ns_lshl_b32 s{sT2}, s{sT2}, 14')
        a(f'v_xor_b32 v{XE}, s{sT0}, v{i16}\nv_lshlrev_b32 v{XE}, 4, v{XE}\nv_lshl_add_u32 v{XE}, v{h}, 3, v{XE}\nv_lshl_add_u32 v{XE}, v{T[0]}, 8, v{XE}\nv_add_u32 v{XE}, s{sT2}, v{XE}')
        a(f's_xor_b32 s{sT0}, s{sW}, 2\ns_lshl_b32 s{sT0}, s{sT0}, 12\ns_add_u32 s{sT0}, s{sT0}, {SC}\nv_add_u32 v{RDX}, s{sT0}, v{LL16}')
        a(f's_lshl_b32 s{sA}, s{sR}, 16')
        a(f's_lshl_b32 s{sT0}, s{sJ}, 2\ns_add_u32 s{sT0}, s{sT0}, s{sW}\ns_lshl_b32 s{sT0}, s{sT0}, 11')
        a(f's_mov_b32 s{sB}, s{sT0}' if opt.get('ssh', 0) else f's_add_u32 s{sB}, s{sA}, s{sT0}')
        if opt.get('kv2', 0): a(f's_mul_i32 s{sT0}, s{sR}, {KVP}')
        else: a(f's_and_b32 s{sT0}, s{sR}, 3\ns_lshl_b32 s{sT0}, s{sT0}, 13')
        a(f's_lshl_b32 s{sC}, s{sJ}, 18\ns_add_u32 s{sC}, s{sC}, s{sT0}\ns_add_u32 s{sC}, s{sC}, {KV_OFF}')
        a(f's_mul_i32 s{sD}, s{sR}, {GBLK}\ns_add_u32 s{sD}, s{sD}, {G_OFF}')

        def cst(k):
            if opt.get('prof') in (1, 2) and opt.get('cset', 0) == k // 8: a(f's_memrealtime s[{4+2*(k%8)}:{5+2*(k%8)}]')
        def stage_pre(st, wks, pats, extra=None, after=None):
            def f():
                for wk, pt in zip(wks, pats):
                    a(f'v_add_u32 v{wk}, {SLOT[st]}, v{pt}')
                if extra: extra()
                self.barC(a, f'B{st}')
                if after: after()
            return f

        def steps_q(first, acc, cs, sets, base_at):
            st = []
            for ks in range(16):
                sb = sets[ks % 3]; stg = first + ks // 4
                reads = [f'ds_read_b64_tr_b16 {vr(sb+16,2)}, v{WK16} offset:{(ks%4)*4096}',
                         f'ds_read_b64_tr_b16 {vr(sb+18,2)}, v{WK16} offset:{(ks%4)*4096+512}']
                reads += [f'ds_read_b128 {vr(sb+4*tt,4)}, v{XB[ks&3]} offset:{tt*4096+(ks>>2)*16384}' for tt in range(4)]
                mf = [f'v_mfma_f32_16x16x32_bf16 {vr(cs,4)}, {vr(sb+16,4)}, {vr(ONES,4)}, {vr(cs,4) if ks else 0}']
                mf += [f'v_mfma_f32_16x16x32_bf16 {vr(acc+4*tt,4)}, {vr(sb+16,4)}, {vr(sb+4*tt,4)}, {vr(acc+4*tt,4) if ks else 0}' for tt in range(4)]
                st.append(dict(reads=reads, mfmas=mf, at=base_at + ks - 2, stage=stg if ks % 4 == 0 else None))
            return st

        HACC, HCS, HSETS = 60, 76, [80, 100, 120]
        KACC, VACC, KCS, VCS, KSETS = 140, 156, 172, 176, [180, 204]
        ovl = opt.get('ovl', 0)
        HF = 60; P2ACC = 180 if ovl else 140
        steps = steps_q(0, HACC, HCS, HSETS, 0)
        steps[0]['at'] = -1; steps[1]['at'] = -1
        for s in steps:
            if s['stage'] is not None: s['pre'] = stage_pre(s['stage'], [WK16], [PAT16])
        nh = len(steps)

        htok = {}
        HST = 80
        def h_stats_reads():
            for tt in range(4):
                htok['s'] = a(f'ds_read_b128 {vr(228+4*tt,4)}, v{STA} offset:{tt*256}')
        def h_epilogue():
            ST = 228; TMP = 100; OUT = 116
            a.wait_lg(htok['s'])
            pairs = [(HACC + 2*u, HCS + 2*(u & 1), ST + 4*(u >> 1), OUT + u) for u in range(8)]
            self.gelu(a, pairs, TMP)
            for pr in range(2):
                a(f'v_permlane16_swap_b32 v{OUT+4*pr}, v{OUT+4*pr+2}\nv_permlane16_swap_b32 v{OUT+4*pr+1}, v{OUT+4*pr+3}')
                htok['st'] = a(f'buffer_store_dwordx4 {vr(OUT+4*pr,4)}, v{HS[pr]}, {srd(sWS)}, s{sB} offen sc1' if opt.get('ssh', 0) else f'buffer_store_dwordx4 {vr(OUT+4*pr,4)}, v{CELLV}, {srd(sWS)}, s{sB} offen offset:{pr*512} sc1')
            cst(0)

        hl = {}; xp = {}
        HX = 196; x2 = {}
        def hload(n):
            sg, i = n // 4, n % 4
            if n >= 16:
                if n == 16: a(f'v_xor_b32 v{HV[0]}, 8192, v{HV[3]}')
                if i % 2 == 0: a(f's_mov_b32 s{sI0}, {H_OFF + (i>>1)*4096}')
                hl[n] = a(f'buffer_load_dwordx4 {vr(HX+4*i,4)}, v{HV[0]}, {srd(sWS)}, s{sI0} offen offset:{(i&1)*2048} sc1')
                return
            if i % 2 == 0: a(f's_mov_b32 s{sI0}, {H_OFF + (i>>1)*4096}')
            hl[n] = a(f'buffer_load_dwordx4 {vr(HF+4*n,4)}, v{HV[sg]}, {srd(sWS)}, s{sI0} offen offset:{(i&1)*2048} sc1')
        for ks in range(16):
            sb = KSETS[ks % 2]; stg = 4 + ks // 2
            o = (ks % 2) * 4096
            reads = [f'ds_read_b64_tr_b16 {vr(sb+16,2)}, v{WK16} offset:{o}', f'ds_read_b64_tr_b16 {vr(sb+18,2)}, v{WK16} offset:{o+512}',
                     f'ds_read_b128 {vr(sb,4)}, v{XB[ks&3]} offset:{(ks>>2)*16384}',
                     f'ds_read_b64_tr_b16 {vr(sb+20,2)}, v{WK16} offset:{o+8192}', f'ds_read_b64_tr_b16 {vr(sb+22,2)}, v{WK16} offset:{o+8192+512}']
            reads += [f'ds_read_b128 {vr(sb+4*tt,4)}, v{XB[ks&3]} offset:{tt*4096+(ks>>2)*16384}' for tt in range(1, 4)]
            mf = [f'v_mfma_f32_16x16x32_bf16 {vr(KCS,4)}, {vr(ONES,4)}, {vr(sb+16,4)}, {vr(KCS,4) if ks else 0}',
                  f'v_mfma_f32_16x16x32_bf16 {vr(VCS,4)}, {vr(ONES,4)}, {vr(sb+20,4)}, {vr(VCS,4) if ks else 0}']
            for tt in range(4):
                mf.append(f'v_mfma_f32_16x16x32_bf16 {vr(KACC+4*tt,4)}, {vr(sb+4*tt,4)}, {vr(sb+16,4)}, {vr(KACC+4*tt,4) if ks else 0}')
                mf.append(f'v_mfma_f32_16x16x32_bf16 {vr(VACC+4*tt,4)}, {vr(sb+4*tt,4)}, {vr(sb+20,4)}, {vr(VACC+4*tt,4) if ks else 0}')
            s = dict(reads=reads, mfmas=mf, at=nh + ks - 1)
            if ks % 2 == 0:
                extra = after = None
                if stg == opt.get('fh_bar', 6): extra = lambda: (a.wait_vm(htok['st']), cst(1))
                if stg == opt.get('hl_bar', 11): after = lambda: a.inject([lambda n=n: hload(n) for n in range(16)], opt.get('hl_every', 16))
                if stg == 4: after = h_stats_reads
                if stg == opt.get('xn_bar', 11) - 1: after = lambda o=after: ((o() if o else None), xn_prep())
                if stg == opt.get('xn_bar', 11): extra = lambda: xn_prep2()
                s['pre'] = stage_pre(stg, [WK16], [PAT16], extra, after)
            steps.append(s)
        kr0, kp0 = steps[nh]['reads'], steps[nh]['pre']
        steps[nh]['reads'] = []; steps[nh]['pre'] = None
        def h_hook():
            kp0()
            for t in kr0: steps[nh]['tok'] = a(t)
            h_epilogue()
        steps[nh]['hook'] = h_hook
        nkv = len(steps)

        ASETS = [228, 236, 244]
        def steps_ks(first, nstage, pats, natural, acc, bfrag, asets, base, setphase=0, init=True, c_init=None):
            st = []
            for n in range(4 * nstage):
                stg = first + n // 4; i = n % 4
                sb = asets[(n + setphase) % 3]
                reads = []
                for t in range(2):
                    for rd in range(2):
                        if natural:
                            reads.append(f'ds_read_b64_tr_b16 {vr(sb+4*t+2*rd,2)}, v{WK[t]} offset:{i*2048+rd*512}')
                        else:
                            reads.append(f'ds_read_b64_tr_b16 {vr(sb+4*t+2*rd,2)}, v{WK[2*t+rd]} offset:{i*2048}')
                b = bfrag(n)
                c0 = vr(acc if (n or c_init is None) else c_init, 16)
                c1 = vr(acc + 16, 16) if (n or not init) else 0
                mf = [f'v_mfma_f32_32x32x16_bf16 {vr(acc,16)}, {vr(sb,4)}, {vr(b,4)}, {c0}',
                      f'v_mfma_f32_32x32x16_bf16 {vr(acc+16,16)}, {vr(sb+4,4)}, {vr(b,4)}, {c1}']
                s = dict(reads=reads, mfmas=mf, at=base + n - 2)
                if i == 0: s['pre'] = stage_pre(stg, WK[:len(pats)], pats)
                st.append(s)
            return st

        p2 = steps_ks(12, 4, PATN, True, P2ACC, lambda n: HF + 4 * n, ASETS, nkv, c_init=124)
        p2[0]['at'] = nkv - 1; p2[1]['at'] = nkv - 1
        if opt.get('hl_bar', 11) == 12:
            p2[0]['pre'] = (lambda o=p2[0]['pre']: (o(), a.inject([lambda n=n: hload(n) for n in range(16)], opt.get('hl_every', 16))))
        XN = 124
        def xn_prep():
            XR = 228
            a(f'v_xor_b32 v{XR+8}, 16, v{XE}\nv_xor_b32 v{XR+9}, 32, v{XE}\nv_xor_b32 v{XR+10}, 48, v{XE}')
            a(f'ds_read_b64 {vr(XR,2)}, v{XE}')
            for g in range(1, 4): a(f'ds_read_b64 {vr(XR+2*g,2)}, v{XR+7+g}')
            xp['t'] = a(f'ds_read_b64 {vr(XR+12,2)}, v{PSA}')
        def xn_prep2():
            XR = 228
            a.wait_lg(xp['t'])
            for g in range(4):
                for d in range(2):
                    a(f'v_lshlrev_b32 v{RES+4*g+2*d}, 16, v{XR+2*g+d}\nv_and_b32 v{RES+4*g+2*d+1}, 0xffff0000, v{XR+2*g+d}')
            a(f'v_mul_f32 v{XR+12}, v{XR+12}, v{XR+13}')
            for u in range(16): a(f'v_fma_f32 v{XN+u}, v{RES+u}, v{XR+13}, v{XR+12}')
        def kv_epilogue():
            cst(16)
            SN, SR_, SL = 180, 196, 212
            for tt in range(4): a(f'ds_read_b128 {vr(SN+4*tt,4)}, v{STB} offset:{tt*64}')
            for tt in range(4): tk1 = a(f'ds_read_b128 {vr(SL+4*tt,4)}, v{STB} offset:{tt*64+512}')
            for tt in range(4): tk = a(f'ds_read_b128 {vr(SR_+4*tt,4)}, v{STB} offset:{tt*64+256}')
            a.wait_lg(tk1)
            for u in range(8):
                a(f'v_pk_fma_f32 {P(KACC+2*u)}, {P(SN+2*u)}, {P(KCS)}, {P(KACC+2*u)} op_sel_hi:[1,0,1]')
            for u in range(8):
                a(f'v_pk_fma_f32 {P(VACC+2*u)}, {P(SN+2*u)}, {P(VCS)}, {P(VACC+2*u)} op_sel_hi:[1,0,1]')
            for u in range(8):
                a(f'v_pk_mul_f32 {P(SL+2*u)}, {P(SL+2*u)}, {P(KACC+2*u)}')
            a.wait_lg(tk)
            for tt in range(4):
                a(f'ds_read_b128 {vr(QST+4*tt,4)}, v{STA} offset:{1024+tt*256}')
            for u in range(8):
                a(f'v_pk_fma_f32 {P(KACC+2*u)}, {P(KACC+2*u)}, {P(SR_+2*u)}, s[{sEPS}:{sEPS+1}]')
            for u in range(8):
                a(f'v_pk_mul_f32 {P(VACC+2*u)}, {P(VACC+2*u)}, {P(SR_+2*u)}')
            cst(17)
            PKR, PVR = (164, 156) if ovl else (180, 188)
            for u in range(8): a(f'v_cvt_pk_bf16_f32 v{PVR+u}, v{VACC+2*u}, v{VACC+2*u+1}')
            KVA, ZA = 172, 176
            XR = 140 if ovl else 196
            def rest():
                if ovl:
                    for i in range(16): a(f'v_exp_f32_e64 v{SL+i}, v{SL+i} clamp\nv_max_f32_e64 v{KACC+i}, v{KACC+i}, s{sEPS}')
                    for i in range(16): a(f'v_add_f32_e64 v{KACC+i}, v{KACC+i}, v{SL+i}')
                    for u in range(8): a(f'v_cvt_pk_bf16_f32 v{PKR+u}, v{KACC+2*u}, v{KACC+2*u+1}')
                else:
                    self.phi_tail(a, [KACC + 2*u for u in range(8)], [PKR + u for u in range(8)], SL)
                cst(18)
                a(f'v_and_b32 v{XR+3}, 15, v0\nv_lshrrev_b32 v{XR+4}, 4, v0')
                a(f'v_mfma_f32_16x16x32_bf16 {vr(ZA,4)}, {vr(PKR,4)}, {vr(ONES,4)}, 0')
                a(f'v_mfma_f32_16x16x32_bf16 {vr(KVA,4)}, {vr(PVR,4)}, {vr(PKR,4)}, 0')
                a(f'v_mfma_f32_16x16x32_bf16 {vr(ZA,4)}, {vr(PKR+4,4)}, {vr(ONES,4)}, {vr(ZA,4)}')
                a(f'v_mfma_f32_16x16x32_bf16 {vr(KVA,4)}, {vr(PVR+4,4)}, {vr(PKR+4,4)}, {vr(KVA,4)}')
                a(f'v_lshlrev_b32 v{XR+2}, 8, v{XR+4}\nv_lshl_add_u32 v{XR+2}, v{XR+3}, 2, v{XR+2}')
                if opt.get('kv2', 0): a(f'v_lshlrev_b32 v{XR+2}, 2, v0')
                a(f'v_lshl_add_u32 v{XR+4}, v{XR+4}, 2, v{XR+3}\nv_lshlrev_b32 v{XR+4}, 2, v{XR+4}')
                a(f'v_mov_b32 v{XR+5}, {OOB}\nv_cmp_gt_u32 vcc, 4, v{XR+3}\nv_cndmask_b32 v{XR+4}, v{XR+5}, v{XR+4}, vcc')
                for k in range(1, 4): a(f'v_cmp_eq_u32 vcc, {k}, v{XR+3}\nv_cndmask_b32 v{ZA}, v{ZA}, v{ZA+k}, vcc')
            def atomics():
                a(f's_lshl_b32 s{sT3}, s{sW}, 10\ns_add_u32 s{sT3}, s{sT3}, s{sC}\ns_lshl_b32 s{sT4}, s{sW}, 6\ns_add_u32 s{sT4}, s{sT4}, s{sC}\ns_add_u32 s{sT4}, s{sT4}, {KV_Z}')
                for k in range(4):
                    a(f'buffer_store_dword v{KVA+k}, v{XR+2}, {srd(sWS)}, s{sT3} offen offset:{k*256} sc1' if opt.get('kv2', 0) else f'buffer_atomic_add_f32 v{KVA+k}, v{XR+2}, {srd(sWS)}, s{sT3} offen offset:{k*64}')
                htok['kv'] = a(f'buffer_store_dword v{ZA}, v{XR+4}, {srd(sWS)}, s{sT4} offen sc1' if opt.get('kv2', 0) else f'buffer_atomic_add_f32 v{ZA}, v{XR+4}, {srd(sWS)}, s{sT4} offen')
            htok['atomics'] = atomics
            if ovl:
                a.flush_inject()
                lines = a.record(rest)
                per = opt.get('ovl_n', 4)
                k = 0
                for st_ in p2:
                    tl = []
                    for _ in range(2):
                        part = lines[k:k + per]; k += per
                        tl.append((lambda part=part: a('\n'.join(part))) if part else None)
                    st_['tail'] = tl
                assert k >= len(lines)
                if opt.get('atp', 0) == 0: p2[(len(lines) // (2 * per)) + 1]['post'] = [atomics]
            else:
                rest()
                a.flush_inject()
                cst(19)
                if opt.get('x_noat', 0): htok['kv'] = None
                else: atomics()
        p2[0]['hook'] = kv_epilogue
        if opt.get('kv2', 0):
            kb = 4 * (opt.get('fa_bar', 15) - 12)
            okb = p2[kb]['pre']
            p2[kb]['pre'] = lambda: (a.wait_vm(htok['kv']), okb())
        for n, s in enumerate(p2):
            s['vm'] = (lambda n=n: hl[n])
            if n in (1, 8, 15): s['hook'] = (lambda n=n: cst({1: 20, 8: 21, 15: 22}[n]))
        steps += p2
        np2 = len(steps)

        qs = steps_q(16, HACC, HCS, HSETS, np2)
        x1tok = {}
        for s in qs:
            if s['stage'] is not None:
                extra = None
                if s['stage'] == opt.get('fx_bar', 17): extra = lambda: (a.wait_vm(x1tok['st']), cst(3))
                s['pre'] = stage_pre(s['stage'], [WK16], [PAT16], extra)
        qr0, qr1 = qs[0]['reads'], qs[1]['reads']
        qs[0]['reads'] = []; qs[1]['reads'] = []; qs[0]['pre'] = None
        qs[0]['at'] = np2; qs[1]['at'] = np2
        def exchange(acc, rcv, nb, between=None):
            a(f'v_xor_b32 v{rcv}, 8192, v{RDX}')
            for g in range(4):
                a(f'ds_write_b128 v{rcv}, {vr(acc+16+4*g,4)} offset:{g*1024}')
            if between: between()
            a.wait_lg0()
            self.barC(a, nb)
            return [a(f'ds_read_b128 {vr(rcv+4*g,4)}, v{RDX} offset:{g*1024}') for g in range(4)]
        def unsplit_last(st, acc, rcv, nb, stg, natural, asets, phase, own, oth, xt):
            n0 = len(st) - 4
            pats = [PATN[0]] if natural else PATP[:2]
            def pre(o=st[n0].get('extra')):
                if o: o()
                self.barC(a, f'B{stg}')
                for k, pt in enumerate(pats):
                    a(f'v_add_u32 v{WK[k]}, {SLOT[stg]}, v{pt}\nv_xor_b32 v{WK[2+k]}, 8192, v{WK[k]}')
            st[n0]['pre'] = pre
            for i in range(4):
                s = st[n0 + i]; sb = asets[(n0 + i + phase) % 3]
                s['reads'] = []
                for u in range(2):
                    for rd in range(2):
                        if natural: s['reads'].append(f'ds_read_b64_tr_b16 {vr(sb+4*u+2*rd,2)}, v{WK[2*u]} offset:{i*2048+rd*512}')
                        else: s['reads'].append(f'ds_read_b64_tr_b16 {vr(sb+4*u+2*rd,2)}, v{WK[2*u+rd]} offset:{i*2048}')
                s['mfmas'] = [f'v_mfma_f32_32x32x16_bf16 {vr(acc,16)}, {vr(sb,4)}, {vr(own(i),4)}, {vr(acc,16)}',
                              f'v_mfma_f32_32x32x16_bf16 {vr(acc,16)}, {vr(sb+4,4)}, {vr(oth(i),4)}, {vr(acc,16)}']
            wt = {}
            def wr(g):
                if g == 0: a(f'v_xor_b32 v{rcv}, 8192, v{RDX}')
                wt[g] = a(f'ds_write_b128 v{rcv}, {vr(acc+16+4*g,4)} offset:{g*1024}')
            st[n0]['tail'] = [None, lambda: (wr(0), wr(1))]
            st[n0 + 1]['tail'] = [lambda: wr(2), lambda: wr(3)]
            def sync():
                a.wait_lg(wt[3])
                self.barC(a, nb)
                xt['tk'] = [a(f'ds_read_b128 {vr(rcv+4*g,4)}, v{RDX} offset:{g*1024}') for g in range(4)]
            st[n0 + 3]['tail'] = [sync, None]
        def p2_epilogue():
            RCV, OUT, SS = (60, 76, 84) if ovl else (180, 196, 204)
            cst(23)
            def between():
                a(f's_lshl_b32 s{sT2}, s{sJ}, 1\ns_add_u32 s{sT2}, s{sT2}, s{sHI}\ns_lshl_b32 s{sT0}, s{sT2}, 12\ns_add_u32 s{sT0}, s{sT0}, s{sA}\ns_add_u32 s{sT0}, s{sT0}, {X1_OFF}')
                a(f's_lshl_b32 s{sT2}, s{sT2}, 9\ns_lshl_b32 s{sT3}, s{sR}, 13\ns_add_u32 s{sT2}, s{sT2}, s{sT3}\ns_lshl_b32 s{sT3}, s{sTH}, 8\ns_add_u32 s{sT2}, s{sT2}, s{sT3}\ns_add_u32 s{sT2}, s{sT2}, {XS_OFF}')
                a(f'v_add_u32 v{WK16}, {SLOT[16]}, v{PAT16}')
                a(f'v_and_b32 v{SS+8}, 31, v0\nv_lshrrev_b32 v{SS+9}, 5, v0\nv_lshlrev_b32 v{SS+9}, 2, v{SS+9}\nv_lshl_add_u32 v{SS+8}, v{SS+8}, 3, v{SS+9}')
            if opt.get('us2', 0):
                between(); tk = x2['tk']
            else: tk = exchange(P2ACC, RCV, 'RB1', between)
            for b in range(2):
                a.wait_lg(tk[2*b+1])
                for u in range(4*b, 4*b+4): a(f'v_pk_add_f32 {P(P2ACC+2*u)}, {P(P2ACC+2*u)}, {P(RCV+2*u)}')
                for u in range(4*b, 4*b+4): a(f'v_cvt_pk_bf16_f32 v{OUT+u}, v{P2ACC+2*u}, v{P2ACC+2*u+1}')
                a(f'buffer_store_dwordx4 {vr(OUT+4*b,4)}, v{CELLT}, {srd(sWS)}, s{sT0} offen offset:{b*2048} sc1')
            a(f'v_pk_add_f32 {P(SS)}, {P(P2ACC)}, {P(P2ACC+2)}\nv_pk_mul_f32 {P(SS+2)}, {P(P2ACC)}, {P(P2ACC)}')
            a(f'v_pk_add_f32 {P(SS+4)}, {P(P2ACC+4)}, {P(P2ACC+6)}\nv_pk_mul_f32 {P(SS+6)}, {P(P2ACC+2)}, {P(P2ACC+2)}')
            for u in range(2, 8):
                k = 4 * (u & 1)
                a(f'v_pk_fma_f32 {P(SS+2+k)}, {P(P2ACC+2*u)}, {P(P2ACC+2*u)}, {P(SS+2+k)}')
                if u >= 4: a(f'v_pk_add_f32 {P(SS+k)}, {P(SS+k)}, {P(P2ACC+2*u)}')
            a(f'v_pk_add_f32 {P(SS)}, {P(SS)}, {P(SS+4)}\nv_pk_add_f32 {P(SS+2)}, {P(SS+2)}, {P(SS+6)}')
            a(f'v_add_f32 v{SS}, v{SS}, v{SS+1}\nv_add_f32 v{SS+2}, v{SS+2}, v{SS+3}')
            a(f'v_permlane32_swap_b32 v{SS}, v{SS+2}\nv_add_f32 v{SS}, v{SS}, v{SS+2}')
            x1tok['st'] = a(f'buffer_store_dword v{SS}, v{SS+8}, {srd(sWS)}, s{sT2} offen sc1')
            cst(2)
            for u in range(8): a(f'v_pk_add_f32 {P(RES+2*u)}, {P(RES+2*u)}, {P(P2ACC+2*u)}')
            if ovl and opt.get('atp', 0) == 1: htok['atomics']()
            if opt.get('fx_bar', 17) == 16:
                a.wait_vm(x1tok['st']); cst(3)
            self.barC(a, 'B16')
            for t in qr0: qs[0]['tok'] = a(t)
            for t in qr1: qs[1]['tok'] = a(t)
        qs[0]['hook'] = p2_epilogue
        if opt.get('us2', 0):
            unsplit_last(p2, P2ACC, 180, 'RB1', 15, True, ASETS, 0, lambda i: HF + 4 * (12 + i), lambda i: HX + 4 * i, x2)
            for n in range(12, 16): p2[n]['vm'] = (lambda n=n: hl[n + 4])
            for n in range(4): p2[2 + n]['post'] = [lambda n=n: hload(16 + n)]
        steps += qs
        nq = len(steps)

        BST = 128; A3 = [60, 68, 76]; ACA, ACB = 84, 100
        GST = 40; GT = 44; CSG = 112
        X1B, CSB, CSB2, HFB = 2, 3, 4, 5
        HP = [6, 7]
        def q_epilogue():
            TMP = 100; OUT = 116; QP = 80
            a.wait_vm(htok['kv'])
            self.barC(a, 'QE')
            for u in range(8):
                a(f'v_pk_fma_f32 {P(HACC+2*u)}, {P(HCS+2*(u&1))}, {P(QST+4*(u>>1))}, {P(HACC+2*u)} op_sel_hi:[1,0,1]')
            for u in range(8):
                a(f'v_pk_mul_f32 {P(TMP+2*u)}, {P(HACC+2*u)}, {P(QST+4*(u>>1)+2)} op_sel_hi:[1,0]')
            for u in range(8):
                a(f'v_pk_fma_f32 {P(HACC+2*u)}, {P(HACC+2*u)}, {P(QST+4*(u>>1))}, s[{sEPS}:{sEPS+1}] op_sel:[0,1,0] op_sel_hi:[1,1,1]')
            self.phi_tail(a, [HACC + 2*u for u in range(8)], [OUT + u for u in range(8)], TMP)
            a(f's_lshl_b32 s{sT0}, s{sW}, 11\ns_add_u32 s{sT0}, s{sT0}, {PQ}\nv_lshlrev_b32 v{QP}, 3, v0\nv_add_u32 v{QP}, s{sT0}, v{QP}')
            for tt in range(4): a(f'ds_write_b64 v{QP}, {vr(OUT+2*tt,2)} offset:{tt*512}')
            a(f's_lshl_b32 s{sT0}, s{sTH}, 10\nv_add_u32 v{X1B}, s{sT0}, v{LL16}')
            a(f's_lshl_b32 s{sT2}, s{sHI}, 15\nv_add_u32 v{HFB}, s{sT2}, v{X1B}')
            a(f's_and_b32 s{sT3}, s{sJ}, 1\ns_lshl_b32 s{sT4}, s{sT3}, 5')
            a(f's_lshl_b32 s{sT0}, s{sHI}, 5\ns_add_u32 s{sT0}, s{sT0}, s{sT4}\ns_lshl_b32 s{sT0}, s{sT0}, 2\ns_add_u32 s{sT0}, s{sT0}, {CS3L}')
            a(f'v_lshrrev_b32 v{QP+1}, 5, v0\nv_lshlrev_b32 v{QP+1}, 4, v{QP+1}\nv_add_u32 v{CSB}, s{sT0}, v{QP+1}')
            a(f's_cmp_eq_u32 s{sT3}, 0\ns_cselect_b32 s{sT5}, 192, 0')
            a(f's_lshl_b32 s{sT0}, s{sHI}, 4\ns_add_u32 s{sT0}, s{sT0}, s{sT5}\ns_lshl_b32 s{sT0}, s{sT0}, 2\ns_add_u32 s{sT0}, s{sT0}, {CS3L}')
            a(f'v_add_u32 v{CSB2}, s{sT0}, v{QP+1}')
            a(f's_lshl_b32 s{sT0}, s{sHI}, 5\nv_xor_b32 v{HP[0]}, s{sT0}, v{PAT3[0]}\nv_xor_b32 v{HP[1]}, s{sT0}, v{PAT3[1]}')
            a(f'v_and_b32 v{STA}, 31, v0\nv_lshlrev_b32 v{STA}, 4, v{STA}\ns_lshl_b32 s{sT0}, s{sTH}, 9\ns_add_u32 s{sT0}, s{sT0}, {X1P}\nv_add_u32 v{STA}, s{sT0}, v{STA}')
            a(f's_mul_i32 s{sT0}, s{sJ}, 14\ns_lshr_b32 s{sT4}, s{sT4}, 4\ns_lshl_b32 s{sT2}, s{sHI}, 1\ns_add_u32 s{sB}, s{sT0}, s{sT4}\ns_add_u32 s{sB}, s{sB}, s{sT2}')
            a(f's_lshl_b32 s{sB}, s{sB}, 11\ns_add_u32 s{sB}, s{sB}, s{sD}')
            a(f's_lshr_b32 s{sT5}, s{sT5}, 4\ns_add_u32 s{sC}, s{sT0}, s{sT5}\ns_add_u32 s{sC}, s{sC}, s{sHI}\ns_lshl_b32 s{sC}, s{sC}, 11\ns_add_u32 s{sC}, s{sC}, s{sD}')
            a.wait_lg0()
            self.barC(a, 'XA')

        HB = [44, 116, 52]
        def steps_p3(first, nstage, acc, pats, base, kind, phase):
            st = []
            for n in range(4 * nstage):
                stg = first + n // 4
                sb = A3[(n + phase) % 3]
                reads = []; mf = []
                for u in range(2):
                    i = 2 * n + u; s_ = i % 8
                    reads += [f'ds_read_b64_tr_b16 {vr(sb+4*u+2*rd,2)}, v{WK[rd]} offset:{s_*2048}' for rd in range(2)]
                    if kind == 'p0':
                        reads.append(f'ds_read_b128 {vr(BST+4*i,4)}, v{X1B} offset:{i*2048}'); b = BST + 4 * i
                    elif kind == 'hf' and opt.get('hfv', 1):
                        b = BST + 4 * i
                    elif kind == 'hf':
                        b = HB[(n % 3)] + 4 * u
                        reads.append(f'ds_read_b128 {vr(b,4)}, v{HFB} offset:{i*2048}')
                    else:
                        b = BST + 4 * i
                    mf.append(f'v_mfma_f32_32x32x16_bf16 {vr(acc,16)}, {vr(sb+4*u,4)}, {vr(b,4)}, {vr(acc,16) if i else 0}')
                s = dict(reads=reads, mfmas=mf, at=base + n - 2)
                if n % 4 == 0: s['pre'] = stage_pre(stg, WK[:2], pats)
                st.append(s)
            return st
        gtok = {}
        def cs_reads(csreg, csoff, ng):
            def one(g):
                gtok['cs'] = a(f'ds_read_b128 {vr(CSG+4*g,4)}, v{csreg} offset:{csoff+g*32}')
            return [lambda g=g: one(g) for g in range(ng)]
        pend_st = []
        def g_epi(acc, ng, sbase, after_first=None, cs_=None, out=None, key=None, adv=False):
            a.wait_lg(gtok['cs'])
            o = (lambda u: acc + 8*(u >> 2) + (u & 3)) if out is None else (lambda u: out + u)
            pairs = [(acc + 2*u, CSG + 2*u, GST, o(u)) for u in range(2 * ng)]
            self.gelu(a, pairs, GT, after_first)
            if cs_: cst(cs_)
            def st(b):
                gtok[key] = a(f'buffer_store_dwordx4 {vr(o(4*b),4)}, v{CELLT}, {srd(sWS)}, s{sbase} offen offset:{b*2048} sc1')
                if adv and b == ng // 2 - 1: a(f's_add_u32 s{sbase}, s{sbase}, 8192')
            for b in range(ng // 2):
                if opt.get('dst', 1): pend_st.append(lambda b=b: st(b))
                else: st(b)
        def add_stores(step0, step1):
            def pop():
                if pend_st: pend_st.pop(0)()
            step0['tail'] = [pop, pop]; step1['tail'] = [pop, None]
        def hf_send():
            t = GT
            a(f's_lshl_b32 s{sT0}, s{sW}, 11\ns_add_u32 s{sT0}, s{sT0}, {SC}\nv_add_u32 v{t}, s{sT0}, v{LL16}')
            a(f'ds_write_b128 v{t}, {vr(ACB+8,4)}')
            gtok['hfw'] = a(f'ds_write_b128 v{t}, {vr(ACB+12,4)} offset:1024')
            a(f'v_xor_b32 v{HFB}, 4096, v{t}')

        p0 = steps_p3(20, 4, ACA, PAT3, nq, 'p0', 0)
        p0[0]['at'] = nq; p0[1]['at'] = nq; p0[0]['hook'] = q_epilogue
        p0[15]['post'] = [lambda: a(f'ds_read_b128 {vr(GST,4)}, v{STA}')] + cs_reads(CSB, 0, 4)
        steps += p0; n0 = len(steps)
        hf = steps_p3(24, 2, ACB, HP, n0, 'hf', 16)
        for k in range(2):
            hf[k]['late'] = [t for t in hf[k]['reads'] if 'b128' in t]
            hf[k]['reads'] = [t for t in hf[k]['reads'] if 'b128' not in t]
        def hf_hook():
            g_epi(ACA, 4, sB, key='g0', adv=True)
            for k in range(2):
                for t in hf[k]['late']: hf[k]['tok'] = a(t)
        mark = {}
        if opt.get('hfv', 1):
            o24 = hf[0]['pre']
            hf[0]['pre'] = lambda: (a.wait_lg(p0[15]['tok']), o24())
            def hf_hook(f=hf_hook):
                f(); mark['i'] = len(a.ins)
        def hf_dup():
            body = a.ins[mark['i']:]
            del a.ins[mark['i']:]
            def sub(t):
                m = re.match(r'(v_mfma_f32_32x32x16_bf16 v\[100:115\], v\[\d+:\d+\], )v\[(\d+):(\d+)\](.*)', t)
                return f'{m.group(1)}v[{int(m.group(2))+64}:{int(m.group(3))+64}]{m.group(4)}' if m else t
            a.ins += [Ins(f's_cmp_lg_u32 s{sHI}, 0'), Ins('s_cbranch_scc1 L_hf1')] + body + [Ins('s_branch L_hf2'), Ins('L_hf1:')]
            a.ins += [Ins(sub(i.text)) for i in body] + [Ins('L_hf2:')]
        hf[0]['hook'] = hf_hook
        add_stores(hf[0], hf[1])
        steps += hf; n1 = len(steps)
        p1 = steps_p3(26, 4, ACA, PAT3, n1, 'p', 24)
        p1[0]['hook'] = (lambda: (hf_dup(), hf_send())) if opt.get('hfv', 1) else hf_send
        old = p1[4]['pre']
        p1[4]['pre'] = lambda: (a.wait_lg(gtok['hfw']), old())
        def hf_recv():
            a(f'ds_read_b128 {vr(ACB+8,4)}, v{HFB}')
            gtok['hfr'] = a(f'ds_read_b128 {vr(ACB+12,4)}, v{HFB} offset:1024')
        def hf_add(k):
            a.wait_lg(gtok['hfr'])
            for u in range(4*k, 4*k+4): a(f'v_add_f32_e64 v{ACB+u}, v{ACB+u}, v{ACB+8+u}')
        p1[8]['post'] = [hf_recv]
        p1[11]['post'] = [lambda: hf_add(0)]
        p1[12]['post'] = [lambda: hf_add(1)]
        p1[15]['post'] = cs_reads(CSB, 256, 4)
        steps += p1; n2 = len(steps)
        p2_ = steps_p3(30, 4, ACA, PAT3, n2, 'p', 40)
        def p1_epilogue():
            cst(8)
            g_epi(ACA, 4, sB, lambda: [f() for f in cs_reads(CSB2, 0, 2)], 9, out=120, key='g1', adv=True)
            cst(10)
            g_epi(ACB, 2, sC, None, 11, key='g1')
            cst(12)
        p2_[0]['hook'] = p1_epilogue
        add_stores(p2_[0], p2_[1])
        p2_[2 if opt.get('sc10', 1) else 15]['post'] = cs_reads(CSB, 512, 4)
        p2_[1]['hook'] = lambda: cst(13)
        p2_[2]['hook'] = lambda: cst(14)
        p2_[3]['hook'] = lambda: cst(15)
        steps += p2_; n3 = len(steps)

        P4ACC = 84; FR = 128
        p4 = []
        fl = {}
        def fload(n):
            kind, sg = STAGES[min(34 + n // 4, 51)]; i = n % 4
            if n == 72:
                d = 8192 if kind == 'wo' else 32768
                a(f's_lshl_b32 s{sT0}, s{sHI}, 1\ns_sub_u32 s{sT0}, 1, s{sT0}\ns_mul_i32 s{sT0}, s{sT0}, {d}\ns_add_u32 s{sI0}, s{sI0}, s{sT0}\ns_sub_u32 s{sI0}, s{sI0}, 4096')
            elif i % 2 == 0:
                if i: a(f's_add_u32 s{sI0}, s{sI0}, 4096')
                elif kind == 'wo': a(f's_add_u32 s{sI0}, s{sT5}, s{sKC+sg}')
                elif kind == 'gh': a(f's_add_u32 s{sI0}, s{sRG}, {sg}\ns_and_b32 s{sI0}, s{sI0}, 1\ns_mul_i32 s{sI0}, s{sI0}, {896*128}\ns_add_u32 s{sI0}, s{sI0}, s{sT4}')
                else:
                    a(f's_add_u32 s{sI0}, s{sD}, s{sKG+sg}')
                    if kind != 'g0': a(f's_add_u32 s{sI0}, s{sI0}, {g_rows(kind, 0)[0]*128}')
            if opt.get('x_skip', 0) and kind != 'wo' and n % 4 >= 4 - opt['x_skip'] and n >= 4:
                fl[n] = fl[n - 1]; return
            fl[n] = a(f'buffer_load_dwordx4 {vr(FR+4*(n%32),4)}, v{CELLT}, {srd(sWS)}, s{sI0} offen offset:{(i&1)*2048} sc1')
        firsts = {}
        for first in range(34, NST):
            kind, sg = STAGES[first]
            if sg: continue
            cnt = 2 if kind == 'gh' else 4; nat = kind == 'wo'
            k0 = 4 * (first - 34); firsts[k0] = {'g0': FG0, 'g1': FG1, 'gh': FG1, 'wo': FO, 'g2': FG2}[kind]
            p4 += steps_ks(first, cnt, PATN if nat else PATP, nat, P4ACC, lambda n, k0=k0: FR + 4 * ((n + k0) % 32), A3, n3 + k0,
                           setphase=56 + k0, init=(first == 34), c_init=RES if first == 34 else None)
        NG = opt.get('ng', 10); NG0 = opt.get('ng0', 8)
        def p4_bases():
            a(f's_lshl_b32 s{sT0}, s{sHI}, 13\ns_add_u32 s{sT5}, s{sT0}, s{sA}\ns_add_u32 s{sT5}, s{sT5}, {O_OFF}')
            a(f's_mul_i32 s{sT4}, s{sHI}, {448*128}\ns_add_u32 s{sT4}, s{sT4}, s{sD}\ns_add_u32 s{sT4}, s{sT4}, {192*128}\ns_lshl_b32 s{sT0}, s{sHI}, 15\ns_add_u32 s{sD}, s{sD}, s{sT0}')
            for k in range(4): a(f's_add_u32 s{sT0}, s{sRG}, {k}\ns_and_b32 s{sT0}, s{sT0}, 3\ns_mul_i32 s{sKG+k}, s{sT0}, {448*128}\ns_lshl_b32 s{sKC+k}, s{sT0}, 14')
        EG = opt.get('eg', 0)
        if EG:
            k1 = opt.get('eg_step', 3)
            p2_[k1 - 1]['post'] = [p4_bases]
            for n in range(EG):
                st_ = p2_[min(k1 + n // opt.get('eg_rate', 2), 15)]
                assert n < 2 * min(k1 + n // opt.get('eg_rate', 2), 15)
                st_['post'] = st_.get('post', []) + [lambda n=n: fload(n)]
            NG0 = max(NG0, EG)
        def p3_last_epilogue():
            if not EG: p4_bases()
            a.inject([lambda n=n: fload(n) for n in range(EG, NG0)], opt.get('fl_every', 12))
            g_epi(ACA, 4, sB, out=116, key='g2')
            a.flush_inject()
            cst(6)
        p4[0]['hook'] = p3_last_epilogue
        add_stores(p4[0], p4[1])
        nxt = NG0
        self.need = {firsts[k]: 34 for k in firsts if 0 < k < NG0}
        for n, s in enumerate(p4):
            s['vm'] = (lambda n=n: fl[n + 4 if (n >= 68 and opt.get('us4', 1)) else n])
            post = []
            while nxt < (76 if opt.get('us4', 1) else 72) and nxt < n + 1 + NG + (4 if nxt >= 72 else 0) and len(post) < 2:
                if nxt in firsts: self.need.setdefault(firsts[nxt], 34 + (n + 2) // 4)
                post.append(lambda m=nxt: fload(m)); nxt += 1
            s['post'] = post
        def add_wait(step, key):
            o = step['pre']
            step['pre'] = lambda: (a.wait_vm(gtok[key]), o())
        for b_, nx, pv in ((30, p2_[0], p1[15]), (34, p4[0], p2_[15])):
            if str(b_) in str(opt.get('erel', '24.30.34')).split('.'):
                nx['pre'] = (lambda o=nx['pre'], pv=pv: (a.wait_lg(pv['tok']), o()))
        add_wait(p1[4 * (opt.get('fg0_bar', 27) - 26)], 'g0'); add_wait(p2_[12] if opt.get('fg1_bar', 34) == 33 else p4[4 * (opt.get('fg1_bar', 34) - 34)], 'g1'); add_wait(p4[4 * (opt.get('fg2_bar', 37) - 34)], 'g2')
        x4 = {}
        if opt.get('us4', 1):
            kind51 = STAGES[51][0]
            unsplit_last(p4, P4ACC, 40, 'RB2', 51, kind51 == 'wo', A3, 56, lambda i: FR + 4 * ((68 + i) % 32), lambda i: FR + 4 * ((72 + i) % 32), x4)
        self.x4 = x4
        steps += p4

        if opt.get('cprio', 2): a(f's_setprio {opt.get("cprio", 2)}')
        self.run_steps(a, steps)
        RCV = 128; OUT = 144; VO = 160
        def between():
            a(f's_lshl_b32 s{sT0}, s{sTH}, 5\nv_and_b32 v{VO}, 31, v0\nv_add_u32 v{VO}, s{sT0}, v{VO}\nv_lshlrev_b32 v{VO}, 10, v{VO}')
            a(f'v_lshrrev_b32 v{VO+1}, 5, v0\nv_lshl_add_u32 v{VO}, v{VO+1}, 4, v{VO}')
            a(f's_lshl_b32 s{sT0}, s{sJ}, 1\ns_add_u32 s{sT0}, s{sT0}, s{sHI}\ns_lshl_b32 s{sT0}, s{sT0}, 6\ns_add_u32 s{sT0}, s{sT0}, s{sA}')
        if opt.get('us4', 1):
            RCV = 40; between(); tk = self.x4['tk']
        else: tk = exchange(P4ACC, RCV, 'RB2', between)
        for b in range(2):
            a.wait_lg(tk[2*b+1])
            for u in range(4*b, 4*b+4): a(f'v_pk_add_f32 {P(P4ACC+2*u)}, {P(P4ACC+2*u)}, {P(RCV+2*u)}')
            for u in range(4*b, 4*b+4): a(f'v_cvt_pk_bf16_f32 v{OUT+u}, v{P4ACC+2*u}, v{P4ACC+2*u+1}')
            a(f'v_permlane32_swap_b32 v{OUT+4*b}, v{OUT+4*b+2}\nv_permlane32_swap_b32 v{OUT+4*b+1}, v{OUT+4*b+3}')
            a(f'buffer_store_dwordx4 {vr(OUT+4*b,4)}, v{VO}, {srd(sOUT)}, s{sT0} offen offset:{b*32} {opt.get("outflag", "")}')
        if opt.get('padto'):
            a(f'L_pad:\ns_memrealtime s[{sTSP}:{sTSP+1}]\ns_waitcnt lgkmcnt(0)\ns_sub_u32 s{sT0}, s{sTSP}, s26\ns_cmp_lt_u32 s{sT0}, {opt["padto"]}\ns_cbranch_scc1 L_pad')
        if opt.get('prof'):
            a(f's_memrealtime s[{sTSP}:{sTSP+1}]\ns_memtime s[98:99]\ns_waitcnt lgkmcnt(0)\ns_sub_u32 s98, s98, s90')
            a(f's_lshl_b32 s{sT0}, s2, 3\ns_add_u32 s{sT0}, s{sT0}, s{sW}\ns_lshl_b32 s{sT0}, s{sT0}, 8\ns_add_u32 s{sT0}, s{sT0}, {TS_OFF}')
            a(f'v_mov_b32 v2, s26\nv_mov_b32 v3, s{sTSP}\nv_mov_b32 v4, s98\nv_mov_b32 v5, 0\nv_mov_b32 v6, 0\ns_mov_b64 exec, 1')
            a(f'buffer_store_dwordx4 v[2:5], v6, {srd(sWS)}, s{sT0} offen')
            for k in range(8 if opt.get('prof') != 3 else 0): a(f'v_mov_b32 v7, s{4+2*k}\nbuffer_store_dword v7, v6, {srd(sWS)}, s{sT0} offen offset:{16+4*k}')
        a('s_endpgm')

    def helper(self, a):
        opt = self.opt
        prof = opt.get('prof') if opt.get('prof') != 3 else None
        E = lambda name, d: opt.get(name, d)
        BARS = [f'B{i}' for i in range(16)] + ['RB1'] + [f'B{i}' for i in range(16, 20)] + ['QE', 'XA'] + [f'B{i}' for i in range(20, NST)]
        ODL = f'B{self.need[FO]}'
        IDX = {n: i for i, n in enumerate(BARS)}
        T = [40 + i for i in range(16)]
        V1K, VQ, VW3, VHF = 4, 8, 12, 16
        row, pos, sw = T[0], T[1], T[2]
        def mk(dst, RS, sbase):
            a(f'v_mul_u32_u24 v{T[5]}, {RS}, v{row}\nv_add_u32 v{T[5]}, s{sbase}, v{T[5]}')
            for i in range(4):
                a(f'v_add_u32 v{dst+i}, v{T[5]}, v{T[3+(i&1)]}')
                if i: a(f'v_add_u32 v{dst+i}, {i*(8*RS-1024)}, v{dst+i}')
        stok = {}
        two = E('two', 0)
        grp = [[0, 1] if two else [0, 1, 2, 3]]
        def issue(st, pace=True):
            kind, sg = STAGES[st]
            pc = E('pace', 44) // (2 if two else 1)
            if pace and len(a.vm) > pc: a.wait_vm(a.vm[-pc - 1])
            s, v = src_of(st)
            for g in grp[0]:
                a(f's_mov_b32 m0, {SLOT[st] + g*4096}')
                soff(st, g, g == grp[0][0])
                for i in range(4):
                    stok[st] = a(f'buffer_load_dwordx4 v{v+i}, {srd(s)}, s{sT2} offen offset:{i*1024} lds')
        def src_of(st):
            kind, sg = STAGES[st]
            return {'w1': (sW1, V1K), 'w2': (sW2, V1K), 'wo': (sWO, V1K), 'wq': (sQKV, VQ), 'kv': (sQKV, VQ), 'p0': (sW3, VW3),
                    'p1': (sW3, VW3), 'p2': (sW3, VW3), 'hf': (sW3, VHF + 4 * sg)}.get(kind, (sW4, V1K))
        def soff(st, g, first=None):
            kind, sg = STAGES[st]
            rot = E('rot', 1)
            RS = 3072 if kind in ('wq', 'kv') else (3584 if kind in ('p0', 'p1', 'p2', 'hf') else 1024)
            if first is None: first = g == 0
            if kind == 'gh':
                if first: a(f's_add_u32 s{sI0}, s{sRG}, {sg}\ns_and_b32 s{sI0}, s{sI0}, 1\ns_mul_i32 s{sI0}, s{sI0}, {896*1024}')
                a(f's_add_u32 s{sT2}, s{sI0}, {(g_rows(kind, 0)[g >> 1] + 32*(g & 1))*1024}')
            elif kind[0] == 'g': a(f's_add_u32 s{sT2}, s{sKG+sg}, {(g_rows(kind, 0)[g >> 1] + 32*(g & 1))*1024}')
            elif kind == 'wo':
                if first: a(f's_add_u32 s{sI0}, s{sRG}, {sg}\ns_and_b32 s{sI0}, s{sI0}, 3\ns_lshl_b32 s{sI0}, s{sI0}, 17')
                a(f's_add_u32 s{sT2}, s{sI0}, {g*32*RS}')
            elif kind == 'w1' or (rot and kind == 'w2'): a(f's_add_u32 s{sT2}, s{sK1+sg}, {g*32*RS}')
            elif kind == 'w2': a(f's_mov_b32 s{sT2}, {sg*131072 + g*32*RS}')
            elif kind == 'wq': a(f's_add_u32 s{sT2}, s{sK3+sg}, {g*32*RS}')
            elif kind == 'kv': a(f's_add_u32 s{sT2}, s{sK3+(sg>>1)}, {((sg&1)*64 + (g&1)*32)*RS + 1024*(1 + (g>>1))}')
            elif kind == 'hf': a(f's_mov_b32 s{sT2}, {g*32*RS}')
            else: a(f's_add_u32 s{sT2}, s{sK5+sg}, {g*32*RS + dict(p0=0, p1=128, p2=256)[kind]}')
        VAR = 61
        def arrive(idx):
            if prof == 2:
                a(f's_memtime s[0:1]\ns_waitcnt lgkmcnt(0)')
                a.lg = []
                if isinstance(idx, int): a(f'v_writelane_b32 v{VAR}, s0, {idx + 1}')
                else: a(f's_add_u32 s1, s{idx}, 1\ns_mov_b32 m0, s1\nv_writelane_b32 v{VAR}, s0, m0')
        def dump_arrive(slot):
            if prof:
                a(f's_lshl_b32 s{sT0}, s2, 2\ns_add_u32 s{sT0}, s{sT0}, s{sW}\ns_lshl_b32 s{sT0}, s{sT0}, 8\ns_add_u32 s{sT0}, s{sT0}, {TS_OFF + 0x80000}')
                a(f'v_lshlrev_b32 v2, 2, v0\nbuffer_store_dword v{VAR}, v2, {srd(sWS)}, s{sT0} offen')
        if prof: a(f'v_mov_b32 v{VAR}, 0')
        a(f's_cmp_eq_u32 s{sW}, 1\ns_cbranch_scc1 L_back\ns_cmp_eq_u32 s{sW}, 2\ns_cbranch_scc1 L_back')
        if not two: a(f's_cmp_eq_u32 s{sW}, 0\ns_cbranch_scc1 L_sync')
        a(f'v_lshrrev_b32 v{row}, 3, v0\nv_and_b32 v{pos}, 7, v0\nv_lshrrev_b32 v{sw}, 4, v0\nv_and_b32 v{sw}, 1, v{sw}\nv_lshlrev_b32 v{sw}, 2, v{sw}')
        a(f'v_xor_b32 v{pos}, v{pos}, v{sw}')
        a(f'v_lshlrev_b32 v{T[3]}, 4, v{pos}\nv_xor_b32 v{T[4]}, 32, v{T[3]}')
        a(f's_lshl_b32 s{sT0}, s{sJ}, 7')
        mk(V1K, 1024, sT0)
        a(f's_mov_b32 s{sW1+2}, {512*1024}\ns_mov_b32 s{sW1+3}, 0x20000')
        for sg in range(4):
            a(f's_add_u32 s{sT3}, s{sROT}, {sg}\ns_and_b32 s{sT3}, s{sT3}, 3\ns_lshl_b32 s{sK1+sg}, s{sT3}, 17\ns_mul_i32 s{sK3+sg}, s{sT3}, {128*3072}')
        a('s_waitcnt lgkmcnt(0)')
        a(f's_mov_b32 s{sW1}, s12\ns_and_b32 s{sW1+1}, s13, 0xffff')
        if two: a(f's_cmp_eq_u32 s{sW}, 0\ns_cbranch_scc1 L_sync0')
        def first_issue():
            issue(0); issue(1)
            if E('st', 0): issue(2, False)
        first_issue()
        a('s_branch L_loader')
        vmL = list(a.vm); stokL = dict(stok); a.vm = []
        if two:
            a('L_sync0:')
            grp[0] = [2, 3]; first_issue()
            a('s_branch L_sync')
        vmS = list(a.vm); stokS = dict(stok); a.vm = []
        VX1 = [24, 25]; x1tok = {}
        def loader_setup():
            self.srds(a, skipx=True, skip1=True)
            mk(VQ, 3072, sT0)
            a(f's_mul_i32 s{sT0}, s{sJ}, 448\ns_and_b32 s{sT4}, s{sJ}, 1\ns_lshl_b32 s{sT2}, s{sT4}, 6\ns_add_u32 s{sT2}, s{sT2}, s{sT0}')
            mk(VW3, 3584, sT2)
            a(f's_cmp_eq_u32 s{sT4}, 0\ns_cselect_b32 s{sT2}, 384, 0\ns_add_u32 s{sT2}, s{sT2}, s{sT0}')
            a(f'v_and_b32 v{T[3]}, 63, v{T[3]}\nv_and_b32 v{T[4]}, 63, v{T[4]}\nv_lshrrev_b32 v{T[6]}, 2, v{pos}')
            mk(VHF, 3584, sT2)
            for sg in range(4):
                if E('rot', 1): a(f's_add_u32 s{sT3}, s{sROT}, {sg}\ns_and_b32 s{sT3}, s{sT3}, 3')
                else: a(f's_mov_b32 s{sT3}, {sg}')
                a(f's_mul_i32 s{sK5+sg}, s{sT3}, {128*3584}\ns_lshl_b32 s{sKX+sg}, s{sT3}, 14')
            for k in range(4): a(f's_add_u32 s{sT3}, s{sRG}, {k}\ns_and_b32 s{sT3}, s{sT3}, 3\ns_mul_i32 s{sKG+k}, s{sT3}, {448*1024}')
            for sg in (1, 0):
                a(f's_sub_u32 s{sT3}, s{sK5+sg+2}, s{sK5+sg}\nv_mul_lo_u32 v{T[5]}, v{T[6]}, s{sT3}\nv_add_u32 v{T[5]}, s{sK5+sg}, v{T[5]}')
                for i in range(4): a(f'v_add_u32 v{VHF+4*sg+i}, v{VHF+i}, v{T[5]}')
            a(f'v_lshrrev_b32 v{T[0]}, 5, v0\nv_and_b32 v{T[1]}, 31, v0\nv_lshlrev_b32 v{T[0]}, 10, v{T[0]}\nv_lshl_add_u32 v{T[0]}, v{T[1]}, 4, v{T[0]}')
            a(f's_lshl_b32 s{sT0}, s{sR}, 16\ns_add_u32 s{sT0}, s{sT0}, {X1_OFF}')
            a(f'v_add_u32 v{VX1[0]}, s{sT0}, v{T[0]}\nv_subrev_u32 v{VX1[1]}, 512, v{VX1[0]}')
        def x1_chunk(sg):
            for g in grp[0]:
                a(f's_mov_b32 m0, {sg*16384 + g*4096}\ns_add_u32 s{sT2}, s{sKX+sg}, {g*4096}')
                for u in range(4):
                    x1tok[sg] = a(f'buffer_load_dwordx4 v{VX1[u&1]}, {srd(sWS)}, s{sT2} offen offset:{u*1024} sc1 lds')
        def load_before(n):
            b = int(n[1:]) if n[0] == 'B' else None
            if b is not None:
                a.wait_vm(stok[b])
                if b in (20, 21, 22, 23): a.wait_vm(x1tok[b - 20])
        def load_after(n):
            b = int(n[1:]) if n[0] == 'B' else None
            if n == 'XA':
                for c in range(4): x1_chunk(c)
            if E('st', 0):
                if b == 0: issue(3, False)
                if b == 1: issue(4)
            else:
                if b == 0: issue(2)
                if b == (0 if E('st3', 1) else 1): issue(3)
                if b == 1: issue(4)
            if b in (2, 3): stats_after(b)
            for st in ISSUE.get(b if b is not None else n, []): issue(st)
            if b in (0, 1): stats_after(b)
        a('L_back:')
        sSW = sHI
        a(f'v_lshrrev_b32 v2, 4, v0\nv_and_b32 v3, 15, v0\nv_xor_b32 v3, v3, v2\nv_lshlrev_b32 v3, 4, v3')
        a(f's_lshl_b32 s{sT0}, s{sR}, 1\ns_add_u32 s{sT0}, s{sT0}, s{sSW}\ns_lshl_b32 s{sT0}, s{sT0}, 15')
        a(f'v_lshl_add_u32 v2, v2, 10, s{sT0}\nv_add_u32 v2, v2, v3')
        for u in range(1, 4): a(f'v_xor_b32 v{2+u}, {u<<6}, v2\nv_add_u32 v{2+u}, {u*3072}, v{2+u}')
        a(f's_lshl_b32 s{sI0}, s{sSW}, 13\ns_mov_b32 s{sB}, s{sROT}')
        a('s_waitcnt lgkmcnt(0)')
        a(f's_mov_b32 s{sX}, s4\ns_and_b32 s{sX+1}, s5, 0xffff')
        xtok = {}
        def x_chunk(sg):
            for half in range(2):
                a(f's_add_u32 m0, s{sI0}, {sg*16384 + half*4096}\ns_lshl_b32 s{sT2}, s{sB}, 8')
                if half: a(f's_add_u32 s{sT2}, s{sT2}, 16384')
                for u in range(4):
                    xtok[sg] = a(f'buffer_load_dwordx4 v{2+u}, {srd(sX)}, s{sT2} offen offset:{u*1024} lds')
            if sg < 3: a(f's_add_u32 s{sB}, s{sB}, 1\ns_and_b32 s{sB}, s{sB}, 3')
        x_chunk(0)
        if E('xdel', 1): self.srds(a, skipx=True)
        x_chunk(1)
        if not E('xdel', 1): self.srds(a, skipx=True)
        if E('st', 0): x_chunk(2)

        F = 64; SSUM, SGR, HONE = 128, 136, 144
        q, i16 = T[8], T[9]
        SW1, SW2 = 148, 149
        def stats_setup():
            a(f'v_lshrrev_b32 v{q}, 4, v0\nv_and_b32 v{i16}, 15, v0')
            for m in range(4):
                a(f'v_or_b32 v{T[0]}, {4*m}, v{q}\nv_xor_b32 v{T[0]}, v{T[0]}, v{i16}\nv_lshlrev_b32 v{T[0]}, 4, v{T[0]}')
                a(f'v_lshl_add_u32 v{T[0]}, v{i16}, 8, v{T[0]}\nv_add_u32 v{T[10+m]}, s{sI0}, v{T[0]}')
            for i in range(4): a(f'v_mov_b32 v{HONE+i}, s{sONE}')
            a(f'v_and_b32 v{T[0]}, 3, v0\nv_lshrrev_b32 v{T[2]}, 2, v{i16}')
            a(f'v_cmp_eq_u32 s[14:15], 1, v{T[0]}\nv_cmp_eq_u32 s[16:17], 2, v{T[0]}\nv_cmp_eq_u32 s[12:13], 3, v{T[0]}\nv_cmp_eq_u32 s[10:11], v{T[2]}, v{q}')
            a(f's_lshl_b32 s{sT0}, s{sSW}, 5\nv_add_u32 v{SW1}, s{sT0}, v{i16}\nv_lshlrev_b32 v{SW2}, 4, v{SW1}\nv_lshlrev_b32 v{SW1}, 2, v{SW1}')
            a(f'v_add_u32 v{SW2}, {S1}, v{SW2}\nv_add_u32 v{SW1}, {NMU}, v{SW1}')
        stk = {}
        fr = lambda sg, t, m: F + 32 * (sg & 1) + 16 * t + 4 * m
        def stats_reads(sg):
            for m in range(4):
                for t in range(2): stk[(sg, t, m)] = a(f'ds_read_b128 {vr(fr(sg, t, m), 4)}, v{T[10+m]} offset:{sg*16384 + t*4096}')
        def stats_mfma(sg):
            if E('sprio', 3): a(f's_setprio {E("sprio", 3)}')
            for m in range(4):
                a.wait_lg(stk[(sg, 1, m)])
                z = sg == 0 and m == 0
                for t in range(2):
                    f = fr(sg, t, m)
                    a(f'v_mfma_f32_16x16x32_bf16 {vr(SGR+4*t,4)}, {vr(f,4)}, {vr(f,4)}, {0 if z else vr(SGR+4*t,4)}')
                    a(f'v_mfma_f32_16x16x32_bf16 {vr(SSUM+4*t,4)}, {vr(HONE,4)}, {vr(f,4)}, {0 if z else vr(SSUM+4*t,4)}')
            a('s_setprio 0')
        def stats_final():
            a('s_setprio 3')
            a(f's_mov_b32 s{sT0}, {f2u(1/512):#x}\ns_mov_b32 s{sT2}, {f2u(1e-5):#x}')
            def chain(t):
                s1, s2, R, G_, S_ = 36 + 2*t, 37 + 2*t, 64 + 8*t, SGR + 4*t, SSUM + 4*t
                if t: s2 = 56
                return [f'v_cndmask_b32 v{s2}, v{G_}, v{G_+1}, s[14:15]', f'v_mul_f32 v{R}, {f2u(-1/512):#x}, v{S_}', f'v_cndmask_b32 v{s2}, v{s2}, v{G_+2}, s[16:17]',
                        f'v_mov_b32 v{R+7}, 0', f'v_cndmask_b32 v{s2}, v{s2}, v{G_+3}, s[12:13]', f'v_mul_f32 v{s1}, v{R}, v{R}', f'v_mov_b32 v{R+4}, v{R}',
                        f'v_fma_f32 v{s2}, v{s2}, s{sT0}, -v{s1}', f'v_max_f32 v{s2}, 0, v{s2}', f'v_add_f32 v{s1}, s{sT2}, v{s2}',
                        f'v_rsq_f32 v{R+5}, v{s1}', f'v_rcp_f32 v{s1}, v{s1}', f'v_mul_f32 v{R+6}, {f2u(LOG2E):#x}, v{R+5}', f'v_fma_f32 v{s1}, v{s1}, v{s2}, s{sT2}',
                        f'v_rsq_f32 v{s1}, v{s1}', f'v_mul_f32 v{s1}, v{s1}, v{R+5}', f'v_rcp_f32 v{R+3}, v{s1}', f'v_mul_f32 v{s2}, v{s1}, v{s1}',
                        f'v_mul_f32 v{R+1}, {f2u(GC0):#x}, v{s1}', f'v_mul_f32 v{s2}, {f2u(0.044715):#x}, v{s2}', f'v_mul_f32 v{R+2}, v{R+1}, v{s2}']
            for x, y in zip(chain(0), chain(1)): a(x + '\n' + y)
            a('s_mov_b64 exec, s[10:11]')
            for t in range(2): a(f'ds_write_b128 v{SW2}, {vr(64+8*t,4)} offset:{t*256}')
            for t in range(2):
                R = 64 + 8*t
                a(f'ds_write_b128 v{SW2}, {vr(R+4,4)} offset:{1024 + t*256}')
                a(f'ds_write_b32 v{SW1}, v{R} offset:{t*64}\nds_write_b32 v{SW1}, v{R+5} offset:{256 + t*64}\nds_write_b32 v{SW1}, v{R+6} offset:{512 + t*64}')
            a('s_mov_b64 exec, -1\ns_setprio 0')
            a.wait_lg0()
        def stats_after(b): pass

        VFL, VFP, VF3, VONE, VCT, CELLV, VZA, VCK, VFO = 26, 27, 28, 29, 30, 32, 34, 35, 33
        OB = T[14]
        pf = opt.get('pf', 1); t3 = opt.get('t3', 0)
        nlab = [0]
        def lab(p):
            nlab[0] += 1
            return f'L_{p}{nlab[0]}'
        def common_regs():
            a(f'v_mov_b32 v{OB}, {OOB}\nv_lshlrev_b32 v{T[15]}, 7, v0\nv_mov_b32 v{VONE}, 1')
            a(f'v_lshrrev_b32 v{T[0]}, 5, v0\nv_and_b32 v{T[1]}, 31, v0\nv_lshlrev_b32 v{CELLV}, 10, v{T[0]}\nv_lshl_add_u32 v{CELLV}, v{T[1]}, 4, v{CELLV}')
            a(f's_lshl_b32 s{sC}, s{sR}, 16\ns_lshl_b32 s{sD}, s{sJ}, 18\ns_add_u32 s{sD}, s{sD}, {KV_OFF}\ns_lshl_b32 s{sA}, s{sJ}, 12\ns_add_u32 s{sA}, s{sA}, {CF_OFF}')
        def one_lane(text):
            a('s_mov_b64 exec, 1'); a(text); a('s_mov_b64 exec, -1')
        def count(off, idx):
            a(f's_lshr_b32 s{sT0}, s{idx}, 3\ns_lshl_b32 s{sT0}, s{sT0}, 7\ns_and_b32 s{sT2}, s{idx}, 7\ns_lshl_b32 s{sT2}, s{sT2}, 2\ns_add_u32 s{sT0}, s{sT0}, s{sT2}')
            a(f's_add_u32 s{sT0}, s{sT0}, s{sA}\ns_add_u32 s{sT0}, s{sT0}, {off}\nv_mov_b32 v{T[7]}, 0')
            one_lane(f'buffer_store_dword v{VONE}, v{T[7]}, {srd(sWS)}, s{sT0} offen sc1')

        sBC = sCNT; sSP = sBG
        common_regs()
        def touch(s, lines, dst, pitch=None, off=0):
            n = lines // 2
            a(f's_lshl_b32 s{sT0}, s2, 1\ns_add_u32 s{sT0}, s{sT0}, s{sSW}\ns_mul_i32 s{sT0}, s{sT0}, {pitch or n*128}')
            if off: a(f's_add_u32 s{sT0}, s{sT0}, {off}')
            a(f'v_cmp_gt_u32 vcc, {n}, v0\nv_cndmask_b32 v{T[7]}, v{OB}, v{T[15]}, vcc')
            return a(f'buffer_load_dword v{dst}, v{T[7]}, {srd(s)}, s{sT0} offen')
        CSR = 160; CA = 192
        def cs_loads(y=None):
            a(f's_lshr_b32 s{sT0}, s{sR}, 1\ns_mul_i32 s{sT0}, s{sT0}, {32*3584}\ns_mul_i32 s{sT2}, s{sJ}, 448\ns_add_u32 s{sT0}, s{sT0}, s{sT2}')
            a(f's_and_b32 s{sT2}, s{sR}, 1\ns_lshl_b32 s{sT2}, s{sT2}, 1\ns_add_u32 s{sT2}, s{sT2}, s{sSW}\ns_mul_i32 s{sT2}, s{sT2}, 112\ns_add_u32 s{sT0}, s{sT0}, s{sT2}')
            a(f'v_lshrrev_b32 v{T[6]}, 5, v0\nv_mul_u32_u24 v{T[6]}, {16*3584}, v{T[6]}\nv_and_b32 v{T[5]}, 31, v0\nv_lshl_add_u32 v{T[6]}, v{T[5]}, 2, v{T[6]}')
            a(f'v_cmp_gt_u32 vcc, 28, v{T[5]}\nv_cndmask_b32 v{T[6]}, v{OB}, v{T[6]}, vcc')
            for i in range(16):
                a(f'buffer_load_dword v{CSR+i}, v{T[6]}, {srd(sW3)}, s{sT0} offen')
                if i < 15: a(f's_add_u32 s{sT0}, s{sT0}, 3584')
                if y and i in (5, 10): y()
        if pf: touch(sQKV, 32, 6, 3072, 1024)
        if E('cs0', 0): cs_loads()
        stats_setup()
        barsD = []
        pre0 = E('spre', 1)
        for b in range(5):
            if b < 4:
                a.wait_vm(xtok[b]); stats_reads(b)
                if b < pre0 or (b == 3 and E('s3pre', 0)): stats_mfma(b)
            arrive(b); barsD.append(f'B{b}'); a('s_barrier')
            if b == 0:
                if not E('st', 0): x_chunk(2)
                x_chunk(3)
            if pre0 <= b < (3 if E('s3pre', 0) else 4): stats_mfma(b)
            if b == 3: stats_final()
            if b == E('e_pf', 2):
                if pf: touch(sW2, 16, 7); touch(sQKV, 16, 7, 3072)
                if pf and E('w3pf', 0) == 2: touch(sW3, 56, 7)
        a(f's_mov_b32 s{sBC}, 5')
        LONG = sum(1 << (IDX[n] + 1) for n in E('long', 'B4.B12.QE.XA.B24.B30.B34').split('.'))
        a(f's_mov_b32 s4, {LONG & 0xffffffff}\ns_mov_b32 s5, {LONG >> 32}')
        VDS = 39; nds = [0]
        if prof: a(f'v_mov_b32 v{VDS}, 0')
        def dst(name):
            if prof:
                a(f's_memrealtime s[0:1]\ns_waitcnt lgkmcnt(0)\nv_writelane_b32 v{VDS}, s0, {nds[0]}')
                self.dnames.append(name); nds[0] += 1
        def yield_(dl):
            L = lab('y')
            a(f's_cmp_ge_u32 s{sBC}, {IDX[dl]}\ns_cbranch_scc1 {L}')
            arrive(str(sBC))
            a(f's_barrier\ns_add_u32 s{sBC}, s{sBC}, 1\n{L}:')
        def earliest(name):
            L = lab('e')
            a(f'{L}:\ns_cmp_gt_u32 s{sBC}, {IDX[name]}\ns_cbranch_scc1 {L}d')
            arrive(str(sBC))
            a(f's_barrier\ns_add_u32 s{sBC}, s{sBC}, 1\ns_branch {L}\n{L}d:')
        def nbwait(dl, lg=False):
            L = lab('w')
            a(f'{L}:\ns_bitcmp1_b64 s[4:5], s{sBC}\ns_cselect_b32 s{sSP}, {E("nspin", 6)}, 1')
            a(f'{L}s:\ns_getreg_b32 s{sT0}, hwreg(HW_REG_IB_STS)\ns_and_b32 s{sT0}, s{sT0}, {0xf00 if lg else 0xc0000f}\ns_cbranch_scc0 {L}d')
            a(f's_sub_u32 s{sSP}, s{sSP}, 1\ns_cmp_lg_u32 s{sSP}, 0\ns_cbranch_scc1 {L}s')
            a(f's_cmp_ge_u32 s{sBC}, {IDX[dl]}\ns_cbranch_scc1 {L}d')
            if not lg: arrive(str(sBC))
            a(f's_barrier\ns_add_u32 s{sBC}, s{sBC}, 1\ns_branch {L}')
            a(f'{L}d:\ns_waitcnt {"lgkmcnt" if lg else "vmcnt"}(0)')
        def spin(off, n, dl):
            L = lab('c')
            a(f'v_and_b32 v{VCT}, {n-1}, v0\nv_lshrrev_b32 v{T[7]}, 3, v{VCT}\nv_and_b32 v{VCT}, 7, v{VCT}\nv_lshlrev_b32 v{VCT}, 2, v{VCT}\nv_lshl_add_u32 v{VCT}, v{T[7]}, 7, v{VCT}')
            a(f's_mov_b32 s6, {opt.get("spin", 200000)}\ns_add_u32 s9, s{sA}, {off}')
            a(f'{L}:\nbuffer_load_dword v{VCK}, v{VCT}, {srd(sWS)}, s9 offen sc1')
            nbwait(dl)
            a(f'v_cmp_ne_u32 vcc, 1, v{VCK}\ns_sub_u32 s6, s6, 1\ns_cmp_eq_u32 s6, 0\ns_cbranch_scc1 {L}d\ns_cbranch_vccz {L}d')
            for _ in range(E('boff', 2)): yield_(dl)
            a(f's_branch {L}\n{L}d:')
        def sliced(fn, dl, n=None):
            lines = a.record(fn); n = n or E('bgn', 22)
            while lines:
                m = n
                while any(x.startswith('s_setprio 3') for x in lines[:m]) and not any(x.startswith('s_setprio 0') for x in lines[:m]): m += 1
                a('\n'.join(lines[:m])); lines = lines[m:]
                if lines: yield_(dl)
        def cs_sum():
            for i in range(16):
                r_ = CSR + i
                if i == 0:
                    a(f'v_lshlrev_b32 v{CA}, 16, v{r_}\nv_and_b32 v{CA+1}, 0xffff0000, v{r_}')
                else:
                    a(f'v_lshlrev_b32 v{CA+4}, 16, v{r_}\nv_and_b32 v{CA+5}, 0xffff0000, v{r_}')
                    a(f'v_add_f32 v{CA}, v{CA}, v{CA+4}\nv_add_f32 v{CA+1}, v{CA+1}, v{CA+5}')
        PQR = 64; KVR = 192; ZR = 200
        AK, AZ, NUM, DEN, OUT = 96, 100, 104, 136, 168
        Lc = lab('cs')
        def cs_chain():
            if not E('cs0', 0):
                earliest(E('e_cs', 'B6'))
                dst('csld0')
                cs_loads((lambda: yield_('XA')) if E('dsl', 0) else None)
            dst('csld1')
            nbwait('XA')
            dst('csld2')
            sliced(cs_sum, 'XA')
            a(f'v_permlane32_swap_b32 v{CA}, v{CA+1}\nv_add_f32 v{CA}, v{CA}, v{CA+1}')
            a(f'v_and_b32 v{T[5]}, 31, v0\nv_lshrrev_b32 v{T[6]}, 5, v0\nv_lshlrev_b32 v{T[6]}, 2, v{T[6]}\nv_lshl_add_u32 v{T[6]}, v{T[5]}, 3, v{T[6]}')
            a(f'v_cmp_gt_u32 vcc, 28, v{T[5]}\nv_cndmask_b32 v{T[6]}, v{OB}, v{T[6]}, vcc')
            a(f's_lshr_b32 s{sT0}, s{sR}, 1\ns_lshl_b32 s{sT0}, s{sT0}, 10\ns_and_b32 s{sT2}, s{sR}, 1\ns_lshl_b32 s{sT2}, s{sT2}, 1\ns_add_u32 s{sT2}, s{sT2}, s{sSW}\ns_mul_i32 s{sT2}, s{sT2}, 224')
            a(f's_add_u32 s{sT0}, s{sT0}, s{sT2}\ns_add_u32 s{sT0}, s{sT0}, s{sD}\ns_add_u32 s{sT0}, s{sT0}, {KV_CS}')
            a(f'buffer_store_dword v{CA}, v{T[6]}, {srd(sWS)}, s{sT0} offen sc1')
            dst('csst')
            nbwait('XA')
            dst('csack')
            earliest('B5')
            a(f's_lshl_b32 s9, s{sR}, 1\ns_add_u32 s9, s9, s{sSW}')
            count(CF_CS, 9)
            earliest(E('e_csc', 'B16'))
            dst('cschk0')
            spin(CF_CS, 64, 'XA')
            dst('cschk1')
            a(f'v_lshlrev_b32 v{T[0]}, 4, v0\nv_cmp_gt_u32 vcc, 56, v0\nv_cndmask_b32 v{T[0]}, v{OB}, v{T[0]}, vcc')
            a(f's_lshl_b32 s{sT2}, s{sSW}, 13\ns_add_u32 s{sT2}, s{sT2}, s{sD}\ns_add_u32 s{sT2}, s{sT2}, {KV_CS}')
            for k in range(8):
                if k % 4 == 0: a(f's_add_u32 s{sT0}, s{sT2}, {k*1024}')
                a(f'buffer_load_dwordx4 {vr(CSR+4*k,4)}, v{T[0]}, {srd(sWS)}, s{sT0} offen offset:{(k&3)*1024} sc1')
                if k == 3 and E('dsl2', 0): yield_('XA')
            def cs_fin():
                for st in (16, 8, 4):
                    for k in range(st): a(f'v_add_f32 v{CSR+k}, v{CSR+k}, v{CSR+st+k}')
            dst('csg0')
            nbwait('XA')
            dst('csg1')
            sliced(cs_fin, 'XA', 30)
            a(f'v_lshlrev_b32 v{T[0]}, 4, v0\nv_add_u32 v{T[0]}, {CS3L}, v{T[0]}')
            earliest('B16')
            a(f's_cmp_eq_u32 s{sSW}, 0\ns_cbranch_scc1 {Lc}a')
            a(f'ds_write_b128 v{T[0]}, {vr(CSR,4)} offset:1024\ns_waitcnt lgkmcnt(0)\n{Lc}a:')
        if E('x_nocs', 0):
            earliest(E('e_cs', 'B6')); touch(sW3, 56, 7)
        else: cs_chain()
        if pf and E('e_p4', 'B13') == 'D': touch(sWO, 16, 8); touch(sW4, 56, 9)
        a(f's_lshl_b32 s7, s{sJ}, 1\ns_add_u32 s7, s7, s{sSW}\ns_lshl_b32 s8, s7, 2\ns_lshl_b32 s7, s7, 12\ns_add_u32 s7, s7, s{sC}\ns_add_u32 s7, s7, {O_OFF}')
        a(f's_lshl_b32 s{sT0}, s{sR}, 7\ns_add_u32 s8, s8, s{sT0}\ns_add_u32 s8, s8, {FL_OFF + FO*4096}\nv_mov_b32 v{VFO}, s8')
        earliest('XA')
        a(f's_cmp_lg_u32 s{sSW}, 0\ns_cbranch_scc1 {Lc}b')
        a(f'ds_read_b128 {vr(CSR+4,4)}, v{T[0]} offset:1024\ns_waitcnt lgkmcnt(0)')
        for k in range(4): a(f'v_add_f32 v{CSR+k}, v{CSR+k}, v{CSR+4+k}')
        a(f'ds_write_b128 v{T[0]}, {vr(CSR,4)}\n{Lc}b:')
        a(f's_lshl_b32 s{sT0}, s{sSW}, 12\ns_add_u32 s{sT0}, s{sT0}, {PQ}\nv_lshl_add_u32 v{T[0]}, v0, 3, s{sT0}')
        for k in range(8): a(f'ds_read_b64 {vr(PQR+2*k,2)}, v{T[0]} offset:{k*512}')
        a('s_waitcnt lgkmcnt(0)')
        kv2 = E('kv2', 0)
        earliest(E('e_kvb', 'XA'))
        if E('x_noo', 0):
            one_lane(f'buffer_store_dword v{VONE}, v{VFO}, {srd(sWS)}, 0 offen sc1'); nbwait('B51'); a('s_endpgm')
        dst('kvchk0')
        spin(CF_A, 32, ODL)
        dst('kvchk1')
        if kv2:
            a(f's_lshl_b32 s20, s{sSW}, 5\ns_add_u32 s20, s20, s{sR}\ns_cmp_lt_u32 s20, 34\ns_cselect_b32 s21, 0, {OOB}\ns_lshl_b32 s22, s20, 7\ns_add_u32 s22, s22, s{sD}')
            a(f'v_lshrrev_b32 v{T[1]}, 3, v0\nv_mul_u32_u24 v{T[1]}, {KVP}, v{T[1]}\nv_and_b32 v{T[2]}, 7, v0\nv_lshlrev_b32 v{T[2]}, 4, v{T[2]}\nv_add3_u32 v{T[1]}, v{T[1]}, v{T[2]}, s21')
            for k in range(4):
                a(f's_add_u32 s{sT0}, s22, {k*8*KVP}\nbuffer_load_dwordx4 {vr(KVR+4*k,4)}, v{T[1]}, {srd(sWS)}, s{sT0} offen sc1')
            nbwait(ODL)
            dst('l2ld')
            for k in range(8): a(f'v_add_f32 v{KVR+k}, v{KVR+k}, v{KVR+8+k}')
            for k in range(4): a(f'v_add_f32 v{KVR+k}, v{KVR+k}, v{KVR+4+k}')
            for k in range(4): a(f'v_add_f32_dpp v{KVR+k}, v{KVR+k}, v{KVR+k} row_ror:8 row_mask:0xf bank_mask:0xf')
            for sw_ in ('v_permlane16_swap_b32', 'v_permlane32_swap_b32'):
                if sw_.startswith('v_permlane32'): yield_(ODL)
                for k in range(4): a(f'v_mov_b32 v{KVR+4+k}, v{KVR+k}')
                for k in range(4): a(f'{sw_} v{KVR+k}, v{KVR+4+k}')
                for k in range(4): a(f'v_add_f32 v{KVR+k}, v{KVR+k}, v{KVR+4+k}')
            a(f'v_cmp_gt_u32 vcc, 8, v0\nv_add_u32 v{T[2]}, s21, v{T[2]}\nv_cndmask_b32 v{T[2]}, v{OB}, v{T[2]}, vcc\ns_add_u32 s{sT0}, s22, {KV_FIN}')
            a(f'buffer_store_dwordx4 {vr(KVR,4)}, v{T[2]}, {srd(sWS)}, s{sT0} offen sc1')
            nbwait(ODL)
            count(CF_B, 20)
            dst('l2pub')
            earliest(E('e_kvc', 'B29'))
            spin(CF_B, 64, ODL)
            dst('l2chk')
            a(f'v_lshrrev_b32 v{T[1]}, 4, v0\nv_lshlrev_b32 v{T[1]}, 4, v{T[1]}\nv_and_b32 v{T[0]}, 3, v0\nv_lshl_add_u32 v{T[0]}, v{T[0]}, 8, v{T[1]}')
            a(f'v_bfe_u32 v{T[2]}, v0, 2, 2\nv_lshl_add_u32 v{T[0]}, v{T[2]}, 6, v{T[0]}')
        else:
            a(f'v_lshrrev_b32 v{T[1]}, 4, v0\nv_lshlrev_b32 v{T[1]}, 4, v{T[1]}\nv_and_b32 v{T[0]}, 15, v0\nv_lshl_add_u32 v{T[0]}, v{T[0]}, 6, v{T[1]}')
        fin = KV_FIN if kv2 else 0
        for rep in range(1 if kv2 else NREP):
            a(f's_lshl_b32 s{sT0}, s{sSW}, 11\ns_add_u32 s{sT2}, s{sT0}, s{sD}\ns_add_u32 s{sT2}, s{sT2}, {8192*rep + fin}')
            for hh in range(2): a(f'buffer_load_dwordx4 {vr(KVR+16*rep+4*hh,4)}, v{T[0]}, {srd(sWS)}, s{sT2} offen offset:{hh*1024} sc1')
            a(f's_lshl_b32 s{sT2}, s{sSW}, 7\ns_add_u32 s{sT2}, s{sT2}, s{sD}\ns_add_u32 s{sT2}, s{sT2}, {KV_Z + 8192*rep + fin}')
            for hh in range(2): a(f'buffer_load_dwordx4 {vr(ZR+16*rep+4*hh,4)}, v{T[1]}, {srd(sWS)}, s{sT2} offen offset:{hh*64} sc1')
        dst('kvg0')
        nbwait(ODL)
        dst('kvg1')
        def kv_sum():
            if not kv2:
                for k in range(32): a(f'v_add_f32 v{KVR+k}, v{KVR+k}, v{KVR+32+k}')
                for k in range(16): a(f'v_add_f32 v{KVR+k}, v{KVR+k}, v{KVR+16+k}')
            for hh in range(2):
                a(f'v_cvt_pk_bf16_f32 v{AK+2*hh}, v{KVR+4*hh}, v{KVR+4*hh+1}\nv_cvt_pk_bf16_f32 v{AK+2*hh+1}, v{KVR+4*hh+2}, v{KVR+4*hh+3}')
                a(f'v_cvt_pk_bf16_f32 v{AZ+2*hh}, v{ZR+4*hh}, v{ZR+4*hh+1}\nv_cvt_pk_bf16_f32 v{AZ+2*hh+1}, v{ZR+4*hh+2}, v{ZR+4*hh+3}')
        if E('dprio', 1): a(f's_setprio {E("dprio", 1)}')
        sliced(kv_sum, ODL, E('bgn2', 60))
        def o_compute():
            a('s_setprio 3')
            for k in range(8): a(f'v_mfma_f32_16x16x16_bf16 {vr(DEN+4*k,4)}, {vr(AZ+2*(k>>2),2)}, {vr(PQR+2*k,2)}, 0')
            for k in range(8): a(f'v_mfma_f32_16x16x16_bf16 {vr(NUM+4*k,4)}, {vr(AK+2*(k>>2),2)}, {vr(PQR+2*k,2)}, 0')
            a('s_setprio 0')
            if E('dprio', 1): a(f's_setprio {E("dprio", 1)}')
            for k in range(8): a(f'v_add_f32 v{DEN+4*k}, s{sEPS}, v{DEN+4*k}')
            for k in range(8): a(f'v_rcp_f32 v{DEN+4*k}, v{DEN+4*k}')
            for pr in range(4):
                for k in (2*pr, 2*pr+1):
                    for e in range(4): a(f'v_mul_f32 v{NUM+4*k+e}, v{NUM+4*k+e}, v{DEN+4*k}')
                for u in range(4*pr, 4*pr+4): a(f'v_cvt_pk_bf16_f32 v{OUT+u}, v{NUM+2*u}, v{NUM+2*u+1}')
                a(f'v_permlane16_swap_b32 v{OUT+4*pr}, v{OUT+4*pr+2}\nv_permlane16_swap_b32 v{OUT+4*pr+1}, v{OUT+4*pr+3}')
                a(f'buffer_store_dwordx4 {vr(OUT+4*pr,4)}, v{CELLV}, {srd(sWS)}, s7 offen offset:{(pr>>1)*2048+(pr&1)*512} sc1')
        dst('kvsum')
        sliced(o_compute, ODL, E('bgn3', 40))
        dst('ost')
        nbwait(ODL)
        dst('oack')
        one_lane(f'buffer_store_dword v{VONE}, v{VFO}, {srd(sWS)}, 0 offen sc1')
        if prof: a(f's_mov_b32 s10, s{sBC}'); earliest('B50')
        else: nbwait('B51')
        if prof:
            a(f's_lshl_b32 s{sT0}, s2, 3\ns_add_u32 s{sT0}, s{sT0}, s{sW}\ns_add_u32 s{sT0}, s{sT0}, 5\ns_lshl_b32 s{sT0}, s{sT0}, 8\ns_add_u32 s{sT0}, s{sT0}, {TS_OFF}')
            a(f'v_mov_b32 v2, s10\nv_mov_b32 v3, 0')
            a(f'v_lshlrev_b32 v3, 2, v0\nv_writelane_b32 v{VDS}, s10, 63\nbuffer_store_dword v{VDS}, v3, {srd(sWS)}, s{sT0} offen')
            dump_arrive(0)
        a('s_endpgm')

        a('L_sync:')
        a.vm = vmS; a.lg = []; stok.update(stokS); grp[0] = [2, 3]
        VTS, VTC = 31, 60
        if two: loader_setup()
        else:
            a('s_waitcnt lgkmcnt(0)')
            self.srds(a, skipx=True)
        if prof: a(f'v_mov_b32 v{VTS}, 0\nv_mov_b32 v{VTC}, 0\nv_writelane_b32 v{VTS}, s26, 63')
        nstamp = [0]
        def stamp(last=False):
            if prof:
                if nstamp[0]:
                    a(f's_waitcnt lgkmcnt(0)\nv_writelane_b32 v{VTS}, s{sTSP}, {nstamp[0]-1}\nv_writelane_b32 v{VTC}, s26, {nstamp[0]-1}')
                    a.lg = []
                if not last: a(f's_memrealtime s[{sTSP}:{sTSP+1}]\ns_memtime s[26:27]')
                nstamp[0] += 1
        def flag_setup():
            common_regs()
            a(f's_lshl_b32 s{sT0}, s{sR}, 7\ns_add_u32 s{sT0}, s{sT0}, {FL_OFF}\ns_lshl_b32 s{sT2}, s{sJ}, 2\ns_add_u32 s{sT2}, s{sT2}, s{sT0}\nv_mov_b32 v{VFL}, s{sT2}')
            a(f'v_and_b32 v{VZA}, 7, v0\nv_lshlrev_b32 v{VZA}, 2, v{VZA}\nv_add_u32 v{VFP}, s{sT0}, v{VZA}')
            a(f'v_and_b32 v{VZA}, 15, v0\nv_lshlrev_b32 v{VZA}, 2, v{VZA}\nv_add_u32 v{VFO}, s{sT0}, v{VZA}\nv_and_b32 v{VZA}, 31, v0\nv_lshlrev_b32 v{VZA}, 2, v{VZA}')
            a(f's_cmp_eq_u32 s{sR}, 0\ns_cselect_b32 s{sT2}, 0, -128\ns_cmp_eq_u32 s{sR}, 31\ns_cselect_b32 s{sT3}, 0, 128')
            a(f'v_lshrrev_b32 v{T[3]}, 3, v0\nv_mov_b32 v{T[4]}, 0\nv_mov_b32 v{T[5]}, s{sT2}\nv_mov_b32 v{T[6]}, s{sT3}')
            a(f'v_cmp_eq_u32 vcc, 1, v{T[3]}\nv_cndmask_b32 v{T[4]}, v{T[4]}, v{T[5]}, vcc\nv_cmp_eq_u32 vcc, 2, v{T[3]}\nv_cndmask_b32 v{T[4]}, v{T[4]}, v{T[6]}, vcc')
            a(f'v_add_u32 v{VF3}, v{VFP}, v{T[4]}')
        if not E('late', 0): flag_setup()
        stamp()
        def touch3(s, rows, dst):
            n = rows // 32
            a(f's_lshr_b32 s{sT0}, s2, 3\ns_mul_i32 s{sT0}, s{sT0}, {n*1024}\ns_add_u32 s{sT0}, s{sT0}, 384')
            a(f'v_lshlrev_b32 v{T[7]}, 10, v0\nv_cmp_gt_u32 vcc, {n}, v0\nv_cndmask_b32 v{T[7]}, v{OB}, v{T[7]}, vcc')
            return a(f'buffer_load_dword v{dst}, v{T[7]}, {srd(s)}, s{sT0} offen')
        ck = {}
        def check_issue(vaddr, sr, off):
            ck['t'] = a(f's_mov_b32 s{sT0}, {off}\nbuffer_load_dword v{VCK}, v{vaddr}, {srd(sr)}, s{sT0} offen sc1')
        def check_wait(vaddr, sr, off, val):
            L = lab('p')
            a.wait_vm(ck['t'])
            a(f's_mov_b32 s{sCNT}, {opt.get("spin", 200000)}\ns_mov_b32 s{sT0}, {off}')
            a(f'{L}:')
            a(f'v_cmp_ne_u32 vcc, {val}, v{VCK}\ns_sub_u32 s{sCNT}, s{sCNT}, 1\ns_cmp_eq_u32 s{sCNT}, 0\ns_cbranch_vccz {L}d\ns_cbranch_scc1 {L}d')
            vm = list(a.vm)
            a(f'buffer_load_dword v{VCK}, v{vaddr}, {srd(sr)}, s{sT0} offen sc1\ns_waitcnt vmcnt(0)\ns_branch {L}\n{L}d:')
            a.vm = vm
        early = []
        def pre_poll(vaddr, sr, off):
            r = [36, 37, 38][len(early)]
            a(f's_mov_b32 s{sT0}, {off}')
            early.append((r, a(f'buffer_load_dword v{r}, v{vaddr}, {srd(sr)}, s{sT0} offen sc1')))
        def poll(vaddr, sr, off, val):
            L = lab('q')
            check_issue(vaddr, sr, off)
            check_wait(vaddr, sr, off, val)
        def flag(ftype):
            a(f's_mov_b32 s{sT0}, {ftype*4096}')
            one_lane(f'buffer_store_dword v{VONE}, v{VFL}, {srd(sWS)}, s{sT0} offen sc1')
        XS = 64; xt = {}
        def xs_loads():
            a(f's_lshl_b32 s{sT0}, s{sR}, 13\ns_add_u32 s{sT0}, s{sT0}, {XS_OFF}\ns_add_u32 s{sT2}, s{sT0}, 4096\nv_lshlrev_b32 v{T[0]}, 3, v0')
            for k in range(16):
                xt['s'] = a(f'buffer_load_dwordx2 {vr(XS+2*k,2)}, v{T[0]}, {srd(sWS)}, s{sT0 if k < 8 else sT2} offen offset:{(k&7)*512} sc1')
        def xs_final(part):
            G = XS + 4; t = XS + 1
            if part == 0:
                a.wait_vm(xt['s'])
                for st in (16, 8, 4, 2):
                    for k in range(st): a(f'v_add_f32 v{XS+k}, v{XS+k}, v{XS+st+k}')
                return
            a(f'v_mul_f32 v{G}, {f2u(-1/512):#x}, v{XS}\nv_mul_f32 v{t}, {f2u(1/512):#x}, v{t}')
            a(f'v_fma_f32 v{t}, -v{G}, v{G}, v{t}\nv_max_f32 v{t}, 0, v{t}\nv_add_f32 v{t}, {f2u(1e-5):#x}, v{t}')
            a(f'v_rsq_f32 v{t+1}, v{t}\nv_sqrt_f32 v{G+3}, v{t}')
            a(f'v_mul_f32 v{G+1}, {f2u(GC0):#x}, v{t+1}\nv_mul_f32 v{t+2}, v{t+1}, v{t+1}\nv_mul_f32 v{t+2}, v{t+2}, v{t+1}\nv_mul_f32 v{G+2}, {f2u(GC1):#x}, v{t+2}')
            a(f'v_lshlrev_b32 v{T[0]}, 4, v0\nv_add_u32 v{T[0]}, {X1P}, v{T[0]}')
            a(f'ds_write_b128 v{T[0]}, {vr(G,4)}\ns_waitcnt lgkmcnt(0)')
        fhb, fxb, hlb = f"B{E('fh_bar', 6)}", f"B{E('fx_bar', 17)}", f"B{E('hl_bar', 11)}"
        for n in BARS:
            if n == 'XA': check_wait(VFP, sWS, FX1 * 4096, 1)
            if n == E('e_g0w', 'B31' if E('eg', 0) else 'B34'): check_wait(VFP, sWS, FG0 * 4096, 1)
            if n == f'B{self.need[FG1]}': check_wait(VFP, sWS, FG1 * 4096, 1)
            if n == f'B{self.need[FO]}': check_wait(VFO, sWS, FO * 4096, 1)
            if n == f'B{self.need[FG2]}': check_wait(VFP, sWS, FG2 * 4096, 1)
            if n == hlb: check_wait(VF3, sWS, FH * 4096, 1)
            if two: load_before(n)
            arrive(IDX[n]); self.barsS.append(n); a('s_barrier')
            stamp()
            if n == fhb: flag(FH)
            if n == fxb: flag(FX1)
            if n == f"B{E('fg0_bar', 27)}": flag(FG0)
            if n == f"B{E('fg1_bar', 34)}": flag(FG1)
            if n == f"B{E('fg2_bar', 37)}": flag(FG2)
            if n == (f"B{E('fa_bar', 15)}" if E('kv2', 0) else ('QE' if E('ovl', 0) and E('atp', 0) == 1 else fxb)): count(CF_A, sR)
            if n == E('e_g0i', 'B30' if E('eg', 0) else 'B31'): check_issue(VFP, sWS, FG0 * 4096)
            if n == f'B{max(self.need[FG1] - E("cl", 2), 34)}': check_issue(VFP, sWS, FG1 * 4096)
            if n == f'B{max(self.need[FO] - E("cl", 2), 34)}': check_issue(VFO, sWS, FO * 4096)
            if n == f'B{self.need[FG2] - E("cl", 2)}': check_issue(VFP, sWS, FG2 * 4096)
            if n == 'QE': check_issue(VFP, sWS, FX1 * 4096)
            if n == BARS[IDX[hlb] - E('hl_lead', 2)]: check_issue(VF3, sWS, FH * 4096)
            if n == 'B2': check_issue(VZA, sDBG, 0)
            if n == 'B15': pass
            if two: load_after(n)
            elif n[0] == 'B': stats_after(int(n[1:]))
            if n == 'B0' and E('late', 0): flag_setup()
            if n == E('e_xs', 'B20') and not E('x_noxs', 0): xs_loads()
            if n == 'B4': check_wait(VZA, sDBG, 0, 1)
            if n == 'B22' and not E('x_noxs', 0): xs_final(0)
            if n == 'B23': xs_final(1)
            if pf and n == E('e_p4', 'B13'):
                for (sr, nl) in ((sWO, 16), (sW4, 56)):
                    a(f's_mul_i32 s{sT0}, s2, {nl*128}\nv_cmp_gt_u32 vcc, {nl}, v0\nv_cndmask_b32 v{T[7]}, v{OB}, v{T[15]}, vcc\nbuffer_load_dword v62, v{T[7]}, {srd(sr)}, s{sT0} offen')
            if t3:
                if n == E('e_t3q', 'B4'): touch3(sQKV, 1536, 63)
                if n == E('e_t32', 'B7'): touch3(sW2, 512, 63)
                if n == E('e_t33', 'B13'): touch3(sW3, 1792, 63)
                if n == E('e_t33b', 'B24'): touch3(sW3, 1792, 63)
                if n == E('e_t34', 'B28'): touch3(sW4, 1792, 63)
                if n == E('e_t35', 'B37'): touch3(sWO, 512, 63); touch3(sW4, 1792, 63)
            if n[0] == 'B' and int(n[1:]) >= max(self.need.values()) + 2 and not prof and not two: break
        if prof:
            stamp(True)
            a(f's_lshl_b32 s{sT0}, s2, 3\ns_add_u32 s{sT0}, s{sT0}, 4\ns_lshl_b32 s{sT0}, s{sT0}, 8\ns_add_u32 s{sT0}, s{sT0}, {TS_OFF}')
            a(f'v_lshlrev_b32 v2, 2, v0\nbuffer_store_dword v{VTS}, v2, {srd(sWS)}, s{sT0} offen\nbuffer_store_dword v{VTC}, v2, {srd(sWS)}, s{sT0} offen offset:256')
            dump_arrive(0)
        a('s_endpgm')

        a('L_loader:')
        a.vm = vmL; a.lg = []; stok.update(stokL); grp[0] = [0, 1] if two else [0, 1, 2, 3]
        loader_setup()
        for n in BARS:
            load_before(n)
            arrive(IDX[n]); self.barsL.append(n); a('s_barrier')
            load_after(n)
        dump_arrive(0)
        a('s_endpgm')

    def build(self):
        a = Asm()
        dry = Asm(); self.compute(dry); self.barsC = []
        self.prologue(a)
        self.helper(a)
        a.lg = []; a.vm = []
        a('L_compute:')
        self.compute(a)
        a('L_end:\ns_endpgm')
        assert self.barsC[:-1] == self.barsL and self.barsC[-1] == 'RB2' and self.barsL[:len(self.barsS)] == self.barsS, (self.barsC, self.barsL, self.barsS)
        if self.opt.get('align', 3): self.alstat = align_pass(a, KNAME + ':\n', self.opt.get('align', 3))
        ref = open(f'cdna_kernels/{KNAME[:-7]}.s.ref').read().split('\n')
        head = [l for l in ref if l.startswith(';') and '@launch' not in l]
        head += ['; One persistent launch: 256 workgroups = 32 row blocks (64 tokens) x 8 column blocks, one per CU.',
                 '; Waves 0-3 compute (MFMA), wave 4 publishes/polls hand-off flags, waves 5-6 do background work (x tile, row',
                 '; statistics, column sums of w3, attention output), wave 7 streams weight tiles into an LDS ring.',
                 '; Layer norms are applied after the GEMMs as rho*(x@W - mu*colsum(W)).  Tiles exchanged between workgroups go',
                 '; through d_ws with write-through stores and flags that this launch zeroes itself (announced in d_debug).']
        if self.dnames: head.append('; dnames ' + ' '.join(self.dnames))
        out = '\n'.join(head) + '\n; @launch grid=(256,1,1) block=(512,1,1) lds=163840\n'
        out += f'.amdgcn_target "amdgcn-amd-amdhsa--gfx950"\n.text\n.globl {KNAME}\n.p2align 8\n.type {KNAME},@function\n{KNAME}:\n'
        out += a.text()
        out += f'''.section .rodata,"a"
.p2align 6
.amdhsa_kernel {KNAME}
  .amdhsa_next_free_vgpr 256
  .amdhsa_next_free_sgpr 102
  .amdhsa_accum_offset 256
  .amdhsa_group_segment_fixed_size 0
  .amdhsa_kernarg_size 88
  .amdhsa_user_sgpr_count 2
  .amdhsa_user_sgpr_kernarg_segment_ptr 1
  .amdhsa_system_sgpr_workgroup_id_x 1
.end_amdhsa_kernel
'''
        return out, a


def generate(**opt):
    g = Gen(opt)
    return g.build()[0]

if __name__ == '__main__':
    opt = {}
    for arg in sys.argv[2:]:
        k, v = arg.split('=')
        opt[k] = int(v) if v.lstrip('-').isdigit() else v
    g = Gen(opt)
    txt, a = g.build()
    open(sys.argv[1], 'w').write(txt)
    print('instructions', len(a.ins), 'pads', a.npad, 'align', getattr(g, 'alstat', None), 'issue', ISSUE)
```

```python
import sys, math, struct
sys.path.insert(0, 'dev')
import re
from asmlib import Asm, Ins, align_pass

KNAME = 'parallel_sum__linear_attn_block__mixer_s_mlp__prompt_kernel'

H_OFF, X1_OFF, O_OFF, G_OFF = 0x000000, 0x200000, 0x400000, 0x600000
KV_OFF, FL_OFF, XS_OFF, TS_OFF = 0xE00000, 0xD10000, 0xD20000, 0x1000000
CF_OFF = 0xD00000
WS_BYTES = 0x1200000
KVP, KV_Z, KV_FIN, KV_CS = 4608, 4096, 0x24000, 0x28000
CF_CS, CF_A, CF_B = 0, 1024, 2048
NREP = 4
FH, FX1, FO, FG0, FG1, FG2 = 0, 1, 2, 3, 4, 5
GBLK = 229376
RING = 0x10000
SC = 0x24000
S1, S2, NMU, RHO, RHL = SC, SC + 1024, SC + 2048, SC + 2304, SC + 2560
PQ, X1P, CS3L = SC, SC + 9216, SC + 10240
OOB = 0x80000000

def f2u(x): return struct.unpack('<I', struct.pack('<f', x))[0]
LOG2E = 1.4426950408889634
GC0 = -2.0 * math.sqrt(2.0 / math.pi) * LOG2E
GC1 = GC0 * 0.044715

sX, sQKV, sWO, sW1, sW2, sW3, sW4, sOUT, sWS, sDBG = 28, 32, 36, 40, 44, 48, 52, 56, 60, 64
sR, sJ, sW, sTH, sHI = 68, 69, 70, 71, 72
sT0, sT1, sT2, sT3, sT4, sT5 = 73, 74, 75, 76, 77, 78
sEPS = 80
sONE, sSEL0, sSEL1 = 82, 83, 84
sA, sB, sC, sD = 85, 86, 87, 88
sI0 = 79
sCODE = 92
sCNT = 90
sROT = 89
sRG = 3
sKG = 22
sKC = 96
sBG = 91
sK1, sK3, sK5, sKX = 92, 96, 4, 18
sTSP = 100

def srd(n): return f's[{n}:{n+3}]'
def vr(n, k=1): return f'v{n}' if k == 1 else f'v[{n}:{n+k-1}]'

STAGES = ([('w1', s) for s in range(4)] + [('kv', s) for s in range(8)] + [('w2', s) for s in range(4)] +
          [('wq', s) for s in range(4)] + [('p0', s) for s in range(4)] + [('hf', s) for s in range(2)] +
          [('p1', s) for s in range(4)] + [('p2', s) for s in range(4)] +
          [])
STAGES0 = list(STAGES)
def set_order(order):
    STAGES[:] = STAGES0 + [(k, s) for k in order.split('.') for s in range(2 if k == 'gh' else 4)]
set_order('g0.g1.gh.wo.g2')
def g_rows(kind, s):
    if kind == 'gh': return 896 * s + 192, 896 * s + 640
    p = int(kind[1])
    return 448 * s + 64 * p, 448 * s + 256 + 64 * p
NST = len(STAGES)
AREL = 27

def plan_slots(opt):
    free = [RING + i * 0x4000 for i in range(5)]
    slot = {}; issue = {}
    quota = {13: opt.get('q13', 0), 16: opt.get('q16', 1), 17: 2, 24: opt.get('q24', 3), 27: 1, 30: opt.get('q30', 4), 34: opt.get('q34', 1)}
    jit = opt.get('jit', 5)
    regs = [int(x) for x in str(opt.get('regs', '')).split('.') if x]
    nxt = 0
    def drain(key, q, b):
        nonlocal nxt
        while free and nxt < NST and (nxt in regs or ((q > 0 or nxt <= b + 2) and not (b >= 35 and nxt > b + jit))):
            slot[nxt] = free.pop(0); issue.setdefault(key, []).append(nxt); q -= nxt not in regs; nxt += 1
    drain(-1, 5, -1)
    for b in range(NST):
        if b == 20:
            free.extend([slot[18], slot[19]]); drain('QE', 2, 19)
        er = [int(x) for x in str(opt.get('erel', '24.30.34')).split('.') if x != 'X']
        if b >= 2 and b not in (20, 21) and (b - 1) not in er: free.append(slot[b - 2])
        if b in er: free.append(slot[b - 1])
        if b == (24 if opt.get('hfv', 1) else AREL): free.extend([0, 0x4000, 0x8000, 0xC000])
        if b == 32 and opt.get('sc10', 1): free.append(SC)
        if SC in free and nxt > 47: free.remove(SC)
        if b == 15 and opt.get('rb17', 1): drain('RB1', quota.get(b, 1), b)
        else: drain(b, quota.get(b, 1), b)
    assert nxt == NST
    return slot, issue


class Gen:
    def __init__(self, opt):
        self.opt = opt
        self.barsC = []; self.barsS = []; self.barsL = []; self.dnames = []
        global SLOT, ISSUE
        set_order(opt.get('order', 'g0.g1.gh.g2.wo' if opt.get('kv2', 0) else 'g0.wo.g1.gh.g2'))
        SLOT, ISSUE = plan_slots(opt)

    def prologue(self, a):
        a('s_cmp_ge_u32 s2, 256\ns_cbranch_scc1 L_end')
        a('s_load_dwordx16 s[4:19], s[0:1], 0\ns_load_dwordx4 s[20:23], s[0:1], 64\ns_load_dwordx2 s[24:25], s[0:1], 80')
        if self.opt.get('prof'):
            a(f's_memrealtime s[26:27]\ns_memtime s[90:91]')
        m = self.opt.get('map', 'h4')
        if m == 'same':
            a(f's_and_b32 s{sR}, s2, 7\ns_lshr_b32 s{sT0}, s2, 6\ns_lshl_b32 s{sT0}, s{sT0}, 3\ns_or_b32 s{sR}, s{sR}, s{sT0}')
            a(f's_lshr_b32 s{sJ}, s2, 3\ns_and_b32 s{sJ}, s{sJ}, 7')
        elif m == 'h4':
            a(f's_and_b32 s{sR}, s2, 3\ns_lshr_b32 s{sT0}, s2, 5\ns_lshl_b32 s{sT0}, s{sT0}, 2\ns_or_b32 s{sR}, s{sR}, s{sT0}')
            a(f's_lshr_b32 s{sJ}, s2, 2\ns_and_b32 s{sJ}, s{sJ}, 7')
        elif m == 'cross':
            a(f's_lshr_b32 s{sR}, s2, 3\ns_and_b32 s{sJ}, s2, 7')
        a('v_lshrrev_b32 v1, 6, v0\nv_and_b32 v0, 63, v0')
        a(f'v_readfirstlane_b32 s{sT1}, v1')
        a(f's_mov_b32 s{sX+2}, {2<<20}\ns_mov_b32 s{sX+3}, 0x20000')
        a(f's_and_b32 s{sW}, s{sT1}, 3\ns_and_b32 s{sTH}, s{sT1}, 1\ns_lshr_b32 s{sHI}, s{sW}, 1')
        sh = {'same': 3, 'h4': 2, 'cross': 5}[m] if self.opt.get('rot2', 1) else 8
        a(f's_lshr_b32 s{sROT}, s{sR}, {sh}\ns_add_u32 s{sROT}, s{sROT}, s{sR}\ns_add_u32 s{sROT}, s{sROT}, s{sJ}\ns_and_b32 s{sROT}, s{sROT}, 3')
        sh2 = {'same': 3, 'h4': 2, 'cross': 5}[m]
        if self.opt.get('rotg', 1): a(f's_lshr_b32 s{sRG}, s{sR}, {sh2}\ns_add_u32 s{sRG}, s{sRG}, s{sJ}\ns_and_b32 s{sRG}, s{sRG}, 3')
        else: a(f's_mov_b32 s{sRG}, 0')
        a(f's_cmp_lt_u32 s{sT1}, 4\ns_cbranch_scc1 L_compute')

    def srds(self, a, skipx=False, skip1=False):
        a(f's_mov_b32 s{sEPS}, {f2u(1e-6):#x}\ns_mov_b32 s{sEPS+1}, {f2u(1e-6):#x}\ns_mov_b32 s{sONE}, 0x3f803f80')
        for (s, p, n) in ((sX, 4, 2 << 20), (sW1, 12, 512 * 1024), (sQKV, 6, 512 * 3072), (sWO, 8, 512 * 1024), (sW2, 14, 512 * 1024),
                          (sW3, 16, 512 * 3584), (sW4, 18, 1792 * 1024), (sOUT, 20, 2 << 20), (sWS, 24, WS_BYTES), (sDBG, 22, 256)):
            if s == sX and skipx: continue
            if s == sW1 and skip1: continue
            a(f's_mov_b32 s{s}, s{p}\ns_and_b32 s{s+1}, s{p+1}, 0xffff\ns_mov_b32 s{s+2}, {n}\ns_mov_b32 s{s+3}, 0x20000')

    def run_steps(self, a, steps):
        n = len(steps)
        sched = {}
        for i, s in enumerate(steps):
            sched.setdefault(s['at'], []).append(i)
        def items(i):
            s = steps[i]
            out = []
            if s.get('pre'): out.append(('pre', i))
            out += [('rd', i, t) for t in s['reads']]
            return out
        def emit(it):
            if it[0] == 'pre':
                steps[it[1]]['pre']()
            elif it[0] == 'rd':
                steps[it[1]]['tok'] = a(it[2])
            else:
                it[1]()
        for i in sched.get(-1, []):
            for it in items(i): emit(it)
        for k in range(n):
            s = steps[k]
            if s.get('hook'): s['hook']()
            pend = []
            for i in sched.get(k, []):
                if i == k:
                    for it in items(i): emit(it)
                else:
                    pend += items(i)
            pend += [('post', f) for f in s.get('post', [])]
            vt = s['vm']() if s.get('vm') else None
            a.wait_both(s.get('tok'), vt)
            nm = len(s['mfmas'])
            per = -(-len([p for p in pend if p[0] != 'pre']) // nm) if pend else 0
            for mi, m in enumerate(s['mfmas']):
                a(m)
                if s.get('tail') and s['tail'][mi]: s['tail'][mi]()
                c = 0
                while pend and (c < per or mi == nm - 1):
                    it = pend.pop(0)
                    emit(it)
                    if it[0] != 'pre': c += 1
                    elif mi < nm - 1 and self.opt.get('bfast', 0):
                        per = -(-len(pend) // (nm - 1 - mi))
                        break

    def barC(self, a, name):
        self.barsC.append(name); a('s_barrier')

    def gelu(self, a, pairs, tmp, after_first=None):
        P = lambda r: vr(r, 2)
        for i, (ac, cs, st, o) in enumerate(pairs):
            a(f'v_pk_fma_f32 {P(ac)}, {P(cs)}, {P(st)}, {P(ac)} op_sel:[0,0,0] op_sel_hi:[1,0,1]')
        if after_first: after_first()
        for i, (ac, cs, st, o) in enumerate(pairs):
            a(f'v_pk_mul_f32 {P(tmp+2*i)}, {P(ac)}, {P(ac)}')
        for i, (ac, cs, st, o) in enumerate(pairs):
            a(f'v_pk_fma_f32 {P(tmp+2*i)}, {P(tmp+2*i)}, {P(st+2)}, {P(st)} op_sel:[0,0,1] op_sel_hi:[1,0,1]')
        for i, (ac, cs, st, o) in enumerate(pairs):
            a(f'v_pk_mul_f32 {P(tmp+2*i)}, {P(tmp+2*i)}, {P(ac)}')
        for i in range(2 * len(pairs)):
            a(f'v_exp_f32_e64 v{tmp+i}, v{tmp+i}')
        for i, (ac, cs, st, o) in enumerate(pairs):
            a(f'v_pk_fma_f32 {P(tmp+2*i)}, {P(tmp+2*i)}, {P(st+2)}, {P(st+2)} op_sel:[0,1,1] op_sel_hi:[1,1,1]')
        for i in range(2 * len(pairs)):
            a(f'v_rcp_f32_e64 v{tmp+i}, v{tmp+i}')
        for i, (ac, cs, st, o) in enumerate(pairs):
            a(f'v_pk_mul_f32 {P(tmp+2*i)}, {P(tmp+2*i)}, {P(ac)}')
        for i, (ac, cs, st, o) in enumerate(pairs):
            a(f'v_cvt_pk_bf16_f32 v{o}, v{tmp+2*i}, v{tmp+2*i+1}')

    def phi_tail(self, a, acs, outs, tmp):
        P = lambda r: vr(r, 2)
        n = len(acs)
        for i in range(2 * n): a(f'v_exp_f32_e64 v{tmp+i}, v{tmp+i} clamp')
        for ac in acs:
            a(f'v_max_f32_e64 v{ac}, v{ac}, s{sEPS}\nv_max_f32_e64 v{ac+1}, v{ac+1}, s{sEPS}')
        for i, ac in enumerate(acs): a(f'v_pk_add_f32 {P(ac)}, {P(ac)}, {P(tmp+2*i)}')
        for i, ac in enumerate(acs): a(f'v_cvt_pk_bf16_f32 v{outs[i]}, v{ac}, v{ac+1}')

    def compute(self, a):
        opt = self.opt
        P = lambda r: vr(r, 2)
        XB = [2, 3, 4, 5]; PAT16, WK16 = 6, 7
        PATN = [8, 9]; PATP = [10, 11, 12, 13]; PAT3 = [14, 15]
        WK = [16, 17, 18, 19]
        CELLV, CELLT, LL16, RDX = 20, 21, 22, 23
        RES = 24; QST = 40; PST = 196
        ONES = 56
        STA, STB, XE, PSA = 1, 54, 19, 18
        HV = [252, 253, 254, 255]
        T = [240 + i for i in range(12)]
        q, i16, rr, c, h, t32, fsub = 228, 229, 230, 231, 232, 233, 234
        a(f'v_lshrrev_b32 v{q}, 4, v0\nv_and_b32 v{i16}, 15, v0\nv_lshrrev_b32 v{rr}, 2, v{i16}\nv_and_b32 v{c}, 3, v0')
        a(f'v_lshrrev_b32 v{h}, 5, v0\nv_and_b32 v{t32}, 31, v0\nv_and_b32 v{fsub}, 1, v{q}')
        a(f'v_lshlrev_b32 v{LL16}, 4, v0')
        a(f'v_lshlrev_b32 v{T[2]}, 3, v0')
        a(f's_lshr_b32 s{sT3}, s2, 3\ns_lshl_b32 s{sT3}, s{sT3}, 2\ns_add_u32 s{sT3}, s{sT3}, s{sW}\ns_lshl_b32 s{sT3}, s{sT3}, 9')
        a(f's_getpc_b64 s[{sCODE}:{sCODE+1}]\nL_pc:\ns_sub_u32 s{sCODE}, s{sCODE}, L_pc-{KNAME}\ns_subb_u32 s{sCODE+1}, s{sCODE+1}, 0')
        a(f's_and_b32 s{sCODE+1}, s{sCODE+1}, 0xffff\ns_mov_b32 s{sCODE+2}, L_end-{KNAME}\ns_mov_b32 s{sCODE+3}, 0x20000')
        if opt.get('cpf', 1): a(f'buffer_load_dword v24, v{T[2]}, {srd(sCODE)}, s{sT3} offen')
        if opt.get('t0', 0):
            a(f's_lshl_b32 s{sT0}, s{sR}, 3\ns_add_u32 s{sT0}, s{sT0}, s{sJ}\ns_lshl_b32 s{sT0}, s{sT0}, 2\ns_add_u32 s{sT0}, s{sT0}, s{sW}\ns_lshl_b32 s{sT2}, s{sT0}, 9\ns_lshl_b32 s{sT0}, s{sT0}, 11')
            a(f'v_lshlrev_b32 v{T[3]}, 5, v0\ns_mov_b32 s{sW1+2}, {512*1024}\ns_mov_b32 s{sW1+3}, 0x20000')
        a('s_waitcnt lgkmcnt(0)')
        if opt.get('t0', 0):
            a(f's_mov_b32 s{sX}, s4\ns_and_b32 s{sX+1}, s5, 0xffff\nbuffer_load_dword v25, v{T[3]}, {srd(sX)}, s{sT0} offen')
            a(f's_mov_b32 s{sW1}, s12\ns_and_b32 s{sW1+1}, s13, 0xffff\nbuffer_load_dword v26, v{T[2]}, {srd(sW1)}, s{sT2} offen')
        self.srds(a)
        a(f's_lshr_b32 s{sT0}, s{sR}, 2\ns_or_b32 s{sT0}, s{sT0}, s{sW}\ns_cmp_lg_u32 s{sT0}, 0\ns_cbranch_scc1 L_nozero')
        vm0 = list(a.vm)
        a(f'v_mov_b32 v{T[4]}, 0\nv_mov_b32 v{T[5]}, 0\nv_mov_b32 v{T[6]}, 0\nv_mov_b32 v{T[7]}, 0')
        a(f's_lshl_b32 s{sT3}, s{sJ}, 2\ns_add_u32 s{sT3}, s{sT3}, s{sR}')
        a(f's_lshl_b32 s{sT0}, s{sT3}, 10\ns_add_u32 s{sT0}, s{sT0}, {CF_OFF}')
        a(f'buffer_store_dwordx4 {vr(T[4],4)}, v{LL16}, {srd(sWS)}, s{sT0} offen sc1')
        a(f's_lshl_b32 s{sT0}, s{sJ}, 18\ns_lshl_b32 s{sT2}, s{sR}, 13\ns_add_u32 s{sT0}, s{sT0}, s{sT2}\ns_add_u32 s{sT0}, s{sT0}, {KV_OFF}\ns_add_u32 s{sT2}, s{sT0}, 4096')
        for u in range(0 if opt.get('kv2', 0) else 5):
            a(f'buffer_store_dwordx4 {vr(T[4],4)}, v{LL16}, {srd(sWS)}, s{sT0 if u < 4 else sT2} offen offset:{(u&3)*1024} sc1')
        a(f'v_lshlrev_b32 v{T[8]}, 12, v{q}\nv_lshl_add_u32 v{T[8]}, v{i16}, 3, v{T[8]}')
        a(f's_lshl_b32 s{sT0}, s{sT3}, 7\ns_add_u32 s{sT0}, s{sT0}, {FL_OFF}')
        a(f'buffer_store_dwordx2 {vr(T[4],2)}, v{T[8]}, {srd(sWS)}, s{sT0} offen sc1\ns_add_u32 s{sT0}, s{sT0}, 16384')
        a(f'buffer_store_dwordx2 {vr(T[4],2)}, v{T[8]}, {srd(sWS)}, s{sT0} offen sc1')
        a(f'v_mov_b32 v{T[9]}, 1\ns_lshl_b32 s{sT0}, s{sT3}, 2\nv_mov_b32 v{T[10]}, s{sT0}')
        a.wait_vm0()
        a('s_mov_b64 exec, 1')
        a(f'buffer_store_dword v{T[9]}, v{T[10]}, {srd(sDBG)}, 0 offen sc1')
        a('s_mov_b64 exec, -1')
        a('L_nozero:')
        a.vm = vm0
        a(f'v_mov_b32 v{T[1]}, {OOB}')
        for m in range(4):
            a(f'v_or_b32 v{T[0]}, {4*m}, v{q}\nv_xor_b32 v{T[0]}, v{T[0]}, v{i16}\nv_lshlrev_b32 v{T[0]}, 4, v{T[0]}')
            a(f'v_lshl_add_u32 v{XB[m]}, v{i16}, 8, v{T[0]}')
        a(f'v_lshrrev_b32 v{T[4]}, 1, v{rr}\nv_lshlrev_b32 v{T[4]}, 2, v{T[4]}\nv_lshrrev_b32 v{T[5]}, 1, v{c}')
        a(f'v_and_b32 v{T[6]}, 1, v{c}\nv_lshlrev_b32 v{T[6]}, 3, v{T[6]}')
        a(f's_lshl_b32 s{sT0}, s{sW}, 1\nv_add_u32 v{T[7]}, s{sT0}, v{T[5]}\nv_xor_b32 v{T[7]}, v{T[7]}, v{T[4]}')
        a(f'v_lshlrev_b32 v{T[8]}, 1, v{fsub}\nv_xor_b32 v{T[7]}, v{T[7]}, v{T[8]}\nv_lshl_add_u32 v{T[7]}, v{T[7]}, 4, v{T[6]}')
        a(f'v_lshl_add_u32 v{T[9]}, v{q}, 3, v{rr}\nv_lshl_add_u32 v{PAT16}, v{T[9]}, 7, v{T[7]}')
        a(f's_lshl_b32 s{sT0}, s{sHI}, 2\nv_add3_u32 v{T[7]}, s{sT0}, v{T[8]}, v{T[5]}\nv_xor_b32 v{T[7]}, v{T[7]}, v{T[4]}')
        a(f's_lshl_b32 s{sT2}, s{sHI}, 13')
        a(f'v_lshlrev_b32 v{T[9]}, 1, v{h}\nv_xor_b32 v{T[9]}, v{T[9]}, v{T[7]}\nv_lshl_add_u32 v{T[9]}, v{T[9]}, 4, v{T[6]}')
        a(f'v_lshl_add_u32 v{T[10]}, v{h}, 3, v{rr}\nv_lshl_add_u32 v{T[9]}, v{T[10]}, 7, v{T[9]}')
        a(f'v_add_u32 v{PATN[0]}, s{sT2}, v{T[9]}\nv_xor_b32 v{PATN[1]}, 64, v{PATN[0]}')
        a(f'v_lshl_add_u32 v{T[9]}, v{T[7]}, 4, v{T[6]}\nv_lshl_add_u32 v{T[10]}, v{h}, 2, v{rr}\nv_lshl_add_u32 v{PAT3[0]}, v{T[10]}, 7, v{T[9]}')
        a(f'v_xor_b32 v{PAT3[1]}, 32, v{PAT3[0]}\nv_add_u32 v{PAT3[1]}, 1024, v{PAT3[1]}')
        a(f'v_add_u32 v{PATP[0]}, s{sT2}, v{PAT3[0]}\nv_add_u32 v{PATP[1]}, s{sT2}, v{PAT3[1]}')
        a(f'v_xor_b32 v{PATP[2]}, 64, v{PATP[0]}\nv_xor_b32 v{PATP[3]}, 64, v{PATP[1]}')
        a(f'v_lshlrev_b32 v{CELLV}, 10, v{h}\nv_lshl_add_u32 v{CELLV}, v{t32}, 4, v{CELLV}')
        a(f's_lshl_b32 s{sT0}, s{sTH}, 9\nv_add_u32 v{CELLT}, s{sT0}, v{CELLV}')
        for i in range(4): a(f'v_mov_b32 v{ONES+i}, s{sONE}')
        a(f's_lshl_b32 s{sT0}, s{sTH}, 5\nv_add_u32 v{T[0]}, s{sT0}, v{t32}')
        a(f's_lshl_b32 s{sT2}, s{sHI}, 13\nv_lshl_add_u32 v{T[2]}, v{h}, 10, s{sT2}')
        rot = opt.get('rot', 1)
        for g in range(4):
            if rot: a(f's_add_u32 s{sT0}, s{sROT}, {g}\ns_and_b32 s{sT0}, s{sT0}, 3')
            else: a(f's_mov_b32 s{sT0}, {g}')
            a(f's_lshl_b32 s{sKC+g}, s{sT0}, 14\ns_lshr_b32 s{sT3}, s{sT0}, 1\ns_add_u32 s{sT3}, s{sT3}, 1\ns_sub_u32 s{sT4}, 0, s{sT3}\ns_bitcmp1_b32 s{sT0}, 0\ns_cselect_b32 s{sT3}, s{sT3}, s{sT4}')
            a(f'v_add_u32 v{T[3]}, s{sT3}, v{T[0]}\nv_ashrrev_i32 v{T[4]}, 6, v{T[3]}\nv_add_u32 v{T[4]}, s{sR}, v{T[4]}')
            if opt.get('ssh', 0): a(f'v_lshl_add_u32 v{T[3]}, v{T[0]}, 4, v{T[2]}\ns_lshl_b32 s{sT3}, s{sR}, 16\ns_add_u32 s{sT3}, s{sT3}, s{sKC+g}\nv_add_u32 v{T[3]}, s{sT3}, v{T[3]}')
            else: a(f'v_and_b32 v{T[3]}, 63, v{T[3]}\nv_lshl_add_u32 v{T[3]}, v{T[3]}, 4, v{T[2]}\nv_lshl_add_u32 v{T[3]}, v{T[4]}, 16, v{T[3]}\nv_add_u32 v{T[3]}, s{sKC+g}, v{T[3]}')
            a(f'v_cmp_gt_u32 vcc, 32, v{T[4]}\nv_cndmask_b32 v{HV[g]}, v{T[1]}, v{T[3]}, vcc')
        HS = [26, 27]
        if opt.get('ssh', 0):
            a(f's_lshr_b32 s{sT0}, s{sJ}, 1\ns_lshr_b32 s{sT3}, s{sT0}, 1\ns_add_u32 s{sT3}, s{sT3}, 1\ns_sub_u32 s{sT4}, 0, s{sT3}\ns_bitcmp1_b32 s{sT0}, 0\ns_cselect_b32 s{sT3}, s{sT4}, s{sT3}')
            for pr in range(2):
                a(f'v_add_u32 v{T[3]}, s{sT3}, v{t32}')
                if pr: a(f'v_add_u32 v{T[3]}, 32, v{T[3]}')
                a(f'v_ashrrev_i32 v{T[4]}, 6, v{T[3]}\nv_add_u32 v{T[4]}, s{sR}, v{T[4]}\nv_and_b32 v{T[3]}, 63, v{T[3]}\nv_lshlrev_b32 v{T[3]}, 4, v{T[3]}')
                a(f'v_lshl_add_u32 v{T[3]}, v{h}, 10, v{T[3]}\nv_lshl_add_u32 v{T[3]}, v{T[4]}, 16, v{T[3]}\nv_cmp_gt_u32 vcc, 32, v{T[4]}\nv_cndmask_b32 v{HS[pr]}, v{T[1]}, v{T[3]}, vcc')
        a(f'v_lshlrev_b32 v{STA}, 4, v{i16}\nv_add_u32 v{STA}, {SC}, v{STA}')
        a(f'v_lshlrev_b32 v{STB}, 4, v{q}\nv_add_u32 v{STB}, {NMU}, v{STB}')
        a(f'v_lshlrev_b32 v{PSA}, 4, v{T[0]}\nv_add_u32 v{PSA}, {S2}, v{PSA}')
        a(f's_and_b32 s{sT0}, s{sJ}, 1\ns_lshl_b32 s{sT0}, s{sT0}, 3\ns_lshl_b32 s{sT2}, s{sHI}, 2\ns_add_u32 s{sT0}, s{sT0}, s{sT2}')
        a(f's_lshr_b32 s{sT2}, s{sJ}, 1\ns_sub_u32 s{sT2}, s{sT2}, s{sROT}\ns_and_b32 s{sT2}, s{sT2}, 3\ns_lshl_b32 s{sT2}, s{sT2}, 14')
        a(f'v_xor_b32 v{XE}, s{sT0}, v{i16}\nv_lshlrev_b32 v{XE}, 4, v{XE}\nv_lshl_add_u32 v{XE}, v{h}, 3, v{XE}\nv_lshl_add_u32 v{XE}, v{T[0]}, 8, v{XE}\nv_add_u32 v{XE}, s{sT2}, v{XE}')
        a(f's_xor_b32 s{sT0}, s{sW}, 2\ns_lshl_b32 s{sT0}, s{sT0}, 12\ns_add_u32 s{sT0}, s{sT0}, {SC}\nv_add_u32 v{RDX}, s{sT0}, v{LL16}')
        a(f's_lshl_b32 s{sA}, s{sR}, 16')
        a(f's_lshl_b32 s{sT0}, s{sJ}, 2\ns_add_u32 s{sT0}, s{sT0}, s{sW}\ns_lshl_b32 s{sT0}, s{sT0}, 11')
        a(f's_mov_b32 s{sB}, s{sT0}' if opt.get('ssh', 0) else f's_add_u32 s{sB}, s{sA}, s{sT0}')
        if opt.get('kv2', 0): a(f's_mul_i32 s{sT0}, s{sR}, {KVP}')
        else: a(f's_and_b32 s{sT0}, s{sR}, 3\ns_lshl_b32 s{sT0}, s{sT0}, 13')
        a(f's_lshl_b32 s{sC}, s{sJ}, 18\ns_add_u32 s{sC}, s{sC}, s{sT0}\ns_add_u32 s{sC}, s{sC}, {KV_OFF}')
        a(f's_mul_i32 s{sD}, s{sR}, {GBLK}\ns_add_u32 s{sD}, s{sD}, {G_OFF}')

        def cst(k):
            if opt.get('prof') in (1, 2) and opt.get('cset', 0) == k // 8: a(f's_memrealtime s[{4+2*(k%8)}:{5+2*(k%8)}]')
        def stage_pre(st, wks, pats, extra=None, after=None):
            def f():
                for wk, pt in zip(wks, pats):
                    a(f'v_add_u32 v{wk}, {SLOT[st]}, v{pt}')
                if extra: extra()
                self.barC(a, f'B{st}')
                if after: after()
            return f

        def steps_q(first, acc, cs, sets, base_at):
            st = []
            for ks in range(16):
                sb = sets[ks % 3]; stg = first + ks // 4
                reads = [f'ds_read_b64_tr_b16 {vr(sb+16,2)}, v{WK16} offset:{(ks%4)*4096}',
                         f'ds_read_b64_tr_b16 {vr(sb+18,2)}, v{WK16} offset:{(ks%4)*4096+512}']
                reads += [f'ds_read_b128 {vr(sb+4*tt,4)}, v{XB[ks&3]} offset:{tt*4096+(ks>>2)*16384}' for tt in range(4)]
                mf = [f'v_mfma_f32_16x16x32_bf16 {vr(cs,4)}, {vr(sb+16,4)}, {vr(ONES,4)}, {vr(cs,4) if ks else 0}']
                mf += [f'v_mfma_f32_16x16x32_bf16 {vr(acc+4*tt,4)}, {vr(sb+16,4)}, {vr(sb+4*tt,4)}, {vr(acc+4*tt,4) if ks else 0}' for tt in range(4)]
                st.append(dict(reads=reads, mfmas=mf, at=base_at + ks - 2, stage=stg if ks % 4 == 0 else None))
            return st

        HACC, HCS, HSETS = 60, 76, [80, 100, 120]
        KACC, VACC, KCS, VCS, KSETS = 140, 156, 172, 176, [180, 204]
        ovl = opt.get('ovl', 0)
        HF = 60; P2ACC = 180 if ovl else 140
        steps = steps_q(0, HACC, HCS, HSETS, 0)
        steps[0]['at'] = -1; steps[1]['at'] = -1
        for s in steps:
            if s['stage'] is not None: s['pre'] = stage_pre(s['stage'], [WK16], [PAT16])
        nh = len(steps)

        htok = {}
        HST = 80
        def h_stats_reads():
            for tt in range(4):
                htok['s'] = a(f'ds_read_b128 {vr(228+4*tt,4)}, v{STA} offset:{tt*256}')
        def h_epilogue():
            ST = 228; TMP = 100; OUT = 116
            a.wait_lg(htok['s'])
            pairs = [(HACC + 2*u, HCS + 2*(u & 1), ST + 4*(u >> 1), OUT + u) for u in range(8)]
            self.gelu(a, pairs, TMP)
            for pr in range(2):
                a(f'v_permlane16_swap_b32 v{OUT+4*pr}, v{OUT+4*pr+2}\nv_permlane16_swap_b32 v{OUT+4*pr+1}, v{OUT+4*pr+3}')
                htok['st'] = a(f'buffer_store_dwordx4 {vr(OUT+4*pr,4)}, v{HS[pr]}, {srd(sWS)}, s{sB} offen sc1' if opt.get('ssh', 0) else f'buffer_store_dwordx4 {vr(OUT+4*pr,4)}, v{CELLV}, {srd(sWS)}, s{sB} offen offset:{pr*512} sc1')
            cst(0)

        hl = {}; xp = {}
        HX = 196; x2 = {}
        def hload(n):
            sg, i = n // 4, n % 4
            if n >= 16:
                if n == 16: a(f'v_xor_b32 v{HV[0]}, 8192, v{HV[3]}')
                if i % 2 == 0: a(f's_mov_b32 s{sI0}, {H_OFF + (i>>1)*4096}')
                hl[n] = a(f'buffer_load_dwordx4 {vr(HX+4*i,4)}, v{HV[0]}, {srd(sWS)}, s{sI0} offen offset:{(i&1)*2048} sc1')
                return
            if i % 2 == 0: a(f's_mov_b32 s{sI0}, {H_OFF + (i>>1)*4096}')
            hl[n] = a(f'buffer_load_dwordx4 {vr(HF+4*n,4)}, v{HV[sg]}, {srd(sWS)}, s{sI0} offen offset:{(i&1)*2048} sc1')
        for ks in range(16):
            sb = KSETS[ks % 2]; stg = 4 + ks // 2
            o = (ks % 2) * 4096
            reads = [f'ds_read_b64_tr_b16 {vr(sb+16,2)}, v{WK16} offset:{o}', f'ds_read_b64_tr_b16 {vr(sb+18,2)}, v{WK16} offset:{o+512}',
                     f'ds_read_b128 {vr(sb,4)}, v{XB[ks&3]} offset:{(ks>>2)*16384}',
                     f'ds_read_b64_tr_b16 {vr(sb+20,2)}, v{WK16} offset:{o+8192}', f'ds_read_b64_tr_b16 {vr(sb+22,2)}, v{WK16} offset:{o+8192+512}']
            reads += [f'ds_read_b128 {vr(sb+4*tt,4)}, v{XB[ks&3]} offset:{tt*4096+(ks>>2)*16384}' for tt in range(1, 4)]
            mf = [f'v_mfma_f32_16x16x32_bf16 {vr(KCS,4)}, {vr(ONES,4)}, {vr(sb+16,4)}, {vr(KCS,4) if ks else 0}',
                  f'v_mfma_f32_16x16x32_bf16 {vr(VCS,4)}, {vr(ONES,4)}, {vr(sb+20,4)}, {vr(VCS,4) if ks else 0}']
            for tt in range(4):
                mf.append(f'v_mfma_f32_16x16x32_bf16 {vr(KACC+4*tt,4)}, {vr(sb+4*tt,4)}, {vr(sb+16,4)}, {vr(KACC+4*tt,4) if ks else 0}')
                mf.append(f'v_mfma_f32_16x16x32_bf16 {vr(VACC+4*tt,4)}, {vr(sb+4*tt,4)}, {vr(sb+20,4)}, {vr(VACC+4*tt,4) if ks else 0}')
            s = dict(reads=reads, mfmas=mf, at=nh + ks - 1)
            if ks % 2 == 0:
                extra = after = None
                if stg == opt.get('fh_bar', 6): extra = lambda: (a.wait_vm(htok['st']), cst(1))
                if stg == opt.get('hl_bar', 11): after = lambda: a.inject([lambda n=n: hload(n) for n in range(16)], opt.get('hl_every', 16))
                if stg == 4: after = h_stats_reads
                if stg == opt.get('xn_bar', 11) - 1: after = lambda o=after: ((o() if o else None), xn_prep())
                if stg == opt.get('xn_bar', 11): extra = lambda: xn_prep2()
                s['pre'] = stage_pre(stg, [WK16], [PAT16], extra, after)
            steps.append(s)
        kr0, kp0 = steps[nh]['reads'], steps[nh]['pre']
        steps[nh]['reads'] = []; steps[nh]['pre'] = None
        def h_hook():
            kp0()
            for t in kr0: steps[nh]['tok'] = a(t)
            h_epilogue()
        steps[nh]['hook'] = h_hook
        nkv = len(steps)

        ASETS = [228, 236, 244]
        def steps_ks(first, nstage, pats, natural, acc, bfrag, asets, base, setphase=0, init=True, c_init=None):
            st = []
            for n in range(4 * nstage):
                stg = first + n // 4; i = n % 4
                sb = asets[(n + setphase) % 3]
                reads = []
                for t in range(2):
                    for rd in range(2):
                        if natural:
                            reads.append(f'ds_read_b64_tr_b16 {vr(sb+4*t+2*rd,2)}, v{WK[t]} offset:{i*2048+rd*512}')
                        else:
                            reads.append(f'ds_read_b64_tr_b16 {vr(sb+4*t+2*rd,2)}, v{WK[2*t+rd]} offset:{i*2048}')
                b = bfrag(n)
                c0 = vr(acc if (n or c_init is None) else c_init, 16)
                c1 = vr(acc + 16, 16) if (n or not init) else 0
                mf = [f'v_mfma_f32_32x32x16_bf16 {vr(acc,16)}, {vr(sb,4)}, {vr(b,4)}, {c0}',
                      f'v_mfma_f32_32x32x16_bf16 {vr(acc+16,16)}, {vr(sb+4,4)}, {vr(b,4)}, {c1}']
                s = dict(reads=reads, mfmas=mf, at=base + n - 2)
                if i == 0: s['pre'] = stage_pre(stg, WK[:len(pats)], pats)
                st.append(s)
            return st

        p2 = steps_ks(12, 4, PATN, True, P2ACC, lambda n: HF + 4 * n, ASETS, nkv, c_init=124)
        p2[0]['at'] = nkv - 1; p2[1]['at'] = nkv - 1
        if opt.get('hl_bar', 11) == 12:
            p2[0]['pre'] = (lambda o=p2[0]['pre']: (o(), a.inject([lambda n=n: hload(n) for n in range(16)], opt.get('hl_every', 16))))
        XN = 124
        def xn_prep():
            XR = 228
            a(f'v_xor_b32 v{XR+8}, 16, v{XE}\nv_xor_b32 v{XR+9}, 32, v{XE}\nv_xor_b32 v{XR+10}, 48, v{XE}')
            a(f'ds_read_b64 {vr(XR,2)}, v{XE}')
            for g in range(1, 4): a(f'ds_read_b64 {vr(XR+2*g,2)}, v{XR+7+g}')
            xp['t'] = a(f'ds_read_b64 {vr(XR+12,2)}, v{PSA}')
        def xn_prep2():
            XR = 228
            a.wait_lg(xp['t'])
            for g in range(4):
                for d in range(2):
                    a(f'v_lshlrev_b32 v{RES+4*g+2*d}, 16, v{XR+2*g+d}\nv_and_b32 v{RES+4*g+2*d+1}, 0xffff0000, v{XR+2*g+d}')
            a(f'v_mul_f32 v{XR+12}, v{XR+12}, v{XR+13}')
            for u in range(16): a(f'v_fma_f32 v{XN+u}, v{RES+u}, v{XR+13}, v{XR+12}')
        def kv_epilogue():
            cst(16)
            SN, SR_, SL = 180, 196, 212
            for tt in range(4): a(f'ds_read_b128 {vr(SN+4*tt,4)}, v{STB} offset:{tt*64}')
            for tt in range(4): tk1 = a(f'ds_read_b128 {vr(SL+4*tt,4)}, v{STB} offset:{tt*64+512}')
            for tt in range(4): tk = a(f'ds_read_b128 {vr(SR_+4*tt,4)}, v{STB} offset:{tt*64+256}')
            a.wait_lg(tk1)
            for u in range(8):
                a(f'v_pk_fma_f32 {P(KACC+2*u)}, {P(SN+2*u)}, {P(KCS)}, {P(KACC+2*u)} op_sel_hi:[1,0,1]')
            for u in range(8):
                a(f'v_pk_fma_f32 {P(VACC+2*u)}, {P(SN+2*u)}, {P(VCS)}, {P(VACC+2*u)} op_sel_hi:[1,0,1]')
            for u in range(8):
                a(f'v_pk_mul_f32 {P(SL+2*u)}, {P(SL+2*u)}, {P(KACC+2*u)}')
            a.wait_lg(tk)
            for tt in range(4):
                a(f'ds_read_b128 {vr(QST+4*tt,4)}, v{STA} offset:{1024+tt*256}')
            for u in range(8):
                a(f'v_pk_fma_f32 {P(KACC+2*u)}, {P(KACC+2*u)}, {P(SR_+2*u)}, s[{sEPS}:{sEPS+1}]')
            for u in range(8):
                a(f'v_pk_mul_f32 {P(VACC+2*u)}, {P(VACC+2*u)}, {P(SR_+2*u)}')
            cst(17)
            PKR, PVR = (164, 156) if ovl else (180, 188)
            for u in range(8): a(f'v_cvt_pk_bf16_f32 v{PVR+u}, v{VACC+2*u}, v{VACC+2*u+1}')
            KVA, ZA = 172, 176
            XR = 140 if ovl else 196
            def rest():
                if ovl:
                    for i in range(16): a(f'v_exp_f32_e64 v{SL+i}, v{SL+i} clamp\nv_max_f32_e64 v{KACC+i}, v{KACC+i}, s{sEPS}')
                    for i in range(16): a(f'v_add_f32_e64 v{KACC+i}, v{KACC+i}, v{SL+i}')
                    for u in range(8): a(f'v_cvt_pk_bf16_f32 v{PKR+u}, v{KACC+2*u}, v{KACC+2*u+1}')
                else:
                    self.phi_tail(a, [KACC + 2*u for u in range(8)], [PKR + u for u in range(8)], SL)
                cst(18)
                a(f'v_and_b32 v{XR+3}, 15, v0\nv_lshrrev_b32 v{XR+4}, 4, v0')
                a(f'v_mfma_f32_16x16x32_bf16 {vr(ZA,4)}, {vr(PKR,4)}, {vr(ONES,4)}, 0')
                a(f'v_mfma_f32_16x16x32_bf16 {vr(KVA,4)}, {vr(PVR,4)}, {vr(PKR,4)}, 0')
                a(f'v_mfma_f32_16x16x32_bf16 {vr(ZA,4)}, {vr(PKR+4,4)}, {vr(ONES,4)}, {vr(ZA,4)}')
                a(f'v_mfma_f32_16x16x32_bf16 {vr(KVA,4)}, {vr(PVR+4,4)}, {vr(PKR+4,4)}, {vr(KVA,4)}')
                a(f'v_lshlrev_b32 v{XR+2}, 8, v{XR+4}\nv_lshl_add_u32 v{XR+2}, v{XR+3}, 2, v{XR+2}')
                if opt.get('kv2', 0): a(f'v_lshlrev_b32 v{XR+2}, 2, v0')
                a(f'v_lshl_add_u32 v{XR+4}, v{XR+4}, 2, v{XR+3}\nv_lshlrev_b32 v{XR+4}, 2, v{XR+4}')
                a(f'v_mov_b32 v{XR+5}, {OOB}\nv_cmp_gt_u32 vcc, 4, v{XR+3}\nv_cndmask_b32 v{XR+4}, v{XR+5}, v{XR+4}, vcc')
                for k in range(1, 4): a(f'v_cmp_eq_u32 vcc, {k}, v{XR+3}\nv_cndmask_b32 v{ZA}, v{ZA}, v{ZA+k}, vcc')
            def atomics():
                a(f's_lshl_b32 s{sT3}, s{sW}, 10\ns_add_u32 s{sT3}, s{sT3}, s{sC}\ns_lshl_b32 s{sT4}, s{sW}, 6\ns_add_u32 s{sT4}, s{sT4}, s{sC}\ns_add_u32 s{sT4}, s{sT4}, {KV_Z}')
                for k in range(4):
                    a(f'buffer_store_dword v{KVA+k}, v{XR+2}, {srd(sWS)}, s{sT3} offen offset:{k*256} sc1' if opt.get('kv2', 0) else f'buffer_atomic_add_f32 v{KVA+k}, v{XR+2}, {srd(sWS)}, s{sT3} offen offset:{k*64}')
                htok['kv'] = a(f'buffer_store_dword v{ZA}, v{XR+4}, {srd(sWS)}, s{sT4} offen sc1' if opt.get('kv2', 0) else f'buffer_atomic_add_f32 v{ZA}, v{XR+4}, {srd(sWS)}, s{sT4} offen')
            htok['atomics'] = atomics
            if ovl:
                a.flush_inject()
                lines = a.record(rest)
                per = opt.get('ovl_n', 4)
                k = 0
                for st_ in p2:
                    tl = []
                    for _ in range(2):
                        part = lines[k:k + per]; k += per
                        tl.append((lambda part=part: a('\n'.join(part))) if part else None)
                    st_['tail'] = tl
                assert k >= len(lines)
                if opt.get('atp', 0) == 0: p2[(len(lines) // (2 * per)) + 1]['post'] = [atomics]
            else:
                rest()
                a.flush_inject()
                cst(19)
                if opt.get('x_noat', 0): htok['kv'] = None
                else: atomics()
        p2[0]['hook'] = kv_epilogue
        if opt.get('kv2', 0):
            kb = 4 * (opt.get('fa_bar', 15) - 12)
            okb = p2[kb]['pre']
            p2[kb]['pre'] = lambda: (a.wait_vm(htok['kv']), okb())
        for n, s in enumerate(p2):
            s['vm'] = (lambda n=n: hl[n])
            if n in (1, 8, 15): s['hook'] = (lambda n=n: cst({1: 20, 8: 21, 15: 22}[n]))
        steps += p2
        np2 = len(steps)

        qs = steps_q(16, HACC, HCS, HSETS, np2)
        x1tok = {}
        for s in qs:
            if s['stage'] is not None:
                extra = None
                if s['stage'] == opt.get('fx_bar', 17): extra = lambda: (a.wait_vm(x1tok['st']), cst(3))
                s['pre'] = stage_pre(s['stage'], [WK16], [PAT16], extra)
        qr0, qr1 = qs[0]['reads'], qs[1]['reads']
        qs[0]['reads'] = []; qs[1]['reads'] = []; qs[0]['pre'] = None
        qs[0]['at'] = np2; qs[1]['at'] = np2
        def exchange(acc, rcv, nb, between=None):
            a(f'v_xor_b32 v{rcv}, 8192, v{RDX}')
            for g in range(4):
                a(f'ds_write_b128 v{rcv}, {vr(acc+16+4*g,4)} offset:{g*1024}')
            if between: between()
            a.wait_lg0()
            self.barC(a, nb)
            return [a(f'ds_read_b128 {vr(rcv+4*g,4)}, v{RDX} offset:{g*1024}') for g in range(4)]
        def unsplit_last(st, acc, rcv, nb, stg, natural, asets, phase, own, oth, xt):
            n0 = len(st) - 4
            pats = [PATN[0]] if natural else PATP[:2]
            def pre(o=st[n0].get('extra')):
                if o: o()
                self.barC(a, f'B{stg}')
                for k, pt in enumerate(pats):
                    a(f'v_add_u32 v{WK[k]}, {SLOT[stg]}, v{pt}\nv_xor_b32 v{WK[2+k]}, 8192, v{WK[k]}')
            st[n0]['pre'] = pre
            for i in range(4):
                s = st[n0 + i]; sb = asets[(n0 + i + phase) % 3]
                s['reads'] = []
                for u in range(2):
                    for rd in range(2):
                        if natural: s['reads'].append(f'ds_read_b64_tr_b16 {vr(sb+4*u+2*rd,2)}, v{WK[2*u]} offset:{i*2048+rd*512}')
                        else: s['reads'].append(f'ds_read_b64_tr_b16 {vr(sb+4*u+2*rd,2)}, v{WK[2*u+rd]} offset:{i*2048}')
                s['mfmas'] = [f'v_mfma_f32_32x32x16_bf16 {vr(acc,16)}, {vr(sb,4)}, {vr(own(i),4)}, {vr(acc,16)}',
                              f'v_mfma_f32_32x32x16_bf16 {vr(acc,16)}, {vr(sb+4,4)}, {vr(oth(i),4)}, {vr(acc,16)}']
            wt = {}
            def wr(g):
                if g == 0: a(f'v_xor_b32 v{rcv}, 8192, v{RDX}')
                wt[g] = a(f'ds_write_b128 v{rcv}, {vr(acc+16+4*g,4)} offset:{g*1024}')
            st[n0]['tail'] = [None, lambda: (wr(0), wr(1))]
            st[n0 + 1]['tail'] = [lambda: wr(2), lambda: wr(3)]
            def sync():
                a.wait_lg(wt[3])
                self.barC(a, nb)
                xt['tk'] = [a(f'ds_read_b128 {vr(rcv+4*g,4)}, v{RDX} offset:{g*1024}') for g in range(4)]
            st[n0 + 3]['tail'] = [sync, None]
        def p2_epilogue():
            RCV, OUT, SS = (60, 76, 84) if ovl else (180, 196, 204)
            cst(23)
            def between():
                a(f's_lshl_b32 s{sT2}, s{sJ}, 1\ns_add_u32 s{sT2}, s{sT2}, s{sHI}\ns_lshl_b32 s{sT0}, s{sT2}, 12\ns_add_u32 s{sT0}, s{sT0}, s{sA}\ns_add_u32 s{sT0}, s{sT0}, {X1_OFF}')
                a(f's_lshl_b32 s{sT2}, s{sT2}, 9\ns_lshl_b32 s{sT3}, s{sR}, 13\ns_add_u32 s{sT2}, s{sT2}, s{sT3}\ns_lshl_b32 s{sT3}, s{sTH}, 8\ns_add_u32 s{sT2}, s{sT2}, s{sT3}\ns_add_u32 s{sT2}, s{sT2}, {XS_OFF}')
                a(f'v_add_u32 v{WK16}, {SLOT[16]}, v{PAT16}')
                a(f'v_and_b32 v{SS+8}, 31, v0\nv_lshrrev_b32 v{SS+9}, 5, v0\nv_lshlrev_b32 v{SS+9}, 2, v{SS+9}\nv_lshl_add_u32 v{SS+8}, v{SS+8}, 3, v{SS+9}')
            if opt.get('us2', 0):
                between(); tk = x2['tk']
            else: tk = exchange(P2ACC, RCV, 'RB1', between)
            for b in range(2):
                a.wait_lg(tk[2*b+1])
                for u in range(4*b, 4*b+4): a(f'v_pk_add_f32 {P(P2ACC+2*u)}, {P(P2ACC+2*u)}, {P(RCV+2*u)}')
                for u in range(4*b, 4*b+4): a(f'v_cvt_pk_bf16_f32 v{OUT+u}, v{P2ACC+2*u}, v{P2ACC+2*u+1}')
                a(f'buffer_store_dwordx4 {vr(OUT+4*b,4)}, v{CELLT}, {srd(sWS)}, s{sT0} offen offset:{b*2048} sc1')
            a(f'v_pk_add_f32 {P(SS)}, {P(P2ACC)}, {P(P2ACC+2)}\nv_pk_mul_f32 {P(SS+2)}, {P(P2ACC)}, {P(P2ACC)}')
            a(f'v_pk_add_f32 {P(SS+4)}, {P(P2ACC+4)}, {P(P2ACC+6)}\nv_pk_mul_f32 {P(SS+6)}, {P(P2ACC+2)}, {P(P2ACC+2)}')
            for u in range(2, 8):
                k = 4 * (u & 1)
                a(f'v_pk_fma_f32 {P(SS+2+k)}, {P(P2ACC+2*u)}, {P(P2ACC+2*u)}, {P(SS+2+k)}')
                if u >= 4: a(f'v_pk_add_f32 {P(SS+k)}, {P(SS+k)}, {P(P2ACC+2*u)}')
            a(f'v_pk_add_f32 {P(SS)}, {P(SS)}, {P(SS+4)}\nv_pk_add_f32 {P(SS+2)}, {P(SS+2)}, {P(SS+6)}')
            a(f'v_add_f32 v{SS}, v{SS}, v{SS+1}\nv_add_f32 v{SS+2}, v{SS+2}, v{SS+3}')
            a(f'v_permlane32_swap_b32 v{SS}, v{SS+2}\nv_add_f32 v{SS}, v{SS}, v{SS+2}')
            x1tok['st'] = a(f'buffer_store_dword v{SS}, v{SS+8}, {srd(sWS)}, s{sT2} offen sc1')
            cst(2)
            for u in range(8): a(f'v_pk_add_f32 {P(RES+2*u)}, {P(RES+2*u)}, {P(P2ACC+2*u)}')
            if ovl and opt.get('atp', 0) == 1: htok['atomics']()
            if opt.get('fx_bar', 17) == 16:
                a.wait_vm(x1tok['st']); cst(3)
            self.barC(a, 'B16')
            for t in qr0: qs[0]['tok'] = a(t)
            for t in qr1: qs[1]['tok'] = a(t)
        qs[0]['hook'] = p2_epilogue
        if opt.get('us2', 0):
            unsplit_last(p2, P2ACC, 180, 'RB1', 15, True, ASETS, 0, lambda i: HF + 4 * (12 + i), lambda i: HX + 4 * i, x2)
            for n in range(12, 16): p2[n]['vm'] = (lambda n=n: hl[n + 4])
            for n in range(4): p2[2 + n]['post'] = [lambda n=n: hload(16 + n)]
        steps += qs
        nq = len(steps)

        BST = 128; A3 = [60, 68, 76]; ACA, ACB = 84, 100
        GST = 40; GT = 44; CSG = 112
        X1B, CSB, CSB2, HFB = 2, 3, 4, 5
        HP = [6, 7]
        def q_epilogue():
            TMP = 100; OUT = 116; QP = 80
            a.wait_vm(htok['kv'])
            self.barC(a, 'QE')
            for u in range(8):
                a(f'v_pk_fma_f32 {P(HACC+2*u)}, {P(HCS+2*(u&1))}, {P(QST+4*(u>>1))}, {P(HACC+2*u)} op_sel_hi:[1,0,1]')
            for u in range(8):
                a(f'v_pk_mul_f32 {P(TMP+2*u)}, {P(HACC+2*u)}, {P(QST+4*(u>>1)+2)} op_sel_hi:[1,0]')
            for u in range(8):
                a(f'v_pk_fma_f32 {P(HACC+2*u)}, {P(HACC+2*u)}, {P(QST+4*(u>>1))}, s[{sEPS}:{sEPS+1}] op_sel:[0,1,0] op_sel_hi:[1,1,1]')
            self.phi_tail(a, [HACC + 2*u for u in range(8)], [OUT + u for u in range(8)], TMP)
            a(f's_lshl_b32 s{sT0}, s{sW}, 11\ns_add_u32 s{sT0}, s{sT0}, {PQ}\nv_lshlrev_b32 v{QP}, 3, v0\nv_add_u32 v{QP}, s{sT0}, v{QP}')
            for tt in range(4): a(f'ds_write_b64 v{QP}, {vr(OUT+2*tt,2)} offset:{tt*512}')
            a(f's_lshl_b32 s{sT0}, s{sTH}, 10\nv_add_u32 v{X1B}, s{sT0}, v{LL16}')
            a(f's_lshl_b32 s{sT2}, s{sHI}, 15\nv_add_u32 v{HFB}, s{sT2}, v{X1B}')
            a(f's_and_b32 s{sT3}, s{sJ}, 1\ns_lshl_b32 s{sT4}, s{sT3}, 5')
            a(f's_lshl_b32 s{sT0}, s{sHI}, 5\ns_add_u32 s{sT0}, s{sT0}, s{sT4}\ns_lshl_b32 s{sT0}, s{sT0}, 2\ns_add_u32 s{sT0}, s{sT0}, {CS3L}')
            a(f'v_lshrrev_b32 v{QP+1}, 5, v0\nv_lshlrev_b32 v{QP+1}, 4, v{QP+1}\nv_add_u32 v{CSB}, s{sT0}, v{QP+1}')
            a(f's_cmp_eq_u32 s{sT3}, 0\ns_cselect_b32 s{sT5}, 192, 0')
            a(f's_lshl_b32 s{sT0}, s{sHI}, 4\ns_add_u32 s{sT0}, s{sT0}, s{sT5}\ns_lshl_b32 s{sT0}, s{sT0}, 2\ns_add_u32 s{sT0}, s{sT0}, {CS3L}')
            a(f'v_add_u32 v{CSB2}, s{sT0}, v{QP+1}')
            a(f's_lshl_b32 s{sT0}, s{sHI}, 5\nv_xor_b32 v{HP[0]}, s{sT0}, v{PAT3[0]}\nv_xor_b32 v{HP[1]}, s{sT0}, v{PAT3[1]}')
            a(f'v_and_b32 v{STA}, 31, v0\nv_lshlrev_b32 v{STA}, 4, v{STA}\ns_lshl_b32 s{sT0}, s{sTH}, 9\ns_add_u32 s{sT0}, s{sT0}, {X1P}\nv_add_u32 v{STA}, s{sT0}, v{STA}')
            a(f's_mul_i32 s{sT0}, s{sJ}, 14\ns_lshr_b32 s{sT4}, s{sT4}, 4\ns_lshl_b32 s{sT2}, s{sHI}, 1\ns_add_u32 s{sB}, s{sT0}, s{sT4}\ns_add_u32 s{sB}, s{sB}, s{sT2}')
            a(f's_lshl_b32 s{sB}, s{sB}, 11\ns_add_u32 s{sB}, s{sB}, s{sD}')
            a(f's_lshr_b32 s{sT5}, s{sT5}, 4\ns_add_u32 s{sC}, s{sT0}, s{sT5}\ns_add_u32 s{sC}, s{sC}, s{sHI}\ns_lshl_b32 s{sC}, s{sC}, 11\ns_add_u32 s{sC}, s{sC}, s{sD}')
            a.wait_lg0()
            self.barC(a, 'XA')

        HB = [44, 116, 52]
        def steps_p3(first, nstage, acc, pats, base, kind, phase):
            st = []
            for n in range(4 * nstage):
                stg = first + n // 4
                sb = A3[(n + phase) % 3]
                reads = []; mf = []
                for u in range(2):
                    i = 2 * n + u; s_ = i % 8
                    reads += [f'ds_read_b64_tr_b16 {vr(sb+4*u+2*rd,2)}, v{WK[rd]} offset:{s_*2048}' for rd in range(2)]
                    if kind == 'p0':
                        reads.append(f'ds_read_b128 {vr(BST+4*i,4)}, v{X1B} offset:{i*2048}'); b = BST + 4 * i
                    elif kind == 'hf' and opt.get('hfv', 1):
                        b = BST + 4 * i
                    elif kind == 'hf':
                        b = HB[(n % 3)] + 4 * u
                        reads.append(f'ds_read_b128 {vr(b,4)}, v{HFB} offset:{i*2048}')
                    else:
                        b = BST + 4 * i
                    mf.append(f'v_mfma_f32_32x32x16_bf16 {vr(acc,16)}, {vr(sb+4*u,4)}, {vr(b,4)}, {vr(acc,16) if i else 0}')
                s = dict(reads=reads, mfmas=mf, at=base + n - 2)
                if n % 4 == 0: s['pre'] = stage_pre(stg, WK[:2], pats)
                st.append(s)
            return st
        gtok = {}
        def cs_reads(csreg, csoff, ng):
            def one(g):
                gtok['cs'] = a(f'ds_read_b128 {vr(CSG+4*g,4)}, v{csreg} offset:{csoff+g*32}')
            return [lambda g=g: one(g) for g in range(ng)]
        pend_st = []
        def g_epi(acc, ng, sbase, after_first=None, cs_=None, out=None, key=None, adv=False):
            a.wait_lg(gtok['cs'])
            o = (lambda u: acc + 8*(u >> 2) + (u & 3)) if out is None else (lambda u: out + u)
            pairs = [(acc + 2*u, CSG + 2*u, GST, o(u)) for u in range(2 * ng)]
            self.gelu(a, pairs, GT, after_first)
            if cs_: cst(cs_)
            def st(b):
                gtok[key] = a(f'buffer_store_dwordx4 {vr(o(4*b),4)}, v{CELLT}, {srd(sWS)}, s{sbase} offen offset:{b*2048} sc1')
                if adv and b == ng // 2 - 1: a(f's_add_u32 s{sbase}, s{sbase}, 8192')
            for b in range(ng // 2):
                if opt.get('dst', 1): pend_st.append(lambda b=b: st(b))
                else: st(b)
        def add_stores(step0, step1):
            def pop():
                if pend_st: pend_st.pop(0)()
            step0['tail'] = [pop, pop]; step1['tail'] = [pop, None]
        def hf_send():
            t = GT
            a(f's_lshl_b32 s{sT0}, s{sW}, 11\ns_add_u32 s{sT0}, s{sT0}, {SC}\nv_add_u32 v{t}, s{sT0}, v{LL16}')
            a(f'ds_write_b128 v{t}, {vr(ACB+8,4)}')
            gtok['hfw'] = a(f'ds_write_b128 v{t}, {vr(ACB+12,4)} offset:1024')
            a(f'v_xor_b32 v{HFB}, 4096, v{t}')

        p0 = steps_p3(20, 4, ACA, PAT3, nq, 'p0', 0)
        p0[0]['at'] = nq; p0[1]['at'] = nq; p0[0]['hook'] = q_epilogue
        p0[15]['post'] = [lambda: a(f'ds_read_b128 {vr(GST,4)}, v{STA}')] + cs_reads(CSB, 0, 4)
        steps += p0; n0 = len(steps)
        hf = steps_p3(24, 2, ACB, HP, n0, 'hf', 16)
        for k in range(2):
            hf[k]['late'] = [t for t in hf[k]['reads'] if 'b128' in t]
            hf[k]['reads'] = [t for t in hf[k]['reads'] if 'b128' not in t]
        def hf_hook():
            g_epi(ACA, 4, sB, key='g0', adv=True)
            for k in range(2):
                for t in hf[k]['late']: hf[k]['tok'] = a(t)
        mark = {}
        if opt.get('hfv', 1):
            o24 = hf[0]['pre']
            hf[0]['pre'] = lambda: (a.wait_lg(p0[15]['tok']), o24())
            def hf_hook(f=hf_hook):
                f(); mark['i'] = len(a.ins)
        def hf_dup():
            body = a.ins[mark['i']:]
            del a.ins[mark['i']:]
            def sub(t):
                m = re.match(r'(v_mfma_f32_32x32x16_bf16 v\[100:115\], v\[\d+:\d+\], )v\[(\d+):(\d+)\](.*)', t)
                return f'{m.group(1)}v[{int(m.group(2))+64}:{int(m.group(3))+64}]{m.group(4)}' if m else t
            a.ins += [Ins(f's_cmp_lg_u32 s{sHI}, 0'), Ins('s_cbranch_scc1 L_hf1')] + body + [Ins('s_branch L_hf2'), Ins('L_hf1:')]
            a.ins += [Ins(sub(i.text)) for i in body] + [Ins('L_hf2:')]
        hf[0]['hook'] = hf_hook
        add_stores(hf[0], hf[1])
        steps += hf; n1 = len(steps)
        p1 = steps_p3(26, 4, ACA, PAT3, n1, 'p', 24)
        p1[0]['hook'] = (lambda: (hf_dup(), hf_send())) if opt.get('hfv', 1) else hf_send
        old = p1[4]['pre']
        p1[4]['pre'] = lambda: (a.wait_lg(gtok['hfw']), old())
        def hf_recv():
            a(f'ds_read_b128 {vr(ACB+8,4)}, v{HFB}')
            gtok['hfr'] = a(f'ds_read_b128 {vr(ACB+12,4)}, v{HFB} offset:1024')
        def hf_add(k):
            a.wait_lg(gtok['hfr'])
            for u in range(4*k, 4*k+4): a(f'v_add_f32_e64 v{ACB+u}, v{ACB+u}, v{ACB+8+u}')
        p1[8]['post'] = [hf_recv]
        p1[11]['post'] = [lambda: hf_add(0)]
        p1[12]['post'] = [lambda: hf_add(1)]
        p1[15]['post'] = cs_reads(CSB, 256, 4)
        steps += p1; n2 = len(steps)
        p2_ = steps_p3(30, 4, ACA, PAT3, n2, 'p', 40)
        def p1_epilogue():
            cst(8)
            g_epi(ACA, 4, sB, lambda: [f() for f in cs_reads(CSB2, 0, 2)], 9, out=120, key='g1', adv=True)
            cst(10)
            g_epi(ACB, 2, sC, None, 11, key='g1')
            cst(12)
        p2_[0]['hook'] = p1_epilogue
        add_stores(p2_[0], p2_[1])
        p2_[2 if opt.get('sc10', 1) else 15]['post'] = cs_reads(CSB, 512, 4)
        p2_[1]['hook'] = lambda: cst(13)
        p2_[2]['hook'] = lambda: cst(14)
        p2_[3]['hook'] = lambda: cst(15)
        steps += p2_; n3 = len(steps)

        P4ACC = 84; FR = 128
        p4 = []
        fl = {}
        def fload(n):
            kind, sg = STAGES[min(34 + n // 4, 51)]; i = n % 4
            if n == 72:
                d = 8192 if kind == 'wo' else 32768
                a(f's_lshl_b32 s{sT0}, s{sHI}, 1\ns_sub_u32 s{sT0}, 1, s{sT0}\ns_mul_i32 s{sT0}, s{sT0}, {d}\ns_add_u32 s{sI0}, s{sI0}, s{sT0}\ns_sub_u32 s{sI0}, s{sI0}, 4096')
            elif i % 2 == 0:
                if i: a(f's_add_u32 s{sI0}, s{sI0}, 4096')
                elif kind == 'wo': a(f's_add_u32 s{sI0}, s{sT5}, s{sKC+sg}')
                elif kind == 'gh': a(f's_add_u32 s{sI0}, s{sRG}, {sg}\ns_and_b32 s{sI0}, s{sI0}, 1\ns_mul_i32 s{sI0}, s{sI0}, {896*128}\ns_add_u32 s{sI0}, s{sI0}, s{sT4}')
                else:
                    a(f's_add_u32 s{sI0}, s{sD}, s{sKG+sg}')
                    if kind != 'g0': a(f's_add_u32 s{sI0}, s{sI0}, {g_rows(kind, 0)[0]*128}')
            if opt.get('x_skip', 0) and kind != 'wo' and n % 4 >= 4 - opt['x_skip'] and n >= 4:
                fl[n] = fl[n - 1]; return
            fl[n] = a(f'buffer_load_dwordx4 {vr(FR+4*(n%32),4)}, v{CELLT}, {srd(sWS)}, s{sI0} offen offset:{(i&1)*2048} sc1')
        firsts = {}
        for first in range(34, NST):
            kind, sg = STAGES[first]
            if sg: continue
            cnt = 2 if kind == 'gh' else 4; nat = kind == 'wo'
            k0 = 4 * (first - 34); firsts[k0] = {'g0': FG0, 'g1': FG1, 'gh': FG1, 'wo': FO, 'g2': FG2}[kind]
            p4 += steps_ks(first, cnt, PATN if nat else PATP, nat, P4ACC, lambda n, k0=k0: FR + 4 * ((n + k0) % 32), A3, n3 + k0,
                           setphase=56 + k0, init=(first == 34), c_init=RES if first == 34 else None)
        NG = opt.get('ng', 10); NG0 = opt.get('ng0', 8)
        def p4_bases():
            a(f's_lshl_b32 s{sT0}, s{sHI}, 13\ns_add_u32 s{sT5}, s{sT0}, s{sA}\ns_add_u32 s{sT5}, s{sT5}, {O_OFF}')
            a(f's_mul_i32 s{sT4}, s{sHI}, {448*128}\ns_add_u32 s{sT4}, s{sT4}, s{sD}\ns_add_u32 s{sT4}, s{sT4}, {192*128}\ns_lshl_b32 s{sT0}, s{sHI}, 15\ns_add_u32 s{sD}, s{sD}, s{sT0}')
            for k in range(4): a(f's_add_u32 s{sT0}, s{sRG}, {k}\ns_and_b32 s{sT0}, s{sT0}, 3\ns_mul_i32 s{sKG+k}, s{sT0}, {448*128}\ns_lshl_b32 s{sKC+k}, s{sT0}, 14')
        EG = opt.get('eg', 0)
        if EG:
            k1 = opt.get('eg_step', 3)
            p2_[k1 - 1]['post'] = [p4_bases]
            for n in range(EG):
                st_ = p2_[min(k1 + n // opt.get('eg_rate', 2), 15)]
                assert n < 2 * min(k1 + n // opt.get('eg_rate', 2), 15)
                st_['post'] = st_.get('post', []) + [lambda n=n: fload(n)]
            NG0 = max(NG0, EG)
        def p3_last_epilogue():
            if not EG: p4_bases()
            a.inject([lambda n=n: fload(n) for n in range(EG, NG0)], opt.get('fl_every', 12))
            g_epi(ACA, 4, sB, out=116, key='g2')
            a.flush_inject()
            cst(6)
        p4[0]['hook'] = p3_last_epilogue
        add_stores(p4[0], p4[1])
        nxt = NG0
        self.need = {firsts[k]: 34 for k in firsts if 0 < k < NG0}
        for n, s in enumerate(p4):
            s['vm'] = (lambda n=n: fl[n + 4 if (n >= 68 and opt.get('us4', 1)) else n])
            post = []
            while nxt < (76 if opt.get('us4', 1) else 72) and nxt < n + 1 + NG + (4 if nxt >= 72 else 0) and len(post) < 2:
                if nxt in firsts: self.need.setdefault(firsts[nxt], 34 + (n + 2) // 4)
                post.append(lambda m=nxt: fload(m)); nxt += 1
            s['post'] = post
        def add_wait(step, key):
            o = step['pre']
            step['pre'] = lambda: (a.wait_vm(gtok[key]), o())
        for b_, nx, pv in ((30, p2_[0], p1[15]), (34, p4[0], p2_[15])):
            if str(b_) in str(opt.get('erel', '24.30.34')).split('.'):
                nx['pre'] = (lambda o=nx['pre'], pv=pv: (a.wait_lg(pv['tok']), o()))
        add_wait(p1[4 * (opt.get('fg0_bar', 27) - 26)], 'g0'); add_wait(p2_[12] if opt.get('fg1_bar', 34) == 33 else p4[4 * (opt.get('fg1_bar', 34) - 34)], 'g1'); add_wait(p4[4 * (opt.get('fg2_bar', 37) - 34)], 'g2')
        x4 = {}
        if opt.get('us4', 1):
            kind51 = STAGES[51][0]
            unsplit_last(p4, P4ACC, 40, 'RB2', 51, kind51 == 'wo', A3, 56, lambda i: FR + 4 * ((68 + i) % 32), lambda i: FR + 4 * ((72 + i) % 32), x4)
        self.x4 = x4
        steps += p4

        if opt.get('cprio', 2): a(f's_setprio {opt.get("cprio", 2)}')
        self.run_steps(a, steps)
        RCV = 128; OUT = 144; VO = 160
        def between():
            a(f's_lshl_b32 s{sT0}, s{sTH}, 5\nv_and_b32 v{VO}, 31, v0\nv_add_u32 v{VO}, s{sT0}, v{VO}\nv_lshlrev_b32 v{VO}, 10, v{VO}')
            a(f'v_lshrrev_b32 v{VO+1}, 5, v0\nv_lshl_add_u32 v{VO}, v{VO+1}, 4, v{VO}')
            a(f's_lshl_b32 s{sT0}, s{sJ}, 1\ns_add_u32 s{sT0}, s{sT0}, s{sHI}\ns_lshl_b32 s{sT0}, s{sT0}, 6\ns_add_u32 s{sT0}, s{sT0}, s{sA}')
        if opt.get('us4', 1):
            RCV = 40; between(); tk = self.x4['tk']
        else: tk = exchange(P4ACC, RCV, 'RB2', between)
        for b in range(2):
            a.wait_lg(tk[2*b+1])
            for u in range(4*b, 4*b+4): a(f'v_pk_add_f32 {P(P4ACC+2*u)}, {P(P4ACC+2*u)}, {P(RCV+2*u)}')
            for u in range(4*b, 4*b+4): a(f'v_cvt_pk_bf16_f32 v{OUT+u}, v{P4ACC+2*u}, v{P4ACC+2*u+1}')
            a(f'v_permlane32_swap_b32 v{OUT+4*b}, v{OUT+4*b+2}\nv_permlane32_swap_b32 v{OUT+4*b+1}, v{OUT+4*b+3}')
            a(f'buffer_store_dwordx4 {vr(OUT+4*b,4)}, v{VO}, {srd(sOUT)}, s{sT0} offen offset:{b*32} {opt.get("outflag", "")}')
        if opt.get('padto'):
            a(f'L_pad:\ns_memrealtime s[{sTSP}:{sTSP+1}]\ns_waitcnt lgkmcnt(0)\ns_sub_u32 s{sT0}, s{sTSP}, s26\ns_cmp_lt_u32 s{sT0}, {opt["padto"]}\ns_cbranch_scc1 L_pad')
        if opt.get('prof'):
            a(f's_memrealtime s[{sTSP}:{sTSP+1}]\ns_memtime s[98:99]\ns_waitcnt lgkmcnt(0)\ns_sub_u32 s98, s98, s90')
            a(f's_lshl_b32 s{sT0}, s2, 3\ns_add_u32 s{sT0}, s{sT0}, s{sW}\ns_lshl_b32 s{sT0}, s{sT0}, 8\ns_add_u32 s{sT0}, s{sT0}, {TS_OFF}')
            a(f'v_mov_b32 v2, s26\nv_mov_b32 v3, s{sTSP}\nv_mov_b32 v4, s98\nv_mov_b32 v5, 0\nv_mov_b32 v6, 0\ns_mov_b64 exec, 1')
            a(f'buffer_store_dwordx4 v[2:5], v6, {srd(sWS)}, s{sT0} offen')
            for k in range(8 if opt.get('prof') != 3 else 0): a(f'v_mov_b32 v7, s{4+2*k}\nbuffer_store_dword v7, v6, {srd(sWS)}, s{sT0} offen offset:{16+4*k}')
        a('s_endpgm')

    def helper(self, a):
        opt = self.opt
        prof = opt.get('prof') if opt.get('prof') != 3 else None
        E = lambda name, d: opt.get(name, d)
        BARS = [f'B{i}' for i in range(16)] + ['RB1'] + [f'B{i}' for i in range(16, 20)] + ['QE', 'XA'] + [f'B{i}' for i in range(20, NST)]
        ODL = f'B{self.need[FO]}'
        IDX = {n: i for i, n in enumerate(BARS)}
        T = [40 + i for i in range(16)]
        V1K, VQ, VW3, VHF = 4, 8, 12, 16
        row, pos, sw = T[0], T[1], T[2]
        def mk(dst, RS, sbase):
            a(f'v_mul_u32_u24 v{T[5]}, {RS}, v{row}\nv_add_u32 v{T[5]}, s{sbase}, v{T[5]}')
            for i in range(4):
                a(f'v_add_u32 v{dst+i}, v{T[5]}, v{T[3+(i&1)]}')
                if i: a(f'v_add_u32 v{dst+i}, {i*(8*RS-1024)}, v{dst+i}')
        stok = {}
        two = E('two', 0)
        grp = [[0, 1] if two else [0, 1, 2, 3]]
        def issue(st, pace=True):
            kind, sg = STAGES[st]
            pc = E('pace', 44) // (2 if two else 1)
            if pace and len(a.vm) > pc: a.wait_vm(a.vm[-pc - 1])
            s, v = src_of(st)
            for g in grp[0]:
                a(f's_mov_b32 m0, {SLOT[st] + g*4096}')
                soff(st, g, g == grp[0][0])
                for i in range(4):
                    stok[st] = a(f'buffer_load_dwordx4 v{v+i}, {srd(s)}, s{sT2} offen offset:{i*1024} lds')
        def src_of(st):
            kind, sg = STAGES[st]
            return {'w1': (sW1, V1K), 'w2': (sW2, V1K), 'wo': (sWO, V1K), 'wq': (sQKV, VQ), 'kv': (sQKV, VQ), 'p0': (sW3, VW3),
                    'p1': (sW3, VW3), 'p2': (sW3, VW3), 'hf': (sW3, VHF + 4 * sg)}.get(kind, (sW4, V1K))
        def soff(st, g, first=None):
            kind, sg = STAGES[st]
            rot = E('rot', 1)
            RS = 3072 if kind in ('wq', 'kv') else (3584 if kind in ('p0', 'p1', 'p2', 'hf') else 1024)
            if first is None: first = g == 0
            if kind == 'gh':
                if first: a(f's_add_u32 s{sI0}, s{sRG}, {sg}\ns_and_b32 s{sI0}, s{sI0}, 1\ns_mul_i32 s{sI0}, s{sI0}, {896*1024}')
                a(f's_add_u32 s{sT2}, s{sI0}, {(g_rows(kind, 0)[g >> 1] + 32*(g & 1))*1024}')
            elif kind[0] == 'g': a(f's_add_u32 s{sT2}, s{sKG+sg}, {(g_rows(kind, 0)[g >> 1] + 32*(g & 1))*1024}')
            elif kind == 'wo':
                if first: a(f's_add_u32 s{sI0}, s{sRG}, {sg}\ns_and_b32 s{sI0}, s{sI0}, 3\ns_lshl_b32 s{sI0}, s{sI0}, 17')
                a(f's_add_u32 s{sT2}, s{sI0}, {g*32*RS}')
            elif kind == 'w1' or (rot and kind == 'w2'): a(f's_add_u32 s{sT2}, s{sK1+sg}, {g*32*RS}')
            elif kind == 'w2': a(f's_mov_b32 s{sT2}, {sg*131072 + g*32*RS}')
            elif kind == 'wq': a(f's_add_u32 s{sT2}, s{sK3+sg}, {g*32*RS}')
            elif kind == 'kv': a(f's_add_u32 s{sT2}, s{sK3+(sg>>1)}, {((sg&1)*64 + (g&1)*32)*RS + 1024*(1 + (g>>1))}')
            elif kind == 'hf': a(f's_mov_b32 s{sT2}, {g*32*RS}')
            else: a(f's_add_u32 s{sT2}, s{sK5+sg}, {g*32*RS + dict(p0=0, p1=128, p2=256)[kind]}')
        VAR = 61
        def arrive(idx):
            if prof == 2:
                a(f's_memtime s[0:1]\ns_waitcnt lgkmcnt(0)')
                a.lg = []
                if isinstance(idx, int): a(f'v_writelane_b32 v{VAR}, s0, {idx + 1}')
                else: a(f's_add_u32 s1, s{idx}, 1\ns_mov_b32 m0, s1\nv_writelane_b32 v{VAR}, s0, m0')
        def dump_arrive(slot):
            if prof:
                a(f's_lshl_b32 s{sT0}, s2, 2\ns_add_u32 s{sT0}, s{sT0}, s{sW}\ns_lshl_b32 s{sT0}, s{sT0}, 8\ns_add_u32 s{sT0}, s{sT0}, {TS_OFF + 0x80000}')
                a(f'v_lshlrev_b32 v2, 2, v0\nbuffer_store_dword v{VAR}, v2, {srd(sWS)}, s{sT0} offen')
        if prof: a(f'v_mov_b32 v{VAR}, 0')
        a(f's_cmp_eq_u32 s{sW}, 1\ns_cbranch_scc1 L_back\ns_cmp_eq_u32 s{sW}, 2\ns_cbranch_scc1 L_back')
        if not two: a(f's_cmp_eq_u32 s{sW}, 0\ns_cbranch_scc1 L_sync')
        a(f'v_lshrrev_b32 v{row}, 3, v0\nv_and_b32 v{pos}, 7, v0\nv_lshrrev_b32 v{sw}, 4, v0\nv_and_b32 v{sw}, 1, v{sw}\nv_lshlrev_b32 v{sw}, 2, v{sw}')
        a(f'v_xor_b32 v{pos}, v{pos}, v{sw}')
        a(f'v_lshlrev_b32 v{T[3]}, 4, v{pos}\nv_xor_b32 v{T[4]}, 32, v{T[3]}')
        a(f's_lshl_b32 s{sT0}, s{sJ}, 7')
        mk(V1K, 1024, sT0)
        a(f's_mov_b32 s{sW1+2}, {512*1024}\ns_mov_b32 s{sW1+3}, 0x20000')
        for sg in range(4):
            a(f's_add_u32 s{sT3}, s{sROT}, {sg}\ns_and_b32 s{sT3}, s{sT3}, 3\ns_lshl_b32 s{sK1+sg}, s{sT3}, 17\ns_mul_i32 s{sK3+sg}, s{sT3}, {128*3072}')
        a('s_waitcnt lgkmcnt(0)')
        a(f's_mov_b32 s{sW1}, s12\ns_and_b32 s{sW1+1}, s13, 0xffff')
        if two: a(f's_cmp_eq_u32 s{sW}, 0\ns_cbranch_scc1 L_sync0')
        def first_issue():
            issue(0); issue(1)
            if E('st', 0): issue(2, False)
        first_issue()
        a('s_branch L_loader')
        vmL = list(a.vm); stokL = dict(stok); a.vm = []
        if two:
            a('L_sync0:')
            grp[0] = [2, 3]; first_issue()
            a('s_branch L_sync')
        vmS = list(a.vm); stokS = dict(stok); a.vm = []
        VX1 = [24, 25]; x1tok = {}
        def loader_setup():
            self.srds(a, skipx=True, skip1=True)
            mk(VQ, 3072, sT0)
            a(f's_mul_i32 s{sT0}, s{sJ}, 448\ns_and_b32 s{sT4}, s{sJ}, 1\ns_lshl_b32 s{sT2}, s{sT4}, 6\ns_add_u32 s{sT2}, s{sT2}, s{sT0}')
            mk(VW3, 3584, sT2)
            a(f's_cmp_eq_u32 s{sT4}, 0\ns_cselect_b32 s{sT2}, 384, 0\ns_add_u32 s{sT2}, s{sT2}, s{sT0}')
            a(f'v_and_b32 v{T[3]}, 63, v{T[3]}\nv_and_b32 v{T[4]}, 63, v{T[4]}\nv_lshrrev_b32 v{T[6]}, 2, v{pos}')
            mk(VHF, 3584, sT2)
            for sg in range(4):
                if E('rot', 1): a(f's_add_u32 s{sT3}, s{sROT}, {sg}\ns_and_b32 s{sT3}, s{sT3}, 3')
                else: a(f's_mov_b32 s{sT3}, {sg}')
                a(f's_mul_i32 s{sK5+sg}, s{sT3}, {128*3584}\ns_lshl_b32 s{sKX+sg}, s{sT3}, 14')
            for k in range(4): a(f's_add_u32 s{sT3}, s{sRG}, {k}\ns_and_b32 s{sT3}, s{sT3}, 3\ns_mul_i32 s{sKG+k}, s{sT3}, {448*1024}')
            for sg in (1, 0):
                a(f's_sub_u32 s{sT3}, s{sK5+sg+2}, s{sK5+sg}\nv_mul_lo_u32 v{T[5]}, v{T[6]}, s{sT3}\nv_add_u32 v{T[5]}, s{sK5+sg}, v{T[5]}')
                for i in range(4): a(f'v_add_u32 v{VHF+4*sg+i}, v{VHF+i}, v{T[5]}')
            a(f'v_lshrrev_b32 v{T[0]}, 5, v0\nv_and_b32 v{T[1]}, 31, v0\nv_lshlrev_b32 v{T[0]}, 10, v{T[0]}\nv_lshl_add_u32 v{T[0]}, v{T[1]}, 4, v{T[0]}')
            a(f's_lshl_b32 s{sT0}, s{sR}, 16\ns_add_u32 s{sT0}, s{sT0}, {X1_OFF}')
            a(f'v_add_u32 v{VX1[0]}, s{sT0}, v{T[0]}\nv_subrev_u32 v{VX1[1]}, 512, v{VX1[0]}')
        def x1_chunk(sg):
            for g in grp[0]:
                a(f's_mov_b32 m0, {sg*16384 + g*4096}\ns_add_u32 s{sT2}, s{sKX+sg}, {g*4096}')
                for u in range(4):
                    x1tok[sg] = a(f'buffer_load_dwordx4 v{VX1[u&1]}, {srd(sWS)}, s{sT2} offen offset:{u*1024} sc1 lds')
        def load_before(n):
            b = int(n[1:]) if n[0] == 'B' else None
            if b is not None:
                a.wait_vm(stok[b])
                if b in (20, 21, 22, 23): a.wait_vm(x1tok[b - 20])
        def load_after(n):
            b = int(n[1:]) if n[0] == 'B' else None
            if n == 'XA':
                for c in range(4): x1_chunk(c)
            if E('st', 0):
                if b == 0: issue(3, False)
                if b == 1: issue(4)
            else:
                if b == 0: issue(2)
                if b == (0 if E('st3', 1) else 1): issue(3)
                if b == 1: issue(4)
            if b in (2, 3): stats_after(b)
            for st in ISSUE.get(b if b is not None else n, []): issue(st)
            if b in (0, 1): stats_after(b)
        a('L_back:')
        sSW = sHI
        a(f'v_lshrrev_b32 v2, 4, v0\nv_and_b32 v3, 15, v0\nv_xor_b32 v3, v3, v2\nv_lshlrev_b32 v3, 4, v3')
        a(f's_lshl_b32 s{sT0}, s{sR}, 1\ns_add_u32 s{sT0}, s{sT0}, s{sSW}\ns_lshl_b32 s{sT0}, s{sT0}, 15')
        a(f'v_lshl_add_u32 v2, v2, 10, s{sT0}\nv_add_u32 v2, v2, v3')
        for u in range(1, 4): a(f'v_xor_b32 v{2+u}, {u<<6}, v2\nv_add_u32 v{2+u}, {u*3072}, v{2+u}')
        a(f's_lshl_b32 s{sI0}, s{sSW}, 13\ns_mov_b32 s{sB}, s{sROT}')
        a('s_waitcnt lgkmcnt(0)')
        a(f's_mov_b32 s{sX}, s4\ns_and_b32 s{sX+1}, s5, 0xffff')
        xtok = {}
        def x_chunk(sg):
            for half in range(2):
                a(f's_add_u32 m0, s{sI0}, {sg*16384 + half*4096}\ns_lshl_b32 s{sT2}, s{sB}, 8')
                if half: a(f's_add_u32 s{sT2}, s{sT2}, 16384')
                for u in range(4):
                    xtok[sg] = a(f'buffer_load_dwordx4 v{2+u}, {srd(sX)}, s{sT2} offen offset:{u*1024} lds')
            if sg < 3: a(f's_add_u32 s{sB}, s{sB}, 1\ns_and_b32 s{sB}, s{sB}, 3')
        x_chunk(0)
        if E('xdel', 1): self.srds(a, skipx=True)
        x_chunk(1)
        if not E('xdel', 1): self.srds(a, skipx=True)
        if E('st', 0): x_chunk(2)

        F = 64; SSUM, SGR, HONE = 128, 136, 144
        q, i16 = T[8], T[9]
        SW1, SW2 = 148, 149
        def stats_setup():
            a(f'v_lshrrev_b32 v{q}, 4, v0\nv_and_b32 v{i16}, 15, v0')
            for m in range(4):
                a(f'v_or_b32 v{T[0]}, {4*m}, v{q}\nv_xor_b32 v{T[0]}, v{T[0]}, v{i16}\nv_lshlrev_b32 v{T[0]}, 4, v{T[0]}')
                a(f'v_lshl_add_u32 v{T[0]}, v{i16}, 8, v{T[0]}\nv_add_u32 v{T[10+m]}, s{sI0}, v{T[0]}')
            for i in range(4): a(f'v_mov_b32 v{HONE+i}, s{sONE}')
            a(f'v_and_b32 v{T[0]}, 3, v0\nv_lshrrev_b32 v{T[2]}, 2, v{i16}')
            a(f'v_cmp_eq_u32 s[14:15], 1, v{T[0]}\nv_cmp_eq_u32 s[16:17], 2, v{T[0]}\nv_cmp_eq_u32 s[12:13], 3, v{T[0]}\nv_cmp_eq_u32 s[10:11], v{T[2]}, v{q}')
            a(f's_lshl_b32 s{sT0}, s{sSW}, 5\nv_add_u32 v{SW1}, s{sT0}, v{i16}\nv_lshlrev_b32 v{SW2}, 4, v{SW1}\nv_lshlrev_b32 v{SW1}, 2, v{SW1}')
            a(f'v_add_u32 v{SW2}, {S1}, v{SW2}\nv_add_u32 v{SW1}, {NMU}, v{SW1}')
        stk = {}
        fr = lambda sg, t, m: F + 32 * (sg & 1) + 16 * t + 4 * m
        def stats_reads(sg):
            for m in range(4):
                for t in range(2): stk[(sg, t, m)] = a(f'ds_read_b128 {vr(fr(sg, t, m), 4)}, v{T[10+m]} offset:{sg*16384 + t*4096}')
        def stats_mfma(sg):
            if E('sprio', 3): a(f's_setprio {E("sprio", 3)}')
            for m in range(4):
                a.wait_lg(stk[(sg, 1, m)])
                z = sg == 0 and m == 0
                for t in range(2):
                    f = fr(sg, t, m)
                    a(f'v_mfma_f32_16x16x32_bf16 {vr(SGR+4*t,4)}, {vr(f,4)}, {vr(f,4)}, {0 if z else vr(SGR+4*t,4)}')
                    a(f'v_mfma_f32_16x16x32_bf16 {vr(SSUM+4*t,4)}, {vr(HONE,4)}, {vr(f,4)}, {0 if z else vr(SSUM+4*t,4)}')
            a('s_setprio 0')
        def stats_final():
            a('s_setprio 3')
            a(f's_mov_b32 s{sT0}, {f2u(1/512):#x}\ns_mov_b32 s{sT2}, {f2u(1e-5):#x}')
            def chain(t):
                s1, s2, R, G_, S_ = 36 + 2*t, 37 + 2*t, 64 + 8*t, SGR + 4*t, SSUM + 4*t
                if t: s2 = 56
                return [f'v_cndmask_b32 v{s2}, v{G_}, v{G_+1}, s[14:15]', f'v_mul_f32 v{R}, {f2u(-1/512):#x}, v{S_}', f'v_cndmask_b32 v{s2}, v{s2}, v{G_+2}, s[16:17]',
                        f'v_mov_b32 v{R+7}, 0', f'v_cndmask_b32 v{s2}, v{s2}, v{G_+3}, s[12:13]', f'v_mul_f32 v{s1}, v{R}, v{R}', f'v_mov_b32 v{R+4}, v{R}',
                        f'v_fma_f32 v{s2}, v{s2}, s{sT0}, -v{s1}', f'v_max_f32 v{s2}, 0, v{s2}', f'v_add_f32 v{s1}, s{sT2}, v{s2}',
                        f'v_rsq_f32 v{R+5}, v{s1}', f'v_rcp_f32 v{s1}, v{s1}', f'v_mul_f32 v{R+6}, {f2u(LOG2E):#x}, v{R+5}', f'v_fma_f32 v{s1}, v{s1}, v{s2}, s{sT2}',
                        f'v_rsq_f32 v{s1}, v{s1}', f'v_mul_f32 v{s1}, v{s1}, v{R+5}', f'v_rcp_f32 v{R+3}, v{s1}', f'v_mul_f32 v{s2}, v{s1}, v{s1}',
                        f'v_mul_f32 v{R+1}, {f2u(GC0):#x}, v{s1}', f'v_mul_f32 v{s2}, {f2u(0.044715):#x}, v{s2}', f'v_mul_f32 v{R+2}, v{R+1}, v{s2}']
            for x, y in zip(chain(0), chain(1)): a(x + '\n' + y)
            a('s_mov_b64 exec, s[10:11]')
            for t in range(2): a(f'ds_write_b128 v{SW2}, {vr(64+8*t,4)} offset:{t*256}')
            for t in range(2):
                R = 64 + 8*t
                a(f'ds_write_b128 v{SW2}, {vr(R+4,4)} offset:{1024 + t*256}')
                a(f'ds_write_b32 v{SW1}, v{R} offset:{t*64}\nds_write_b32 v{SW1}, v{R+5} offset:{256 + t*64}\nds_write_b32 v{SW1}, v{R+6} offset:{512 + t*64}')
            a('s_mov_b64 exec, -1\ns_setprio 0')
            a.wait_lg0()
        def stats_after(b): pass

        VFL, VFP, VF3, VONE, VCT, CELLV, VZA, VCK, VFO = 26, 27, 28, 29, 30, 32, 34, 35, 33
        OB = T[14]
        pf = opt.get('pf', 1); t3 = opt.get('t3', 0)
        nlab = [0]
        def lab(p):
            nlab[0] += 1
            return f'L_{p}{nlab[0]}'
        def common_regs():
            a(f'v_mov_b32 v{OB}, {OOB}\nv_lshlrev_b32 v{T[15]}, 7, v0\nv_mov_b32 v{VONE}, 1')
            a(f'v_lshrrev_b32 v{T[0]}, 5, v0\nv_and_b32 v{T[1]}, 31, v0\nv_lshlrev_b32 v{CELLV}, 10, v{T[0]}\nv_lshl_add_u32 v{CELLV}, v{T[1]}, 4, v{CELLV}')
            a(f's_lshl_b32 s{sC}, s{sR}, 16\ns_lshl_b32 s{sD}, s{sJ}, 18\ns_add_u32 s{sD}, s{sD}, {KV_OFF}\ns_lshl_b32 s{sA}, s{sJ}, 12\ns_add_u32 s{sA}, s{sA}, {CF_OFF}')
        def one_lane(text):
            a('s_mov_b64 exec, 1'); a(text); a('s_mov_b64 exec, -1')
        def count(off, idx):
            a(f's_lshr_b32 s{sT0}, s{idx}, 3\ns_lshl_b32 s{sT0}, s{sT0}, 7\ns_and_b32 s{sT2}, s{idx}, 7\ns_lshl_b32 s{sT2}, s{sT2}, 2\ns_add_u32 s{sT0}, s{sT0}, s{sT2}')
            a(f's_add_u32 s{sT0}, s{sT0}, s{sA}\ns_add_u32 s{sT0}, s{sT0}, {off}\nv_mov_b32 v{T[7]}, 0')
            one_lane(f'buffer_store_dword v{VONE}, v{T[7]}, {srd(sWS)}, s{sT0} offen sc1')

        sBC = sCNT; sSP = sBG
        common_regs()
        def touch(s, lines, dst, pitch=None, off=0):
            n = lines // 2
            a(f's_lshl_b32 s{sT0}, s2, 1\ns_add_u32 s{sT0}, s{sT0}, s{sSW}\ns_mul_i32 s{sT0}, s{sT0}, {pitch or n*128}')
            if off: a(f's_add_u32 s{sT0}, s{sT0}, {off}')
            a(f'v_cmp_gt_u32 vcc, {n}, v0\nv_cndmask_b32 v{T[7]}, v{OB}, v{T[15]}, vcc')
            return a(f'buffer_load_dword v{dst}, v{T[7]}, {srd(s)}, s{sT0} offen')
        CSR = 160; CA = 192
        def cs_loads(y=None):
            a(f's_lshr_b32 s{sT0}, s{sR}, 1\ns_mul_i32 s{sT0}, s{sT0}, {32*3584}\ns_mul_i32 s{sT2}, s{sJ}, 448\ns_add_u32 s{sT0}, s{sT0}, s{sT2}')
            a(f's_and_b32 s{sT2}, s{sR}, 1\ns_lshl_b32 s{sT2}, s{sT2}, 1\ns_add_u32 s{sT2}, s{sT2}, s{sSW}\ns_mul_i32 s{sT2}, s{sT2}, 112\ns_add_u32 s{sT0}, s{sT0}, s{sT2}')
            a(f'v_lshrrev_b32 v{T[6]}, 5, v0\nv_mul_u32_u24 v{T[6]}, {16*3584}, v{T[6]}\nv_and_b32 v{T[5]}, 31, v0\nv_lshl_add_u32 v{T[6]}, v{T[5]}, 2, v{T[6]}')
            a(f'v_cmp_gt_u32 vcc, 28, v{T[5]}\nv_cndmask_b32 v{T[6]}, v{OB}, v{T[6]}, vcc')
            for i in range(16):
                a(f'buffer_load_dword v{CSR+i}, v{T[6]}, {srd(sW3)}, s{sT0} offen')
                if i < 15: a(f's_add_u32 s{sT0}, s{sT0}, 3584')
                if y and i in (5, 10): y()
        if pf: touch(sQKV, 32, 6, 3072, 1024)
        if E('cs0', 0): cs_loads()
        stats_setup()
        barsD = []
        pre0 = E('spre', 1)
        for b in range(5):
            if b < 4:
                a.wait_vm(xtok[b]); stats_reads(b)
                if b < pre0 or (b == 3 and E('s3pre', 0)): stats_mfma(b)
            arrive(b); barsD.append(f'B{b}'); a('s_barrier')
            if b == 0:
                if not E('st', 0): x_chunk(2)
                x_chunk(3)
            if pre0 <= b < (3 if E('s3pre', 0) else 4): stats_mfma(b)
            if b == 3: stats_final()
            if b == E('e_pf', 2):
                if pf: touch(sW2, 16, 7); touch(sQKV, 16, 7, 3072)
                if pf and E('w3pf', 0) == 2: touch(sW3, 56, 7)
        a(f's_mov_b32 s{sBC}, 5')
        LONG = sum(1 << (IDX[n] + 1) for n in E('long', 'B4.B12.QE.XA.B24.B30.B34').split('.'))
        a(f's_mov_b32 s4, {LONG & 0xffffffff}\ns_mov_b32 s5, {LONG >> 32}')
        VDS = 39; nds = [0]
        if prof: a(f'v_mov_b32 v{VDS}, 0')
        def dst(name):
            if prof:
                a(f's_memrealtime s[0:1]\ns_waitcnt lgkmcnt(0)\nv_writelane_b32 v{VDS}, s0, {nds[0]}')
                self.dnames.append(name); nds[0] += 1
        def yield_(dl):
            L = lab('y')
            a(f's_cmp_ge_u32 s{sBC}, {IDX[dl]}\ns_cbranch_scc1 {L}')
            arrive(str(sBC))
            a(f's_barrier\ns_add_u32 s{sBC}, s{sBC}, 1\n{L}:')
        def earliest(name):
            L = lab('e')
            a(f'{L}:\ns_cmp_gt_u32 s{sBC}, {IDX[name]}\ns_cbranch_scc1 {L}d')
            arrive(str(sBC))
            a(f's_barrier\ns_add_u32 s{sBC}, s{sBC}, 1\ns_branch {L}\n{L}d:')
        def nbwait(dl, lg=False):
            L = lab('w')
            a(f'{L}:\ns_bitcmp1_b64 s[4:5], s{sBC}\ns_cselect_b32 s{sSP}, {E("nspin", 6)}, 1')
            a(f'{L}s:\ns_getreg_b32 s{sT0}, hwreg(HW_REG_IB_STS)\ns_and_b32 s{sT0}, s{sT0}, {0xf00 if lg else 0xc0000f}\ns_cbranch_scc0 {L}d')
            a(f's_sub_u32 s{sSP}, s{sSP}, 1\ns_cmp_lg_u32 s{sSP}, 0\ns_cbranch_scc1 {L}s')
            a(f's_cmp_ge_u32 s{sBC}, {IDX[dl]}\ns_cbranch_scc1 {L}d')
            if not lg: arrive(str(sBC))
            a(f's_barrier\ns_add_u32 s{sBC}, s{sBC}, 1\ns_branch {L}')
            a(f'{L}d:\ns_waitcnt {"lgkmcnt" if lg else "vmcnt"}(0)')
        def spin(off, n, dl):
            L = lab('c')
            a(f'v_and_b32 v{VCT}, {n-1}, v0\nv_lshrrev_b32 v{T[7]}, 3, v{VCT}\nv_and_b32 v{VCT}, 7, v{VCT}\nv_lshlrev_b32 v{VCT}, 2, v{VCT}\nv_lshl_add_u32 v{VCT}, v{T[7]}, 7, v{VCT}')
            a(f's_mov_b32 s6, {opt.get("spin", 200000)}\ns_add_u32 s9, s{sA}, {off}')
            a(f'{L}:\nbuffer_load_dword v{VCK}, v{VCT}, {srd(sWS)}, s9 offen sc1')
            nbwait(dl)
            a(f'v_cmp_ne_u32 vcc, 1, v{VCK}\ns_sub_u32 s6, s6, 1\ns_cmp_eq_u32 s6, 0\ns_cbranch_scc1 {L}d\ns_cbranch_vccz {L}d')
            for _ in range(E('boff', 2)): yield_(dl)
            a(f's_branch {L}\n{L}d:')
        def sliced(fn, dl, n=None):
            lines = a.record(fn); n = n or E('bgn', 22)
            while lines:
                m = n
                while any(x.startswith('s_setprio 3') for x in lines[:m]) and not any(x.startswith('s_setprio 0') for x in lines[:m]): m += 1
                a('\n'.join(lines[:m])); lines = lines[m:]
                if lines: yield_(dl)
        def cs_sum():
            for i in range(16):
                r_ = CSR + i
                if i == 0:
                    a(f'v_lshlrev_b32 v{CA}, 16, v{r_}\nv_and_b32 v{CA+1}, 0xffff0000, v{r_}')
                else:
                    a(f'v_lshlrev_b32 v{CA+4}, 16, v{r_}\nv_and_b32 v{CA+5}, 0xffff0000, v{r_}')
                    a(f'v_add_f32 v{CA}, v{CA}, v{CA+4}\nv_add_f32 v{CA+1}, v{CA+1}, v{CA+5}')
        PQR = 64; KVR = 192; ZR = 200
        AK, AZ, NUM, DEN, OUT = 96, 100, 104, 136, 168
        Lc = lab('cs')
        late = E('cslate', 0); CDL = E('cdl', 'B22') if late else 'XA'; CSA = 57
        def cs_chain():
            if not E('cs0', 0):
                earliest(E('e_cs', 'B6'))
                dst('csld0')
                cs_loads((lambda: yield_(CDL)) if E('dsl', 0) else None)
            dst('csld1')
            nbwait(CDL)
            dst('csld2')
            sliced(cs_sum, CDL)
            a(f'v_permlane32_swap_b32 v{CA}, v{CA+1}\nv_add_f32 v{CA}, v{CA}, v{CA+1}')
            a(f'v_and_b32 v{T[5]}, 31, v0\nv_lshrrev_b32 v{T[6]}, 5, v0\nv_lshlrev_b32 v{T[6]}, 2, v{T[6]}\nv_lshl_add_u32 v{T[6]}, v{T[5]}, 3, v{T[6]}')
            a(f'v_cmp_gt_u32 vcc, 28, v{T[5]}\nv_cndmask_b32 v{T[6]}, v{OB}, v{T[6]}, vcc')
            a(f's_lshr_b32 s{sT0}, s{sR}, 1\ns_lshl_b32 s{sT0}, s{sT0}, 10\ns_and_b32 s{sT2}, s{sR}, 1\ns_lshl_b32 s{sT2}, s{sT2}, 1\ns_add_u32 s{sT2}, s{sT2}, s{sSW}\ns_mul_i32 s{sT2}, s{sT2}, 224')
            a(f's_add_u32 s{sT0}, s{sT0}, s{sT2}\ns_add_u32 s{sT0}, s{sT0}, s{sD}\ns_add_u32 s{sT0}, s{sT0}, {KV_CS}')
            a(f'buffer_store_dword v{CA}, v{T[6]}, {srd(sWS)}, s{sT0} offen sc1')
            dst('csst')
            nbwait(CDL)
            dst('csack')
            earliest('B5')
            a(f's_lshl_b32 s9, s{sR}, 1\ns_add_u32 s9, s9, s{sSW}')
            count(CF_CS, 9)
            earliest(E('e_csc', 'B17'))
            dst('cschk0')
            spin(CF_CS, 64, CDL)
            dst('cschk1')
            a(f'v_lshlrev_b32 v{T[0]}, 4, v0\nv_cmp_gt_u32 vcc, 56, v0\nv_cndmask_b32 v{T[0]}, v{OB}, v{T[0]}, vcc')
            a(f's_lshl_b32 s{sT2}, s{sSW}, 13\ns_add_u32 s{sT2}, s{sT2}, s{sD}\ns_add_u32 s{sT2}, s{sT2}, {KV_CS}')
            for k in range(8):
                if k % 4 == 0: a(f's_add_u32 s{sT0}, s{sT2}, {k*1024}')
                a(f'buffer_load_dwordx4 {vr(CSR+4*k,4)}, v{T[0]}, {srd(sWS)}, s{sT0} offen offset:{(k&3)*1024} sc1')
                if k == 3 and E('dsl2', 0): yield_(CDL)
        def cs_tail():
            def cs_fin():
                for st in (16, 8, 4):
                    for k in range(st): a(f'v_add_f32 v{CSR+k}, v{CSR+k}, v{CSR+st+k}')
            dst('csg0')
            nbwait(CDL)
            dst('csg1')
            sliced(cs_fin, CDL, 30)
            a(f'v_lshlrev_b32 v{CSA}, 4, v0\nv_add_u32 v{CSA}, {CS3L}, v{CSA}')
            earliest('B16')
            a(f's_cmp_eq_u32 s{sSW}, 0\ns_cbranch_scc1 {Lc}a')
            a(f'ds_write_b128 v{CSA}, {vr(CSR,4)} offset:1024\ns_waitcnt lgkmcnt(0)\n{Lc}a:')
        if E('x_nocs', 0):
            earliest(E('e_cs', 'B6')); touch(sW3, 56, 7)
        else:
            cs_chain()
            if not late: cs_tail()
        if pf and E('e_p4', 'B13') == 'D': touch(sWO, 16, 8); touch(sW4, 56, 9)
        a(f's_lshl_b32 s7, s{sJ}, 1\ns_add_u32 s7, s7, s{sSW}\ns_lshl_b32 s8, s7, 2\ns_lshl_b32 s7, s7, 12\ns_add_u32 s7, s7, s{sC}\ns_add_u32 s7, s7, {O_OFF}')
        a(f's_lshl_b32 s{sT0}, s{sR}, 7\ns_add_u32 s8, s8, s{sT0}\ns_add_u32 s8, s8, {FL_OFF + FO*4096}\nv_mov_b32 v{VFO}, s8')
        earliest('XA')
        def cs_join():
            a(f's_cmp_lg_u32 s{sSW}, 0\ns_cbranch_scc1 {Lc}b')
            a(f'ds_read_b128 {vr(CSR+4,4)}, v{CSA} offset:1024\ns_waitcnt lgkmcnt(0)')
            for k in range(4): a(f'v_add_f32 v{CSR+k}, v{CSR+k}, v{CSR+4+k}')
            a(f'ds_write_b128 v{CSA}, {vr(CSR,4)}\ns_waitcnt lgkmcnt(0)\n{Lc}b:')
        if not late: cs_join()
        a(f's_lshl_b32 s{sT0}, s{sSW}, 12\ns_add_u32 s{sT0}, s{sT0}, {PQ}\nv_lshl_add_u32 v{T[0]}, v0, 3, s{sT0}')
        for k in range(8): a(f'ds_read_b64 {vr(PQR+2*k,2)}, v{T[0]} offset:{k*512}')
        a('s_waitcnt lgkmcnt(0)')
        kv2 = E('kv2', 0)
        if late and not E('x_nocs', 0): cs_tail()
        earliest(E('e_kvb', 'XA'))
        if E('x_noo', 0):
            one_lane(f'buffer_store_dword v{VONE}, v{VFO}, {srd(sWS)}, 0 offen sc1'); nbwait('B51'); a('s_endpgm')
        dst('kvchk0')
        spin(CF_A, 32, 'B24' if late else ODL)
        dst('kvchk1')
        if kv2:
            a(f's_lshl_b32 s20, s{sSW}, 5\ns_add_u32 s20, s20, s{sR}\ns_cmp_lt_u32 s20, 34\ns_cselect_b32 s21, 0, {OOB}\ns_lshl_b32 s22, s20, 7\ns_add_u32 s22, s22, s{sD}')
            a(f'v_lshrrev_b32 v{T[1]}, 3, v0\nv_mul_u32_u24 v{T[1]}, {KVP}, v{T[1]}\nv_and_b32 v{T[2]}, 7, v0\nv_lshlrev_b32 v{T[2]}, 4, v{T[2]}\nv_add3_u32 v{T[1]}, v{T[1]}, v{T[2]}, s21')
            for k in range(4):
                a(f's_add_u32 s{sT0}, s22, {k*8*KVP}\nbuffer_load_dwordx4 {vr(KVR+4*k,4)}, v{T[1]}, {srd(sWS)}, s{sT0} offen sc1')
            nbwait(ODL)
            dst('l2ld')
            for k in range(8): a(f'v_add_f32 v{KVR+k}, v{KVR+k}, v{KVR+8+k}')
            for k in range(4): a(f'v_add_f32 v{KVR+k}, v{KVR+k}, v{KVR+4+k}')
            for k in range(4): a(f'v_add_f32_dpp v{KVR+k}, v{KVR+k}, v{KVR+k} row_ror:8 row_mask:0xf bank_mask:0xf')
            for sw_ in ('v_permlane16_swap_b32', 'v_permlane32_swap_b32'):
                if sw_.startswith('v_permlane32'): yield_(ODL)
                for k in range(4): a(f'v_mov_b32 v{KVR+4+k}, v{KVR+k}')
                for k in range(4): a(f'{sw_} v{KVR+k}, v{KVR+4+k}')
                for k in range(4): a(f'v_add_f32 v{KVR+k}, v{KVR+k}, v{KVR+4+k}')
            a(f'v_cmp_gt_u32 vcc, 8, v0\nv_add_u32 v{T[2]}, s21, v{T[2]}\nv_cndmask_b32 v{T[2]}, v{OB}, v{T[2]}, vcc\ns_add_u32 s{sT0}, s22, {KV_FIN}')
            a(f'buffer_store_dwordx4 {vr(KVR,4)}, v{T[2]}, {srd(sWS)}, s{sT0} offen sc1')
            nbwait(ODL)
            count(CF_B, 20)
            dst('l2pub')
            earliest(E('e_kvc', 'B29'))
            spin(CF_B, 64, ODL)
            dst('l2chk')
            a(f'v_lshrrev_b32 v{T[1]}, 4, v0\nv_lshlrev_b32 v{T[1]}, 4, v{T[1]}\nv_and_b32 v{T[0]}, 3, v0\nv_lshl_add_u32 v{T[0]}, v{T[0]}, 8, v{T[1]}')
            a(f'v_bfe_u32 v{T[2]}, v0, 2, 2\nv_lshl_add_u32 v{T[0]}, v{T[2]}, 6, v{T[0]}')
        else:
            a(f'v_lshrrev_b32 v{T[1]}, 4, v0\nv_lshlrev_b32 v{T[1]}, 4, v{T[1]}\nv_and_b32 v{T[0]}, 15, v0\nv_lshl_add_u32 v{T[0]}, v{T[0]}, 6, v{T[1]}')
        fin = KV_FIN if kv2 else 0
        for rep in range(1 if kv2 else NREP):
            a(f's_lshl_b32 s{sT0}, s{sSW}, 11\ns_add_u32 s{sT2}, s{sT0}, s{sD}\ns_add_u32 s{sT2}, s{sT2}, {8192*rep + fin}')
            for hh in range(2): a(f'buffer_load_dwordx4 {vr(KVR+16*rep+4*hh,4)}, v{T[0]}, {srd(sWS)}, s{sT2} offen offset:{hh*1024} sc1')
            a(f's_lshl_b32 s{sT2}, s{sSW}, 7\ns_add_u32 s{sT2}, s{sT2}, s{sD}\ns_add_u32 s{sT2}, s{sT2}, {KV_Z + 8192*rep + fin}')
            for hh in range(2): a(f'buffer_load_dwordx4 {vr(ZR+16*rep+4*hh,4)}, v{T[1]}, {srd(sWS)}, s{sT2} offen offset:{hh*64} sc1')
        dst('kvg0')
        if late and not E('x_nocs', 0):
            earliest(CDL); cs_join()
        nbwait(ODL)
        dst('kvg1')
        def kv_sum():
            if not kv2:
                for k in range(32): a(f'v_add_f32 v{KVR+k}, v{KVR+k}, v{KVR+32+k}')
                for k in range(16): a(f'v_add_f32 v{KVR+k}, v{KVR+k}, v{KVR+16+k}')
            for hh in range(2):
                a(f'v_cvt_pk_bf16_f32 v{AK+2*hh}, v{KVR+4*hh}, v{KVR+4*hh+1}\nv_cvt_pk_bf16_f32 v{AK+2*hh+1}, v{KVR+4*hh+2}, v{KVR+4*hh+3}')
                a(f'v_cvt_pk_bf16_f32 v{AZ+2*hh}, v{ZR+4*hh}, v{ZR+4*hh+1}\nv_cvt_pk_bf16_f32 v{AZ+2*hh+1}, v{ZR+4*hh+2}, v{ZR+4*hh+3}')
        if E('dprio', 1): a(f's_setprio {E("dprio", 1)}')
        sliced(kv_sum, ODL, E('bgn2', 60))
        def o_compute():
            a('s_setprio 3')
            for k in range(8): a(f'v_mfma_f32_16x16x16_bf16 {vr(DEN+4*k,4)}, {vr(AZ+2*(k>>2),2)}, {vr(PQR+2*k,2)}, 0')
            for k in range(8): a(f'v_mfma_f32_16x16x16_bf16 {vr(NUM+4*k,4)}, {vr(AK+2*(k>>2),2)}, {vr(PQR+2*k,2)}, 0')
            a('s_setprio 0')
            if E('dprio', 1): a(f's_setprio {E("dprio", 1)}')
            for k in range(8): a(f'v_add_f32 v{DEN+4*k}, s{sEPS}, v{DEN+4*k}')
            for k in range(8): a(f'v_rcp_f32 v{DEN+4*k}, v{DEN+4*k}')
            for pr in range(4):
                for k in (2*pr, 2*pr+1):
                    for e in range(4): a(f'v_mul_f32 v{NUM+4*k+e}, v{NUM+4*k+e}, v{DEN+4*k}')
                for u in range(4*pr, 4*pr+4): a(f'v_cvt_pk_bf16_f32 v{OUT+u}, v{NUM+2*u}, v{NUM+2*u+1}')
                a(f'v_permlane16_swap_b32 v{OUT+4*pr}, v{OUT+4*pr+2}\nv_permlane16_swap_b32 v{OUT+4*pr+1}, v{OUT+4*pr+3}')
                a(f'buffer_store_dwordx4 {vr(OUT+4*pr,4)}, v{CELLV}, {srd(sWS)}, s7 offen offset:{(pr>>1)*2048+(pr&1)*512} sc1')
        dst('kvsum')
        sliced(o_compute, ODL, E('bgn3', 40))
        dst('ost')
        nbwait(ODL)
        dst('oack')
        one_lane(f'buffer_store_dword v{VONE}, v{VFO}, {srd(sWS)}, 0 offen sc1')
        if prof: a(f's_mov_b32 s10, s{sBC}'); earliest('B50')
        else: nbwait('B51')
        if prof:
            a(f's_lshl_b32 s{sT0}, s2, 3\ns_add_u32 s{sT0}, s{sT0}, s{sW}\ns_add_u32 s{sT0}, s{sT0}, 5\ns_lshl_b32 s{sT0}, s{sT0}, 8\ns_add_u32 s{sT0}, s{sT0}, {TS_OFF}')
            a(f'v_mov_b32 v2, s10\nv_mov_b32 v3, 0')
            a(f'v_lshlrev_b32 v3, 2, v0\nv_writelane_b32 v{VDS}, s10, 63\nbuffer_store_dword v{VDS}, v3, {srd(sWS)}, s{sT0} offen')
            dump_arrive(0)
        a('s_endpgm')

        a('L_sync:')
        a.vm = vmS; a.lg = []; stok.update(stokS); grp[0] = [2, 3]
        VTS, VTC = 31, 60
        if two: loader_setup()
        else:
            a('s_waitcnt lgkmcnt(0)')
            self.srds(a, skipx=True)
        if prof: a(f'v_mov_b32 v{VTS}, 0\nv_mov_b32 v{VTC}, 0\nv_writelane_b32 v{VTS}, s26, 63')
        nstamp = [0]
        def stamp(last=False):
            if prof:
                if nstamp[0]:
                    a(f's_waitcnt lgkmcnt(0)\nv_writelane_b32 v{VTS}, s{sTSP}, {nstamp[0]-1}\nv_writelane_b32 v{VTC}, s26, {nstamp[0]-1}')
                    a.lg = []
                if not last: a(f's_memrealtime s[{sTSP}:{sTSP+1}]\ns_memtime s[26:27]')
                nstamp[0] += 1
        def flag_setup():
            common_regs()
            a(f's_lshl_b32 s{sT0}, s{sR}, 7\ns_add_u32 s{sT0}, s{sT0}, {FL_OFF}\ns_lshl_b32 s{sT2}, s{sJ}, 2\ns_add_u32 s{sT2}, s{sT2}, s{sT0}\nv_mov_b32 v{VFL}, s{sT2}')
            a(f'v_and_b32 v{VZA}, 7, v0\nv_lshlrev_b32 v{VZA}, 2, v{VZA}\nv_add_u32 v{VFP}, s{sT0}, v{VZA}')
            a(f'v_and_b32 v{VZA}, 15, v0\nv_lshlrev_b32 v{VZA}, 2, v{VZA}\nv_add_u32 v{VFO}, s{sT0}, v{VZA}\nv_and_b32 v{VZA}, 31, v0\nv_lshlrev_b32 v{VZA}, 2, v{VZA}')
            a(f's_cmp_eq_u32 s{sR}, 0\ns_cselect_b32 s{sT2}, 0, -128\ns_cmp_eq_u32 s{sR}, 31\ns_cselect_b32 s{sT3}, 0, 128')
            a(f'v_lshrrev_b32 v{T[3]}, 3, v0\nv_mov_b32 v{T[4]}, 0\nv_mov_b32 v{T[5]}, s{sT2}\nv_mov_b32 v{T[6]}, s{sT3}')
            a(f'v_cmp_eq_u32 vcc, 1, v{T[3]}\nv_cndmask_b32 v{T[4]}, v{T[4]}, v{T[5]}, vcc\nv_cmp_eq_u32 vcc, 2, v{T[3]}\nv_cndmask_b32 v{T[4]}, v{T[4]}, v{T[6]}, vcc')
            a(f'v_add_u32 v{VF3}, v{VFP}, v{T[4]}')
        if not E('late', 0): flag_setup()
        stamp()
        def touch3(s, rows, dst):
            n = rows // 32
            a(f's_lshr_b32 s{sT0}, s2, 3\ns_mul_i32 s{sT0}, s{sT0}, {n*1024}\ns_add_u32 s{sT0}, s{sT0}, 384')
            a(f'v_lshlrev_b32 v{T[7]}, 10, v0\nv_cmp_gt_u32 vcc, {n}, v0\nv_cndmask_b32 v{T[7]}, v{OB}, v{T[7]}, vcc')
            return a(f'buffer_load_dword v{dst}, v{T[7]}, {srd(s)}, s{sT0} offen')
        ck = {}
        def check_issue(vaddr, sr, off):
            ck['t'] = a(f's_mov_b32 s{sT0}, {off}\nbuffer_load_dword v{VCK}, v{vaddr}, {srd(sr)}, s{sT0} offen sc1')
        def check_wait(vaddr, sr, off, val):
            L = lab('p')
            a.wait_vm(ck['t'])
            a(f's_mov_b32 s{sCNT}, {opt.get("spin", 200000)}\ns_mov_b32 s{sT0}, {off}')
            a(f'{L}:')
            a(f'v_cmp_ne_u32 vcc, {val}, v{VCK}\ns_sub_u32 s{sCNT}, s{sCNT}, 1\ns_cmp_eq_u32 s{sCNT}, 0\ns_cbranch_vccz {L}d\ns_cbranch_scc1 {L}d')
            vm = list(a.vm)
            a(f'buffer_load_dword v{VCK}, v{vaddr}, {srd(sr)}, s{sT0} offen sc1\ns_waitcnt vmcnt(0)\ns_branch {L}\n{L}d:')
            a.vm = vm
        early = []
        def pre_poll(vaddr, sr, off):
            r = [36, 37, 38][len(early)]
            a(f's_mov_b32 s{sT0}, {off}')
            early.append((r, a(f'buffer_load_dword v{r}, v{vaddr}, {srd(sr)}, s{sT0} offen sc1')))
        def poll(vaddr, sr, off, val):
            L = lab('q')
            check_issue(vaddr, sr, off)
            check_wait(vaddr, sr, off, val)
        def flag(ftype):
            a(f's_mov_b32 s{sT0}, {ftype*4096}')
            one_lane(f'buffer_store_dword v{VONE}, v{VFL}, {srd(sWS)}, s{sT0} offen sc1')
        XS = 64; xt = {}
        def xs_loads():
            a(f's_lshl_b32 s{sT0}, s{sR}, 13\ns_add_u32 s{sT0}, s{sT0}, {XS_OFF}\ns_add_u32 s{sT2}, s{sT0}, 4096\nv_lshlrev_b32 v{T[0]}, 3, v0')
            for k in range(16):
                xt['s'] = a(f'buffer_load_dwordx2 {vr(XS+2*k,2)}, v{T[0]}, {srd(sWS)}, s{sT0 if k < 8 else sT2} offen offset:{(k&7)*512} sc1')
        def xs_final(part):
            G = XS + 4; t = XS + 1
            if part == 0:
                a.wait_vm(xt['s'])
                for st in (16, 8, 4, 2):
                    for k in range(st): a(f'v_add_f32 v{XS+k}, v{XS+k}, v{XS+st+k}')
                return
            a(f'v_mul_f32 v{G}, {f2u(-1/512):#x}, v{XS}\nv_mul_f32 v{t}, {f2u(1/512):#x}, v{t}')
            a(f'v_fma_f32 v{t}, -v{G}, v{G}, v{t}\nv_max_f32 v{t}, 0, v{t}\nv_add_f32 v{t}, {f2u(1e-5):#x}, v{t}')
            a(f'v_rsq_f32 v{t+1}, v{t}\nv_sqrt_f32 v{G+3}, v{t}')
            a(f'v_mul_f32 v{G+1}, {f2u(GC0):#x}, v{t+1}\nv_mul_f32 v{t+2}, v{t+1}, v{t+1}\nv_mul_f32 v{t+2}, v{t+2}, v{t+1}\nv_mul_f32 v{G+2}, {f2u(GC1):#x}, v{t+2}')
            a(f'v_lshlrev_b32 v{T[0]}, 4, v0\nv_add_u32 v{T[0]}, {X1P}, v{T[0]}')
            a(f'ds_write_b128 v{T[0]}, {vr(G,4)}\ns_waitcnt lgkmcnt(0)')
        fhb, fxb, hlb = f"B{E('fh_bar', 6)}", f"B{E('fx_bar', 17)}", f"B{E('hl_bar', 11)}"
        for n in BARS:
            if n == 'XA': check_wait(VFP, sWS, FX1 * 4096, 1)
            if n == E('e_g0w', 'B31' if E('eg', 0) else 'B34'): check_wait(VFP, sWS, FG0 * 4096, 1)
            if n == f'B{self.need[FG1]}': check_wait(VFP, sWS, FG1 * 4096, 1)
            if n == f'B{self.need[FO]}': check_wait(VFO, sWS, FO * 4096, 1)
            if n == f'B{self.need[FG2]}': check_wait(VFP, sWS, FG2 * 4096, 1)
            if n == hlb: check_wait(VF3, sWS, FH * 4096, 1)
            if two: load_before(n)
            arrive(IDX[n]); self.barsS.append(n); a('s_barrier')
            stamp()
            if n == fhb: flag(FH)
            if n == fxb: flag(FX1)
            if n == f"B{E('fg0_bar', 27)}": flag(FG0)
            if n == f"B{E('fg1_bar', 34)}": flag(FG1)
            if n == f"B{E('fg2_bar', 37)}": flag(FG2)
            if n == (f"B{E('fa_bar', 15)}" if E('kv2', 0) else ('QE' if E('ovl', 0) and E('atp', 0) == 1 else fxb)): count(CF_A, sR)
            if n == E('e_g0i', 'B30' if E('eg', 0) else 'B31'): check_issue(VFP, sWS, FG0 * 4096)
            if n == f'B{max(self.need[FG1] - E("cl", 2), 34)}': check_issue(VFP, sWS, FG1 * 4096)
            if n == f'B{max(self.need[FO] - E("cl", 2), 34)}': check_issue(VFO, sWS, FO * 4096)
            if n == f'B{self.need[FG2] - E("cl", 2)}': check_issue(VFP, sWS, FG2 * 4096)
            if n == 'QE': check_issue(VFP, sWS, FX1 * 4096)
            if n == BARS[IDX[hlb] - E('hl_lead', 2)]: check_issue(VF3, sWS, FH * 4096)
            if n == 'B2': check_issue(VZA, sDBG, 0)
            if n == 'B15': pass
            if two: load_after(n)
            elif n[0] == 'B': stats_after(int(n[1:]))
            if n == 'B0' and E('late', 0): flag_setup()
            if n == E('e_xs', 'B20') and not E('x_noxs', 0): xs_loads()
            if n == 'B4': check_wait(VZA, sDBG, 0, 1)
            if n == 'B22' and not E('x_noxs', 0): xs_final(0)
            if n == 'B23': xs_final(1)
            if pf and n == E('e_p4', 'B13'):
                for (sr, nl) in ((sWO, 16), (sW4, 56)):
                    a(f's_mul_i32 s{sT0}, s2, {nl*128}\nv_cmp_gt_u32 vcc, {nl}, v0\nv_cndmask_b32 v{T[7]}, v{OB}, v{T[15]}, vcc\nbuffer_load_dword v62, v{T[7]}, {srd(sr)}, s{sT0} offen')
            if t3:
                if n == E('e_t3q', 'B4'): touch3(sQKV, 1536, 63)
                if n == E('e_t32', 'B7'): touch3(sW2, 512, 63)
                if n == E('e_t33', 'B13'): touch3(sW3, 1792, 63)
                if n == E('e_t33b', 'B24'): touch3(sW3, 1792, 63)
                if n == E('e_t34', 'B28'): touch3(sW4, 1792, 63)
                if n == E('e_t35', 'B37'): touch3(sWO, 512, 63); touch3(sW4, 1792, 63)
            if n[0] == 'B' and int(n[1:]) >= max(self.need.values()) + 2 and not prof and not two: break
        if prof:
            stamp(True)
            a(f's_lshl_b32 s{sT0}, s2, 3\ns_add_u32 s{sT0}, s{sT0}, 4\ns_lshl_b32 s{sT0}, s{sT0}, 8\ns_add_u32 s{sT0}, s{sT0}, {TS_OFF}')
            a(f'v_lshlrev_b32 v2, 2, v0\nbuffer_store_dword v{VTS}, v2, {srd(sWS)}, s{sT0} offen\nbuffer_store_dword v{VTC}, v2, {srd(sWS)}, s{sT0} offen offset:256')
            dump_arrive(0)
        a('s_endpgm')

        a('L_loader:')
        a.vm = vmL; a.lg = []; stok.update(stokL); grp[0] = [0, 1] if two else [0, 1, 2, 3]
        if E('lprio', 0): a(f's_setprio {E("lprio", 0)}')
        loader_setup()
        for n in BARS:
            load_before(n)
            arrive(IDX[n]); self.barsL.append(n); a('s_barrier')
            load_after(n)
        dump_arrive(0)
        a('s_endpgm')

    def build(self):
        a = Asm()
        dry = Asm(); self.compute(dry); self.barsC = []
        self.prologue(a)
        self.helper(a)
        a.lg = []; a.vm = []
        a('L_compute:')
        self.compute(a)
        a('L_end:\ns_endpgm')
        assert self.barsC[:-1] == self.barsL and self.barsC[-1] == 'RB2' and self.barsL[:len(self.barsS)] == self.barsS, (self.barsC, self.barsL, self.barsS)
        if self.opt.get('align', 3): self.alstat = align_pass(a, KNAME + ':\n', self.opt.get('align', 3))
        ref = open(f'cdna_kernels/{KNAME[:-7]}.s.ref').read().split('\n')
        head = [l for l in ref if l.startswith(';') and '@launch' not in l]
        head += ['; One persistent launch: 256 workgroups = 32 row blocks (64 tokens) x 8 column blocks, one per CU.',
                 '; Waves 0-3 compute (MFMA), wave 4 publishes/polls hand-off flags, waves 5-6 do background work (x tile, row',
                 '; statistics, column sums of w3, attention output), wave 7 streams weight tiles into an LDS ring.',
                 '; Layer norms are applied after the GEMMs as rho*(x@W - mu*colsum(W)).  Tiles exchanged between workgroups go',
                 '; through d_ws with write-through stores and flags that this launch zeroes itself (announced in d_debug).']
        if self.dnames: head.append('; dnames ' + ' '.join(self.dnames))
        out = '\n'.join(head) + '\n; @launch grid=(256,1,1) block=(512,1,1) lds=163840\n'
        out += f'.amdgcn_target "amdgcn-amd-amdhsa--gfx950"\n.text\n.globl {KNAME}\n.p2align 8\n.type {KNAME},@function\n{KNAME}:\n'
        out += a.text()
        out += f'''.section .rodata,"a"
.p2align 6
.amdhsa_kernel {KNAME}
  .amdhsa_next_free_vgpr 256
  .amdhsa_next_free_sgpr 102
  .amdhsa_accum_offset 256
  .amdhsa_group_segment_fixed_size 0
  .amdhsa_kernarg_size 88
  .amdhsa_user_sgpr_count 2
  .amdhsa_user_sgpr_kernarg_segment_ptr 1
  .amdhsa_system_sgpr_workgroup_id_x 1
.end_amdhsa_kernel
'''
        return out, a


def generate(**opt):
    g = Gen(opt)
    return g.build()[0]

if __name__ == '__main__':
    opt = {}
    for arg in sys.argv[2:]:
        k, v = arg.split('=')
        opt[k] = int(v) if v.lstrip('-').isdigit() else v
    g = Gen(opt)
    txt, a = g.build()
    open(sys.argv[1], 'w').write(txt)
    print('instructions', len(a.ins), 'pads', a.npad, 'align', getattr(g, 'alstat', None), 'issue', ISSUE)
```

```python
import sys, math, struct
sys.path.insert(0, 'dev')
import re
from asmlib import Asm, Ins, align_pass

KNAME = 'parallel_sum__linear_attn_block__mixer_s_mlp__prompt_kernel'

H_OFF, X1_OFF, O_OFF, G_OFF = 0x000000, 0x200000, 0x400000, 0x600000
KV_OFF, FL_OFF, XS_OFF, TS_OFF = 0xE00000, 0xD10000, 0xD20000, 0x1000000
CF_OFF = 0xD00000
WS_BYTES = 0x1200000
KVP, KV_Z, KV_FIN, KV_CS = 4608, 4096, 0x24000, 0x28000
CF_CS, CF_A, CF_B = 0, 1024, 2048
NREP = 4
FH, FX1, FO, FG0, FG1, FG2 = 0, 1, 2, 3, 4, 5
GBLK = 229376
RING = 0x10000
SC = 0x24000
S1, S2, NMU, RHO, RHL = SC, SC + 1024, SC + 2048, SC + 2304, SC + 2560
PQ, X1P, CS3L = SC, SC + 9216, SC + 10240
OOB = 0x80000000

def f2u(x): return struct.unpack('<I', struct.pack('<f', x))[0]
LOG2E = 1.4426950408889634
GC0 = -2.0 * math.sqrt(2.0 / math.pi) * LOG2E
GC1 = GC0 * 0.044715

sX, sQKV, sWO, sW1, sW2, sW3, sW4, sOUT, sWS, sDBG = 28, 32, 36, 40, 44, 48, 52, 56, 60, 64
sR, sJ, sW, sTH, sHI = 68, 69, 70, 71, 72
sT0, sT1, sT2, sT3, sT4, sT5 = 73, 74, 75, 76, 77, 78
sEPS = 80
sONE, sSEL0, sSEL1 = 82, 83, 84
sA, sB, sC, sD = 85, 86, 87, 88
sI0 = 79
sCODE = 92
sCNT = 90
sROT = 89
sRG = 3
sKG = 22
sKC = 96
sBG = 91
sK1, sK3, sK5, sKX = 92, 96, 4, 18
sTSP = 100

def srd(n): return f's[{n}:{n+3}]'
def vr(n, k=1): return f'v{n}' if k == 1 else f'v[{n}:{n+k-1}]'

STAGES = ([('w1', s) for s in range(4)] + [('kv', s) for s in range(8)] + [('w2', s) for s in range(4)] +
          [('wq', s) for s in range(4)] + [('p0', s) for s in range(4)] + [('hf', s) for s in range(2)] +
          [('p1', s) for s in range(4)] + [('p2', s) for s in range(4)] +
          [])
STAGES0 = list(STAGES)
def set_order(order):
    STAGES[:] = STAGES0 + [(k, s) for k in order.split('.') for s in range(2 if k == 'gh' else 4)]
set_order('g0.g1.gh.wo.g2')
def g_rows(kind, s):
    if kind == 'gh': return 896 * s + 192, 896 * s + 640
    p = int(kind[1])
    return 448 * s + 64 * p, 448 * s + 256 + 64 * p
NST = len(STAGES)
AREL = 27

def plan_slots(opt):
    free = [RING + i * 0x4000 for i in range(5)]
    slot = {}; issue = {}
    quota = {13: opt.get('q13', 0), 16: opt.get('q16', 1), 17: 2, 24: opt.get('q24', 3), 27: 1, 30: opt.get('q30', 4), 34: opt.get('q34', 1)}
    jit = opt.get('jit', 5)
    regs = [int(x) for x in str(opt.get('regs', '')).split('.') if x]
    nxt = 0
    def drain(key, q, b):
        nonlocal nxt
        while free and nxt < NST and (nxt in regs or ((q > 0 or nxt <= b + 2) and not (b >= 35 and nxt > b + jit))):
            slot[nxt] = free.pop(0); issue.setdefault(key, []).append(nxt); q -= nxt not in regs; nxt += 1
    drain(-1, 5, -1)
    for b in range(NST):
        if b == 20:
            free.extend([slot[18], slot[19]]); drain('QE', 2, 19)
        er = [int(x) for x in str(opt.get('erel', '24.30.34')).split('.') if x != 'X']
        if b >= 2 and b not in (20, 21) and (b - 1) not in er: free.append(slot[b - 2])
        if b in er: free.append(slot[b - 1])
        if b == (24 if opt.get('hfv', 1) else AREL): free.extend([0, 0x4000, 0x8000, 0xC000])
        if b == 32 and opt.get('sc10', 1): free.append(SC)
        if SC in free and nxt > 47: free.remove(SC)
        if b == 15 and opt.get('rb17', 1): drain('RB1', quota.get(b, 1), b)
        else: drain(b, quota.get(b, 1), b)
    assert nxt == NST
    return slot, issue


class Gen:
    def __init__(self, opt):
        self.opt = opt
        self.barsC = []; self.barsS = []; self.barsL = []; self.dnames = []
        global SLOT, ISSUE
        set_order(opt.get('order', 'g0.g1.gh.g2.wo' if opt.get('kv2', 0) else 'g0.wo.g1.gh.g2'))
        SLOT, ISSUE = plan_slots(opt)

    def prologue(self, a):
        a('s_cmp_ge_u32 s2, 256\ns_cbranch_scc1 L_end')
        a('s_load_dwordx16 s[4:19], s[0:1], 0\ns_load_dwordx4 s[20:23], s[0:1], 64\ns_load_dwordx2 s[24:25], s[0:1], 80')
        if self.opt.get('prof'):
            a(f's_memrealtime s[26:27]\ns_memtime s[90:91]')
        m = self.opt.get('map', 'h4')
        if m == 'same':
            a(f's_and_b32 s{sR}, s2, 7\ns_lshr_b32 s{sT0}, s2, 6\ns_lshl_b32 s{sT0}, s{sT0}, 3\ns_or_b32 s{sR}, s{sR}, s{sT0}')
            a(f's_lshr_b32 s{sJ}, s2, 3\ns_and_b32 s{sJ}, s{sJ}, 7')
        elif m == 'h4':
            a(f's_and_b32 s{sR}, s2, 3\ns_lshr_b32 s{sT0}, s2, 5\ns_lshl_b32 s{sT0}, s{sT0}, 2\ns_or_b32 s{sR}, s{sR}, s{sT0}')
            a(f's_lshr_b32 s{sJ}, s2, 2\ns_and_b32 s{sJ}, s{sJ}, 7')
        elif m == 'cross':
            a(f's_lshr_b32 s{sR}, s2, 3\ns_and_b32 s{sJ}, s2, 7')
        a('v_lshrrev_b32 v1, 6, v0\nv_and_b32 v0, 63, v0')
        a(f'v_readfirstlane_b32 s{sT1}, v1')
        a(f's_mov_b32 s{sX+2}, {2<<20}\ns_mov_b32 s{sX+3}, 0x20000')
        a(f's_and_b32 s{sW}, s{sT1}, 3\ns_and_b32 s{sTH}, s{sT1}, 1\ns_lshr_b32 s{sHI}, s{sW}, 1')
        sh = {'same': 3, 'h4': 2, 'cross': 5}[m] if self.opt.get('rot2', 1) else 8
        a(f's_lshr_b32 s{sROT}, s{sR}, {sh}\ns_add_u32 s{sROT}, s{sROT}, s{sR}\ns_add_u32 s{sROT}, s{sROT}, s{sJ}\ns_and_b32 s{sROT}, s{sROT}, 3')
        sh2 = {'same': 3, 'h4': 2, 'cross': 5}[m]
        if self.opt.get('rotg', 1): a(f's_lshr_b32 s{sRG}, s{sR}, {sh2}\ns_add_u32 s{sRG}, s{sRG}, s{sJ}\ns_and_b32 s{sRG}, s{sRG}, 3')
        else: a(f's_mov_b32 s{sRG}, 0')
        a(f's_cmp_lt_u32 s{sT1}, 4\ns_cbranch_scc1 L_compute')

    def srds(self, a, skipx=False, skip1=False):
        a(f's_mov_b32 s{sEPS}, {f2u(1e-6):#x}\ns_mov_b32 s{sEPS+1}, {f2u(1e-6):#x}\ns_mov_b32 s{sONE}, 0x3f803f80')
        for (s, p, n) in ((sX, 4, 2 << 20), (sW1, 12, 512 * 1024), (sQKV, 6, 512 * 3072), (sWO, 8, 512 * 1024), (sW2, 14, 512 * 1024),
                          (sW3, 16, 512 * 3584), (sW4, 18, 1792 * 1024), (sOUT, 20, 2 << 20), (sWS, 24, WS_BYTES), (sDBG, 22, 256)):
            if s == sX and skipx: continue
            if s == sW1 and skip1: continue
            a(f's_mov_b32 s{s}, s{p}\ns_and_b32 s{s+1}, s{p+1}, 0xffff\ns_mov_b32 s{s+2}, {n}\ns_mov_b32 s{s+3}, 0x20000')

    def run_steps(self, a, steps):
        n = len(steps)
        sched = {}
        for i, s in enumerate(steps):
            sched.setdefault(s['at'], []).append(i)
        def items(i):
            s = steps[i]
            out = []
            if s.get('pre'): out.append(('pre', i))
            out += [('rd', i, t) for t in s['reads']]
            return out
        def emit(it):
            if it[0] == 'pre':
                steps[it[1]]['pre']()
            elif it[0] == 'rd':
                steps[it[1]]['tok'] = a(it[2])
                steps[it[1]].setdefault('toks', []).append(steps[it[1]]['tok'])
            else:
                it[1]()
        for i in sched.get(-1, []):
            for it in items(i): emit(it)
        for k in range(n):
            s = steps[k]
            if s.get('hook'): s['hook']()
            pend = []
            for i in sched.get(k, []):
                if i == k:
                    for it in items(i): emit(it)
                else:
                    pend += items(i)
            pend += [('post', f) for f in s.get('post', [])]
            vt = s['vm']() if s.get('vm') else None
            sp = s.get('split') if len(s.get('toks', [])) == len(s['reads']) and s['reads'] else None
            a.wait_both(s['toks'][sp[0] - 1] if sp else s.get('tok'), vt)
            nm = len(s['mfmas'])
            per = -(-len([p for p in pend if p[0] != 'pre']) // nm) if pend else 0
            for mi, m in enumerate(s['mfmas']):
                if sp and mi == sp[1]: a.wait_lg(s['tok'])
                a(m)
                if s.get('tail') and s['tail'][mi]: s['tail'][mi]()
                c = 0
                while pend and (c < per or mi == nm - 1):
                    it = pend.pop(0)
                    emit(it)
                    if it[0] != 'pre': c += 1
                    elif mi < nm - 1 and self.opt.get('bfast', 0):
                        per = -(-len(pend) // (nm - 1 - mi))
                        break

    def barC(self, a, name):
        self.barsC.append(name); a('s_barrier')

    def gelu(self, a, pairs, tmp, after_first=None):
        P = lambda r: vr(r, 2)
        for i, (ac, cs, st, o) in enumerate(pairs):
            a(f'v_pk_fma_f32 {P(ac)}, {P(cs)}, {P(st)}, {P(ac)} op_sel:[0,0,0] op_sel_hi:[1,0,1]')
        if after_first: after_first()
        for i, (ac, cs, st, o) in enumerate(pairs):
            a(f'v_pk_mul_f32 {P(tmp+2*i)}, {P(ac)}, {P(ac)}')
        for i, (ac, cs, st, o) in enumerate(pairs):
            a(f'v_pk_fma_f32 {P(tmp+2*i)}, {P(tmp+2*i)}, {P(st+2)}, {P(st)} op_sel:[0,0,1] op_sel_hi:[1,0,1]')
        for i, (ac, cs, st, o) in enumerate(pairs):
            a(f'v_pk_mul_f32 {P(tmp+2*i)}, {P(tmp+2*i)}, {P(ac)}')
        for i in range(2 * len(pairs)):
            a(f'v_exp_f32_e64 v{tmp+i}, v{tmp+i}')
        for i, (ac, cs, st, o) in enumerate(pairs):
            a(f'v_pk_fma_f32 {P(tmp+2*i)}, {P(tmp+2*i)}, {P(st+2)}, {P(st+2)} op_sel:[0,1,1] op_sel_hi:[1,1,1]')
        for i in range(2 * len(pairs)):
            a(f'v_rcp_f32_e64 v{tmp+i}, v{tmp+i}')
        for i, (ac, cs, st, o) in enumerate(pairs):
            a(f'v_pk_mul_f32 {P(tmp+2*i)}, {P(tmp+2*i)}, {P(ac)}')
        for i, (ac, cs, st, o) in enumerate(pairs):
            a(f'v_cvt_pk_bf16_f32 v{o}, v{tmp+2*i}, v{tmp+2*i+1}')

    def phi_tail(self, a, acs, outs, tmp):
        P = lambda r: vr(r, 2)
        n = len(acs)
        for i in range(2 * n): a(f'v_exp_f32_e64 v{tmp+i}, v{tmp+i} clamp')
        for ac in acs:
            a(f'v_max_f32_e64 v{ac}, v{ac}, s{sEPS}\nv_max_f32_e64 v{ac+1}, v{ac+1}, s{sEPS}')
        for i, ac in enumerate(acs): a(f'v_pk_add_f32 {P(ac)}, {P(ac)}, {P(tmp+2*i)}')
        for i, ac in enumerate(acs): a(f'v_cvt_pk_bf16_f32 v{outs[i]}, v{ac}, v{ac+1}')

    def compute(self, a):
        opt = self.opt
        P = lambda r: vr(r, 2)
        XB = [2, 3, 4, 5]; PAT16, WK16 = 6, 7
        PATN = [8, 9]; PATP = [10, 11, 12, 13]; PAT3 = [14, 15]
        WK = [16, 17, 18, 19]
        CELLV, CELLT, LL16, RDX = 20, 21, 22, 23
        RES = 24; QST = 40; PST = 196
        ONES = 56
        STA, STB, XE, PSA = 1, 54, 19, 18
        HV = [252, 253, 254, 255]
        T = [240 + i for i in range(12)]
        q, i16, rr, c, h, t32, fsub = 228, 229, 230, 231, 232, 233, 234
        a(f'v_lshrrev_b32 v{q}, 4, v0\nv_and_b32 v{i16}, 15, v0\nv_lshrrev_b32 v{rr}, 2, v{i16}\nv_and_b32 v{c}, 3, v0')
        a(f'v_lshrrev_b32 v{h}, 5, v0\nv_and_b32 v{t32}, 31, v0\nv_and_b32 v{fsub}, 1, v{q}')
        a(f'v_lshlrev_b32 v{LL16}, 4, v0')
        a(f'v_lshlrev_b32 v{T[2]}, 3, v0')
        a(f's_lshr_b32 s{sT3}, s2, 3\ns_lshl_b32 s{sT3}, s{sT3}, 2\ns_add_u32 s{sT3}, s{sT3}, s{sW}\ns_lshl_b32 s{sT3}, s{sT3}, 9')
        a(f's_getpc_b64 s[{sCODE}:{sCODE+1}]\nL_pc:\ns_sub_u32 s{sCODE}, s{sCODE}, L_pc-{KNAME}\ns_subb_u32 s{sCODE+1}, s{sCODE+1}, 0')
        a(f's_and_b32 s{sCODE+1}, s{sCODE+1}, 0xffff\ns_mov_b32 s{sCODE+2}, L_end-{KNAME}\ns_mov_b32 s{sCODE+3}, 0x20000')
        if opt.get('cpf', 1): a(f'buffer_load_dword v24, v{T[2]}, {srd(sCODE)}, s{sT3} offen')
        if opt.get('t0', 0):
            a(f's_lshl_b32 s{sT0}, s{sR}, 3\ns_add_u32 s{sT0}, s{sT0}, s{sJ}\ns_lshl_b32 s{sT0}, s{sT0}, 2\ns_add_u32 s{sT0}, s{sT0}, s{sW}\ns_lshl_b32 s{sT2}, s{sT0}, 9\ns_lshl_b32 s{sT0}, s{sT0}, 11')
            a(f'v_lshlrev_b32 v{T[3]}, 5, v0\ns_mov_b32 s{sW1+2}, {512*1024}\ns_mov_b32 s{sW1+3}, 0x20000')
        a('s_waitcnt lgkmcnt(0)')
        if opt.get('t0', 0):
            a(f's_mov_b32 s{sX}, s4\ns_and_b32 s{sX+1}, s5, 0xffff\nbuffer_load_dword v25, v{T[3]}, {srd(sX)}, s{sT0} offen')
            a(f's_mov_b32 s{sW1}, s12\ns_and_b32 s{sW1+1}, s13, 0xffff\nbuffer_load_dword v26, v{T[2]}, {srd(sW1)}, s{sT2} offen')
        self.srds(a)
        a(f's_lshr_b32 s{sT0}, s{sR}, 2\ns_or_b32 s{sT0}, s{sT0}, s{sW}\ns_cmp_lg_u32 s{sT0}, 0\ns_cbranch_scc1 L_nozero')
        vm0 = list(a.vm)
        a(f'v_mov_b32 v{T[4]}, 0\nv_mov_b32 v{T[5]}, 0\nv_mov_b32 v{T[6]}, 0\nv_mov_b32 v{T[7]}, 0')
        a(f's_lshl_b32 s{sT3}, s{sJ}, 2\ns_add_u32 s{sT3}, s{sT3}, s{sR}')
        a(f's_lshl_b32 s{sT0}, s{sT3}, 10\ns_add_u32 s{sT0}, s{sT0}, {CF_OFF}')
        a(f'buffer_store_dwordx4 {vr(T[4],4)}, v{LL16}, {srd(sWS)}, s{sT0} offen sc1')
        a(f's_lshl_b32 s{sT0}, s{sJ}, 18\ns_lshl_b32 s{sT2}, s{sR}, 13\ns_add_u32 s{sT0}, s{sT0}, s{sT2}\ns_add_u32 s{sT0}, s{sT0}, {KV_OFF}\ns_add_u32 s{sT2}, s{sT0}, 4096')
        for u in range(0 if opt.get('kv2', 0) else 5):
            a(f'buffer_store_dwordx4 {vr(T[4],4)}, v{LL16}, {srd(sWS)}, s{sT0 if u < 4 else sT2} offen offset:{(u&3)*1024} sc1')
        a(f'v_lshlrev_b32 v{T[8]}, 12, v{q}\nv_lshl_add_u32 v{T[8]}, v{i16}, 3, v{T[8]}')
        a(f's_lshl_b32 s{sT0}, s{sT3}, 7\ns_add_u32 s{sT0}, s{sT0}, {FL_OFF}')
        a(f'buffer_store_dwordx2 {vr(T[4],2)}, v{T[8]}, {srd(sWS)}, s{sT0} offen sc1\ns_add_u32 s{sT0}, s{sT0}, 16384')
        a(f'buffer_store_dwordx2 {vr(T[4],2)}, v{T[8]}, {srd(sWS)}, s{sT0} offen sc1')
        a(f'v_mov_b32 v{T[9]}, 1\ns_lshl_b32 s{sT0}, s{sT3}, 2\nv_mov_b32 v{T[10]}, s{sT0}')
        a.wait_vm0()
        a('s_mov_b64 exec, 1')
        a(f'buffer_store_dword v{T[9]}, v{T[10]}, {srd(sDBG)}, 0 offen sc1')
        a('s_mov_b64 exec, -1')
        a('L_nozero:')
        a.vm = vm0
        a(f'v_mov_b32 v{T[1]}, {OOB}')
        for m in range(4):
            a(f'v_or_b32 v{T[0]}, {4*m}, v{q}\nv_xor_b32 v{T[0]}, v{T[0]}, v{i16}\nv_lshlrev_b32 v{T[0]}, 4, v{T[0]}')
            a(f'v_lshl_add_u32 v{XB[m]}, v{i16}, 8, v{T[0]}')
        a(f'v_lshrrev_b32 v{T[4]}, 1, v{rr}\nv_lshlrev_b32 v{T[4]}, 2, v{T[4]}\nv_lshrrev_b32 v{T[5]}, 1, v{c}')
        a(f'v_and_b32 v{T[6]}, 1, v{c}\nv_lshlrev_b32 v{T[6]}, 3, v{T[6]}')
        a(f's_lshl_b32 s{sT0}, s{sW}, 1\nv_add_u32 v{T[7]}, s{sT0}, v{T[5]}\nv_xor_b32 v{T[7]}, v{T[7]}, v{T[4]}')
        a(f'v_lshlrev_b32 v{T[8]}, 1, v{fsub}\nv_xor_b32 v{T[7]}, v{T[7]}, v{T[8]}\nv_lshl_add_u32 v{T[7]}, v{T[7]}, 4, v{T[6]}')
        a(f'v_lshl_add_u32 v{T[9]}, v{q}, 3, v{rr}\nv_lshl_add_u32 v{PAT16}, v{T[9]}, 7, v{T[7]}')
        a(f's_lshl_b32 s{sT0}, s{sHI}, 2\nv_add3_u32 v{T[7]}, s{sT0}, v{T[8]}, v{T[5]}\nv_xor_b32 v{T[7]}, v{T[7]}, v{T[4]}')
        a(f's_lshl_b32 s{sT2}, s{sHI}, 13')
        a(f'v_lshlrev_b32 v{T[9]}, 1, v{h}\nv_xor_b32 v{T[9]}, v{T[9]}, v{T[7]}\nv_lshl_add_u32 v{T[9]}, v{T[9]}, 4, v{T[6]}')
        a(f'v_lshl_add_u32 v{T[10]}, v{h}, 3, v{rr}\nv_lshl_add_u32 v{T[9]}, v{T[10]}, 7, v{T[9]}')
        a(f'v_add_u32 v{PATN[0]}, s{sT2}, v{T[9]}\nv_xor_b32 v{PATN[1]}, 64, v{PATN[0]}')
        a(f'v_lshl_add_u32 v{T[9]}, v{T[7]}, 4, v{T[6]}\nv_lshl_add_u32 v{T[10]}, v{h}, 2, v{rr}\nv_lshl_add_u32 v{PAT3[0]}, v{T[10]}, 7, v{T[9]}')
        a(f'v_xor_b32 v{PAT3[1]}, 32, v{PAT3[0]}\nv_add_u32 v{PAT3[1]}, 1024, v{PAT3[1]}')
        a(f'v_add_u32 v{PATP[0]}, s{sT2}, v{PAT3[0]}\nv_add_u32 v{PATP[1]}, s{sT2}, v{PAT3[1]}')
        a(f'v_xor_b32 v{PATP[2]}, 64, v{PATP[0]}\nv_xor_b32 v{PATP[3]}, 64, v{PATP[1]}')
        a(f'v_lshlrev_b32 v{CELLV}, 10, v{h}\nv_lshl_add_u32 v{CELLV}, v{t32}, 4, v{CELLV}')
        a(f's_lshl_b32 s{sT0}, s{sTH}, 9\nv_add_u32 v{CELLT}, s{sT0}, v{CELLV}')
        for i in range(4): a(f'v_mov_b32 v{ONES+i}, s{sONE}')
        a(f's_lshl_b32 s{sT0}, s{sTH}, 5\nv_add_u32 v{T[0]}, s{sT0}, v{t32}')
        a(f's_lshl_b32 s{sT2}, s{sHI}, 13\nv_lshl_add_u32 v{T[2]}, v{h}, 10, s{sT2}')
        rot = opt.get('rot', 1)
        for g in range(4):
            if rot: a(f's_add_u32 s{sT0}, s{sROT}, {g}\ns_and_b32 s{sT0}, s{sT0}, 3')
            else: a(f's_mov_b32 s{sT0}, {g}')
            a(f's_lshl_b32 s{sKC+g}, s{sT0}, 14\ns_lshr_b32 s{sT3}, s{sT0}, 1\ns_add_u32 s{sT3}, s{sT3}, 1\ns_sub_u32 s{sT4}, 0, s{sT3}\ns_bitcmp1_b32 s{sT0}, 0\ns_cselect_b32 s{sT3}, s{sT3}, s{sT4}')
            a(f'v_add_u32 v{T[3]}, s{sT3}, v{T[0]}\nv_ashrrev_i32 v{T[4]}, 6, v{T[3]}\nv_add_u32 v{T[4]}, s{sR}, v{T[4]}')
            if opt.get('ssh', 0): a(f'v_lshl_add_u32 v{T[3]}, v{T[0]}, 4, v{T[2]}\ns_lshl_b32 s{sT3}, s{sR}, 16\ns_add_u32 s{sT3}, s{sT3}, s{sKC+g}\nv_add_u32 v{T[3]}, s{sT3}, v{T[3]}')
            else: a(f'v_and_b32 v{T[3]}, 63, v{T[3]}\nv_lshl_add_u32 v{T[3]}, v{T[3]}, 4, v{T[2]}\nv_lshl_add_u32 v{T[3]}, v{T[4]}, 16, v{T[3]}\nv_add_u32 v{T[3]}, s{sKC+g}, v{T[3]}')
            a(f'v_cmp_gt_u32 vcc, 32, v{T[4]}\nv_cndmask_b32 v{HV[g]}, v{T[1]}, v{T[3]}, vcc')
        HS = [26, 27]
        if opt.get('ssh', 0):
            a(f's_lshr_b32 s{sT0}, s{sJ}, 1\ns_lshr_b32 s{sT3}, s{sT0}, 1\ns_add_u32 s{sT3}, s{sT3}, 1\ns_sub_u32 s{sT4}, 0, s{sT3}\ns_bitcmp1_b32 s{sT0}, 0\ns_cselect_b32 s{sT3}, s{sT4}, s{sT3}')
            for pr in range(2):
                a(f'v_add_u32 v{T[3]}, s{sT3}, v{t32}')
                if pr: a(f'v_add_u32 v{T[3]}, 32, v{T[3]}')
                a(f'v_ashrrev_i32 v{T[4]}, 6, v{T[3]}\nv_add_u32 v{T[4]}, s{sR}, v{T[4]}\nv_and_b32 v{T[3]}, 63, v{T[3]}\nv_lshlrev_b32 v{T[3]}, 4, v{T[3]}')
                a(f'v_lshl_add_u32 v{T[3]}, v{h}, 10, v{T[3]}\nv_lshl_add_u32 v{T[3]}, v{T[4]}, 16, v{T[3]}\nv_cmp_gt_u32 vcc, 32, v{T[4]}\nv_cndmask_b32 v{HS[pr]}, v{T[1]}, v{T[3]}, vcc')
        a(f'v_lshlrev_b32 v{STA}, 4, v{i16}\nv_add_u32 v{STA}, {SC}, v{STA}')
        a(f'v_lshlrev_b32 v{STB}, 4, v{q}\nv_add_u32 v{STB}, {NMU}, v{STB}')
        a(f'v_lshlrev_b32 v{PSA}, 4, v{T[0]}\nv_add_u32 v{PSA}, {S2}, v{PSA}')
        a(f's_and_b32 s{sT0}, s{sJ}, 1\ns_lshl_b32 s{sT0}, s{sT0}, 3\ns_lshl_b32 s{sT2}, s{sHI}, 2\ns_add_u32 s{sT0}, s{sT0}, s{sT2}')
        a(f's_lshr_b32 s{sT2}, s{sJ}, 1\ns_sub_u32 s{sT2}, s{sT2}, s{sROT}\ns_and_b32 s{sT2}, s{sT2}, 3\ns_lshl_b32 s{sT2}, s{sT2}, 14')
        a(f'v_xor_b32 v{XE}, s{sT0}, v{i16}\nv_lshlrev_b32 v{XE}, 4, v{XE}\nv_lshl_add_u32 v{XE}, v{h}, 3, v{XE}\nv_lshl_add_u32 v{XE}, v{T[0]}, 8, v{XE}\nv_add_u32 v{XE}, s{sT2}, v{XE}')
        a(f's_xor_b32 s{sT0}, s{sW}, 2\ns_lshl_b32 s{sT0}, s{sT0}, 12\ns_add_u32 s{sT0}, s{sT0}, {SC}\nv_add_u32 v{RDX}, s{sT0}, v{LL16}')
        a(f's_lshl_b32 s{sA}, s{sR}, 16')
        a(f's_lshl_b32 s{sT0}, s{sJ}, 2\ns_add_u32 s{sT0}, s{sT0}, s{sW}\ns_lshl_b32 s{sT0}, s{sT0}, 11')
        a(f's_mov_b32 s{sB}, s{sT0}' if opt.get('ssh', 0) else f's_add_u32 s{sB}, s{sA}, s{sT0}')
        if opt.get('kv2', 0): a(f's_mul_i32 s{sT0}, s{sR}, {KVP}')
        else: a(f's_and_b32 s{sT0}, s{sR}, 3\ns_lshl_b32 s{sT0}, s{sT0}, 13')
        a(f's_lshl_b32 s{sC}, s{sJ}, 18\ns_add_u32 s{sC}, s{sC}, s{sT0}\ns_add_u32 s{sC}, s{sC}, {KV_OFF}')
        a(f's_mul_i32 s{sD}, s{sR}, {GBLK}\ns_add_u32 s{sD}, s{sD}, {G_OFF}')

        def cst(k):
            if opt.get('prof') in (1, 2) and opt.get('cset', 0) == k // 8: a(f's_memrealtime s[{4+2*(k%8)}:{5+2*(k%8)}]')
        def stage_pre(st, wks, pats, extra=None, after=None):
            def f():
                for wk, pt in zip(wks, pats):
                    a(f'v_add_u32 v{wk}, {SLOT[st]}, v{pt}')
                if extra: extra()
                self.barC(a, f'B{st}')
                if after: after()
            return f

        def steps_q(first, acc, cs, sets, base_at):
            st = []
            for ks in range(16):
                sb = sets[ks % 3]; stg = first + ks // 4
                reads = [f'ds_read_b64_tr_b16 {vr(sb+16,2)}, v{WK16} offset:{(ks%4)*4096}',
                         f'ds_read_b64_tr_b16 {vr(sb+18,2)}, v{WK16} offset:{(ks%4)*4096+512}']
                reads += [f'ds_read_b128 {vr(sb+4*tt,4)}, v{XB[ks&3]} offset:{tt*4096+(ks>>2)*16384}' for tt in range(4)]
                mf = [f'v_mfma_f32_16x16x32_bf16 {vr(cs,4)}, {vr(sb+16,4)}, {vr(ONES,4)}, {vr(cs,4) if ks else 0}']
                mf += [f'v_mfma_f32_16x16x32_bf16 {vr(acc+4*tt,4)}, {vr(sb+16,4)}, {vr(sb+4*tt,4)}, {vr(acc+4*tt,4) if ks else 0}' for tt in range(4)]
                st.append(dict(reads=reads, mfmas=mf, at=base_at + ks - 2, stage=stg if ks % 4 == 0 else None))
            return st

        HACC, HCS, HSETS = 60, 76, [80, 100, 120]
        KACC, VACC, KCS, VCS, KSETS = 140, 156, 172, 176, [180, 204]
        ovl = opt.get('ovl', 0)
        HF = 60; P2ACC = 180 if ovl else 140
        steps = steps_q(0, HACC, HCS, HSETS, 0)
        steps[0]['at'] = -1; steps[1]['at'] = -1
        for s in steps:
            if s['stage'] is not None: s['pre'] = stage_pre(s['stage'], [WK16], [PAT16])
        nh = len(steps)

        htok = {}
        HST = 80
        def h_stats_reads():
            for tt in range(4):
                htok['s'] = a(f'ds_read_b128 {vr(228+4*tt,4)}, v{STA} offset:{tt*256}')
        def h_epilogue():
            ST = 228; TMP = 100; OUT = 116
            a.wait_lg(htok['s'])
            pairs = [(HACC + 2*u, HCS + 2*(u & 1), ST + 4*(u >> 1), OUT + u) for u in range(8)]
            self.gelu(a, pairs, TMP)
            for pr in range(2):
                a(f'v_permlane16_swap_b32 v{OUT+4*pr}, v{OUT+4*pr+2}\nv_permlane16_swap_b32 v{OUT+4*pr+1}, v{OUT+4*pr+3}')
                htok['st'] = a(f'buffer_store_dwordx4 {vr(OUT+4*pr,4)}, v{HS[pr]}, {srd(sWS)}, s{sB} offen sc1' if opt.get('ssh', 0) else f'buffer_store_dwordx4 {vr(OUT+4*pr,4)}, v{CELLV}, {srd(sWS)}, s{sB} offen offset:{pr*512} sc1')
            cst(0)

        hl = {}; xp = {}
        HX = 196; x2 = {}
        def hload(n):
            sg, i = n // 4, n % 4
            if n >= 16:
                if n == 16: a(f'v_xor_b32 v{HV[0]}, 8192, v{HV[3]}')
                if i % 2 == 0: a(f's_mov_b32 s{sI0}, {H_OFF + (i>>1)*4096}')
                hl[n] = a(f'buffer_load_dwordx4 {vr(HX+4*i,4)}, v{HV[0]}, {srd(sWS)}, s{sI0} offen offset:{(i&1)*2048} sc1')
                return
            if i % 2 == 0: a(f's_mov_b32 s{sI0}, {H_OFF + (i>>1)*4096}')
            hl[n] = a(f'buffer_load_dwordx4 {vr(HF+4*n,4)}, v{HV[sg]}, {srd(sWS)}, s{sI0} offen offset:{(i&1)*2048} sc1')
        for ks in range(16):
            sb = KSETS[ks % 2]; stg = 4 + ks // 2
            o = (ks % 2) * 4096
            reads = [f'ds_read_b64_tr_b16 {vr(sb+16,2)}, v{WK16} offset:{o}', f'ds_read_b64_tr_b16 {vr(sb+18,2)}, v{WK16} offset:{o+512}',
                     f'ds_read_b128 {vr(sb,4)}, v{XB[ks&3]} offset:{(ks>>2)*16384}',
                     f'ds_read_b64_tr_b16 {vr(sb+20,2)}, v{WK16} offset:{o+8192}', f'ds_read_b64_tr_b16 {vr(sb+22,2)}, v{WK16} offset:{o+8192+512}']
            reads += [f'ds_read_b128 {vr(sb+4*tt,4)}, v{XB[ks&3]} offset:{tt*4096+(ks>>2)*16384}' for tt in range(1, 4)]
            mf = [f'v_mfma_f32_16x16x32_bf16 {vr(KCS,4)}, {vr(ONES,4)}, {vr(sb+16,4)}, {vr(KCS,4) if ks else 0}',
                  f'v_mfma_f32_16x16x32_bf16 {vr(VCS,4)}, {vr(ONES,4)}, {vr(sb+20,4)}, {vr(VCS,4) if ks else 0}']
            for tt in range(4):
                mf.append(f'v_mfma_f32_16x16x32_bf16 {vr(KACC+4*tt,4)}, {vr(sb+4*tt,4)}, {vr(sb+16,4)}, {vr(KACC+4*tt,4) if ks else 0}')
                mf.append(f'v_mfma_f32_16x16x32_bf16 {vr(VACC+4*tt,4)}, {vr(sb+4*tt,4)}, {vr(sb+20,4)}, {vr(VACC+4*tt,4) if ks else 0}')
            s = dict(reads=reads, mfmas=mf, at=nh + ks - 1)
            if opt.get('ksp', 1): s['split'] = (5, 4)
            if ks % 2 == 0:
                extra = after = None
                if stg == opt.get('fh_bar', 6): extra = lambda: (a.wait_vm(htok['st']), cst(1))
                if stg == opt.get('hl_bar', 11): after = lambda: a.inject([lambda n=n: hload(n) for n in range(16)], opt.get('hl_every', 16))
                if stg == 4: after = h_stats_reads
                if stg == opt.get('xn_bar', 11) - 1: after = lambda o=after: ((o() if o else None), xn_prep())
                if stg == opt.get('xn_bar', 11): extra = lambda: xn_prep2()
                s['pre'] = stage_pre(stg, [WK16], [PAT16], extra, after)
            steps.append(s)
        kr0, kp0 = steps[nh]['reads'], steps[nh]['pre']
        steps[nh]['reads'] = []; steps[nh]['pre'] = None
        def h_hook():
            kp0()
            for t in kr0: steps[nh]['tok'] = a(t)
            h_epilogue()
        steps[nh]['hook'] = h_hook
        nkv = len(steps)

        ASETS = [228, 236, 244]
        def steps_ks(first, nstage, pats, natural, acc, bfrag, asets, base, setphase=0, init=True, c_init=None):
            st = []
            for n in range(4 * nstage):
                stg = first + n // 4; i = n % 4
                sb = asets[(n + setphase) % 3]
                reads = []
                for t in range(2):
                    for rd in range(2):
                        if natural:
                            reads.append(f'ds_read_b64_tr_b16 {vr(sb+4*t+2*rd,2)}, v{WK[t]} offset:{i*2048+rd*512}')
                        else:
                            reads.append(f'ds_read_b64_tr_b16 {vr(sb+4*t+2*rd,2)}, v{WK[2*t+rd]} offset:{i*2048}')
                b = bfrag(n)
                c0 = vr(acc if (n or c_init is None) else c_init, 16)
                c1 = vr(acc + 16, 16) if (n or not init) else 0
                mf = [f'v_mfma_f32_32x32x16_bf16 {vr(acc,16)}, {vr(sb,4)}, {vr(b,4)}, {c0}',
                      f'v_mfma_f32_32x32x16_bf16 {vr(acc+16,16)}, {vr(sb+4,4)}, {vr(b,4)}, {c1}']
                s = dict(reads=reads, mfmas=mf, at=base + n - 2)
                if i == 0: s['pre'] = stage_pre(stg, WK[:len(pats)], pats)
                st.append(s)
            return st

        p2 = steps_ks(12, 4, PATN, True, P2ACC, lambda n: HF + 4 * n, ASETS, nkv, c_init=124)
        p2[0]['at'] = nkv - 1; p2[1]['at'] = nkv - 1
        if opt.get('hl_bar', 11) == 12:
            p2[0]['pre'] = (lambda o=p2[0]['pre']: (o(), a.inject([lambda n=n: hload(n) for n in range(16)], opt.get('hl_every', 16))))
        XN = 124
        def xn_prep():
            XR = 228
            a(f'v_xor_b32 v{XR+8}, 16, v{XE}\nv_xor_b32 v{XR+9}, 32, v{XE}\nv_xor_b32 v{XR+10}, 48, v{XE}')
            a(f'ds_read_b64 {vr(XR,2)}, v{XE}')
            for g in range(1, 4): a(f'ds_read_b64 {vr(XR+2*g,2)}, v{XR+7+g}')
            xp['t'] = a(f'ds_read_b64 {vr(XR+12,2)}, v{PSA}')
        def xn_prep2():
            XR = 228
            a.wait_lg(xp['t'])
            for g in range(4):
                for d in range(2):
                    a(f'v_lshlrev_b32 v{RES+4*g+2*d}, 16, v{XR+2*g+d}\nv_and_b32 v{RES+4*g+2*d+1}, 0xffff0000, v{XR+2*g+d}')
            a(f'v_mul_f32 v{XR+12}, v{XR+12}, v{XR+13}')
            for u in range(16): a(f'v_fma_f32 v{XN+u}, v{RES+u}, v{XR+13}, v{XR+12}')
        def kv_epilogue():
            cst(16)
            SN, SR_, SL = 180, 196, 212
            for tt in range(4): a(f'ds_read_b128 {vr(SN+4*tt,4)}, v{STB} offset:{tt*64}')
            for tt in range(4): tk1 = a(f'ds_read_b128 {vr(SL+4*tt,4)}, v{STB} offset:{tt*64+512}')
            for tt in range(4): tk = a(f'ds_read_b128 {vr(SR_+4*tt,4)}, v{STB} offset:{tt*64+256}')
            a.wait_lg(tk1)
            for u in range(8):
                a(f'v_pk_fma_f32 {P(KACC+2*u)}, {P(SN+2*u)}, {P(KCS)}, {P(KACC+2*u)} op_sel_hi:[1,0,1]')
            for u in range(8):
                a(f'v_pk_fma_f32 {P(VACC+2*u)}, {P(SN+2*u)}, {P(VCS)}, {P(VACC+2*u)} op_sel_hi:[1,0,1]')
            for u in range(8):
                a(f'v_pk_mul_f32 {P(SL+2*u)}, {P(SL+2*u)}, {P(KACC+2*u)}')
            a.wait_lg(tk)
            for tt in range(4):
                a(f'ds_read_b128 {vr(QST+4*tt,4)}, v{STA} offset:{1024+tt*256}')
            for u in range(8):
                a(f'v_pk_fma_f32 {P(KACC+2*u)}, {P(KACC+2*u)}, {P(SR_+2*u)}, s[{sEPS}:{sEPS+1}]')
            for u in range(8):
                a(f'v_pk_mul_f32 {P(VACC+2*u)}, {P(VACC+2*u)}, {P(SR_+2*u)}')
            cst(17)
            PKR, PVR = (164, 156) if ovl else (180, 188)
            for u in range(8): a(f'v_cvt_pk_bf16_f32 v{PVR+u}, v{VACC+2*u}, v{VACC+2*u+1}')
            KVA, ZA = 172, 176
            XR = 140 if ovl else 196
            def rest():
                if ovl:
                    for i in range(16): a(f'v_exp_f32_e64 v{SL+i}, v{SL+i} clamp\nv_max_f32_e64 v{KACC+i}, v{KACC+i}, s{sEPS}')
                    for i in range(16): a(f'v_add_f32_e64 v{KACC+i}, v{KACC+i}, v{SL+i}')
                    for u in range(8): a(f'v_cvt_pk_bf16_f32 v{PKR+u}, v{KACC+2*u}, v{KACC+2*u+1}')
                else:
                    self.phi_tail(a, [KACC + 2*u for u in range(8)], [PKR + u for u in range(8)], SL)
                cst(18)
                a(f'v_and_b32 v{XR+3}, 15, v0\nv_lshrrev_b32 v{XR+4}, 4, v0')
                a(f'v_mfma_f32_16x16x32_bf16 {vr(ZA,4)}, {vr(PKR,4)}, {vr(ONES,4)}, 0')
                a(f'v_mfma_f32_16x16x32_bf16 {vr(KVA,4)}, {vr(PVR,4)}, {vr(PKR,4)}, 0')
                a(f'v_mfma_f32_16x16x32_bf16 {vr(ZA,4)}, {vr(PKR+4,4)}, {vr(ONES,4)}, {vr(ZA,4)}')
                a(f'v_mfma_f32_16x16x32_bf16 {vr(KVA,4)}, {vr(PVR+4,4)}, {vr(PKR+4,4)}, {vr(KVA,4)}')
                a(f'v_lshlrev_b32 v{XR+2}, 8, v{XR+4}\nv_lshl_add_u32 v{XR+2}, v{XR+3}, 2, v{XR+2}')
                if opt.get('kv2', 0): a(f'v_lshlrev_b32 v{XR+2}, 2, v0')
                a(f'v_lshl_add_u32 v{XR+4}, v{XR+4}, 2, v{XR+3}\nv_lshlrev_b32 v{XR+4}, 2, v{XR+4}')
                a(f'v_mov_b32 v{XR+5}, {OOB}\nv_cmp_gt_u32 vcc, 4, v{XR+3}\nv_cndmask_b32 v{XR+4}, v{XR+5}, v{XR+4}, vcc')
                for k in range(1, 4): a(f'v_cmp_eq_u32 vcc, {k}, v{XR+3}\nv_cndmask_b32 v{ZA}, v{ZA}, v{ZA+k}, vcc')
            def atomics():
                a(f's_lshl_b32 s{sT3}, s{sW}, 10\ns_add_u32 s{sT3}, s{sT3}, s{sC}\ns_lshl_b32 s{sT4}, s{sW}, 6\ns_add_u32 s{sT4}, s{sT4}, s{sC}\ns_add_u32 s{sT4}, s{sT4}, {KV_Z}')
                for k in range(4):
                    a(f'buffer_store_dword v{KVA+k}, v{XR+2}, {srd(sWS)}, s{sT3} offen offset:{k*256} sc1' if opt.get('kv2', 0) else f'buffer_atomic_add_f32 v{KVA+k}, v{XR+2}, {srd(sWS)}, s{sT3} offen offset:{k*64}')
                htok['kv'] = a(f'buffer_store_dword v{ZA}, v{XR+4}, {srd(sWS)}, s{sT4} offen sc1' if opt.get('kv2', 0) else f'buffer_atomic_add_f32 v{ZA}, v{XR+4}, {srd(sWS)}, s{sT4} offen')
            htok['atomics'] = atomics
            if ovl:
                a.flush_inject()
                lines = a.record(rest)
                per = opt.get('ovl_n', 4)
                k = 0
                for st_ in p2:
                    tl = []
                    for _ in range(2):
                        part = lines[k:k + per]; k += per
                        tl.append((lambda part=part: a('\n'.join(part))) if part else None)
                    st_['tail'] = tl
                assert k >= len(lines)
                if opt.get('atp', 0) == 0: p2[(len(lines) // (2 * per)) + 1]['post'] = [atomics]
            else:
                rest()
                a.flush_inject()
                cst(19)
                if opt.get('x_noat', 0): htok['kv'] = None
                else: atomics()
        p2[0]['hook'] = kv_epilogue
        if opt.get('kv2', 0):
            kb = 4 * (opt.get('fa_bar', 15) - 12)
            okb = p2[kb]['pre']
            p2[kb]['pre'] = lambda: (a.wait_vm(htok['kv']), okb())
        for n, s in enumerate(p2):
            s['vm'] = (lambda n=n: hl[n])
            if n in (1, 8, 15): s['hook'] = (lambda n=n: cst({1: 20, 8: 21, 15: 22}[n]))
        steps += p2
        np2 = len(steps)

        qs = steps_q(16, HACC, HCS, HSETS, np2)
        x1tok = {}
        for s in qs:
            if s['stage'] is not None:
                extra = None
                if s['stage'] == opt.get('fx_bar', 17): extra = lambda: (a.wait_vm(x1tok['st']), cst(3))
                s['pre'] = stage_pre(s['stage'], [WK16], [PAT16], extra)
        qr0, qr1 = qs[0]['reads'], qs[1]['reads']
        qs[0]['reads'] = []; qs[1]['reads'] = []; qs[0]['pre'] = None
        qs[0]['at'] = np2; qs[1]['at'] = np2
        def exchange(acc, rcv, nb, between=None):
            a(f'v_xor_b32 v{rcv}, 8192, v{RDX}')
            for g in range(4):
                a(f'ds_write_b128 v{rcv}, {vr(acc+16+4*g,4)} offset:{g*1024}')
            if between: between()
            a.wait_lg0()
            self.barC(a, nb)
            return [a(f'ds_read_b128 {vr(rcv+4*g,4)}, v{RDX} offset:{g*1024}') for g in range(4)]
        def unsplit_last(st, acc, rcv, nb, stg, natural, asets, phase, own, oth, xt):
            n0 = len(st) - 4
            pats = [PATN[0]] if natural else PATP[:2]
            def pre(o=st[n0].get('extra')):
                if o: o()
                self.barC(a, f'B{stg}')
                for k, pt in enumerate(pats):
                    a(f'v_add_u32 v{WK[k]}, {SLOT[stg]}, v{pt}\nv_xor_b32 v{WK[2+k]}, 8192, v{WK[k]}')
            st[n0]['pre'] = pre
            for i in range(4):
                s = st[n0 + i]; sb = asets[(n0 + i + phase) % 3]
                s['reads'] = []
                for u in range(2):
                    for rd in range(2):
                        if natural: s['reads'].append(f'ds_read_b64_tr_b16 {vr(sb+4*u+2*rd,2)}, v{WK[2*u]} offset:{i*2048+rd*512}')
                        else: s['reads'].append(f'ds_read_b64_tr_b16 {vr(sb+4*u+2*rd,2)}, v{WK[2*u+rd]} offset:{i*2048}')
                s['mfmas'] = [f'v_mfma_f32_32x32x16_bf16 {vr(acc,16)}, {vr(sb,4)}, {vr(own(i),4)}, {vr(acc,16)}',
                              f'v_mfma_f32_32x32x16_bf16 {vr(acc,16)}, {vr(sb+4,4)}, {vr(oth(i),4)}, {vr(acc,16)}']
            wt = {}
            def wr(g):
                if g == 0: a(f'v_xor_b32 v{rcv}, 8192, v{RDX}')
                wt[g] = a(f'ds_write_b128 v{rcv}, {vr(acc+16+4*g,4)} offset:{g*1024}')
            st[n0]['tail'] = [None, lambda: (wr(0), wr(1))]
            st[n0 + 1]['tail'] = [lambda: wr(2), lambda: wr(3)]
            def sync():
                a.wait_lg(wt[3])
                self.barC(a, nb)
                xt['tk'] = [a(f'ds_read_b128 {vr(rcv+4*g,4)}, v{RDX} offset:{g*1024}') for g in range(4)]
            st[n0 + 3]['tail'] = [sync, None]
        def p2_epilogue():
            RCV, OUT, SS = (60, 76, 84) if ovl else (180, 196, 204)
            cst(23)
            def between():
                a(f's_lshl_b32 s{sT2}, s{sJ}, 1\ns_add_u32 s{sT2}, s{sT2}, s{sHI}\ns_lshl_b32 s{sT0}, s{sT2}, 12\ns_add_u32 s{sT0}, s{sT0}, s{sA}\ns_add_u32 s{sT0}, s{sT0}, {X1_OFF}')
                a(f's_lshl_b32 s{sT2}, s{sT2}, 9\ns_lshl_b32 s{sT3}, s{sR}, 13\ns_add_u32 s{sT2}, s{sT2}, s{sT3}\ns_lshl_b32 s{sT3}, s{sTH}, 8\ns_add_u32 s{sT2}, s{sT2}, s{sT3}\ns_add_u32 s{sT2}, s{sT2}, {XS_OFF}')
                a(f'v_add_u32 v{WK16}, {SLOT[16]}, v{PAT16}')
                a(f'v_and_b32 v{SS+8}, 31, v0\nv_lshrrev_b32 v{SS+9}, 5, v0\nv_lshlrev_b32 v{SS+9}, 2, v{SS+9}\nv_lshl_add_u32 v{SS+8}, v{SS+8}, 3, v{SS+9}')
            if opt.get('us2', 0):
                between(); tk = x2['tk']
            else: tk = exchange(P2ACC, RCV, 'RB1', between)
            for b in range(2):
                a.wait_lg(tk[2*b+1])
                for u in range(4*b, 4*b+4): a(f'v_pk_add_f32 {P(P2ACC+2*u)}, {P(P2ACC+2*u)}, {P(RCV+2*u)}')
                for u in range(4*b, 4*b+4): a(f'v_cvt_pk_bf16_f32 v{OUT+u}, v{P2ACC+2*u}, v{P2ACC+2*u+1}')
                a(f'buffer_store_dwordx4 {vr(OUT+4*b,4)}, v{CELLT}, {srd(sWS)}, s{sT0} offen offset:{b*2048} sc1')
            a(f'v_pk_add_f32 {P(SS)}, {P(P2ACC)}, {P(P2ACC+2)}\nv_pk_mul_f32 {P(SS+2)}, {P(P2ACC)}, {P(P2ACC)}')
            a(f'v_pk_add_f32 {P(SS+4)}, {P(P2ACC+4)}, {P(P2ACC+6)}\nv_pk_mul_f32 {P(SS+6)}, {P(P2ACC+2)}, {P(P2ACC+2)}')
            for u in range(2, 8):
                k = 4 * (u & 1)
                a(f'v_pk_fma_f32 {P(SS+2+k)}, {P(P2ACC+2*u)}, {P(P2ACC+2*u)}, {P(SS+2+k)}')
                if u >= 4: a(f'v_pk_add_f32 {P(SS+k)}, {P(SS+k)}, {P(P2ACC+2*u)}')
            a(f'v_pk_add_f32 {P(SS)}, {P(SS)}, {P(SS+4)}\nv_pk_add_f32 {P(SS+2)}, {P(SS+2)}, {P(SS+6)}')
            a(f'v_add_f32 v{SS}, v{SS}, v{SS+1}\nv_add_f32 v{SS+2}, v{SS+2}, v{SS+3}')
            a(f'v_permlane32_swap_b32 v{SS}, v{SS+2}\nv_add_f32 v{SS}, v{SS}, v{SS+2}')
            x1tok['st'] = a(f'buffer_store_dword v{SS}, v{SS+8}, {srd(sWS)}, s{sT2} offen sc1')
            cst(2)
            for u in range(8): a(f'v_pk_add_f32 {P(RES+2*u)}, {P(RES+2*u)}, {P(P2ACC+2*u)}')
            if ovl and opt.get('atp', 0) == 1: htok['atomics']()
            if opt.get('fx_bar', 17) == 16:
                a.wait_vm(x1tok['st']); cst(3)
            self.barC(a, 'B16')
            for t in qr0: qs[0]['tok'] = a(t)
            for t in qr1: qs[1]['tok'] = a(t)
        qs[0]['hook'] = p2_epilogue
        if opt.get('us2', 0):
            unsplit_last(p2, P2ACC, 180, 'RB1', 15, True, ASETS, 0, lambda i: HF + 4 * (12 + i), lambda i: HX + 4 * i, x2)
            for n in range(12, 16): p2[n]['vm'] = (lambda n=n: hl[n + 4])
            for n in range(4): p2[2 + n]['post'] = [lambda n=n: hload(16 + n)]
        steps += qs
        nq = len(steps)

        BST = 128; A3 = [60, 68, 76]; ACA, ACB = 84, 100
        GST = 40; GT = 44; CSG = 112
        X1B, CSB, CSB2, HFB = 2, 3, 4, 5
        HP = [6, 7]
        def q_epilogue():
            TMP = 100; OUT = 116; QP = 80
            a.wait_vm(htok['kv'])
            self.barC(a, 'QE')
            for u in range(8):
                a(f'v_pk_fma_f32 {P(HACC+2*u)}, {P(HCS+2*(u&1))}, {P(QST+4*(u>>1))}, {P(HACC+2*u)} op_sel_hi:[1,0,1]')
            for u in range(8):
                a(f'v_pk_mul_f32 {P(TMP+2*u)}, {P(HACC+2*u)}, {P(QST+4*(u>>1)+2)} op_sel_hi:[1,0]')
            for u in range(8):
                a(f'v_pk_fma_f32 {P(HACC+2*u)}, {P(HACC+2*u)}, {P(QST+4*(u>>1))}, s[{sEPS}:{sEPS+1}] op_sel:[0,1,0] op_sel_hi:[1,1,1]')
            self.phi_tail(a, [HACC + 2*u for u in range(8)], [OUT + u for u in range(8)], TMP)
            a(f's_lshl_b32 s{sT0}, s{sW}, 11\ns_add_u32 s{sT0}, s{sT0}, {PQ}\nv_lshlrev_b32 v{QP}, 3, v0\nv_add_u32 v{QP}, s{sT0}, v{QP}')
            for tt in range(4): a(f'ds_write_b64 v{QP}, {vr(OUT+2*tt,2)} offset:{tt*512}')
            a(f's_lshl_b32 s{sT0}, s{sTH}, 10\nv_add_u32 v{X1B}, s{sT0}, v{LL16}')
            a(f's_lshl_b32 s{sT2}, s{sHI}, 15\nv_add_u32 v{HFB}, s{sT2}, v{X1B}')
            a(f's_and_b32 s{sT3}, s{sJ}, 1\ns_lshl_b32 s{sT4}, s{sT3}, 5')
            a(f's_lshl_b32 s{sT0}, s{sHI}, 5\ns_add_u32 s{sT0}, s{sT0}, s{sT4}\ns_lshl_b32 s{sT0}, s{sT0}, 2\ns_add_u32 s{sT0}, s{sT0}, {CS3L}')
            a(f'v_lshrrev_b32 v{QP+1}, 5, v0\nv_lshlrev_b32 v{QP+1}, 4, v{QP+1}\nv_add_u32 v{CSB}, s{sT0}, v{QP+1}')
            a(f's_cmp_eq_u32 s{sT3}, 0\ns_cselect_b32 s{sT5}, 192, 0')
            a(f's_lshl_b32 s{sT0}, s{sHI}, 4\ns_add_u32 s{sT0}, s{sT0}, s{sT5}\ns_lshl_b32 s{sT0}, s{sT0}, 2\ns_add_u32 s{sT0}, s{sT0}, {CS3L}')
            a(f'v_add_u32 v{CSB2}, s{sT0}, v{QP+1}')
            a(f's_lshl_b32 s{sT0}, s{sHI}, 5\nv_xor_b32 v{HP[0]}, s{sT0}, v{PAT3[0]}\nv_xor_b32 v{HP[1]}, s{sT0}, v{PAT3[1]}')
            a(f'v_and_b32 v{STA}, 31, v0\nv_lshlrev_b32 v{STA}, 4, v{STA}\ns_lshl_b32 s{sT0}, s{sTH}, 9\ns_add_u32 s{sT0}, s{sT0}, {X1P}\nv_add_u32 v{STA}, s{sT0}, v{STA}')
            a(f's_mul_i32 s{sT0}, s{sJ}, 14\ns_lshr_b32 s{sT4}, s{sT4}, 4\ns_lshl_b32 s{sT2}, s{sHI}, 1\ns_add_u32 s{sB}, s{sT0}, s{sT4}\ns_add_u32 s{sB}, s{sB}, s{sT2}')
            a(f's_lshl_b32 s{sB}, s{sB}, 11\ns_add_u32 s{sB}, s{sB}, s{sD}')
            a(f's_lshr_b32 s{sT5}, s{sT5}, 4\ns_add_u32 s{sC}, s{sT0}, s{sT5}\ns_add_u32 s{sC}, s{sC}, s{sHI}\ns_lshl_b32 s{sC}, s{sC}, 11\ns_add_u32 s{sC}, s{sC}, s{sD}')
            a.wait_lg0()
            self.barC(a, 'XA')

        HB = [44, 116, 52]
        def steps_p3(first, nstage, acc, pats, base, kind, phase):
            st = []
            for n in range(4 * nstage):
                stg = first + n // 4
                sb = A3[(n + phase) % 3]
                reads = []; mf = []
                for u in range(2):
                    i = 2 * n + u; s_ = i % 8
                    reads += [f'ds_read_b64_tr_b16 {vr(sb+4*u+2*rd,2)}, v{WK[rd]} offset:{s_*2048}' for rd in range(2)]
                    if kind == 'p0':
                        reads.append(f'ds_read_b128 {vr(BST+4*i,4)}, v{X1B} offset:{i*2048}'); b = BST + 4 * i
                    elif kind == 'hf' and opt.get('hfv', 1):
                        b = BST + 4 * i
                    elif kind == 'hf':
                        b = HB[(n % 3)] + 4 * u
                        reads.append(f'ds_read_b128 {vr(b,4)}, v{HFB} offset:{i*2048}')
                    else:
                        b = BST + 4 * i
                    mf.append(f'v_mfma_f32_32x32x16_bf16 {vr(acc,16)}, {vr(sb+4*u,4)}, {vr(b,4)}, {vr(acc,16) if i else 0}')
                s = dict(reads=reads, mfmas=mf, at=base + n - 2)
                if n % 4 == 0: s['pre'] = stage_pre(stg, WK[:2], pats)
                st.append(s)
            return st
        gtok = {}
        def cs_reads(csreg, csoff, ng):
            def one(g):
                gtok['cs'] = a(f'ds_read_b128 {vr(CSG+4*g,4)}, v{csreg} offset:{csoff+g*32}')
            return [lambda g=g: one(g) for g in range(ng)]
        pend_st = []
        def g_epi(acc, ng, sbase, after_first=None, cs_=None, out=None, key=None, adv=False):
            a.wait_lg(gtok['cs'])
            o = (lambda u: acc + 8*(u >> 2) + (u & 3)) if out is None else (lambda u: out + u)
            pairs = [(acc + 2*u, CSG + 2*u, GST, o(u)) for u in range(2 * ng)]
            self.gelu(a, pairs, GT, after_first)
            if cs_: cst(cs_)
            def st(b):
                gtok[key] = a(f'buffer_store_dwordx4 {vr(o(4*b),4)}, v{CELLT}, {srd(sWS)}, s{sbase} offen offset:{b*2048} sc1')
                if adv and b == ng // 2 - 1: a(f's_add_u32 s{sbase}, s{sbase}, 8192')
            for b in range(ng // 2):
                if opt.get('dst', 1): pend_st.append(lambda b=b: st(b))
                else: st(b)
        def add_stores(step0, step1):
            def pop():
                if pend_st: pend_st.pop(0)()
            step0['tail'] = [pop, pop]; step1['tail'] = [pop, None]
        def hf_send():
            t = GT
            a(f's_lshl_b32 s{sT0}, s{sW}, 11\ns_add_u32 s{sT0}, s{sT0}, {SC}\nv_add_u32 v{t}, s{sT0}, v{LL16}')
            a(f'ds_write_b128 v{t}, {vr(ACB+8,4)}')
            gtok['hfw'] = a(f'ds_write_b128 v{t}, {vr(ACB+12,4)} offset:1024')
            a(f'v_xor_b32 v{HFB}, 4096, v{t}')

        p0 = steps_p3(20, 4, ACA, PAT3, nq, 'p0', 0)
        p0[0]['at'] = nq; p0[1]['at'] = nq; p0[0]['hook'] = q_epilogue
        p0[15]['post'] = [lambda: a(f'ds_read_b128 {vr(GST,4)}, v{STA}')] + cs_reads(CSB, 0, 4)
        steps += p0; n0 = len(steps)
        hf = steps_p3(24, 2, ACB, HP, n0, 'hf', 16)
        for k in range(2):
            hf[k]['late'] = [t for t in hf[k]['reads'] if 'b128' in t]
            hf[k]['reads'] = [t for t in hf[k]['reads'] if 'b128' not in t]
        def hf_hook():
            g_epi(ACA, 4, sB, key='g0', adv=True)
            for k in range(2):
                for t in hf[k]['late']: hf[k]['tok'] = a(t)
        mark = {}
        if opt.get('hfv', 1):
            o24 = hf[0]['pre']
            hf[0]['pre'] = lambda: (a.wait_lg(p0[15]['tok']), o24())
            def hf_hook(f=hf_hook):
                f(); mark['i'] = len(a.ins)
        def hf_dup():
            body = a.ins[mark['i']:]
            del a.ins[mark['i']:]
            def sub(t):
                m = re.match(r'(v_mfma_f32_32x32x16_bf16 v\[100:115\], v\[\d+:\d+\], )v\[(\d+):(\d+)\](.*)', t)
                return f'{m.group(1)}v[{int(m.group(2))+64}:{int(m.group(3))+64}]{m.group(4)}' if m else t
            a.ins += [Ins(f's_cmp_lg_u32 s{sHI}, 0'), Ins('s_cbranch_scc1 L_hf1')] + body + [Ins('s_branch L_hf2'), Ins('L_hf1:')]
            a.ins += [Ins(sub(i.text)) for i in body] + [Ins('L_hf2:')]
        hf[0]['hook'] = hf_hook
        add_stores(hf[0], hf[1])
        steps += hf; n1 = len(steps)
        p1 = steps_p3(26, 4, ACA, PAT3, n1, 'p', 24)
        p1[0]['hook'] = (lambda: (hf_dup(), hf_send())) if opt.get('hfv', 1) else hf_send
        old = p1[4]['pre']
        p1[4]['pre'] = lambda: (a.wait_lg(gtok['hfw']), old())
        def hf_recv():
            a(f'ds_read_b128 {vr(ACB+8,4)}, v{HFB}')
            gtok['hfr'] = a(f'ds_read_b128 {vr(ACB+12,4)}, v{HFB} offset:1024')
        def hf_add(k):
            a.wait_lg(gtok['hfr'])
            for u in range(4*k, 4*k+4): a(f'v_add_f32_e64 v{ACB+u}, v{ACB+u}, v{ACB+8+u}')
        p1[8]['post'] = [hf_recv]
        p1[11]['post'] = [lambda: hf_add(0)]
        p1[12]['post'] = [lambda: hf_add(1)]
        p1[15]['post'] = cs_reads(CSB, 256, 4)
        steps += p1; n2 = len(steps)
        p2_ = steps_p3(30, 4, ACA, PAT3, n2, 'p', 40)
        def p1_epilogue():
            cst(8)
            g_epi(ACA, 4, sB, lambda: [f() for f in cs_reads(CSB2, 0, 2)], 9, out=120, key='g1', adv=True)
            cst(10)
            g_epi(ACB, 2, sC, None, 11, key='g1')
            cst(12)
        p2_[0]['hook'] = p1_epilogue
        add_stores(p2_[0], p2_[1])
        p2_[2 if opt.get('sc10', 1) else 15]['post'] = cs_reads(CSB, 512, 4)
        p2_[1]['hook'] = lambda: cst(13)
        p2_[2]['hook'] = lambda: cst(14)
        p2_[3]['hook'] = lambda: cst(15)
        steps += p2_; n3 = len(steps)

        P4ACC = 84; FR = 128
        p4 = []
        fl = {}
        def fload(n):
            kind, sg = STAGES[min(34 + n // 4, 51)]; i = n % 4
            if n == 72:
                d = 8192 if kind == 'wo' else 32768
                a(f's_lshl_b32 s{sT0}, s{sHI}, 1\ns_sub_u32 s{sT0}, 1, s{sT0}\ns_mul_i32 s{sT0}, s{sT0}, {d}\ns_add_u32 s{sI0}, s{sI0}, s{sT0}\ns_sub_u32 s{sI0}, s{sI0}, 4096')
            elif i % 2 == 0:
                if i: a(f's_add_u32 s{sI0}, s{sI0}, 4096')
                elif kind == 'wo': a(f's_add_u32 s{sI0}, s{sT5}, s{sKC+sg}')
                elif kind == 'gh': a(f's_add_u32 s{sI0}, s{sRG}, {sg}\ns_and_b32 s{sI0}, s{sI0}, 1\ns_mul_i32 s{sI0}, s{sI0}, {896*128}\ns_add_u32 s{sI0}, s{sI0}, s{sT4}')
                else:
                    a(f's_add_u32 s{sI0}, s{sD}, s{sKG+sg}')
                    if kind != 'g0': a(f's_add_u32 s{sI0}, s{sI0}, {g_rows(kind, 0)[0]*128}')
            if opt.get('x_skip', 0) and kind != 'wo' and n % 4 >= 4 - opt['x_skip'] and n >= 4:
                fl[n] = fl[n - 1]; return
            fl[n] = a(f'buffer_load_dwordx4 {vr(FR+4*(n%32),4)}, v{CELLT}, {srd(sWS)}, s{sI0} offen offset:{(i&1)*2048} sc1')
        firsts = {}
        for first in range(34, NST):
            kind, sg = STAGES[first]
            if sg: continue
            cnt = 2 if kind == 'gh' else 4; nat = kind == 'wo'
            k0 = 4 * (first - 34); firsts[k0] = {'g0': FG0, 'g1': FG1, 'gh': FG1, 'wo': FO, 'g2': FG2}[kind]
            p4 += steps_ks(first, cnt, PATN if nat else PATP, nat, P4ACC, lambda n, k0=k0: FR + 4 * ((n + k0) % 32), A3, n3 + k0,
                           setphase=56 + k0, init=(first == 34), c_init=RES if first == 34 else None)
        NG = opt.get('ng', 10); NG0 = opt.get('ng0', 8)
        def p4_bases():
            a(f's_lshl_b32 s{sT0}, s{sHI}, 13\ns_add_u32 s{sT5}, s{sT0}, s{sA}\ns_add_u32 s{sT5}, s{sT5}, {O_OFF}')
            a(f's_mul_i32 s{sT4}, s{sHI}, {448*128}\ns_add_u32 s{sT4}, s{sT4}, s{sD}\ns_add_u32 s{sT4}, s{sT4}, {192*128}\ns_lshl_b32 s{sT0}, s{sHI}, 15\ns_add_u32 s{sD}, s{sD}, s{sT0}')
            for k in range(4): a(f's_add_u32 s{sT0}, s{sRG}, {k}\ns_and_b32 s{sT0}, s{sT0}, 3\ns_mul_i32 s{sKG+k}, s{sT0}, {448*128}\ns_lshl_b32 s{sKC+k}, s{sT0}, 14')
        EG = opt.get('eg', 0)
        if EG:
            k1 = opt.get('eg_step', 3)
            p2_[k1 - 1]['post'] = [p4_bases]
            for n in range(EG):
                st_ = p2_[min(k1 + n // opt.get('eg_rate', 2), 15)]
                assert n < 2 * min(k1 + n // opt.get('eg_rate', 2), 15)
                st_['post'] = st_.get('post', []) + [lambda n=n: fload(n)]
            NG0 = max(NG0, EG)
        def p3_last_epilogue():
            if not EG: p4_bases()
            a.inject([lambda n=n: fload(n) for n in range(EG, NG0)], opt.get('fl_every', 12))
            g_epi(ACA, 4, sB, out=116, key='g2')
            a.flush_inject()
            cst(6)
        p4[0]['hook'] = p3_last_epilogue
        add_stores(p4[0], p4[1])
        nxt = NG0
        self.need = {firsts[k]: 34 for k in firsts if 0 < k < NG0}
        for n, s in enumerate(p4):
            s['vm'] = (lambda n=n: fl[n + 4 if (n >= 68 and opt.get('us4', 1)) else n])
            post = []
            while nxt < (76 if opt.get('us4', 1) else 72) and nxt < n + 1 + NG + (4 if nxt >= 72 else 0) and len(post) < 2:
                if nxt in firsts: self.need.setdefault(firsts[nxt], 34 + (n + 2) // 4)
                post.append(lambda m=nxt: fload(m)); nxt += 1
            s['post'] = post
        def add_wait(step, key):
            o = step['pre']
            step['pre'] = lambda: (a.wait_vm(gtok[key]), o())
        for b_, nx, pv in ((30, p2_[0], p1[15]), (34, p4[0], p2_[15])):
            if str(b_) in str(opt.get('erel', '24.30.34')).split('.'):
                nx['pre'] = (lambda o=nx['pre'], pv=pv: (a.wait_lg(pv['tok']), o()))
        add_wait(p1[4 * (opt.get('fg0_bar', 27) - 26)], 'g0'); add_wait(p2_[12] if opt.get('fg1_bar', 34) == 33 else p4[4 * (opt.get('fg1_bar', 34) - 34)], 'g1'); add_wait(p4[4 * (opt.get('fg2_bar', 37) - 34)], 'g2')
        x4 = {}
        if opt.get('us4', 1):
            kind51 = STAGES[51][0]
            unsplit_last(p4, P4ACC, 40, 'RB2', 51, kind51 == 'wo', A3, 56, lambda i: FR + 4 * ((68 + i) % 32), lambda i: FR + 4 * ((72 + i) % 32), x4)
        self.x4 = x4
        steps += p4

        if opt.get('cprio', 2): a(f's_setprio {opt.get("cprio", 2)}')
        self.run_steps(a, steps)
        RCV = 128; OUT = 144; VO = 160
        def between():
            a(f's_lshl_b32 s{sT0}, s{sTH}, 5\nv_and_b32 v{VO}, 31, v0\nv_add_u32 v{VO}, s{sT0}, v{VO}\nv_lshlrev_b32 v{VO}, 10, v{VO}')
            a(f'v_lshrrev_b32 v{VO+1}, 5, v0\nv_lshl_add_u32 v{VO}, v{VO+1}, 4, v{VO}')
            a(f's_lshl_b32 s{sT0}, s{sJ}, 1\ns_add_u32 s{sT0}, s{sT0}, s{sHI}\ns_lshl_b32 s{sT0}, s{sT0}, 6\ns_add_u32 s{sT0}, s{sT0}, s{sA}')
        if opt.get('us4', 1):
            RCV = 40; between(); tk = self.x4['tk']
        else: tk = exchange(P4ACC, RCV, 'RB2', between)
        for b in range(2):
            a.wait_lg(tk[2*b+1])
            for u in range(4*b, 4*b+4): a(f'v_pk_add_f32 {P(P4ACC+2*u)}, {P(P4ACC+2*u)}, {P(RCV+2*u)}')
            for u in range(4*b, 4*b+4): a(f'v_cvt_pk_bf16_f32 v{OUT+u}, v{P4ACC+2*u}, v{P4ACC+2*u+1}')
            a(f'v_permlane32_swap_b32 v{OUT+4*b}, v{OUT+4*b+2}\nv_permlane32_swap_b32 v{OUT+4*b+1}, v{OUT+4*b+3}')
            a(f'buffer_store_dwordx4 {vr(OUT+4*b,4)}, v{VO}, {srd(sOUT)}, s{sT0} offen offset:{b*32} {opt.get("outflag", "")}')
        if opt.get('padto'):
            a(f'L_pad:\ns_memrealtime s[{sTSP}:{sTSP+1}]\ns_waitcnt lgkmcnt(0)\ns_sub_u32 s{sT0}, s{sTSP}, s26\ns_cmp_lt_u32 s{sT0}, {opt["padto"]}\ns_cbranch_scc1 L_pad')
        if opt.get('prof'):
            a(f's_memrealtime s[{sTSP}:{sTSP+1}]\ns_memtime s[98:99]\ns_waitcnt lgkmcnt(0)\ns_sub_u32 s98, s98, s90')
            a(f's_lshl_b32 s{sT0}, s2, 3\ns_add_u32 s{sT0}, s{sT0}, s{sW}\ns_lshl_b32 s{sT0}, s{sT0}, 8\ns_add_u32 s{sT0}, s{sT0}, {TS_OFF}')
            a(f'v_mov_b32 v2, s26\nv_mov_b32 v3, s{sTSP}\nv_mov_b32 v4, s98\nv_mov_b32 v5, 0\nv_mov_b32 v6, 0\ns_mov_b64 exec, 1')
            a(f'buffer_store_dwordx4 v[2:5], v6, {srd(sWS)}, s{sT0} offen')
            for k in range(8 if opt.get('prof') != 3 else 0): a(f'v_mov_b32 v7, s{4+2*k}\nbuffer_store_dword v7, v6, {srd(sWS)}, s{sT0} offen offset:{16+4*k}')
        a('s_endpgm')

    def helper(self, a):
        opt = self.opt
        prof = opt.get('prof') if opt.get('prof') != 3 else None
        E = lambda name, d: opt.get(name, d)
        BARS = [f'B{i}' for i in range(16)] + ['RB1'] + [f'B{i}' for i in range(16, 20)] + ['QE', 'XA'] + [f'B{i}' for i in range(20, NST)]
        ODL = f'B{self.need[FO]}'
        IDX = {n: i for i, n in enumerate(BARS)}
        T = [40 + i for i in range(16)]
        V1K, VQ, VW3, VHF = 4, 8, 12, 16
        row, pos, sw = T[0], T[1], T[2]
        def mk(dst, RS, sbase):
            a(f'v_mul_u32_u24 v{T[5]}, {RS}, v{row}\nv_add_u32 v{T[5]}, s{sbase}, v{T[5]}')
            for i in range(4):
                a(f'v_add_u32 v{dst+i}, v{T[5]}, v{T[3+(i&1)]}')
                if i: a(f'v_add_u32 v{dst+i}, {i*(8*RS-1024)}, v{dst+i}')
        stok = {}
        two = E('two', 0)
        grp = [[0, 1] if two else [0, 1, 2, 3]]
        def issue(st, pace=True):
            kind, sg = STAGES[st]
            pc = E('pace', 44) // (2 if two else 1)
            if pace and len(a.vm) > pc: a.wait_vm(a.vm[-pc - 1])
            s, v = src_of(st)
            for g in grp[0]:
                a(f's_mov_b32 m0, {SLOT[st] + g*4096}')
                soff(st, g, g == grp[0][0])
                for i in range(4):
                    stok[st] = a(f'buffer_load_dwordx4 v{v+i}, {srd(s)}, s{sT2} offen offset:{i*1024} lds')
        def src_of(st):
            kind, sg = STAGES[st]
            return {'w1': (sW1, V1K), 'w2': (sW2, V1K), 'wo': (sWO, V1K), 'wq': (sQKV, VQ), 'kv': (sQKV, VQ), 'p0': (sW3, VW3),
                    'p1': (sW3, VW3), 'p2': (sW3, VW3), 'hf': (sW3, VHF + 4 * sg)}.get(kind, (sW4, V1K))
        def soff(st, g, first=None):
            kind, sg = STAGES[st]
            rot = E('rot', 1)
            RS = 3072 if kind in ('wq', 'kv') else (3584 if kind in ('p0', 'p1', 'p2', 'hf') else 1024)
            if first is None: first = g == 0
            if kind == 'gh':
                if first: a(f's_add_u32 s{sI0}, s{sRG}, {sg}\ns_and_b32 s{sI0}, s{sI0}, 1\ns_mul_i32 s{sI0}, s{sI0}, {896*1024}')
                a(f's_add_u32 s{sT2}, s{sI0}, {(g_rows(kind, 0)[g >> 1] + 32*(g & 1))*1024}')
            elif kind[0] == 'g': a(f's_add_u32 s{sT2}, s{sKG+sg}, {(g_rows(kind, 0)[g >> 1] + 32*(g & 1))*1024}')
            elif kind == 'wo':
                if first: a(f's_add_u32 s{sI0}, s{sRG}, {sg}\ns_and_b32 s{sI0}, s{sI0}, 3\ns_lshl_b32 s{sI0}, s{sI0}, 17')
                a(f's_add_u32 s{sT2}, s{sI0}, {g*32*RS}')
            elif kind == 'w1' or (rot and kind == 'w2'): a(f's_add_u32 s{sT2}, s{sK1+sg}, {g*32*RS}')
            elif kind == 'w2': a(f's_mov_b32 s{sT2}, {sg*131072 + g*32*RS}')
            elif kind == 'wq': a(f's_add_u32 s{sT2}, s{sK3+sg}, {g*32*RS}')
            elif kind == 'kv': a(f's_add_u32 s{sT2}, s{sK3+(sg>>1)}, {((sg&1)*64 + (g&1)*32)*RS + 1024*(1 + (g>>1))}')
            elif kind == 'hf': a(f's_mov_b32 s{sT2}, {g*32*RS}')
            else: a(f's_add_u32 s{sT2}, s{sK5+sg}, {g*32*RS + dict(p0=0, p1=128, p2=256)[kind]}')
        VAR = 61
        def arrive(idx):
            if prof == 2:
                a(f's_memtime s[0:1]\ns_waitcnt lgkmcnt(0)')
                a.lg = []
                if isinstance(idx, int): a(f'v_writelane_b32 v{VAR}, s0, {idx + 1}')
                else: a(f's_add_u32 s1, s{idx}, 1\ns_mov_b32 m0, s1\nv_writelane_b32 v{VAR}, s0, m0')
        def dump_arrive(slot):
            if prof:
                a(f's_lshl_b32 s{sT0}, s2, 2\ns_add_u32 s{sT0}, s{sT0}, s{sW}\ns_lshl_b32 s{sT0}, s{sT0}, 8\ns_add_u32 s{sT0}, s{sT0}, {TS_OFF + 0x80000}')
                a(f'v_lshlrev_b32 v2, 2, v0\nbuffer_store_dword v{VAR}, v2, {srd(sWS)}, s{sT0} offen')
        if prof: a(f'v_mov_b32 v{VAR}, 0')
        a(f's_cmp_eq_u32 s{sW}, 1\ns_cbranch_scc1 L_back\ns_cmp_eq_u32 s{sW}, 2\ns_cbranch_scc1 L_back')
        if not two: a(f's_cmp_eq_u32 s{sW}, 0\ns_cbranch_scc1 L_sync')
        a(f'v_lshrrev_b32 v{row}, 3, v0\nv_and_b32 v{pos}, 7, v0\nv_lshrrev_b32 v{sw}, 4, v0\nv_and_b32 v{sw}, 1, v{sw}\nv_lshlrev_b32 v{sw}, 2, v{sw}')
        a(f'v_xor_b32 v{pos}, v{pos}, v{sw}')
        a(f'v_lshlrev_b32 v{T[3]}, 4, v{pos}\nv_xor_b32 v{T[4]}, 32, v{T[3]}')
        a(f's_lshl_b32 s{sT0}, s{sJ}, 7')
        mk(V1K, 1024, sT0)
        a(f's_mov_b32 s{sW1+2}, {512*1024}\ns_mov_b32 s{sW1+3}, 0x20000')
        for sg in range(4):
            a(f's_add_u32 s{sT3}, s{sROT}, {sg}\ns_and_b32 s{sT3}, s{sT3}, 3\ns_lshl_b32 s{sK1+sg}, s{sT3}, 17\ns_mul_i32 s{sK3+sg}, s{sT3}, {128*3072}')
        a('s_waitcnt lgkmcnt(0)')
        a(f's_mov_b32 s{sW1}, s12\ns_and_b32 s{sW1+1}, s13, 0xffff')
        if two: a(f's_cmp_eq_u32 s{sW}, 0\ns_cbranch_scc1 L_sync0')
        def first_issue():
            issue(0); issue(1)
            if E('st', 0): issue(2, False)
        first_issue()
        a('s_branch L_loader')
        vmL = list(a.vm); stokL = dict(stok); a.vm = []
        if two:
            a('L_sync0:')
            grp[0] = [2, 3]; first_issue()
            a('s_branch L_sync')
        vmS = list(a.vm); stokS = dict(stok); a.vm = []
        VX1 = [24, 25]; x1tok = {}
        def loader_setup():
            self.srds(a, skipx=True, skip1=True)
            mk(VQ, 3072, sT0)
            a(f's_mul_i32 s{sT0}, s{sJ}, 448\ns_and_b32 s{sT4}, s{sJ}, 1\ns_lshl_b32 s{sT2}, s{sT4}, 6\ns_add_u32 s{sT2}, s{sT2}, s{sT0}')
            mk(VW3, 3584, sT2)
            a(f's_cmp_eq_u32 s{sT4}, 0\ns_cselect_b32 s{sT2}, 384, 0\ns_add_u32 s{sT2}, s{sT2}, s{sT0}')
            a(f'v_and_b32 v{T[3]}, 63, v{T[3]}\nv_and_b32 v{T[4]}, 63, v{T[4]}\nv_lshrrev_b32 v{T[6]}, 2, v{pos}')
            mk(VHF, 3584, sT2)
            for sg in range(4):
                if E('rot', 1): a(f's_add_u32 s{sT3}, s{sROT}, {sg}\ns_and_b32 s{sT3}, s{sT3}, 3')
                else: a(f's_mov_b32 s{sT3}, {sg}')
                a(f's_mul_i32 s{sK5+sg}, s{sT3}, {128*3584}\ns_lshl_b32 s{sKX+sg}, s{sT3}, 14')
            for k in range(4): a(f's_add_u32 s{sT3}, s{sRG}, {k}\ns_and_b32 s{sT3}, s{sT3}, 3\ns_mul_i32 s{sKG+k}, s{sT3}, {448*1024}')
            for sg in (1, 0):
                a(f's_sub_u32 s{sT3}, s{sK5+sg+2}, s{sK5+sg}\nv_mul_lo_u32 v{T[5]}, v{T[6]}, s{sT3}\nv_add_u32 v{T[5]}, s{sK5+sg}, v{T[5]}')
                for i in range(4): a(f'v_add_u32 v{VHF+4*sg+i}, v{VHF+i}, v{T[5]}')
            a(f'v_lshrrev_b32 v{T[0]}, 5, v0\nv_and_b32 v{T[1]}, 31, v0\nv_lshlrev_b32 v{T[0]}, 10, v{T[0]}\nv_lshl_add_u32 v{T[0]}, v{T[1]}, 4, v{T[0]}')
            a(f's_lshl_b32 s{sT0}, s{sR}, 16\ns_add_u32 s{sT0}, s{sT0}, {X1_OFF}')
            a(f'v_add_u32 v{VX1[0]}, s{sT0}, v{T[0]}\nv_subrev_u32 v{VX1[1]}, 512, v{VX1[0]}')
        def x1_chunk(sg):
            for g in grp[0]:
                a(f's_mov_b32 m0, {sg*16384 + g*4096}\ns_add_u32 s{sT2}, s{sKX+sg}, {g*4096}')
                for u in range(4):
                    x1tok[sg] = a(f'buffer_load_dwordx4 v{VX1[u&1]}, {srd(sWS)}, s{sT2} offen offset:{u*1024} sc1 lds')
        def load_before(n):
            b = int(n[1:]) if n[0] == 'B' else None
            if b is not None:
                a.wait_vm(stok[b])
                if b in (20, 21, 22, 23): a.wait_vm(x1tok[b - 20])
        def load_after(n):
            b = int(n[1:]) if n[0] == 'B' else None
            if n == 'XA':
                for c in range(4): x1_chunk(c)
            if E('st', 0):
                if b == 0: issue(3, False)
                if b == 1: issue(4)
            else:
                if b == 0: issue(2)
                if b == (0 if E('st3', 1) else 1): issue(3)
                if b == 1: issue(4)
            if b in (2, 3): stats_after(b)
            for st in ISSUE.get(b if b is not None else n, []): issue(st)
            if b in (0, 1): stats_after(b)
        a('L_back:')
        sSW = sHI
        a(f'v_lshrrev_b32 v2, 4, v0\nv_and_b32 v3, 15, v0\nv_xor_b32 v3, v3, v2\nv_lshlrev_b32 v3, 4, v3')
        a(f's_lshl_b32 s{sT0}, s{sR}, 1\ns_add_u32 s{sT0}, s{sT0}, s{sSW}\ns_lshl_b32 s{sT0}, s{sT0}, 15')
        a(f'v_lshl_add_u32 v2, v2, 10, s{sT0}\nv_add_u32 v2, v2, v3')
        for u in range(1, 4): a(f'v_xor_b32 v{2+u}, {u<<6}, v2\nv_add_u32 v{2+u}, {u*3072}, v{2+u}')
        a(f's_lshl_b32 s{sI0}, s{sSW}, 13\ns_mov_b32 s{sB}, s{sROT}')
        a('s_waitcnt lgkmcnt(0)')
        a(f's_mov_b32 s{sX}, s4\ns_and_b32 s{sX+1}, s5, 0xffff')
        xtok = {}
        def x_chunk(sg):
            for half in range(2):
                a(f's_add_u32 m0, s{sI0}, {sg*16384 + half*4096}\ns_lshl_b32 s{sT2}, s{sB}, 8')
                if half: a(f's_add_u32 s{sT2}, s{sT2}, 16384')
                for u in range(4):
                    xtok[sg] = a(f'buffer_load_dwordx4 v{2+u}, {srd(sX)}, s{sT2} offen offset:{u*1024} lds')
            if sg < 3: a(f's_add_u32 s{sB}, s{sB}, 1\ns_and_b32 s{sB}, s{sB}, 3')
        x_chunk(0)
        if E('xdel', 1): self.srds(a, skipx=True)
        x_chunk(1)
        if not E('xdel', 1): self.srds(a, skipx=True)
        if E('st', 0): x_chunk(2)

        F = 64; SSUM, SGR, HONE = 128, 136, 144
        q, i16 = T[8], T[9]
        SW1, SW2 = 148, 149
        def stats_setup():
            a(f'v_lshrrev_b32 v{q}, 4, v0\nv_and_b32 v{i16}, 15, v0')
            for m in range(4):
                a(f'v_or_b32 v{T[0]}, {4*m}, v{q}\nv_xor_b32 v{T[0]}, v{T[0]}, v{i16}\nv_lshlrev_b32 v{T[0]}, 4, v{T[0]}')
                a(f'v_lshl_add_u32 v{T[0]}, v{i16}, 8, v{T[0]}\nv_add_u32 v{T[10+m]}, s{sI0}, v{T[0]}')
            for i in range(4): a(f'v_mov_b32 v{HONE+i}, s{sONE}')
            a(f'v_and_b32 v{T[0]}, 3, v0\nv_lshrrev_b32 v{T[2]}, 2, v{i16}')
            a(f'v_cmp_eq_u32 s[14:15], 1, v{T[0]}\nv_cmp_eq_u32 s[16:17], 2, v{T[0]}\nv_cmp_eq_u32 s[12:13], 3, v{T[0]}\nv_cmp_eq_u32 s[10:11], v{T[2]}, v{q}')
            a(f's_lshl_b32 s{sT0}, s{sSW}, 5\nv_add_u32 v{SW1}, s{sT0}, v{i16}\nv_lshlrev_b32 v{SW2}, 4, v{SW1}\nv_lshlrev_b32 v{SW1}, 2, v{SW1}')
            a(f'v_add_u32 v{SW2}, {S1}, v{SW2}\nv_add_u32 v{SW1}, {NMU}, v{SW1}')
        stk = {}
        fr = lambda sg, t, m: F + 32 * (sg & 1) + 16 * t + 4 * m
        def stats_reads(sg):
            for m in range(4):
                for t in range(2): stk[(sg, t, m)] = a(f'ds_read_b128 {vr(fr(sg, t, m), 4)}, v{T[10+m]} offset:{sg*16384 + t*4096}')
        def stats_mfma(sg):
            if E('sprio', 3): a(f's_setprio {E("sprio", 3)}')
            for m in range(4):
                a.wait_lg(stk[(sg, 1, m)])
                z = sg == 0 and m == 0
                for t in range(2):
                    f = fr(sg, t, m)
                    a(f'v_mfma_f32_16x16x32_bf16 {vr(SGR+4*t,4)}, {vr(f,4)}, {vr(f,4)}, {0 if z else vr(SGR+4*t,4)}')
                    a(f'v_mfma_f32_16x16x32_bf16 {vr(SSUM+4*t,4)}, {vr(HONE,4)}, {vr(f,4)}, {0 if z else vr(SSUM+4*t,4)}')
            a('s_setprio 0')
        def stats_final():
            a('s_setprio 3')
            a(f's_mov_b32 s{sT0}, {f2u(1/512):#x}\ns_mov_b32 s{sT2}, {f2u(1e-5):#x}')
            def chain(t):
                s1, s2, R, G_, S_ = 36 + 2*t, 37 + 2*t, 64 + 8*t, SGR + 4*t, SSUM + 4*t
                if t: s2 = 56
                return [f'v_cndmask_b32 v{s2}, v{G_}, v{G_+1}, s[14:15]', f'v_mul_f32 v{R}, {f2u(-1/512):#x}, v{S_}', f'v_cndmask_b32 v{s2}, v{s2}, v{G_+2}, s[16:17]',
                        f'v_mov_b32 v{R+7}, 0', f'v_cndmask_b32 v{s2}, v{s2}, v{G_+3}, s[12:13]', f'v_mul_f32 v{s1}, v{R}, v{R}', f'v_mov_b32 v{R+4}, v{R}',
                        f'v_fma_f32 v{s2}, v{s2}, s{sT0}, -v{s1}', f'v_max_f32 v{s2}, 0, v{s2}', f'v_add_f32 v{s1}, s{sT2}, v{s2}',
                        f'v_rsq_f32 v{R+5}, v{s1}', f'v_rcp_f32 v{s1}, v{s1}', f'v_mul_f32 v{R+6}, {f2u(LOG2E):#x}, v{R+5}', f'v_fma_f32 v{s1}, v{s1}, v{s2}, s{sT2}',
                        f'v_rsq_f32 v{s1}, v{s1}', f'v_mul_f32 v{s1}, v{s1}, v{R+5}', f'v_rcp_f32 v{R+3}, v{s1}', f'v_mul_f32 v{s2}, v{s1}, v{s1}',
                        f'v_mul_f32 v{R+1}, {f2u(GC0):#x}, v{s1}', f'v_mul_f32 v{s2}, {f2u(0.044715):#x}, v{s2}', f'v_mul_f32 v{R+2}, v{R+1}, v{s2}']
            for x, y in zip(chain(0), chain(1)): a(x + '\n' + y)
            a('s_mov_b64 exec, s[10:11]')
            for t in range(2): a(f'ds_write_b128 v{SW2}, {vr(64+8*t,4)} offset:{t*256}')
            for t in range(2):
                R = 64 + 8*t
                a(f'ds_write_b128 v{SW2}, {vr(R+4,4)} offset:{1024 + t*256}')
                a(f'ds_write_b32 v{SW1}, v{R} offset:{t*64}\nds_write_b32 v{SW1}, v{R+5} offset:{256 + t*64}\nds_write_b32 v{SW1}, v{R+6} offset:{512 + t*64}')
            a('s_mov_b64 exec, -1\ns_setprio 0')
            a.wait_lg0()
        def stats_after(b): pass

        VFL, VFP, VF3, VONE, VCT, CELLV, VZA, VCK, VFO = 26, 27, 28, 29, 30, 32, 34, 35, 33
        OB = T[14]
        pf = opt.get('pf', 1); t3 = opt.get('t3', 0)
        nlab = [0]
        def lab(p):
            nlab[0] += 1
            return f'L_{p}{nlab[0]}'
        def common_regs():
            a(f'v_mov_b32 v{OB}, {OOB}\nv_lshlrev_b32 v{T[15]}, 7, v0\nv_mov_b32 v{VONE}, 1')
            a(f'v_lshrrev_b32 v{T[0]}, 5, v0\nv_and_b32 v{T[1]}, 31, v0\nv_lshlrev_b32 v{CELLV}, 10, v{T[0]}\nv_lshl_add_u32 v{CELLV}, v{T[1]}, 4, v{CELLV}')
            a(f's_lshl_b32 s{sC}, s{sR}, 16\ns_lshl_b32 s{sD}, s{sJ}, 18\ns_add_u32 s{sD}, s{sD}, {KV_OFF}\ns_lshl_b32 s{sA}, s{sJ}, 12\ns_add_u32 s{sA}, s{sA}, {CF_OFF}')
        def one_lane(text):
            a('s_mov_b64 exec, 1'); a(text); a('s_mov_b64 exec, -1')
        def count(off, idx):
            a(f's_lshr_b32 s{sT0}, s{idx}, 3\ns_lshl_b32 s{sT0}, s{sT0}, 7\ns_and_b32 s{sT2}, s{idx}, 7\ns_lshl_b32 s{sT2}, s{sT2}, 2\ns_add_u32 s{sT0}, s{sT0}, s{sT2}')
            a(f's_add_u32 s{sT0}, s{sT0}, s{sA}\ns_add_u32 s{sT0}, s{sT0}, {off}\nv_mov_b32 v{T[7]}, 0')
            one_lane(f'buffer_store_dword v{VONE}, v{T[7]}, {srd(sWS)}, s{sT0} offen sc1')

        sBC = sCNT; sSP = sBG
        common_regs()
        def touch(s, lines, dst, pitch=None, off=0):
            n = lines // 2
            a(f's_lshl_b32 s{sT0}, s2, 1\ns_add_u32 s{sT0}, s{sT0}, s{sSW}\ns_mul_i32 s{sT0}, s{sT0}, {pitch or n*128}')
            if off: a(f's_add_u32 s{sT0}, s{sT0}, {off}')
            a(f'v_cmp_gt_u32 vcc, {n}, v0\nv_cndmask_b32 v{T[7]}, v{OB}, v{T[15]}, vcc')
            return a(f'buffer_load_dword v{dst}, v{T[7]}, {srd(s)}, s{sT0} offen')
        CSR = 160; CA = 192
        def cs_loads(y=None):
            a(f's_lshr_b32 s{sT0}, s{sR}, 1\ns_mul_i32 s{sT0}, s{sT0}, {32*3584}\ns_mul_i32 s{sT2}, s{sJ}, 448\ns_add_u32 s{sT0}, s{sT0}, s{sT2}')
            a(f's_and_b32 s{sT2}, s{sR}, 1\ns_lshl_b32 s{sT2}, s{sT2}, 1\ns_add_u32 s{sT2}, s{sT2}, s{sSW}\ns_mul_i32 s{sT2}, s{sT2}, 112\ns_add_u32 s{sT0}, s{sT0}, s{sT2}')
            a(f'v_lshrrev_b32 v{T[6]}, 5, v0\nv_mul_u32_u24 v{T[6]}, {16*3584}, v{T[6]}\nv_and_b32 v{T[5]}, 31, v0\nv_lshl_add_u32 v{T[6]}, v{T[5]}, 2, v{T[6]}')
            a(f'v_cmp_gt_u32 vcc, 28, v{T[5]}\nv_cndmask_b32 v{T[6]}, v{OB}, v{T[6]}, vcc')
            for i in range(16):
                a(f'buffer_load_dword v{CSR+i}, v{T[6]}, {srd(sW3)}, s{sT0} offen')
                if i < 15: a(f's_add_u32 s{sT0}, s{sT0}, 3584')
                if y and i in (5, 10): y()
        if pf: touch(sQKV, 32, 6, 3072, 1024)
        if E('cs0', 0): cs_loads()
        stats_setup()
        barsD = []
        pre0 = E('spre', 1)
        for b in range(5):
            if b < 4:
                a.wait_vm(xtok[b]); stats_reads(b)
                if b < pre0 or (b == 3 and E('s3pre', 0)): stats_mfma(b)
            arrive(b); barsD.append(f'B{b}'); a('s_barrier')
            if b == 0:
                if not E('st', 0): x_chunk(2)
                x_chunk(3)
            if pre0 <= b < (3 if E('s3pre', 0) else 4): stats_mfma(b)
            if b == 3: stats_final()
            if b == E('e_pf', 2):
                if pf: touch(sW2, 16, 7); touch(sQKV, 16, 7, 3072)
                if pf and E('w3pf', 0) == 2: touch(sW3, 56, 7)
        a(f's_mov_b32 s{sBC}, 5')
        LONG = sum(1 << (IDX[n] + 1) for n in E('long', 'B4.B12.QE.XA.B24.B30.B34').split('.'))
        a(f's_mov_b32 s4, {LONG & 0xffffffff}\ns_mov_b32 s5, {LONG >> 32}')
        VDS = 39; nds = [0]
        if prof: a(f'v_mov_b32 v{VDS}, 0')
        def dst(name):
            if prof:
                a(f's_memrealtime s[0:1]\ns_waitcnt lgkmcnt(0)\nv_writelane_b32 v{VDS}, s0, {nds[0]}')
                self.dnames.append(name); nds[0] += 1
        def yield_(dl):
            L = lab('y')
            a(f's_cmp_ge_u32 s{sBC}, {IDX[dl]}\ns_cbranch_scc1 {L}')
            arrive(str(sBC))
            a(f's_barrier\ns_add_u32 s{sBC}, s{sBC}, 1\n{L}:')
        def earliest(name):
            L = lab('e')
            a(f'{L}:\ns_cmp_gt_u32 s{sBC}, {IDX[name]}\ns_cbranch_scc1 {L}d')
            arrive(str(sBC))
            a(f's_barrier\ns_add_u32 s{sBC}, s{sBC}, 1\ns_branch {L}\n{L}d:')
        def nbwait(dl, lg=False):
            L = lab('w')
            a(f'{L}:\ns_bitcmp1_b64 s[4:5], s{sBC}\ns_cselect_b32 s{sSP}, {E("nspin", 6)}, 1')
            a(f'{L}s:\ns_getreg_b32 s{sT0}, hwreg(HW_REG_IB_STS)\ns_and_b32 s{sT0}, s{sT0}, {0xf00 if lg else 0xc0000f}\ns_cbranch_scc0 {L}d')
            a(f's_sub_u32 s{sSP}, s{sSP}, 1\ns_cmp_lg_u32 s{sSP}, 0\ns_cbranch_scc1 {L}s')
            a(f's_cmp_ge_u32 s{sBC}, {IDX[dl]}\ns_cbranch_scc1 {L}d')
            if not lg: arrive(str(sBC))
            a(f's_barrier\ns_add_u32 s{sBC}, s{sBC}, 1\ns_branch {L}')
            a(f'{L}d:\ns_waitcnt {"lgkmcnt" if lg else "vmcnt"}(0)')
        def spin(off, n, dl):
            L = lab('c')
            a(f'v_and_b32 v{VCT}, {n-1}, v0\nv_lshrrev_b32 v{T[7]}, 3, v{VCT}\nv_and_b32 v{VCT}, 7, v{VCT}\nv_lshlrev_b32 v{VCT}, 2, v{VCT}\nv_lshl_add_u32 v{VCT}, v{T[7]}, 7, v{VCT}')
            a(f's_mov_b32 s6, {opt.get("spin", 200000)}\ns_add_u32 s9, s{sA}, {off}')
            a(f'{L}:\nbuffer_load_dword v{VCK}, v{VCT}, {srd(sWS)}, s9 offen sc1')
            nbwait(dl)
            a(f'v_cmp_ne_u32 vcc, 1, v{VCK}\ns_sub_u32 s6, s6, 1\ns_cmp_eq_u32 s6, 0\ns_cbranch_scc1 {L}d\ns_cbranch_vccz {L}d')
            for _ in range(E('boff', 2)): yield_(dl)
            a(f's_branch {L}\n{L}d:')
        def sliced(fn, dl, n=None):
            lines = a.record(fn); n = n or E('bgn', 22)
            while lines:
                m = n
                while any(x.startswith('s_setprio 3') for x in lines[:m]) and not any(x.startswith('s_setprio 0') for x in lines[:m]): m += 1
                a('\n'.join(lines[:m])); lines = lines[m:]
                if lines: yield_(dl)
        def cs_sum():
            for i in range(16):
                r_ = CSR + i
                if i == 0:
                    a(f'v_lshlrev_b32 v{CA}, 16, v{r_}\nv_and_b32 v{CA+1}, 0xffff0000, v{r_}')
                else:
                    a(f'v_lshlrev_b32 v{CA+4}, 16, v{r_}\nv_and_b32 v{CA+5}, 0xffff0000, v{r_}')
                    a(f'v_add_f32 v{CA}, v{CA}, v{CA+4}\nv_add_f32 v{CA+1}, v{CA+1}, v{CA+5}')
        PQR = 64; KVR = 192; ZR = 200
        AK, AZ, NUM, DEN, OUT = 96, 100, 104, 136, 168
        Lc = lab('cs')
        late = E('cslate', 0); CDL = E('cdl', 'B22') if late else 'XA'; CSA = 57
        def cs_chain():
            if not E('cs0', 0):
                earliest(E('e_cs', 'B6'))
                dst('csld0')
                cs_loads((lambda: yield_(CDL)) if E('dsl', 0) else None)
            dst('csld1')
            nbwait(CDL)
            dst('csld2')
            sliced(cs_sum, CDL)
            a(f'v_permlane32_swap_b32 v{CA}, v{CA+1}\nv_add_f32 v{CA}, v{CA}, v{CA+1}')
            a(f'v_and_b32 v{T[5]}, 31, v0\nv_lshrrev_b32 v{T[6]}, 5, v0\nv_lshlrev_b32 v{T[6]}, 2, v{T[6]}\nv_lshl_add_u32 v{T[6]}, v{T[5]}, 3, v{T[6]}')
            a(f'v_cmp_gt_u32 vcc, 28, v{T[5]}\nv_cndmask_b32 v{T[6]}, v{OB}, v{T[6]}, vcc')
            a(f's_lshr_b32 s{sT0}, s{sR}, 1\ns_lshl_b32 s{sT0}, s{sT0}, 10\ns_and_b32 s{sT2}, s{sR}, 1\ns_lshl_b32 s{sT2}, s{sT2}, 1\ns_add_u32 s{sT2}, s{sT2}, s{sSW}\ns_mul_i32 s{sT2}, s{sT2}, 224')
            a(f's_add_u32 s{sT0}, s{sT0}, s{sT2}\ns_add_u32 s{sT0}, s{sT0}, s{sD}\ns_add_u32 s{sT0}, s{sT0}, {KV_CS}')
            a(f'buffer_store_dword v{CA}, v{T[6]}, {srd(sWS)}, s{sT0} offen sc1')
            dst('csst')
            nbwait(CDL)
            dst('csack')
            earliest('B5')
            a(f's_lshl_b32 s9, s{sR}, 1\ns_add_u32 s9, s9, s{sSW}')
            count(CF_CS, 9)
            earliest(E('e_csc', 'B17'))
            dst('cschk0')
            spin(CF_CS, 64, CDL)
            dst('cschk1')
            a(f'v_lshlrev_b32 v{T[0]}, 4, v0\nv_cmp_gt_u32 vcc, 56, v0\nv_cndmask_b32 v{T[0]}, v{OB}, v{T[0]}, vcc')
            a(f's_lshl_b32 s{sT2}, s{sSW}, 13\ns_add_u32 s{sT2}, s{sT2}, s{sD}\ns_add_u32 s{sT2}, s{sT2}, {KV_CS}')
            for k in range(8):
                if k % 4 == 0: a(f's_add_u32 s{sT0}, s{sT2}, {k*1024}')
                a(f'buffer_load_dwordx4 {vr(CSR+4*k,4)}, v{T[0]}, {srd(sWS)}, s{sT0} offen offset:{(k&3)*1024} sc1')
                if k == 3 and E('dsl2', 0): yield_(CDL)
        def cs_tail():
            def cs_fin():
                for st in (16, 8, 4):
                    for k in range(st): a(f'v_add_f32 v{CSR+k}, v{CSR+k}, v{CSR+st+k}')
            dst('csg0')
            nbwait(CDL)
            dst('csg1')
            sliced(cs_fin, CDL, 30)
            a(f'v_lshlrev_b32 v{CSA}, 4, v0\nv_add_u32 v{CSA}, {CS3L}, v{CSA}')
            earliest('B16')
            a(f's_cmp_eq_u32 s{sSW}, 0\ns_cbranch_scc1 {Lc}a')
            a(f'ds_write_b128 v{CSA}, {vr(CSR,4)} offset:1024\ns_waitcnt lgkmcnt(0)\n{Lc}a:')
        if E('x_nocs', 0):
            earliest(E('e_cs', 'B6')); touch(sW3, 56, 7)
        else:
            cs_chain()
            if not late: cs_tail()
        if pf and E('e_p4', 'B13') == 'D': touch(sWO, 16, 8); touch(sW4, 56, 9)
        a(f's_lshl_b32 s7, s{sJ}, 1\ns_add_u32 s7, s7, s{sSW}\ns_lshl_b32 s8, s7, 2\ns_lshl_b32 s7, s7, 12\ns_add_u32 s7, s7, s{sC}\ns_add_u32 s7, s7, {O_OFF}')
        a(f's_lshl_b32 s{sT0}, s{sR}, 7\ns_add_u32 s8, s8, s{sT0}\ns_add_u32 s8, s8, {FL_OFF + FO*4096}\nv_mov_b32 v{VFO}, s8')
        earliest('XA')
        def cs_join():
            a(f's_cmp_lg_u32 s{sSW}, 0\ns_cbranch_scc1 {Lc}b')
            a(f'ds_read_b128 {vr(CSR+4,4)}, v{CSA} offset:1024\ns_waitcnt lgkmcnt(0)')
            for k in range(4): a(f'v_add_f32 v{CSR+k}, v{CSR+k}, v{CSR+4+k}')
            a(f'ds_write_b128 v{CSA}, {vr(CSR,4)}\ns_waitcnt lgkmcnt(0)\n{Lc}b:')
        if not late: cs_join()
        a(f's_lshl_b32 s{sT0}, s{sSW}, 12\ns_add_u32 s{sT0}, s{sT0}, {PQ}\nv_lshl_add_u32 v{T[0]}, v0, 3, s{sT0}')
        for k in range(8): a(f'ds_read_b64 {vr(PQR+2*k,2)}, v{T[0]} offset:{k*512}')
        a('s_waitcnt lgkmcnt(0)')
        kv2 = E('kv2', 0)
        if late and not E('x_nocs', 0): cs_tail()
        earliest(E('e_kvb', 'XA'))
        if E('x_noo', 0):
            one_lane(f'buffer_store_dword v{VONE}, v{VFO}, {srd(sWS)}, 0 offen sc1'); nbwait('B51'); a('s_endpgm')
        dst('kvchk0')
        spin(CF_A, 32, 'B24' if late else ODL)
        dst('kvchk1')
        if kv2:
            a(f's_lshl_b32 s20, s{sSW}, 5\ns_add_u32 s20, s20, s{sR}\ns_cmp_lt_u32 s20, 34\ns_cselect_b32 s21, 0, {OOB}\ns_lshl_b32 s22, s20, 7\ns_add_u32 s22, s22, s{sD}')
            a(f'v_lshrrev_b32 v{T[1]}, 3, v0\nv_mul_u32_u24 v{T[1]}, {KVP}, v{T[1]}\nv_and_b32 v{T[2]}, 7, v0\nv_lshlrev_b32 v{T[2]}, 4, v{T[2]}\nv_add3_u32 v{T[1]}, v{T[1]}, v{T[2]}, s21')
            for k in range(4):
                a(f's_add_u32 s{sT0}, s22, {k*8*KVP}\nbuffer_load_dwordx4 {vr(KVR+4*k,4)}, v{T[1]}, {srd(sWS)}, s{sT0} offen sc1')
            nbwait(ODL)
            dst('l2ld')
            for k in range(8): a(f'v_add_f32 v{KVR+k}, v{KVR+k}, v{KVR+8+k}')
            for k in range(4): a(f'v_add_f32 v{KVR+k}, v{KVR+k}, v{KVR+4+k}')
            for k in range(4): a(f'v_add_f32_dpp v{KVR+k}, v{KVR+k}, v{KVR+k} row_ror:8 row_mask:0xf bank_mask:0xf')
            for sw_ in ('v_permlane16_swap_b32', 'v_permlane32_swap_b32'):
                if sw_.startswith('v_permlane32'): yield_(ODL)
                for k in range(4): a(f'v_mov_b32 v{KVR+4+k}, v{KVR+k}')
                for k in range(4): a(f'{sw_} v{KVR+k}, v{KVR+4+k}')
                for k in range(4): a(f'v_add_f32 v{KVR+k}, v{KVR+k}, v{KVR+4+k}')
            a(f'v_cmp_gt_u32 vcc, 8, v0\nv_add_u32 v{T[2]}, s21, v{T[2]}\nv_cndmask_b32 v{T[2]}, v{OB}, v{T[2]}, vcc\ns_add_u32 s{sT0}, s22, {KV_FIN}')
            a(f'buffer_store_dwordx4 {vr(KVR,4)}, v{T[2]}, {srd(sWS)}, s{sT0} offen sc1')
            nbwait(ODL)
            count(CF_B, 20)
            dst('l2pub')
            earliest(E('e_kvc', 'B29'))
            spin(CF_B, 64, ODL)
            dst('l2chk')
            a(f'v_lshrrev_b32 v{T[1]}, 4, v0\nv_lshlrev_b32 v{T[1]}, 4, v{T[1]}\nv_and_b32 v{T[0]}, 3, v0\nv_lshl_add_u32 v{T[0]}, v{T[0]}, 8, v{T[1]}')
            a(f'v_bfe_u32 v{T[2]}, v0, 2, 2\nv_lshl_add_u32 v{T[0]}, v{T[2]}, 6, v{T[0]}')
        else:
            a(f'v_lshrrev_b32 v{T[1]}, 4, v0\nv_lshlrev_b32 v{T[1]}, 4, v{T[1]}\nv_and_b32 v{T[0]}, 15, v0\nv_lshl_add_u32 v{T[0]}, v{T[0]}, 6, v{T[1]}')
        fin = KV_FIN if kv2 else 0
        for rep in range(1 if kv2 else NREP):
            a(f's_lshl_b32 s{sT0}, s{sSW}, 11\ns_add_u32 s{sT2}, s{sT0}, s{sD}\ns_add_u32 s{sT2}, s{sT2}, {8192*rep + fin}')
            for hh in range(2): a(f'buffer_load_dwordx4 {vr(KVR+16*rep+4*hh,4)}, v{T[0]}, {srd(sWS)}, s{sT2} offen offset:{hh*1024} sc1')
            a(f's_lshl_b32 s{sT2}, s{sSW}, 7\ns_add_u32 s{sT2}, s{sT2}, s{sD}\ns_add_u32 s{sT2}, s{sT2}, {KV_Z + 8192*rep + fin}')
            for hh in range(2): a(f'buffer_load_dwordx4 {vr(ZR+16*rep+4*hh,4)}, v{T[1]}, {srd(sWS)}, s{sT2} offen offset:{hh*64} sc1')
        dst('kvg0')
        if late and not E('x_nocs', 0):
            earliest(CDL); cs_join()
        nbwait(ODL)
        dst('kvg1')
        def kv_sum():
            if not kv2:
                for k in range(32): a(f'v_add_f32 v{KVR+k}, v{KVR+k}, v{KVR+32+k}')
                for k in range(16): a(f'v_add_f32 v{KVR+k}, v{KVR+k}, v{KVR+16+k}')
            for hh in range(2):
                a(f'v_cvt_pk_bf16_f32 v{AK+2*hh}, v{KVR+4*hh}, v{KVR+4*hh+1}\nv_cvt_pk_bf16_f32 v{AK+2*hh+1}, v{KVR+4*hh+2}, v{KVR+4*hh+3}')
                a(f'v_cvt_pk_bf16_f32 v{AZ+2*hh}, v{ZR+4*hh}, v{ZR+4*hh+1}\nv_cvt_pk_bf16_f32 v{AZ+2*hh+1}, v{ZR+4*hh+2}, v{ZR+4*hh+3}')
        if E('dprio', 1): a(f's_setprio {E("dprio", 1)}')
        sliced(kv_sum, ODL, E('bgn2', 60))
        def o_compute():
            a('s_setprio 3')
            for k in range(8): a(f'v_mfma_f32_16x16x16_bf16 {vr(DEN+4*k,4)}, {vr(AZ+2*(k>>2),2)}, {vr(PQR+2*k,2)}, 0')
            for k in range(8): a(f'v_mfma_f32_16x16x16_bf16 {vr(NUM+4*k,4)}, {vr(AK+2*(k>>2),2)}, {vr(PQR+2*k,2)}, 0')
            a('s_setprio 0')
            if E('dprio', 1): a(f's_setprio {E("dprio", 1)}')
            for k in range(8): a(f'v_add_f32 v{DEN+4*k}, s{sEPS}, v{DEN+4*k}')
            for k in range(8): a(f'v_rcp_f32 v{DEN+4*k}, v{DEN+4*k}')
            for pr in range(4):
                for k in (2*pr, 2*pr+1):
                    for e in range(4): a(f'v_mul_f32 v{NUM+4*k+e}, v{NUM+4*k+e}, v{DEN+4*k}')
                for u in range(4*pr, 4*pr+4): a(f'v_cvt_pk_bf16_f32 v{OUT+u}, v{NUM+2*u}, v{NUM+2*u+1}')
                a(f'v_permlane16_swap_b32 v{OUT+4*pr}, v{OUT+4*pr+2}\nv_permlane16_swap_b32 v{OUT+4*pr+1}, v{OUT+4*pr+3}')
                a(f'buffer_store_dwordx4 {vr(OUT+4*pr,4)}, v{CELLV}, {srd(sWS)}, s7 offen offset:{(pr>>1)*2048+(pr&1)*512} sc1')
        dst('kvsum')
        sliced(o_compute, ODL, E('bgn3', 40))
        dst('ost')
        nbwait(ODL)
        dst('oack')
        one_lane(f'buffer_store_dword v{VONE}, v{VFO}, {srd(sWS)}, 0 offen sc1')
        if prof: a(f's_mov_b32 s10, s{sBC}'); earliest('B50')
        else: nbwait('B51')
        if prof:
            a(f's_lshl_b32 s{sT0}, s2, 3\ns_add_u32 s{sT0}, s{sT0}, s{sW}\ns_add_u32 s{sT0}, s{sT0}, 5\ns_lshl_b32 s{sT0}, s{sT0}, 8\ns_add_u32 s{sT0}, s{sT0}, {TS_OFF}')
            a(f'v_mov_b32 v2, s10\nv_mov_b32 v3, 0')
            a(f'v_lshlrev_b32 v3, 2, v0\nv_writelane_b32 v{VDS}, s10, 63\nbuffer_store_dword v{VDS}, v3, {srd(sWS)}, s{sT0} offen')
            dump_arrive(0)
        a('s_endpgm')

        a('L_sync:')
        a.vm = vmS; a.lg = []; stok.update(stokS); grp[0] = [2, 3]
        VTS, VTC = 31, 60
        if two: loader_setup()
        else:
            a('s_waitcnt lgkmcnt(0)')
            self.srds(a, skipx=True)
        if prof: a(f'v_mov_b32 v{VTS}, 0\nv_mov_b32 v{VTC}, 0\nv_writelane_b32 v{VTS}, s26, 63')
        nstamp = [0]
        def stamp(last=False):
            if prof:
                if nstamp[0]:
                    a(f's_waitcnt lgkmcnt(0)\nv_writelane_b32 v{VTS}, s{sTSP}, {nstamp[0]-1}\nv_writelane_b32 v{VTC}, s26, {nstamp[0]-1}')
                    a.lg = []
                if not last: a(f's_memrealtime s[{sTSP}:{sTSP+1}]\ns_memtime s[26:27]')
                nstamp[0] += 1
        def flag_setup():
            common_regs()
            a(f's_lshl_b32 s{sT0}, s{sR}, 7\ns_add_u32 s{sT0}, s{sT0}, {FL_OFF}\ns_lshl_b32 s{sT2}, s{sJ}, 2\ns_add_u32 s{sT2}, s{sT2}, s{sT0}\nv_mov_b32 v{VFL}, s{sT2}')
            a(f'v_and_b32 v{VZA}, 7, v0\nv_lshlrev_b32 v{VZA}, 2, v{VZA}\nv_add_u32 v{VFP}, s{sT0}, v{VZA}')
            a(f'v_and_b32 v{VZA}, 15, v0\nv_lshlrev_b32 v{VZA}, 2, v{VZA}\nv_add_u32 v{VFO}, s{sT0}, v{VZA}\nv_and_b32 v{VZA}, 31, v0\nv_lshlrev_b32 v{VZA}, 2, v{VZA}')
            a(f's_cmp_eq_u32 s{sR}, 0\ns_cselect_b32 s{sT2}, 0, -128\ns_cmp_eq_u32 s{sR}, 31\ns_cselect_b32 s{sT3}, 0, 128')
            a(f'v_lshrrev_b32 v{T[3]}, 3, v0\nv_mov_b32 v{T[4]}, 0\nv_mov_b32 v{T[5]}, s{sT2}\nv_mov_b32 v{T[6]}, s{sT3}')
            a(f'v_cmp_eq_u32 vcc, 1, v{T[3]}\nv_cndmask_b32 v{T[4]}, v{T[4]}, v{T[5]}, vcc\nv_cmp_eq_u32 vcc, 2, v{T[3]}\nv_cndmask_b32 v{T[4]}, v{T[4]}, v{T[6]}, vcc')
            a(f'v_add_u32 v{VF3}, v{VFP}, v{T[4]}')
        if not E('late', 0): flag_setup()
        stamp()
        def touch3(s, rows, dst):
            n = rows // 32
            a(f's_lshr_b32 s{sT0}, s2, 3\ns_mul_i32 s{sT0}, s{sT0}, {n*1024}\ns_add_u32 s{sT0}, s{sT0}, 384')
            a(f'v_lshlrev_b32 v{T[7]}, 10, v0\nv_cmp_gt_u32 vcc, {n}, v0\nv_cndmask_b32 v{T[7]}, v{OB}, v{T[7]}, vcc')
            return a(f'buffer_load_dword v{dst}, v{T[7]}, {srd(s)}, s{sT0} offen')
        ck = {}
        def check_issue(vaddr, sr, off):
            ck['t'] = a(f's_mov_b32 s{sT0}, {off}\nbuffer_load_dword v{VCK}, v{vaddr}, {srd(sr)}, s{sT0} offen sc1')
        def check_wait(vaddr, sr, off, val):
            L = lab('p')
            a.wait_vm(ck['t'])
            a(f's_mov_b32 s{sCNT}, {opt.get("spin", 200000)}\ns_mov_b32 s{sT0}, {off}')
            a(f'{L}:')
            a(f'v_cmp_ne_u32 vcc, {val}, v{VCK}\ns_sub_u32 s{sCNT}, s{sCNT}, 1\ns_cmp_eq_u32 s{sCNT}, 0\ns_cbranch_vccz {L}d\ns_cbranch_scc1 {L}d')
            vm = list(a.vm)
            a(f'buffer_load_dword v{VCK}, v{vaddr}, {srd(sr)}, s{sT0} offen sc1\ns_waitcnt vmcnt(0)\ns_branch {L}\n{L}d:')
            a.vm = vm
        early = []
        def pre_poll(vaddr, sr, off):
            r = [36, 37, 38][len(early)]
            a(f's_mov_b32 s{sT0}, {off}')
            early.append((r, a(f'buffer_load_dword v{r}, v{vaddr}, {srd(sr)}, s{sT0} offen sc1')))
        def poll(vaddr, sr, off, val):
            L = lab('q')
            check_issue(vaddr, sr, off)
            check_wait(vaddr, sr, off, val)
        def flag(ftype):
            a(f's_mov_b32 s{sT0}, {ftype*4096}')
            one_lane(f'buffer_store_dword v{VONE}, v{VFL}, {srd(sWS)}, s{sT0} offen sc1')
        XS = 64; xt = {}
        def xs_loads():
            a(f's_lshl_b32 s{sT0}, s{sR}, 13\ns_add_u32 s{sT0}, s{sT0}, {XS_OFF}\ns_add_u32 s{sT2}, s{sT0}, 4096\nv_lshlrev_b32 v{T[0]}, 3, v0')
            for k in range(16):
                xt['s'] = a(f'buffer_load_dwordx2 {vr(XS+2*k,2)}, v{T[0]}, {srd(sWS)}, s{sT0 if k < 8 else sT2} offen offset:{(k&7)*512} sc1')
        def xs_final(part):
            G = XS + 4; t = XS + 1
            if part == 0:
                a.wait_vm(xt['s'])
                for st in (16, 8, 4, 2):
                    for k in range(st): a(f'v_add_f32 v{XS+k}, v{XS+k}, v{XS+st+k}')
                return
            a(f'v_mul_f32 v{G}, {f2u(-1/512):#x}, v{XS}\nv_mul_f32 v{t}, {f2u(1/512):#x}, v{t}')
            a(f'v_fma_f32 v{t}, -v{G}, v{G}, v{t}\nv_max_f32 v{t}, 0, v{t}\nv_add_f32 v{t}, {f2u(1e-5):#x}, v{t}')
            a(f'v_rsq_f32 v{t+1}, v{t}\nv_sqrt_f32 v{G+3}, v{t}')
            a(f'v_mul_f32 v{G+1}, {f2u(GC0):#x}, v{t+1}\nv_mul_f32 v{t+2}, v{t+1}, v{t+1}\nv_mul_f32 v{t+2}, v{t+2}, v{t+1}\nv_mul_f32 v{G+2}, {f2u(GC1):#x}, v{t+2}')
            a(f'v_lshlrev_b32 v{T[0]}, 4, v0\nv_add_u32 v{T[0]}, {X1P}, v{T[0]}')
            a(f'ds_write_b128 v{T[0]}, {vr(G,4)}\ns_waitcnt lgkmcnt(0)')
        fhb, fxb, hlb = f"B{E('fh_bar', 6)}", f"B{E('fx_bar', 17)}", f"B{E('hl_bar', 11)}"
        for n in BARS:
            if n == 'XA': check_wait(VFP, sWS, FX1 * 4096, 1)
            if n == E('e_g0w', 'B31' if E('eg', 0) else 'B34'): check_wait(VFP, sWS, FG0 * 4096, 1)
            if n == f'B{self.need[FG1]}': check_wait(VFP, sWS, FG1 * 4096, 1)
            if n == f'B{self.need[FO]}': check_wait(VFO, sWS, FO * 4096, 1)
            if n == f'B{self.need[FG2]}': check_wait(VFP, sWS, FG2 * 4096, 1)
            if n == hlb: check_wait(VF3, sWS, FH * 4096, 1)
            if two: load_before(n)
            arrive(IDX[n]); self.barsS.append(n); a('s_barrier')
            stamp()
            if n == fhb: flag(FH)
            if n == fxb: flag(FX1)
            if n == f"B{E('fg0_bar', 27)}": flag(FG0)
            if n == f"B{E('fg1_bar', 34)}": flag(FG1)
            if n == f"B{E('fg2_bar', 37)}": flag(FG2)
            if n == (f"B{E('fa_bar', 15)}" if E('kv2', 0) else ('QE' if E('ovl', 0) and E('atp', 0) == 1 else fxb)): count(CF_A, sR)
            if n == E('e_g0i', 'B30' if E('eg', 0) else 'B31'): check_issue(VFP, sWS, FG0 * 4096)
            if n == f'B{max(self.need[FG1] - E("cl", 2), 34)}': check_issue(VFP, sWS, FG1 * 4096)
            if n == f'B{max(self.need[FO] - E("cl", 2), 34)}': check_issue(VFO, sWS, FO * 4096)
            if n == f'B{self.need[FG2] - E("cl", 2)}': check_issue(VFP, sWS, FG2 * 4096)
            if n == 'QE': check_issue(VFP, sWS, FX1 * 4096)
            if n == BARS[IDX[hlb] - E('hl_lead', 2)]: check_issue(VF3, sWS, FH * 4096)
            if n == 'B2': check_issue(VZA, sDBG, 0)
            if n == 'B15': pass
            if two: load_after(n)
            elif n[0] == 'B': stats_after(int(n[1:]))
            if n == 'B0' and E('late', 0): flag_setup()
            if n == E('e_xs', 'B20') and not E('x_noxs', 0): xs_loads()
            if n == 'B4': check_wait(VZA, sDBG, 0, 1)
            if n == 'B22' and not E('x_noxs', 0): xs_final(0)
            if n == 'B23': xs_final(1)
            if pf and n == E('e_p4', 'B13'):
                for (sr, nl) in ((sWO, 16), (sW4, 56)):
                    a(f's_mul_i32 s{sT0}, s2, {nl*128}\nv_cmp_gt_u32 vcc, {nl}, v0\nv_cndmask_b32 v{T[7]}, v{OB}, v{T[15]}, vcc\nbuffer_load_dword v62, v{T[7]}, {srd(sr)}, s{sT0} offen')
            if t3:
                if n == E('e_t3q', 'B4'): touch3(sQKV, 1536, 63)
                if n == E('e_t32', 'B7'): touch3(sW2, 512, 63)
                if n == E('e_t33', 'B13'): touch3(sW3, 1792, 63)
                if n == E('e_t33b', 'B24'): touch3(sW3, 1792, 63)
                if n == E('e_t34', 'B28'): touch3(sW4, 1792, 63)
                if n == E('e_t35', 'B37'): touch3(sWO, 512, 63); touch3(sW4, 1792, 63)
            if n[0] == 'B' and int(n[1:]) >= max(self.need.values()) + 2 and not prof and not two: break
        if prof:
            stamp(True)
            a(f's_lshl_b32 s{sT0}, s2, 3\ns_add_u32 s{sT0}, s{sT0}, 4\ns_lshl_b32 s{sT0}, s{sT0}, 8\ns_add_u32 s{sT0}, s{sT0}, {TS_OFF}')
            a(f'v_lshlrev_b32 v2, 2, v0\nbuffer_store_dword v{VTS}, v2, {srd(sWS)}, s{sT0} offen\nbuffer_store_dword v{VTC}, v2, {srd(sWS)}, s{sT0} offen offset:256')
            dump_arrive(0)
        a('s_endpgm')

        a('L_loader:')
        a.vm = vmL; a.lg = []; stok.update(stokL); grp[0] = [0, 1] if two else [0, 1, 2, 3]
        if E('lprio', 3): a(f's_setprio {E("lprio", 3)}')
        loader_setup()
        for n in BARS:
            load_before(n)
            arrive(IDX[n]); self.barsL.append(n); a('s_barrier')
            load_after(n)
        dump_arrive(0)
        a('s_endpgm')

    def build(self):
        a = Asm()
        dry = Asm(); self.compute(dry); self.barsC = []
        self.prologue(a)
        self.helper(a)
        a.lg = []; a.vm = []
        a('L_compute:')
        self.compute(a)
        a('L_end:\ns_endpgm')
        assert self.barsC[:-1] == self.barsL and self.barsC[-1] == 'RB2' and self.barsL[:len(self.barsS)] == self.barsS, (self.barsC, self.barsL, self.barsS)
        if self.opt.get('align', 16): self.alstat = align_pass(a, KNAME + ':\n', self.opt.get('align', 16))
        ref = open(f'cdna_kernels/{KNAME[:-7]}.s.ref').read().split('\n')
        head = [l for l in ref if l.startswith(';') and '@launch' not in l]
        head += ['; One persistent launch: 256 workgroups = 32 row blocks (64 tokens) x 8 column blocks, one per CU.',
                 '; Waves 0-3 compute (MFMA), wave 4 publishes/polls hand-off flags, waves 5-6 do background work (x tile, row',
                 '; statistics, column sums of w3, attention output), wave 7 streams weight tiles into an LDS ring.',
                 '; Layer norms are applied after the GEMMs as rho*(x@W - mu*colsum(W)).  Tiles exchanged between workgroups go',
                 '; through d_ws with write-through stores and flags that this launch zeroes itself (announced in d_debug).']
        if self.dnames: head.append('; dnames ' + ' '.join(self.dnames))
        out = '\n'.join(head) + '\n; @launch grid=(256,1,1) block=(512,1,1) lds=163840\n'
        out += f'.amdgcn_target "amdgcn-amd-amdhsa--gfx950"\n.text\n.globl {KNAME}\n.p2align 8\n.type {KNAME},@function\n{KNAME}:\n'
        out += a.text()
        out += f'''.section .rodata,"a"
.p2align 6
.amdhsa_kernel {KNAME}
  .amdhsa_next_free_vgpr 256
  .amdhsa_next_free_sgpr 102
  .amdhsa_accum_offset 256
  .amdhsa_group_segment_fixed_size 0
  .amdhsa_kernarg_size 88
  .amdhsa_user_sgpr_count 2
  .amdhsa_user_sgpr_kernarg_segment_ptr 1
  .amdhsa_system_sgpr_workgroup_id_x 1
.end_amdhsa_kernel
'''
        return out, a


def generate(**opt):
    g = Gen(opt)
    return g.build()[0]

if __name__ == '__main__':
    opt = {}
    for arg in sys.argv[2:]:
        k, v = arg.split('=')
        opt[k] = int(v) if v.lstrip('-').isdigit() else v
    g = Gen(opt)
    txt, a = g.build()
    open(sys.argv[1], 'w').write(txt)
    print('instructions', len(a.ins), 'pads', a.npad, 'align', getattr(g, 'alstat', None), 'issue', ISSUE)
```

```python
import sys, math, struct
sys.path.insert(0, 'dev')
import re
from asmlib import Asm, Ins, align_pass

KNAME = 'parallel_sum__linear_attn_block__mixer_s_mlp__prompt_kernel'

H_OFF, X1_OFF, O_OFF, G_OFF = 0x000000, 0x200000, 0x400000, 0x600000
KV_OFF, FL_OFF, XS_OFF, TS_OFF = 0xE00000, 0xD10000, 0xD20000, 0x1000000
CF_OFF = 0xD00000
WS_BYTES = 0x1200000
KVP, KV_Z, KV_FIN, KV_CS = 4608, 4096, 0x24000, 0x28000
CF_CS, CF_A, CF_B = 0, 1024, 2048
NREP = 4
FH, FX1, FO, FG0, FG1, FG2 = 0, 1, 2, 3, 4, 5
GBLK = 229376
RING = 0x10000
SC = 0x24000
S1, S2, NMU, RHO, RHL = SC, SC + 1024, SC + 2048, SC + 2304, SC + 2560
PQ, X1P, CS3L = SC, SC + 9216, SC + 10240
OOB = 0x80000000

def f2u(x): return struct.unpack('<I', struct.pack('<f', x))[0]
LOG2E = 1.4426950408889634
GC0 = -2.0 * math.sqrt(2.0 / math.pi) * LOG2E
GC1 = GC0 * 0.044715

sX, sQKV, sWO, sW1, sW2, sW3, sW4, sOUT, sWS, sDBG = 28, 32, 36, 40, 44, 48, 52, 56, 60, 64
sR, sJ, sW, sTH, sHI = 68, 69, 70, 71, 72
sT0, sT1, sT2, sT3, sT4, sT5 = 73, 74, 75, 76, 77, 78
sEPS = 80
sONE, sSEL0, sSEL1 = 82, 83, 84
sA, sB, sC, sD = 85, 86, 87, 88
sI0 = 79
sCODE = 92
sCNT = 90
sROT = 89
sRG = 3
sKG = 22
sKC = 96
sBG = 91
sK1, sK3, sK5, sKX = 92, 96, 4, 18
sTSP = 100

def srd(n): return f's[{n}:{n+3}]'
def vr(n, k=1): return f'v{n}' if k == 1 else f'v[{n}:{n+k-1}]'

STAGES = ([('w1', s) for s in range(4)] + [('kv', s) for s in range(8)] + [('w2', s) for s in range(4)] +
          [('wq', s) for s in range(4)] + [('p0', s) for s in range(4)] + [('hf', s) for s in range(2)] +
          [('p1', s) for s in range(4)] + [('p2', s) for s in range(4)] +
          [])
STAGES0 = list(STAGES)
def set_order(order):
    STAGES[:] = STAGES0 + [(k, s) for k in order.split('.') for s in range(2 if k == 'gh' else 4)]
set_order('g0.g1.gh.wo.g2')
def g_rows(kind, s):
    if kind == 'gh': return 896 * s + 192, 896 * s + 640
    p = int(kind[1])
    return 448 * s + 64 * p, 448 * s + 256 + 64 * p
NST = len(STAGES)
AREL = 27

def plan_slots(opt):
    free = [RING + i * 0x4000 for i in range(5)]
    slot = {}; issue = {}
    quota = {13: opt.get('q13', 0), 16: opt.get('q16', 1), 17: 2, 24: opt.get('q24', 3), 27: 1, 30: opt.get('q30', 4), 34: opt.get('q34', 1)}
    jit = opt.get('jit', 5)
    regs = [int(x) for x in str(opt.get('regs', '')).split('.') if x]
    nxt = 0
    def drain(key, q, b):
        nonlocal nxt
        while free and nxt < NST and (nxt in regs or ((q > 0 or nxt <= b + 2) and not (b >= 35 and nxt > b + jit))):
            slot[nxt] = free.pop(0); issue.setdefault(key, []).append(nxt); q -= nxt not in regs; nxt += 1
    drain(-1, 5, -1)
    for b in range(NST):
        if b == 20:
            free.extend([slot[18], slot[19]]); drain('QE', 2, 19)
        er = [int(x) for x in str(opt.get('erel', '24.30.34')).split('.') if x != 'X']
        if b >= 2 and b not in (20, 21) and (b - 1) not in er: free.append(slot[b - 2])
        if b in er: free.append(slot[b - 1])
        if b in er and b < 20 and (b - 1) not in er: quota[b] = quota.get(b, 1) + 1
        if b == (24 if opt.get('hfv', 1) else AREL): free.extend([0, 0x4000, 0x8000, 0xC000])
        if b == 32 and opt.get('sc10', 1): free.append(SC)
        if SC in free and nxt > 47: free.remove(SC)
        if b == 15 and opt.get('rb17', 1): drain('RB1', quota.get(b, 1), b)
        else: drain(b, quota.get(b, 1), b)
    assert nxt == NST
    return slot, issue


class Gen:
    def __init__(self, opt):
        self.opt = opt
        self.barsC = []; self.barsS = []; self.barsL = []; self.dnames = []
        global SLOT, ISSUE
        set_order(opt.get('order', 'g0.g1.gh.g2.wo' if opt.get('kv2', 0) else 'g0.wo.g1.gh.g2'))
        SLOT, ISSUE = plan_slots(opt)

    def prologue(self, a):
        a('s_cmp_ge_u32 s2, 256\ns_cbranch_scc1 L_end')
        a('s_load_dwordx16 s[4:19], s[0:1], 0\ns_load_dwordx4 s[20:23], s[0:1], 64\ns_load_dwordx2 s[24:25], s[0:1], 80')
        if self.opt.get('prof'):
            a(f's_memrealtime s[26:27]\ns_memtime s[90:91]')
        m = self.opt.get('map', 'h4')
        if m == 'same':
            a(f's_and_b32 s{sR}, s2, 7\ns_lshr_b32 s{sT0}, s2, 6\ns_lshl_b32 s{sT0}, s{sT0}, 3\ns_or_b32 s{sR}, s{sR}, s{sT0}')
            a(f's_lshr_b32 s{sJ}, s2, 3\ns_and_b32 s{sJ}, s{sJ}, 7')
        elif m == 'h4':
            a(f's_and_b32 s{sR}, s2, 3\ns_lshr_b32 s{sT0}, s2, 5\ns_lshl_b32 s{sT0}, s{sT0}, 2\ns_or_b32 s{sR}, s{sR}, s{sT0}')
            a(f's_lshr_b32 s{sJ}, s2, 2\ns_and_b32 s{sJ}, s{sJ}, 7')
        elif m == 'cross':
            a(f's_lshr_b32 s{sR}, s2, 3\ns_and_b32 s{sJ}, s2, 7')
        a('v_lshrrev_b32 v1, 6, v0\nv_and_b32 v0, 63, v0')
        a(f'v_readfirstlane_b32 s{sT1}, v1')
        a(f's_mov_b32 s{sX+2}, {2<<20}\ns_mov_b32 s{sX+3}, 0x20000')
        a(f's_and_b32 s{sW}, s{sT1}, 3\ns_and_b32 s{sTH}, s{sT1}, 1\ns_lshr_b32 s{sHI}, s{sW}, 1')
        sh = {'same': 3, 'h4': 2, 'cross': 5}[m] if self.opt.get('rot2', 1) else 8
        a(f's_lshr_b32 s{sROT}, s{sR}, {sh}\ns_add_u32 s{sROT}, s{sROT}, s{sR}\ns_add_u32 s{sROT}, s{sROT}, s{sJ}\ns_and_b32 s{sROT}, s{sROT}, 3')
        sh2 = {'same': 3, 'h4': 2, 'cross': 5}[m]
        if self.opt.get('rotg', 1): a(f's_lshr_b32 s{sRG}, s{sR}, {sh2}\ns_add_u32 s{sRG}, s{sRG}, s{sJ}\ns_and_b32 s{sRG}, s{sRG}, 3')
        else: a(f's_mov_b32 s{sRG}, 0')
        a(f's_cmp_lt_u32 s{sT1}, 4\ns_cbranch_scc1 L_compute')

    def srds(self, a, skipx=False, skip1=False):
        a(f's_mov_b32 s{sEPS}, {f2u(1e-6):#x}\ns_mov_b32 s{sEPS+1}, {f2u(1e-6):#x}\ns_mov_b32 s{sONE}, 0x3f803f80')
        for (s, p, n) in ((sX, 4, 2 << 20), (sW1, 12, 512 * 1024), (sQKV, 6, 512 * 3072), (sWO, 8, 512 * 1024), (sW2, 14, 512 * 1024),
                          (sW3, 16, 512 * 3584), (sW4, 18, 1792 * 1024), (sOUT, 20, 2 << 20), (sWS, 24, WS_BYTES), (sDBG, 22, 256)):
            if s == sX and skipx: continue
            if s == sW1 and skip1: continue
            a(f's_mov_b32 s{s}, s{p}\ns_and_b32 s{s+1}, s{p+1}, 0xffff\ns_mov_b32 s{s+2}, {n}\ns_mov_b32 s{s+3}, 0x20000')

    def run_steps(self, a, steps):
        n = len(steps)
        sched = {}
        for i, s in enumerate(steps):
            sched.setdefault(s['at'], []).append(i)
        def items(i):
            s = steps[i]
            out = []
            if s.get('pre'): out.append(('pre', i))
            out += [('rd', i, t) for t in s['reads']]
            return out
        def emit(it):
            if it[0] == 'pre':
                steps[it[1]]['pre']()
            elif it[0] == 'rd':
                steps[it[1]]['tok'] = a(it[2])
                steps[it[1]].setdefault('toks', []).append(steps[it[1]]['tok'])
            else:
                it[1]()
        for i in sched.get(-1, []):
            for it in items(i): emit(it)
        for k in range(n):
            s = steps[k]
            if s.get('hook'): s['hook']()
            pend = []
            for i in sched.get(k, []):
                if i == k:
                    for it in items(i): emit(it)
                else:
                    pend += items(i)
            pend += [('post', f) for f in s.get('post', [])]
            vt = s['vm']() if s.get('vm') else None
            sp = s.get('split') if len(s.get('toks', [])) == len(s['reads']) and s['reads'] else None
            a.wait_both(s['toks'][sp[0] - 1] if sp else s.get('tok'), vt)
            nm = len(s['mfmas'])
            per = -(-len([p for p in pend if p[0] != 'pre']) // nm) if pend else 0
            for mi, m in enumerate(s['mfmas']):
                if sp and mi == sp[1]: a.wait_lg(s['tok'])
                a(m)
                if s.get('tail') and s['tail'][mi]: s['tail'][mi]()
                c = 0
                while pend and (c < per or mi == nm - 1):
                    it = pend.pop(0)
                    emit(it)
                    if it[0] != 'pre': c += 1
                    elif mi < nm - 1 and self.opt.get('bfast', 0):
                        per = -(-len(pend) // (nm - 1 - mi))
                        break

    def barC(self, a, name):
        self.barsC.append(name); a('s_barrier')

    def gelu(self, a, pairs, tmp, after_first=None):
        P = lambda r: vr(r, 2)
        for i, (ac, cs, st, o) in enumerate(pairs):
            a(f'v_pk_fma_f32 {P(ac)}, {P(cs)}, {P(st)}, {P(ac)} op_sel:[0,0,0] op_sel_hi:[1,0,1]')
        if after_first: after_first()
        for i, (ac, cs, st, o) in enumerate(pairs):
            a(f'v_pk_mul_f32 {P(tmp+2*i)}, {P(ac)}, {P(ac)}')
        for i, (ac, cs, st, o) in enumerate(pairs):
            a(f'v_pk_fma_f32 {P(tmp+2*i)}, {P(tmp+2*i)}, {P(st+2)}, {P(st)} op_sel:[0,0,1] op_sel_hi:[1,0,1]')
        for i, (ac, cs, st, o) in enumerate(pairs):
            a(f'v_pk_mul_f32 {P(tmp+2*i)}, {P(tmp+2*i)}, {P(ac)}')
        for i in range(2 * len(pairs)):
            a(f'v_exp_f32_e64 v{tmp+i}, v{tmp+i}')
        for i, (ac, cs, st, o) in enumerate(pairs):
            a(f'v_pk_fma_f32 {P(tmp+2*i)}, {P(tmp+2*i)}, {P(st+2)}, {P(st+2)} op_sel:[0,1,1] op_sel_hi:[1,1,1]')
        for i in range(2 * len(pairs)):
            a(f'v_rcp_f32_e64 v{tmp+i}, v{tmp+i}')
        for i, (ac, cs, st, o) in enumerate(pairs):
            a(f'v_pk_mul_f32 {P(tmp+2*i)}, {P(tmp+2*i)}, {P(ac)}')
        for i, (ac, cs, st, o) in enumerate(pairs):
            a(f'v_cvt_pk_bf16_f32 v{o}, v{tmp+2*i}, v{tmp+2*i+1}')

    def phi_tail(self, a, acs, outs, tmp):
        P = lambda r: vr(r, 2)
        n = len(acs)
        for i in range(2 * n): a(f'v_exp_f32_e64 v{tmp+i}, v{tmp+i} clamp')
        for ac in acs:
            a(f'v_max_f32_e64 v{ac}, v{ac}, s{sEPS}\nv_max_f32_e64 v{ac+1}, v{ac+1}, s{sEPS}')
        for i, ac in enumerate(acs): a(f'v_pk_add_f32 {P(ac)}, {P(ac)}, {P(tmp+2*i)}')
        for i, ac in enumerate(acs): a(f'v_cvt_pk_bf16_f32 v{outs[i]}, v{ac}, v{ac+1}')

    def compute(self, a):
        opt = self.opt
        P = lambda r: vr(r, 2)
        XB = [2, 3, 4, 5]; PAT16, WK16 = 6, 7
        PATN = [8, 9]; PATP = [10, 11, 12, 13]; PAT3 = [14, 15]
        WK = [16, 17, 18, 19]
        CELLV, CELLT, LL16, RDX = 20, 21, 22, 23
        RES = 24; QST = 40; PST = 196
        ONES = 56
        STA, STB, XE, PSA = 1, 54, 19, 18
        HV = [252, 253, 254, 255]
        T = [240 + i for i in range(12)]
        q, i16, rr, c, h, t32, fsub = 228, 229, 230, 231, 232, 233, 234
        a(f'v_lshrrev_b32 v{q}, 4, v0\nv_and_b32 v{i16}, 15, v0\nv_lshrrev_b32 v{rr}, 2, v{i16}\nv_and_b32 v{c}, 3, v0')
        a(f'v_lshrrev_b32 v{h}, 5, v0\nv_and_b32 v{t32}, 31, v0\nv_and_b32 v{fsub}, 1, v{q}')
        a(f'v_lshlrev_b32 v{LL16}, 4, v0')
        a(f'v_lshlrev_b32 v{T[2]}, 3, v0')
        a(f's_lshr_b32 s{sT3}, s2, 3\ns_lshl_b32 s{sT3}, s{sT3}, 2\ns_add_u32 s{sT3}, s{sT3}, s{sW}\ns_lshl_b32 s{sT3}, s{sT3}, 9')
        a(f's_getpc_b64 s[{sCODE}:{sCODE+1}]\nL_pc:\ns_sub_u32 s{sCODE}, s{sCODE}, L_pc-{KNAME}\ns_subb_u32 s{sCODE+1}, s{sCODE+1}, 0')
        a(f's_and_b32 s{sCODE+1}, s{sCODE+1}, 0xffff\ns_mov_b32 s{sCODE+2}, L_end-{KNAME}\ns_mov_b32 s{sCODE+3}, 0x20000')
        if opt.get('cpf', 1): a(f'buffer_load_dword v24, v{T[2]}, {srd(sCODE)}, s{sT3} offen')
        if opt.get('t0', 0):
            a(f's_lshl_b32 s{sT0}, s{sR}, 3\ns_add_u32 s{sT0}, s{sT0}, s{sJ}\ns_lshl_b32 s{sT0}, s{sT0}, 2\ns_add_u32 s{sT0}, s{sT0}, s{sW}\ns_lshl_b32 s{sT2}, s{sT0}, 9\ns_lshl_b32 s{sT0}, s{sT0}, 11')
            a(f'v_lshlrev_b32 v{T[3]}, 5, v0\ns_mov_b32 s{sW1+2}, {512*1024}\ns_mov_b32 s{sW1+3}, 0x20000')
        a('s_waitcnt lgkmcnt(0)')
        if opt.get('t0', 0):
            a(f's_mov_b32 s{sX}, s4\ns_and_b32 s{sX+1}, s5, 0xffff\nbuffer_load_dword v25, v{T[3]}, {srd(sX)}, s{sT0} offen')
            a(f's_mov_b32 s{sW1}, s12\ns_and_b32 s{sW1+1}, s13, 0xffff\nbuffer_load_dword v26, v{T[2]}, {srd(sW1)}, s{sT2} offen')
        self.srds(a)
        a(f's_lshr_b32 s{sT0}, s{sR}, 2\ns_or_b32 s{sT0}, s{sT0}, s{sW}\ns_cmp_lg_u32 s{sT0}, 0\ns_cbranch_scc1 L_nozero')
        vm0 = list(a.vm)
        a(f'v_mov_b32 v{T[4]}, 0\nv_mov_b32 v{T[5]}, 0\nv_mov_b32 v{T[6]}, 0\nv_mov_b32 v{T[7]}, 0')
        a(f's_lshl_b32 s{sT3}, s{sJ}, 2\ns_add_u32 s{sT3}, s{sT3}, s{sR}')
        a(f's_lshl_b32 s{sT0}, s{sT3}, 10\ns_add_u32 s{sT0}, s{sT0}, {CF_OFF}')
        a(f'buffer_store_dwordx4 {vr(T[4],4)}, v{LL16}, {srd(sWS)}, s{sT0} offen sc1')
        a(f's_lshl_b32 s{sT0}, s{sJ}, 18\ns_lshl_b32 s{sT2}, s{sR}, 13\ns_add_u32 s{sT0}, s{sT0}, s{sT2}\ns_add_u32 s{sT0}, s{sT0}, {KV_OFF}\ns_add_u32 s{sT2}, s{sT0}, 4096')
        for u in range(0 if opt.get('kv2', 0) else 5):
            a(f'buffer_store_dwordx4 {vr(T[4],4)}, v{LL16}, {srd(sWS)}, s{sT0 if u < 4 else sT2} offen offset:{(u&3)*1024} sc1')
        a(f'v_lshlrev_b32 v{T[8]}, 12, v{q}\nv_lshl_add_u32 v{T[8]}, v{i16}, 3, v{T[8]}')
        a(f's_lshl_b32 s{sT0}, s{sT3}, 7\ns_add_u32 s{sT0}, s{sT0}, {FL_OFF}')
        a(f'buffer_store_dwordx2 {vr(T[4],2)}, v{T[8]}, {srd(sWS)}, s{sT0} offen sc1\ns_add_u32 s{sT0}, s{sT0}, 16384')
        a(f'buffer_store_dwordx2 {vr(T[4],2)}, v{T[8]}, {srd(sWS)}, s{sT0} offen sc1')
        a(f'v_mov_b32 v{T[9]}, 1\ns_lshl_b32 s{sT0}, s{sT3}, 2\nv_mov_b32 v{T[10]}, s{sT0}')
        a.wait_vm0()
        a('s_mov_b64 exec, 1')
        a(f'buffer_store_dword v{T[9]}, v{T[10]}, {srd(sDBG)}, 0 offen sc1')
        a('s_mov_b64 exec, -1')
        a('L_nozero:')
        a.vm = vm0
        a(f'v_mov_b32 v{T[1]}, {OOB}')
        for m in range(4):
            a(f'v_or_b32 v{T[0]}, {4*m}, v{q}\nv_xor_b32 v{T[0]}, v{T[0]}, v{i16}\nv_lshlrev_b32 v{T[0]}, 4, v{T[0]}')
            a(f'v_lshl_add_u32 v{XB[m]}, v{i16}, 8, v{T[0]}')
        a(f'v_lshrrev_b32 v{T[4]}, 1, v{rr}\nv_lshlrev_b32 v{T[4]}, 2, v{T[4]}\nv_lshrrev_b32 v{T[5]}, 1, v{c}')
        a(f'v_and_b32 v{T[6]}, 1, v{c}\nv_lshlrev_b32 v{T[6]}, 3, v{T[6]}')
        a(f's_lshl_b32 s{sT0}, s{sW}, 1\nv_add_u32 v{T[7]}, s{sT0}, v{T[5]}\nv_xor_b32 v{T[7]}, v{T[7]}, v{T[4]}')
        a(f'v_lshlrev_b32 v{T[8]}, 1, v{fsub}\nv_xor_b32 v{T[7]}, v{T[7]}, v{T[8]}\nv_lshl_add_u32 v{T[7]}, v{T[7]}, 4, v{T[6]}')
        a(f'v_lshl_add_u32 v{T[9]}, v{q}, 3, v{rr}\nv_lshl_add_u32 v{PAT16}, v{T[9]}, 7, v{T[7]}')
        a(f's_lshl_b32 s{sT0}, s{sHI}, 2\nv_add3_u32 v{T[7]}, s{sT0}, v{T[8]}, v{T[5]}\nv_xor_b32 v{T[7]}, v{T[7]}, v{T[4]}')
        a(f's_lshl_b32 s{sT2}, s{sHI}, 13')
        a(f'v_lshlrev_b32 v{T[9]}, 1, v{h}\nv_xor_b32 v{T[9]}, v{T[9]}, v{T[7]}\nv_lshl_add_u32 v{T[9]}, v{T[9]}, 4, v{T[6]}')
        a(f'v_lshl_add_u32 v{T[10]}, v{h}, 3, v{rr}\nv_lshl_add_u32 v{T[9]}, v{T[10]}, 7, v{T[9]}')
        a(f'v_add_u32 v{PATN[0]}, s{sT2}, v{T[9]}\nv_xor_b32 v{PATN[1]}, 64, v{PATN[0]}')
        a(f'v_lshl_add_u32 v{T[9]}, v{T[7]}, 4, v{T[6]}\nv_lshl_add_u32 v{T[10]}, v{h}, 2, v{rr}\nv_lshl_add_u32 v{PAT3[0]}, v{T[10]}, 7, v{T[9]}')
        a(f'v_xor_b32 v{PAT3[1]}, 32, v{PAT3[0]}\nv_add_u32 v{PAT3[1]}, 1024, v{PAT3[1]}')
        a(f'v_add_u32 v{PATP[0]}, s{sT2}, v{PAT3[0]}\nv_add_u32 v{PATP[1]}, s{sT2}, v{PAT3[1]}')
        a(f'v_xor_b32 v{PATP[2]}, 64, v{PATP[0]}\nv_xor_b32 v{PATP[3]}, 64, v{PATP[1]}')
        a(f'v_lshlrev_b32 v{CELLV}, 10, v{h}\nv_lshl_add_u32 v{CELLV}, v{t32}, 4, v{CELLV}')
        a(f's_lshl_b32 s{sT0}, s{sTH}, 9\nv_add_u32 v{CELLT}, s{sT0}, v{CELLV}')
        for i in range(4): a(f'v_mov_b32 v{ONES+i}, s{sONE}')
        a(f's_lshl_b32 s{sT0}, s{sTH}, 5\nv_add_u32 v{T[0]}, s{sT0}, v{t32}')
        a(f's_lshl_b32 s{sT2}, s{sHI}, 13\nv_lshl_add_u32 v{T[2]}, v{h}, 10, s{sT2}')
        rot = opt.get('rot', 1)
        for g in range(4):
            if rot: a(f's_add_u32 s{sT0}, s{sROT}, {g}\ns_and_b32 s{sT0}, s{sT0}, 3')
            else: a(f's_mov_b32 s{sT0}, {g}')
            a(f's_lshl_b32 s{sKC+g}, s{sT0}, 14\ns_lshr_b32 s{sT3}, s{sT0}, 1\ns_add_u32 s{sT3}, s{sT3}, 1\ns_sub_u32 s{sT4}, 0, s{sT3}\ns_bitcmp1_b32 s{sT0}, 0\ns_cselect_b32 s{sT3}, s{sT3}, s{sT4}')
            a(f'v_add_u32 v{T[3]}, s{sT3}, v{T[0]}\nv_ashrrev_i32 v{T[4]}, 6, v{T[3]}\nv_add_u32 v{T[4]}, s{sR}, v{T[4]}')
            if opt.get('ssh', 0): a(f'v_lshl_add_u32 v{T[3]}, v{T[0]}, 4, v{T[2]}\ns_lshl_b32 s{sT3}, s{sR}, 16\ns_add_u32 s{sT3}, s{sT3}, s{sKC+g}\nv_add_u32 v{T[3]}, s{sT3}, v{T[3]}')
            else: a(f'v_and_b32 v{T[3]}, 63, v{T[3]}\nv_lshl_add_u32 v{T[3]}, v{T[3]}, 4, v{T[2]}\nv_lshl_add_u32 v{T[3]}, v{T[4]}, 16, v{T[3]}\nv_add_u32 v{T[3]}, s{sKC+g}, v{T[3]}')
            a(f'v_cmp_gt_u32 vcc, 32, v{T[4]}\nv_cndmask_b32 v{HV[g]}, v{T[1]}, v{T[3]}, vcc')
        HS = [26, 27]
        if opt.get('ssh', 0):
            a(f's_lshr_b32 s{sT0}, s{sJ}, 1\ns_lshr_b32 s{sT3}, s{sT0}, 1\ns_add_u32 s{sT3}, s{sT3}, 1\ns_sub_u32 s{sT4}, 0, s{sT3}\ns_bitcmp1_b32 s{sT0}, 0\ns_cselect_b32 s{sT3}, s{sT4}, s{sT3}')
            for pr in range(2):
                a(f'v_add_u32 v{T[3]}, s{sT3}, v{t32}')
                if pr: a(f'v_add_u32 v{T[3]}, 32, v{T[3]}')
                a(f'v_ashrrev_i32 v{T[4]}, 6, v{T[3]}\nv_add_u32 v{T[4]}, s{sR}, v{T[4]}\nv_and_b32 v{T[3]}, 63, v{T[3]}\nv_lshlrev_b32 v{T[3]}, 4, v{T[3]}')
                a(f'v_lshl_add_u32 v{T[3]}, v{h}, 10, v{T[3]}\nv_lshl_add_u32 v{T[3]}, v{T[4]}, 16, v{T[3]}\nv_cmp_gt_u32 vcc, 32, v{T[4]}\nv_cndmask_b32 v{HS[pr]}, v{T[1]}, v{T[3]}, vcc')
        a(f'v_lshlrev_b32 v{STA}, 4, v{i16}\nv_add_u32 v{STA}, {SC}, v{STA}')
        a(f'v_lshlrev_b32 v{STB}, 4, v{q}\nv_add_u32 v{STB}, {NMU}, v{STB}')
        a(f'v_lshlrev_b32 v{PSA}, 4, v{T[0]}\nv_add_u32 v{PSA}, {S2}, v{PSA}')
        a(f's_and_b32 s{sT0}, s{sJ}, 1\ns_lshl_b32 s{sT0}, s{sT0}, 3\ns_lshl_b32 s{sT2}, s{sHI}, 2\ns_add_u32 s{sT0}, s{sT0}, s{sT2}')
        a(f's_lshr_b32 s{sT2}, s{sJ}, 1\ns_sub_u32 s{sT2}, s{sT2}, s{sROT}\ns_and_b32 s{sT2}, s{sT2}, 3\ns_lshl_b32 s{sT2}, s{sT2}, 14')
        a(f'v_xor_b32 v{XE}, s{sT0}, v{i16}\nv_lshlrev_b32 v{XE}, 4, v{XE}\nv_lshl_add_u32 v{XE}, v{h}, 3, v{XE}\nv_lshl_add_u32 v{XE}, v{T[0]}, 8, v{XE}\nv_add_u32 v{XE}, s{sT2}, v{XE}')
        a(f's_xor_b32 s{sT0}, s{sW}, 2\ns_lshl_b32 s{sT0}, s{sT0}, 12\ns_add_u32 s{sT0}, s{sT0}, {SC}\nv_add_u32 v{RDX}, s{sT0}, v{LL16}')
        a(f's_lshl_b32 s{sA}, s{sR}, 16')
        a(f's_lshl_b32 s{sT0}, s{sJ}, 2\ns_add_u32 s{sT0}, s{sT0}, s{sW}\ns_lshl_b32 s{sT0}, s{sT0}, 11')
        a(f's_mov_b32 s{sB}, s{sT0}' if opt.get('ssh', 0) else f's_add_u32 s{sB}, s{sA}, s{sT0}')
        if opt.get('kv2', 0): a(f's_mul_i32 s{sT0}, s{sR}, {KVP}')
        else: a(f's_and_b32 s{sT0}, s{sR}, 3\ns_lshl_b32 s{sT0}, s{sT0}, 13')
        a(f's_lshl_b32 s{sC}, s{sJ}, 18\ns_add_u32 s{sC}, s{sC}, s{sT0}\ns_add_u32 s{sC}, s{sC}, {KV_OFF}')
        a(f's_mul_i32 s{sD}, s{sR}, {GBLK}\ns_add_u32 s{sD}, s{sD}, {G_OFF}')

        def cst(k):
            if opt.get('prof') in (1, 2) and opt.get('cset', 0) == k // 8: a(f's_memrealtime s[{4+2*(k%8)}:{5+2*(k%8)}]')
        def stage_pre(st, wks, pats, extra=None, after=None):
            def f():
                for wk, pt in zip(wks, pats):
                    a(f'v_add_u32 v{wk}, {SLOT[st]}, v{pt}')
                if extra: extra()
                self.barC(a, f'B{st}')
                if after: after()
            return f

        def steps_q(first, acc, cs, sets, base_at):
            st = []
            for ks in range(16):
                sb = sets[ks % 3]; stg = first + ks // 4
                reads = [f'ds_read_b64_tr_b16 {vr(sb+16,2)}, v{WK16} offset:{(ks%4)*4096}',
                         f'ds_read_b64_tr_b16 {vr(sb+18,2)}, v{WK16} offset:{(ks%4)*4096+512}']
                reads += [f'ds_read_b128 {vr(sb+4*tt,4)}, v{XB[ks&3]} offset:{tt*4096+(ks>>2)*16384}' for tt in range(4)]
                mf = [f'v_mfma_f32_16x16x32_bf16 {vr(cs,4)}, {vr(sb+16,4)}, {vr(ONES,4)}, {vr(cs,4) if ks else 0}']
                mf += [f'v_mfma_f32_16x16x32_bf16 {vr(acc+4*tt,4)}, {vr(sb+16,4)}, {vr(sb+4*tt,4)}, {vr(acc+4*tt,4) if ks else 0}' for tt in range(4)]
                st.append(dict(reads=reads, mfmas=mf, at=base_at + ks - 2, stage=stg if ks % 4 == 0 else None))
            return st

        HACC, HCS, HSETS = 60, 76, [80, 100, 120]
        KACC, VACC, KCS, VCS, KSETS = 140, 156, 172, 176, [180, 204]
        ovl = opt.get('ovl', 0)
        HF = 60; P2ACC = 180 if ovl else 140
        steps = steps_q(0, HACC, HCS, HSETS, 0)
        steps[0]['at'] = -1; steps[1]['at'] = -1
        for s in steps:
            if s['stage'] is not None: s['pre'] = stage_pre(s['stage'], [WK16], [PAT16])
        nh = len(steps)

        htok = {}
        HST = 80
        def h_stats_reads():
            for tt in range(4):
                htok['s'] = a(f'ds_read_b128 {vr(228+4*tt,4)}, v{STA} offset:{tt*256}')
        def h_epilogue():
            ST = 228; TMP = 100; OUT = 116
            a.wait_lg(htok['s'])
            pairs = [(HACC + 2*u, HCS + 2*(u & 1), ST + 4*(u >> 1), OUT + u) for u in range(8)]
            self.gelu(a, pairs, TMP)
            for pr in range(2):
                a(f'v_permlane16_swap_b32 v{OUT+4*pr}, v{OUT+4*pr+2}\nv_permlane16_swap_b32 v{OUT+4*pr+1}, v{OUT+4*pr+3}')
                htok['st'] = a(f'buffer_store_dwordx4 {vr(OUT+4*pr,4)}, v{HS[pr]}, {srd(sWS)}, s{sB} offen sc1' if opt.get('ssh', 0) else f'buffer_store_dwordx4 {vr(OUT+4*pr,4)}, v{CELLV}, {srd(sWS)}, s{sB} offen offset:{pr*512} sc1')
            cst(0)

        hl = {}; xp = {}
        HX = 196; x2 = {}
        def hload(n):
            sg, i = n // 4, n % 4
            if n >= 16:
                if n == 16: a(f'v_xor_b32 v{HV[0]}, 8192, v{HV[3]}')
                if i % 2 == 0: a(f's_mov_b32 s{sI0}, {H_OFF + (i>>1)*4096}')
                hl[n] = a(f'buffer_load_dwordx4 {vr(HX+4*i,4)}, v{HV[0]}, {srd(sWS)}, s{sI0} offen offset:{(i&1)*2048} sc1')
                return
            if i % 2 == 0: a(f's_mov_b32 s{sI0}, {H_OFF + (i>>1)*4096}')
            hl[n] = a(f'buffer_load_dwordx4 {vr(HF+4*n,4)}, v{HV[sg]}, {srd(sWS)}, s{sI0} offen offset:{(i&1)*2048} sc1')
        for ks in range(16):
            sb = KSETS[ks % 2]; stg = 4 + ks // 2
            o = (ks % 2) * 4096
            reads = [f'ds_read_b64_tr_b16 {vr(sb+16,2)}, v{WK16} offset:{o}', f'ds_read_b64_tr_b16 {vr(sb+18,2)}, v{WK16} offset:{o+512}',
                     f'ds_read_b128 {vr(sb,4)}, v{XB[ks&3]} offset:{(ks>>2)*16384}',
                     f'ds_read_b64_tr_b16 {vr(sb+20,2)}, v{WK16} offset:{o+8192}', f'ds_read_b64_tr_b16 {vr(sb+22,2)}, v{WK16} offset:{o+8192+512}']
            reads += [f'ds_read_b128 {vr(sb+4*tt,4)}, v{XB[ks&3]} offset:{tt*4096+(ks>>2)*16384}' for tt in range(1, 4)]
            mf = [f'v_mfma_f32_16x16x32_bf16 {vr(KCS,4)}, {vr(ONES,4)}, {vr(sb+16,4)}, {vr(KCS,4) if ks else 0}',
                  f'v_mfma_f32_16x16x32_bf16 {vr(VCS,4)}, {vr(ONES,4)}, {vr(sb+20,4)}, {vr(VCS,4) if ks else 0}']
            for tt in range(4):
                mf.append(f'v_mfma_f32_16x16x32_bf16 {vr(KACC+4*tt,4)}, {vr(sb+4*tt,4)}, {vr(sb+16,4)}, {vr(KACC+4*tt,4) if ks else 0}')
                mf.append(f'v_mfma_f32_16x16x32_bf16 {vr(VACC+4*tt,4)}, {vr(sb+4*tt,4)}, {vr(sb+20,4)}, {vr(VACC+4*tt,4) if ks else 0}')
            s = dict(reads=reads, mfmas=mf, at=nh + ks - 1)
            if opt.get('ksp', 1): s['split'] = (5, 4)
            if ks % 2 == 0:
                extra = after = None
                if stg == opt.get('fh_bar', 6): extra = lambda: (a.wait_vm(htok['st']), cst(1))
                if stg == opt.get('hl_bar', 11): after = lambda: a.inject([lambda n=n: hload(n) for n in range(16)], opt.get('hl_every', 16))
                if stg == 4: after = h_stats_reads
                if stg == opt.get('xn_bar', 11) - 1: after = lambda o=after: ((o() if o else None), xn_prep())
                if stg == opt.get('xn_bar', 11): extra = lambda: xn_prep2()
                s['pre'] = stage_pre(stg, [WK16], [PAT16], extra, after)
            steps.append(s)
        for b_ in range(5, 12):
            if str(b_) in str(opt.get('erel', '24.30.34')).split('.'):
                nx, pv = steps[nh + 2 * (b_ - 4)], steps[nh + 2 * (b_ - 4) - 1]
                nx['pre'] = (lambda o=nx['pre'], pv=pv: (a.wait_lg(pv['tok']), o()))
        kr0, kp0 = steps[nh]['reads'], steps[nh]['pre']
        steps[nh]['reads'] = []; steps[nh]['pre'] = None
        def h_hook():
            kp0()
            for t in kr0: steps[nh]['tok'] = a(t)
            h_epilogue()
        steps[nh]['hook'] = h_hook
        nkv = len(steps)

        ASETS = [228, 236, 244]
        def steps_ks(first, nstage, pats, natural, acc, bfrag, asets, base, setphase=0, init=True, c_init=None):
            st = []
            for n in range(4 * nstage):
                stg = first + n // 4; i = n % 4
                sb = asets[(n + setphase) % 3]
                reads = []
                for t in range(2):
                    for rd in range(2):
                        if natural:
                            reads.append(f'ds_read_b64_tr_b16 {vr(sb+4*t+2*rd,2)}, v{WK[t]} offset:{i*2048+rd*512}')
                        else:
                            reads.append(f'ds_read_b64_tr_b16 {vr(sb+4*t+2*rd,2)}, v{WK[2*t+rd]} offset:{i*2048}')
                b = bfrag(n)
                c0 = vr(acc if (n or c_init is None) else c_init, 16)
                c1 = vr(acc + 16, 16) if (n or not init) else 0
                mf = [f'v_mfma_f32_32x32x16_bf16 {vr(acc,16)}, {vr(sb,4)}, {vr(b,4)}, {c0}',
                      f'v_mfma_f32_32x32x16_bf16 {vr(acc+16,16)}, {vr(sb+4,4)}, {vr(b,4)}, {c1}']
                s = dict(reads=reads, mfmas=mf, at=base + n - 2)
                if i == 0: s['pre'] = stage_pre(stg, WK[:len(pats)], pats)
                st.append(s)
            return st

        p2 = steps_ks(12, 4, PATN, True, P2ACC, lambda n: HF + 4 * n, ASETS, nkv, c_init=124)
        p2[0]['at'] = nkv - 1; p2[1]['at'] = nkv - 1
        if '12' in str(opt.get('erel', '24.30.34')).split('.'):
            p2[0]['pre'] = (lambda o=p2[0]['pre'], pv=steps[nkv - 1]: (a.wait_lg(pv['tok']), o()))
        if opt.get('hl_bar', 11) == 12:
            p2[0]['pre'] = (lambda o=p2[0]['pre']: (o(), a.inject([lambda n=n: hload(n) for n in range(16)], opt.get('hl_every', 16))))
        XN = 124
        def xn_prep():
            XR = 228
            a(f'v_xor_b32 v{XR+8}, 16, v{XE}\nv_xor_b32 v{XR+9}, 32, v{XE}\nv_xor_b32 v{XR+10}, 48, v{XE}')
            a(f'ds_read_b64 {vr(XR,2)}, v{XE}')
            for g in range(1, 4): a(f'ds_read_b64 {vr(XR+2*g,2)}, v{XR+7+g}')
            xp['t'] = a(f'ds_read_b64 {vr(XR+12,2)}, v{PSA}')
        def xn_prep2():
            XR = 228
            a.wait_lg(xp['t'])
            for g in range(4):
                for d in range(2):
                    a(f'v_lshlrev_b32 v{RES+4*g+2*d}, 16, v{XR+2*g+d}\nv_and_b32 v{RES+4*g+2*d+1}, 0xffff0000, v{XR+2*g+d}')
            a(f'v_mul_f32 v{XR+12}, v{XR+12}, v{XR+13}')
            for u in range(16): a(f'v_fma_f32 v{XN+u}, v{RES+u}, v{XR+13}, v{XR+12}')
        def kv_epilogue():
            cst(16)
            SN, SR_, SL = 180, 196, 212
            for tt in range(4): a(f'ds_read_b128 {vr(SN+4*tt,4)}, v{STB} offset:{tt*64}')
            for tt in range(4): tk1 = a(f'ds_read_b128 {vr(SL+4*tt,4)}, v{STB} offset:{tt*64+512}')
            for tt in range(4): tk = a(f'ds_read_b128 {vr(SR_+4*tt,4)}, v{STB} offset:{tt*64+256}')
            a.wait_lg(tk1)
            for u in range(8):
                a(f'v_pk_fma_f32 {P(KACC+2*u)}, {P(SN+2*u)}, {P(KCS)}, {P(KACC+2*u)} op_sel_hi:[1,0,1]')
            for u in range(8):
                a(f'v_pk_fma_f32 {P(VACC+2*u)}, {P(SN+2*u)}, {P(VCS)}, {P(VACC+2*u)} op_sel_hi:[1,0,1]')
            for u in range(8):
                a(f'v_pk_mul_f32 {P(SL+2*u)}, {P(SL+2*u)}, {P(KACC+2*u)}')
            a.wait_lg(tk)
            for tt in range(4):
                a(f'ds_read_b128 {vr(QST+4*tt,4)}, v{STA} offset:{1024+tt*256}')
            for u in range(8):
                a(f'v_pk_fma_f32 {P(KACC+2*u)}, {P(KACC+2*u)}, {P(SR_+2*u)}, s[{sEPS}:{sEPS+1}]')
            for u in range(8):
                a(f'v_pk_mul_f32 {P(VACC+2*u)}, {P(VACC+2*u)}, {P(SR_+2*u)}')
            cst(17)
            PKR, PVR = (164, 156) if ovl else (180, 188)
            for u in range(8): a(f'v_cvt_pk_bf16_f32 v{PVR+u}, v{VACC+2*u}, v{VACC+2*u+1}')
            KVA, ZA = 172, 176
            XR = 140 if ovl else 196
            def rest():
                if ovl:
                    for i in range(16): a(f'v_exp_f32_e64 v{SL+i}, v{SL+i} clamp\nv_max_f32_e64 v{KACC+i}, v{KACC+i}, s{sEPS}')
                    for i in range(16): a(f'v_add_f32_e64 v{KACC+i}, v{KACC+i}, v{SL+i}')
                    for u in range(8): a(f'v_cvt_pk_bf16_f32 v{PKR+u}, v{KACC+2*u}, v{KACC+2*u+1}')
                else:
                    self.phi_tail(a, [KACC + 2*u for u in range(8)], [PKR + u for u in range(8)], SL)
                cst(18)
                a(f'v_and_b32 v{XR+3}, 15, v0\nv_lshrrev_b32 v{XR+4}, 4, v0')
                a(f'v_mfma_f32_16x16x32_bf16 {vr(ZA,4)}, {vr(PKR,4)}, {vr(ONES,4)}, 0')
                a(f'v_mfma_f32_16x16x32_bf16 {vr(KVA,4)}, {vr(PVR,4)}, {vr(PKR,4)}, 0')
                a(f'v_mfma_f32_16x16x32_bf16 {vr(ZA,4)}, {vr(PKR+4,4)}, {vr(ONES,4)}, {vr(ZA,4)}')
                a(f'v_mfma_f32_16x16x32_bf16 {vr(KVA,4)}, {vr(PVR+4,4)}, {vr(PKR+4,4)}, {vr(KVA,4)}')
                a(f'v_lshlrev_b32 v{XR+2}, 8, v{XR+4}\nv_lshl_add_u32 v{XR+2}, v{XR+3}, 2, v{XR+2}')
                if opt.get('kv2', 0): a(f'v_lshlrev_b32 v{XR+2}, 2, v0')
                a(f'v_lshl_add_u32 v{XR+4}, v{XR+4}, 2, v{XR+3}\nv_lshlrev_b32 v{XR+4}, 2, v{XR+4}')
                a(f'v_mov_b32 v{XR+5}, {OOB}\nv_cmp_gt_u32 vcc, 4, v{XR+3}\nv_cndmask_b32 v{XR+4}, v{XR+5}, v{XR+4}, vcc')
                for k in range(1, 4): a(f'v_cmp_eq_u32 vcc, {k}, v{XR+3}\nv_cndmask_b32 v{ZA}, v{ZA}, v{ZA+k}, vcc')
            def atomics():
                a(f's_lshl_b32 s{sT3}, s{sW}, 10\ns_add_u32 s{sT3}, s{sT3}, s{sC}\ns_lshl_b32 s{sT4}, s{sW}, 6\ns_add_u32 s{sT4}, s{sT4}, s{sC}\ns_add_u32 s{sT4}, s{sT4}, {KV_Z}')
                for k in range(4):
                    a(f'buffer_store_dword v{KVA+k}, v{XR+2}, {srd(sWS)}, s{sT3} offen offset:{k*256} sc1' if opt.get('kv2', 0) else f'buffer_atomic_add_f32 v{KVA+k}, v{XR+2}, {srd(sWS)}, s{sT3} offen offset:{k*64}')
                htok['kv'] = a(f'buffer_store_dword v{ZA}, v{XR+4}, {srd(sWS)}, s{sT4} offen sc1' if opt.get('kv2', 0) else f'buffer_atomic_add_f32 v{ZA}, v{XR+4}, {srd(sWS)}, s{sT4} offen')
            htok['atomics'] = atomics
            if ovl:
                a.flush_inject()
                lines = a.record(rest)
                per = opt.get('ovl_n', 4)
                k = 0
                for st_ in p2:
                    tl = []
                    for _ in range(2):
                        part = lines[k:k + per]; k += per
                        tl.append((lambda part=part: a('\n'.join(part))) if part else None)
                    st_['tail'] = tl
                assert k >= len(lines)
                if opt.get('atp', 0) == 0: p2[(len(lines) // (2 * per)) + 1]['post'] = [atomics]
            else:
                rest()
                a.flush_inject()
                cst(19)
                if opt.get('x_noat', 0): htok['kv'] = None
                else: atomics()
        p2[0]['hook'] = kv_epilogue
        if opt.get('kv2', 0):
            kb = 4 * (opt.get('fa_bar', 15) - 12)
            okb = p2[kb]['pre']
            p2[kb]['pre'] = lambda: (a.wait_vm(htok['kv']), okb())
        for n, s in enumerate(p2):
            s['vm'] = (lambda n=n: hl[n])
            if n in (1, 8, 15): s['hook'] = (lambda n=n: cst({1: 20, 8: 21, 15: 22}[n]))
        steps += p2
        np2 = len(steps)

        qs = steps_q(16, HACC, HCS, HSETS, np2)
        x1tok = {}
        for s in qs:
            if s['stage'] is not None:
                extra = None
                if s['stage'] == opt.get('fx_bar', 17): extra = lambda: (a.wait_vm(x1tok['st']), cst(3))
                s['pre'] = stage_pre(s['stage'], [WK16], [PAT16], extra)
        qr0, qr1 = qs[0]['reads'], qs[1]['reads']
        qs[0]['reads'] = []; qs[1]['reads'] = []; qs[0]['pre'] = None
        qs[0]['at'] = np2; qs[1]['at'] = np2
        def exchange(acc, rcv, nb, between=None):
            a(f'v_xor_b32 v{rcv}, 8192, v{RDX}')
            for g in range(4):
                a(f'ds_write_b128 v{rcv}, {vr(acc+16+4*g,4)} offset:{g*1024}')
            if between: between()
            a.wait_lg0()
            self.barC(a, nb)
            return [a(f'ds_read_b128 {vr(rcv+4*g,4)}, v{RDX} offset:{g*1024}') for g in range(4)]
        def unsplit_last(st, acc, rcv, nb, stg, natural, asets, phase, own, oth, xt):
            n0 = len(st) - 4
            pats = [PATN[0]] if natural else PATP[:2]
            def pre(o=st[n0].get('extra')):
                if o: o()
                self.barC(a, f'B{stg}')
                for k, pt in enumerate(pats):
                    a(f'v_add_u32 v{WK[k]}, {SLOT[stg]}, v{pt}\nv_xor_b32 v{WK[2+k]}, 8192, v{WK[k]}')
            st[n0]['pre'] = pre
            for i in range(4):
                s = st[n0 + i]; sb = asets[(n0 + i + phase) % 3]
                s['reads'] = []
                for u in range(2):
                    for rd in range(2):
                        if natural: s['reads'].append(f'ds_read_b64_tr_b16 {vr(sb+4*u+2*rd,2)}, v{WK[2*u]} offset:{i*2048+rd*512}')
                        else: s['reads'].append(f'ds_read_b64_tr_b16 {vr(sb+4*u+2*rd,2)}, v{WK[2*u+rd]} offset:{i*2048}')
                s['mfmas'] = [f'v_mfma_f32_32x32x16_bf16 {vr(acc,16)}, {vr(sb,4)}, {vr(own(i),4)}, {vr(acc,16)}',
                              f'v_mfma_f32_32x32x16_bf16 {vr(acc,16)}, {vr(sb+4,4)}, {vr(oth(i),4)}, {vr(acc,16)}']
            wt = {}
            def wr(g):
                if g == 0: a(f'v_xor_b32 v{rcv}, 8192, v{RDX}')
                wt[g] = a(f'ds_write_b128 v{rcv}, {vr(acc+16+4*g,4)} offset:{g*1024}')
            st[n0]['tail'] = [None, lambda: (wr(0), wr(1))]
            st[n0 + 1]['tail'] = [lambda: wr(2), lambda: wr(3)]
            def sync():
                a.wait_lg(wt[3])
                self.barC(a, nb)
                xt['tk'] = [a(f'ds_read_b128 {vr(rcv+4*g,4)}, v{RDX} offset:{g*1024}') for g in range(4)]
            st[n0 + 3]['tail'] = [sync, None]
        def p2_epilogue():
            RCV, OUT, SS = (60, 76, 84) if ovl else (180, 196, 204)
            cst(23)
            def between():
                a(f's_lshl_b32 s{sT2}, s{sJ}, 1\ns_add_u32 s{sT2}, s{sT2}, s{sHI}\ns_lshl_b32 s{sT0}, s{sT2}, 12\ns_add_u32 s{sT0}, s{sT0}, s{sA}\ns_add_u32 s{sT0}, s{sT0}, {X1_OFF}')
                a(f's_lshl_b32 s{sT2}, s{sT2}, 9\ns_lshl_b32 s{sT3}, s{sR}, 13\ns_add_u32 s{sT2}, s{sT2}, s{sT3}\ns_lshl_b32 s{sT3}, s{sTH}, 8\ns_add_u32 s{sT2}, s{sT2}, s{sT3}\ns_add_u32 s{sT2}, s{sT2}, {XS_OFF}')
                a(f'v_add_u32 v{WK16}, {SLOT[16]}, v{PAT16}')
                a(f'v_and_b32 v{SS+8}, 31, v0\nv_lshrrev_b32 v{SS+9}, 5, v0\nv_lshlrev_b32 v{SS+9}, 2, v{SS+9}\nv_lshl_add_u32 v{SS+8}, v{SS+8}, 3, v{SS+9}')
            if opt.get('us2', 0):
                between(); tk = x2['tk']
            else: tk = exchange(P2ACC, RCV, 'RB1', between)
            for b in range(2):
                a.wait_lg(tk[2*b+1])
                for u in range(4*b, 4*b+4): a(f'v_pk_add_f32 {P(P2ACC+2*u)}, {P(P2ACC+2*u)}, {P(RCV+2*u)}')
                for u in range(4*b, 4*b+4): a(f'v_cvt_pk_bf16_f32 v{OUT+u}, v{P2ACC+2*u}, v{P2ACC+2*u+1}')
                a(f'buffer_store_dwordx4 {vr(OUT+4*b,4)}, v{CELLT}, {srd(sWS)}, s{sT0} offen offset:{b*2048} sc1')
            a(f'v_pk_add_f32 {P(SS)}, {P(P2ACC)}, {P(P2ACC+2)}\nv_pk_mul_f32 {P(SS+2)}, {P(P2ACC)}, {P(P2ACC)}')
            a(f'v_pk_add_f32 {P(SS+4)}, {P(P2ACC+4)}, {P(P2ACC+6)}\nv_pk_mul_f32 {P(SS+6)}, {P(P2ACC+2)}, {P(P2ACC+2)}')
            for u in range(2, 8):
                k = 4 * (u & 1)
                a(f'v_pk_fma_f32 {P(SS+2+k)}, {P(P2ACC+2*u)}, {P(P2ACC+2*u)}, {P(SS+2+k)}')
                if u >= 4: a(f'v_pk_add_f32 {P(SS+k)}, {P(SS+k)}, {P(P2ACC+2*u)}')
            a(f'v_pk_add_f32 {P(SS)}, {P(SS)}, {P(SS+4)}\nv_pk_add_f32 {P(SS+2)}, {P(SS+2)}, {P(SS+6)}')
            a(f'v_add_f32 v{SS}, v{SS}, v{SS+1}\nv_add_f32 v{SS+2}, v{SS+2}, v{SS+3}')
            a(f'v_permlane32_swap_b32 v{SS}, v{SS+2}\nv_add_f32 v{SS}, v{SS}, v{SS+2}')
            x1tok['st'] = a(f'buffer_store_dword v{SS}, v{SS+8}, {srd(sWS)}, s{sT2} offen sc1')
            cst(2)
            for u in range(8): a(f'v_pk_add_f32 {P(RES+2*u)}, {P(RES+2*u)}, {P(P2ACC+2*u)}')
            if ovl and opt.get('atp', 0) == 1: htok['atomics']()
            if opt.get('fx_bar', 17) == 16:
                a.wait_vm(x1tok['st']); cst(3)
            self.barC(a, 'B16')
            for t in qr0: qs[0]['tok'] = a(t)
            for t in qr1: qs[1]['tok'] = a(t)
        qs[0]['hook'] = p2_epilogue
        if opt.get('us2', 0):
            unsplit_last(p2, P2ACC, 180, 'RB1', 15, True, ASETS, 0, lambda i: HF + 4 * (12 + i), lambda i: HX + 4 * i, x2)
            for n in range(12, 16): p2[n]['vm'] = (lambda n=n: hl[n + 4])
            for n in range(4): p2[2 + n]['post'] = [lambda n=n: hload(16 + n)]
        steps += qs
        nq = len(steps)

        BST = 128; A3 = [60, 68, 76]; ACA, ACB = 84, 100
        GST = 40; GT = 44; CSG = 112
        X1B, CSB, CSB2, HFB = 2, 3, 4, 5
        HP = [6, 7]
        def q_epilogue():
            TMP = 100; OUT = 116; QP = 80
            a.wait_vm(htok['kv'])
            self.barC(a, 'QE')
            for u in range(8):
                a(f'v_pk_fma_f32 {P(HACC+2*u)}, {P(HCS+2*(u&1))}, {P(QST+4*(u>>1))}, {P(HACC+2*u)} op_sel_hi:[1,0,1]')
            for u in range(8):
                a(f'v_pk_mul_f32 {P(TMP+2*u)}, {P(HACC+2*u)}, {P(QST+4*(u>>1)+2)} op_sel_hi:[1,0]')
            for u in range(8):
                a(f'v_pk_fma_f32 {P(HACC+2*u)}, {P(HACC+2*u)}, {P(QST+4*(u>>1))}, s[{sEPS}:{sEPS+1}] op_sel:[0,1,0] op_sel_hi:[1,1,1]')
            self.phi_tail(a, [HACC + 2*u for u in range(8)], [OUT + u for u in range(8)], TMP)
            a(f's_lshl_b32 s{sT0}, s{sW}, 11\ns_add_u32 s{sT0}, s{sT0}, {PQ}\nv_lshlrev_b32 v{QP}, 3, v0\nv_add_u32 v{QP}, s{sT0}, v{QP}')
            for tt in range(4): a(f'ds_write_b64 v{QP}, {vr(OUT+2*tt,2)} offset:{tt*512}')
            a(f's_lshl_b32 s{sT0}, s{sTH}, 10\nv_add_u32 v{X1B}, s{sT0}, v{LL16}')
            a(f's_lshl_b32 s{sT2}, s{sHI}, 15\nv_add_u32 v{HFB}, s{sT2}, v{X1B}')
            a(f's_and_b32 s{sT3}, s{sJ}, 1\ns_lshl_b32 s{sT4}, s{sT3}, 5')
            a(f's_lshl_b32 s{sT0}, s{sHI}, 5\ns_add_u32 s{sT0}, s{sT0}, s{sT4}\ns_lshl_b32 s{sT0}, s{sT0}, 2\ns_add_u32 s{sT0}, s{sT0}, {CS3L}')
            a(f'v_lshrrev_b32 v{QP+1}, 5, v0\nv_lshlrev_b32 v{QP+1}, 4, v{QP+1}\nv_add_u32 v{CSB}, s{sT0}, v{QP+1}')
            a(f's_cmp_eq_u32 s{sT3}, 0\ns_cselect_b32 s{sT5}, 192, 0')
            a(f's_lshl_b32 s{sT0}, s{sHI}, 4\ns_add_u32 s{sT0}, s{sT0}, s{sT5}\ns_lshl_b32 s{sT0}, s{sT0}, 2\ns_add_u32 s{sT0}, s{sT0}, {CS3L}')
            a(f'v_add_u32 v{CSB2}, s{sT0}, v{QP+1}')
            a(f's_lshl_b32 s{sT0}, s{sHI}, 5\nv_xor_b32 v{HP[0]}, s{sT0}, v{PAT3[0]}\nv_xor_b32 v{HP[1]}, s{sT0}, v{PAT3[1]}')
            a(f'v_and_b32 v{STA}, 31, v0\nv_lshlrev_b32 v{STA}, 4, v{STA}\ns_lshl_b32 s{sT0}, s{sTH}, 9\ns_add_u32 s{sT0}, s{sT0}, {X1P}\nv_add_u32 v{STA}, s{sT0}, v{STA}')
            a(f's_mul_i32 s{sT0}, s{sJ}, 14\ns_lshr_b32 s{sT4}, s{sT4}, 4\ns_lshl_b32 s{sT2}, s{sHI}, 1\ns_add_u32 s{sB}, s{sT0}, s{sT4}\ns_add_u32 s{sB}, s{sB}, s{sT2}')
            a(f's_lshl_b32 s{sB}, s{sB}, 11\ns_add_u32 s{sB}, s{sB}, s{sD}')
            a(f's_lshr_b32 s{sT5}, s{sT5}, 4\ns_add_u32 s{sC}, s{sT0}, s{sT5}\ns_add_u32 s{sC}, s{sC}, s{sHI}\ns_lshl_b32 s{sC}, s{sC}, 11\ns_add_u32 s{sC}, s{sC}, s{sD}')
            a.wait_lg0()
            self.barC(a, 'XA')

        HB = [44, 116, 52]
        def steps_p3(first, nstage, acc, pats, base, kind, phase):
            st = []
            for n in range(4 * nstage):
                stg = first + n // 4
                sb = A3[(n + phase) % 3]
                reads = []; mf = []
                for u in range(2):
                    i = 2 * n + u; s_ = i % 8
                    reads += [f'ds_read_b64_tr_b16 {vr(sb+4*u+2*rd,2)}, v{WK[rd]} offset:{s_*2048}' for rd in range(2)]
                    if kind == 'p0':
                        reads.append(f'ds_read_b128 {vr(BST+4*i,4)}, v{X1B} offset:{i*2048}'); b = BST + 4 * i
                    elif kind == 'hf' and opt.get('hfv', 1):
                        b = BST + 4 * i
                    elif kind == 'hf':
                        b = HB[(n % 3)] + 4 * u
                        reads.append(f'ds_read_b128 {vr(b,4)}, v{HFB} offset:{i*2048}')
                    else:
                        b = BST + 4 * i
                    mf.append(f'v_mfma_f32_32x32x16_bf16 {vr(acc,16)}, {vr(sb+4*u,4)}, {vr(b,4)}, {vr(acc,16) if i else 0}')
                s = dict(reads=reads, mfmas=mf, at=base + n - 2)
                if n % 4 == 0: s['pre'] = stage_pre(stg, WK[:2], pats)
                st.append(s)
            return st
        gtok = {}
        def cs_reads(csreg, csoff, ng):
            def one(g):
                gtok['cs'] = a(f'ds_read_b128 {vr(CSG+4*g,4)}, v{csreg} offset:{csoff+g*32}')
            return [lambda g=g: one(g) for g in range(ng)]
        pend_st = []
        def g_epi(acc, ng, sbase, after_first=None, cs_=None, out=None, key=None, adv=False):
            a.wait_lg(gtok['cs'])
            o = (lambda u: acc + 8*(u >> 2) + (u & 3)) if out is None else (lambda u: out + u)
            pairs = [(acc + 2*u, CSG + 2*u, GST, o(u)) for u in range(2 * ng)]
            self.gelu(a, pairs, GT, after_first)
            if cs_: cst(cs_)
            def st(b):
                gtok[key] = a(f'buffer_store_dwordx4 {vr(o(4*b),4)}, v{CELLT}, {srd(sWS)}, s{sbase} offen offset:{b*2048} sc1')
                if adv and b == ng // 2 - 1: a(f's_add_u32 s{sbase}, s{sbase}, 8192')
            for b in range(ng // 2):
                if opt.get('dst', 1): pend_st.append(lambda b=b: st(b))
                else: st(b)
        def add_stores(step0, step1):
            def pop():
                if pend_st: pend_st.pop(0)()
            step0['tail'] = [pop, pop]; step1['tail'] = [pop, None]
        def hf_send():
            t = GT
            a(f's_lshl_b32 s{sT0}, s{sW}, 11\ns_add_u32 s{sT0}, s{sT0}, {SC}\nv_add_u32 v{t}, s{sT0}, v{LL16}')
            a(f'ds_write_b128 v{t}, {vr(ACB+8,4)}')
            gtok['hfw'] = a(f'ds_write_b128 v{t}, {vr(ACB+12,4)} offset:1024')
            a(f'v_xor_b32 v{HFB}, 4096, v{t}')

        p0 = steps_p3(20, 4, ACA, PAT3, nq, 'p0', 0)
        p0[0]['at'] = nq; p0[1]['at'] = nq; p0[0]['hook'] = q_epilogue
        p0[15]['post'] = [lambda: a(f'ds_read_b128 {vr(GST,4)}, v{STA}')] + cs_reads(CSB, 0, 4)
        steps += p0; n0 = len(steps)
        hf = steps_p3(24, 2, ACB, HP, n0, 'hf', 16)
        for k in range(2):
            hf[k]['late'] = [t for t in hf[k]['reads'] if 'b128' in t]
            hf[k]['reads'] = [t for t in hf[k]['reads'] if 'b128' not in t]
        def hf_hook():
            g_epi(ACA, 4, sB, key='g0', adv=True)
            for k in range(2):
                for t in hf[k]['late']: hf[k]['tok'] = a(t)
        mark = {}
        if opt.get('hfv', 1):
            o24 = hf[0]['pre']
            hf[0]['pre'] = lambda: (a.wait_lg(p0[15]['tok']), o24())
            def hf_hook(f=hf_hook):
                f(); mark['i'] = len(a.ins)
        def hf_dup():
            body = a.ins[mark['i']:]
            del a.ins[mark['i']:]
            def sub(t):
                m = re.match(r'(v_mfma_f32_32x32x16_bf16 v\[100:115\], v\[\d+:\d+\], )v\[(\d+):(\d+)\](.*)', t)
                return f'{m.group(1)}v[{int(m.group(2))+64}:{int(m.group(3))+64}]{m.group(4)}' if m else t
            a.ins += [Ins(f's_cmp_lg_u32 s{sHI}, 0'), Ins('s_cbranch_scc1 L_hf1')] + body + [Ins('s_branch L_hf2'), Ins('L_hf1:')]
            a.ins += [Ins(sub(i.text)) for i in body] + [Ins('L_hf2:')]
        hf[0]['hook'] = hf_hook
        add_stores(hf[0], hf[1])
        steps += hf; n1 = len(steps)
        p1 = steps_p3(26, 4, ACA, PAT3, n1, 'p', 24)
        p1[0]['hook'] = (lambda: (hf_dup(), hf_send())) if opt.get('hfv', 1) else hf_send
        old = p1[4]['pre']
        p1[4]['pre'] = lambda: (a.wait_lg(gtok['hfw']), old())
        def hf_recv():
            a(f'ds_read_b128 {vr(ACB+8,4)}, v{HFB}')
            gtok['hfr'] = a(f'ds_read_b128 {vr(ACB+12,4)}, v{HFB} offset:1024')
        def hf_add(k):
            a.wait_lg(gtok['hfr'])
            for u in range(4*k, 4*k+4): a(f'v_add_f32_e64 v{ACB+u}, v{ACB+u}, v{ACB+8+u}')
        p1[8]['post'] = [hf_recv]
        p1[11]['post'] = [lambda: hf_add(0)]
        p1[12]['post'] = [lambda: hf_add(1)]
        p1[15]['post'] = cs_reads(CSB, 256, 4)
        steps += p1; n2 = len(steps)
        p2_ = steps_p3(30, 4, ACA, PAT3, n2, 'p', 40)
        def p1_epilogue():
            cst(8)
            g_epi(ACA, 4, sB, lambda: [f() for f in cs_reads(CSB2, 0, 2)], 9, out=120, key='g1', adv=True)
            cst(10)
            g_epi(ACB, 2, sC, None, 11, key='g1')
            cst(12)
        p2_[0]['hook'] = p1_epilogue
        add_stores(p2_[0], p2_[1])
        p2_[2 if opt.get('sc10', 1) else 15]['post'] = cs_reads(CSB, 512, 4)
        p2_[1]['hook'] = lambda: cst(13)
        p2_[2]['hook'] = lambda: cst(14)
        p2_[3]['hook'] = lambda: cst(15)
        steps += p2_; n3 = len(steps)

        P4ACC = 84; FR = 128
        p4 = []
        fl = {}
        def fload(n):
            kind, sg = STAGES[min(34 + n // 4, 51)]; i = n % 4
            if n == 72:
                d = 8192 if kind == 'wo' else 32768
                a(f's_lshl_b32 s{sT0}, s{sHI}, 1\ns_sub_u32 s{sT0}, 1, s{sT0}\ns_mul_i32 s{sT0}, s{sT0}, {d}\ns_add_u32 s{sI0}, s{sI0}, s{sT0}\ns_sub_u32 s{sI0}, s{sI0}, 4096')
            elif i % 2 == 0:
                if i: a(f's_add_u32 s{sI0}, s{sI0}, 4096')
                elif kind == 'wo': a(f's_add_u32 s{sI0}, s{sT5}, s{sKC+sg}')
                elif kind == 'gh': a(f's_add_u32 s{sI0}, s{sRG}, {sg}\ns_and_b32 s{sI0}, s{sI0}, 1\ns_mul_i32 s{sI0}, s{sI0}, {896*128}\ns_add_u32 s{sI0}, s{sI0}, s{sT4}')
                else:
                    a(f's_add_u32 s{sI0}, s{sD}, s{sKG+sg}')
                    if kind != 'g0': a(f's_add_u32 s{sI0}, s{sI0}, {g_rows(kind, 0)[0]*128}')
            if opt.get('x_skip', 0) and kind != 'wo' and n % 4 >= 4 - opt['x_skip'] and n >= 4:
                fl[n] = fl[n - 1]; return
            fl[n] = a(f'buffer_load_dwordx4 {vr(FR+4*(n%32),4)}, v{CELLT}, {srd(sWS)}, s{sI0} offen offset:{(i&1)*2048} sc1')
        firsts = {}
        for first in range(34, NST):
            kind, sg = STAGES[first]
            if sg: continue
            cnt = 2 if kind == 'gh' else 4; nat = kind == 'wo'
            k0 = 4 * (first - 34); firsts[k0] = {'g0': FG0, 'g1': FG1, 'gh': FG1, 'wo': FO, 'g2': FG2}[kind]
            p4 += steps_ks(first, cnt, PATN if nat else PATP, nat, P4ACC, lambda n, k0=k0: FR + 4 * ((n + k0) % 32), A3, n3 + k0,
                           setphase=56 + k0, init=(first == 34), c_init=RES if first == 34 else None)
        NG = opt.get('ng', 10); NG0 = opt.get('ng0', 8)
        def p4_bases():
            a(f's_lshl_b32 s{sT0}, s{sHI}, 13\ns_add_u32 s{sT5}, s{sT0}, s{sA}\ns_add_u32 s{sT5}, s{sT5}, {O_OFF}')
            a(f's_mul_i32 s{sT4}, s{sHI}, {448*128}\ns_add_u32 s{sT4}, s{sT4}, s{sD}\ns_add_u32 s{sT4}, s{sT4}, {192*128}\ns_lshl_b32 s{sT0}, s{sHI}, 15\ns_add_u32 s{sD}, s{sD}, s{sT0}')
            for k in range(4): a(f's_add_u32 s{sT0}, s{sRG}, {k}\ns_and_b32 s{sT0}, s{sT0}, 3\ns_mul_i32 s{sKG+k}, s{sT0}, {448*128}\ns_lshl_b32 s{sKC+k}, s{sT0}, 14')
        EG = opt.get('eg', 0)
        if EG:
            k1 = opt.get('eg_step', 3)
            p2_[k1 - 1]['post'] = [p4_bases]
            for n in range(EG):
                st_ = p2_[min(k1 + n // opt.get('eg_rate', 2), 15)]
                assert n < 2 * min(k1 + n // opt.get('eg_rate', 2), 15)
                st_['post'] = st_.get('post', []) + [lambda n=n: fload(n)]
            NG0 = max(NG0, EG)
        def p3_last_epilogue():
            if not EG: p4_bases()
            a.inject([lambda n=n: fload(n) for n in range(EG, NG0)], opt.get('fl_every', 12))
            g_epi(ACA, 4, sB, out=116, key='g2')
            a.flush_inject()
            cst(6)
        p4[0]['hook'] = p3_last_epilogue
        add_stores(p4[0], p4[1])
        nxt = NG0
        self.need = {firsts[k]: 34 for k in firsts if 0 < k < NG0}
        for n, s in enumerate(p4):
            s['vm'] = (lambda n=n: fl[n + 4 if (n >= 68 and opt.get('us4', 1)) else n])
            post = []
            while nxt < (76 if opt.get('us4', 1) else 72) and nxt < n + 1 + NG + (4 if nxt >= 72 else 0) and len(post) < 2:
                if nxt in firsts: self.need.setdefault(firsts[nxt], 34 + (n + 2) // 4)
                post.append(lambda m=nxt: fload(m)); nxt += 1
            s['post'] = post
        def add_wait(step, key):
            o = step['pre']
            step['pre'] = lambda: (a.wait_vm(gtok[key]), o())
        for b_, nx, pv in ((30, p2_[0], p1[15]), (34, p4[0], p2_[15])):
            if str(b_) in str(opt.get('erel', '24.30.34')).split('.'):
                nx['pre'] = (lambda o=nx['pre'], pv=pv: (a.wait_lg(pv['tok']), o()))
        add_wait(p1[4 * (opt.get('fg0_bar', 27) - 26)], 'g0'); add_wait(p2_[12] if opt.get('fg1_bar', 34) == 33 else p4[4 * (opt.get('fg1_bar', 34) - 34)], 'g1'); add_wait(p4[4 * (opt.get('fg2_bar', 37) - 34)], 'g2')
        x4 = {}
        if opt.get('us4', 1):
            kind51 = STAGES[51][0]
            unsplit_last(p4, P4ACC, 40, 'RB2', 51, kind51 == 'wo', A3, 56, lambda i: FR + 4 * ((68 + i) % 32), lambda i: FR + 4 * ((72 + i) % 32), x4)
        self.x4 = x4
        steps += p4

        if opt.get('cprio', 2): a(f's_setprio {opt.get("cprio", 2)}')
        self.run_steps(a, steps)
        RCV = 128; OUT = 144; VO = 160
        def between():
            a(f's_lshl_b32 s{sT0}, s{sTH}, 5\nv_and_b32 v{VO}, 31, v0\nv_add_u32 v{VO}, s{sT0}, v{VO}\nv_lshlrev_b32 v{VO}, 10, v{VO}')
            a(f'v_lshrrev_b32 v{VO+1}, 5, v0\nv_lshl_add_u32 v{VO}, v{VO+1}, 4, v{VO}')
            a(f's_lshl_b32 s{sT0}, s{sJ}, 1\ns_add_u32 s{sT0}, s{sT0}, s{sHI}\ns_lshl_b32 s{sT0}, s{sT0}, 6\ns_add_u32 s{sT0}, s{sT0}, s{sA}')
        if opt.get('us4', 1):
            RCV = 40; between(); tk = self.x4['tk']
        else: tk = exchange(P4ACC, RCV, 'RB2', between)
        for b in range(2):
            a.wait_lg(tk[2*b+1])
            for u in range(4*b, 4*b+4): a(f'v_pk_add_f32 {P(P4ACC+2*u)}, {P(P4ACC+2*u)}, {P(RCV+2*u)}')
            for u in range(4*b, 4*b+4): a(f'v_cvt_pk_bf16_f32 v{OUT+u}, v{P4ACC+2*u}, v{P4ACC+2*u+1}')
            a(f'v_permlane32_swap_b32 v{OUT+4*b}, v{OUT+4*b+2}\nv_permlane32_swap_b32 v{OUT+4*b+1}, v{OUT+4*b+3}')
            a(f'buffer_store_dwordx4 {vr(OUT+4*b,4)}, v{VO}, {srd(sOUT)}, s{sT0} offen offset:{b*32} {opt.get("outflag", "")}')
        if opt.get('padto'):
            a(f'L_pad:\ns_memrealtime s[{sTSP}:{sTSP+1}]\ns_waitcnt lgkmcnt(0)\ns_sub_u32 s{sT0}, s{sTSP}, s26\ns_cmp_lt_u32 s{sT0}, {opt["padto"]}\ns_cbranch_scc1 L_pad')
        if opt.get('prof'):
            a(f's_memrealtime s[{sTSP}:{sTSP+1}]\ns_memtime s[98:99]\ns_waitcnt lgkmcnt(0)\ns_sub_u32 s98, s98, s90')
            a(f's_lshl_b32 s{sT0}, s2, 3\ns_add_u32 s{sT0}, s{sT0}, s{sW}\ns_lshl_b32 s{sT0}, s{sT0}, 8\ns_add_u32 s{sT0}, s{sT0}, {TS_OFF}')
            a(f'v_mov_b32 v2, s26\nv_mov_b32 v3, s{sTSP}\nv_mov_b32 v4, s98\nv_mov_b32 v5, 0\nv_mov_b32 v6, 0\ns_mov_b64 exec, 1')
            a(f'buffer_store_dwordx4 v[2:5], v6, {srd(sWS)}, s{sT0} offen')
            for k in range(8 if opt.get('prof') != 3 else 0): a(f'v_mov_b32 v7, s{4+2*k}\nbuffer_store_dword v7, v6, {srd(sWS)}, s{sT0} offen offset:{16+4*k}')
        a('s_endpgm')

    def helper(self, a):
        opt = self.opt
        prof = opt.get('prof') if opt.get('prof') != 3 else None
        E = lambda name, d: opt.get(name, d)
        BARS = [f'B{i}' for i in range(16)] + ['RB1'] + [f'B{i}' for i in range(16, 20)] + ['QE', 'XA'] + [f'B{i}' for i in range(20, NST)]
        ODL = f'B{self.need[FO]}'
        IDX = {n: i for i, n in enumerate(BARS)}
        T = [40 + i for i in range(16)]
        V1K, VQ, VW3, VHF = 4, 8, 12, 16
        row, pos, sw = T[0], T[1], T[2]
        def mk(dst, RS, sbase):
            a(f'v_mul_u32_u24 v{T[5]}, {RS}, v{row}\nv_add_u32 v{T[5]}, s{sbase}, v{T[5]}')
            for i in range(4):
                a(f'v_add_u32 v{dst+i}, v{T[5]}, v{T[3+(i&1)]}')
                if i: a(f'v_add_u32 v{dst+i}, {i*(8*RS-1024)}, v{dst+i}')
        stok = {}
        two = E('two', 0)
        grp = [[0, 1] if two else [0, 1, 2, 3]]
        def issue(st, pace=True):
            kind, sg = STAGES[st]
            pc = E('pace', 44) // (2 if two else 1)
            if pace and len(a.vm) > pc: a.wait_vm(a.vm[-pc - 1])
            s, v = src_of(st)
            for g in grp[0]:
                a(f's_mov_b32 m0, {SLOT[st] + g*4096}')
                soff(st, g, g == grp[0][0])
                for i in range(4):
                    stok[st] = a(f'buffer_load_dwordx4 v{v+i}, {srd(s)}, s{sT2} offen offset:{i*1024} lds')
        def src_of(st):
            kind, sg = STAGES[st]
            return {'w1': (sW1, V1K), 'w2': (sW2, V1K), 'wo': (sWO, V1K), 'wq': (sQKV, VQ), 'kv': (sQKV, VQ), 'p0': (sW3, VW3),
                    'p1': (sW3, VW3), 'p2': (sW3, VW3), 'hf': (sW3, VHF + 4 * sg)}.get(kind, (sW4, V1K))
        def soff(st, g, first=None):
            kind, sg = STAGES[st]
            rot = E('rot', 1)
            RS = 3072 if kind in ('wq', 'kv') else (3584 if kind in ('p0', 'p1', 'p2', 'hf') else 1024)
            if first is None: first = g == 0
            if kind == 'gh':
                if first: a(f's_add_u32 s{sI0}, s{sRG}, {sg}\ns_and_b32 s{sI0}, s{sI0}, 1\ns_mul_i32 s{sI0}, s{sI0}, {896*1024}')
                a(f's_add_u32 s{sT2}, s{sI0}, {(g_rows(kind, 0)[g >> 1] + 32*(g & 1))*1024}')
            elif kind[0] == 'g': a(f's_add_u32 s{sT2}, s{sKG+sg}, {(g_rows(kind, 0)[g >> 1] + 32*(g & 1))*1024}')
            elif kind == 'wo':
                if first: a(f's_add_u32 s{sI0}, s{sRG}, {sg}\ns_and_b32 s{sI0}, s{sI0}, 3\ns_lshl_b32 s{sI0}, s{sI0}, 17')
                a(f's_add_u32 s{sT2}, s{sI0}, {g*32*RS}')
            elif kind == 'w1' or (rot and kind == 'w2'): a(f's_add_u32 s{sT2}, s{sK1+sg}, {g*32*RS}')
            elif kind == 'w2': a(f's_mov_b32 s{sT2}, {sg*131072 + g*32*RS}')
            elif kind == 'wq': a(f's_add_u32 s{sT2}, s{sK3+sg}, {g*32*RS}')
            elif kind == 'kv': a(f's_add_u32 s{sT2}, s{sK3+(sg>>1)}, {((sg&1)*64 + (g&1)*32)*RS + 1024*(1 + (g>>1))}')
            elif kind == 'hf': a(f's_mov_b32 s{sT2}, {g*32*RS}')
            else: a(f's_add_u32 s{sT2}, s{sK5+sg}, {g*32*RS + dict(p0=0, p1=128, p2=256)[kind]}')
        VAR = 61
        def arrive(idx):
            if prof == 2:
                a(f's_memtime s[0:1]\ns_waitcnt lgkmcnt(0)')
                a.lg = []
                if isinstance(idx, int): a(f'v_writelane_b32 v{VAR}, s0, {idx + 1}')
                else: a(f's_add_u32 s1, s{idx}, 1\ns_mov_b32 m0, s1\nv_writelane_b32 v{VAR}, s0, m0')
        def dump_arrive(slot):
            if prof:
                a(f's_lshl_b32 s{sT0}, s2, 2\ns_add_u32 s{sT0}, s{sT0}, s{sW}\ns_lshl_b32 s{sT0}, s{sT0}, 8\ns_add_u32 s{sT0}, s{sT0}, {TS_OFF + 0x80000}')
                a(f'v_lshlrev_b32 v2, 2, v0\nbuffer_store_dword v{VAR}, v2, {srd(sWS)}, s{sT0} offen')
        if prof: a(f'v_mov_b32 v{VAR}, 0')
        a(f's_cmp_eq_u32 s{sW}, 1\ns_cbranch_scc1 L_back\ns_cmp_eq_u32 s{sW}, 2\ns_cbranch_scc1 L_back')
        if not two: a(f's_cmp_eq_u32 s{sW}, 0\ns_cbranch_scc1 L_sync')
        a(f'v_lshrrev_b32 v{row}, 3, v0\nv_and_b32 v{pos}, 7, v0\nv_lshrrev_b32 v{sw}, 4, v0\nv_and_b32 v{sw}, 1, v{sw}\nv_lshlrev_b32 v{sw}, 2, v{sw}')
        a(f'v_xor_b32 v{pos}, v{pos}, v{sw}')
        a(f'v_lshlrev_b32 v{T[3]}, 4, v{pos}\nv_xor_b32 v{T[4]}, 32, v{T[3]}')
        a(f's_lshl_b32 s{sT0}, s{sJ}, 7')
        mk(V1K, 1024, sT0)
        a(f's_mov_b32 s{sW1+2}, {512*1024}\ns_mov_b32 s{sW1+3}, 0x20000')
        for sg in range(4):
            a(f's_add_u32 s{sT3}, s{sROT}, {sg}\ns_and_b32 s{sT3}, s{sT3}, 3\ns_lshl_b32 s{sK1+sg}, s{sT3}, 17\ns_mul_i32 s{sK3+sg}, s{sT3}, {128*3072}')
        a('s_waitcnt lgkmcnt(0)')
        a(f's_mov_b32 s{sW1}, s12\ns_and_b32 s{sW1+1}, s13, 0xffff')
        if two: a(f's_cmp_eq_u32 s{sW}, 0\ns_cbranch_scc1 L_sync0')
        def first_issue():
            issue(0); issue(1)
            if E('st', 0): issue(2, False)
        first_issue()
        a('s_branch L_loader')
        vmL = list(a.vm); stokL = dict(stok); a.vm = []
        if two:
            a('L_sync0:')
            grp[0] = [2, 3]; first_issue()
            a('s_branch L_sync')
        vmS = list(a.vm); stokS = dict(stok); a.vm = []
        VX1 = [24, 25]; x1tok = {}
        def loader_setup():
            self.srds(a, skipx=True, skip1=True)
            mk(VQ, 3072, sT0)
            a(f's_mul_i32 s{sT0}, s{sJ}, 448\ns_and_b32 s{sT4}, s{sJ}, 1\ns_lshl_b32 s{sT2}, s{sT4}, 6\ns_add_u32 s{sT2}, s{sT2}, s{sT0}')
            mk(VW3, 3584, sT2)
            a(f's_cmp_eq_u32 s{sT4}, 0\ns_cselect_b32 s{sT2}, 384, 0\ns_add_u32 s{sT2}, s{sT2}, s{sT0}')
            a(f'v_and_b32 v{T[3]}, 63, v{T[3]}\nv_and_b32 v{T[4]}, 63, v{T[4]}\nv_lshrrev_b32 v{T[6]}, 2, v{pos}')
            mk(VHF, 3584, sT2)
            for sg in range(4):
                if E('rot', 1): a(f's_add_u32 s{sT3}, s{sROT}, {sg}\ns_and_b32 s{sT3}, s{sT3}, 3')
                else: a(f's_mov_b32 s{sT3}, {sg}')
                a(f's_mul_i32 s{sK5+sg}, s{sT3}, {128*3584}\ns_lshl_b32 s{sKX+sg}, s{sT3}, 14')
            for k in range(4): a(f's_add_u32 s{sT3}, s{sRG}, {k}\ns_and_b32 s{sT3}, s{sT3}, 3\ns_mul_i32 s{sKG+k}, s{sT3}, {448*1024}')
            for sg in (1, 0):
                a(f's_sub_u32 s{sT3}, s{sK5+sg+2}, s{sK5+sg}\nv_mul_lo_u32 v{T[5]}, v{T[6]}, s{sT3}\nv_add_u32 v{T[5]}, s{sK5+sg}, v{T[5]}')
                for i in range(4): a(f'v_add_u32 v{VHF+4*sg+i}, v{VHF+i}, v{T[5]}')
            a(f'v_lshrrev_b32 v{T[0]}, 5, v0\nv_and_b32 v{T[1]}, 31, v0\nv_lshlrev_b32 v{T[0]}, 10, v{T[0]}\nv_lshl_add_u32 v{T[0]}, v{T[1]}, 4, v{T[0]}')
            a(f's_lshl_b32 s{sT0}, s{sR}, 16\ns_add_u32 s{sT0}, s{sT0}, {X1_OFF}')
            a(f'v_add_u32 v{VX1[0]}, s{sT0}, v{T[0]}\nv_subrev_u32 v{VX1[1]}, 512, v{VX1[0]}')
        def x1_chunk(sg):
            for g in grp[0]:
                a(f's_mov_b32 m0, {sg*16384 + g*4096}\ns_add_u32 s{sT2}, s{sKX+sg}, {g*4096}')
                for u in range(4):
                    x1tok[sg] = a(f'buffer_load_dwordx4 v{VX1[u&1]}, {srd(sWS)}, s{sT2} offen offset:{u*1024} sc1 lds')
        def load_before(n):
            b = int(n[1:]) if n[0] == 'B' else None
            if b is not None:
                a.wait_vm(stok[b])
                if b in (20, 21, 22, 23): a.wait_vm(x1tok[b - 20])
        def load_after(n):
            b = int(n[1:]) if n[0] == 'B' else None
            if n == 'XA':
                for c in range(4): x1_chunk(c)
            if E('st', 0):
                if b == 0: issue(3, False)
                if b == 1: issue(4)
            else:
                if b == 0: issue(2)
                if b == (0 if E('st3', 1) else 1): issue(3)
                if b == 1: issue(4)
            if b in (2, 3): stats_after(b)
            for st in ISSUE.get(b if b is not None else n, []): issue(st)
            if b in (0, 1): stats_after(b)
        a('L_back:')
        sSW = sHI
        a(f'v_lshrrev_b32 v2, 4, v0\nv_and_b32 v3, 15, v0\nv_xor_b32 v3, v3, v2\nv_lshlrev_b32 v3, 4, v3')
        a(f's_lshl_b32 s{sT0}, s{sR}, 1\ns_add_u32 s{sT0}, s{sT0}, s{sSW}\ns_lshl_b32 s{sT0}, s{sT0}, 15')
        a(f'v_lshl_add_u32 v2, v2, 10, s{sT0}\nv_add_u32 v2, v2, v3')
        for u in range(1, 4): a(f'v_xor_b32 v{2+u}, {u<<6}, v2\nv_add_u32 v{2+u}, {u*3072}, v{2+u}')
        a(f's_lshl_b32 s{sI0}, s{sSW}, 13\ns_mov_b32 s{sB}, s{sROT}')
        a('s_waitcnt lgkmcnt(0)')
        a(f's_mov_b32 s{sX}, s4\ns_and_b32 s{sX+1}, s5, 0xffff')
        xtok = {}
        def x_chunk(sg):
            for half in range(2):
                a(f's_add_u32 m0, s{sI0}, {sg*16384 + half*4096}\ns_lshl_b32 s{sT2}, s{sB}, 8')
                if half: a(f's_add_u32 s{sT2}, s{sT2}, 16384')
                for u in range(4):
                    xtok[sg] = a(f'buffer_load_dwordx4 v{2+u}, {srd(sX)}, s{sT2} offen offset:{u*1024} lds')
            if sg < 3: a(f's_add_u32 s{sB}, s{sB}, 1\ns_and_b32 s{sB}, s{sB}, 3')
        x_chunk(0)
        if E('xdel', 1): self.srds(a, skipx=True)
        x_chunk(1)
        if not E('xdel', 1): self.srds(a, skipx=True)
        if E('st', 0): x_chunk(2)

        F = 64; SSUM, SGR, HONE = 128, 136, 144
        q, i16 = T[8], T[9]
        SW1, SW2 = 148, 149
        def stats_setup():
            a(f'v_lshrrev_b32 v{q}, 4, v0\nv_and_b32 v{i16}, 15, v0')
            for m in range(4):
                a(f'v_or_b32 v{T[0]}, {4*m}, v{q}\nv_xor_b32 v{T[0]}, v{T[0]}, v{i16}\nv_lshlrev_b32 v{T[0]}, 4, v{T[0]}')
                a(f'v_lshl_add_u32 v{T[0]}, v{i16}, 8, v{T[0]}\nv_add_u32 v{T[10+m]}, s{sI0}, v{T[0]}')
            for i in range(4): a(f'v_mov_b32 v{HONE+i}, s{sONE}')
            a(f'v_and_b32 v{T[0]}, 3, v0\nv_lshrrev_b32 v{T[2]}, 2, v{i16}')
            a(f'v_cmp_eq_u32 s[14:15], 1, v{T[0]}\nv_cmp_eq_u32 s[16:17], 2, v{T[0]}\nv_cmp_eq_u32 s[12:13], 3, v{T[0]}\nv_cmp_eq_u32 s[10:11], v{T[2]}, v{q}')
            a(f's_lshl_b32 s{sT0}, s{sSW}, 5\nv_add_u32 v{SW1}, s{sT0}, v{i16}\nv_lshlrev_b32 v{SW2}, 4, v{SW1}\nv_lshlrev_b32 v{SW1}, 2, v{SW1}')
            a(f'v_add_u32 v{SW2}, {S1}, v{SW2}\nv_add_u32 v{SW1}, {NMU}, v{SW1}')
        stk = {}
        fr = lambda sg, t, m: F + 32 * (sg & 1) + 16 * t + 4 * m
        def stats_reads(sg):
            for m in range(4):
                for t in range(2): stk[(sg, t, m)] = a(f'ds_read_b128 {vr(fr(sg, t, m), 4)}, v{T[10+m]} offset:{sg*16384 + t*4096}')
        def stats_mfma(sg):
            if E('sprio', 3): a(f's_setprio {E("sprio", 3)}')
            for m in range(4):
                a.wait_lg(stk[(sg, 1, m)])
                z = sg == 0 and m == 0
                for t in range(2):
                    f = fr(sg, t, m)
                    a(f'v_mfma_f32_16x16x32_bf16 {vr(SGR+4*t,4)}, {vr(f,4)}, {vr(f,4)}, {0 if z else vr(SGR+4*t,4)}')
                    a(f'v_mfma_f32_16x16x32_bf16 {vr(SSUM+4*t,4)}, {vr(HONE,4)}, {vr(f,4)}, {0 if z else vr(SSUM+4*t,4)}')
            a('s_setprio 0')
        def stats_final():
            a('s_setprio 3')
            a(f's_mov_b32 s{sT0}, {f2u(1/512):#x}\ns_mov_b32 s{sT2}, {f2u(1e-5):#x}')
            def regs(t): return 36 + 2*t, (56 if t else 37), 64 + 8*t, SGR + 4*t, SSUM + 4*t
            def chain(t):
                s1, s2, R, G_, S_ = regs(t)
                return [f'v_cndmask_b32 v{s2}, v{G_}, v{G_+1}, s[14:15]', f'v_mul_f32 v{R}, {f2u(-1/512):#x}, v{S_}', f'v_cndmask_b32 v{s2}, v{s2}, v{G_+2}, s[16:17]',
                        f'v_mul_f32 v{s1}, v{R}, v{R}', f'v_cndmask_b32 v{s2}, v{s2}, v{G_+3}, s[12:13]',
                        f'v_fma_f32 v{s2}, v{s2}, s{sT0}, -v{s1}', f'v_max_f32 v{s2}, 0, v{s2}', f'v_add_f32 v{R+5}, s{sT2}, v{s2}',
                        f'v_fma_f32 v{s2}, v{R+5}, s{sT2}, v{s2}', f'v_rsq_f32 v{s1}, v{s2}', f'v_sqrt_f32 v{R+3}, v{s2}',
                        f'v_mul_f32 v{s2}, v{s1}, v{s1}', f'v_mul_f32 v{R+1}, {f2u(GC0):#x}, v{s1}', f'v_mul_f32 v{s2}, {f2u(0.044715):#x}, v{s2}', f'v_mul_f32 v{R+2}, v{R+1}, v{s2}']
            for x, y in zip(chain(0), chain(1)): a(x + '\n' + y)
            a('s_mov_b64 exec, s[10:11]')
            for t in range(2): a(f'ds_write_b128 v{SW2}, {vr(64+8*t,4)} offset:{t*256}')
            a('s_mov_b64 exec, -1\ns_setprio 0')
            a.wait_lg0()
        def stats_rest():
            for t in range(2):
                R = 64 + 8*t
                a(f'v_rsq_f32 v{R+5}, v{R+5}\nv_mov_b32 v{R+4}, v{R}\nv_mov_b32 v{R+7}, 0\nv_mul_f32 v{R+6}, {f2u(LOG2E):#x}, v{R+5}')
            a('s_mov_b64 exec, s[10:11]')
            for t in range(2):
                R = 64 + 8*t
                a(f'ds_write_b128 v{SW2}, {vr(R+4,4)} offset:{1024 + t*256}')
                a(f'ds_write_b32 v{SW1}, v{R} offset:{t*64}\nds_write_b32 v{SW1}, v{R+5} offset:{256 + t*64}\nds_write_b32 v{SW1}, v{R+6} offset:{512 + t*64}')
            a('s_mov_b64 exec, -1')
            a.wait_lg0()
        def stats_after(b): pass

        VFL, VFP, VF3, VONE, VCT, CELLV, VZA, VCK, VFO = 26, 27, 28, 29, 30, 32, 34, 35, 33
        OB = T[14]
        pf = opt.get('pf', 1); t3 = opt.get('t3', 0)
        nlab = [0]
        def lab(p):
            nlab[0] += 1
            return f'L_{p}{nlab[0]}'
        def common_regs():
            a(f'v_mov_b32 v{OB}, {OOB}\nv_lshlrev_b32 v{T[15]}, 7, v0\nv_mov_b32 v{VONE}, 1')
            a(f'v_lshrrev_b32 v{T[0]}, 5, v0\nv_and_b32 v{T[1]}, 31, v0\nv_lshlrev_b32 v{CELLV}, 10, v{T[0]}\nv_lshl_add_u32 v{CELLV}, v{T[1]}, 4, v{CELLV}')
            a(f's_lshl_b32 s{sC}, s{sR}, 16\ns_lshl_b32 s{sD}, s{sJ}, 18\ns_add_u32 s{sD}, s{sD}, {KV_OFF}\ns_lshl_b32 s{sA}, s{sJ}, 12\ns_add_u32 s{sA}, s{sA}, {CF_OFF}')
        def one_lane(text):
            a('s_mov_b64 exec, 1'); a(text); a('s_mov_b64 exec, -1')
        def count(off, idx):
            a(f's_lshr_b32 s{sT0}, s{idx}, 3\ns_lshl_b32 s{sT0}, s{sT0}, 7\ns_and_b32 s{sT2}, s{idx}, 7\ns_lshl_b32 s{sT2}, s{sT2}, 2\ns_add_u32 s{sT0}, s{sT0}, s{sT2}')
            a(f's_add_u32 s{sT0}, s{sT0}, s{sA}\ns_add_u32 s{sT0}, s{sT0}, {off}\nv_mov_b32 v{T[7]}, 0')
            one_lane(f'buffer_store_dword v{VONE}, v{T[7]}, {srd(sWS)}, s{sT0} offen sc1')

        sBC = sCNT; sSP = sBG
        common_regs()
        def touch(s, lines, dst, pitch=None, off=0):
            n = lines // 2
            a(f's_lshl_b32 s{sT0}, s2, 1\ns_add_u32 s{sT0}, s{sT0}, s{sSW}\ns_mul_i32 s{sT0}, s{sT0}, {pitch or n*128}')
            if off: a(f's_add_u32 s{sT0}, s{sT0}, {off}')
            a(f'v_cmp_gt_u32 vcc, {n}, v0\nv_cndmask_b32 v{T[7]}, v{OB}, v{T[15]}, vcc')
            return a(f'buffer_load_dword v{dst}, v{T[7]}, {srd(s)}, s{sT0} offen')
        CSR = 160; CA = 192
        def cs_loads(y=None):
            a(f's_lshr_b32 s{sT0}, s{sR}, 1\ns_mul_i32 s{sT0}, s{sT0}, {32*3584}\ns_mul_i32 s{sT2}, s{sJ}, 448\ns_add_u32 s{sT0}, s{sT0}, s{sT2}')
            a(f's_and_b32 s{sT2}, s{sR}, 1\ns_lshl_b32 s{sT2}, s{sT2}, 1\ns_add_u32 s{sT2}, s{sT2}, s{sSW}\ns_mul_i32 s{sT2}, s{sT2}, 112\ns_add_u32 s{sT0}, s{sT0}, s{sT2}')
            a(f'v_lshrrev_b32 v{T[6]}, 5, v0\nv_mul_u32_u24 v{T[6]}, {16*3584}, v{T[6]}\nv_and_b32 v{T[5]}, 31, v0\nv_lshl_add_u32 v{T[6]}, v{T[5]}, 2, v{T[6]}')
            a(f'v_cmp_gt_u32 vcc, 28, v{T[5]}\nv_cndmask_b32 v{T[6]}, v{OB}, v{T[6]}, vcc')
            for i in range(16):
                a(f'buffer_load_dword v{CSR+i}, v{T[6]}, {srd(sW3)}, s{sT0} offen')
                if i < 15: a(f's_add_u32 s{sT0}, s{sT0}, 3584')
                if y and i in (5, 10): y()
        if pf: touch(sQKV, 32, 6, 3072, 1024)
        if E('cs0', 0): cs_loads()
        stats_setup()
        barsD = []
        pre0 = E('spre', 1)
        for b in range(5):
            if b < 4:
                a.wait_vm(xtok[b]); stats_reads(b)
                if b < pre0 or (b == 3 and E('s3pre', 0)): stats_mfma(b)
            arrive(b); barsD.append(f'B{b}'); a('s_barrier')
            if b == 0:
                if not E('st', 0): x_chunk(2)
                x_chunk(3)
            if pre0 <= b < (3 if E('s3pre', 0) else 4): stats_mfma(b)
            if b == 3: stats_final()
            if b == 4: stats_rest()
            if b == E('e_pf', 2):
                if pf: touch(sW2, 16, 7); touch(sQKV, 16, 7, 3072)
                if pf and E('w3pf', 0) == 2: touch(sW3, 56, 7)
        a(f's_mov_b32 s{sBC}, 5')
        LONG = sum(1 << (IDX[n] + 1) for n in E('long', 'B4.B12.QE.XA.B24.B30.B34').split('.'))
        a(f's_mov_b32 s4, {LONG & 0xffffffff}\ns_mov_b32 s5, {LONG >> 32}')
        VDS = 39; nds = [0]
        if prof: a(f'v_mov_b32 v{VDS}, 0')
        def dst(name):
            if prof:
                a(f's_memrealtime s[0:1]\ns_waitcnt lgkmcnt(0)\nv_writelane_b32 v{VDS}, s0, {nds[0]}')
                self.dnames.append(name); nds[0] += 1
        def yield_(dl):
            L = lab('y')
            a(f's_cmp_ge_u32 s{sBC}, {IDX[dl]}\ns_cbranch_scc1 {L}')
            arrive(str(sBC))
            a(f's_barrier\ns_add_u32 s{sBC}, s{sBC}, 1\n{L}:')
        def earliest(name):
            L = lab('e')
            a(f'{L}:\ns_cmp_gt_u32 s{sBC}, {IDX[name]}\ns_cbranch_scc1 {L}d')
            arrive(str(sBC))
            a(f's_barrier\ns_add_u32 s{sBC}, s{sBC}, 1\ns_branch {L}\n{L}d:')
        def nbwait(dl, lg=False):
            L = lab('w')
            a(f'{L}:\ns_bitcmp1_b64 s[4:5], s{sBC}\ns_cselect_b32 s{sSP}, {E("nspin", 6)}, 1')
            a(f'{L}s:\ns_getreg_b32 s{sT0}, hwreg(HW_REG_IB_STS)\ns_and_b32 s{sT0}, s{sT0}, {0xf00 if lg else 0xc0000f}\ns_cbranch_scc0 {L}d')
            a(f's_sub_u32 s{sSP}, s{sSP}, 1\ns_cmp_lg_u32 s{sSP}, 0\ns_cbranch_scc1 {L}s')
            a(f's_cmp_ge_u32 s{sBC}, {IDX[dl]}\ns_cbranch_scc1 {L}d')
            if not lg: arrive(str(sBC))
            a(f's_barrier\ns_add_u32 s{sBC}, s{sBC}, 1\ns_branch {L}')
            a(f'{L}d:\ns_waitcnt {"lgkmcnt" if lg else "vmcnt"}(0)')
        def spin(off, n, dl):
            L = lab('c')
            a(f'v_and_b32 v{VCT}, {n-1}, v0\nv_lshrrev_b32 v{T[7]}, 3, v{VCT}\nv_and_b32 v{VCT}, 7, v{VCT}\nv_lshlrev_b32 v{VCT}, 2, v{VCT}\nv_lshl_add_u32 v{VCT}, v{T[7]}, 7, v{VCT}')
            a(f's_mov_b32 s6, {opt.get("spin", 200000)}\ns_add_u32 s9, s{sA}, {off}')
            a(f'{L}:\nbuffer_load_dword v{VCK}, v{VCT}, {srd(sWS)}, s9 offen sc1')
            nbwait(dl)
            a(f'v_cmp_ne_u32 vcc, 1, v{VCK}\ns_sub_u32 s6, s6, 1\ns_cmp_eq_u32 s6, 0\ns_cbranch_scc1 {L}d\ns_cbranch_vccz {L}d')
            for _ in range(E('boff', 2)): yield_(dl)
            a(f's_branch {L}\n{L}d:')
        def sliced(fn, dl, n=None):
            lines = a.record(fn); n = n or E('bgn', 22)
            while lines:
                m = n
                while any(x.startswith('s_setprio 3') for x in lines[:m]) and not any(x.startswith('s_setprio 0') for x in lines[:m]): m += 1
                a('\n'.join(lines[:m])); lines = lines[m:]
                if lines: yield_(dl)
        def cs_sum():
            for i in range(16):
                r_ = CSR + i
                if i == 0:
                    a(f'v_lshlrev_b32 v{CA}, 16, v{r_}\nv_and_b32 v{CA+1}, 0xffff0000, v{r_}')
                else:
                    a(f'v_lshlrev_b32 v{CA+4}, 16, v{r_}\nv_and_b32 v{CA+5}, 0xffff0000, v{r_}')
                    a(f'v_add_f32 v{CA}, v{CA}, v{CA+4}\nv_add_f32 v{CA+1}, v{CA+1}, v{CA+5}')
        PQR = 64; KVR = 192; ZR = 200
        AK, AZ, NUM, DEN, OUT = 96, 100, 104, 136, 168
        Lc = lab('cs')
        late = E('cslate', 0); CDL = E('cdl', 'B22') if late else 'XA'; CSA = 57
        def cs_chain():
            if not E('cs0', 0):
                earliest(E('e_cs', 'B6'))
                dst('csld0')
                cs_loads((lambda: yield_(CDL)) if E('dsl', 0) else None)
            dst('csld1')
            nbwait(CDL)
            dst('csld2')
            sliced(cs_sum, CDL)
            a(f'v_permlane32_swap_b32 v{CA}, v{CA+1}\nv_add_f32 v{CA}, v{CA}, v{CA+1}')
            a(f'v_and_b32 v{T[5]}, 31, v0\nv_lshrrev_b32 v{T[6]}, 5, v0\nv_lshlrev_b32 v{T[6]}, 2, v{T[6]}\nv_lshl_add_u32 v{T[6]}, v{T[5]}, 3, v{T[6]}')
            a(f'v_cmp_gt_u32 vcc, 28, v{T[5]}\nv_cndmask_b32 v{T[6]}, v{OB}, v{T[6]}, vcc')
            a(f's_lshr_b32 s{sT0}, s{sR}, 1\ns_lshl_b32 s{sT0}, s{sT0}, 10\ns_and_b32 s{sT2}, s{sR}, 1\ns_lshl_b32 s{sT2}, s{sT2}, 1\ns_add_u32 s{sT2}, s{sT2}, s{sSW}\ns_mul_i32 s{sT2}, s{sT2}, 224')
            a(f's_add_u32 s{sT0}, s{sT0}, s{sT2}\ns_add_u32 s{sT0}, s{sT0}, s{sD}\ns_add_u32 s{sT0}, s{sT0}, {KV_CS}')
            a(f'buffer_store_dword v{CA}, v{T[6]}, {srd(sWS)}, s{sT0} offen sc1')
            dst('csst')
            nbwait(CDL)
            dst('csack')
            earliest('B5')
            a(f's_lshl_b32 s9, s{sR}, 1\ns_add_u32 s9, s9, s{sSW}')
            count(CF_CS, 9)
            earliest(E('e_csc', 'B17'))
            dst('cschk0')
            spin(CF_CS, 64, CDL)
            dst('cschk1')
            a(f'v_lshlrev_b32 v{T[0]}, 4, v0\nv_cmp_gt_u32 vcc, 56, v0\nv_cndmask_b32 v{T[0]}, v{OB}, v{T[0]}, vcc')
            a(f's_lshl_b32 s{sT2}, s{sSW}, 13\ns_add_u32 s{sT2}, s{sT2}, s{sD}\ns_add_u32 s{sT2}, s{sT2}, {KV_CS}')
            for k in range(8):
                if k % 4 == 0: a(f's_add_u32 s{sT0}, s{sT2}, {k*1024}')
                a(f'buffer_load_dwordx4 {vr(CSR+4*k,4)}, v{T[0]}, {srd(sWS)}, s{sT0} offen offset:{(k&3)*1024} sc1')
                if k == 3 and E('dsl2', 0): yield_(CDL)
        def cs_tail():
            def cs_fin():
                for st in (16, 8, 4):
                    for k in range(st): a(f'v_add_f32 v{CSR+k}, v{CSR+k}, v{CSR+st+k}')
            dst('csg0')
            nbwait(CDL)
            dst('csg1')
            sliced(cs_fin, CDL, 30)
            a(f'v_lshlrev_b32 v{CSA}, 4, v0\nv_add_u32 v{CSA}, {CS3L}, v{CSA}')
            earliest('B16')
            a(f's_cmp_eq_u32 s{sSW}, 0\ns_cbranch_scc1 {Lc}a')
            a(f'ds_write_b128 v{CSA}, {vr(CSR,4)} offset:1024\ns_waitcnt lgkmcnt(0)\n{Lc}a:')
        if E('x_nocs', 0):
            earliest(E('e_cs', 'B6')); touch(sW3, 56, 7)
        else:
            cs_chain()
            if not late: cs_tail()
        if pf and E('e_p4', 'B13') == 'D': touch(sWO, 16, 8); touch(sW4, 56, 9)
        a(f's_lshl_b32 s7, s{sJ}, 1\ns_add_u32 s7, s7, s{sSW}\ns_lshl_b32 s8, s7, 2\ns_lshl_b32 s7, s7, 12\ns_add_u32 s7, s7, s{sC}\ns_add_u32 s7, s7, {O_OFF}')
        a(f's_lshl_b32 s{sT0}, s{sR}, 7\ns_add_u32 s8, s8, s{sT0}\ns_add_u32 s8, s8, {FL_OFF + FO*4096}\nv_mov_b32 v{VFO}, s8')
        earliest('XA')
        def cs_join():
            a(f's_cmp_lg_u32 s{sSW}, 0\ns_cbranch_scc1 {Lc}b')
            a(f'ds_read_b128 {vr(CSR+4,4)}, v{CSA} offset:1024\ns_waitcnt lgkmcnt(0)')
            for k in range(4): a(f'v_add_f32 v{CSR+k}, v{CSR+k}, v{CSR+4+k}')
            a(f'ds_write_b128 v{CSA}, {vr(CSR,4)}\ns_waitcnt lgkmcnt(0)\n{Lc}b:')
        if not late: cs_join()
        a(f's_lshl_b32 s{sT0}, s{sSW}, 12\ns_add_u32 s{sT0}, s{sT0}, {PQ}\nv_lshl_add_u32 v{T[0]}, v0, 3, s{sT0}')
        for k in range(8): a(f'ds_read_b64 {vr(PQR+2*k,2)}, v{T[0]} offset:{k*512}')
        a('s_waitcnt lgkmcnt(0)')
        kv2 = E('kv2', 0)
        if late and not E('x_nocs', 0): cs_tail()
        earliest(E('e_kvb', 'XA'))
        if E('x_noo', 0):
            one_lane(f'buffer_store_dword v{VONE}, v{VFO}, {srd(sWS)}, 0 offen sc1'); nbwait('B51'); a('s_endpgm')
        dst('kvchk0')
        spin(CF_A, 32, 'B24' if late else ODL)
        dst('kvchk1')
        if kv2:
            a(f's_lshl_b32 s20, s{sSW}, 5\ns_add_u32 s20, s20, s{sR}\ns_cmp_lt_u32 s20, 34\ns_cselect_b32 s21, 0, {OOB}\ns_lshl_b32 s22, s20, 7\ns_add_u32 s22, s22, s{sD}')
            a(f'v_lshrrev_b32 v{T[1]}, 3, v0\nv_mul_u32_u24 v{T[1]}, {KVP}, v{T[1]}\nv_and_b32 v{T[2]}, 7, v0\nv_lshlrev_b32 v{T[2]}, 4, v{T[2]}\nv_add3_u32 v{T[1]}, v{T[1]}, v{T[2]}, s21')
            for k in range(4):
                a(f's_add_u32 s{sT0}, s22, {k*8*KVP}\nbuffer_load_dwordx4 {vr(KVR+4*k,4)}, v{T[1]}, {srd(sWS)}, s{sT0} offen sc1')
            nbwait(ODL)
            dst('l2ld')
            for k in range(8): a(f'v_add_f32 v{KVR+k}, v{KVR+k}, v{KVR+8+k}')
            for k in range(4): a(f'v_add_f32 v{KVR+k}, v{KVR+k}, v{KVR+4+k}')
            for k in range(4): a(f'v_add_f32_dpp v{KVR+k}, v{KVR+k}, v{KVR+k} row_ror:8 row_mask:0xf bank_mask:0xf')
            for sw_ in ('v_permlane16_swap_b32', 'v_permlane32_swap_b32'):
                if sw_.startswith('v_permlane32'): yield_(ODL)
                for k in range(4): a(f'v_mov_b32 v{KVR+4+k}, v{KVR+k}')
                for k in range(4): a(f'{sw_} v{KVR+k}, v{KVR+4+k}')
                for k in range(4): a(f'v_add_f32 v{KVR+k}, v{KVR+k}, v{KVR+4+k}')
            a(f'v_cmp_gt_u32 vcc, 8, v0\nv_add_u32 v{T[2]}, s21, v{T[2]}\nv_cndmask_b32 v{T[2]}, v{OB}, v{T[2]}, vcc\ns_add_u32 s{sT0}, s22, {KV_FIN}')
            a(f'buffer_store_dwordx4 {vr(KVR,4)}, v{T[2]}, {srd(sWS)}, s{sT0} offen sc1')
            nbwait(ODL)
            count(CF_B, 20)
            dst('l2pub')
            earliest(E('e_kvc', 'B29'))
            spin(CF_B, 64, ODL)
            dst('l2chk')
            a(f'v_lshrrev_b32 v{T[1]}, 4, v0\nv_lshlrev_b32 v{T[1]}, 4, v{T[1]}\nv_and_b32 v{T[0]}, 3, v0\nv_lshl_add_u32 v{T[0]}, v{T[0]}, 8, v{T[1]}')
            a(f'v_bfe_u32 v{T[2]}, v0, 2, 2\nv_lshl_add_u32 v{T[0]}, v{T[2]}, 6, v{T[0]}')
        else:
            a(f'v_lshrrev_b32 v{T[1]}, 4, v0\nv_lshlrev_b32 v{T[1]}, 4, v{T[1]}\nv_and_b32 v{T[0]}, 15, v0\nv_lshl_add_u32 v{T[0]}, v{T[0]}, 6, v{T[1]}')
        fin = KV_FIN if kv2 else 0
        for rep in range(1 if kv2 else NREP):
            a(f's_lshl_b32 s{sT0}, s{sSW}, 11\ns_add_u32 s{sT2}, s{sT0}, s{sD}\ns_add_u32 s{sT2}, s{sT2}, {8192*rep + fin}')
            for hh in range(2): a(f'buffer_load_dwordx4 {vr(KVR+16*rep+4*hh,4)}, v{T[0]}, {srd(sWS)}, s{sT2} offen offset:{hh*1024} sc1')
            a(f's_lshl_b32 s{sT2}, s{sSW}, 7\ns_add_u32 s{sT2}, s{sT2}, s{sD}\ns_add_u32 s{sT2}, s{sT2}, {KV_Z + 8192*rep + fin}')
            for hh in range(2): a(f'buffer_load_dwordx4 {vr(ZR+16*rep+4*hh,4)}, v{T[1]}, {srd(sWS)}, s{sT2} offen offset:{hh*64} sc1')
        dst('kvg0')
        if late and not E('x_nocs', 0):
            earliest(CDL); cs_join()
        nbwait(ODL)
        dst('kvg1')
        def kv_sum():
            if not kv2:
                for k in range(32): a(f'v_add_f32 v{KVR+k}, v{KVR+k}, v{KVR+32+k}')
                for k in range(16): a(f'v_add_f32 v{KVR+k}, v{KVR+k}, v{KVR+16+k}')
            for hh in range(2):
                a(f'v_cvt_pk_bf16_f32 v{AK+2*hh}, v{KVR+4*hh}, v{KVR+4*hh+1}\nv_cvt_pk_bf16_f32 v{AK+2*hh+1}, v{KVR+4*hh+2}, v{KVR+4*hh+3}')
                a(f'v_cvt_pk_bf16_f32 v{AZ+2*hh}, v{ZR+4*hh}, v{ZR+4*hh+1}\nv_cvt_pk_bf16_f32 v{AZ+2*hh+1}, v{ZR+4*hh+2}, v{ZR+4*hh+3}')
        if E('dprio', 1): a(f's_setprio {E("dprio", 1)}')
        sliced(kv_sum, ODL, E('bgn2', 60))
        def o_compute():
            a('s_setprio 3')
            for k in range(8): a(f'v_mfma_f32_16x16x16_bf16 {vr(DEN+4*k,4)}, {vr(AZ+2*(k>>2),2)}, {vr(PQR+2*k,2)}, 0')
            for k in range(8): a(f'v_mfma_f32_16x16x16_bf16 {vr(NUM+4*k,4)}, {vr(AK+2*(k>>2),2)}, {vr(PQR+2*k,2)}, 0')
            a('s_setprio 0')
            if E('dprio', 1): a(f's_setprio {E("dprio", 1)}')
            for k in range(8): a(f'v_add_f32 v{DEN+4*k}, s{sEPS}, v{DEN+4*k}')
            for k in range(8): a(f'v_rcp_f32 v{DEN+4*k}, v{DEN+4*k}')
            for pr in range(4):
                for k in (2*pr, 2*pr+1):
                    for e in range(4): a(f'v_mul_f32 v{NUM+4*k+e}, v{NUM+4*k+e}, v{DEN+4*k}')
                for u in range(4*pr, 4*pr+4): a(f'v_cvt_pk_bf16_f32 v{OUT+u}, v{NUM+2*u}, v{NUM+2*u+1}')
                a(f'v_permlane16_swap_b32 v{OUT+4*pr}, v{OUT+4*pr+2}\nv_permlane16_swap_b32 v{OUT+4*pr+1}, v{OUT+4*pr+3}')
                a(f'buffer_store_dwordx4 {vr(OUT+4*pr,4)}, v{CELLV}, {srd(sWS)}, s7 offen offset:{(pr>>1)*2048+(pr&1)*512} sc1')
        dst('kvsum')
        sliced(o_compute, ODL, E('bgn3', 40))
        dst('ost')
        nbwait(ODL)
        dst('oack')
        one_lane(f'buffer_store_dword v{VONE}, v{VFO}, {srd(sWS)}, 0 offen sc1')
        if prof: a(f's_mov_b32 s10, s{sBC}'); earliest('B50')
        else: nbwait('B51')
        if prof:
            a(f's_lshl_b32 s{sT0}, s2, 3\ns_add_u32 s{sT0}, s{sT0}, s{sW}\ns_add_u32 s{sT0}, s{sT0}, 5\ns_lshl_b32 s{sT0}, s{sT0}, 8\ns_add_u32 s{sT0}, s{sT0}, {TS_OFF}')
            a(f'v_mov_b32 v2, s10\nv_mov_b32 v3, 0')
            a(f'v_lshlrev_b32 v3, 2, v0\nv_writelane_b32 v{VDS}, s10, 63\nbuffer_store_dword v{VDS}, v3, {srd(sWS)}, s{sT0} offen')
            dump_arrive(0)
        a('s_endpgm')

        a('L_sync:')
        a.vm = vmS; a.lg = []; stok.update(stokS); grp[0] = [2, 3]
        VTS, VTC = 31, 60
        if E('fprio', 3): a(f's_setprio {E("fprio", 3)}')
        if two: loader_setup()
        else:
            a('s_waitcnt lgkmcnt(0)')
            self.srds(a, skipx=True)
        if prof: a(f'v_mov_b32 v{VTS}, 0\nv_mov_b32 v{VTC}, 0\nv_writelane_b32 v{VTS}, s26, 63')
        nstamp = [0]
        def stamp(last=False):
            if prof:
                if nstamp[0]:
                    a(f's_waitcnt lgkmcnt(0)\nv_writelane_b32 v{VTS}, s{sTSP}, {nstamp[0]-1}\nv_writelane_b32 v{VTC}, s26, {nstamp[0]-1}')
                    a.lg = []
                if not last: a(f's_memrealtime s[{sTSP}:{sTSP+1}]\ns_memtime s[26:27]')
                nstamp[0] += 1
        def flag_setup():
            common_regs()
            a(f's_lshl_b32 s{sT0}, s{sR}, 7\ns_add_u32 s{sT0}, s{sT0}, {FL_OFF}\ns_lshl_b32 s{sT2}, s{sJ}, 2\ns_add_u32 s{sT2}, s{sT2}, s{sT0}\nv_mov_b32 v{VFL}, s{sT2}')
            a(f'v_and_b32 v{VZA}, 7, v0\nv_lshlrev_b32 v{VZA}, 2, v{VZA}\nv_add_u32 v{VFP}, s{sT0}, v{VZA}')
            a(f'v_and_b32 v{VZA}, 15, v0\nv_lshlrev_b32 v{VZA}, 2, v{VZA}\nv_add_u32 v{VFO}, s{sT0}, v{VZA}\nv_and_b32 v{VZA}, 31, v0\nv_lshlrev_b32 v{VZA}, 2, v{VZA}')
            a(f's_cmp_eq_u32 s{sR}, 0\ns_cselect_b32 s{sT2}, 0, -128\ns_cmp_eq_u32 s{sR}, 31\ns_cselect_b32 s{sT3}, 0, 128')
            a(f'v_lshrrev_b32 v{T[3]}, 3, v0\nv_mov_b32 v{T[4]}, 0\nv_mov_b32 v{T[5]}, s{sT2}\nv_mov_b32 v{T[6]}, s{sT3}')
            a(f'v_cmp_eq_u32 vcc, 1, v{T[3]}\nv_cndmask_b32 v{T[4]}, v{T[4]}, v{T[5]}, vcc\nv_cmp_eq_u32 vcc, 2, v{T[3]}\nv_cndmask_b32 v{T[4]}, v{T[4]}, v{T[6]}, vcc')
            a(f'v_add_u32 v{VF3}, v{VFP}, v{T[4]}')
        if not E('late', 0): flag_setup()
        stamp()
        def touch3(s, rows, dst):
            n = rows // 32
            a(f's_lshr_b32 s{sT0}, s2, 3\ns_mul_i32 s{sT0}, s{sT0}, {n*1024}\ns_add_u32 s{sT0}, s{sT0}, 384')
            a(f'v_lshlrev_b32 v{T[7]}, 10, v0\nv_cmp_gt_u32 vcc, {n}, v0\nv_cndmask_b32 v{T[7]}, v{OB}, v{T[7]}, vcc')
            return a(f'buffer_load_dword v{dst}, v{T[7]}, {srd(s)}, s{sT0} offen')
        ck = {}
        def check_issue(vaddr, sr, off):
            ck['t'] = a(f's_mov_b32 s{sT0}, {off}\nbuffer_load_dword v{VCK}, v{vaddr}, {srd(sr)}, s{sT0} offen sc1')
        def check_wait(vaddr, sr, off, val):
            L = lab('p')
            a.wait_vm(ck['t'])
            a(f's_mov_b32 s{sCNT}, {opt.get("spin", 200000)}\ns_mov_b32 s{sT0}, {off}')
            a(f'{L}:')
            a(f'v_cmp_ne_u32 vcc, {val}, v{VCK}\ns_sub_u32 s{sCNT}, s{sCNT}, 1\ns_cmp_eq_u32 s{sCNT}, 0\ns_cbranch_vccz {L}d\ns_cbranch_scc1 {L}d')
            vm = list(a.vm)
            a(f'buffer_load_dword v{VCK}, v{vaddr}, {srd(sr)}, s{sT0} offen sc1\ns_waitcnt vmcnt(0)\ns_branch {L}\n{L}d:')
            a.vm = vm
        early = []
        def pre_poll(vaddr, sr, off):
            r = [36, 37, 38][len(early)]
            a(f's_mov_b32 s{sT0}, {off}')
            early.append((r, a(f'buffer_load_dword v{r}, v{vaddr}, {srd(sr)}, s{sT0} offen sc1')))
        def poll(vaddr, sr, off, val):
            L = lab('q')
            check_issue(vaddr, sr, off)
            check_wait(vaddr, sr, off, val)
        def flag(ftype):
            a(f's_mov_b32 s{sT0}, {ftype*4096}')
            one_lane(f'buffer_store_dword v{VONE}, v{VFL}, {srd(sWS)}, s{sT0} offen sc1')
        XS = 64; xt = {}
        def xs_loads():
            a(f's_lshl_b32 s{sT0}, s{sR}, 13\ns_add_u32 s{sT0}, s{sT0}, {XS_OFF}\ns_add_u32 s{sT2}, s{sT0}, 4096\nv_lshlrev_b32 v{T[0]}, 3, v0')
            for k in range(16):
                xt['s'] = a(f'buffer_load_dwordx2 {vr(XS+2*k,2)}, v{T[0]}, {srd(sWS)}, s{sT0 if k < 8 else sT2} offen offset:{(k&7)*512} sc1')
        def xs_final(part):
            G = XS + 4; t = XS + 1
            if part == 0:
                a.wait_vm(xt['s'])
                for st in (16, 8, 4, 2):
                    for k in range(st): a(f'v_add_f32 v{XS+k}, v{XS+k}, v{XS+st+k}')
                return
            a(f'v_mul_f32 v{G}, {f2u(-1/512):#x}, v{XS}\nv_mul_f32 v{t}, {f2u(1/512):#x}, v{t}')
            a(f'v_fma_f32 v{t}, -v{G}, v{G}, v{t}\nv_max_f32 v{t}, 0, v{t}\nv_add_f32 v{t}, {f2u(1e-5):#x}, v{t}')
            a(f'v_rsq_f32 v{t+1}, v{t}\nv_sqrt_f32 v{G+3}, v{t}')
            a(f'v_mul_f32 v{G+1}, {f2u(GC0):#x}, v{t+1}\nv_mul_f32 v{t+2}, v{t+1}, v{t+1}\nv_mul_f32 v{t+2}, v{t+2}, v{t+1}\nv_mul_f32 v{G+2}, {f2u(GC1):#x}, v{t+2}')
            a(f'v_lshlrev_b32 v{T[0]}, 4, v0\nv_add_u32 v{T[0]}, {X1P}, v{T[0]}')
            a(f'ds_write_b128 v{T[0]}, {vr(G,4)}\ns_waitcnt lgkmcnt(0)')
        fhb, fxb, hlb = f"B{E('fh_bar', 6)}", f"B{E('fx_bar', 17)}", f"B{E('hl_bar', 11)}"
        for n in BARS:
            if n == 'XA': check_wait(VFP, sWS, FX1 * 4096, 1)
            if n == E('e_g0w', 'B31' if E('eg', 0) else 'B34'): check_wait(VFP, sWS, FG0 * 4096, 1)
            if n == f'B{self.need[FG1]}': check_wait(VFP, sWS, FG1 * 4096, 1)
            if n == f'B{self.need[FO]}': check_wait(VFO, sWS, FO * 4096, 1)
            if n == f'B{self.need[FG2]}': check_wait(VFP, sWS, FG2 * 4096, 1)
            if n == hlb: check_wait(VF3, sWS, FH * 4096, 1)
            if two: load_before(n)
            arrive(IDX[n]); self.barsS.append(n); a('s_barrier')
            stamp()
            if n == fhb: flag(FH)
            if n == fxb: flag(FX1)
            if n == f"B{E('fg0_bar', 27)}": flag(FG0)
            if n == f"B{E('fg1_bar', 34)}": flag(FG1)
            if n == f"B{E('fg2_bar', 37)}": flag(FG2)
            if n == (f"B{E('fa_bar', 15)}" if E('kv2', 0) else ('QE' if E('ovl', 0) and E('atp', 0) == 1 else fxb)): count(CF_A, sR)
            if n == E('e_g0i', 'B30' if E('eg', 0) else 'B31'): check_issue(VFP, sWS, FG0 * 4096)
            if n == f'B{max(self.need[FG1] - E("cl", 2), 34)}': check_issue(VFP, sWS, FG1 * 4096)
            if n == f'B{max(self.need[FO] - E("cl", 2), 34)}': check_issue(VFO, sWS, FO * 4096)
            if n == f'B{self.need[FG2] - E("cl", 2)}': check_issue(VFP, sWS, FG2 * 4096)
            if n == 'QE': check_issue(VFP, sWS, FX1 * 4096)
            if n == BARS[IDX[hlb] - E('hl_lead', 2)]: check_issue(VF3, sWS, FH * 4096)
            if n == 'B2': check_issue(VZA, sDBG, 0)
            if n == 'B15': pass
            if two: load_after(n)
            elif n[0] == 'B': stats_after(int(n[1:]))
            if n == 'B0' and E('late', 0): flag_setup()
            if n == E('e_xs', 'B20') and not E('x_noxs', 0): xs_loads()
            if n == 'B4': check_wait(VZA, sDBG, 0, 1)
            if n == 'B22' and not E('x_noxs', 0): xs_final(0)
            if n == 'B23': xs_final(1)
            if pf and n == E('e_p4', 'B13'):
                for (sr, nl) in ((sWO, 16), (sW4, 56)):
                    a(f's_mul_i32 s{sT0}, s2, {nl*128}\nv_cmp_gt_u32 vcc, {nl}, v0\nv_cndmask_b32 v{T[7]}, v{OB}, v{T[15]}, vcc\nbuffer_load_dword v62, v{T[7]}, {srd(sr)}, s{sT0} offen')
            if t3:
                if n == E('e_t3q', 'B4'): touch3(sQKV, 1536, 63)
                if n == E('e_t32', 'B7'): touch3(sW2, 512, 63)
                if n == E('e_t33', 'B13'): touch3(sW3, 1792, 63)
                if n == E('e_t33b', 'B24'): touch3(sW3, 1792, 63)
                if n == E('e_t34', 'B28'): touch3(sW4, 1792, 63)
                if n == E('e_t35', 'B37'): touch3(sWO, 512, 63); touch3(sW4, 1792, 63)
            if n[0] == 'B' and int(n[1:]) >= max(self.need.values()) + 2 and not prof and not two: break
        if prof:
            stamp(True)
            a(f's_lshl_b32 s{sT0}, s2, 3\ns_add_u32 s{sT0}, s{sT0}, 4\ns_lshl_b32 s{sT0}, s{sT0}, 8\ns_add_u32 s{sT0}, s{sT0}, {TS_OFF}')
            a(f'v_lshlrev_b32 v2, 2, v0\nbuffer_store_dword v{VTS}, v2, {srd(sWS)}, s{sT0} offen\nbuffer_store_dword v{VTC}, v2, {srd(sWS)}, s{sT0} offen offset:256')
            dump_arrive(0)
        a('s_endpgm')

        a('L_loader:')
        a.vm = vmL; a.lg = []; stok.update(stokL); grp[0] = [0, 1] if two else [0, 1, 2, 3]
        if E('lprio', 2): a(f's_setprio {E("lprio", 2)}')
        loader_setup()
        for n in BARS:
            load_before(n)
            arrive(IDX[n]); self.barsL.append(n); a('s_barrier')
            load_after(n)
        dump_arrive(0)
        a('s_endpgm')

    def build(self):
        a = Asm()
        dry = Asm(); self.compute(dry); self.barsC = []
        self.prologue(a)
        self.helper(a)
        a.lg = []; a.vm = []
        a('L_compute:')
        self.compute(a)
        a('L_end:\ns_endpgm')
        assert self.barsC[:-1] == self.barsL and self.barsC[-1] == 'RB2' and self.barsL[:len(self.barsS)] == self.barsS, (self.barsC, self.barsL, self.barsS)
        if self.opt.get('align', 16): self.alstat = align_pass(a, KNAME + ':\n', self.opt.get('align', 16))
        ref = open(f'cdna_kernels/{KNAME[:-7]}.s.ref').read().split('\n')
        head = [l for l in ref if l.startswith(';') and '@launch' not in l]
        head += ['; One persistent launch: 256 workgroups = 32 row blocks (64 tokens) x 8 column blocks, one per CU.',
                 '; Waves 0-3 compute (MFMA), wave 4 publishes/polls hand-off flags, waves 5-6 do background work (x tile, row',
                 '; statistics, column sums of w3, attention output), wave 7 streams weight tiles into an LDS ring.',
                 '; Layer norms are applied after the GEMMs as rho*(x@W - mu*colsum(W)).  Tiles exchanged between workgroups go',
                 '; through d_ws with write-through stores and flags that this launch zeroes itself (announced in d_debug).']
        if self.dnames: head.append('; dnames ' + ' '.join(self.dnames))
        out = '\n'.join(head) + '\n; @launch grid=(256,1,1) block=(512,1,1) lds=163840\n'
        out += f'.amdgcn_target "amdgcn-amd-amdhsa--gfx950"\n.text\n.globl {KNAME}\n.p2align 8\n.type {KNAME},@function\n{KNAME}:\n'
        out += a.text()
        out += f'''.section .rodata,"a"
.p2align 6
.amdhsa_kernel {KNAME}
  .amdhsa_next_free_vgpr 256
  .amdhsa_next_free_sgpr 102
  .amdhsa_accum_offset 256
  .amdhsa_group_segment_fixed_size 0
  .amdhsa_kernarg_size 88
  .amdhsa_user_sgpr_count 2
  .amdhsa_user_sgpr_kernarg_segment_ptr 1
  .amdhsa_system_sgpr_workgroup_id_x 1
.end_amdhsa_kernel
'''
        return out, a


def generate(**opt):
    g = Gen(opt)
    return g.build()[0]

if __name__ == '__main__':
    opt = {}
    for arg in sys.argv[2:]:
        k, v = arg.split('=')
        opt[k] = int(v) if v.lstrip('-').isdigit() else v
    g = Gen(opt)
    txt, a = g.build()
    open(sys.argv[1], 'w').write(txt)
    print('instructions', len(a.ins), 'pads', a.npad, 'align', getattr(g, 'alstat', None), 'issue', ISSUE)
```
